```python
import torch

def _softmax(x, axis=-1):
    return torch.softmax(x, dim=axis)

def _gelu(x):
    return torch.nn.functional.gelu(x, approximate='tanh')

def _silu(x):
    return torch.nn.functional.silu(x)

def _sigmoid(x):
    return torch.sigmoid(x)

def _layernorm(x, axis=-1, eps=1e-05):
    m = x.mean(dim=axis, keepdim=True)
    v = x.var(dim=axis, keepdim=True, unbiased=False)
    return (x - m) / torch.sqrt(v + eps)

def _scatter_add(tgt, idx, src, axis=0):
    return tgt.clone().index_add_(axis, idx, src)

def _segment_sum(src, seg, n):
    out = torch.zeros((n,) + src.shape[1:], dtype=src.dtype)
    return out.index_add_(0, seg, src)

def _pad(x, pw):
    flat = tuple((v for pair in reversed(pw) for v in pair))
    return torch.nn.functional.pad(x, flat)
kernel_name = 'interleave_layers__sliding_block__memory_aug_recurrent_mem_tr__prompt'

def setup_inputs():

    _w = lambda a: (lambda t: t.to(torch.bfloat16) if t.is_floating_point() else t)(torch.as_tensor(a))

    def _A_setup():
        B, S, D = (1, 2048, 512)
        return {'x': _w((lambda *s: torch.randn(*s, dtype=torch.bfloat16) * 0.05)(B, S, D)), 'wqkv': _w((lambda *s: torch.randn(*s, dtype=torch.bfloat16) * 0.05)(D, 3 * D)), 'wo': _w((lambda *s: torch.randn(*s, dtype=torch.bfloat16) * 0.05)(D, D))}
    _A_in = _A_setup()

    def _B_setup():
        B, S, Dm = (1, 2048, 512)
        H, Dh = (32, 128)
        M, seg = (8, 32)
        seg = min(seg, S)
        S = S // seg * seg
        return {'x': _w((lambda *s: torch.randn(*s, dtype=torch.bfloat16) * 0.05)(B, S, Dm)), 'mem0': _w((lambda *s: torch.randn(*s, dtype=torch.bfloat16) * 0.8)(B, M, Dm)), 'Wq': _w((lambda *s: torch.randn(*s, dtype=torch.bfloat16) * 1.6)(Dm, H, Dh) * Dm ** (-0.5)), 'Wk': _w((lambda *s: torch.randn(*s, dtype=torch.bfloat16) * 1.6)(Dm, H, Dh) * Dm ** (-0.5)), 'Wv': _w((lambda *s: torch.randn(*s, dtype=torch.bfloat16) * 0.8)(Dm, H, Dh) * Dm ** (-0.5)), 'Wo': _w((lambda *s: torch.randn(*s, dtype=torch.bfloat16) * 0.8)(H, Dh, Dm) * (H * Dh) ** (-0.5)), 'seg_len': seg}
    _B_in = _B_setup()
    return {'A_x': _A_in['x'], 'A_wqkv': _A_in['wqkv'], 'A_wo': _A_in['wo'], 'B_x': _B_in['x'], 'B_mem0': _B_in['mem0'], 'B_Wq': _B_in['Wq'], 'B_Wk': _B_in['Wk'], 'B_Wv': _B_in['Wv'], 'B_Wo': _B_in['Wo'], 'B_seg_len': _B_in['seg_len']}

def reference(A_x, A_wqkv, A_wo, B_x, B_mem0, B_Wq, B_Wk, B_Wv, B_Wo, B_seg_len):

    def _A_ref(x, wqkv, wo):
        B, S, D = x.shape
        H = 32
        Dh = D // H
        W = 256
        qkv = (lambda x, *d: x.permute(*d))((x @ wqkv).reshape(B, S, 3, H, Dh), 2, 0, 3, 1, 4)
        q, k, v = (qkv[0], qkv[1], qkv[2])
        scores = torch.einsum('bhqd,bhkd->bhqk', q, k) * Dh ** (-0.5)
        idx = torch.arange(S)
        mask = (idx[:, None] - idx[None, :] >= 0) & (idx[:, None] - idx[None, :] < W)
        scores = torch.where(mask[None, None], scores, -1000000000.0)
        p = _softmax(scores, axis=-1)
        o = torch.einsum('bhqk,bhkd->bhqd', p, v)
        return (lambda x, *d: x.permute(*d))(o, 0, 2, 1, 3).reshape(B, S, D) @ wo

    def _B_ref(x, mem0, Wq, Wk, Wv, Wo, seg_len):
        B, S, Dm = x.shape
        H, Dh = (Wq.shape[1], Wq.shape[2])
        M = mem0.shape[1]
        scale = Dh ** (-0.5)
        n_seg = S // seg_len
        L = M + seg_len
        idx = torch.arange(L)
        mask = (idx[:, None] < M) | (idx[:, None] >= idx[None, :])
        mem = mem0
        outs = []
        for s in range(n_seg):
            xs = x[:, s * seg_len:(s + 1) * seg_len, :].clone()
            h = torch.concatenate([mem, xs], axis=1)
            q = torch.einsum('btd,dhe->bhte', h, Wq)
            k = torch.einsum('btd,dhe->bhte', h, Wk)
            v = torch.einsum('btd,dhe->bhte', h, Wv)
            scores = torch.einsum('bhqe,bhke->bhqk', q, k) * scale
            scores = torch.where(mask[None, None], scores, -1000000000.0)
            p = _softmax(scores, axis=-1)
            o = torch.einsum('bhqk,bhke->bhqe', p, v)
            o = torch.einsum('bhte,hed->btd', o, Wo)
            mem = o[:, :M, :].clone()
            outs.append(o[:, M:, :])
        return torch.concatenate(outs, axis=1)
    x = A_x
    x = x + _A_ref(_layernorm(x, axis=-1), A_wqkv, A_wo)
    x = x + _B_ref(_layernorm(x, axis=-1), B_mem0, B_Wq, B_Wk, B_Wv, B_Wo, B_seg_len)
    x = x + _A_ref(_layernorm(x, axis=-1), A_wqkv, A_wo)
    x = x + _B_ref(_layernorm(x, axis=-1), B_mem0, B_Wq, B_Wk, B_Wv, B_Wo, B_seg_len)
    return x
```

```python
import re

TRANS = ('v_exp_f32','v_log_f32','v_rcp_f32','v_rsq_f32','v_sqrt_f32','v_sin_f32','v_cos_f32','v_rcp_iflag_f32')

def mfma_passes(m):
    if m.startswith('v_mfma_f32_32x32x16') or m.startswith('v_mfma_f32_32x32x8') or m.startswith('v_smfmac_f32_32x32x32'):
        return 8
    if m.startswith('v_mfma_f32_16x16x32') or m.startswith('v_mfma_f32_16x16x16') or m.startswith('v_smfmac_f32_16x16x64'):
        return 4
    raise ValueError('unknown mfma '+m)

REG_RE = re.compile(r'^(-|abs\()?([vas])(\d+)\)?$')
RNG_RE = re.compile(r'^(-)?([vas])\[(\d+):(\d+)\]$')

def regs_of(op):
    op = op.strip()
    m = REG_RE.match(op)
    if m:
        k, n = m.group(2), int(m.group(3))
        return {(k, n)}
    m = RNG_RE.match(op)
    if m:
        k, a, b = m.group(2), int(m.group(3)), int(m.group(4))
        return {(k, i) for i in range(a, b+1)}
    if op in ('vcc',): return {('s','vcc_lo'),('s','vcc_hi')}
    if op in ('vcc_lo','vcc_hi'): return {('s',op)}
    if op == 'exec': return {('s','exec_lo'),('s','exec_hi')}
    if op in ('exec_lo','exec_hi'): return {('s',op)}
    if op == 'm0': return {('s','m0')}
    if op == 'scc': return {('s','scc')}
    return set()

def split_ops(rest):
    out=[]; depth=0; cur=''
    for ch in rest:
        if ch in '[(': depth+=1
        if ch in '])': depth-=1
        if ch==',' and depth==0:
            out.append(cur.strip()); cur=''
        else: cur+=ch
    if cur.strip(): out.append(cur.strip())
    return out

class Ins:
    __slots__=('text','mn','ops','mods','kind','vw','vr','sw','sr','passes','srcC','srcAB','label','target','dpp','isdma','storedata','cnt','wide')
    def __init__(self, text):
        self.text=text
        t=text.split(';')[0].strip()
        self.label=None; self.target=None
        self.vw=set(); self.vr=set(); self.sw=set(); self.sr=set()
        self.passes=0; self.srcC=set(); self.srcAB=set(); self.dpp=False; self.isdma=False; self.storedata=set(); self.cnt=None; self.wide=False
        if t.endswith(':'):
            self.kind='label'; self.label=t[:-1]; self.mn=''; self.ops=[]; return
        if t.startswith('.') or t=='':
            self.kind='dir'; self.mn=t; self.ops=[]; return
        parts=t.split(None,1)
        self.mn=parts[0]
        rest=parts[1] if len(parts)>1 else ''
        ops=split_ops(rest)
        mods=[]
        if ops:
            last=ops[-1].split()
            if len(last)>1 and not self.mn.startswith('s_waitcnt'):
                ops[-1]=last[0]; mods=last[1:]
        self.ops=ops; self.mods=mods
        self.classify()
    def _split(self, regs):
        v={r for r in regs if r[0] in 'va'}
        s={r for r in regs if r[0]=='s'}
        return v,s
    def rd(self, op):
        v,s=self._split(regs_of(op)); self.vr|=v; self.sr|=s
    def wr(self, op):
        v,s=self._split(regs_of(op)); self.vw|=v; self.sw|=s
    def classify(self):
        m=self.mn; ops=self.ops; mods=self.mods
        base=re.sub(r'_(e32|e64|dpp|sdwa)$','',m)
        if m.startswith('v_mfma') or m.startswith('v_smfmac'):
            self.kind='mfma'; self.passes=mfma_passes(m)
            self.wr(ops[0]); self.rd(ops[1]); self.rd(ops[2])
            self.srcAB=regs_of(ops[1])|regs_of(ops[2])
            if m.startswith('v_smfmac'):
                self.srcC=regs_of(ops[0]); self.rd(ops[0]); self.rd(ops[3]); self.srcAB|=regs_of(ops[3])
            else:
                self.srcC={r for r in regs_of(ops[3]) if r[0] in 'va'}; self.rd(ops[3])
            return
        if m.startswith('v_'):
            self.kind='valu'
            self.dpp = any(x.startswith(('row_','quad_perm','wave_','row_bcast','row_mirror','row_half')) for x in mods) or m.endswith('_dpp')
            if base.startswith('v_cmpx'):
                self.wr(ops[0]); self.wr('exec')
                for o in ops[1:]: self.rd(o)
            elif base.startswith('v_cmp'):
                self.wr(ops[0])
                for o in ops[1:]: self.rd(o)
            elif base in ('v_readfirstlane_b32','v_readlane_b32'):
                self.wr(ops[0])
                for o in ops[1:]: self.rd(o)
            elif base in ('v_add_co_u32','v_sub_co_u32','v_subrev_co_u32'):
                self.wr(ops[0]); self.wr(ops[1])
                for o in ops[2:]: self.rd(o)
            elif base in ('v_addc_co_u32','v_subb_co_u32'):
                self.wr(ops[0]); self.wr(ops[1])
                for o in ops[2:]: self.rd(o)
            elif base in ('v_permlane32_swap_b32','v_permlane16_swap_b32','v_swap_b32'):
                self.wr(ops[0]); self.wr(ops[1]); self.rd(ops[0]); self.rd(ops[1])
            elif base in ('v_nop',):
                pass
            else:
                self.wr(ops[0])
                for o in ops[1:]: self.rd(o)
                if base in ('v_fmac_f32','v_writelane_b32','v_dot2c_f32_bf16','v_pk_fmac_f16','v_mac_f32') or self.dpp or 'op_sel' in ' '.join(mods) and base.startswith('v_cvt'):
                    self.rd(ops[0])
                if base=='v_cndmask_b32' and len(ops)==3: self.rd('vcc')
            self.sr |= {('s','exec_lo'),('s','exec_hi')}
            return
        if m.startswith('buffer_') or m.startswith('global_'):
            self.kind='vmem'; self.cnt='vm'
            lds = 'lds' in mods or m.startswith('global_load_lds')
            if m.startswith('buffer_load'):
                if lds:
                    self.isdma=True
                    for o in ops: self.rd(o)
                    self.rd('m0')
                else:
                    self.wr(ops[0])
                    for o in ops[1:]: self.rd(o)
            elif m.startswith('buffer_store'):
                for o in ops: self.rd(o)
                self.storedata=regs_of(ops[0]); self.wide = ('x3' in m or 'x4' in m)
            elif m.startswith('buffer_atomic'):
                for o in ops: self.rd(o)
                if 'sc0' in mods: self.wr(ops[0])
            elif m.startswith('buffer_inv') or m.startswith('buffer_wbl2'):
                pass
            elif m.startswith('global_load_lds'):
                self.isdma=True
                for o in ops: self.rd(o)
                self.rd('m0')
            elif m.startswith('global_load'):
                self.wr(ops[0])
                for o in ops[1:]: self.rd(o)
            elif m.startswith('global_store'):
                for o in ops: self.rd(o)
                self.storedata=regs_of(ops[1]); self.wide = ('x3' in m or 'x4' in m)
            elif m.startswith('global_atomic'):
                if 'sc0' in mods:
                    self.wr(ops[0])
                    for o in ops[1:]: self.rd(o)
                else:
                    for o in ops: self.rd(o)
            else: raise ValueError(self.text)
            return
        if m.startswith('ds_'):
            self.kind='ds'; self.cnt='lgkm'
            if m.startswith(('ds_read','ds_bpermute','ds_permute','ds_swizzle')):
                self.wr(ops[0])
                for o in ops[1:]: self.rd(o)
            elif m.startswith(('ds_write','ds_add','ds_max','ds_or','ds_min')):
                for o in ops: self.rd(o)
                if '_rtn' in m:
                    self.vr=set(); self.wr(ops[0])
                    for o in ops[1:]: self.rd(o)
            else: raise ValueError(self.text)
            return
        if m.startswith('s_load') or m.startswith('s_buffer_load') or m in('s_memtime','s_memrealtime'):
            self.kind='smem'; self.cnt='lgkm'
            self.wr(ops[0])
            for o in ops[1:]: self.rd(o)
            return
        if m in ('s_branch',) or m.startswith('s_cbranch'):
            self.kind='branch'; self.target=ops[0]
            if 'scc' in m: self.rd('scc')
            if 'vcc' in m: self.rd('vcc')
            if 'exec' in m: self.rd('exec')
            return
        if m=='s_endpgm': self.kind='end'; return
        if m=='s_waitcnt': self.kind='wait'; return
        if m=='s_nop': self.kind='nop'; return
        if m in ('s_barrier','s_sleep','s_setprio','s_sethalt'): self.kind='salu'; return
        if m.startswith('s_'):
            self.kind='salu'
            if m.startswith('s_cmp') or m.startswith('s_bitcmp'):
                for o in ops: self.rd(o)
                self.wr('scc')
            elif 'saveexec' in m:
                self.wr(ops[0]); self.wr('exec'); self.rd(ops[1]); self.rd('exec'); self.wr('scc')
            elif m=='s_getreg_b32':
                self.wr(ops[0])
            elif m=='s_setreg_b32':
                self.rd(ops[1])
            else:
                self.wr(ops[0])
                for o in ops[1:]: self.rd(o)
                if m.startswith(('s_addk','s_mulk')): self.rd(ops[0])
                if m.startswith(('s_cselect','s_addc','s_subb','s_cmov')): self.rd('scc')
                if not m.startswith(('s_mov','s_movk','s_cselect','s_mul_i32','s_mul_hi','s_getpc','s_cmov')): self.wr('scc')
            return
        raise ValueError('unclassified: '+self.text)

def states_of(ins):
    if ins.kind in ('label','dir'): return 0
    if ins.kind=='nop': return int(ins.ops[0],0)+1
    return 1

CAP=24
def required(prod, cons):
    need=0
    if prod.kind=='valu':
        pw_s=prod.sw; pw_v=prod.vw
        if pw_s:
            if cons.kind=='vmem' and (pw_s & cons.sr): need=max(need,5)
            if cons.kind=='valu':
                ex={('s','exec_lo'),('s','exec_hi')}
                if (pw_s-ex) & cons.sr:
                    need=max(need, 4 if cons.mn.startswith(('v_readlane','v_writelane')) else 2)
                if pw_s & ex:
                    if cons.dpp: need=max(need,5)
                    if cons.mn.startswith(('v_readlane','v_readfirstlane','v_writelane','v_permlane')): need=max(need,4)
            if cons.kind=='mfma' and pw_s & {('s','exec_lo'),('s','exec_hi')}: need=max(need,4)
            if cons.kind=='branch' and (pw_s & cons.sr): need=max(need,0)
        if pw_v:
            if cons.kind=='mfma' and (pw_v & cons.vr): need=max(need,2)
            if cons.kind=='valu':
                if cons.dpp and (pw_v & cons.vr): need=max(need,2)
                if cons.mn.startswith(('v_readlane','v_readfirstlane')) and (pw_v & cons.vr): need=max(need,1)
                if cons.mn.startswith('v_permlane') and (pw_v & cons.vr): need=max(need,2)
                if prod.mn.startswith(TRANS) and not cons.mn.startswith(TRANS) and (pw_v & cons.vr): need=max(need,1)
                if (('op_sel' in ' '.join(prod.mods) and not prod.mn.startswith('v_pk_')) or prod.mn.endswith('_sdwa')) and (pw_v & (cons.vr|cons.vw)): need=max(need,1)
            if prod.mn.startswith('v_dot2'):
                if cons.kind=='valu' and cons.mn==prod.mn:
                    ab=set()
                    if cons.mn.startswith('v_dot2c'): ab=regs_of(cons.ops[1])|regs_of(cons.ops[2])
                    else: ab=regs_of(cons.ops[1])|regs_of(cons.ops[2])
                    if pw_v & ab: need=max(need,3)
                elif cons.kind in('valu','vmem','ds','mfma') and (pw_v & (cons.vr|cons.vw)): need=max(need,3)
            if prod.mn.startswith(TRANS) and cons.kind in('vmem','ds') and (pw_v & cons.vr): need=max(need,1)
    if prod.kind=='mfma':
        p=prod.passes
        D=prod.vw
        if cons.kind=='mfma':
            if D & cons.srcC:
                if cons.srcC==D and cons.passes==p: need=max(need, 2 if p==2 else 0)
                else: need=max(need,{2:4,4:6,8:10,16:18}[p])
            if D & cons.srcAB: need=max(need,{2:5,4:8,8:12,16:20}[p])
            if (D & cons.vw) and not (cons.srcC==D): need=max(need,{2:5,4:8,8:12,16:20}[p])
        elif cons.kind in ('valu','vmem','ds'):
            if D & (cons.vr|cons.vw): need=max(need,{2:5,4:8,8:12,16:20}[p])
        if cons.kind in('valu',) and (prod.srcC & cons.vw): need=max(need,{2:1,4:3,8:7,16:15}[p])
        if cons.kind in('vmem','ds') and (prod.srcC & cons.vw): need=max(need,{2:1,4:3,8:7,16:15}[p])
    if prod.kind=='vmem' and prod.wide and prod.storedata:
        if cons.kind=='valu' and (prod.storedata & cons.vw): need=max(need,2)
        elif cons.kind in('vmem','ds','mfma') and (prod.storedata & cons.vw): need=max(need,1)
    if prod.kind=='salu' and ('s','m0') in prod.sw:
        if cons.isdma or 'addtid' in cons.mn: need=max(need,1)
    if prod.kind=='salu' and prod.mn.startswith('s_setreg') and cons.mn.startswith(('s_getreg','s_setreg')): need=max(need,2)
    return need

def relevant(ins):
    if ins.kind=='mfma': return True
    if ins.kind=='valu': return True
    if ins.kind=='vmem' and ins.wide and ins.storedata: return True
    if ins.kind=='salu' and (('s','m0') in ins.sw or ins.mn.startswith('s_setreg')): return True
    return False

def pad_hazards(lines):
    ins=[Ins(l) for l in lines]
    n=len(ins)
    labels={i.label:k for k,i in enumerate(ins) if i.kind=='label'}
    pad=[0]*n
    def succ(k):
        i=ins[k]
        if i.kind=='end': return []
        if i.kind=='branch':
            t=[labels[i.target]] if i.target in labels else []
            if i.mn=='s_branch': return t
            return t+([k+1] if k+1<n else [])
        return [k+1] if k+1<n else []
    changed=True; it=0
    while changed:
        changed=False; it+=1
        if it>50: raise RuntimeError('hazard pass does not converge')
        state=[None]*n; state[0]={}
        work=[0]
        for k,i in enumerate(ins):
            if i.kind=='label' and i.label.endswith('_kernel'):
                state[k]={}; work.append(k)
        while work:
            k=work.pop()
            st=state[k]; i=ins[k]
            if i.kind not in('label','dir','nop'):
                need=0
                for p,el in st.items():
                    r=required(ins[p],i)
                    if r>el: need=max(need,r-el)
                if need>pad[k]:
                    pad[k]=need; changed=True
            adv=pad[k]+states_of(i)
            ns={p:el+adv for p,el in st.items() if el+adv<CAP}
            if relevant(i): ns[k]=0
            for s in succ(k):
                if state[s] is None:
                    state[s]=dict(ns); work.append(s)
                else:
                    m=state[s]; ch=False
                    for p,el in ns.items():
                        if p not in m or m[p]>el:
                            m[p]=el; ch=True
                    if ch: work.append(s)
    out=[]; total=0
    for k,l in enumerate(lines):
        p=pad[k]; total+=p
        while p>0:
            q=min(p,16); out.append('    s_nop %d'%(q-1)); p-=q
        out.append(l)
    return out,total

def parse_wait(ins):
    t=ins.text.split(';')[0]
    vm=re.search(r'vmcnt\((\d+)\)',t); lg=re.search(r'lgkmcnt\((\d+)\)',t)
    return (int(vm.group(1)) if vm else None, int(lg.group(1)) if lg else None)

def lint_waits(lines, max_states=200000):
    ins=[Ins(l) for l in lines]
    n=len(ins)
    labels={i.label:k for k,i in enumerate(ins) if i.kind=='label'}
    seen=set(); errs={}
    entries=[k for k,i in enumerate(ins) if i.kind=='label' and i.label.endswith('_kernel')] or [0]
    work=[(k,(),()) for k in entries]
    cnt=0
    while work:
        k,vm,lg=work.pop()
        while True:
            if k>=n: break
            i=ins[k]
            if i.kind=='label':
                key=(k,vm,lg)
                if key in seen: break
                seen.add(key); cnt+=1
                if cnt>max_states:
                    errs['overflow']='lint state overflow'; return errs
            touched=i.vr|i.vw|i.sr|i.sw
            if i.kind not in('label','dir','wait') and touched:
                for q,name in((vm,'vmcnt'),(lg,'lgkmcnt')):
                    for (pk,regs,kind) in q:
                        if regs & touched:
                            if kind==i.kind and not (regs & (i.vr|i.sr)) and kind!='smem': continue
                            errs[(k,pk)]='line %d (%s) touches regs of outstanding line %d (%s) [%s]'%(k,i.text.strip(),pk,ins[pk].text.strip(),name)
            if i.kind=='wait':
                a,b=parse_wait(i)
                if a is not None: vm=vm[len(vm)-a:] if a<len(vm) and a>0 else (vm if a>=len(vm) else ())
                if b is not None:
                    if any(x[2]=='smem' for x in lg) and b>0: pass
                    else: lg=lg[len(lg)-b:] if b<len(lg) and b>0 else (lg if b>=len(lg) else ())
            elif i.cnt=='vm':
                vm=vm+((k,frozenset(i.vw),'vmem'),)
                if len(vm)>63:
                    errs[(k,'vmovf')]='line %d: more than 63 vmem outstanding (%s)'%(k,i.text.strip()); vm=vm[-63:]
            elif i.cnt=='lgkm':
                lg=lg+((k,frozenset(i.vw|i.sw),i.kind),)
                if len(lg)>15 and i.kind!='smem':
                    lg=lg[-40:]
            if i.kind=='end': break
            if i.kind=='branch':
                t=labels.get(i.target)
                if i.mn=='s_branch':
                    k=t; continue
                if t is not None: work.append((t,vm,lg))
            k+=1
    return errs

class Asm:
    def __init__(self):
        self.lines=[]; self.uid=0
    def __call__(self, s):
        for l in s.strip('\n').split('\n'):
            l=l.strip()
            if not l: continue
            if l.endswith(':') or l.startswith('.'): self.lines.append(l)
            elif l.startswith(';'): continue
            else: self.lines.append('    '+l)
    def label(self, name): self.lines.append(name+':')
    def new(self, base):
        self.uid+=1; return '%s_%d'%(base,self.uid)
    def finish(self, lint=True):
        out,total=pad_hazards(self.lines)
        errs=lint_waits(out) if lint else {}
        return out,total,errs
```

```python
from common import *
import roles
SCALE_LOG2E=0x3e0293ee

L_MEM=0; L_XI=8192; XI_ROW=48; L_OI=L_XI+128*XI_ROW
L_KX=L_OI+2048; L_VX=L_KX+8192; L_WO=32768
assert L_VX+8192==L_WO

def emit_weights(a):
    a("""
    s_load_dwordx2 s[12:13], s[0:1], 40      ; Wq
    s_load_dwordx2 s[16:17], s[0:1], 48      ; Wk
    s_load_dwordx2 s[20:21], s[0:1], 56      ; Wv
    s_load_dwordx2 s[24:25], s[0:1], 64      ; Wo
    s_load_dwordx2 s[28:29], s[0:1], 32      ; mem0
    s_waitcnt lgkmcnt(0)
    s_mov_b32 s14, 4194304
    s_mov_b32 s15, 0x20000
    s_mov_b32 s18, 4194304
    s_mov_b32 s19, 0x20000
    s_mov_b32 s22, 4194304
    s_mov_b32 s23, 0x20000
    s_mov_b32 s26, 4194304
    s_mov_b32 s27, 0x20000
    s_mov_b32 s30, 8192
    s_mov_b32 s31, 0x20000
    v_and_b32 v60, 15, v0
    v_lshrrev_b32 v61, 4, v0
    v_and_b32 v62, 1, v61
    v_lshlrev_b32 v63, 13, v61
    s_lshl_b32 s32, s5, 8
    v_add_u32 v63, s32, v63
    """)
    for var in range(4):
        a(f"""
        v_lshlrev_b32 v64, 1, v62
        v_or_b32 v64, {var*4}, v64
        v_xor_b32 v64, v60, v64
        v_lshl_add_u32 v{40+var}, v64, 4, v63
        """)
    a(f"""
    v_lshrrev_b32 v62, 2, v60
    v_and_b32 v63, 3, v60
    v_lshrrev_b32 v64, 1, v61
    v_and_b32 v65, 1, v61
    v_lshrrev_b32 v66, 1, v62
    v_and_b32 v67, 1, v62
    v_lshlrev_b32 v68, 4, v64
    v_lshl_add_u32 v68, v66, 3, v68
    v_lshl_add_u32 v68, v65, 2, v68
    v_add_u32 v68, v68, v67
    v_lshl_add_u32 v69, v65, 1, v67
    v_lshl_add_u32 v69, v66, 2, v69
    v_lshlrev_b32 v69, 1, v69
    s_lshl_b32 s32, s6, 2
    v_lshrrev_b32 v70, 1, v63
    v_add_u32 v70, s32, v70
    v_xor_b32 v70, v70, v69
    v_lshlrev_b32 v70, 4, v70
    v_and_b32 v71, 1, v63
    v_lshl_add_u32 v70, v71, 3, v70
    v_lshl_add_u32 v72, v68, 8, v70
    v_add_u32 v44, {L_WO}, v72
    v_xor_b32 v45, 32, v44
    v_add_u32 v46, 0x10000, v44
    v_add_u32 v47, 0x10000, v45
    """)
    def wreg(M,t,kk,m):
        base={'Q':0,'K':128}.get(M); idx=(t*8+kk)*8+2*m
        if M=='V': return f"v[{128+idx}:{128+idx+1}]"
        return f"a[{base+idx}:{base+idx+1}]"
    for M,srd in (('Q','s[12:15]'),('K','s[16:19]'),('V','s[20:23]')):
        a(f"s_lshl_b32 s33, s6, 20\ns_lshl_b32 s34, s6, 15\ns_add_u32 s34, s34, {L_WO}")
        for n in range(32):
            d0=4*n
            a(f"s_add_u32 m0, s34, {d0*256}\ns_add_u32 s35, s33, {d0*8192}\nbuffer_load_dwordx4 v{40+((d0>>2)&3)}, {srd}, s35 offen lds")
        a("s_waitcnt vmcnt(0)\ns_barrier")
        for t in range(2):
            for kk in range(8):
                for m in range(4):
                    off=(64*(kk&3)+32*(m>>1)+2*(m&1))*256
                    a(f"ds_read_b64_tr_b16 {wreg(M,t,kk,m)}, v{44+t+(2 if kk>=4 else 0)} offset:{off}")
                a("s_waitcnt lgkmcnt(8)")
        a("s_waitcnt lgkmcnt(0)\ns_barrier")
    a("""
    v_and_b32 v62, 1, v61
    v_lshlrev_b32 v63, 10, v61
    s_lshl_b32 s32, s5, 17
    v_add_u32 v63, s32, v63
    """)
    for var in range(4):
        a(f"""
        v_lshlrev_b32 v64, 1, v62
        v_or_b32 v64, {var*4}, v64
        v_xor_b32 v64, v60, v64
        v_lshl_add_u32 v{40+var}, v64, 4, v63
        """)
    a(f"""
    v_lshrrev_b32 v62, 2, v60
    v_lshrrev_b32 v64, 1, v61
    v_and_b32 v65, 1, v61
    v_lshrrev_b32 v66, 1, v62
    v_and_b32 v67, 1, v62
    v_lshlrev_b32 v68, 5, v66
    v_lshl_add_u32 v68, v65, 4, v68
    v_lshl_add_u32 v68, v64, 2, v68
    v_add_u32 v68, v68, v67
    v_lshl_add_u32 v44, v68, 8, v70
    v_xor_b32 v45, 32, v44
    v_lshlrev_b32 v46, 4, v0
    s_and_b32 s36, s6, 1
    s_cmp_eq_u32 s36, 0
    s_cselect_b64 vcc, -1, 0
    v_cndmask_b32 v48, v42, v40, vcc
    v_cndmask_b32 v49, v43, v41, vcc
    """)
    for j in range(4):
        a(f"s_lshl_b32 s33, s6, 15\ns_add_u32 s33, s33, {j*256}\ns_lshl_b32 s34, s6, 13")
        for n in range(8):
            a(f"s_add_u32 m0, s34, {4*n*256}\ns_add_u32 s35, s33, {4*n*1024}\nbuffer_load_dwordx4 v{48+(n>>2)}, s[24:27], s35 offen lds")
        a("s_waitcnt vmcnt(0)\ns_barrier")
        for t in range(2):
            for kk in range(2):
                for m in range(4):
                    off=(64*kk+8*(m>>1)+2*(m&1))*256; r=64+((t*2+kk)*8)+2*m
                    a(f"ds_read_b64_tr_b16 v[{r}:{r+1}], v{44+t} offset:{off}")
        a(f"s_lshl_b32 s36, s6, 13\ns_add_u32 s36, s36, {L_WO+j*32768}\nv_add_u32 v47, s36, v46\ns_waitcnt lgkmcnt(0)")
        for t in range(2):
            for kk in range(2):
                for q in range(2):
                    r=64+((t*2+kk)*8)+4*q
                    a(f"ds_write_b128 v47, v[{r}:{r+3}] offset:{(t*2+kk)*2048+q*1024}")
        a("s_waitcnt lgkmcnt(0)\ns_barrier")

def emit_chain(a, cfg, fail):
    st=cfg.get('st','')
    nsteps=cfg.get('nsteps',64)
    stamps=cfg.get('stamps',False)
    SPIN=cfg.get('spin',400000)
    lab=a.new('ch')
    def stamp(k):
        if not stamps: return
        a(f"""
        s_memtime s[70:71]
        s_waitcnt lgkmcnt(0)
        s_sub_u32 s73, s70, s72
        s_add_u32 s{76+k}, s{76+k}, s73
        s_mov_b32 s72, s70
        """)
    trace=cfg.get('trace',0)
    def tr(k):
        pass
    def tp(k):
        if trace: a(f"s_memtime s[{70+2*k}:{71+2*k}]")
    if stamps or cfg.get('tot'): a("s_memtime s[68:69]")
    emit_weights(a)
    IDX=1; AMEM=2; XQW=3; XKW=4; XQR=5; XKR=6; KXR=7; VXR=8; L16=9; GPART=10; AOFF=11; OIW=12; OIR=13; WOR=14; GVM=15; GPUB=102
    ONES=16; PM=20; VM0=22; VM1=24; T=26
    a(f"""
    v_and_b32 v60, 15, v0                    ; c / rho
    v_lshrrev_b32 v61, 4, v0                 ; g
    v_lshrrev_b32 v62, 2, v60
    v_and_b32 v63, 1, v60
    v_lshl_add_u32 v62, v62, 1, v63
    v_bfe_u32 v63, v60, 1, 1                 ; hi
    v_mov_b32 v{IDX}, 0x4444
    v_mov_b32 v64, 0xeeee
    v_cmp_eq_u32 vcc, 1, v63
    v_lshlrev_b32 v{AOFF}, 8, v61
    v_lshl_add_u32 v{AOFF}, v62, 5, v{AOFF}
    v_cndmask_b32 v{IDX}, v{IDX}, v64, vcc
    v_lshl_add_u32 v{AOFF}, v63, 4, v{AOFF}
    v_lshlrev_b32 v{AMEM}, 4, v0
    v_lshl_add_u32 v66, v63, 2, v61
    v_lshlrev_b32 v{OIR}, 7, v66
    v_lshl_add_u32 v{OIR}, v62, 4, v{OIR}
    v_add_u32 v{OIR}, {L_OI}, v{OIR}
    s_lshl_b32 s32, s6, 5
    v_add_u32 v66, s32, v60
    v_mul_u32_u24 v66, {XI_ROW}, v66
    v_add_u32 v66, {L_XI}, v66
    v_lshl_add_u32 v{XQW}, v61, 2, v66
    v_lshl_add_u32 v{XKW}, v61, 3, v66
    v_add_u32 v{XKW}, 16, v{XKW}
    v_lshrrev_b32 v66, 2, v60
    v_lshrrev_b32 v67, 1, v61
    v_and_b32 v65, 1, v61
    v_lshl_add_u32 v66, v67, 4, v66
    v_lshl_add_u32 v66, v65, 2, v66
    s_lshl_b32 s32, s6, 5
    v_add_u32 v66, s32, v66
    v_mul_u32_u24 v66, {XI_ROW}, v66
    v_add_u32 v66, {L_XI}, v66
    v_and_b32 v68, 1, v0
    v_lshl_add_u32 v{XQR}, v68, 3, v66
    v_and_b32 v68, 3, v0
    v_lshl_add_u32 v{XKR}, v68, 3, v66
    v_add_u32 v{XKR}, 16, v{XKR}
    v_and_b32 v68, 7, v60
    v_lshrrev_b32 v69, 3, v60
    v_lshl_add_u32 v66, v69, 4, v68
    v_lshl_add_u32 v66, v65, 5, v66
    v_lshlrev_b32 v{KXR}, 4, v66
    v_lshl_add_u32 v{KXR}, v67, 10, v{KXR}
    s_lshl_b32 s32, s6, 11
    s_add_u32 s32, s32, {L_KX}
    v_add_u32 v{KXR}, s32, v{KXR}
    s_lshl_b32 s32, s6, 11
    s_add_u32 s33, s32, {L_VX}
    v_lshl_add_u32 v66, v65, 5, v60
    v_lshlrev_b32 v{VXR}, 4, v66
    v_lshl_add_u32 v{VXR}, v67, 10, v{VXR}
    v_add_u32 v{VXR}, s33, v{VXR}
    v_lshlrev_b32 v{L16}, 4, v0
    s_lshl_b32 s32, s6, 16
    s_lshl_b32 s33, s5, 8
    s_add_u32 s32, s32, s33
    v_lshlrev_b32 v{GPART}, 13, v61
    v_lshl_add_u32 v{GPART}, v60, 4, v{GPART}
    v_add_u32 v{GPART}, s32, v{GPART}
    s_lshl_b32 s32, s6, 9
    s_add_u32 s33, s32, {L_OI}
    v_lshlrev_b32 v{OIW}, 7, v61
    v_lshl_add_u32 v{OIW}, v68, 4, v{OIW}
    v_add_u32 v{OIW}, s33, v{OIW}
    s_lshl_b32 s32, s6, 9
    s_add_u32 s33, s32, 2048
    v_add_u32 v{GVM}, s33, v{L16}
    s_lshl_b32 s32, s6, 15
    s_add_u32 s32, s32, {L_WO}
    v_add_u32 v{WOR}, s32, v{L16}
    v_mov_b32 v{ONES}, 0x3f803f80
    v_mov_b32 v{ONES+1}, 0x3f803f80
    v_mov_b32 v{ONES+2}, 0x3f803f80
    v_mov_b32 v{ONES+3}, 0x3f803f80
    v_mov_b32 v{PM+1}, 0
    v_mov_b32 v{VM0+1}, 0
    v_mov_b32 v{VM1+1}, 0
    s_mov_b32 s40, 0x00ff00ff
    s_mov_b32 s41, 0x00ff00ff
    s_mov_b32 s60, 0x33333333
    s_mov_b32 s61, 0x33333333
    s_lshl_b32 s32, s4, 11
    s_add_u32 s32, s32, s5
    s_mul_i32 s42, s32, {QKV_BLK}
    s_lshl_b32 s43, s32, 12
    s_add_u32 s43, s43, {WS_KM}
    s_lshl_b32 s44, s4, 15
    s_add_u32 s45, s44, {WS_MEM}
    s_add_u32 s46, s45, 8192
    s_add_u32 s47, s45, 16384
    s_lshl_b32 s48, s4, 20
    s_add_u32 s48, s48, {WS_INB}
    s_mov_b32 s49, 0
    s_mov_b32 s58, 0
    s_lshl_b32 s50, s5, 13
    s_mov_b32 s51, 0
    s_mov_b32 s52, {SCALE_LOG2E}
    s_mov_b32 s59, 0
    s_lshl_b32 s53, s32, 5
    s_add_u32 s53, s53, {WS_FLAG+FL_P}       ; (l,s,h) 32B, step 1024
    s_lshl_b32 s54, s32, 4
    s_lshl_b32 s33, s6, 2
    s_add_u32 s54, s54, s33
    s_add_u32 s54, s54, {WS_FLAG+FL_CH}      ; (l,s,h,w) step 512
    """)
    a(f"s_mov_b32 s38, {SCALE_LOG2E}\ns_mov_b32 s39, {SCALE_LOG2E}")
    MEMA=28; AQ=60; AK=68; AV=76; S=84; XB=[60,96,60,96]; OACC=[96,112]
    VMW=GVM
    def wait_p(name):
        a(f"""
        s_mov_b32 s55, 0
{name}_spin:
        v_and_b32 v{T}, 3, v0
        v_lshlrev_b32 v{T}, 2, v{T}
        buffer_load_dword v{T}, v{T}, s[8:11], s53 offen sc1
        s_waitcnt vmcnt(0)
        v_cmp_eq_u32 vcc, 0, v{T}
        s_cbranch_vccz {name}_ok
        s_add_u32 s55, s55, 1
        s_cmp_gt_u32 s55, {SPIN}
        s_cbranch_scc1 {lab}_fail
        s_sleep 2
        s_branch {name}_spin
{name}_ok:
        """)
    def kx_dma_list(w):
        return [f"s_add_u32 m0, s35, {w*2048}\ns_add_u32 s33, s67, {8192+w*2048}\nbuffer_load_dwordx4 v{L16}, s[8:11], s33 offen sc1 lds",
                f"buffer_load_dwordx4 v{L16}, s[8:11], s33 offen offset:1024 sc1 lds"]
    def vx_dma_list(w):
        return [f"s_mov_b32 m0, {L_VX+w*2048}\ns_add_u32 s33, s42, {16384+w*2048}\nbuffer_load_dwordx4 v{L16}, s[8:11], s33 offen sc1 lds",
                f"buffer_load_dwordx4 v{L16}, s[8:11], s33 offen offset:1024 sc1 lds"]
    def kmvm_prep(w):
        a(f"""
        ds_read_b64_tr_b16 v[88:89], v{XKR}
        ds_read_b64_tr_b16 v[90:91], v{XKR} offset:{8*XI_ROW}
        v_mov_b32 v92, v{VM0}
        v_mov_b32 v93, v{VM1}
        v_mov_b32 v94, 0
        v_mov_b32 v95, 0
        v_and_b32 v26, 15, v0
        v_lshrrev_b32 v27, 2, v26
        v_permlane32_swap_b32 v92, v94
        v_permlane32_swap_b32 v93, v95
        v_and_b32 v26, 1, v26
        v_lshl_add_u32 v26, v27, 1, v26          ; m(c)
        v_permlane16_swap_b32 v92, v93
        v_permlane16_swap_b32 v94, v95
        v_lshrrev_b32 v27, 4, v0
        v_lshlrev_b32 v27, 7, v27
        v_lshl_add_u32 v27, v26, 4, v27          ; g*128 + m*16
        v_add_u32 v27, {w*512}, v27
        s_mov_b32 s66, s43
        """)
    def kmvm_issue():
        return [f"s_mov_b32 exec_hi, 0\nbuffer_store_dwordx4 v[92:95], v{GVM}, s[8:11], s66 offen sc1\ns_mov_b32 exec_hi, -1",
                f"s_mov_b64 exec, s[60:61]\nbuffer_store_dwordx4 v[88:91], v27, s[8:11], s66 offen sc1\ns_mov_b64 exec, -1"]
    def zero_accs():
        for r in range(AQ,AQ+24,2): a(f"v_mov_b64 v[{r}:{r+1}], 0")
        for r in range(96,128,2): a(f"v_mov_b64 v[{r}:{r+1}], 0")
    wait_p(lab+'_p0')
    a(f"""
    s_lshl_b32 s34, s6, 11
    s_add_u32 m0, s34, {L_KX}
    s_add_u32 s33, s42, s34
    s_add_u32 s33, s33, 8192
    buffer_load_dwordx4 v{L16}, s[8:11], s33 offen sc1 lds
    buffer_load_dwordx4 v{L16}, s[8:11], s33 offen offset:1024 sc1 lds
    v_bfe_u32 v60, v{AOFF}, 5, 3              ; i
    v_lshrrev_b32 v61, 8, v{AOFF}             ; ga
    v_bfe_u32 v62, v{AOFF}, 4, 1              ; hi
    v_lshlrev_b32 v63, 10, v60
    v_lshl_add_u32 v63, v61, 5, v63
    v_lshl_add_u32 v63, v62, 4, v63
    s_lshl_b32 s32, s6, 8                     ; 2w*64*2
    v_add_u32 v63, s32, v63
    buffer_load_dwordx4 v[20:23], v63, s[28:31], 0 offen
    buffer_load_dwordx4 v[84:87], v63, s[28:31], 0 offen offset:128
    s_waitcnt vmcnt(0)
    """)
    zero_accs()
    a(f"v_mov_b32 v27, 0\ns_mov_b32 s66, {WS_SCR}")
    for r in range(88,96): a(f"v_mov_b32 v{r}, 0")
    if stamps or cfg.get('tot'):
        a("s_memtime s[70:71]\ns_waitcnt lgkmcnt(0)\ns_mov_b32 s72, s70\ns_mov_b32 s74, s70\ns_sub_u32 s88, s70, s68")
        for k in range(12): a(f"s_mov_b32 s{76+k}, 0")
    def W(M,t,kk):
        idx=(t*8+kk)*8
        if M=='V': return f"v[{128+idx}:{128+idx+7}]"
        base={'Q':0,'K':128}[M]; return f"a[{base+idx}:{base+idx+7}]"
    def smf(M,t,kk):
        acc={'Q':AQ,'K':AK,'V':AV}[M]+4*t
        a(f"v_smfmac_f32_16x16x64_bf16 v[{acc}:{acc+3}], v[{MEMA+4*kk}:{MEMA+4*kk+3}], {W(M,t,kk)}, v{IDX}")
    def wo_read(o,reg):
        a(f"ds_read_b128 v[{reg}:{reg+3}], v{WOR} offset:{o*2048}\nds_read_b128 v[{reg+4}:{reg+7}], v{WOR} offset:{o*2048+1024}")
    for w in range(4):
        a(f"s_cmp_eq_u32 s6, {w}\ns_cbranch_scc1 {lab}_ent{w}")
    def body(w):
        L=f"{lab}_w{w}"
        own=[2*w,2*w+1]; oth=[k for k in range(8) if k not in own]
        a.label(lab+f'_ent{w}')
        for j in range(4):
            a(f"v_mov_b32 v{MEMA+4*own[0]+j}, v{20+j}\nv_mov_b32 v{MEMA+4*own[1]+j}, v{84+j}")
        a(f"v_mov_b32 v{PM+1}, 0\nv_mov_b32 v{VM0+1}, 0\nv_add_u32 v26, {w*2048}, v{AMEM}")
        a(f"ds_write_b128 v26, v[{MEMA+4*own[0]}:{MEMA+4*own[0]+3}]\nds_write_b128 v26, v[{MEMA+4*own[1]}:{MEMA+4*own[1]+3}] offset:1024")
        a.label(L+'_go')
        if trace:
            a(f"""
            s_cmp_lg_u32 s51, {trace}
            s_cbranch_scc1 {L}_notr
            s_waitcnt lgkmcnt(0)
            s_lshl_b32 s32, s4, 5
            s_add_u32 s32, s32, s5
            s_lshl_b32 s32, s32, 2
            s_add_u32 s32, s32, s6
            s_lshl_b32 s32, s32, 6
            s_add_u32 s32, s32, 0xC900000
            """)
            for k in range(14): a(f"v_mov_b32 v{112+k}, s{70+2*k}")
            a(f"""
            v_mov_b32 v126, s55
            v_mov_b32 v127, 0
            s_mov_b64 exec, 1
            buffer_store_dwordx4 v[112:115], v127, s[8:11], s32 offen
            buffer_store_dwordx4 v[116:119], v127, s[8:11], s32 offen offset:16
            buffer_store_dwordx4 v[120:123], v127, s[8:11], s32 offen offset:32
            buffer_store_dwordx4 v[124:127], v127, s[8:11], s32 offen offset:48
            s_mov_b64 exec, -1
            s_waitcnt vmcnt(0)
            """)
            for r in range(112,128,2): a(f"v_mov_b64 v[{r}:{r+1}], 0")
            a.label(L+'_notr')
        tp(0)
        def run(carriers, sides):
            for n,x in enumerate(carriers):
                smf(*x)
                for ins in sides.get(n,[]): a(ins)
        run([('Q',0,own[0]),('Q',1,own[0]),('K',0,own[0]),('K',1,own[0]),('Q',0,own[1]),('Q',1,own[1])],
            {0:["s_and_b32 s57, s51, 1", f"s_add_u32 s32, s53, 1024"], 1:[f"v_and_b32 v{T}, 3, v0"]})
        a("s_waitcnt lgkmcnt(0)\ns_barrier")
        tp(1)
        stamp(7)
        rd=[f"ds_read_b128 v[{MEMA+4*kk}:{MEMA+4*kk+3}], v{AMEM} offset:{kk*1024}" for kk in oth]
        a(rd[0]); a(rd[1])
        F_ld=f"buffer_load_dword v{T}, v{T}, s[8:11], s32 offen sc1"
        X=vx_dma_list(w); Sx=kmvm_issue()
        X0=X[0].split('\n'); S0=Sx[0].split('\n'); S1=Sx[1].split('\n')
        if cfg.get('noS'): S0=S1=["s_nop 0"]*3
        if cfg.get('noX'): X0=["s_nop 0"]*3; X=[None,"s_nop 0"]
        if cfg.get('noK'): F_ld="s_nop 0"
        run([('K',0,own[1]),('K',1,own[1]),('V',0,own[0]),('V',1,own[0]),('V',0,own[1]),('V',1,own[1])],
            {0:[rd[2],rd[3]], 1:[rd[4],rd[5]], 2:[f"v_lshlrev_b32 v{T}, 2, v{T}"], 3+(w&1):[F_ld] })
        car=[('Q',t,kk) for kk in oth for t in range(2)]
        sides={}
        def put(n,ins): sides.setdefault(n,[]).append(ins)
        for j in range(6): put(2*j-1 if j else -1, f"s_waitcnt lgkmcnt({5-j})")
        a("s_waitcnt lgkmcnt(5)")
        sides.pop(-1,None)
        put(0+w, X0[0]); put(0+w, X0[1]); put(1+w, X0[2]); put(5+w, X[1])
        run(car,sides)
        car=[('K',t,kk) for kk in oth for t in range(2)]
        sides={}
        for x in S0: put(0+(w&1),x)
        for x in S1: put(2+(w&1),x)
        put(4,f"v_add_f32 v{AQ}, v{AQ}, v{AQ+2}"); put(5,f"v_add_f32 v{AQ+1}, v{AQ+1}, v{AQ+3}")
        put(6,f"v_add_f32 v{AQ+4}, v{AQ+4}, v{AQ+6}"); put(7,f"v_add_f32 v{AQ+5}, v{AQ+5}, v{AQ+7}")
        put(8,f"v_cvt_pk_bf16_f32 v{AQ}, v{AQ}, v{AQ+1}"); put(9,f"v_cvt_pk_bf16_f32 v{AQ+1}, v{AQ+4}, v{AQ+5}")
        put(10,f"ds_write2_b32 v{XQW}, v{AQ}, v{AQ+1} offset0:0 offset1:{16*XI_ROW//4}")
        put(10,f"ds_read_b64_tr_b16 v[84:85], v{XQR}"); put(11,f"ds_read_b64_tr_b16 v[86:87], v{XQR} offset:{8*XI_ROW}")
        put(11,f"ds_read_b128 v[60:63], v{KXR}")
        run(car,sides)
        tp(2)
        stamp(0)
        vseq=[('V',t,kk) for kk in oth for t in range(2)]
        run(vseq[0:3],{0:[f"ds_read_b128 v[64:67], v{KXR} offset:128"]})
        a(f"""
        s_nop 2
        v_add_f32 v{AK}, v{AK}, v{AK+2}
        v_add_f32 v{AK+1}, v{AK+1}, v{AK+3}
        v_add_f32 v{AK+4}, v{AK+4}, v{AK+6}
        v_add_f32 v{AK+5}, v{AK+5}, v{AK+7}
        v_cvt_pk_bf16_f32 v{AK}, v{AK}, v{AK+1}
        v_cvt_pk_bf16_f32 v{AK+1}, v{AK+4}, v{AK+5}
        ds_write2_b32 v{XKW}, v{AK}, v{AK+1} offset0:0 offset1:{16*XI_ROW//4}
        ds_read_b64_tr_b16 v[72:73], v{XKR}
        ds_read_b64_tr_b16 v[74:75], v{XKR} offset:{8*XI_ROW}
        s_waitcnt lgkmcnt(3)
        v_mfma_f32_16x16x32_bf16 v[88:91], v[60:63], v[84:87], 0
        v_mfma_f32_16x16x32_bf16 v[92:95], v[64:67], v[84:87], 0
        """)
        run(vseq[3:8],{0:[f"s_xor_b32 s34, s49, {L_KX}",f"s_add_u32 s34, s34, {w*2048}"],1:[f"v_add_u32 v54, s34, v{L16}"] ,
                       2:[f"v_lshrrev_b32 v55, 1, v{L16}"],3:[f"v_add_u32 v55, s34, v55"]} if False else {})
        a(f"""
        s_waitcnt lgkmcnt(0)
        v_mfma_f32_16x16x32_bf16 v[68:71], v[72:75], v[84:87], 0
        """)
        run(vseq[8:12],{0:[f"s_xor_b32 s34, s49, {L_KX}",f"s_add_u32 s34, s34, {w*2048}",f"v_cndmask_b32 v88, v92, v88, s[40:41]"],
                        1:[f"v_cndmask_b32 v89, v93, v89, s[40:41]"],2:[f"v_cndmask_b32 v90, v94, v90, s[40:41]"],3:[f"v_cndmask_b32 v91, v95, v91, s[40:41]"]})
        a(f"""
        v_add_u32 v92, s34, v{L16}
        v_lshrrev_b32 v93, 1, v{L16}
        v_add_u32 v93, s34, v93
        ds_write_b128 v92, v[88:91]
        ds_write_b64 v93, v[68:69] offset:1024
        s_waitcnt vmcnt(4)
        v_cmp_eq_u32 vcc, 0, v{T}
        s_cmp_eq_u64 vcc, 0
        s_cselect_b32 s56, 1, 0
        s_mov_b32 s58, 1
        s_mov_b32 s35, s49
        s_add_u32 s67, s42, {32*QKV_BLK}
        s_cmp_ge_u32 s51, {nsteps-1}
        s_cselect_b32 s56, 0, s56
        s_cselect_b32 s58, 0, s58
        {'s_mov_b32 s56, 1' if cfg.get('noK') else ''}
        s_cmp_eq_u32 s56, 0
        s_cselect_b32 s58, s58, 2
        s_waitcnt lgkmcnt(0)
        """)
        tp(3)
        a("s_barrier")
        tp(4)
        stamp(1)
        ow=[x for x in range(4) if x!=w]
        a(f"s_xor_b32 s34, s49, {L_KX}\nv_add_u32 v92, s34, v{L16}\nv_lshrrev_b32 v93, 1, v{L16}\nv_add_u32 v93, s34, v93")
        for j,x in enumerate(ow):
            a(f"ds_read_b128 v[{28+6*j}:{31+6*j}], v92 offset:{x*2048}\nds_read_b64 v[{32+6*j}:{33+6*j}], v93 offset:{x*2048+1024}")
        def wo(o,reg): wo_read(o,reg)
        kd=kx_dma_list(w)
        if cfg.get('noK'): kd=["s_nop 0","s_nop 0"]
        a(f"s_cmp_eq_u32 s58, 2\ns_cbranch_scc0 {L}_nk")
        a(kd[0]); a(kd[1])
        a(f"s_waitcnt vmcnt(4)\ns_branch {L}_nk2\n{L}_nk:\ns_waitcnt vmcnt(2)\n{L}_nk2:")
        a(f"ds_read_b128 v[52:55], v{VXR}\nds_read_b128 v[56:59], v{VXR} offset:256")
        wo(0,60)
        a(f"""
        s_waitcnt lgkmcnt(8)
        v_pk_add_f32 v[88:89], v[88:89], v[28:29]
        v_pk_add_f32 v[90:91], v[90:91], v[30:31]
        v_pk_add_f32 v[68:69], v[68:69], v[32:33]
        s_waitcnt lgkmcnt(6)
        v_pk_add_f32 v[34:35], v[34:35], v[40:41]
        """.replace("s_waitcnt lgkmcnt(6)","s_waitcnt lgkmcnt(4)"))
        a(f"""
        v_pk_add_f32 v[36:37], v[36:37], v[42:43]
        v_pk_add_f32 v[38:39], v[38:39], v[44:45]
        v_pk_add_f32 v[88:89], v[88:89], v[34:35]
        v_pk_add_f32 v[90:91], v[90:91], v[36:37]
        v_pk_add_f32 v[68:69], v[68:69], v[38:39]
        v_max3_f32 v{T}, v88, v89, v90
        v_max3_f32 v{T}, v{T}, v91, v68
        v_max_f32 v{T}, v{T}, v69
        """)
        wo(1,28)
        a(f"""
        v_max_f32_dpp v{T}, v{T}, v{T} row_ror:8 row_mask:0xf bank_mask:0xf
        v_mov_b32 v{T+1}, v{T}
        """)
        wo(2,36)
        a(f"""
        v_permlane32_swap_b32 v{T}, v{T+1}
        v_max_f32 v{T}, v{T}, v{T+1}
        v_mov_b32 v{T+1}, v{T}
        """)
        wo(3,44)
        a(f"""
        v_permlane16_swap_b32 v{T}, v{T+1}
        v_max_f32 v{T}, v{T}, v{T+1}
        v_mul_f32 v{T}, s52, v{T}
        v_pk_add_f32 v[{AV}:{AV+1}], v[{AV}:{AV+1}], v[{AV+2}:{AV+3}]
        v_mov_b32 v{T+1}, v{T}
        v_pk_add_f32 v[{AV+4}:{AV+5}], v[{AV+4}:{AV+5}], v[{AV+6}:{AV+7}]
        v_pk_fma_f32 v[88:89], v[88:89], s[38:39], v[{T}:{T+1}] neg_lo:[0,0,1] neg_hi:[0,0,1]
        v_pk_fma_f32 v[90:91], v[90:91], s[38:39], v[{T}:{T+1}] neg_lo:[0,0,1] neg_hi:[0,0,1]
        v_pk_fma_f32 v[68:69], v[68:69], s[38:39], v[{T}:{T+1}] neg_lo:[0,0,1] neg_hi:[0,0,1]
        v_exp_f32 v88, v88
        v_exp_f32 v89, v89
        v_exp_f32 v90, v90
        v_exp_f32 v91, v91
        v_exp_f32 v68, v68
        v_exp_f32 v69, v69
        v_cvt_pk_bf16_f32 v{VM0}, v{AV}, v{AV+1}
        v_cvt_pk_bf16_f32 v{VM1}, v{AV+4}, v{AV+5}
        v_cvt_pk_bf16_f32 v84, v88, v89
        v_cvt_pk_bf16_f32 v85, v90, v91
        v_cvt_pk_bf16_f32 v{PM}, v68, v69
        v_mov_b32_dpp v86, v84 row_ror:8 row_mask:0xf bank_mask:0xf
        v_mov_b32_dpp v87, v85 row_ror:8 row_mask:0xf bank_mask:0xf
        s_waitcnt lgkmcnt(8)
        v_mfma_f32_16x16x32_bf16 v[76:79], v[{ONES}:{ONES+3}], v[84:87], 0
        v_mfma_f32_16x16x32_bf16 v[88:91], v[52:55], v[84:87], 0
        v_mfma_f32_16x16x32_bf16 v[92:95], v[56:59], v[84:87], 0
        v_mfma_f32_16x16x16_bf16 v[76:79], v[{ONES}:{ONES+1}], v[{PM}:{PM+1}], v[76:79]
        v_mfma_f32_16x16x16_bf16 v[88:91], v[{VM0}:{VM0+1}], v[{PM}:{PM+1}], v[88:91]
        v_mfma_f32_16x16x16_bf16 v[92:95], v[{VM1}:{VM1+1}], v[{PM}:{PM+1}], v[92:95]
        """)
        tp(5)
        wo(4,68); wo(5,52)
        a(f"""
        v_rcp_f32 v{T}, v76
        s_nop 0
        v_mov_b32 v{T+1}, v{T}
        v_pk_mul_f32 v[88:89], v[88:89], v[{T}:{T+1}]
        v_pk_mul_f32 v[90:91], v[90:91], v[{T}:{T+1}]
        v_pk_mul_f32 v[92:93], v[92:93], v[{T}:{T+1}]
        v_pk_mul_f32 v[94:95], v[94:95], v[{T}:{T+1}]
        v_cvt_pk_bf16_f32 v80, v88, v89
        v_cvt_pk_bf16_f32 v81, v90, v91
        v_cvt_pk_bf16_f32 v82, v92, v93
        v_cvt_pk_bf16_f32 v83, v94, v95
        s_mov_b64 exec, s[40:41]
        ds_write_b128 v{OIW}, v[80:83]
        s_mov_b64 exec, -1
        """)
        wo(6,84)
        a("s_waitcnt lgkmcnt(2)\ns_barrier")
        tp(6)
        stamp(3)
        a(f"ds_read_b128 v[76:79], v{OIR}\nds_read_b128 v[80:83], v{OIR} offset:1024")
        opreg={0:60,1:28,2:36,3:44,4:68,5:52,6:84}
        a("s_waitcnt lgkmcnt(0)")
        nxt=7; inflight=[]
        def acc(tile): return OACC[tile>>2]+4*(tile&3)
        def epil(qd):
            A=OACC[qd]; e=[]
            for t in range(4):
                e+= [f"v_add_f32 v{A+4*t}, v{A+4*t}, v{A+4*t+2}", f"v_add_f32 v{A+4*t+1}, v{A+4*t+1}, v{A+4*t+3}"]
            e+=[f"v_cvt_pk_bf16_f32 v{A+t}, v{A+4*t}, v{A+4*t+1}" for t in range(4)]
            e+=[f"v_permlane32_swap_b32 v{A}, v{A+2}",f"v_permlane32_swap_b32 v{A+1}, v{A+3}",
                f"v_permlane16_swap_b32 v{A}, v{A+1}",f"v_permlane16_swap_b32 v{A+2}, v{A+3}",
                f"v_bfi_b32 v{A}, 1, s57, v{A}"]
            so='s48' if qd==0 else 's32'
            e.append(f"buffer_store_dwordx4 v[{A}:{A+3}], v{GPART}, s[8:11], {so} offen {st}")
            return e
        epi=[]
        a(f"s_add_u32 s32, s48, {4*8192}")
        for o in range(16):
            tile=o>>1; kk=o&1
            if o in inflight:
                k=inflight.index(o)
                a(f"s_waitcnt lgkmcnt({2*(len(inflight)-1-k)})")
                inflight=inflight[k+1:]
            r=opreg[o]
            a(f"v_smfmac_f32_16x16x64_bf16 v[{acc(tile)}:{acc(tile)+3}], v[{76+4*kk}:{79+4*kk}], v[{r}:{r+7}], v{IDX}")
            if nxt<16:
                wo_read(nxt,r); opreg[nxt]=r; inflight.append(nxt); nxt+=1
            if o==7: epi=epil(0)
            if o>=9 and epi:
                a(epi.pop(0))
                if o>=9 and nxt>=16 and epi and o>=12: a(epi.pop(0))
        while epi: a(epi.pop(0))
        for x in epil(1): a(x)
        tp(7)
        stamp(4)
        a("s_add_u32 s51, s51, 1")
        def slow_kx():
            a(f"""
            s_cmp_lg_u32 s58, 1
            s_cbranch_scc1 {L}_sk_n
            s_add_u32 s53, s53, 1024
            """)
            wait_p(L+'_sk')
            a(f"s_sub_u32 s53, s53, 1024\ns_mov_b32 s35, s49")
            for x in kx_dma_list(w): a(x)
            a.label(L+'_sk_n')
        def bookkeeping():
            a(f"""
            s_mov_b32 s37, s45
            s_mov_b32 s45, s46
            s_mov_b32 s46, s47
            s_mov_b32 s47, s37
            s_add_u32 s42, s42, {32*QKV_BLK}
            s_add_u32 s43, s43, {32*4096}
            s_add_u32 s53, s53, 1024
            s_add_u32 s54, s54, 512
            s_xor_b32 s49, s49, {L_KX}
            v_xor_b32 v{AMEM}, {L_KX}, v{AMEM}
            v_xor_b32 v{KXR}, {L_KX}, v{KXR}
            """)
        if w==0:
            a(f"""
            s_add_u32 s32, s48, s50
            s_add_u32 s33, s32, 4096
            s_mov_b32 s55, 0
            v_mov_b32 v100, s57
            v_and_b32 v96, 15, v0
            v_lshrrev_b32 v97, 1, v96
            v_and_b32 v103, 7, v96
            v_and_b32 v96, 1, v96
            v_lshlrev_b32 v96, 4, v96
            v_mov_b32 v98, 0x3f80
            v_lshlrev_b32 v98, v96, v98
            v_cmp_eq_u32 vcc, 0, v97
            v_cmp_eq_u32 s[56:57], 1, v97
            v_cmp_eq_u32 s[62:63], 2, v97
            v_cmp_eq_u32 s[64:65], 3, v97
            v_lshrrev_b32 v96, 4, v0
            v_lshlrev_b32 v{GPUB}, 5, v103
            v_lshl_add_u32 v{GPUB}, v96, 3, v{GPUB}
            s_lshl_b32 s34, s5, 8
            v_add_u32 v{GPUB}, s34, v{GPUB}
            v_cndmask_b32 v104, 0, v98, vcc
            v_cndmask_b32 v105, 0, v98, s[56:57]
            v_cndmask_b32 v106, 0, v98, s[62:63]
            v_cndmask_b32 v107, 0, v98, s[64:65]
            """)
            kmvm_prep(0)
            for r in range(AQ,AQ+24,2): a(f"v_mov_b64 v[{r}:{r+1}], 0")
            for r in range(108,128,2): a(f"v_mov_b64 v[{r}:{r+1}], 0")
            if cfg.get('sleepR',0): a(f"s_sleep {cfg['sleepR']}")
            tp(8)
            RA=28
            a.label(L+'_rloop')
            for j in range(8): a(f"buffer_load_dwordx4 v[{RA+4*j}:{RA+4*j+3}], v{L16}, s[8:11], {'s32' if j<4 else 's33'} offen offset:{(j&3)*1024} sc1")
            for j in range(8):
                a(f"s_waitcnt vmcnt({7-j})")
                c_='0' if j==0 else 'v[96:99]'
                a(f"v_mfma_f32_16x16x32_bf16 v[96:99], v[{RA+4*j}:{RA+4*j+3}], v[104:107], {c_}")
                if j==0: a(f"v_xor_b32 v101, v{RA}, v100")
                else: a(f"v_bitop3_b32 v101, v{RA+4*j}, v100, v101 bitop3:0xbe")
            a(f"""
            v_and_b32 v101, 1, v101
            v_cmp_ne_u32 vcc, 0, v101
            s_cbranch_vccz {L}_redok
            s_add_u32 s55, s55, 1
            s_cmp_gt_u32 s55, {SPIN}
            s_cbranch_scc1 {lab}_fail
            s_branch {L}_rloop
{L}_redok:
            """)
            tp(9)
            a(f"""
            s_nop 2
            v_cvt_pk_bf16_f32 v100, v96, v97
            v_cvt_pk_bf16_f32 v101, v98, v99
            s_mov_b64 exec, s[40:41]
            v_min_u32 v100, 0xfffffffe, v100
            v_min_u32 v101, 0xfffffffe, v101
            buffer_store_dwordx2 v[100:101], v{GPUB}, s[8:11], s46 offen {st}
            s_barrier
            v_mov_b32 v100, -1
            v_mov_b32 v101, -1
            buffer_store_dwordx2 v[100:101], v{GPUB}, s[8:11], s45 offen {st}
            s_mov_b64 exec, -1
            """)
            if stamps: a("s_add_u32 s84, s84, s55")
            stamp(5)
            a(f"s_cmp_ge_u32 s51, {nsteps}\ns_cbranch_scc1 {L}_done")
            slow_kx()
        else:
            kmvm_prep(w)
            a(f"s_cmp_ge_u32 s51, {nsteps}\ns_cbranch_scc1 {L}_last")
            slow_kx()
        bookkeeping()
        if w==0:
            for r in range(96,108,2): a(f"v_mov_b64 v[{r}:{r+1}], 0")
        else: zero_accs()
        a(f"""
        s_add_u32 s33, s45, {own[0]*1024}
        s_add_u32 s34, s49, {own[0]*1024}
        v_add_u32 v26, s34, v{L16}
        s_mov_b32 s55, 0
        s_waitcnt lgkmcnt(0)
        """)
        if w!=0:
            a("s_waitcnt vmcnt(2)\ns_barrier")
            sl=cfg.get('sleepA',3)
            if sl: a(f"s_sleep {sl}")
        else:
            sl=cfg.get('sleepA0',1)
            if sl: a(f"s_sleep {sl}")
        tp(10)
        R=MEMA+4*own[0]
        a.label(L+'_aloop')
        for j in range(2): a(f"buffer_load_dwordx4 v[{R+4*j}:{R+4*j+3}], v{AOFF}, s[8:11], s33 offen offset:{j*1024} sc1")
        a(f"""
        s_waitcnt vmcnt(1)
        v_max3_u32 v84, v{R}, v{R+1}, v{R+2}
        v_max_u32 v85, v{R+3}, v{R+3}
        s_waitcnt vmcnt(0)
        v_max3_u32 v84, v84, v{R+4}, v{R+5}
        v_max3_u32 v85, v85, v{R+6}, v{R+7}
        v_max_u32 v84, v84, v85
        v_cmp_eq_u32 vcc, -1, v84
        s_cbranch_vccz {L}_okA
        s_add_u32 s55, s55, 1
        s_cmp_gt_u32 s55, {SPIN}
        s_cbranch_scc1 {lab}_fail
        s_branch {L}_aloop
{L}_okA:
        ds_write_b128 v26, v[{R}:{R+3}]
        ds_write_b128 v26, v[{R+4}:{R+7}] offset:1024
        """)
        tp(11)
        if w==3:
            roles.flagval(a,85)
            a(f"""
            v_lshlrev_b32 v84, 2, v0
            s_sub_u32 s32, s54, 1024+12
            s_cmp_eq_u32 s51, 1
            s_cselect_b32 s32, {WS_FLAG+FL_DUMMY}, s32
            s_mov_b64 exec, 15
            buffer_store_dword v85, v84, s[8:11], s32 offen sc1
            s_mov_b64 exec, -1
            """)
        if stamps: a("s_add_u32 s85, s85, s55")
        stamp(6)
        a(f"s_branch {L}_go")
        if w!=0:
            a(f"{L}_last:\ns_waitcnt vmcnt(2)\ns_barrier")
            if w==3:
                roles.flagval(a,85)
                a(f"""
                v_lshlrev_b32 v84, 2, v0
                s_sub_u32 s32, s54, 512+12
                s_mov_b64 exec, 15
                buffer_store_dword v85, v84, s[8:11], s32 offen sc1
                s_mov_b64 exec, -1
                """)
        a.label(L+'_done')
        a("s_waitcnt lgkmcnt(0)")
        for x in kmvm_issue(): a(x)
        a("s_waitcnt vmcnt(0)")
        roles.flagval(a,85)
        a(f"""
        v_mov_b32 v84, 0
        s_mov_b64 exec, 1
        buffer_store_dword v85, v84, s[8:11], s54 offen sc1
        s_mov_b64 exec, -1
        s_branch {lab}_done
        """)
    for w in range(4): body(w)
    a(f"""
{lab}_fail:
    s_waitcnt vmcnt(0)
    s_mov_b32 s59, 1
{lab}_done:
    s_waitcnt vmcnt(0)
    """)
    return lab
```

```python
NSEG=64; NH=32
QKV_BLK=24576
WS_QKV=0
WS_KM =0x6000000
WS_OB =0x7000000
WS_PO =0x9000000
WS_XS =0xA000000
WS_MEM=0xC000000
WS_INB=0xC100000
WS_FLAG=0xC400000
FL_P  =0x00000
FL_CH =0x20000
FL_XN =0x30000
FL_OA =0x38000
FL_YA =0x3C000
FL_OB =0x40000
FL_PO =0x44000
FL_DUMMY=0x4C000
FL_END=0x4C100
T_X0,T_XNA1,T_OA1,T_YA1,T_X1,T_XNB1,T_X2,T_XNA2,T_OA2,T_YA2,T_X3,T_XNB2=range(12)
def xs(tid,s): return WS_XS+(tid*64+s)*32768
def pi(hf,j): return 8*(j>>2)+4*hf+(j&3)
WS_SCR=0xCA00000
```

```python
import sys
from asmlib import Asm
from common import *
import chain7 as chain, roles, roles2, roles3
KN='interleave_layers__sliding_block__memory_aug_recurrent_mem_tr__prompt_kernel'
INIT='init_ws_kernel'
ALL={'CH','P','O','AH','AWO','F','ATT'}
def desc(K,nv=512,ns=102):
    return f'''
.amdhsa_kernel {K}
  .amdhsa_next_free_vgpr {nv}
  .amdhsa_next_free_sgpr {ns}
  .amdhsa_accum_offset {min(256,(nv+3)//4*4)}
  .amdhsa_group_segment_fixed_size 0
  .amdhsa_kernarg_size 104
  .amdhsa_user_sgpr_count 2
  .amdhsa_user_sgpr_kernarg_segment_ptr 1
  .amdhsa_system_sgpr_workgroup_id_x 1
.end_amdhsa_kernel
'''
def gen_init():
    a=Asm()
    a.label(INIT)
    nflag=FL_END
    a(f"""
    s_cmp_ge_u32 s2, 256
    s_cbranch_scc1 LI_end
    s_load_dwordx2 s[8:9], s[0:1], 96
    s_waitcnt lgkmcnt(0)
    s_mov_b32 s10, 0x10000000
    s_mov_b32 s11, 0x20000
    s_lshl_b32 s3, s2, 8
    v_add_u32 v1, s3, v0
    v_lshlrev_b32 v1, 4, v1                  ; 0 .. 1MB
    v_mov_b32 v4, 0
    v_mov_b32 v5, 0
    v_mov_b32 v6, 0
    v_mov_b32 v7, 0
    v_mov_b32 v8, -1
    v_mov_b32 v9, -1
    v_mov_b32 v10, -1
    v_mov_b32 v11, -1
    s_mov_b32 s12, {WS_FLAG}
    v_cmp_gt_u32 vcc, {nflag}, v1
    s_and_saveexec_b64 s[14:15], vcc
    s_cbranch_execz LI_a
    buffer_store_dwordx4 v[4:7], v1, s[8:11], s12 offen
LI_a:
    s_mov_b64 exec, s[14:15]
    s_mov_b32 s12, {WS_INB}
    buffer_store_dwordx4 v[8:11], v1, s[8:11], s12 offen
    s_mov_b32 s12, {WS_INB+0x100000}
    buffer_store_dwordx4 v[8:11], v1, s[8:11], s12 offen
    s_mov_b32 s12, {WS_MEM}
    v_cmp_gt_u32 vcc, 0x10000, v1
    s_and_saveexec_b64 s[14:15], vcc
    s_cbranch_execz LI_b
    buffer_store_dwordx4 v[8:11], v1, s[8:11], s12 offen
LI_b:
    s_mov_b64 exec, s[14:15]
LI_end:
    s_endpgm
    """)
    out,_,errs=a.finish()
    for e in errs.values(): print('LINT',e,file=sys.stderr)
    return out
def gen(cfg):
    en=cfg.get('roles',ALL)
    roles.TS=cfg.get('ts',False)
    roles.TSP=cfg.get('tsp',False)
    a=Asm(); K=KN
    a.label(K)
    clk0=''
    if cfg.get('clk'):
        clk0='''s_memtime s[100:101]
    s_memrealtime s[98:99]
    s_waitcnt lgkmcnt(0)
    s_lshl_b32 s24, s2, 5
    s_add_u32 s24, s24, 0xCB00000
    v_mov_b32 v2, s100
    v_mov_b32 v3, s98
    v_mov_b32 v4, s3
    v_mov_b32 v5, s5
    v_mov_b32 v6, 0
    s_mov_b64 exec, 1
    buffer_store_dwordx4 v[2:5], v6, s[8:11], s24 offen
    s_mov_b64 exec, -1'''
    tss=''
    if cfg.get('ts'):
        tss='''s_memrealtime s[98:99]
    s_waitcnt lgkmcnt(0)
    v_mov_b32 v3, s98
    s_lshl_b32 s24, s3, 2
    s_add_u32 s24, s24, 64
    v_mov_b32 v4, s24
    s_mov_b64 exec, 1
    buffer_store_dword v3, v4, s[12:15], 0 offen
    s_mov_b64 exec, -1'''
    a(f"""
    s_cmp_ge_u32 s2, 256
    s_cbranch_scc1 L_end
    s_load_dwordx2 s[8:9], s[0:1], 96        ; ws
    s_load_dwordx2 s[12:13], s[0:1], 88      ; dbg
    s_getreg_b32 s3, hwreg(HW_REG_XCC_ID, 0, 4)
    v_lshrrev_b32 v1, 6, v0
    s_nop 0
    v_readfirstlane_b32 s6, v1
    v_and_b32 v0, 63, v0                     ; lane
    s_waitcnt lgkmcnt(0)
    s_mov_b32 s10, 0x10000000
    s_mov_b32 s11, 0x20000
    s_mov_b32 s14, 256
    s_mov_b32 s15, 0x20000
    s_cmp_lg_u32 s6, 0
    s_cbranch_scc1 L_claimed
    v_mov_b32 v3, 1
    s_lshl_b32 s24, s3, 2
    v_mov_b32 v4, s24
    s_mov_b64 exec, 1
    buffer_atomic_add v3, v4, s[12:15], 0 offen sc0
    s_waitcnt vmcnt(0)
    v_mov_b32 v5, 0
    ds_write_b32 v5, v3
    s_waitcnt lgkmcnt(0)
    s_mov_b64 exec, -1
L_claimed:
    s_barrier
    v_mov_b32 v5, 0
    ds_read_b32 v3, v5
    s_waitcnt lgkmcnt(0)
    v_readfirstlane_b32 s5, v3
    s_barrier
    s_cmp_ge_u32 s5, 32
    s_cbranch_scc1 L_end
    {tss}
    {clk0}
    s_cmp_lt_u32 s3, 2
    s_cbranch_scc1 L_CH
    s_cmp_lt_u32 s3, 4
    s_cbranch_scc1 L_P
    s_cmp_eq_u32 s3, 4
    s_cbranch_scc1 L_ATT
    s_cmp_eq_u32 s3, 5
    s_cbranch_scc1 L_O
    s_cmp_eq_u32 s3, 6
    s_cbranch_scc1 L_AH
    s_cmp_lt_u32 s5, 8
    s_cbranch_scc1 L_AWO
    s_cmp_lt_u32 s5, 28
    s_cbranch_scc1 L_F
    s_branch L_end
L_fail:
    s_load_dwordx2 s[12:13], s[0:1], 88
    s_waitcnt lgkmcnt(0)
    s_mov_b32 s14, 256
    s_mov_b32 s15, 0x20000
    s_lshl_b32 s24, s3, 2
    s_add_u32 s24, s24, 128
    v_mov_b32 v4, s24
    s_add_u32 s25, s5, 1
    v_mov_b32 v3, s25
    s_mov_b64 exec, 1
    buffer_store_dword v3, v4, s[12:15], 0 offen
L_end:
    s_endpgm
    """)
    fail='L_fail'
    END='s_branch L_fin' if cfg.get('clk') else 's_endpgm'
    a.label('L_F')
    if 'F' in en:
        a("""
        s_sub_u32 s5, s5, 8
        s_lshr_b32 s7, s5, 2
        s_and_b32 s5, s5, 3
        s_mov_b32 s4, 0
        s_cmp_eq_u32 s7, 0
        s_cbranch_scc1 L_F0
        s_cmp_eq_u32 s7, 2
        s_cbranch_scc1 L_F2
        s_cmp_eq_u32 s7, 4
        s_cbranch_scc1 L_F3
        s_lshr_b32 s4, s7, 1
        """)
        roles3.emit_F(a,cfg,'T1',fail); a("s_endpgm")
        a.label('L_F0'); roles3.emit_F(a,cfg,'T0',fail); a("s_endpgm")
        a.label('L_F2'); roles3.emit_F(a,cfg,'T2',fail); a("s_endpgm")
        a.label('L_F3'); roles3.emit_F(a,cfg,'T3',fail)
    a(END)
    a.label('L_AWO')
    if 'AWO' in en:
        a("s_lshr_b32 s4, s5, 2\ns_and_b32 s5, s5, 3")
        roles3.emit_AWO(a,cfg,fail)
    a(END)
    a.label('L_ATT')
    if 'ATT' in en:
        roles3.emit_ATT(a,cfg,fail)
    a(END)
    a.label('L_AH')
    if 'AH' in en: roles2.emit_AH(a,cfg,fail)
    a(END)
    a.label('L_O')
    if 'O' in en:
        a("s_lshr_b32 s4, s5, 4\ns_and_b32 s5, s5, 15")
        roles3.emit_O5(a,cfg,fail)
    a(END)
    a.label('L_P')
    if 'P' in en:
        a("s_sub_u32 s4, s3, 2")
        roles3.emit_P(a,cfg,fail)
    a(END)
    a.label('L_CH')
    if 'CH' in en:
        a("s_mov_b32 s4, s3")
        c=dict(FL_P=FL_P,FL_CH=FL_CH); c.update(cfg)
        chain.emit_chain(a,c,fail)
        if cfg.get('stamps') or cfg.get('tot'):
            a("""
            s_load_dwordx2 s[12:13], s[0:1], 96
            s_waitcnt lgkmcnt(0)
            s_mov_b32 s14, 0x10000000
            s_mov_b32 s15, 0x20000
            s_memtime s[70:71]
            s_waitcnt lgkmcnt(0)
            s_sub_u32 s75, s70, s74
            s_lshl_b32 s32, s4, 5
            s_add_u32 s32, s32, s5
            s_lshl_b32 s32, s32, 2
            s_add_u32 s32, s32, s6
            s_lshl_b32 s32, s32, 6
            s_add_u32 s32, s32, 0xC800000
            v_mov_b32 v32, s32
            """)
            for k in range(10): a(f"v_mov_b32 v{36+k}, s{76+k}")
            a("""
            v_mov_b32 v45, s88
            v_mov_b32 v46, s75
            v_mov_b32 v47, s59
            s_mov_b64 exec, 1
            buffer_store_dwordx4 v[36:39], v32, s[12:15], 0 offen
            buffer_store_dwordx4 v[40:43], v32, s[12:15], 0 offen offset:16
            buffer_store_dwordx4 v[44:47], v32, s[12:15], 0 offen offset:32
            s_mov_b64 exec, -1
            """)
        a("""
        s_cmp_eq_u32 s59, 0
        s_cbranch_scc1 L_CHend
        s_branch L_fail
L_CHend:
        """)
    a(END)
    if cfg.get('clk'):
        a('''
L_fin:
    s_cmp_lg_u32 s6, 0
    s_cbranch_scc1 L_fin2
    s_memtime s[100:101]
    s_memrealtime s[98:99]
    s_waitcnt lgkmcnt(0)
    s_lshl_b32 s24, s2, 5
    s_add_u32 s24, s24, 0xCB00010
    v_mov_b32 v2, s100
    v_mov_b32 v3, s98
    v_mov_b32 v5, 0
    s_mov_b64 exec, 1
    buffer_store_dwordx2 v[2:3], v5, s[8:11], s24 offen
L_fin2:
    s_endpgm
''')
    out,total,errs=a.finish()
    for e in list(errs.values())[:10]: print('LINT',e,file=sys.stderr)
    print('nops inserted',total,'instrs',len(out),file=sys.stderr)
    withinit=cfg.get('init',True)
    if withinit:
        hdr=f"""; @launch kernel={INIT} grid=(256,1,1) block=(256,1,1) lds=0
; @launch kernel={K} grid=(256,1,1) block=(256,1,1) lds=163840
"""
    else:
        hdr=f"; @launch grid=(256,1,1) block=(256,1,1) lds=163840\n"
    txt=hdr+f""".amdgcn_target "amdgcn-amd-amdhsa--gfx950"
.text
.globl {K}
.p2align 8
.type {K},@function
"""+'\n'.join(out)+'\n'
    if withinit:
        txt+=f""".globl {INIT}
.p2align 8
.type {INIT},@function
"""+'\n'.join(gen_init())+'\n'
    txt+='.section .rodata,"a"\n.p2align 6\n'+desc(K)
    if withinit: txt+='.p2align 6\n'+desc(INIT,16,32)
    return txt
if __name__=='__main__':
    s=gen(dict())
    open('m.s','w').write(s)
    print(len(s),'bytes')
    import subprocess
    r=subprocess.run(['clang','-x','assembler','-target','amdgcn-amd-amdhsa','-mcpu=gfx950','-c','m.s','-o','m.o'],capture_output=True,text=True); print(r.stderr)
```

```python
from common import *
SPIN_DEFAULT=2000000

class Ctx:
    def __init__(self,a,cfg): self.a=a; self.cfg=cfg; self.spin=cfg.get('spin',200000)

def wait_flags(a, lab, n, soff, fail, spin, vtmp=(250,251), stmp=(96,97,98), sleep=1):
    va,vb=vtmp; sc=stmp[0]
    mask=(1<<n)-1
    L=a.new(lab)
    a(f"""
    s_mov_b32 s{sc}, 0
    v_mbcnt_lo_u32_b32 v{va}, -1, 0
    v_mbcnt_hi_u32_b32 v{va}, -1, v{va}
    v_min_u32 v{va}, {n-1}, v{va}
    v_lshlrev_b32 v{va}, 2, v{va}
{L}_spin:
    buffer_load_dword v{vb}, v{va}, s[8:11], {soff} offen sc1
    s_waitcnt vmcnt(0)
    v_cmp_eq_u32 vcc, 0, v{vb}
    s_cbranch_vccz {L}_ok
    s_add_u32 s{sc}, s{sc}, 1
    s_cmp_gt_u32 s{sc}, {spin}
    s_cbranch_scc1 {fail}
    {('s_sleep %d'%sleep) if sleep else ''}
    s_branch {L}_spin
{L}_ok:
    """)

TS=False
def flagval(a, vb):
    if TS:
        a(f"""
        s_memrealtime s[98:99]
        s_waitcnt lgkmcnt(0)
        s_or_b32 s98, s98, 1
        v_mov_b32 v{vb}, s98
        """)
    else: a(f"v_mov_b32 v{vb}, 1")
def set_flag(a, soff, vtmp=(250,251)):
    va,vb=vtmp
    flagval(a,vb)
    a(f"""
    v_mov_b32 v{va}, 0
    s_mov_b64 exec, 1
    buffer_store_dword v{vb}, v{va}, s[8:11], {soff} offen sc1
    s_mov_b64 exec, -1
    """)

def emit_F(a, cfg, typ, fail):
    spin=cfg.get('spin',SPIN_DEFAULT)
    lab=a.new('F'+typ)
    npart={'T0':0,'T1':1,'T2':2,'T3':2}[typ]
    a(f"""
    v_and_b32 v1, 15, v0
    v_bfe_u32 v2, v0, 4, 1
    v_lshrrev_b32 v3, 5, v0
    v_lshlrev_b32 v4, 4, v1
    v_lshl_add_u32 v4, v2, 9, v4
    v_lshl_add_u32 v4, v3, 10, v4
    s_lshl_b32 s12, s6, 13
    s_lshl_b32 s13, s5, 8
    s_add_u32 s12, s12, s13
    v_add_u32 v4, s12, v4
    s_lshl_b32 s13, s5, 4
    v_add_u32 v5, s13, v1
    v_lshlrev_b32 v5, 10, v5
    v_lshl_add_u32 v5, v3, 5, v5
    v_lshl_add_u32 v5, v2, 4, v5
    s_lshl_b32 s13, s6, 8                    ; 4w*64
    v_add_u32 v5, s13, v5
    v_lshlrev_b32 v6, 3, v1
    s_lshl_b32 s13, s6, 7
    v_add_u32 v7, s13, v6
    """)
    if typ=='T0':
        a(f"""
        s_load_dwordx2 s[16:17], s[0:1], 0
        s_waitcnt lgkmcnt(0)
        s_mov_b32 s18, {2048*1024}
        s_mov_b32 s19, 0x20000
        s_mov_b32 s20, 0
        s_mov_b32 s22, {xs(T_X0,0)}
        s_mov_b32 s23, {xs(T_XNA1,0)}
        s_mov_b32 s24, {WS_FLAG+FL_XN+0*64*128}
        """)
    elif typ=='T1':
        a(f"""
        s_mul_i32 s13, s4, {6*64*32768}
        s_add_u32 s20, s13, {xs(T_X0,0)}          ; residual  (X0 / X2)
        s_add_u32 s21, s13, {xs(T_YA1,0)}
        s_add_u32 s22, s13, {xs(T_X1,0)}          ; x out     (X1 / X3)
        s_add_u32 s23, s13, {xs(T_XNB1,0)}
        s_lshl_b32 s13, s4, 14                    ; l*2*64*128
        s_add_u32 s24, s13, {WS_FLAG+FL_XN+1*64*128}
        s_lshl_b32 s13, s4, 13
        s_add_u32 s25, s13, {WS_FLAG+FL_YA}
        """)
    elif typ=='T2':
        a(f"""
        s_mov_b32 s20, {xs(T_X1,0)}
        s_mov_b32 s21, {WS_PO}
        s_mov_b32 s22, {xs(T_X2,0)}
        s_mov_b32 s23, {xs(T_XNA2,0)}
        s_mov_b32 s24, {WS_FLAG+FL_XN+2*64*128}
        s_mov_b32 s25, {WS_FLAG+FL_PO}
        """)
    else:
        a(f"""
        s_load_dwordx2 s[16:17], s[0:1], 80
        s_waitcnt lgkmcnt(0)
        s_mov_b32 s18, {2048*1024}
        s_mov_b32 s19, 0x20000
        s_mov_b32 s20, {xs(T_X3,0)}
        s_mov_b32 s21, {WS_PO+64*131072}
        s_mov_b32 s22, 0
        s_mov_b32 s25, {WS_FLAG+FL_PO+64*128}
        """)
    a(f"""
    s_lshl_b32 s13, s5, 2
    {'s_add_u32 s24, s24, s13' if typ!='T3' else ''}
    s_mov_b32 s26, 0                          ; unit s
    v_mov_b32 v8, 0x3f803f80
    s_mov_b32 s27, 0xffff0000
{lab}_loop:
    """)
    if typ=='T1': wait_flags(a,lab+'w',2,'s25',fail,spin)
    if typ in('T2','T3'): wait_flags(a,lab+'w',16,'s25',fail,spin)
    X=16; P0=32; P1=48; W=64
    if typ=='T0':
        for j in range(4): a(f"buffer_load_dwordx4 v[{X+4*j}:{X+4*j+3}], v5, s[16:19], s20 offen offset:{64*j}")
        a("s_waitcnt vmcnt(0)")
        for j in range(4):
            a(f"v_permlane16_swap_b32 v{X+4*j}, v{X+4*j+2}\nv_permlane16_swap_b32 v{X+4*j+1}, v{X+4*j+3}")
    else:
        a("s_add_u32 s13, s20, 4096\ns_add_u32 s14, s21, 4096")
        if npart==2: a("s_add_u32 s28, s21, 32768\ns_add_u32 s29, s28, 4096")
        for j in range(4):
            so=lambda b,b2: (b if j<2 else b2)
            a(f"buffer_load_dwordx4 v[{P0+4*j}:{P0+4*j+3}], v4, s[8:11], {so('s21','s14')} offen offset:{2048*(j&1)} sc1")
            if npart==2: a(f"buffer_load_dwordx4 v[{P1+4*j}:{P1+4*j+3}], v4, s[8:11], {so('s28','s29')} offen offset:{2048*(j&1)} sc1")
            a(f"buffer_load_dwordx4 v[{X+4*j}:{X+4*j+3}], v4, s[8:11], {so('s20','s13')} offen offset:{2048*(j&1)} sc1")
        per=2+(npart==2)
        for j in range(4):
            a(f"s_waitcnt vmcnt({per*(3-j)})")
            for d in range(4):
                r=4*j+d; w0=W+2*r
                if npart==2:
                    a(f"""
                    v_lshlrev_b32 v{w0}, 16, v{P0+r}
                    v_and_b32 v{w0+1}, s27, v{P0+r}
                    v_lshlrev_b32 v10, 16, v{P1+r}
                    v_and_b32 v11, s27, v{P1+r}
                    v_pk_add_f32 v[{w0}:{w0+1}], v[{w0}:{w0+1}], v[10:11]
                    v_cvt_pk_bf16_f32 v{P0+r}, v{w0}, v{w0+1}
                    """)
                a(f"""
                v_lshlrev_b32 v{w0}, 16, v{P0+r}
                v_and_b32 v{w0+1}, s27, v{P0+r}
                v_lshlrev_b32 v10, 16, v{X+r}
                v_and_b32 v11, s27, v{X+r}
                v_pk_add_f32 v[{w0}:{w0+1}], v[{w0}:{w0+1}], v[10:11]
                v_cvt_pk_bf16_f32 v{X+r}, v{w0}, v{w0+1}
                """)
    if typ=='T3':
        for j in range(4):
            a(f"v_permlane16_swap_b32 v{X+4*j}, v{X+4*j+2}\nv_permlane16_swap_b32 v{X+4*j+1}, v{X+4*j+3}")
        for j in range(4): a(f"buffer_store_dwordx4 v[{X+4*j}:{X+4*j+3}], v5, s[16:19], s22 offen offset:{64*j}")
        a(f"""
        s_add_u32 s20, s20, 32768
        s_add_u32 s21, s21, 131072
        s_add_u32 s22, s22, 32768
        s_add_u32 s25, s25, 128
        """)
    else:
        a("s_add_u32 s13, s22, 4096")
        for j in range(4):
            a(f"buffer_store_dwordx4 v[{X+4*j}:{X+4*j+3}], v4, s[8:11], {'s22' if j<2 else 's13'} offen offset:{2048*(j&1)} sc1")
        a("v_mov_b32 v12, 0\nv_mov_b32 v13, 0")
        for r in range(16):
            a(f"v_dot2_f32_bf16 v12, v{X+r}, v8, v12\nv_dot2_f32_bf16 v13, v{X+r}, v{X+r}, v13")
        a(f"""
        v_mov_b32 v10, v12
        v_mov_b32 v11, v13
        v_permlane16_swap_b32 v12, v10
        v_permlane16_swap_b32 v13, v11
        v_add_f32 v12, v12, v10
        v_add_f32 v13, v13, v11
        v_mov_b32 v10, v12
        v_mov_b32 v11, v13
        v_permlane32_swap_b32 v12, v10
        v_permlane32_swap_b32 v13, v11
        v_add_f32 v12, v12, v10
        v_add_f32 v13, v13, v11
        s_mov_b64 exec, 0xffff
        ds_write_b64 v7, v[12:13]
        s_mov_b64 exec, -1
        s_waitcnt lgkmcnt(0)
        s_barrier
        ds_read_b64 v[10:11], v6
        ds_read_b64 v[12:13], v6 offset:128
        ds_read_b64 v[14:15], v6 offset:256
        ds_read_b64 v[W0:W1], v6 offset:384
        """.replace('W0',str(W)).replace('W1',str(W+1)))
        a(f"""
        s_waitcnt lgkmcnt(0)
        v_pk_add_f32 v[10:11], v[10:11], v[12:13]
        v_pk_add_f32 v[14:15], v[14:15], v[{W}:{W+1}]
        v_pk_add_f32 v[10:11], v[10:11], v[14:15]
        v_mul_f32 v10, 0x3b000000, v10            ; mean
        v_mul_f32 v11, 0x3b000000, v11            ; E[x^2]
        v_fma_f32 v11, -v10, v10, v11             ; var
        v_max_f32 v11, 0, v11
        v_cvt_pk_bf16_f32 v14, v10, v11
        v_lshlrev_b32 v12, 16, v14                ; m
        v_and_b32 v11, s27, v14                   ; var
        v_add_f32 v11, 0x3727c5ac, v11            ; + 1e-5
        v_cvt_pk_bf16_f32 v11, v11, v11
        v_and_b32 v11, s27, v11
        v_sqrt_f32 v11, v11
        s_barrier
        v_cvt_pk_bf16_f32 v11, v11, v11
        v_and_b32 v11, s27, v11
        v_rcp_f32 v14, v11
        v_mov_b32 v13, v12
        v_mov_b32 v15, v14
        """)
        for r in range(16):
            w0=W+2*r
            a(f"""
            v_lshlrev_b32 v{w0}, 16, v{X+r}
            v_and_b32 v{w0+1}, s27, v{X+r}
            v_pk_add_f32 v[{w0}:{w0+1}], v[{w0}:{w0+1}], v[12:13] neg_lo:[0,1] neg_hi:[0,1]
            v_cvt_pk_bf16_f32 v{P0+r}, v{w0}, v{w0+1}
            v_lshlrev_b32 v{w0}, 16, v{P0+r}
            v_and_b32 v{w0+1}, s27, v{P0+r}
            v_pk_mul_f32 v[{w0}:{w0+1}], v[{w0}:{w0+1}], v[14:15]
            v_cvt_pk_bf16_f32 v{P0+r}, v{w0}, v{w0+1}
            """)
        a("s_add_u32 s13, s23, 4096")
        for j in range(4):
            a(f"buffer_store_dwordx4 v[{P0+4*j}:{P0+4*j+3}], v4, s[8:11], {'s23' if j<2 else 's13'} offen offset:{2048*(j&1)} sc1")
        a(f"""
        s_waitcnt vmcnt(0)
        s_barrier
        s_cmp_lg_u32 s6, 0
        s_cbranch_scc1 {lab}_nf
        """)
        set_flag(a,'s24')
        a(f"""
{lab}_nf:
        s_add_u32 s20, s20, 32768
        s_add_u32 s22, s22, 32768
        s_add_u32 s23, s23, 32768
        s_add_u32 s24, s24, 128
        """)
        if typ=='T1': a("s_add_u32 s21, s21, 32768\ns_add_u32 s25, s25, 128")
        if typ=='T2': a("s_add_u32 s21, s21, 131072\ns_add_u32 s25, s25, 128")
    a(f"""
    s_add_u32 s26, s26, 1
    s_cmp_lt_u32 s26, 64
    s_cbranch_scc1 {lab}_loop
    """)

def tr_addr32(a, dst, wcolchunks_sgpr, rowbytes, swz, base, tmp=(60,61,62,63,64,65)):
    t0,t1,t2,t3,t4,t5=tmp
    a(f"""
    v_lshrrev_b32 v{t0}, 4, v0
    v_and_b32 v{t1}, 1, v{t0}                ; nhalf
    v_lshrrev_b32 v{t0}, 1, v{t0}            ; hf
    v_bfe_u32 v{t2}, v0, 2, 2                ; r
    v_and_b32 v{t3}, 3, v0                   ; c
    v_lshl_add_u32 v{t0}, v{t0}, 2, v{t2}
    v_lshrrev_b32 v{t4}, 1, v{t3}
    v_lshl_add_u32 v{t4}, v{t1}, 1, v{t4}
    v_add_u32 v{t4}, {wcolchunks_sgpr}, v{t4}  ; q
    """)
    swz(t2,t5)
    a(f"""
    v_xor_b32 v{t4}, v{t4}, v{t5}
    v_lshlrev_b32 v{t4}, 4, v{t4}
    v_and_b32 v{t3}, 1, v{t3}
    v_lshl_add_u32 v{t4}, v{t3}, 3, v{t4}
    v_mul_u32_u24 v{t0}, {rowbytes}, v{t0}
    v_add_u32 v{dst}, v{t0}, v{t4}
    v_add_u32 v{dst}, {base}, v{dst}
    """)

def pack_tile(a, acc, dst):
    for i in range(8):
        a(f"v_cvt_pk_bf16_f32 v{dst+i}, v{acc+2*i}, v{acc+2*i+1}")

def emit_P(a, cfg, fail):
    spin=cfg.get('spin',SPIN_DEFAULT)
    lab=a.new('P')
    a("""
    s_load_dwordx2 s[12:13], s[0:1], 40      ; Wq
    s_load_dwordx2 s[16:17], s[0:1], 48      ; Wk
    s_load_dwordx2 s[20:21], s[0:1], 56      ; Wv
    s_waitcnt lgkmcnt(0)
    s_mov_b32 s14, 4194304
    s_mov_b32 s15, 0x20000
    s_mov_b32 s18, 4194304
    s_mov_b32 s19, 0x20000
    s_mov_b32 s22, 4194304
    s_mov_b32 s23, 0x20000
    v_lshrrev_b32 v61, 4, v0
    v_and_b32 v60, 15, v0
    v_lshlrev_b32 v62, 2, v61
    v_xor_b32 v62, v60, v62
    v_lshlrev_b32 v62, 4, v62
    v_lshl_add_u32 v62, v61, 13, v62
    s_lshl_b32 s32, s5, 8
    v_add_u32 v40, s32, v62
    s_lshl_b32 s32, s6, 2
    """)
    tr_addr32(a,44,'s32',256,lambda r,o: a(f"v_lshlrev_b32 v{o}, 2, v{r}"),0)
    a("v_add_u32 v45, 0x10000, v44")
    def wreg(M,ks,p):
        if M=='Q': b=128+4*ks+2*p; return f"v[{b}:{b+1}]"
        b={'K':0,'V':128}[M]+4*ks+2*p; return f"a[{b}:{b+1}]"
    for M,srd in (('K','s[16:19]'),('V','s[20:23]'),('Q','s[12:15]')):
        a("s_lshl_b32 s33, s6, 20\ns_lshl_b32 s34, s6, 15")
        for n in range(32):
            a(f"s_add_u32 m0, s34, {4*n*256}\ns_add_u32 s35, s33, {4*n*8192}\nbuffer_load_dwordx4 v40, {srd}, s35 offen lds")
        a("s_waitcnt vmcnt(0)\ns_barrier")
        for ks in range(32):
            for p in range(2):
                a(f"ds_read_b64_tr_b16 {wreg(M,ks,p)}, v{44+(ks>>4)} offset:{(ks&15)*4096+p*2048}")
            if ks%4==3: a("s_waitcnt lgkmcnt(4)")
        a("s_waitcnt lgkmcnt(0)\ns_barrier")
    def W(M,ks):
        if M=='Q': return f"v[{128+4*ks}:{131+4*ks}]"
        b={'K':0,'V':128}[M]+4*ks; return f"a[{b}:{b+3}]"
    DEC=65536
    a(f"""
    v_lshlrev_b32 v1, 4, v0
    s_lshl_b32 s32, s6, 13
    v_add_u32 v2, s32, v1
    s_lshl_b32 s32, s6, 11
    v_add_u32 v3, s32, v1
    v_mov_b32 v4, {DEC}
    s_cmp_eq_u32 s4, 0
    s_cselect_b32 s40, 0, 64
    s_cmp_eq_u32 s4, 1
    s_cselect_b32 s41, 0, 64
    s_cmp_eq_u32 s4, 2
    s_cselect_b32 s40, 2, s40
    s_cselect_b32 s41, 2, s41
    s_mov_b32 s42, 0
    s_mov_b32 s47, 0
    """)
    def advance(c):
        a(f"""
        s_add_u32 s{c}, s{c}, 1
        s_cmp_eq_u32 s4, 2
        s_cselect_b32 s32, 2, 0
        s_add_u32 s{c}, s{c}, s32
        s_cselect_b32 s33, 1, 0
        """)
        L=a.new(lab+'adv')
        a(f"""
        s_cmp_eq_u32 s4, 2
        s_cbranch_scc1 {L}
        s_mul_hi_u32 s32, s{c}, 0x55555556
        s_mul_i32 s32, s32, 3
        s_sub_u32 s32, s{c}, s32
        s_cmp_eq_u32 s32, 2
        s_cselect_b32 s32, 1, 0
        s_add_u32 s{c}, s{c}, s32
{L}:
        """)
    def flag_addr(l,c,dst):
        a(f"s_lshl_b32 s{dst}, s{c}, 7\ns_add_u32 s{dst}, s{dst}, {WS_FLAG+FL_XN+(1+2*l)*64*128}")
    def issue_polls():
        flag_addr(0,40,36); flag_addr(1,41,37)
        a(f"""
        v_and_b32 v8, 7, v0
        v_lshlrev_b32 v8, 2, v8
        buffer_load_dword v9, v8, s[8:11], s36 offen sc1
        buffer_load_dword v10, v8, s[8:11], s37 offen sc1
        """)
    def eval_polls():
        a(f"""
        v_cmp_eq_u32 vcc, 0, v10
        s_cmp_eq_u64 vcc, 0
        s_cselect_b32 s38, 2, 0
        s_cmp_ge_u32 s41, 64
        s_cselect_b32 s38, 0, s38
        v_cmp_eq_u32 vcc, 0, v9
        s_cmp_eq_u64 vcc, 0
        s_cselect_b32 s39, 1, 0
        s_cmp_ge_u32 s40, 64
        s_cselect_b32 s39, 0, s39
        s_cmp_lg_u32 s38, 0
        s_cselect_b32 s38, s38, s39
        s_and_b32 s32, s40, s41
        s_min_u32 s33, s40, s41
        s_cmp_ge_u32 s33, 64
        s_cselect_b32 s38, 3, s38
        """)
    def take(dec):
        L=a.new(lab+'take')
        a(f"""
        s_cmp_eq_u32 s{dec}, 2
        s_cbranch_scc1 {L}_2
        s_lshl_b32 s43, s40, 15
        s_add_u32 s43, s43, {xs(T_XNB1,0)}
        s_lshl_b32 s44, s40, 5
        """)
        advance(40)
        a(f"""
        s_branch {L}_e
{L}_2:
        s_lshl_b32 s43, s41, 15
        s_add_u32 s43, s43, {xs(T_XNB2,0)}
        s_add_u32 s44, s41, 64
        s_lshl_b32 s44, s44, 5
        """)
        advance(41)
        a(f"""
{L}_e:
        s_add_u32 s44, s44, s5                    ; (l*64+s)*32+h
        s_lshl_b32 s45, s44, 5
        s_add_u32 s45, s45, {WS_FLAG+FL_P}
        s_mul_i32 s44, s44, {QKV_BLK}
        """)
    def dma(buf):
        out=[]
        for n in range(8):
            out.append(f"s_lshl_b32 s32, s6, 13\ns_add_u32 s32, s32, s{buf}\ns_add_u32 m0, s32, {n*1024 - (n&3)*1024}\ns_add_u32 s33, s43, {(n>>2)*4096}\nbuffer_load_dwordx4 v2, s[8:11], s33 offen offset:{(n&3)*1024} sc1 lds")
        return out
    a.label(lab+'_block')
    a(f"""
    s_cmp_lg_u32 s6, 0
    s_cbranch_scc1 {lab}_bw
    s_mov_b32 s46, 0
{lab}_bspin:
    """)
    issue_polls()
    a("s_waitcnt vmcnt(0)")
    eval_polls()
    a(f"""
    s_cmp_lg_u32 s38, 0
    s_cbranch_scc1 {lab}_bgot
    s_add_u32 s46, s46, 1
    s_cmp_gt_u32 s46, {spin}
    s_cselect_b32 s38, 4, 0
    s_cbranch_scc1 {lab}_bgot
    s_sleep 4
    s_branch {lab}_bspin
{lab}_bgot:
    v_mov_b32 v9, s38
    ds_write_b32 v4, v9
    s_waitcnt lgkmcnt(0)
{lab}_bw:
    s_barrier
    ds_read_b32 v9, v4
    s_waitcnt lgkmcnt(0)
    v_readfirstlane_b32 s38, v9
    s_barrier
    s_cmp_eq_u32 s38, 3
    s_cbranch_scc1 {lab}_done
    s_cmp_eq_u32 s38, 4
    s_cbranch_scc1 {fail}
    """)
    take(38)
    for d in dma(42): a(d)
    a(f"""
    s_mov_b32 s48, s44
    s_mov_b32 s49, s45
    s_waitcnt vmcnt(0)
    s_barrier
    """)
    a.label(lab+'_unit')
    a(f"""
    v_add_u32 v5, s42, v1
    s_xor_b32 s50, s42, 32768
    s_cmp_lg_u32 s6, 0
    s_cbranch_scc1 {lab}_np
    """)
    issue_polls()
    a.label(lab+'_np')
    XR=64; NR=8; ACC=[32,48]; PK=96
    reads=[(t,ks) for t in range(3) for ks in range(32)]
    def rd(i):
        t,ks=reads[i]; r=XR+4*(i%NR)
        a(f"ds_read_b128 v[{r}:{r+3}], v5 offset:{ks*1024}")
    AHEAD=6
    for i in range(AHEAD): rd(i)
    Ms=['K','V','Q']
    def epi(t):
        acc=ACC[t&1]; M=Ms[t]; out=[]
        for i in range(8): out.append(f"v_cvt_pk_bf16_f32 v{PK+i}, v{acc+2*i}, v{acc+2*i+1}")
        off={'Q':0,'K':8192,'V':16384}[M]
        out.append(f"s_add_u32 s33, s48, {off}\nbuffer_store_dwordx4 v[{PK}:{PK+3}], v3, s[8:11], s33 offen sc1")
        out.append(f"buffer_store_dwordx4 v[{PK+4}:{PK+7}], v3, s[8:11], s33 offen offset:1024 sc1")
        return out
    pend=[]
    for i,(t,ks) in enumerate(reads):
        M=Ms[t]; acc=ACC[t&1]; r=XR+4*(i%NR)
        remaining=min(AHEAD-1, len(reads)-1-i)
        a(f"s_waitcnt lgkmcnt({remaining})")
        c='0' if ks==0 else f"v[{acc}:{acc+15}]"
        if M=='V': a(f"v_mfma_f32_32x32x16_bf16 v[{acc}:{acc+15}], v[{r}:{r+3}], {W(M,ks)}, {c}")
        else: a(f"v_mfma_f32_32x32x16_bf16 v[{acc}:{acc+15}], {W(M,ks)}, v[{r}:{r+3}], {c}")
        if i+AHEAD<len(reads): rd(i+AHEAD)
        if t>=1 and ks==0: pend=epi(t-1)
        if t>=1 and ks>=6 and pend: a(pend.pop(0))
        if t==0 and ks==31:
            a(f"""
            s_cmp_lg_u32 s6, 0
            s_cbranch_scc1 {lab}_nd
            s_waitcnt vmcnt(0)
            """)
            eval_polls()
            a(f"""
            v_mov_b32 v9, s38
            ds_write_b32 v4, v9 offset:4
            s_waitcnt lgkmcnt(0)
{lab}_nd:
            s_barrier
            """)
        if t==1 and ks==20:
            a("ds_read_b32 v11, v4 offset:4")
        if t==2 and ks==0:
            a(f"""
            s_waitcnt lgkmcnt(0)
            v_readfirstlane_b32 s38, v11
            s_mov_b32 s47, 0
            s_cmp_eq_u32 s38, 0
            s_cbranch_scc1 {lab}_nopf
            s_cmp_eq_u32 s38, 3
            s_cbranch_scc1 {lab}_nopf
            s_mov_b32 s47, 1
            """)
            take(38)
            for d in dma(50): a(d)
            a.label(lab+'_nopf')
    for x in epi(2): a(x)
    a(f"""
    s_waitcnt vmcnt(0)
    s_barrier
    s_cmp_lg_u32 s6, 0
    s_cbranch_scc1 {lab}_nf
    """)
    flagval(a,9)
    a("""
    v_lshlrev_b32 v8, 2, v0
    s_mov_b64 exec, 0xff
    buffer_store_dword v9, v8, s[8:11], s49 offen sc1
    s_mov_b64 exec, -1
    """)
    a(f"""
{lab}_nf:
    s_mov_b32 s42, s50
    s_cmp_eq_u32 s47, 0
    s_cbranch_scc1 {lab}_block
    s_mov_b32 s48, s44
    s_mov_b32 s49, s45
    s_branch {lab}_unit
{lab}_done:
    """)

def emit_AWO(a, cfg, fail):
    spin=cfg.get('spin',SPIN_DEFAULT)
    lab=a.new('AWO')
    a("""
    s_load_dwordx2 s[12:13], s[0:1], 16      ; A_wo
    s_waitcnt lgkmcnt(0)
    s_mov_b32 s14, 524288
    s_mov_b32 s15, 0x20000
    v_lshrrev_b32 v61, 5, v0
    v_and_b32 v60, 31, v0
    s_lshl_b32 s32, s5, 9
    """)
    for var in range(2):
        a(f"""
        v_add_u32 v62, {2*var}, v61
        v_lshlrev_b32 v62, 2, v62
        v_xor_b32 v62, v60, v62
        v_lshlrev_b32 v62, 4, v62
        v_lshl_add_u32 v62, v61, 10, v62
        v_add_u32 v{40+var}, s32, v62
        """)
    a("s_lshl_b32 s32, s6, 3")
    tr_addr32(a,44,'s32',512,lambda r,o: a(f"v_lshlrev_b32 v{o}, 2, v{r}"),0)
    a("v_xor_b32 v45, 64, v44\nv_add_u32 v46, 0x10000, v44\nv_add_u32 v47, 0x10000, v45")
    def wreg(T,ks,p):
        b=(T*32+ks)*4+2*p; return f"a[{b}:{b+1}]"
    for rnd in range(2):
        a(f"s_lshl_b32 s33, s6, 16\ns_add_u32 s33, s33, {rnd*256*1024}\ns_lshl_b32 s34, s6, 15")
        for n in range(32):
            a(f"s_add_u32 m0, s34, {2*n*512}\ns_add_u32 s35, s33, {2*n*1024}\nbuffer_load_dwordx4 v{40+(n&1)}, s[12:15], s35 offen lds")
        a("s_waitcnt vmcnt(0)\ns_barrier")
        for ksl in range(16):
            ks=16*rnd+ksl
            for T in range(2):
                for p in range(2):
                    off=(ksl&7)*16*512+p*8*512
                    a(f"ds_read_b64_tr_b16 {wreg(T,ks,p)}, v{44+T+(2 if ksl>=8 else 0)} offset:{off}")
            if ksl%2==1: a("s_waitcnt lgkmcnt(4)")
        a("s_waitcnt lgkmcnt(0)\ns_barrier")
    a(f"""
    v_lshlrev_b32 v1, 4, v0
    s_lshl_b32 s32, s6, 13
    v_add_u32 v2, s32, v1
    s_lshl_b32 s32, s5, 14
    s_lshl_b32 s33, s6, 12
    s_add_u32 s32, s32, s33
    v_add_u32 v3, s32, v1
    s_mul_i32 s32, s4, {6*64*32768}
    s_add_u32 s43, s32, {xs(T_OA1,0)}
    s_add_u32 s44, s32, {xs(T_YA1,0)}
    s_lshl_b32 s32, s4, 13
    s_add_u32 s45, s32, {WS_FLAG+FL_OA}
    s_lshl_b32 s33, s5, 2
    s_add_u32 s46, s32, {WS_FLAG+FL_YA}
    s_add_u32 s46, s46, s33
    s_mov_b32 s40, 0
{lab}_loop:
    """)
    wait_flags(a,lab+'w',32,'s45',fail,spin)
    for n in range(8):
        a(f"s_lshl_b32 s32, s6, 13\ns_add_u32 m0, s32, {(n>>2)*4096}\ns_add_u32 s33, s43, {(n>>2)*4096}\nbuffer_load_dwordx4 v2, s[8:11], s33 offen offset:{(n&3)*1024} sc1 lds")
    a("s_waitcnt vmcnt(0)\ns_barrier")
    XR=64; NR=8; AHEAD=6
    def rd(i): a(f"ds_read_b128 v[{XR+4*(i%NR)}:{XR+4*(i%NR)+3}], v1 offset:{i*1024}")
    for i in range(AHEAD): rd(i)
    for ks in range(32):
        r=XR+4*(ks%NR)
        a(f"s_waitcnt lgkmcnt({min(AHEAD-1,31-ks)})")
        for T in range(2):
            acc=32+16*T; c='0' if ks==0 else f"v[{acc}:{acc+15}]"
            b=(T*32+ks)*4
            a(f"v_mfma_f32_32x32x16_bf16 v[{acc}:{acc+15}], a[{b}:{b+3}], v[{r}:{r+3}], {c}")
        if ks+AHEAD<32: rd(ks+AHEAD)
    for T in range(2):
        pack_tile(a,32+16*T,96+8*T)
    for f in range(4):
        a(f"buffer_store_dwordx4 v[{96+4*f}:{99+4*f}], v3, s[8:11], s44 offen offset:{f*1024} sc1")
    a(f"""
    s_waitcnt vmcnt(0)
    s_barrier
    s_cmp_lg_u32 s6, 0
    s_cbranch_scc1 {lab}_nf
    """)
    set_flag(a,'s46')
    a(f"""
{lab}_nf:
    s_add_u32 s43, s43, 32768
    s_add_u32 s44, s44, 32768
    s_add_u32 s45, s45, 128
    s_add_u32 s46, s46, 128
    s_add_u32 s40, s40, 1
    s_cmp_lt_u32 s40, 64
    s_cbranch_scc1 {lab}_loop
    """)

def causal_masks(a, sbase, tmp=(60,61)):
    t0,t1=tmp
    a(f"""
    v_and_b32 v{t0}, 31, v0
    v_lshrrev_b32 v{t1}, 5, v0
    v_lshlrev_b32 v{t1}, 2, v{t1}
    v_sub_u32 v{t0}, v{t0}, v{t1}
    """)
    for r in range(16):
        k=8*(r>>2)+(r&3)
        a(f"v_cmp_le_i32 s[{sbase+2*r}:{sbase+2*r+1}], {k}, v{t0}")

def emit_AH(a, cfg, fail):
    spin=cfg.get('spin',SPIN_DEFAULT)
    lab=a.new('AH')
    RDY=98304+64
    a(f"""
    s_load_dwordx2 s[12:13], s[0:1], 8       ; A_wqkv [512][1536]
    s_waitcnt lgkmcnt(0)
    s_mov_b32 s14, {512*3072}
    s_mov_b32 s15, 0x20000
    v_lshrrev_b32 v61, 3, v0
    v_and_b32 v60, 7, v0
    v_bfe_u32 v62, v61, 1, 1
    v_lshlrev_b32 v62, 2, v62
    v_xor_b32 v62, v60, v62
    v_lshrrev_b32 v63, 1, v62
    v_min_u32 v63, 2, v63
    v_and_b32 v62, 1, v62
    v_lshlrev_b32 v62, 4, v62
    v_lshl_add_u32 v62, v63, 10, v62
    v_mul_u32_u24 v63, 3072, v61
    v_add_u32 v62, v62, v63
    s_lshl_b32 s32, s5, 5
    v_add_u32 v40, s32, v62
    """)
    a(f"s_mul_i32 s33, s6, {128*3072}\ns_lshl_b32 s34, s6, 14")
    for n in range(16):
        a(f"s_add_u32 m0, s34, {8*n*128}\ns_add_u32 s35, s33, {8*n*3072}\nbuffer_load_dwordx4 v40, s[12:15], s35 offen lds")
    a("s_waitcnt vmcnt(0)\ns_barrier\ns_mov_b32 s32, 0")
    def swz(r,o): a(f"v_lshrrev_b32 v{o}, 1, v{r}\nv_lshlrev_b32 v{o}, 2, v{o}")
    tr_addr32(a,44,'s32',128,swz,0)
    a("v_xor_b32 v45, 64, v44")
    for ks in range(32):
        for p in range(2):
            off=ks*16*128+p*8*128
            a(f"ds_read_b64_tr_b16 a[{4*ks+2*p}:{4*ks+2*p+1}], v44 offset:{off}")
            a(f"ds_read_b64_tr_b16 a[{128+4*ks+2*p}:{128+4*ks+2*p+1}], v45 offset:{off}")
        if ks%2==1: a("s_waitcnt lgkmcnt(4)")
    a("s_waitcnt lgkmcnt(0)\ns_barrier")
    a(f"""
    v_mov_b32 v1, {RDY}
    v_mov_b32 v2, 0
    s_lshl_b32 s32, s6, 2
    v_add_u32 v3, s32, v1
    s_xor_b32 s33, s32, 4
    v_add_u32 v4, s33, v1
    ds_write_b32 v3, v2
    s_waitcnt lgkmcnt(0)
    s_barrier
    v_lshlrev_b32 v1, 4, v0                  ; lane*16
    s_lshr_b32 s40, s6, 1                    ; layer
    s_and_b32 s41, s6, 1                     ; unit s
    s_mul_i32 s42, s40, 49152
    s_mul_i32 s32, s40, {6*64*32768}
    s_add_u32 s43, s32, {xs(T_XNA1,0)}
    s_add_u32 s44, s32, {xs(T_OA1,0)}
    s_lshl_b32 s33, s5, 10
    s_add_u32 s44, s44, s33                  ; + h*1024
    s_lshl_b32 s32, s40, 14
    s_add_u32 s45, s32, {WS_FLAG+FL_XN}      ; (2l)*64*128
    s_lshl_b32 s32, s40, 13
    s_add_u32 s46, s32, {WS_FLAG+FL_OA}
    s_lshl_b32 s33, s5, 2
    s_add_u32 s46, s46, s33
    s_lshl_b32 s32, s41, 15
    s_add_u32 s43, s43, s32
    s_add_u32 s44, s44, s32
    s_lshl_b32 s32, s41, 7
    s_add_u32 s45, s45, s32
    s_add_u32 s46, s46, s32
    v_and_b32 v5, 31, v0
    v_cmp_le_u32 s[62:63], 16, v5
    v_mov_b32 v6, 0x3f803f80
    v_mov_b32 v7, 0xff7fffff                 ; -FLT_MAX
    s_mov_b32 s47, 0x3eb8aa3b                ; 0.25*log2(e)
    """)
    causal_masks(a,64)
    a.label(lab+'_loop')
    wait_flags(a,lab+'w',8,'s45',fail,spin)
    XB=64
    for g in range(8):
        a(f"s_add_u32 s32, s43, {g*4096}")
        for j in range(4):
            ks=4*g+j
            a(f"buffer_load_dwordx4 v[{XB+4*ks}:{XB+4*ks+3}], v1, s[8:11], s32 offen offset:{j*1024} sc1")
    for ks in range(32):
        a(f"s_waitcnt vmcnt({31-ks})")
        c0='0' if ks==0 else 'v[32:47]'; c1='0' if ks==0 else 'v[48:63]'
        a(f"v_mfma_f32_32x32x16_bf16 v[32:47], a[{4*ks}:{4*ks+3}], v[{XB+4*ks}:{XB+4*ks+3}], {c0}")
        a(f"v_mfma_f32_32x32x16_bf16 v[48:63], v[{XB+4*ks}:{XB+4*ks+3}], a[{128+4*ks}:{128+4*ks+3}], {c1}")
    for i in range(4): a(f"v_cvt_pk_bf16_f32 v{8+i}, v{32+2*i}, v{33+2*i}")
    for i in range(4): a(f"v_cvt_pk_bf16_f32 v{12+i}, v{40+2*i}, v{41+2*i}")
    for i in range(8): a(f"v_cvt_pk_bf16_f32 v{16+i}, v{48+2*i}, v{49+2*i}")
    for i in range(8): a(f"v_cndmask_b32 v{16+i}, v{16+i}, v6, s[62:63]")
    a(f"""
    s_and_b32 s32, s41, 15
    s_mul_i32 s32, s32, 3072
    s_add_u32 s32, s32, s42
    v_add_u32 v24, s32, v1
    ds_write_b128 v24, v[12:15]
    ds_write_b128 v24, v[16:19] offset:1024
    ds_write_b128 v24, v[20:23] offset:2048
    s_add_u32 s33, s41, 1
    v_mov_b32 v25, s33
    s_waitcnt lgkmcnt(0)
    ds_write_b32 v3, v25
    s_mov_b32 s48, 0
{lab}_pw:
    ds_read_b32 v26, v4
    s_waitcnt lgkmcnt(0)
    v_readfirstlane_b32 s49, v26
    s_cmp_ge_u32 s49, s41
    s_cbranch_scc1 {lab}_pok
    s_add_u32 s48, s48, 1
    s_cmp_gt_u32 s48, {spin*8}
    s_cbranch_scc1 {fail}
    s_sleep 1
    s_branch {lab}_pw
{lab}_pok:
    """)
    SB=64
    for b in range(9):
        L=f"{lab}_b{b}"
        a(f"""
        s_add_u32 s32, s41, {b}
        s_cmp_lt_u32 s32, 8
        s_cbranch_scc1 {L}_inv
        s_sub_u32 s32, s32, 8
        s_and_b32 s32, s32, 15
        s_mul_i32 s32, s32, 3072
        s_add_u32 s{50+b}, s32, s42
        v_add_u32 v24, s{50+b}, v1
        ds_read_b128 v[28:31], v24
        s_waitcnt lgkmcnt(0)
        v_mfma_f32_32x32x16_bf16 v[{SB+16*b}:{SB+16*b+15}], v[28:31], v[8:11], 0
        s_branch {L}_e
{L}_inv:
        s_mov_b32 s{50+b}, s42
        """)
        for r in range(16): a(f"v_mov_b32 v{SB+16*b+r}, v7")
        a.label(L+'_e')
    for r in range(16): a(f"v_cndmask_b32 v{SB+128+r}, v7, v{SB+128+r}, s[{64+2*r}:{65+2*r}]")
    for r in range(16): a(f"v_cndmask_b32 v{SB+r}, v{SB+r}, v7, s[{64+2*r}:{65+2*r}]")
    a(f"v_max3_f32 v24, v{SB}, v{SB+1}, v{SB+2}\nv_max3_f32 v25, v{SB+3}, v{SB+4}, v{SB+5}")
    i=6
    while i<144:
        a(f"v_max3_f32 v24, v24, v{SB+i}, v{SB+i+1}"); i+=2
        if i<144: a(f"v_max3_f32 v25, v25, v{SB+i}, v{SB+i+1}"); i+=2
    a(f"""
    v_max_f32 v24, v24, v25
    v_mov_b32 v25, v24
    v_permlane32_swap_b32 v24, v25
    v_max_f32 v24, v24, v25
    v_mul_f32 v24, s47, v24
    """)
    for b in range(9):
        for r in range(16): a(f"v_fma_f32 v{SB+16*b+r}, v{SB+16*b+r}, s47, -v24")
        for r in range(16): a(f"v_exp_f32 v{SB+16*b+r}, v{SB+16*b+r}")
        a(f"v_add_u32 v26, s{50+b}, v1\nds_read_b128 v[28:31], v26 offset:1024\nds_read_b128 v[208:211], v26 offset:2048")
        for i in range(8): a(f"v_cvt_pk_bf16_f32 v{SB+16*b+i}, v{SB+16*b+2*i}, v{SB+16*b+2*i+1}")
        c='0' if b==0 else 'v[32:47]'
        a(f"""
        s_waitcnt lgkmcnt(0)
        v_mfma_f32_32x32x16_bf16 v[32:47], v[28:31], v[{SB+16*b}:{SB+16*b+3}], {c}
        v_mfma_f32_32x32x16_bf16 v[32:47], v[208:211], v[{SB+16*b+4}:{SB+16*b+7}], v[32:47]
        """)
    a("v_rcp_f32 v24, v40")
    for r in range(8): a(f"v_mul_f32 v{32+r}, v{32+r}, v24")
    for i in range(4): a(f"v_cvt_pk_bf16_f32 v{8+i}, v{32+2*i}, v{33+2*i}")
    a(f"""
    buffer_store_dwordx4 v[8:11], v1, s[8:11], s44 offen sc1
    s_waitcnt vmcnt(0)
    """)
    set_flag(a,'s46')
    a(f"""
    s_add_u32 s43, s43, 65536
    s_add_u32 s44, s44, 65536
    s_add_u32 s45, s45, 256
    s_add_u32 s46, s46, 256
    s_add_u32 s41, s41, 2
    s_cmp_lt_u32 s41, 64
    s_cbranch_scc1 {lab}_loop
    """)

def emit_ATT(a, cfg, fail):
    spin=cfg.get('spin',SPIN_DEFAULT)
    lab=a.new('ATT')
    a(f"""
    s_lshl_b32 s40, s5, 2
    s_add_u32 s40, s40, s6                   ; head
    s_lshl_b32 s32, s4, 11
    s_add_u32 s32, s32, s40                  ; (l*64)*32 + h
    s_mul_i32 s43, s32, {QKV_BLK}
    s_lshl_b32 s44, s32, 12
    s_add_u32 s44, s44, {WS_KM}
    s_lshl_b32 s45, s32, 4
    s_add_u32 s45, s45, {WS_FLAG+FL_CH}
    s_lshl_b32 s33, s4, 13
    s_lshl_b32 s34, s40, 2
    s_add_u32 s46, s33, s34
    s_add_u32 s46, s46, {WS_FLAG+FL_OB}
    s_lshl_b32 s33, s4, 24                   ; l*64*256K
    s_lshl_b32 s34, s40, 13
    s_add_u32 s47, s33, s34
    s_add_u32 s47, s47, {WS_OB}
    s_lshl_b32 s42, s6, 12
    v_lshlrev_b32 v1, 4, v0
    v_lshrrev_b32 v60, 5, v0
    v_and_b32 v61, 7, v0
    v_lshlrev_b32 v2, 4, v61
    v_lshl_add_u32 v2, v60, 7, v2
    v_add_u32 v2, s42, v2
    v_and_b32 v61, 31, v0
    v_lshlrev_b32 v3, 4, v61
    v_lshl_add_u32 v3, v60, 3, v3
    v_add_u32 v3, s42, v3
    v_mov_b32 v7, 0xff7fffff
    v_mov_b32 v12, 0x3f803f80
    v_mov_b32 v13, 0x3f803f80
    v_mov_b32 v14, 0x3f803f80
    v_mov_b32 v15, 0x3f803f80
    s_mov_b32 s48, 0x3e0293ee                ; 128^-0.5*log2e
    s_mov_b32 s41, 0
    """)
    causal_masks(a,64)
    a.label(lab+'_loop')
    wait_flags(a,lab+'w',4,'s45',fail,spin)
    a(f"s_mov_b32 m0, s42")
    for j in range(4): a(f"buffer_load_dwordx4 v1, s[8:11], s44 offen offset:{j*1024} sc1 lds")
    Q=64; K=96; V=128; KM=160
    for blk,reg in ((1,K),(0,Q),(2,V)):
        for g in range(2):
            a(f"s_add_u32 s32, s43, {blk*8192+g*4096}")
            for j in range(4):
                r=reg+4*(4*g+j)
                a(f"buffer_load_dwordx4 v[{r}:{r+3}], v1, s[8:11], s32 offen offset:{j*1024} sc1")
    a("s_waitcnt vmcnt(24)")
    for ks in range(8): a(f"ds_read_b128 v[{KM+4*ks}:{KM+4*ks+3}], v2 offset:{ks*256}")
    VM=192
    for W_ in range(4):
        a(f"ds_read_b64 v[{VM+4*W_}:{VM+4*W_+1}], v3 offset:{2048+W_*512}\nv_mov_b32 v{VM+4*W_+2}, 0\nv_mov_b32 v{VM+4*W_+3}, 0")
    a("s_waitcnt vmcnt(8) lgkmcnt(0)")
    for ks in range(8):
        c0='0' if ks==0 else 'v[32:47]'; c1='0' if ks==0 else 'v[48:63]'
        a(f"v_mfma_f32_32x32x16_bf16 v[32:47], v[{K+4*ks}:{K+4*ks+3}], v[{Q+4*ks}:{Q+4*ks+3}], {c0}")
        a(f"v_mfma_f32_32x32x16_bf16 v[48:63], v[{KM+4*ks}:{KM+4*ks+3}], v[{Q+4*ks}:{Q+4*ks+3}], {c1}")
    for r in range(16): a(f"v_cndmask_b32 v{32+r}, v7, v{32+r}, s[{64+2*r}:{65+2*r}]")
    a("v_max3_f32 v24, v32, v33, v34\nv_max3_f32 v25, v35, v36, v37")
    a("""
    v_max3_f32 v24, v24, v38, v39
    v_max3_f32 v25, v25, v40, v41
    v_max3_f32 v24, v24, v42, v43
    v_max3_f32 v25, v25, v44, v45
    v_max3_f32 v24, v24, v46, v47
    v_max3_f32 v25, v25, v48, v49
    v_max3_f32 v24, v24, v50, v51
    v_max_f32 v24, v24, v25
    v_mov_b32 v25, v24
    v_permlane32_swap_b32 v24, v25
    v_max_f32 v24, v24, v25
    v_mul_f32 v24, s48, v24
    """)
    for r in range(20): a(f"v_fma_f32 v{32+r}, v{32+r}, s48, -v24")
    for r in range(20): a(f"v_exp_f32 v{32+r}, v{32+r}")
    for i in range(8): a(f"v_cvt_pk_bf16_f32 v{16+i}, v{32+2*i}, v{33+2*i}")
    a("""
    v_cvt_pk_bf16_f32 v8, v48, v49
    v_cvt_pk_bf16_f32 v9, v50, v51
    v_mov_b32 v10, 0
    v_mov_b32 v11, 0
    s_waitcnt vmcnt(0)
    v_mfma_f32_32x32x16_bf16 v[32:47], v[12:15], v[16:19], 0
    v_mfma_f32_32x32x16_bf16 v[32:47], v[12:15], v[20:23], v[32:47]
    v_mfma_f32_32x32x16_bf16 v[32:47], v[12:15], v[8:11], v[32:47]
    """)
    O=160
    OT=[160,176,208,224]
    for W_ in range(4):
        o=OT[W_]
        a(f"v_mfma_f32_32x32x16_bf16 v[{o}:{o+15}], v[{V+8*W_}:{V+8*W_+3}], v[16:19], 0")
        a(f"v_mfma_f32_32x32x16_bf16 v[{o}:{o+15}], v[{V+8*W_+4}:{V+8*W_+7}], v[20:23], v[{o}:{o+15}]")
        a(f"v_mfma_f32_32x32x16_bf16 v[{o}:{o+15}], v[{VM+4*W_}:{VM+4*W_+3}], v[8:11], v[{o}:{o+15}]")
    a("v_rcp_f32 v24, v32")
    for W_ in range(4):
        o=OT[W_]
        for r in range(16): a(f"v_mul_f32 v{o+r}, v{o+r}, v24")
        for i in range(8): a(f"v_cvt_pk_bf16_f32 v{Q+8*W_+i}, v{o+2*i}, v{o+2*i+1}")
        if W_==2: a("s_add_u32 s32, s47, 4096")
        for f in range(2):
            fi=2*W_+f
            a(f"buffer_store_dwordx4 v[{Q+4*fi}:{Q+4*fi+3}], v1, s[8:11], {'s47' if fi<4 else 's32'} offen offset:{(fi&3)*1024} sc1")
    a("s_waitcnt vmcnt(0)")
    set_flag(a,'s46')
    a(f"""
    s_add_u32 s43, s43, {32*QKV_BLK}
    s_add_u32 s44, s44, {32*4096}
    s_add_u32 s45, s45, 512
    s_add_u32 s46, s46, 128
    s_add_u32 s47, s47, 262144
    s_add_u32 s41, s41, 1
    s_cmp_lt_u32 s41, 64
    s_cbranch_scc1 {lab}_loop
    """)

def emit_O(a, cfg, fail):
    spin=cfg.get('spin',SPIN_DEFAULT)
    lab=a.new('O')
    a(f"""
    s_load_dwordx2 s[12:13], s[0:1], 64      ; B_Wo [4096][512]
    s_waitcnt lgkmcnt(0)
    s_mov_b32 s14, 4194304
    s_mov_b32 s15, 0x20000
    s_lshr_b32 s40, s5, 3                    ; kh
    s_and_b32 s41, s5, 7                     ; nq
    v_lshrrev_b32 v61, 3, v0                 ; row_local
    v_and_b32 v60, 7, v0
    v_bfe_u32 v62, v61, 1, 1
    v_lshlrev_b32 v62, 2, v62
    v_xor_b32 v62, v60, v62
    v_lshlrev_b32 v62, 4, v62
    v_lshl_add_u32 v62, v61, 10, v62
    s_lshl_b32 s32, s41, 7
    v_add_u32 v40, s32, v62
    s_mov_b32 s32, 0
    """)
    def swz(r,o): a(f"v_lshrrev_b32 v{o}, 1, v{r}\nv_lshlrev_b32 v{o}, 2, v{o}")
    tr_addr32(a,44,'s32',128,swz,0)
    a("s_lshl_b32 s34, s6, 15\nv_add_u32 v44, s34, v44\nv_xor_b32 v45, 64, v44")
    for rnd in range(2):
        a(f"s_lshl_b32 s33, s40, 21\ns_lshl_b32 s35, s6, 19\ns_add_u32 s33, s33, s35\ns_add_u32 s33, s33, {rnd*256*1024}")
        for n in range(32):
            a(f"s_add_u32 m0, s34, {8*n*128}\ns_add_u32 s35, s33, {8*n*1024}\nbuffer_load_dwordx4 v40, s[12:15], s35 offen lds")
        a("s_waitcnt vmcnt(0)")
        for ksl in range(16):
            ks=16*rnd+ksl
            for T in range(2):
                for p in range(2):
                    b=(T*32+ks)*4+2*p
                    a(f"ds_read_b64_tr_b16 a[{b}:{b+1}], v{44+T} offset:{ksl*2048+p*1024}")
            if ksl%2==1: a("s_waitcnt lgkmcnt(4)")
        a("s_waitcnt lgkmcnt(0)")
    a(f"""
    s_barrier
    v_lshlrev_b32 v1, 4, v0
    s_lshl_b32 s32, s4, 24
    s_lshl_b32 s33, s40, 17
    s_lshl_b32 s34, s6, 15
    s_add_u32 s43, s32, s33
    s_add_u32 s43, s43, s34
    s_add_u32 s43, s43, {WS_OB}
    s_lshl_b32 s32, s4, 23                   ; l*64*128K
    s_lshl_b32 s33, s40, 15
    s_lshl_b32 s34, s41, 12
    s_add_u32 s44, s32, s33
    s_add_u32 s44, s44, s34
    s_lshl_b32 s34, s6, 10
    s_add_u32 s44, s44, s34
    s_add_u32 s44, s44, {WS_PO}
    s_lshl_b32 s32, s4, 13
    s_lshl_b32 s33, s40, 6
    s_lshl_b32 s34, s6, 4
    s_add_u32 s45, s32, s33
    s_add_u32 s45, s45, s34
    s_add_u32 s45, s45, {WS_FLAG+FL_OB}
    s_lshl_b32 s33, s5, 2
    s_add_u32 s46, s32, s33
    s_add_u32 s46, s46, {WS_FLAG+FL_PO}
    s_lshl_b32 s32, s6, 13
    v_add_u32 v2, s32, v1
    s_lshl_b32 s32, s6, 11
    v_add_u32 v3, s32, v1
    s_mov_b32 s47, 0
{lab}_loop:
    """)
    wait_flags(a,lab+'w',4,'s45',fail,spin)
    XB=64
    for g in range(8):
        a(f"s_add_u32 s32, s43, {g*4096}")
        for j in range(4):
            ks=4*g+j
            a(f"buffer_load_dwordx4 v[{XB+4*ks}:{XB+4*ks+3}], v1, s[8:11], s32 offen offset:{j*1024} sc1")
    for ks in range(32):
        a(f"s_waitcnt vmcnt({31-ks})")
        for T in range(2):
            acc=32+16*T; c='0' if ks==0 else f"v[{acc}:{acc+15}]"; b=(T*32+ks)*4
            a(f"v_mfma_f32_32x32x16_bf16 v[{acc}:{acc+15}], a[{b}:{b+3}], v[{XB+4*ks}:{XB+4*ks+3}], {c}")
    for q in range(8): a(f"ds_write_b128 v2, v[{32+4*q}:{35+4*q}] offset:{q*1024}")
    a("s_waitcnt lgkmcnt(0)\ns_barrier")
    for w in range(4):
        for q in range(2): a(f"ds_read_b128 v[{64+8*w+4*q}:{67+8*w+4*q}], v3 offset:{w*8192+q*1024}")
    a("s_waitcnt lgkmcnt(0)")
    for r in range(0,8,2):
        a(f"v_pk_add_f32 v[{64+r}:{65+r}], v[{64+r}:{65+r}], v[{72+r}:{73+r}]\nv_pk_add_f32 v[{80+r}:{81+r}], v[{80+r}:{81+r}], v[{88+r}:{89+r}]")
    for r in range(0,8,2):
        a(f"v_pk_add_f32 v[{64+r}:{65+r}], v[{64+r}:{65+r}], v[{80+r}:{81+r}]")
    for i in range(4): a(f"v_cvt_pk_bf16_f32 v{8+i}, v{64+2*i}, v{65+2*i}")
    a(f"""
    buffer_store_dwordx4 v[8:11], v1, s[8:11], s44 offen sc1
    s_waitcnt vmcnt(0)
    s_barrier
    s_cmp_lg_u32 s6, 0
    s_cbranch_scc1 {lab}_nf
    """)
    set_flag(a,'s46')
    a(f"""
{lab}_nf:
    s_add_u32 s43, s43, 262144
    s_add_u32 s44, s44, 131072
    s_add_u32 s45, s45, 128
    s_add_u32 s46, s46, 128
    s_add_u32 s47, s47, 1
    s_cmp_lt_u32 s47, 64
    s_cbranch_scc1 {lab}_loop
    """)
```

```python
from common import *
import roles
from roles import wait_flags, set_flag, flagval, tr_addr32, pack_tile, causal_masks, SPIN_DEFAULT

def poll_issue(a, n, soff, va, vb):
    a(f"""
    v_mbcnt_lo_u32_b32 v{va}, -1, 0
    v_mbcnt_hi_u32_b32 v{va}, -1, v{va}
    v_min_u32 v{va}, {n-1}, v{va}
    v_lshlrev_b32 v{va}, 2, v{va}
    buffer_load_dword v{vb}, v{va}, s[8:11], {soff} offen sc1
    """)

def emit_F(a, cfg, typ, fail):
    spin=cfg.get('spin',SPIN_DEFAULT)
    lab=a.new('F'+typ)
    npart={'T0':0,'T1':1,'T2':2,'T3':2}[typ]
    nfl={'T0':0,'T1':8,'T2':64,'T3':64}[typ]
    flstep={'T0':0,'T1':128,'T2':256,'T3':256}[typ]
    a(f"""
    v_and_b32 v1, 15, v0
    v_bfe_u32 v2, v0, 4, 1
    v_lshrrev_b32 v3, 5, v0
    v_lshlrev_b32 v4, 4, v1
    v_lshl_add_u32 v4, v2, 9, v4
    v_lshl_add_u32 v4, v3, 10, v4
    s_lshl_b32 s12, s6, 13
    s_lshl_b32 s13, s5, 8
    s_add_u32 s12, s12, s13
    v_add_u32 v4, s12, v4
    s_lshl_b32 s13, s5, 4
    v_add_u32 v5, s13, v1
    v_lshlrev_b32 v5, 10, v5
    v_lshl_add_u32 v5, v3, 5, v5
    v_lshl_add_u32 v5, v2, 4, v5
    s_lshl_b32 s13, s6, 8
    v_add_u32 v5, s13, v5
    v_lshlrev_b32 v6, 3, v1
    s_lshl_b32 s13, s6, 7
    v_add_u32 v7, s13, v6
    """)
    if typ=='T0':
        a(f"""
        s_load_dwordx2 s[16:17], s[0:1], 0
        s_waitcnt lgkmcnt(0)
        s_mov_b32 s18, {2048*1024}
        s_mov_b32 s19, 0x20000
        s_mov_b32 s20, 0
        s_mov_b32 s22, {xs(T_X0,0)}
        s_mov_b32 s23, {xs(T_XNA1,0)}
        s_mov_b32 s24, {WS_FLAG+FL_XN+0*64*128}
        """)
    elif typ=='T1':
        a(f"""
        s_mul_i32 s13, s4, {6*64*32768}
        s_add_u32 s20, s13, {xs(T_X0,0)}
        s_add_u32 s21, s13, {xs(T_YA1,0)}
        s_add_u32 s22, s13, {xs(T_X1,0)}
        s_add_u32 s23, s13, {xs(T_XNB1,0)}
        s_lshl_b32 s13, s4, 14
        s_add_u32 s24, s13, {WS_FLAG+FL_XN+1*64*128}
        s_lshl_b32 s13, s4, 13
        s_add_u32 s25, s13, {WS_FLAG+FL_YA}
        """)
    elif typ=='T2':
        a(f"""
        s_mov_b32 s20, {xs(T_X1,0)}
        s_mov_b32 s21, {WS_PO}
        s_mov_b32 s22, {xs(T_X2,0)}
        s_mov_b32 s23, {xs(T_XNA2,0)}
        s_mov_b32 s24, {WS_FLAG+FL_XN+2*64*128}
        s_mov_b32 s25, {WS_FLAG+FL_PO}
        """)
    else:
        a(f"""
        s_load_dwordx2 s[16:17], s[0:1], 80
        s_waitcnt lgkmcnt(0)
        s_mov_b32 s18, {2048*1024}
        s_mov_b32 s19, 0x20000
        s_mov_b32 s20, {xs(T_X3,0)}
        s_mov_b32 s21, {WS_PO+64*131072}
        s_mov_b32 s22, 0
        s_mov_b32 s25, {WS_FLAG+FL_PO+64*256}
        """)
    a(f"""
    s_lshl_b32 s13, s5, 4
    s_lshl_b32 s14, s6, 2
    s_add_u32 s13, s13, s14
    {'s_add_u32 s24, s24, s13' if typ!='T3' else ''}
    s_mov_b32 s26, 0
    v_mov_b32 v8, 0x3f803f80
    s_mov_b32 s27, 0xffff0000
    s_mov_b32 s30, 0
    s_mov_b32 s31, 0
    """)
    SETS=[(16,32,48),(192,208,224)]
    W=64
    NL={'T0':4,'T1':8,'T2':12,'T3':12}[typ]
    NS={'T0':8,'T1':8,'T2':8,'T3':4}[typ]
    def loads(st):
        X,P0,P1=SETS[st]
        if typ=='T0':
            for j in range(4): a(f"buffer_load_dwordx4 v[{X+4*j}:{X+4*j+3}], v5, s[16:19], s20 offen offset:{64*j}")
            a("s_add_u32 s20, s20, 32768")
        else:
            a("s_add_u32 s13, s20, 4096\ns_add_u32 s14, s21, 4096")
            if npart==2: a("s_add_u32 s28, s21, 32768\ns_add_u32 s29, s28, 4096")
            for j in range(4):
                so=lambda b,b2: (b if j<2 else b2)
                a(f"buffer_load_dwordx4 v[{P0+4*j}:{P0+4*j+3}], v4, s[8:11], {so('s21','s14')} offen offset:{2048*(j&1)} sc1")
                if npart==2: a(f"buffer_load_dwordx4 v[{P1+4*j}:{P1+4*j+3}], v4, s[8:11], {so('s28','s29')} offen offset:{2048*(j&1)} sc1")
                a(f"buffer_load_dwordx4 v[{X+4*j}:{X+4*j+3}], v4, s[8:11], {so('s20','s13')} offen offset:{2048*(j&1)} sc1")
            a(f"s_add_u32 s20, s20, 32768\ns_add_u32 s21, s21, {32768 if typ=='T1' else 131072}\ns_add_u32 s25, s25, {flstep}")
    def flag_prev():
        if typ=='T3': return
        set_flag(a,'s24')
        a("s_add_u32 s24, s24, 128")
    if nfl: wait_flags(a,lab+'w0',nfl,'s25',fail,spin)
    loads(0)
    def iteration(st):
        X,P0,P1=SETS[st]; L=f"{lab}_i{st}"
        a.label(L)
        if nfl: poll_issue(a,nfl,'s25',10,9)
        np_=1 if nfl else 0
        a(f"""
        s_cmp_eq_u32 s31, 0
        s_cbranch_scc1 {L}_w1
        s_waitcnt vmcnt({NS+np_})
        s_branch {L}_w2
{L}_w1:
        s_waitcnt vmcnt({np_})
{L}_w2:
        """)
        if typ=='T0':
            for j in range(4):
                a(f"v_permlane16_swap_b32 v{X+4*j}, v{X+4*j+2}\nv_permlane16_swap_b32 v{X+4*j+1}, v{X+4*j+3}")
        else:
            for r in range(16):
                w0=W+2*r
                if npart==2:
                    a(f"""
                    v_lshlrev_b32 v{w0}, 16, v{P0+r}
                    v_and_b32 v{w0+1}, s27, v{P0+r}
                    v_lshlrev_b32 v12, 16, v{P1+r}
                    v_and_b32 v13, s27, v{P1+r}
                    v_pk_add_f32 v[{w0}:{w0+1}], v[{w0}:{w0+1}], v[12:13]
                    v_cvt_pk_bf16_f32 v{P0+r}, v{w0}, v{w0+1}
                    """)
                a(f"""
                v_lshlrev_b32 v{w0}, 16, v{P0+r}
                v_and_b32 v{w0+1}, s27, v{P0+r}
                v_lshlrev_b32 v12, 16, v{X+r}
                v_and_b32 v13, s27, v{X+r}
                v_pk_add_f32 v[{w0}:{w0+1}], v[{w0}:{w0+1}], v[12:13]
                v_cvt_pk_bf16_f32 v{X+r}, v{w0}, v{w0+1}
                """)
        a(f"""
        s_waitcnt vmcnt(0)
        s_cmp_eq_u32 s30, 0
        s_cbranch_scc1 {L}_nf
        """)
        flag_prev()
        a(f"""
        s_mov_b32 s30, 0
{L}_nf:
        s_mov_b32 s31, 0
        s_cmp_ge_u32 s26, 63
        s_cbranch_scc1 {L}_np
        """)
        if nfl:
            a(f"v_cmp_eq_u32 vcc, 0, v9\ns_cbranch_vccnz {L}_np")
        a("s_mov_b32 s31, 1")
        loads(1-st)
        a.label(L+'_np')
        if typ=='T3':
            for j in range(4):
                a(f"v_permlane16_swap_b32 v{X+4*j}, v{X+4*j+2}\nv_permlane16_swap_b32 v{X+4*j+1}, v{X+4*j+3}")
            for j in range(4): a(f"buffer_store_dwordx4 v[{X+4*j}:{X+4*j+3}], v5, s[16:19], s22 offen offset:{64*j}")
            a("s_add_u32 s22, s22, 32768")
        else:
            a("s_add_u32 s13, s22, 4096")
            for j in range(4):
                a(f"buffer_store_dwordx4 v[{X+4*j}:{X+4*j+3}], v4, s[8:11], {'s22' if j<2 else 's13'} offen offset:{2048*(j&1)} sc1")
            a("v_mov_b32 v12, 0\nv_mov_b32 v13, 0\nv_mov_b32 v14, 0\nv_mov_b32 v15, 0")
            for r in range(0,16,2):
                a(f"v_dot2_f32_bf16 v12, v{X+r}, v8, v12\nv_dot2_f32_bf16 v13, v{X+r}, v{X+r}, v13\nv_dot2_f32_bf16 v14, v{X+r+1}, v8, v14\nv_dot2_f32_bf16 v15, v{X+r+1}, v{X+r+1}, v15")
            a(f"""
            v_pk_add_f32 v[12:13], v[12:13], v[14:15]
            v_mov_b32 v10, v12
            v_mov_b32 v11, v13
            v_permlane16_swap_b32 v12, v10
            v_permlane16_swap_b32 v13, v11
            v_pk_add_f32 v[12:13], v[12:13], v[10:11]
            v_mov_b32 v10, v12
            v_mov_b32 v11, v13
            v_permlane32_swap_b32 v12, v10
            v_permlane32_swap_b32 v13, v11
            v_pk_add_f32 v[12:13], v[12:13], v[10:11]
            s_mov_b64 exec, 0xffff
            ds_write_b64 v7, v[12:13] offset:{512*st}
            s_mov_b64 exec, -1
            s_waitcnt lgkmcnt(0)
            s_barrier
            ds_read_b64 v[10:11], v6 offset:{512*st}
            ds_read_b64 v[12:13], v6 offset:{512*st+128}
            ds_read_b64 v[14:15], v6 offset:{512*st+256}
            ds_read_b64 v[{W}:{W+1}], v6 offset:{512*st+384}
            s_waitcnt lgkmcnt(0)
            v_pk_add_f32 v[10:11], v[10:11], v[12:13]
            v_pk_add_f32 v[14:15], v[14:15], v[{W}:{W+1}]
            v_pk_add_f32 v[10:11], v[10:11], v[14:15]
            v_mul_f32 v10, 0x3b000000, v10
            v_mul_f32 v11, 0x3b000000, v11
            v_fma_f32 v11, -v10, v10, v11
            v_max_f32 v11, 0, v11
            v_cvt_pk_bf16_f32 v14, v10, v11
            v_lshlrev_b32 v12, 16, v14
            v_and_b32 v11, s27, v14
            v_add_f32 v11, 0x3727c5ac, v11
            v_cvt_pk_bf16_f32 v11, v11, v11
            v_and_b32 v11, s27, v11
            v_sqrt_f32 v11, v11
            v_mov_b32 v13, v12
            v_cvt_pk_bf16_f32 v11, v11, v11
            v_and_b32 v11, s27, v11
            v_rcp_f32 v14, v11
            s_nop 0
            v_mov_b32 v15, v14
            """)
            for r in range(16):
                w0=W+2*r
                a(f"""
                v_lshlrev_b32 v{w0}, 16, v{X+r}
                v_and_b32 v{w0+1}, s27, v{X+r}
                v_pk_add_f32 v[{w0}:{w0+1}], v[{w0}:{w0+1}], v[12:13] neg_lo:[0,1] neg_hi:[0,1]
                v_cvt_pk_bf16_f32 v{P0+r}, v{w0}, v{w0+1}
                v_lshlrev_b32 v{w0}, 16, v{P0+r}
                v_and_b32 v{w0+1}, s27, v{P0+r}
                v_pk_mul_f32 v[{w0}:{w0+1}], v[{w0}:{w0+1}], v[14:15]
                v_cvt_pk_bf16_f32 v{P0+r}, v{w0}, v{w0+1}
                """)
            a("s_add_u32 s13, s23, 4096")
            for j in range(4):
                a(f"buffer_store_dwordx4 v[{P0+4*j}:{P0+4*j+3}], v4, s[8:11], {'s23' if j<2 else 's13'} offen offset:{2048*(j&1)} sc1")
            a("s_add_u32 s22, s22, 32768\ns_add_u32 s23, s23, 32768")
        a(f"""
        s_mov_b32 s30, 1
        s_add_u32 s26, s26, 1
        s_cmp_eq_u32 s31, 1
        s_cbranch_scc1 {lab}_i{1-st}
        s_waitcnt vmcnt(0)
        """)
        flag_prev()
        a(f"""
        s_mov_b32 s30, 0
        s_cmp_ge_u32 s26, 64
        s_cbranch_scc1 {lab}_done
        """)
        if nfl: wait_flags(a,L+'ws',nfl,'s25',fail,spin)
        loads(1-st)
        if st==1: a(f"s_branch {lab}_i0")
    iteration(0); iteration(1)
    a.label(lab+'_done')

def emit_AWO(a, cfg, fail):
    spin=cfg.get('spin',SPIN_DEFAULT)
    lab=a.new('AWO')
    a("""
    s_load_dwordx2 s[12:13], s[0:1], 16      ; A_wo
    s_waitcnt lgkmcnt(0)
    s_mov_b32 s14, 524288
    s_mov_b32 s15, 0x20000
    v_lshrrev_b32 v61, 5, v0
    v_and_b32 v60, 31, v0
    s_lshl_b32 s32, s5, 9
    """)
    for var in range(2):
        a(f"""
        v_add_u32 v62, {2*var}, v61
        v_lshlrev_b32 v62, 2, v62
        v_xor_b32 v62, v60, v62
        v_lshlrev_b32 v62, 4, v62
        v_lshl_add_u32 v62, v61, 10, v62
        v_add_u32 v{40+var}, s32, v62
        """)
    a("s_lshl_b32 s32, s6, 3")
    tr_addr32(a,44,'s32',512,lambda r,o: a(f"v_lshlrev_b32 v{o}, 2, v{r}"),0)
    a("v_xor_b32 v45, 64, v44\nv_add_u32 v46, 0x10000, v44\nv_add_u32 v47, 0x10000, v45")
    def wreg(T,ks,p):
        b=(T*32+ks)*4+2*p; return f"a[{b}:{b+1}]"
    for rnd in range(2):
        a(f"s_lshl_b32 s33, s6, 16\ns_add_u32 s33, s33, {rnd*256*1024}\ns_lshl_b32 s34, s6, 15")
        for n in range(32):
            a(f"s_add_u32 m0, s34, {2*n*512}\ns_add_u32 s35, s33, {2*n*1024}\nbuffer_load_dwordx4 v{40+(n&1)}, s[12:15], s35 offen lds")
        a("s_waitcnt vmcnt(0)\ns_barrier")
        for ksl in range(16):
            ks=16*rnd+ksl
            for T in range(2):
                for p in range(2):
                    off=(ksl&7)*16*512+p*8*512
                    a(f"ds_read_b64_tr_b16 {wreg(T,ks,p)}, v{44+T+(2 if ksl>=8 else 0)} offset:{off}")
            if ksl%2==1: a("s_waitcnt lgkmcnt(4)")
        a("s_waitcnt lgkmcnt(0)\ns_barrier")
    a(f"""
    v_lshlrev_b32 v1, 4, v0
    s_lshl_b32 s32, s6, 13
    v_add_u32 v2, s32, v1
    s_lshl_b32 s32, s5, 14
    s_lshl_b32 s33, s6, 12
    s_add_u32 s32, s32, s33
    v_add_u32 v3, s32, v1
    s_mul_i32 s32, s4, {6*64*32768}
    s_add_u32 s43, s32, {xs(T_OA1,0)}
    s_add_u32 s44, s32, {xs(T_YA1,0)}
    s_lshl_b32 s32, s4, 13
    s_add_u32 s45, s32, {WS_FLAG+FL_OA}
    s_lshl_b32 s33, s5, 4
    s_lshl_b32 s34, s6, 2
    s_add_u32 s33, s33, s34
    s_add_u32 s46, s32, {WS_FLAG+FL_YA}
    s_add_u32 s46, s46, s33
    s_mov_b32 s40, 0
    s_mov_b32 s42, 0
    s_mov_b32 s47, 0
    """)
    def dma(bufreg):
        out=[]
        for n in range(8):
            out.append(f"s_lshl_b32 s32, s6, 13\ns_add_u32 s32, s32, {bufreg}\ns_add_u32 m0, s32, {(n>>2)*4096}\ns_add_u32 s33, s43, {(n>>2)*4096}\nbuffer_load_dwordx4 v2, s[8:11], s33 offen offset:{(n&3)*1024} sc1 lds")
        return out
    wait_flags(a,lab+'w0',32,'s45',fail,spin)
    for d in dma('s42'): a(d)
    a("s_add_u32 s43, s43, 32768\ns_add_u32 s45, s45, 128\ns_waitcnt vmcnt(0)\ns_barrier")
    a.label(lab+'_unit')
    a("v_add_u32 v5, s42, v1\ns_xor_b32 s50, s42, 32768")
    poll_issue(a,32,'s45',10,9)
    XR=64; NR=8; AHEAD=6
    def rd(i): a(f"ds_read_b128 v[{XR+4*(i%NR)}:{XR+4*(i%NR)+3}], v5 offset:{i*1024}")
    for i in range(AHEAD): rd(i)
    dl=dma('s50')
    for ks in range(32):
        r=XR+4*(ks%NR)
        a(f"s_waitcnt lgkmcnt({min(AHEAD-1,31-ks)})")
        for T in range(2):
            acc=32+16*T; c='0' if ks==0 else f"v[{acc}:{acc+15}]"
            b=(T*32+ks)*4
            a(f"v_mfma_f32_32x32x16_bf16 v[{acc}:{acc+15}], a[{b}:{b+3}], v[{r}:{r+3}], {c}")
        if ks+AHEAD<32: rd(ks+AHEAD)
        if ks==12:
            a(f"""
            s_waitcnt vmcnt(0)
            s_cmp_eq_u32 s47, 0
            s_cbranch_scc1 {lab}_nf
            """)
            set_flag(a,'s46',vtmp=(11,12))
            a(f"""
            s_add_u32 s46, s46, 128
            s_mov_b32 s47, 0
{lab}_nf:
            s_mov_b32 s48, 0
            s_cmp_ge_u32 s40, 63
            s_cselect_b32 s49, 1, 0
            v_cmp_eq_u32 vcc, 0, v9
            s_cmp_eq_u64 vcc, 0
            s_cselect_b32 s48, 1, 0
            s_cmp_eq_u32 s49, 1
            s_cselect_b32 s48, 0, s48
            """)
        if 13<=ks<21:
            L=a.new(lab+'d')
            a(f"s_cmp_eq_u32 s48, 0\ns_cbranch_scc1 {L}")
            a(dl[ks-13])
            a.label(L)
    for T in range(2): pack_tile(a,32+16*T,96+8*T)
    for f in range(4):
        a(f"buffer_store_dwordx4 v[{96+4*f}:{99+4*f}], v3, s[8:11], s44 offen offset:{f*1024} sc1")
    a(f"""
    s_add_u32 s44, s44, 32768
    s_add_u32 s40, s40, 1
    s_mov_b32 s47, 1
    s_mov_b32 s42, s50
    s_cmp_eq_u32 s48, 0
    s_cbranch_scc1 {lab}_slow
    s_add_u32 s43, s43, 32768
    s_add_u32 s45, s45, 128
    s_waitcnt vmcnt(4)
    s_barrier
    s_branch {lab}_unit
{lab}_slow:
    s_waitcnt vmcnt(0)
    """)
    set_flag(a,'s46',vtmp=(11,12))
    a(f"""
    s_add_u32 s46, s46, 128
    s_mov_b32 s47, 0
    s_cmp_ge_u32 s40, 64
    s_cbranch_scc1 {lab}_done
    """)
    wait_flags(a,lab+'ws',32,'s45',fail,spin)
    for d in dma('s42'): a(d)
    a(f"""
    s_add_u32 s43, s43, 32768
    s_add_u32 s45, s45, 128
    s_waitcnt vmcnt(0)
    s_barrier
    s_branch {lab}_unit
{lab}_done:
    """)

def emit_O(a, cfg, fail):
    spin=cfg.get('spin',SPIN_DEFAULT)
    lab=a.new('O')
    a(f"""
    s_load_dwordx2 s[12:13], s[0:1], 64
    s_waitcnt lgkmcnt(0)
    s_mov_b32 s14, 4194304
    s_mov_b32 s15, 0x20000
    s_lshr_b32 s40, s5, 3                    ; kh
    s_and_b32 s41, s5, 7                     ; nq
    v_lshrrev_b32 v61, 3, v0
    v_and_b32 v60, 7, v0
    v_bfe_u32 v62, v61, 1, 1
    v_lshlrev_b32 v62, 2, v62
    v_xor_b32 v62, v60, v62
    v_lshlrev_b32 v62, 4, v62
    v_lshl_add_u32 v62, v61, 10, v62
    s_lshl_b32 s32, s41, 7
    v_add_u32 v40, s32, v62
    s_mov_b32 s32, 0
    """)
    def swz(r,o): a(f"v_lshrrev_b32 v{o}, 1, v{r}\nv_lshlrev_b32 v{o}, 2, v{o}")
    tr_addr32(a,44,'s32',128,swz,0)
    a("s_lshl_b32 s34, s6, 15\nv_add_u32 v44, s34, v44\nv_xor_b32 v45, 64, v44")
    for rnd in range(2):
        a(f"s_lshl_b32 s33, s40, 21\ns_lshl_b32 s35, s6, 19\ns_add_u32 s33, s33, s35\ns_add_u32 s33, s33, {rnd*256*1024}")
        for n in range(32):
            a(f"s_add_u32 m0, s34, {8*n*128}\ns_add_u32 s35, s33, {8*n*1024}\nbuffer_load_dwordx4 v40, s[12:15], s35 offen lds")
        a("s_waitcnt vmcnt(0)")
        for ksl in range(16):
            ks=16*rnd+ksl
            for T in range(2):
                for p in range(2):
                    b=(T*32+ks)*4+2*p
                    a(f"ds_read_b64_tr_b16 a[{b}:{b+1}], v{44+T} offset:{ksl*2048+p*1024}")
            if ksl%2==1: a("s_waitcnt lgkmcnt(4)")
        a("s_waitcnt lgkmcnt(0)")
    a(f"""
    s_barrier
    v_lshlrev_b32 v1, 4, v0
    s_lshl_b32 s32, s4, 24
    s_lshl_b32 s33, s40, 17
    s_lshl_b32 s34, s6, 15
    s_add_u32 s43, s32, s33
    s_add_u32 s43, s43, s34
    s_add_u32 s43, s43, {WS_OB}
    s_lshl_b32 s32, s4, 23
    s_lshl_b32 s33, s40, 15
    s_lshl_b32 s34, s41, 12
    s_add_u32 s44, s32, s33
    s_add_u32 s44, s44, s34
    s_lshl_b32 s34, s6, 10
    s_add_u32 s44, s44, s34
    s_add_u32 s44, s44, {WS_PO}
    s_lshl_b32 s32, s4, 13
    s_lshl_b32 s33, s40, 6
    s_lshl_b32 s34, s6, 4
    s_add_u32 s45, s32, s33
    s_add_u32 s45, s45, s34
    s_add_u32 s45, s45, {WS_FLAG+FL_OB}
    s_lshl_b32 s32, s4, 14
    s_lshl_b32 s33, s5, 4
    s_lshl_b32 s34, s6, 2
    s_add_u32 s46, s32, s33
    s_add_u32 s46, s46, s34
    s_add_u32 s46, s46, {WS_FLAG+FL_PO}
    s_lshl_b32 s32, s6, 13
    v_add_u32 v2, s32, v1
    s_lshl_b32 s32, s6, 11
    v_add_u32 v3, s32, v1
    s_mov_b32 s47, 0                          ; unit
    s_mov_b32 s48, 0
    s_mov_b32 s51, 0
    """)
    XB=64
    def ld(ks):
        return f"s_add_u32 s32, s43, {(ks>>2)*4096}\nbuffer_load_dwordx4 v[{XB+4*ks}:{XB+4*ks+3}], v1, s[8:11], s32 offen offset:{(ks&3)*1024} sc1"
    wait_flags(a,lab+'w0',4,'s45',fail,spin)
    for ks in range(32): a(ld(ks))
    a("s_add_u32 s43, s43, 262144\ns_add_u32 s45, s45, 128\ns_mov_b32 s49, 0")
    a.label(lab+'_unit')
    poll_issue(a,4,'s45',10,9)
    a(f"""
    s_cmp_eq_u32 s49, 0
    s_cbranch_scc1 {lab}_a0
    s_waitcnt vmcnt(33)
    s_branch {lab}_a1
{lab}_a0:
    s_waitcnt vmcnt(32)
{lab}_a1:
    """)
    def mf(ks):
        for T in range(2):
            acc=32+16*T; c='0' if ks==0 else f"v[{acc}:{acc+15}]"; b=(T*32+ks)*4
            a(f"v_mfma_f32_32x32x16_bf16 v[{acc}:{acc+15}], a[{b}:{b+3}], v[{XB+4*ks}:{XB+4*ks+3}], {c}")
    H=8
    for ks in range(H):
        L=a.new(lab+'h')
        a(f"s_cmp_eq_u32 s49, 0\ns_cbranch_scc1 {L}_0\ns_waitcnt vmcnt({33-ks})\ns_branch {L}_1\n{L}_0:\ns_waitcnt vmcnt({32-ks})\n{L}_1:")
        mf(ks)
    a(f"""
    s_waitcnt vmcnt(0)
    s_cmp_eq_u32 s48, 0
    s_cbranch_scc1 {lab}_nf
    """)
    set_flag(a,'s46',vtmp=(11,12))
    a(f"""
    s_add_u32 s46, s46, 256
    s_mov_b32 s48, 0
{lab}_nf:
    s_cmp_ge_u32 s47, 63
    s_cbranch_scc1 {lab}_nostream
    v_cmp_eq_u32 vcc, 0, v9
    s_cbranch_vccnz {lab}_nostream
    s_mov_b32 s49, 1
    """)
    for ks in range(H): a(ld(ks))
    for ks in range(H,32):
        mf(ks); a(ld(ks))
    a(f"""
    s_add_u32 s43, s43, 262144
    s_add_u32 s45, s45, 128
    s_branch {lab}_red
{lab}_nostream:
    s_mov_b32 s49, 0
    """)
    for ks in range(H,32): mf(ks)
    a.label(lab+'_red')
    a("v_add_u32 v4, s51, v2\nv_add_u32 v5, s51, v3")
    for q in range(8): a(f"ds_write_b128 v4, v[{32+4*q}:{35+4*q}] offset:{q*1024}")
    a("s_waitcnt lgkmcnt(0)\ns_barrier")
    R=192
    for w in range(4):
        for q in range(2): a(f"ds_read_b128 v[{R+8*w+4*q}:{R+3+8*w+4*q}], v5 offset:{w*8192+q*1024}")
    a("s_xor_b32 s51, s51, 32768\ns_waitcnt lgkmcnt(0)")
    for r in range(0,8,2):
        a(f"v_pk_add_f32 v[{R+r}:{R+1+r}], v[{R+r}:{R+1+r}], v[{R+8+r}:{R+9+r}]\nv_pk_add_f32 v[{R+16+r}:{R+17+r}], v[{R+16+r}:{R+17+r}], v[{R+24+r}:{R+25+r}]")
    for r in range(0,8,2):
        a(f"v_pk_add_f32 v[{R+r}:{R+1+r}], v[{R+r}:{R+1+r}], v[{R+16+r}:{R+17+r}]")
    for i in range(4): a(f"v_cvt_pk_bf16_f32 v{12+i}, v{R+2*i}, v{R+1+2*i}")
    a(f"""
    buffer_store_dwordx4 v[12:15], v1, s[8:11], s44 offen sc1
    s_add_u32 s44, s44, 131072
    s_add_u32 s47, s47, 1
    s_mov_b32 s48, 1
    s_cmp_eq_u32 s49, 1
    s_cbranch_scc1 {lab}_unit
    s_waitcnt vmcnt(0)
    """)
    set_flag(a,'s46',vtmp=(10,11))
    a(f"""
    s_add_u32 s46, s46, 256
    s_mov_b32 s48, 0
    s_cmp_ge_u32 s47, 64
    s_cbranch_scc1 {lab}_done
    """)
    wait_flags(a,lab+'ws',4,'s45',fail,spin)
    for ks in range(32): a(ld(ks))
    a(f"""
    s_add_u32 s43, s43, 262144
    s_add_u32 s45, s45, 128
    s_branch {lab}_unit
{lab}_done:
    """)

def emit_ATT(a, cfg, fail):
    spin=cfg.get('spin',SPIN_DEFAULT)
    lab=a.new('ATT')
    a(f"""
    s_lshl_b32 s40, s5, 2
    s_add_u32 s40, s40, s6                   ; head
    s_lshl_b32 s32, s4, 11
    s_add_u32 s32, s32, s40                  ; (l*64)*32 + h
    s_mul_i32 s43, s32, {QKV_BLK}
    s_lshl_b32 s44, s32, 12
    s_add_u32 s44, s44, {WS_KM}
    s_lshl_b32 s45, s32, 4
    s_add_u32 s45, s45, {WS_FLAG+FL_CH}
    s_lshl_b32 s49, s32, 5
    s_add_u32 s49, s49, {WS_FLAG+FL_P}
    s_lshl_b32 s33, s4, 13
    s_lshl_b32 s34, s40, 2
    s_add_u32 s46, s33, s34
    s_add_u32 s46, s46, {WS_FLAG+FL_OB}
    s_lshl_b32 s33, s4, 24
    s_lshl_b32 s34, s40, 13
    s_add_u32 s47, s33, s34
    s_add_u32 s47, s47, {WS_OB}
    s_lshl_b32 s42, s6, 12
    v_lshlrev_b32 v1, 4, v0
    v_lshrrev_b32 v60, 5, v0
    v_and_b32 v61, 7, v0
    v_lshlrev_b32 v2, 4, v61
    v_lshl_add_u32 v2, v60, 7, v2
    v_add_u32 v2, s42, v2
    v_and_b32 v61, 31, v0
    v_lshlrev_b32 v3, 4, v61
    v_lshl_add_u32 v3, v60, 3, v3
    v_add_u32 v3, s42, v3
    v_mov_b32 v7, 0xff7fffff
    v_mov_b32 v12, 0x3f803f80
    v_mov_b32 v13, 0x3f803f80
    v_mov_b32 v14, 0x3f803f80
    v_mov_b32 v15, 0x3f803f80
    s_mov_b32 s48, 0x3e0293ee
    s_mov_b32 s50, 0x3e0293ee
    s_mov_b32 s51, 0x3e0293ee
    s_mov_b32 s41, 0                          ; unit
    s_mov_b32 s52, 0
    """)
    causal_masks(a,64)
    def qkv_loads(st):
        B=96*st; out=[]
        for blk,reg in ((1,B+32),(0,B),(2,B+64)):
            for g in range(2):
                for j in range(4):
                    r=reg+4*(4*g+j)
                    pre=f"s_add_u32 s32, s43, {blk*8192+g*4096}\n" if j==0 else ""
                    out.append(pre+f"buffer_load_dwordx4 a[{r}:{r+3}], v1, s[8:11], s32 offen offset:{j*1024} sc1")
        return out
    def adv_fetch(): a(f"s_add_u32 s43, s43, {32*QKV_BLK}\ns_add_u32 s49, s49, 1024")
    wait_flags(a,lab+'w0',8,'s49',fail,spin)
    for x in qkv_loads(0): a(x)
    adv_fetch()
    def polls():
        poll_issue(a,4,'s45',10,30)
        poll_issue(a,8,'s49',11,31)
    polls()
    def iteration(st):
        L=f"{lab}_i{st}"; B=96*st; Q=B; K=B+32; V=B+64
        KM=160; VM=192
        a.label(L)
        a(f"""
        s_cmp_eq_u32 s52, 0
        s_cbranch_scc1 {L}_w0
        s_waitcnt vmcnt(8)
        s_branch {L}_w1
{L}_w0:
        s_waitcnt vmcnt(0)
{L}_w1:
        s_mov_b32 s53, 0
        s_cmp_ge_u32 s41, 63
        s_cbranch_scc1 {L}_p0
        v_cmp_eq_u32 vcc, 0, v31
        s_cbranch_vccnz {L}_p0
        s_mov_b32 s53, 1
{L}_p0:
        v_cmp_eq_u32 vcc, 0, v30
        s_cbranch_vccz {L}_chok
        s_waitcnt vmcnt(0)
        s_cmp_eq_u32 s52, 0
        s_cbranch_scc1 {L}_nf0
        """)
        set_flag(a,'s46',vtmp=(10,11))
        a(f"s_add_u32 s46, s46, 128\ns_mov_b32 s52, 0\n{L}_nf0:")
        wait_flags(a,L+'wc',4,'s45',fail,spin)
        a(f"s_cmp_eq_u32 s53, 1\ns_cbranch_scc1 {L}_chok\ns_cmp_ge_u32 s41, 63\ns_cbranch_scc1 {L}_chok")
        poll_issue(a,8,'s49',11,31)
        a(f"s_waitcnt vmcnt(0)\nv_cmp_eq_u32 vcc, 0, v31\ns_cbranch_vccnz {L}_chok\ns_mov_b32 s53, 1")
        a.label(L+'_chok')
        a("s_mov_b32 m0, s42")
        for j in range(4): a(f"buffer_load_dwordx4 v1, s[8:11], s44 offen offset:{j*1024} sc1 lds")
        nl=qkv_loads(1-st)
        for variant in (1,0):
            VL=f"{L}_v{variant}"
            if variant==1: a(f"s_cmp_eq_u32 s53, 0\ns_cbranch_scc1 {L}_v0")
            else: a.label(VL)
            q=list(nl) if variant else []
            issued=[0]
            def side(n=1):
                for _ in range(n):
                    if q: a(q.pop(0)); issued[0]+=1
            for ks in range(8):
                c0='0' if ks==0 else 'v[32:47]'
                a(f"v_mfma_f32_32x32x16_bf16 v[32:47], a[{K+4*ks}:{K+4*ks+3}], a[{Q+4*ks}:{Q+4*ks+3}], {c0}")
                if ks%2==1: side()
            for r in range(16): a(f"v_cndmask_b32 v{32+r}, v7, v{32+r}, s[{64+2*r}:{65+2*r}]")
            a("""
            v_max3_f32 v24, v32, v33, v34
            v_max3_f32 v25, v35, v36, v37
            v_max3_f32 v24, v24, v38, v39
            v_max3_f32 v25, v25, v40, v41
            v_max3_f32 v24, v24, v42, v43
            v_max3_f32 v25, v25, v44, v45
            v_max3_f32 v24, v24, v46, v47
            """)
            a(f"s_waitcnt vmcnt({issued[0]})")
            for ks in range(8): a(f"ds_read_b128 v[{KM+4*ks}:{KM+4*ks+3}], v2 offset:{ks*256}")
            for W_ in range(4):
                a(f"ds_read_b64 v[{VM+4*W_}:{VM+4*W_+1}], v3 offset:{2048+W_*512}\nv_mov_b32 v{VM+4*W_+2}, 0\nv_mov_b32 v{VM+4*W_+3}, 0")
            a(f"s_cmp_eq_u32 s52, 0\ns_cbranch_scc1 {VL}_nf")
            set_flag(a,'s46',vtmp=(10,11))
            a(f"s_add_u32 s46, s46, 128\ns_mov_b32 s52, 0\n{VL}_nf:")
            for ks in range(8):
                a(f"s_waitcnt lgkmcnt({11-ks})")
                c1='0' if ks==0 else 'v[48:63]'
                a(f"v_mfma_f32_32x32x16_bf16 v[48:63], v[{KM+4*ks}:{KM+4*ks+3}], a[{Q+4*ks}:{Q+4*ks+3}], {c1}")
                if ks%2==1: side()
            a("""
            v_max3_f32 v25, v25, v48, v49
            v_max3_f32 v24, v24, v50, v51
            v_max_f32 v24, v24, v25
            v_mov_b32 v25, v24
            v_permlane32_swap_b32 v24, v25
            v_max_f32 v24, v24, v25
            v_mul_f32 v24, s48, v24
            v_mov_b32 v25, v24
            """)
            for r in range(0,20,2):
                a(f"v_pk_fma_f32 v[{32+r}:{33+r}], v[{32+r}:{33+r}], s[50:51], v[24:25] neg_lo:[0,0,1] neg_hi:[0,0,1]")
            for r in range(20):
                a(f"v_exp_f32 v{32+r}, v{32+r}")
                if r%5==4: side()
            for i in range(8): a(f"v_cvt_pk_bf16_f32 v{16+i}, v{32+2*i}, v{33+2*i}")
            a("""
            v_cvt_pk_bf16_f32 v8, v48, v49
            v_cvt_pk_bf16_f32 v9, v50, v51
            v_mov_b32 v10, 0
            v_mov_b32 v11, 0
            s_waitcnt lgkmcnt(0)
            v_mfma_f32_32x32x16_bf16 v[32:47], v[12:15], v[16:19], 0
            v_mfma_f32_32x32x16_bf16 v[32:47], v[12:15], v[20:23], v[32:47]
            v_mfma_f32_32x32x16_bf16 v[32:47], v[12:15], v[8:11], v[32:47]
            """)
            OT=[64,80,96,112]
            for W_ in range(4):
                o=OT[W_]
                a(f"v_mfma_f32_32x32x16_bf16 v[{o}:{o+15}], a[{V+8*W_}:{V+8*W_+3}], v[16:19], 0")
                side()
                a(f"v_mfma_f32_32x32x16_bf16 v[{o}:{o+15}], a[{V+8*W_+4}:{V+8*W_+7}], v[20:23], v[{o}:{o+15}]")
                side()
                a(f"v_mfma_f32_32x32x16_bf16 v[{o}:{o+15}], v[{VM+4*W_}:{VM+4*W_+3}], v[8:11], v[{o}:{o+15}]")
                side()
            side(24)
            if variant==1:
                adv_fetch()
                a(f"s_branch {L}_fin")
        a.label(L+'_fin')
        a(f"""
        s_add_u32 s44, s44, {32*4096}
        s_add_u32 s45, s45, 512
        """)
        a("v_rcp_f32 v24, v32\ns_nop 0\nv_mov_b32 v25, v24")
        PK=128
        for W_ in range(4):
            o=OT[W_]
            for r in range(0,16,2): a(f"v_pk_mul_f32 v[{o+r}:{o+r+1}], v[{o+r}:{o+r+1}], v[24:25]")
            for i in range(8): a(f"v_cvt_pk_bf16_f32 v{PK+8*W_+i}, v{o+2*i}, v{o+2*i+1}")
            if W_==0: polls()
        for W_ in range(4):
            if W_==2: a("s_add_u32 s32, s47, 4096")
            for f in range(2):
                fi=2*W_+f
                a(f"buffer_store_dwordx4 v[{PK+4*fi}:{PK+4*fi+3}], v1, s[8:11], {'s47' if fi<4 else 's32'} offen offset:{(fi&3)*1024} sc1")
        a(f"""
        s_add_u32 s47, s47, 262144
        s_add_u32 s41, s41, 1
        s_mov_b32 s52, 1
        s_cmp_eq_u32 s53, 0
        s_cbranch_scc0 {lab}_i{1-st}
        s_waitcnt vmcnt(0)
        """)
        set_flag(a,'s46',vtmp=(10,11))
        a(f"""
        s_add_u32 s46, s46, 128
        s_mov_b32 s52, 0
        s_cmp_ge_u32 s41, 64
        s_cbranch_scc1 {lab}_done
        """)
        wait_flags(a,L+'ws',8,'s49',fail,spin)
        for x in qkv_loads(1-st): a(x)
        adv_fetch()
        polls()
        if st==1: a(f"s_branch {lab}_i0")
    iteration(0); iteration(1)
    a.label(lab+'_done')

def emit_AH(a, cfg, fail):
    spin=cfg.get('spin',SPIN_DEFAULT)
    lab=a.new('AH')
    RDY=98304+64
    a(f"""
    s_load_dwordx2 s[12:13], s[0:1], 8
    s_waitcnt lgkmcnt(0)
    s_mov_b32 s14, {512*3072}
    s_mov_b32 s15, 0x20000
    v_lshrrev_b32 v61, 3, v0
    v_and_b32 v60, 7, v0
    v_bfe_u32 v62, v61, 1, 1
    v_lshlrev_b32 v62, 2, v62
    v_xor_b32 v62, v60, v62
    v_lshrrev_b32 v63, 1, v62
    v_min_u32 v63, 2, v63
    v_and_b32 v62, 1, v62
    v_lshlrev_b32 v62, 4, v62
    v_lshl_add_u32 v62, v63, 10, v62
    v_mul_u32_u24 v63, 3072, v61
    v_add_u32 v62, v62, v63
    s_lshl_b32 s32, s5, 5
    v_add_u32 v40, s32, v62
    """)
    a(f"s_mul_i32 s33, s6, {128*3072}\ns_lshl_b32 s34, s6, 14")
    for n in range(16):
        a(f"s_add_u32 m0, s34, {8*n*128}\ns_add_u32 s35, s33, {8*n*3072}\nbuffer_load_dwordx4 v40, s[12:15], s35 offen lds")
    a("s_waitcnt vmcnt(0)\ns_barrier\ns_mov_b32 s32, 0")
    def swz(r,o): a(f"v_lshrrev_b32 v{o}, 1, v{r}\nv_lshlrev_b32 v{o}, 2, v{o}")
    tr_addr32(a,44,'s32',128,swz,0)
    a("v_xor_b32 v45, 64, v44")
    for ks in range(32):
        for p in range(2):
            off=ks*16*128+p*8*128
            a(f"ds_read_b64_tr_b16 a[{4*ks+2*p}:{4*ks+2*p+1}], v44 offset:{off}")
            a(f"ds_read_b64_tr_b16 a[{128+4*ks+2*p}:{128+4*ks+2*p+1}], v45 offset:{off}")
        if ks%2==1: a("s_waitcnt lgkmcnt(4)")
    a("s_waitcnt lgkmcnt(0)\ns_barrier")
    a(f"""
    v_mov_b32 v1, {RDY}
    v_mov_b32 v2, 0
    s_lshl_b32 s32, s6, 2
    v_add_u32 v3, s32, v1
    s_xor_b32 s33, s32, 4
    v_add_u32 v4, s33, v1
    ds_write_b32 v3, v2
    s_waitcnt lgkmcnt(0)
    s_barrier
    v_lshlrev_b32 v1, 4, v0
    s_lshr_b32 s40, s6, 1                    ; layer
    s_and_b32 s41, s6, 1                     ; unit s
    s_mul_i32 s42, s40, 49152
    s_mul_i32 s32, s40, {6*64*32768}
    s_add_u32 s43, s32, {xs(T_XNA1,0)}
    s_add_u32 s44, s32, {xs(T_OA1,0)}
    s_lshl_b32 s33, s5, 10
    s_add_u32 s44, s44, s33
    s_lshl_b32 s32, s40, 14
    s_add_u32 s45, s32, {WS_FLAG+FL_XN}
    s_lshl_b32 s32, s40, 13
    s_add_u32 s46, s32, {WS_FLAG+FL_OA}
    s_lshl_b32 s33, s5, 2
    s_add_u32 s46, s46, s33
    s_lshl_b32 s32, s41, 15
    s_add_u32 s43, s43, s32
    s_add_u32 s44, s44, s32
    s_lshl_b32 s32, s41, 7
    s_add_u32 s45, s45, s32
    s_add_u32 s46, s46, s32
    v_and_b32 v5, 31, v0
    v_cmp_le_u32 s[62:63], 16, v5
    v_mov_b32 v6, 0x3f803f80
    v_mov_b32 v7, 0xff7fffff
    s_mov_b32 s47, 0x3eb8aa3b
    s_mov_b32 s60, 0x3eb8aa3b
    s_mov_b32 s61, 0x3eb8aa3b
    s_mov_b32 s59, 0
    """)
    causal_masks(a,64)
    XB=64; SB=64
    def xld(ks):
        return f"s_add_u32 s32, s43, {(ks>>2)*4096}\nbuffer_load_dwordx4 v[{XB+4*ks}:{XB+4*ks+3}], v1, s[8:11], s32 offen offset:{(ks&3)*1024} sc1"
    wait_flags(a,lab+'w0',16,'s45',fail,spin)
    for ks in range(32): a(xld(ks))
    a("s_add_u32 s43, s43, 65536\ns_add_u32 s45, s45, 256")
    a.label(lab+'_loop')
    for ks in range(32):
        if ks<4:
            L=a.new(lab+'x')
            a(f"s_cmp_eq_u32 s59, 0\ns_cbranch_scc1 {L}_0\ns_waitcnt vmcnt({32-ks})\ns_branch {L}_1\n{L}_0:\ns_waitcnt vmcnt({31-ks})\n{L}_1:")
        else:
            a(f"s_waitcnt vmcnt({31-ks})")
        c0='0' if ks==0 else 'v[32:47]'; c1='0' if ks==0 else 'v[48:63]'
        a(f"v_mfma_f32_32x32x16_bf16 v[32:47], a[{4*ks}:{4*ks+3}], v[{XB+4*ks}:{XB+4*ks+3}], {c0}")
        a(f"v_mfma_f32_32x32x16_bf16 v[48:63], v[{XB+4*ks}:{XB+4*ks+3}], a[{128+4*ks}:{128+4*ks+3}], {c1}")
    a(f"s_cmp_eq_u32 s59, 0\ns_cbranch_scc1 {lab}_nf")
    set_flag(a,'s46',vtmp=(24,25))
    a(f"s_add_u32 s46, s46, 256\ns_mov_b32 s59, 0\n{lab}_nf:")
    poll_issue(a,16,'s45',24,31)
    for i in range(4): a(f"v_cvt_pk_bf16_f32 v{8+i}, v{32+2*i}, v{33+2*i}")
    for i in range(4): a(f"v_cvt_pk_bf16_f32 v{12+i}, v{40+2*i}, v{41+2*i}")
    for i in range(8): a(f"v_cvt_pk_bf16_f32 v{16+i}, v{48+2*i}, v{49+2*i}")
    for i in range(8): a(f"v_cndmask_b32 v{16+i}, v{16+i}, v6, s[62:63]")
    a(f"""
    s_and_b32 s32, s41, 15
    s_mul_i32 s32, s32, 3072
    s_add_u32 s32, s32, s42
    v_add_u32 v24, s32, v1
    ds_write_b128 v24, v[12:15]
    ds_write_b128 v24, v[16:19] offset:1024
    ds_write_b128 v24, v[20:23] offset:2048
    s_add_u32 s33, s41, 1
    v_mov_b32 v25, s33
    s_waitcnt lgkmcnt(0)
    ds_write_b32 v3, v25
    s_mov_b32 s48, 0
{lab}_pw:
    ds_read_b32 v26, v4
    s_waitcnt lgkmcnt(0)
    v_readfirstlane_b32 s49, v26
    s_cmp_ge_u32 s49, s41
    s_cbranch_scc1 {lab}_pok
    s_add_u32 s48, s48, 1
    s_cmp_gt_u32 s48, {spin*8}
    s_cbranch_scc1 {fail}
    s_sleep 1
    s_branch {lab}_pw
{lab}_pok:
    """)
    for b in range(9):
        a(f"""
        s_add_u32 s32, s41, {b+8}
        s_and_b32 s32, s32, 15
        s_mul_i32 s32, s32, 3072
        s_add_u32 s{50+b}, s32, s42
        """)
    KF=208
    for b in range(8):
        a(f"s_add_u32 s32, s41, {b}\ns_cmp_lt_u32 s32, 8\ns_cselect_b32 s{50+b}, s58, s{50+b}")
    for b in range(9):
        a(f"v_add_u32 v24, s{50+b}, v1\nds_read_b128 v[{KF+4*b}:{KF+4*b+3}], v24")
    for b in range(9):
        a(f"s_waitcnt lgkmcnt({8-b})")
        a(f"v_mfma_f32_32x32x16_bf16 v[{SB+16*b}:{SB+16*b+15}], v[{KF+4*b}:{KF+4*b+3}], v[8:11], 0")
    VF=[208,216,224]
    def vrd(b):
        r=VF[b%3]
        a(f"v_add_u32 v26, s{50+b}, v1\nds_read_b128 v[{r}:{r+3}], v26 offset:1024\nds_read_b128 v[{r+4}:{r+7}], v26 offset:2048")
    a(f"s_cmp_ge_u32 s41, 8\ns_cbranch_scc1 {lab}_allv")
    for b in range(8):
        L=a.new(lab+'iv')
        a(f"s_add_u32 s32, s41, {b}\ns_cmp_ge_u32 s32, 8\ns_cbranch_scc1 {L}")
        for r in range(16): a(f"v_mov_b32 v{SB+16*b+r}, v7")
        a.label(L)
    a.label(lab+'_allv')
    vrd(0); vrd(1)
    for r in range(16): a(f"v_cndmask_b32 v{SB+128+r}, v7, v{SB+128+r}, s[{64+2*r}:{65+2*r}]")
    for r in range(16): a(f"v_cndmask_b32 v{SB+r}, v{SB+r}, v7, s[{64+2*r}:{65+2*r}]")
    a(f"v_max3_f32 v24, v{SB}, v{SB+1}, v{SB+2}\nv_max3_f32 v25, v{SB+3}, v{SB+4}, v{SB+5}")
    i=6
    while i<144:
        a(f"v_max3_f32 v24, v24, v{SB+i}, v{SB+i+1}"); i+=2
        if i<144: a(f"v_max3_f32 v25, v25, v{SB+i}, v{SB+i+1}"); i+=2
    a(f"""
    v_max_f32 v24, v24, v25
    v_mov_b32 v25, v24
    v_permlane32_swap_b32 v24, v25
    v_max_f32 v24, v24, v25
    v_mul_f32 v24, s47, v24
    v_mov_b32 v25, v24
    s_waitcnt vmcnt(0)
    s_mov_b32 s48, 0
    s_cmp_ge_u32 s41, 62
    s_cbranch_scc1 {lab}_np
    v_cmp_eq_u32 vcc, 0, v31
    s_cbranch_vccnz {lab}_np
    s_mov_b32 s48, 1
{lab}_np:
    """)
    for b in range(9):
        base=SB+16*b
        for r in range(16):
            a(f"v_fma_f32 v{base+r}, v{base+r}, s47, -v24")
        for r in range(16): a(f"v_exp_f32 v{base+r}, v{base+r}")
        P=28 if False else None
        pk=240 if b%2==0 else 248-0
        pk=[240,12][b%2]
        for i in range(8): a(f"v_cvt_pk_bf16_f32 v{pk+i}, v{base+2*i}, v{base+2*i+1}")
        r=VF[b%3]
        nread=2 if b+1<9 else 0
        a(f"s_waitcnt lgkmcnt({nread})")
        c='0' if b==0 else 'v[32:47]'
        a(f"v_mfma_f32_32x32x16_bf16 v[32:47], v[{r}:{r+3}], v[{pk}:{pk+3}], {c}")
        a(f"v_mfma_f32_32x32x16_bf16 v[32:47], v[{r+4}:{r+7}], v[{pk+4}:{pk+7}], v[32:47]")
        if b+2<9: vrd(b+2)
        if b<8:
            L=a.new(lab+'s')
            a(f"s_cmp_eq_u32 s48, 0\ns_cbranch_scc1 {L}")
            for ks in range(4*b,4*b+4): a(xld(ks))
            a.label(L)
    a("v_rcp_f32 v24, v40")
    for r in range(8): a(f"v_mul_f32 v{32+r}, v{32+r}, v24")
    for i in range(4): a(f"v_cvt_pk_bf16_f32 v{8+i}, v{32+2*i}, v{33+2*i}")
    a(f"""
    buffer_store_dwordx4 v[8:11], v1, s[8:11], s44 offen sc1
    s_add_u32 s44, s44, 65536
    s_add_u32 s41, s41, 2
    s_mov_b32 s59, 1
    s_cmp_eq_u32 s48, 0
    s_cbranch_scc1 {lab}_slow
    s_add_u32 s43, s43, 65536
    s_add_u32 s45, s45, 256
    s_branch {lab}_loop
{lab}_slow:
    s_waitcnt vmcnt(0)
    """)
    set_flag(a,'s46',vtmp=(24,25))
    a(f"""
    s_add_u32 s46, s46, 256
    s_mov_b32 s59, 0
    s_cmp_ge_u32 s41, 64
    s_cbranch_scc1 {lab}_done
    """)
    wait_flags(a,lab+'ws',16,'s45',fail,spin)
    for ks in range(32): a(xld(ks))
    a(f"""
    s_add_u32 s43, s43, 65536
    s_add_u32 s45, s45, 256
    s_branch {lab}_loop
{lab}_done:
    """)
```

```python
from common import *
import roles
from roles import wait_flags, set_flag, flagval, tr_addr32, pack_tile, causal_masks, SPIN_DEFAULT
from roles2 import poll_issue
NXN=16
NYA=16

def emit_F(a, cfg, typ, fail):
    spin=cfg.get('spin',SPIN_DEFAULT)
    lab=a.new('F'+typ)
    npart={'T0':0,'T1':1,'T2':2,'T3':2}[typ]
    nfl={'T0':0,'T1':NYA,'T2':64,'T3':64}[typ]
    flstep={'T0':0,'T1':128,'T2':256,'T3':256}[typ]
    a(f"""
    v_and_b32 v1, 7, v0
    v_bfe_u32 v2, v0, 3, 1
    v_lshrrev_b32 v3, 4, v0
    v_lshlrev_b32 v4, 4, v1
    v_lshl_add_u32 v4, v2, 9, v4
    v_lshl_add_u32 v4, v3, 10, v4
    s_lshl_b32 s12, s6, 13
    s_lshl_b32 s13, s5, 7
    s_add_u32 s12, s12, s13
    v_add_u32 v4, s12, v4
    s_lshl_b32 s13, s5, 3
    v_add_u32 v5, s13, v1
    v_lshlrev_b32 v5, 10, v5
    v_lshl_add_u32 v5, v3, 5, v5
    v_lshl_add_u32 v5, v2, 4, v5
    s_lshl_b32 s13, s6, 8
    v_add_u32 v5, s13, v5
    v_lshlrev_b32 v6, 3, v1
    s_lshl_b32 s13, s6, 6
    v_add_u32 v7, s13, v6
    """)
    if typ=='T0':
        a(f"""
        s_load_dwordx2 s[16:17], s[0:1], 0
        s_waitcnt lgkmcnt(0)
        s_mov_b32 s18, {2048*1024}
        s_mov_b32 s19, 0x20000
        s_mov_b32 s20, 0
        s_mov_b32 s22, {xs(T_X0,0)}
        s_mov_b32 s23, {xs(T_XNA1,0)}
        s_mov_b32 s24, {WS_FLAG+FL_XN+0*64*128}
        """)
    elif typ=='T1':
        a(f"""
        s_mul_i32 s13, s4, {6*64*32768}
        s_add_u32 s20, s13, {xs(T_X0,0)}
        s_add_u32 s21, s13, {xs(T_YA1,0)}
        s_add_u32 s22, s13, {xs(T_X1,0)}
        s_add_u32 s23, s13, {xs(T_XNB1,0)}
        s_lshl_b32 s13, s4, 14
        s_add_u32 s24, s13, {WS_FLAG+FL_XN+1*64*128}
        s_lshl_b32 s13, s4, 13
        s_add_u32 s25, s13, {WS_FLAG+FL_YA}
        """)
    elif typ=='T2':
        a(f"""
        s_mov_b32 s20, {xs(T_X1,0)}
        s_mov_b32 s21, {WS_PO}
        s_mov_b32 s22, {xs(T_X2,0)}
        s_mov_b32 s23, {xs(T_XNA2,0)}
        s_mov_b32 s24, {WS_FLAG+FL_XN+2*64*128}
        s_mov_b32 s25, {WS_FLAG+FL_PO}
        """)
    else:
        a(f"""
        s_load_dwordx2 s[16:17], s[0:1], 80
        s_waitcnt lgkmcnt(0)
        s_mov_b32 s18, {2048*1024}
        s_mov_b32 s19, 0x20000
        s_mov_b32 s20, {xs(T_X3,0)}
        s_mov_b32 s21, {WS_PO+64*131072}
        s_mov_b32 s22, 0
        s_mov_b32 s25, {WS_FLAG+FL_PO+64*256}
        """)
    a(f"""
    s_lshl_b32 s13, s5, 4
    s_lshl_b32 s14, s6, 2
    s_add_u32 s13, s13, s14
    {'s_add_u32 s24, s24, s13' if typ!='T3' else ''}
    s_mov_b32 s26, 0
    v_mov_b32 v8, 0x3f803f80
    s_mov_b32 s27, 0xffff0000
    s_mov_b32 s30, 0
    s_mov_b32 s31, 0
    """)
    SETS=[(16,24,32),(48,56,64)]
    W=80
    NS={'T0':4,'T1':4,'T2':4,'T3':2}[typ]
    def xchg(X):
        for j in range(2):
            b=X+4*j
            for d in range(2):
                a(f"""
                v_mov_b32 v12, v{b+d}
                s_nop 1
                v_mov_b32_dpp v{b+d}, v{b+2+d} row_shr:8 row_mask:0xf bank_mask:0xc
                v_mov_b32_dpp v{b+2+d}, v12 row_shl:8 row_mask:0xf bank_mask:0x3
                """)
    def loads(st):
        X,P0,P1=SETS[st]
        if typ=='T0':
            for j in range(2): a(f"buffer_load_dwordx4 v[{X+4*j}:{X+4*j+3}], v5, s[16:19], s20 offen offset:{128*j}")
            a("s_add_u32 s20, s20, 32768")
        else:
            a("s_add_u32 s13, s20, 4096\ns_add_u32 s14, s21, 4096")
            if npart==2: a("s_add_u32 s28, s21, 32768\ns_add_u32 s29, s28, 4096")
            for j in range(2):
                a(f"buffer_load_dwordx4 v[{P0+4*j}:{P0+4*j+3}], v4, s[8:11], {'s21' if j==0 else 's14'} offen sc1")
                if npart==2: a(f"buffer_load_dwordx4 v[{P1+4*j}:{P1+4*j+3}], v4, s[8:11], {'s28' if j==0 else 's29'} offen sc1")
                a(f"buffer_load_dwordx4 v[{X+4*j}:{X+4*j+3}], v4, s[8:11], {'s20' if j==0 else 's13'} offen sc1")
            a(f"s_add_u32 s20, s20, 32768\ns_add_u32 s21, s21, {32768 if typ=='T1' else 131072}\ns_add_u32 s25, s25, {flstep}")
    def flag_prev():
        if typ=='T3': return
        set_flag(a,'s24')
        a("s_add_u32 s24, s24, 128")
    if nfl: wait_flags(a,lab+'w0',nfl,'s25',fail,spin)
    loads(0)
    def iteration(st):
        X,P0,P1=SETS[st]; L=f"{lab}_i{st}"
        a.label(L)
        if nfl: poll_issue(a,nfl,'s25',10,9)
        np_=1 if nfl else 0
        a(f"""
        s_cmp_eq_u32 s31, 0
        s_cbranch_scc1 {L}_w1
        s_waitcnt vmcnt({NS+np_})
        s_branch {L}_w2
{L}_w1:
        s_waitcnt vmcnt({np_})
{L}_w2:
        """)
        if typ=='T0': xchg(X)
        else:
            for r in range(8):
                w0=W+2*r
                if npart==2:
                    a(f"""
                    v_lshlrev_b32 v{w0}, 16, v{P0+r}
                    v_and_b32 v{w0+1}, s27, v{P0+r}
                    v_lshlrev_b32 v12, 16, v{P1+r}
                    v_and_b32 v13, s27, v{P1+r}
                    v_pk_add_f32 v[{w0}:{w0+1}], v[{w0}:{w0+1}], v[12:13]
                    v_cvt_pk_bf16_f32 v{P0+r}, v{w0}, v{w0+1}
                    """)
                a(f"""
                v_lshlrev_b32 v{w0}, 16, v{P0+r}
                v_and_b32 v{w0+1}, s27, v{P0+r}
                v_lshlrev_b32 v12, 16, v{X+r}
                v_and_b32 v13, s27, v{X+r}
                v_pk_add_f32 v[{w0}:{w0+1}], v[{w0}:{w0+1}], v[12:13]
                v_cvt_pk_bf16_f32 v{X+r}, v{w0}, v{w0+1}
                """)
        def prefetch():
            a(f"""
            s_mov_b32 s31, 0
            s_cmp_ge_u32 s26, 63
            s_cbranch_scc1 {L}_np
            """)
            if nfl: a(f"v_cmp_eq_u32 vcc, 0, v9\ns_cbranch_vccnz {L}_np")
            a("s_mov_b32 s31, 1")
            loads(1-st)
            a.label(L+'_np')
        if typ=='T3':
            xchg(X)
            for j in range(2): a(f"buffer_store_dwordx4 v[{X+4*j}:{X+4*j+3}], v5, s[16:19], s22 offen offset:{128*j}")
            a("s_add_u32 s22, s22, 32768")
            a("s_waitcnt vmcnt(2)")
            prefetch()
            a(f"""
            s_add_u32 s26, s26, 1
            s_cmp_eq_u32 s31, 1
            s_cbranch_scc0 {L}_slow
            s_mov_b32 s31, 0
            s_branch {lab}_i{1-st}
{L}_slow:
            s_cmp_ge_u32 s26, 64
            s_cbranch_scc1 {lab}_done
            """)
            wait_flags(a,L+'ws',nfl,'s25',fail,spin)
            loads(1-st)
            if st==1: a(f"s_branch {lab}_i0")
            return
        if nfl: a("s_waitcnt vmcnt(0)")
        prefetch()
        a("s_add_u32 s13, s22, 4096")
        for j in range(2):
            a(f"buffer_store_dwordx4 v[{X+4*j}:{X+4*j+3}], v4, s[8:11], {'s22' if j==0 else 's13'} offen sc1")
        a("v_mov_b32 v12, 0\nv_mov_b32 v13, 0\nv_mov_b32 v14, 0\nv_mov_b32 v15, 0")
        for r in range(0,8,2):
            a(f"v_dot2_f32_bf16 v12, v{X+r}, v8, v12\nv_dot2_f32_bf16 v13, v{X+r}, v{X+r}, v13\nv_dot2_f32_bf16 v14, v{X+r+1}, v8, v14\nv_dot2_f32_bf16 v15, v{X+r+1}, v{X+r+1}, v15")
        a(f"""
        v_pk_add_f32 v[12:13], v[12:13], v[14:15]
        s_nop 1
        v_add_f32_dpp v12, v12, v12 row_ror:8 row_mask:0xf bank_mask:0xf
        v_add_f32_dpp v13, v13, v13 row_ror:8 row_mask:0xf bank_mask:0xf
        v_mov_b32 v10, v12
        v_mov_b32 v11, v13
        v_permlane16_swap_b32 v12, v10
        v_permlane16_swap_b32 v13, v11
        v_pk_add_f32 v[12:13], v[12:13], v[10:11]
        v_mov_b32 v10, v12
        v_mov_b32 v11, v13
        v_permlane32_swap_b32 v12, v10
        v_permlane32_swap_b32 v13, v11
        v_pk_add_f32 v[12:13], v[12:13], v[10:11]
        s_mov_b64 exec, 0xff
        ds_write_b64 v7, v[12:13] offset:{256*st}
        s_mov_b64 exec, -1
        s_waitcnt lgkmcnt(0)
        s_barrier
        ds_read_b64 v[10:11], v6 offset:{256*st}
        ds_read_b64 v[12:13], v6 offset:{256*st+64}
        ds_read_b64 v[14:15], v6 offset:{256*st+128}
        ds_read_b64 v[{W}:{W+1}], v6 offset:{256*st+192}
        s_waitcnt lgkmcnt(0)
        v_pk_add_f32 v[10:11], v[10:11], v[12:13]
        v_pk_add_f32 v[14:15], v[14:15], v[{W}:{W+1}]
        v_pk_add_f32 v[10:11], v[10:11], v[14:15]
        v_mul_f32 v10, 0x3b000000, v10
        v_mul_f32 v11, 0x3b000000, v11
        v_fma_f32 v11, -v10, v10, v11
        v_max_f32 v11, 0, v11
        v_cvt_pk_bf16_f32 v14, v10, v11
        v_lshlrev_b32 v12, 16, v14
        v_and_b32 v11, s27, v14
        v_add_f32 v11, 0x3727c5ac, v11
        v_cvt_pk_bf16_f32 v11, v11, v11
        v_and_b32 v11, s27, v11
        v_sqrt_f32 v11, v11
        v_mov_b32 v13, v12
        v_cvt_pk_bf16_f32 v11, v11, v11
        v_and_b32 v11, s27, v11
        v_rcp_f32 v14, v11
        s_nop 0
        v_mov_b32 v15, v14
        """)
        for r in range(8):
            w0=W+2*r
            a(f"""
            v_lshlrev_b32 v{w0}, 16, v{X+r}
            v_and_b32 v{w0+1}, s27, v{X+r}
            v_pk_add_f32 v[{w0}:{w0+1}], v[{w0}:{w0+1}], v[12:13] neg_lo:[0,1] neg_hi:[0,1]
            v_cvt_pk_bf16_f32 v{P0+r}, v{w0}, v{w0+1}
            v_lshlrev_b32 v{w0}, 16, v{P0+r}
            v_and_b32 v{w0+1}, s27, v{P0+r}
            v_pk_mul_f32 v[{w0}:{w0+1}], v[{w0}:{w0+1}], v[14:15]
            v_cvt_pk_bf16_f32 v{P0+r}, v{w0}, v{w0+1}
            """)
        a("s_add_u32 s13, s23, 4096")
        for j in range(2):
            a(f"buffer_store_dwordx4 v[{P0+4*j}:{P0+4*j+3}], v4, s[8:11], {'s23' if j==0 else 's13'} offen sc1")
        a("s_add_u32 s22, s22, 32768\ns_add_u32 s23, s23, 32768")
        a("s_waitcnt vmcnt(0)")
        flag_prev()
        a(f"""
        s_add_u32 s26, s26, 1
        s_cmp_eq_u32 s31, 1
        s_cbranch_scc0 {L}_slow
        s_mov_b32 s31, 0
        s_branch {lab}_i{1-st}
{L}_slow:
        s_cmp_ge_u32 s26, 64
        s_cbranch_scc1 {lab}_done
        """)
        if nfl: wait_flags(a,L+'ws',nfl,'s25',fail,spin)
        loads(1-st)
        if st==1: a(f"s_branch {lab}_i0")
    iteration(0); iteration(1)
    a.label(lab+'_done')

def emit_AWO(a, cfg, fail):
    spin=cfg.get('spin',SPIN_DEFAULT)
    lab=a.new('AWO')
    a("""
    s_load_dwordx2 s[12:13], s[0:1], 16      ; A_wo [512][512]
    s_waitcnt lgkmcnt(0)
    s_mov_b32 s14, 524288
    s_mov_b32 s15, 0x20000
    v_lshrrev_b32 v61, 4, v0
    v_and_b32 v60, 15, v0
    v_lshlrev_b32 v62, 2, v61
    v_xor_b32 v62, v60, v62
    v_lshlrev_b32 v62, 4, v62
    v_lshl_add_u32 v62, v61, 10, v62
    s_lshl_b32 s32, s5, 8
    v_add_u32 v40, s32, v62
    s_lshl_b32 s32, s6, 2
    """)
    tr_addr32(a,44,'s32',256,lambda r,o: a(f"v_lshlrev_b32 v{o}, 2, v{r}"),0)
    a("v_add_u32 v45, 0x10000, v44")
    a("s_lshl_b32 s33, s6, 17\ns_lshl_b32 s34, s6, 15")
    for n in range(32):
        a(f"s_add_u32 m0, s34, {4*n*256}\ns_add_u32 s35, s33, {4*n*1024}\nbuffer_load_dwordx4 v40, s[12:15], s35 offen lds")
    a("s_waitcnt vmcnt(0)\ns_barrier")
    for ks in range(32):
        for p in range(2):
            a(f"ds_read_b64_tr_b16 a[{4*ks+2*p}:{4*ks+2*p+1}], v{44+(ks>>4)} offset:{(ks&15)*4096+p*2048}")
        if ks%4==3: a("s_waitcnt lgkmcnt(4)")
    a("s_waitcnt lgkmcnt(0)\ns_barrier")
    a(f"""
    v_lshlrev_b32 v1, 4, v0
    s_lshl_b32 s32, s6, 13
    v_add_u32 v2, s32, v1
    s_lshl_b32 s32, s5, 13
    s_lshl_b32 s33, s6, 11
    s_add_u32 s32, s32, s33
    v_add_u32 v3, s32, v1
    s_mul_i32 s32, s4, {6*64*32768}
    s_add_u32 s43, s32, {xs(T_OA1,0)}
    s_add_u32 s44, s32, {xs(T_YA1,0)}
    s_lshl_b32 s32, s4, 13
    s_add_u32 s45, s32, {WS_FLAG+FL_OA}
    s_lshl_b32 s33, s5, 4
    s_lshl_b32 s34, s6, 2
    s_add_u32 s33, s33, s34
    s_add_u32 s46, s32, {WS_FLAG+FL_YA}
    s_add_u32 s46, s46, s33
    s_mov_b32 s40, 0
    s_mov_b32 s42, 0
    """)
    def dma(bufreg):
        out=[]
        for n in range(8):
            out.append(f"s_lshl_b32 s32, s6, 13\ns_add_u32 s32, s32, {bufreg}\ns_add_u32 m0, s32, {(n>>2)*4096}\ns_add_u32 s33, s43, {(n>>2)*4096}\nbuffer_load_dwordx4 v2, s[8:11], s33 offen offset:{(n&3)*1024} sc1 lds")
        return out
    wait_flags(a,lab+'w0',32,'s45',fail,spin)
    for d in dma('s42'): a(d)
    a("s_add_u32 s43, s43, 32768\ns_add_u32 s45, s45, 128\ns_waitcnt vmcnt(0)\ns_barrier")
    a.label(lab+'_unit')
    a("v_add_u32 v5, s42, v1\ns_xor_b32 s50, s42, 32768")
    poll_issue(a,32,'s45',10,9)
    XR=64; NR=8; AHEAD=6
    def rd(i): a(f"ds_read_b128 v[{XR+4*(i%NR)}:{XR+4*(i%NR)+3}], v5 offset:{i*1024}")
    for i in range(AHEAD): rd(i)
    dl=dma('s50')
    for ks in range(32):
        r=XR+4*(ks%NR)
        a(f"s_waitcnt lgkmcnt({min(AHEAD-1,31-ks)})")
        c='0' if ks==0 else "v[32:47]"
        a(f"v_mfma_f32_32x32x16_bf16 v[32:47], a[{4*ks}:{4*ks+3}], v[{r}:{r+3}], {c}")
        if ks+AHEAD<32: rd(ks+AHEAD)
        if ks==22:
            a(f"""
            s_waitcnt vmcnt(0)
            s_mov_b32 s48, 0
            s_cmp_ge_u32 s40, 63
            s_cselect_b32 s49, 1, 0
            v_cmp_eq_u32 vcc, 0, v9
            s_cmp_eq_u64 vcc, 0
            s_cselect_b32 s48, 1, 0
            s_cmp_eq_u32 s49, 1
            s_cselect_b32 s48, 0, s48
            """)
        if 23<=ks<31:
            L=a.new(lab+'d')
            a(f"s_cmp_eq_u32 s48, 0\ns_cbranch_scc1 {L}")
            a(dl[ks-23]); a.label(L)
    pack_tile(a,32,96)
    for f in range(2):
        a(f"buffer_store_dwordx4 v[{96+4*f}:{99+4*f}], v3, s[8:11], s44 offen offset:{f*1024} sc1")
    a("s_add_u32 s44, s44, 32768\ns_add_u32 s40, s40, 1\ns_waitcnt vmcnt(0)")
    set_flag(a,'s46',vtmp=(11,12))
    a(f"""
    s_add_u32 s46, s46, 128
    s_mov_b32 s42, s50
    s_cmp_eq_u32 s48, 0
    s_cbranch_scc1 {lab}_slow
    s_add_u32 s43, s43, 32768
    s_add_u32 s45, s45, 128
    s_barrier
    s_branch {lab}_unit
{lab}_slow:
    s_cmp_ge_u32 s40, 64
    s_cbranch_scc1 {lab}_done
    """)
    wait_flags(a,lab+'ws',32,'s45',fail,spin)
    for d in dma('s42'): a(d)
    a(f"""
    s_add_u32 s43, s43, 32768
    s_add_u32 s45, s45, 128
    s_waitcnt vmcnt(0)
    s_barrier
    s_branch {lab}_unit
{lab}_done:
    """)

def emit_P(a, cfg, fail):
    spin=cfg.get('spin',SPIN_DEFAULT)
    lab=a.new('P')
    a("""
    s_load_dwordx2 s[16:17], s[0:1], 48      ; Wk
    s_load_dwordx2 s[20:21], s[0:1], 56      ; Wv
    s_waitcnt lgkmcnt(0)
    s_mov_b32 s18, 4194304
    s_mov_b32 s19, 0x20000
    s_mov_b32 s22, 4194304
    s_mov_b32 s23, 0x20000
    v_lshrrev_b32 v61, 4, v0
    v_and_b32 v60, 15, v0
    v_lshlrev_b32 v62, 2, v61
    v_xor_b32 v62, v60, v62
    v_lshlrev_b32 v62, 4, v62
    v_lshl_add_u32 v62, v61, 13, v62
    s_lshl_b32 s32, s5, 8
    v_add_u32 v40, s32, v62
    s_lshl_b32 s32, s6, 2
    """)
    tr_addr32(a,44,'s32',256,lambda r,o: a(f"v_lshlrev_b32 v{o}, 2, v{r}"),0)
    a("v_add_u32 v45, 0x10000, v44")
    def wreg(M,ks,p):
        if M=='Q': b=128+4*ks+2*p; return f"v[{b}:{b+1}]"
        b={'K':0,'V':128}[M]+4*ks+2*p; return f"a[{b}:{b+1}]"
    rounds=[(M,h) for M in ('K','V') for h in range(2)]
    srd={'K':'s[16:19]','V':'s[20:23]','Q':'s[12:15]'}
    def issue(i):
        M,h=rounds[i]
        a(f"s_lshl_b32 s33, s6, 19\ns_add_u32 s33, s33, {h*256*8192}\ns_lshl_b32 s34, s6, 14\ns_add_u32 s34, s34, {(i&1)*65536}")
        for n in range(16):
            a(f"s_add_u32 m0, s34, {4*n*256}\ns_add_u32 s35, s33, {4*n*8192}\nbuffer_load_dwordx4 v40, {srd[M]}, s35 offen lds")
    issue(0); issue(1)
    for i,(M,h) in enumerate(rounds):
        a(f"s_waitcnt vmcnt({16 if i+1<len(rounds) else 0})\ns_barrier")
        for ksl in range(16):
            ks=16*h+ksl
            for p in range(2):
                a(f"ds_read_b64_tr_b16 {wreg(M,ks,p)}, v{44+(i&1)} offset:{ksl*4096+p*2048}")
            if ksl%4==3: a("s_waitcnt lgkmcnt(4)")
        a("s_waitcnt lgkmcnt(0)\ns_barrier")
        if i+2<len(rounds): issue(i+2)
    def W(M,ks):
        if M=='Q': return f"v[{128+4*ks}:{131+4*ks}]"
        b={'K':0,'V':128}[M]+4*ks; return f"a[{b}:{b+3}]"
    a(f"""
    v_lshlrev_b32 v1, 4, v0
    s_lshl_b32 s32, s6, 13
    v_add_u32 v2, s32, v1
    s_lshl_b32 s32, s6, 11
    v_add_u32 v3, s32, v1
    s_mul_i32 s32, s4, {6*64*32768}
    s_add_u32 s43, s32, {xs(T_XNB1,0)}
    s_lshl_b32 s32, s4, 14
    s_add_u32 s45, s32, {WS_FLAG+FL_XN+64*128}
    s_lshl_b32 s32, s4, 11
    s_add_u32 s32, s32, s5
    s_mul_i32 s48, s32, {QKV_BLK}
    s_lshl_b32 s49, s32, 5
    s_lshl_b32 s33, s6, 2
    s_add_u32 s49, s49, s33
    s_add_u32 s49, s49, {WS_FLAG+FL_P}
    s_mov_b32 s40, 0
    s_mov_b32 s42, 0
    s_mov_b32 s47, 0
    """)
    def dma(bufreg):
        out=[]
        for n in range(8):
            out.append(f"s_lshl_b32 s32, s6, 13\ns_add_u32 s32, s32, {bufreg}\ns_add_u32 m0, s32, {(n>>2)*4096}\ns_add_u32 s33, s43, {(n>>2)*4096}\nbuffer_load_dwordx4 v2, s[8:11], s33 offen offset:{(n&3)*1024} sc1 lds")
        return out
    wait_flags(a,lab+'w0',NXN,'s45',fail,spin,vtmp=(8,9))
    for d in dma('s42'): a(d)
    a("s_add_u32 s43, s43, 32768\ns_add_u32 s45, s45, 128\ns_waitcnt vmcnt(0)\ns_barrier")
    a.label(lab+'_unit')
    a("v_add_u32 v5, s42, v1\ns_xor_b32 s50, s42, 32768")
    poll_issue(a,NXN,'s45',10,9)
    XR=64; NR=8; ACC=[32,48]; PK=96
    reads=[(t,ks) for t in range(2) for ks in range(32)]
    def rd(i):
        t,ks=reads[i]; r=XR+4*(i%NR)
        a(f"ds_read_b128 v[{r}:{r+3}], v5 offset:{ks*1024}")
    AHEAD=6
    for i in range(AHEAD): rd(i)
    Ms=['K','V']
    def epi(t):
        acc=ACC[t&1]; M=Ms[t]; out=[]
        for i in range(8): out.append(f"v_cvt_pk_bf16_f32 v{PK+i}, v{acc+2*i}, v{acc+2*i+1}")
        off={'Q':0,'K':8192,'V':16384}[M]
        out.append(f"s_add_u32 s33, s48, {off}\nbuffer_store_dwordx4 v[{PK}:{PK+3}], v3, s[8:11], s33 offen sc1")
        out.append(f"buffer_store_dwordx4 v[{PK+4}:{PK+7}], v3, s[8:11], s33 offen offset:1024 sc1")
        return out
    pend=[]; dl=dma('s50')
    for i,(t,ks) in enumerate(reads):
        M=Ms[t]; acc=ACC[t&1]; r=XR+4*(i%NR)
        a(f"s_waitcnt lgkmcnt({min(AHEAD-1, len(reads)-1-i)})")
        c='0' if ks==0 else f"v[{acc}:{acc+15}]"
        if M=='V': a(f"v_mfma_f32_32x32x16_bf16 v[{acc}:{acc+15}], v[{r}:{r+3}], {W(M,ks)}, {c}")
        else: a(f"v_mfma_f32_32x32x16_bf16 v[{acc}:{acc+15}], {W(M,ks)}, v[{r}:{r+3}], {c}")
        if i+AHEAD<len(reads): rd(i+AHEAD)
        if t>=1 and ks==0: pend=epi(t-1)
        if t>=1 and ks>=6 and pend: a(pend.pop(0))
        if t==0 and ks==22:
            a(f"s_cmp_eq_u32 s47, 0\ns_cbranch_scc1 {lab}_nq0\ns_waitcnt vmcnt(1)\ns_sub_u32 s33, s49, 1024")
            set_flag(a,'s33',vtmp=(11,12))
            a(f"""
            s_mov_b32 s47, 0
            s_waitcnt vmcnt(1)
            s_branch {lab}_nq
{lab}_nq0:
            s_waitcnt vmcnt(0)
{lab}_nq:
            s_mov_b32 s51, 0
            s_cmp_ge_u32 s40, 63
            s_cselect_b32 s52, 1, 0
            v_cmp_eq_u32 vcc, 0, v9
            s_cmp_eq_u64 vcc, 0
            s_cselect_b32 s51, 1, 0
            s_cmp_eq_u32 s52, 1
            s_cselect_b32 s51, 0, s51
            """)
        if t==0 and 23<=ks<31:
            L=a.new(lab+'d')
            a(f"s_cmp_eq_u32 s51, 0\ns_cbranch_scc1 {L}")
            a(dl[ks-23]); a.label(L)
    for x in epi(1): a(x)
    a(f"""
    s_add_u32 s48, s48, {32*QKV_BLK}
    s_add_u32 s49, s49, 1024
    s_add_u32 s40, s40, 1
    s_mov_b32 s42, s50
    s_cmp_eq_u32 s51, 0
    s_cbranch_scc1 {lab}_slow
    s_mov_b32 s47, 1
    s_add_u32 s43, s43, 32768
    s_add_u32 s45, s45, 128
    s_waitcnt vmcnt(4)
    s_barrier
    s_branch {lab}_unit
{lab}_slow:
    s_waitcnt vmcnt(0)
    s_sub_u32 s33, s49, 1024
    """)
    set_flag(a,'s33',vtmp=(11,12))
    a(f"""
    s_mov_b32 s47, 0
    s_cmp_ge_u32 s40, 64
    s_cbranch_scc1 {lab}_done
    """)
    wait_flags(a,lab+'ws',NXN,'s45',fail,spin,vtmp=(8,9))
    for d in dma('s42'): a(d)
    a(f"""
    s_add_u32 s43, s43, 32768
    s_add_u32 s45, s45, 128
    s_waitcnt vmcnt(0)
    s_barrier
    s_branch {lab}_unit
{lab}_done:
    """)

def emit_ATT(a, cfg, fail):
    spin=cfg.get('spin',SPIN_DEFAULT)
    lab=a.new('ATT')
    STG=131072
    a(f"""
    s_load_dwordx2 s[12:13], s[0:1], 40      ; Wq
    s_waitcnt lgkmcnt(0)
    s_mov_b32 s14, 4194304
    s_mov_b32 s15, 0x20000
    v_lshrrev_b32 v61, 4, v0
    v_and_b32 v60, 15, v0
    v_lshlrev_b32 v62, 2, v61
    v_xor_b32 v62, v60, v62
    v_lshlrev_b32 v62, 4, v62
    v_lshl_add_u32 v62, v61, 13, v62
    s_lshl_b32 s32, s5, 8
    v_add_u32 v40, s32, v62
    s_lshl_b32 s32, s6, 2
    """)
    tr_addr32(a,44,'s32',256,lambda r_,o: a(f"v_lshlrev_b32 v{o}, 2, v{r_}"),STG)
    a("v_lshlrev_b32 v46, 4, v0\ns_lshl_b32 s32, s6, 15\nv_add_u32 v46, s32, v46")
    for rnd in range(4):
        a(f"s_lshl_b32 s33, s6, 18\ns_add_u32 s33, s33, {rnd*128*8192}\ns_lshl_b32 s34, s6, 13\ns_add_u32 s34, s34, {STG}")
        for n in range(8):
            a(f"s_add_u32 m0, s34, {4*n*256}\ns_add_u32 s35, s33, {4*n*8192}\nbuffer_load_dwordx4 v40, s[12:15], s35 offen lds")
        a("s_waitcnt vmcnt(0)\ns_barrier")
        for ksl in range(8):
            for p in range(2):
                a(f"ds_read_b64_tr_b16 v[{64+4*ksl+2*p}:{65+4*ksl+2*p}], v44 offset:{ksl*4096+p*2048}")
        a("s_waitcnt lgkmcnt(0)")
        for ksl in range(8):
            a(f"ds_write_b128 v46, v[{64+4*ksl}:{67+4*ksl}] offset:{(8*rnd+ksl)*1024}")
        a("s_waitcnt lgkmcnt(0)\ns_barrier")
    a(f"""
    s_lshr_b32 s40, s6, 1                    ; layer
    s_and_b32 s41, s6, 1                     ; unit
    s_lshl_b32 s32, s40, 6
    s_add_u32 s32, s32, s41
    s_lshl_b32 s32, s32, 5
    s_add_u32 s32, s32, s5                   ; (l*64+u)*32 + h
    s_mul_i32 s43, s32, {QKV_BLK}
    s_lshl_b32 s44, s32, 12
    s_add_u32 s44, s44, {WS_KM}
    s_lshl_b32 s45, s32, 4
    s_add_u32 s45, s45, {WS_FLAG+FL_CH}
    s_lshl_b32 s49, s32, 5
    s_add_u32 s49, s49, {WS_FLAG+FL_P}
    s_lshl_b32 s33, s40, 6
    s_add_u32 s33, s33, s41                  ; l*64+u
    s_mul_i32 s34, s40, {6*64*32768}
    s_lshl_b32 s35, s41, 15
    s_add_u32 s50, s34, s35
    s_add_u32 s50, s50, {xs(T_XNB1,0)}
    s_lshl_b32 s34, s40, 14
    s_lshl_b32 s35, s41, 7
    s_add_u32 s51, s34, s35
    s_add_u32 s51, s51, {WS_FLAG+FL_XN+64*128}
    s_lshl_b32 s46, s32, 2
    s_add_u32 s46, s46, {WS_FLAG+FL_OB}
    s_lshl_b32 s33, s40, 6
    s_add_u32 s33, s33, s41
    s_lshl_b32 s33, s33, 18
    s_lshl_b32 s34, s5, 13
    s_add_u32 s47, s33, s34
    s_add_u32 s47, s47, {WS_OB}
    s_lshl_b32 s42, s6, 12
    s_add_u32 s42, s42, {STG}
    v_lshlrev_b32 v1, 4, v0
    v_lshrrev_b32 v60, 5, v0
    v_and_b32 v61, 7, v0
    v_lshlrev_b32 v2, 4, v61
    v_lshl_add_u32 v2, v60, 7, v2
    v_add_u32 v2, s42, v2
    v_and_b32 v61, 31, v0
    v_lshlrev_b32 v3, 4, v61
    v_lshl_add_u32 v3, v60, 3, v3
    v_add_u32 v3, s42, v3
    v_mov_b32 v7, 0xff7fffff
    v_mov_b32 v12, 0x3f803f80
    v_mov_b32 v13, 0x3f803f80
    v_mov_b32 v14, 0x3f803f80
    v_mov_b32 v15, 0x3f803f80
    s_mov_b32 s48, 0x3e0293ee
    """)
    a("v_mov_b32 v4, v1\nv_add_u32 v5, 0x10000, v1")
    causal_masks(a,64)
    K=32; V=64; KM=160; VM=192
    XA=96
    def xloads():
        out=[]
        for ks in range(32):
            pre=f"s_add_u32 s32, s50, {(ks>>2)*4096}\n" if ks%4==0 else ""
            out.append(pre+f"buffer_load_dwordx4 a[{XA+4*ks}:{XA+4*ks+3}], v1, s[8:11], s32 offen offset:{(ks&3)*1024} sc1")
        return out
    def xadv(): a("s_add_u32 s50, s50, 65536\ns_add_u32 s51, s51, 256")
    a("s_mov_b32 s52, 0")
    wait_flags(a,lab+'wx0',NXN,'s51',fail,spin)
    for x in xloads(): a(x)
    xadv()
    a.label(lab+'_loop')
    WR=64; NR=8; AHEAD=6
    seq=[(T,ks) for T in range(4) for ks in range(32)]
    def wrd(i):
        T,ks=seq[i]; r_=WR+4*(i%NR)
        a(f"ds_read_b128 v[{r_}:{r_+3}], v{4+(T>>1)} offset:{(T&1)*32768+ks*1024}")
    for i in range(AHEAD): wrd(i)
    QA=[96,112]
    pend=[]
    kvl=[]
    for blk,reg in ((1,K),(2,V)):
        for g in range(2):
            for j in range(4):
                rr=reg+4*(4*g+j)
                pre=f"s_add_u32 s32, s43, {blk*8192+g*4096}\n" if j==0 else ""
                kvl.append(pre+f"buffer_load_dwordx4 a[{rr}:{rr+3}], v1, s[8:11], s32 offen offset:{j*1024} sc1")
    for i,(T,ks) in enumerate(seq):
        acc=QA[T&1]; r_=WR+4*(i%NR)
        if T==0:
            if ks<8:
                LL=a.new(lab+'x')
                a(f"s_cmp_eq_u32 s52, 0\ns_cbranch_scc1 {LL}_0\ns_waitcnt vmcnt({39-ks})\ns_branch {LL}_1\n{LL}_0:\ns_waitcnt vmcnt({31-ks})\n{LL}_1:\ns_waitcnt lgkmcnt({AHEAD-1})")
            else: a(f"s_waitcnt vmcnt({31-ks}) lgkmcnt({AHEAD-1})")
        elif T==1 and ks==0:
            a(f"s_cmp_eq_u32 s52, 0\ns_cbranch_scc1 {lab}_nf")
            set_flag(a,'s46',vtmp=(10,11))
            a(f"s_add_u32 s46, s46, 256\ns_mov_b32 s52, 0\n{lab}_nf:")
            poll_issue(a,4,'s49',10,30)
            poll_issue(a,NXN,'s51',11,31)
            a(f"s_waitcnt lgkmcnt({AHEAD-1})")
        elif T==1 and ks==30:
            a(f"""
            s_waitcnt vmcnt(0)
            s_mov_b32 s53, 0
            s_cmp_ge_u32 s41, 62
            s_cbranch_scc1 {lab}_np
            v_cmp_eq_u32 vcc, 0, v31
            s_cbranch_vccnz {lab}_np
            s_mov_b32 s53, 1
{lab}_np:
            v_cmp_eq_u32 vcc, 0, v30
            s_cbranch_vccz {lab}_pok
            """)
            wait_flags(a,lab+'wp',4,'s49',fail,spin)
            a(f"{lab}_pok:\ns_waitcnt lgkmcnt({AHEAD-1})")
        else: a(f"s_waitcnt lgkmcnt({min(AHEAD-1,len(seq)-1-i)})")
        c='0' if ks==0 else f"v[{acc}:{acc+15}]"
        a(f"v_mfma_f32_32x32x16_bf16 v[{acc}:{acc+15}], v[{r_}:{r_+3}], a[{XA+4*ks}:{XA+4*ks+3}], {c}")
        if i+AHEAD<len(seq): wrd(i+AHEAD)
        if T>=1 and ks==0:
            pa=QA[(T-1)&1]
            pend=[f"v_cvt_pk_bf16_f32 v{128+8*(T-1)+q}, v{pa+2*q}, v{pa+2*q+1}" for q in range(8)]
        if T>=1 and ks>=8 and pend: a(pend.pop(0))
        if T==2 and ks%2==1 and kvl: a(kvl.pop(0))
        if T==3 and ks==4: poll_issue(a,4,'s45',10,30)
    pa=QA[1]
    for q in range(8): a(f"v_cvt_pk_bf16_f32 v{128+24+q}, v{pa+2*q}, v{pa+2*q+1}")
    QV=128
    a(f"""
    s_waitcnt vmcnt(0)
    v_cmp_eq_u32 vcc, 0, v30
    s_cbranch_vccnz {lab}_chw
    """)
    def kmdma():
        a("s_mov_b32 m0, s42")
        for j in range(4): a(f"buffer_load_dwordx4 v1, s[8:11], s44 offen offset:{j*1024} sc1 lds")
    def stok():
        for ks in range(8):
            c0='0' if ks==0 else 'v[32:47]'
            a(f"v_mfma_f32_32x32x16_bf16 v[32:47], a[{K+4*ks}:{K+4*ks+3}], v[{QV+4*ks}:{QV+4*ks+3}], {c0}")
        for r_ in range(16): a(f"v_cndmask_b32 v{32+r_}, v7, v{32+r_}, s[{64+2*r_}:{65+2*r_}]")
        a("""
        v_max3_f32 v24, v32, v33, v34
        v_max3_f32 v25, v35, v36, v37
        v_max3_f32 v24, v24, v38, v39
        v_max3_f32 v25, v25, v40, v41
        v_max3_f32 v24, v24, v42, v43
        v_max3_f32 v25, v25, v44, v45
        v_max3_f32 v24, v24, v46, v47
        """)
        for W_ in range(4): a(f"v_mov_b32 v{VM+4*W_+2}, 0\nv_mov_b32 v{VM+4*W_+3}, 0")
    xl=xloads()
    kmdma(); stok()
    a(f"s_branch {lab}_kmw")
    a.label(lab+'_chw')
    stok()
    a(f"s_cmp_eq_u32 s53, 0\ns_cbranch_scc1 {lab}_b1")
    for x in xl: a(x)
    xadv()
    a(f"s_mov_b32 s53, 2\n{lab}_b1:")
    wait_flags(a,lab+'wc',4,'s45',fail,spin,sleep=0)
    kmdma()
    a.label(lab+'_kmw')
    a("s_waitcnt vmcnt(0)")
    for ks in range(8): a(f"ds_read_b128 v[{KM+4*ks}:{KM+4*ks+3}], v2 offset:{ks*256}")
    for W_ in range(4): a(f"ds_read_b64 v[{VM+4*W_}:{VM+4*W_+1}], v3 offset:{2048+W_*512}")
    for ks in range(8):
        a(f"s_waitcnt lgkmcnt({11-ks})")
        c1='0' if ks==0 else 'v[48:63]'
        a(f"v_mfma_f32_32x32x16_bf16 v[48:63], v[{KM+4*ks}:{KM+4*ks+3}], v[{QV+4*ks}:{QV+4*ks+3}], {c1}")
    a("""
    v_max3_f32 v25, v25, v48, v49
    v_max3_f32 v24, v24, v50, v51
    v_max_f32 v24, v24, v25
    v_mov_b32 v25, v24
    v_permlane32_swap_b32 v24, v25
    v_max_f32 v24, v24, v25
    v_mul_f32 v24, s48, v24
    """)
    for r in range(20): a(f"v_fma_f32 v{32+r}, v{32+r}, s48, -v24")
    for r in range(20): a(f"v_exp_f32 v{32+r}, v{32+r}")
    for i in range(8): a(f"v_cvt_pk_bf16_f32 v{16+i}, v{32+2*i}, v{33+2*i}")
    a("""
    v_cvt_pk_bf16_f32 v8, v48, v49
    v_cvt_pk_bf16_f32 v9, v50, v51
    v_mov_b32 v10, 0
    v_mov_b32 v11, 0
    s_waitcnt lgkmcnt(0)
    v_mfma_f32_32x32x16_bf16 v[32:47], v[12:15], v[16:19], 0
    v_mfma_f32_32x32x16_bf16 v[32:47], v[12:15], v[20:23], v[32:47]
    v_mfma_f32_32x32x16_bf16 v[32:47], v[12:15], v[8:11], v[32:47]
    """)
    OT=[64,80,96,112]; PK=208
    xq=list(xl)
    def mx(n=1):
        for _ in range(n):
            if xq:
                LL=a.new(lab+'m'); a(f"s_cbranch_scc0 {LL}"); x=xq.pop(0)
                a(x)
                if x.startswith('s_add'): a("s_cmp_eq_u32 s53, 1")
                a.label(LL)
    def pv(W_):
        o=OT[W_]
        a(f"v_mfma_f32_32x32x16_bf16 v[{o}:{o+15}], a[{V+8*W_}:{V+8*W_+3}], v[16:19], 0"); mx()
        a(f"v_mfma_f32_32x32x16_bf16 v[{o}:{o+15}], a[{V+8*W_+4}:{V+8*W_+7}], v[20:23], v[{o}:{o+15}]"); mx()
        a(f"v_mfma_f32_32x32x16_bf16 v[{o}:{o+15}], v[{VM+4*W_}:{VM+4*W_+3}], v[8:11], v[{o}:{o+15}]"); mx()
    def fin(W_):
        o=OT[W_]
        for r_ in range(16):
            a(f"v_mul_f32 v{o+r_}, v{o+r_}, v24")
            if r_%4==3: mx()
        for i in range(8): a(f"v_cvt_pk_bf16_f32 v{PK+8*W_+i}, v{o+2*i}, v{o+2*i+1}")
    def sto(W_):
        if W_==2: a("s_add_u32 s32, s47, 4096")
        for f in range(2):
            fi=2*W_+f
            a(f"buffer_store_dwordx4 v[{PK+4*fi}:{PK+4*fi+3}], v1, s[8:11], {'s47' if fi<4 else 's32'} offen offset:{(fi&3)*1024} sc1")
    a("s_cmp_eq_u32 s53, 1")
    pv(0); pv(1)
    a("v_rcp_f32 v24, v32")
    pv(2); fin(0); pv(3); fin(1); fin(2); fin(3)
    mx(32)
    a(f"s_cbranch_scc0 {lab}_k2")
    xadv()
    a.label(lab+'_k2')
    for W_ in range(4): sto(W_)
    a(f"""
    s_add_u32 s43, s43, {2*32*QKV_BLK}
    s_add_u32 s44, s44, {2*32*4096}
    s_add_u32 s45, s45, 1024
    s_add_u32 s49, s49, 2048
    s_add_u32 s47, s47, {2*262144}
    s_add_u32 s41, s41, 2
    s_mov_b32 s52, 1
    s_cmp_eq_u32 s53, 2
    s_cbranch_scc1 {lab}_eager
    s_cmp_eq_u32 s53, 1
    s_cbranch_scc1 {lab}_loop
    s_waitcnt vmcnt(0)
    """)
    set_flag(a,'s46',vtmp=(10,11))
    a(f"""
    s_add_u32 s46, s46, 256
    s_mov_b32 s52, 0
    s_cmp_ge_u32 s41, 64
    s_cbranch_scc1 {lab}_done
    """)
    wait_flags(a,lab+'wxs',NXN,'s51',fail,spin)
    for x in xloads(): a(x)
    xadv()
    a(f"s_branch {lab}_loop")
    a.label(lab+'_eager')
    a("s_waitcnt vmcnt(0)")
    set_flag(a,'s46',vtmp=(10,11))
    a(f"s_add_u32 s46, s46, 256\ns_mov_b32 s52, 0\ns_branch {lab}_loop\n{lab}_done:")
```

```python
import sys
sys.path.insert(0,'dev')
import mega
cfg=dict(spin=300000,sleepA=3,sleepR=2,sleepA0=1,pf=False)
if len(sys.argv)>2: cfg.update(eval(sys.argv[2]))
out=sys.argv[1] if len(sys.argv)>1 else 'interleave_layers__sliding_block__memory_aug_recurrent_mem_tr__prompt.s'
s=mega.gen(cfg)
hdr=open('interleave_layers__sliding_block__memory_aug_recurrent_mem_tr__prompt.s.ref').read().split('; Override launch')[0]
open(out,'w').write(hdr+s)
print('wrote',out,len(hdr+s))
```

```python
from common import *
SPIN_DEFAULT=2000000

class Ctx:
    def __init__(self,a,cfg): self.a=a; self.cfg=cfg; self.spin=cfg.get('spin',200000)

def wait_flags(a, lab, n, soff, fail, spin, vtmp=(250,251), stmp=(96,97,98), sleep=1):
    va,vb=vtmp; sc=stmp[0]
    mask=(1<<n)-1
    L=a.new(lab)
    a(f"""
    s_mov_b32 s{sc}, 0
    v_mbcnt_lo_u32_b32 v{va}, -1, 0
    v_mbcnt_hi_u32_b32 v{va}, -1, v{va}
    v_min_u32 v{va}, {n-1}, v{va}
    v_lshlrev_b32 v{va}, 2, v{va}
{L}_spin:
    buffer_load_dword v{vb}, v{va}, s[8:11], {soff} offen sc1
    s_waitcnt vmcnt(0)
    v_cmp_eq_u32 vcc, 0, v{vb}
    s_cbranch_vccz {L}_ok
    s_add_u32 s{sc}, s{sc}, 1
    s_cmp_gt_u32 s{sc}, {spin}
    s_cbranch_scc1 {fail}
    {('s_sleep %d'%sleep) if sleep else ''}
    s_branch {L}_spin
{L}_ok:
    """)

TS=False
def flagval(a, vb):
    if TS:
        a(f"""
        s_memrealtime s[98:99]
        s_waitcnt lgkmcnt(0)
        s_or_b32 s98, s98, 1
        v_mov_b32 v{vb}, s98
        """)
    else: a(f"v_mov_b32 v{vb}, 1")
def set_flag(a, soff, vtmp=(250,251)):
    va,vb=vtmp
    flagval(a,vb)
    a(f"""
    v_mov_b32 v{va}, 0
    s_mov_b64 exec, 1
    buffer_store_dword v{vb}, v{va}, s[8:11], {soff} offen sc1
    s_mov_b64 exec, -1
    """)

def emit_F(a, cfg, typ, fail):
    spin=cfg.get('spin',SPIN_DEFAULT)
    lab=a.new('F'+typ)
    npart={'T0':0,'T1':1,'T2':2,'T3':2}[typ]
    a(f"""
    v_and_b32 v1, 15, v0
    v_bfe_u32 v2, v0, 4, 1
    v_lshrrev_b32 v3, 5, v0
    v_lshlrev_b32 v4, 4, v1
    v_lshl_add_u32 v4, v2, 9, v4
    v_lshl_add_u32 v4, v3, 10, v4
    s_lshl_b32 s12, s6, 13
    s_lshl_b32 s13, s5, 8
    s_add_u32 s12, s12, s13
    v_add_u32 v4, s12, v4
    s_lshl_b32 s13, s5, 4
    v_add_u32 v5, s13, v1
    v_lshlrev_b32 v5, 10, v5
    v_lshl_add_u32 v5, v3, 5, v5
    v_lshl_add_u32 v5, v2, 4, v5
    s_lshl_b32 s13, s6, 8                    ; 4w*64
    v_add_u32 v5, s13, v5
    v_lshlrev_b32 v6, 3, v1
    s_lshl_b32 s13, s6, 7
    v_add_u32 v7, s13, v6
    """)
    if typ=='T0':
        a(f"""
        s_load_dwordx2 s[16:17], s[0:1], 0
        s_waitcnt lgkmcnt(0)
        s_mov_b32 s18, {2048*1024}
        s_mov_b32 s19, 0x20000
        s_mov_b32 s20, 0
        s_mov_b32 s22, {xs(T_X0,0)}
        s_mov_b32 s23, {xs(T_XNA1,0)}
        s_mov_b32 s24, {WS_FLAG+FL_XN+0*64*128}
        """)
    elif typ=='T1':
        a(f"""
        s_mul_i32 s13, s4, {6*64*32768}
        s_add_u32 s20, s13, {xs(T_X0,0)}          ; residual  (X0 / X2)
        s_add_u32 s21, s13, {xs(T_YA1,0)}
        s_add_u32 s22, s13, {xs(T_X1,0)}          ; x out     (X1 / X3)
        s_add_u32 s23, s13, {xs(T_XNB1,0)}
        s_lshl_b32 s13, s4, 14                    ; l*2*64*128
        s_add_u32 s24, s13, {WS_FLAG+FL_XN+1*64*128}
        s_lshl_b32 s13, s4, 13
        s_add_u32 s25, s13, {WS_FLAG+FL_YA}
        """)
    elif typ=='T2':
        a(f"""
        s_mov_b32 s20, {xs(T_X1,0)}
        s_mov_b32 s21, {WS_PO}
        s_mov_b32 s22, {xs(T_X2,0)}
        s_mov_b32 s23, {xs(T_XNA2,0)}
        s_mov_b32 s24, {WS_FLAG+FL_XN+2*64*128}
        s_mov_b32 s25, {WS_FLAG+FL_PO}
        """)
    else:
        a(f"""
        s_load_dwordx2 s[16:17], s[0:1], 80
        s_waitcnt lgkmcnt(0)
        s_mov_b32 s18, {2048*1024}
        s_mov_b32 s19, 0x20000
        s_mov_b32 s20, {xs(T_X3,0)}
        s_mov_b32 s21, {WS_PO+64*131072}
        s_mov_b32 s22, 0
        s_mov_b32 s25, {WS_FLAG+FL_PO+64*128}
        """)
    a(f"""
    s_lshl_b32 s13, s5, 2
    {'s_add_u32 s24, s24, s13' if typ!='T3' else ''}
    s_mov_b32 s26, 0                          ; unit s
    v_mov_b32 v8, 0x3f803f80
    s_mov_b32 s27, 0xffff0000
{lab}_loop:
    """)
    if typ=='T1': wait_flags(a,lab+'w',2,'s25',fail,spin)
    if typ in('T2','T3'): wait_flags(a,lab+'w',16,'s25',fail,spin)
    X=16; P0=32; P1=48; W=64
    if typ=='T0':
        for j in range(4): a(f"buffer_load_dwordx4 v[{X+4*j}:{X+4*j+3}], v5, s[16:19], s20 offen offset:{64*j}")
        a("s_waitcnt vmcnt(0)")
        for j in range(4):
            a(f"v_permlane16_swap_b32 v{X+4*j}, v{X+4*j+2}\nv_permlane16_swap_b32 v{X+4*j+1}, v{X+4*j+3}")
    else:
        a("s_add_u32 s13, s20, 4096\ns_add_u32 s14, s21, 4096")
        if npart==2: a("s_add_u32 s28, s21, 32768\ns_add_u32 s29, s28, 4096")
        for j in range(4):
            so=lambda b,b2: (b if j<2 else b2)
            a(f"buffer_load_dwordx4 v[{P0+4*j}:{P0+4*j+3}], v4, s[8:11], {so('s21','s14')} offen offset:{2048*(j&1)} sc1")
            if npart==2: a(f"buffer_load_dwordx4 v[{P1+4*j}:{P1+4*j+3}], v4, s[8:11], {so('s28','s29')} offen offset:{2048*(j&1)} sc1")
            a(f"buffer_load_dwordx4 v[{X+4*j}:{X+4*j+3}], v4, s[8:11], {so('s20','s13')} offen offset:{2048*(j&1)} sc1")
        per=2+(npart==2)
        for j in range(4):
            a(f"s_waitcnt vmcnt({per*(3-j)})")
            for d in range(4):
                r=4*j+d; w0=W+2*r
                if npart==2:
                    a(f"""
                    v_lshlrev_b32 v{w0}, 16, v{P0+r}
                    v_and_b32 v{w0+1}, s27, v{P0+r}
                    v_lshlrev_b32 v10, 16, v{P1+r}
                    v_and_b32 v11, s27, v{P1+r}
                    v_pk_add_f32 v[{w0}:{w0+1}], v[{w0}:{w0+1}], v[10:11]
                    v_cvt_pk_bf16_f32 v{P0+r}, v{w0}, v{w0+1}
                    """)
                a(f"""
                v_lshlrev_b32 v{w0}, 16, v{P0+r}
                v_and_b32 v{w0+1}, s27, v{P0+r}
                v_lshlrev_b32 v10, 16, v{X+r}
                v_and_b32 v11, s27, v{X+r}
                v_pk_add_f32 v[{w0}:{w0+1}], v[{w0}:{w0+1}], v[10:11]
                v_cvt_pk_bf16_f32 v{X+r}, v{w0}, v{w0+1}
                """)
    if typ=='T3':
        for j in range(4):
            a(f"v_permlane16_swap_b32 v{X+4*j}, v{X+4*j+2}\nv_permlane16_swap_b32 v{X+4*j+1}, v{X+4*j+3}")
        for j in range(4): a(f"buffer_store_dwordx4 v[{X+4*j}:{X+4*j+3}], v5, s[16:19], s22 offen offset:{64*j}")
        a(f"""
        s_add_u32 s20, s20, 32768
        s_add_u32 s21, s21, 131072
        s_add_u32 s22, s22, 32768
        s_add_u32 s25, s25, 128
        """)
    else:
        a("s_add_u32 s13, s22, 4096")
        for j in range(4):
            a(f"buffer_store_dwordx4 v[{X+4*j}:{X+4*j+3}], v4, s[8:11], {'s22' if j<2 else 's13'} offen offset:{2048*(j&1)} sc1")
        a("v_mov_b32 v12, 0\nv_mov_b32 v13, 0")
        for r in range(16):
            a(f"v_dot2_f32_bf16 v12, v{X+r}, v8, v12\nv_dot2_f32_bf16 v13, v{X+r}, v{X+r}, v13")
        a(f"""
        v_mov_b32 v10, v12
        v_mov_b32 v11, v13
        v_permlane16_swap_b32 v12, v10
        v_permlane16_swap_b32 v13, v11
        v_add_f32 v12, v12, v10
        v_add_f32 v13, v13, v11
        v_mov_b32 v10, v12
        v_mov_b32 v11, v13
        v_permlane32_swap_b32 v12, v10
        v_permlane32_swap_b32 v13, v11
        v_add_f32 v12, v12, v10
        v_add_f32 v13, v13, v11
        s_mov_b64 exec, 0xffff
        ds_write_b64 v7, v[12:13]
        s_mov_b64 exec, -1
        s_waitcnt lgkmcnt(0)
        s_barrier
        ds_read_b64 v[10:11], v6
        ds_read_b64 v[12:13], v6 offset:128
        ds_read_b64 v[14:15], v6 offset:256
        ds_read_b64 v[W0:W1], v6 offset:384
        """.replace('W0',str(W)).replace('W1',str(W+1)))
        a(f"""
        s_waitcnt lgkmcnt(0)
        v_pk_add_f32 v[10:11], v[10:11], v[12:13]
        v_pk_add_f32 v[14:15], v[14:15], v[{W}:{W+1}]
        v_pk_add_f32 v[10:11], v[10:11], v[14:15]
        v_mul_f32 v10, 0x3b000000, v10            ; mean
        v_mul_f32 v11, 0x3b000000, v11            ; E[x^2]
        v_fma_f32 v11, -v10, v10, v11             ; var
        v_max_f32 v11, 0, v11
        v_cvt_pk_bf16_f32 v14, v10, v11
        v_lshlrev_b32 v12, 16, v14                ; m
        v_and_b32 v11, s27, v14                   ; var
        v_add_f32 v11, 0x3727c5ac, v11            ; + 1e-5
        v_cvt_pk_bf16_f32 v11, v11, v11
        v_and_b32 v11, s27, v11
        v_sqrt_f32 v11, v11
        s_barrier
        v_cvt_pk_bf16_f32 v11, v11, v11
        v_and_b32 v11, s27, v11
        v_rcp_f32 v14, v11
        v_mov_b32 v13, v12
        v_mov_b32 v15, v14
        """)
        for r in range(16):
            w0=W+2*r
            a(f"""
            v_lshlrev_b32 v{w0}, 16, v{X+r}
            v_and_b32 v{w0+1}, s27, v{X+r}
            v_pk_add_f32 v[{w0}:{w0+1}], v[{w0}:{w0+1}], v[12:13] neg_lo:[0,1] neg_hi:[0,1]
            v_cvt_pk_bf16_f32 v{P0+r}, v{w0}, v{w0+1}
            v_lshlrev_b32 v{w0}, 16, v{P0+r}
            v_and_b32 v{w0+1}, s27, v{P0+r}
            v_pk_mul_f32 v[{w0}:{w0+1}], v[{w0}:{w0+1}], v[14:15]
            v_cvt_pk_bf16_f32 v{P0+r}, v{w0}, v{w0+1}
            """)
        a("s_add_u32 s13, s23, 4096")
        for j in range(4):
            a(f"buffer_store_dwordx4 v[{P0+4*j}:{P0+4*j+3}], v4, s[8:11], {'s23' if j<2 else 's13'} offen offset:{2048*(j&1)} sc1")
        a(f"""
        s_waitcnt vmcnt(0)
        s_barrier
        s_cmp_lg_u32 s6, 0
        s_cbranch_scc1 {lab}_nf
        """)
        set_flag(a,'s24')
        a(f"""
{lab}_nf:
        s_add_u32 s20, s20, 32768
        s_add_u32 s22, s22, 32768
        s_add_u32 s23, s23, 32768
        s_add_u32 s24, s24, 128
        """)
        if typ=='T1': a("s_add_u32 s21, s21, 32768\ns_add_u32 s25, s25, 128")
        if typ=='T2': a("s_add_u32 s21, s21, 131072\ns_add_u32 s25, s25, 128")
    a(f"""
    s_add_u32 s26, s26, 1
    s_cmp_lt_u32 s26, 64
    s_cbranch_scc1 {lab}_loop
    """)

def tr_addr32(a, dst, wcolchunks_sgpr, rowbytes, swz, base, tmp=(60,61,62,63,64,65)):
    t0,t1,t2,t3,t4,t5=tmp
    a(f"""
    v_lshrrev_b32 v{t0}, 4, v0
    v_and_b32 v{t1}, 1, v{t0}                ; nhalf
    v_lshrrev_b32 v{t0}, 1, v{t0}            ; hf
    v_bfe_u32 v{t2}, v0, 2, 2                ; r
    v_and_b32 v{t3}, 3, v0                   ; c
    v_lshl_add_u32 v{t0}, v{t0}, 2, v{t2}
    v_lshrrev_b32 v{t4}, 1, v{t3}
    v_lshl_add_u32 v{t4}, v{t1}, 1, v{t4}
    v_add_u32 v{t4}, {wcolchunks_sgpr}, v{t4}  ; q
    """)
    swz(t2,t5)
    a(f"""
    v_xor_b32 v{t4}, v{t4}, v{t5}
    v_lshlrev_b32 v{t4}, 4, v{t4}
    v_and_b32 v{t3}, 1, v{t3}
    v_lshl_add_u32 v{t4}, v{t3}, 3, v{t4}
    v_mul_u32_u24 v{t0}, {rowbytes}, v{t0}
    v_add_u32 v{dst}, v{t0}, v{t4}
    v_add_u32 v{dst}, {base}, v{dst}
    """)

def pack_tile(a, acc, dst):
    for i in range(8):
        a(f"v_cvt_pk_bf16_f32 v{dst+i}, v{acc+2*i}, v{acc+2*i+1}")

def emit_P(a, cfg, fail):
    spin=cfg.get('spin',SPIN_DEFAULT)
    lab=a.new('P')
    a("""
    s_load_dwordx2 s[12:13], s[0:1], 40      ; Wq
    s_load_dwordx2 s[16:17], s[0:1], 48      ; Wk
    s_load_dwordx2 s[20:21], s[0:1], 56      ; Wv
    s_waitcnt lgkmcnt(0)
    s_mov_b32 s14, 4194304
    s_mov_b32 s15, 0x20000
    s_mov_b32 s18, 4194304
    s_mov_b32 s19, 0x20000
    s_mov_b32 s22, 4194304
    s_mov_b32 s23, 0x20000
    v_lshrrev_b32 v61, 4, v0
    v_and_b32 v60, 15, v0
    v_lshlrev_b32 v62, 2, v61
    v_xor_b32 v62, v60, v62
    v_lshlrev_b32 v62, 4, v62
    v_lshl_add_u32 v62, v61, 13, v62
    s_lshl_b32 s32, s5, 8
    v_add_u32 v40, s32, v62
    s_lshl_b32 s32, s6, 2
    """)
    tr_addr32(a,44,'s32',256,lambda r,o: a(f"v_lshlrev_b32 v{o}, 2, v{r}"),0)
    a("v_add_u32 v45, 0x10000, v44")
    def wreg(M,ks,p):
        if M=='Q': b=128+4*ks+2*p; return f"v[{b}:{b+1}]"
        b={'K':0,'V':128}[M]+4*ks+2*p; return f"a[{b}:{b+1}]"
    for M,srd in (('K','s[16:19]'),('V','s[20:23]'),('Q','s[12:15]')):
        a("s_lshl_b32 s33, s6, 20\ns_lshl_b32 s34, s6, 15")
        for n in range(32):
            a(f"s_add_u32 m0, s34, {4*n*256}\ns_add_u32 s35, s33, {4*n*8192}\nbuffer_load_dwordx4 v40, {srd}, s35 offen lds")
        a("s_waitcnt vmcnt(0)\ns_barrier")
        for ks in range(32):
            for p in range(2):
                a(f"ds_read_b64_tr_b16 {wreg(M,ks,p)}, v{44+(ks>>4)} offset:{(ks&15)*4096+p*2048}")
            if ks%4==3: a("s_waitcnt lgkmcnt(4)")
        a("s_waitcnt lgkmcnt(0)\ns_barrier")
    def W(M,ks):
        if M=='Q': return f"v[{128+4*ks}:{131+4*ks}]"
        b={'K':0,'V':128}[M]+4*ks; return f"a[{b}:{b+3}]"
    DEC=65536
    a(f"""
    v_lshlrev_b32 v1, 4, v0
    s_lshl_b32 s32, s6, 13
    v_add_u32 v2, s32, v1
    s_lshl_b32 s32, s6, 11
    v_add_u32 v3, s32, v1
    v_mov_b32 v4, {DEC}
    s_cmp_eq_u32 s4, 0
    s_cselect_b32 s40, 0, 64
    s_cmp_eq_u32 s4, 1
    s_cselect_b32 s41, 0, 64
    s_cmp_eq_u32 s4, 2
    s_cselect_b32 s40, 2, s40
    s_cselect_b32 s41, 2, s41
    s_mov_b32 s42, 0
    s_mov_b32 s47, 0
    """)
    def advance(c):
        a(f"""
        s_add_u32 s{c}, s{c}, 1
        s_cmp_eq_u32 s4, 2
        s_cselect_b32 s32, 2, 0
        s_add_u32 s{c}, s{c}, s32
        s_cselect_b32 s33, 1, 0
        """)
        L=a.new(lab+'adv')
        a(f"""
        s_cmp_eq_u32 s4, 2
        s_cbranch_scc1 {L}
        s_mul_hi_u32 s32, s{c}, 0x55555556
        s_mul_i32 s32, s32, 3
        s_sub_u32 s32, s{c}, s32
        s_cmp_eq_u32 s32, 2
        s_cselect_b32 s32, 1, 0
        s_add_u32 s{c}, s{c}, s32
{L}:
        """)
    def flag_addr(l,c,dst):
        a(f"s_lshl_b32 s{dst}, s{c}, 7\ns_add_u32 s{dst}, s{dst}, {WS_FLAG+FL_XN+(1+2*l)*64*128}")
    def issue_polls():
        flag_addr(0,40,36); flag_addr(1,41,37)
        a(f"""
        v_and_b32 v8, 7, v0
        v_lshlrev_b32 v8, 2, v8
        buffer_load_dword v9, v8, s[8:11], s36 offen sc1
        buffer_load_dword v10, v8, s[8:11], s37 offen sc1
        """)
    def eval_polls():
        a(f"""
        v_cmp_eq_u32 vcc, 0, v10
        s_cmp_eq_u64 vcc, 0
        s_cselect_b32 s38, 2, 0
        s_cmp_ge_u32 s41, 64
        s_cselect_b32 s38, 0, s38
        v_cmp_eq_u32 vcc, 0, v9
        s_cmp_eq_u64 vcc, 0
        s_cselect_b32 s39, 1, 0
        s_cmp_ge_u32 s40, 64
        s_cselect_b32 s39, 0, s39
        s_cmp_lg_u32 s38, 0
        s_cselect_b32 s38, s38, s39
        s_and_b32 s32, s40, s41
        s_min_u32 s33, s40, s41
        s_cmp_ge_u32 s33, 64
        s_cselect_b32 s38, 3, s38
        """)
    def take(dec):
        L=a.new(lab+'take')
        a(f"""
        s_cmp_eq_u32 s{dec}, 2
        s_cbranch_scc1 {L}_2
        s_lshl_b32 s43, s40, 15
        s_add_u32 s43, s43, {xs(T_XNB1,0)}
        s_lshl_b32 s44, s40, 5
        """)
        advance(40)
        a(f"""
        s_branch {L}_e
{L}_2:
        s_lshl_b32 s43, s41, 15
        s_add_u32 s43, s43, {xs(T_XNB2,0)}
        s_add_u32 s44, s41, 64
        s_lshl_b32 s44, s44, 5
        """)
        advance(41)
        a(f"""
{L}_e:
        s_add_u32 s44, s44, s5                    ; (l*64+s)*32+h
        s_lshl_b32 s45, s44, 5
        s_add_u32 s45, s45, {WS_FLAG+FL_P}
        s_mul_i32 s44, s44, {QKV_BLK}
        """)
    def dma(buf):
        out=[]
        for n in range(8):
            out.append(f"s_lshl_b32 s32, s6, 13\ns_add_u32 s32, s32, s{buf}\ns_add_u32 m0, s32, {n*1024 - (n&3)*1024}\ns_add_u32 s33, s43, {(n>>2)*4096}\nbuffer_load_dwordx4 v2, s[8:11], s33 offen offset:{(n&3)*1024} sc1 lds")
        return out
    a.label(lab+'_block')
    a(f"""
    s_cmp_lg_u32 s6, 0
    s_cbranch_scc1 {lab}_bw
    s_mov_b32 s46, 0
{lab}_bspin:
    """)
    issue_polls()
    a("s_waitcnt vmcnt(0)")
    eval_polls()
    a(f"""
    s_cmp_lg_u32 s38, 0
    s_cbranch_scc1 {lab}_bgot
    s_add_u32 s46, s46, 1
    s_cmp_gt_u32 s46, {spin}
    s_cselect_b32 s38, 4, 0
    s_cbranch_scc1 {lab}_bgot
    s_sleep 4
    s_branch {lab}_bspin
{lab}_bgot:
    v_mov_b32 v9, s38
    ds_write_b32 v4, v9
    s_waitcnt lgkmcnt(0)
{lab}_bw:
    s_barrier
    ds_read_b32 v9, v4
    s_waitcnt lgkmcnt(0)
    v_readfirstlane_b32 s38, v9
    s_barrier
    s_cmp_eq_u32 s38, 3
    s_cbranch_scc1 {lab}_done
    s_cmp_eq_u32 s38, 4
    s_cbranch_scc1 {fail}
    """)
    take(38)
    for d in dma(42): a(d)
    a(f"""
    s_mov_b32 s48, s44
    s_mov_b32 s49, s45
    s_waitcnt vmcnt(0)
    s_barrier
    """)
    a.label(lab+'_unit')
    a(f"""
    v_add_u32 v5, s42, v1
    s_xor_b32 s50, s42, 32768
    s_cmp_lg_u32 s6, 0
    s_cbranch_scc1 {lab}_np
    """)
    issue_polls()
    a.label(lab+'_np')
    XR=64; NR=8; ACC=[32,48]; PK=96
    reads=[(t,ks) for t in range(3) for ks in range(32)]
    def rd(i):
        t,ks=reads[i]; r=XR+4*(i%NR)
        a(f"ds_read_b128 v[{r}:{r+3}], v5 offset:{ks*1024}")
    AHEAD=6
    for i in range(AHEAD): rd(i)
    Ms=['K','V','Q']
    def epi(t):
        acc=ACC[t&1]; M=Ms[t]; out=[]
        for i in range(8): out.append(f"v_cvt_pk_bf16_f32 v{PK+i}, v{acc+2*i}, v{acc+2*i+1}")
        off={'Q':0,'K':8192,'V':16384}[M]
        out.append(f"s_add_u32 s33, s48, {off}\nbuffer_store_dwordx4 v[{PK}:{PK+3}], v3, s[8:11], s33 offen sc1")
        out.append(f"buffer_store_dwordx4 v[{PK+4}:{PK+7}], v3, s[8:11], s33 offen offset:1024 sc1")
        return out
    pend=[]
    for i,(t,ks) in enumerate(reads):
        M=Ms[t]; acc=ACC[t&1]; r=XR+4*(i%NR)
        remaining=min(AHEAD-1, len(reads)-1-i)
        a(f"s_waitcnt lgkmcnt({remaining})")
        c='0' if ks==0 else f"v[{acc}:{acc+15}]"
        if M=='V': a(f"v_mfma_f32_32x32x16_bf16 v[{acc}:{acc+15}], v[{r}:{r+3}], {W(M,ks)}, {c}")
        else: a(f"v_mfma_f32_32x32x16_bf16 v[{acc}:{acc+15}], {W(M,ks)}, v[{r}:{r+3}], {c}")
        if i+AHEAD<len(reads): rd(i+AHEAD)
        if t>=1 and ks==0: pend=epi(t-1)
        if t>=1 and ks>=6 and pend: a(pend.pop(0))
        if t==0 and ks==31:
            a(f"""
            s_cmp_lg_u32 s6, 0
            s_cbranch_scc1 {lab}_nd
            s_waitcnt vmcnt(0)
            """)
            eval_polls()
            a(f"""
            v_mov_b32 v9, s38
            ds_write_b32 v4, v9 offset:4
            s_waitcnt lgkmcnt(0)
{lab}_nd:
            s_barrier
            """)
        if t==1 and ks==20:
            a("ds_read_b32 v11, v4 offset:4")
        if t==2 and ks==0:
            a(f"""
            s_waitcnt lgkmcnt(0)
            v_readfirstlane_b32 s38, v11
            s_mov_b32 s47, 0
            s_cmp_eq_u32 s38, 0
            s_cbranch_scc1 {lab}_nopf
            s_cmp_eq_u32 s38, 3
            s_cbranch_scc1 {lab}_nopf
            s_mov_b32 s47, 1
            """)
            take(38)
            for d in dma(50): a(d)
            a.label(lab+'_nopf')
    for x in epi(2): a(x)
    a(f"""
    s_waitcnt vmcnt(0)
    s_barrier
    s_cmp_lg_u32 s6, 0
    s_cbranch_scc1 {lab}_nf
    """)
    flagval(a,9)
    a("""
    v_lshlrev_b32 v8, 2, v0
    s_mov_b64 exec, 0xff
    buffer_store_dword v9, v8, s[8:11], s49 offen sc1
    s_mov_b64 exec, -1
    """)
    a(f"""
{lab}_nf:
    s_mov_b32 s42, s50
    s_cmp_eq_u32 s47, 0
    s_cbranch_scc1 {lab}_block
    s_mov_b32 s48, s44
    s_mov_b32 s49, s45
    s_branch {lab}_unit
{lab}_done:
    """)

def emit_AWO(a, cfg, fail):
    spin=cfg.get('spin',SPIN_DEFAULT)
    lab=a.new('AWO')
    a("""
    s_load_dwordx2 s[12:13], s[0:1], 16      ; A_wo
    s_waitcnt lgkmcnt(0)
    s_mov_b32 s14, 524288
    s_mov_b32 s15, 0x20000
    v_lshrrev_b32 v61, 5, v0
    v_and_b32 v60, 31, v0
    s_lshl_b32 s32, s5, 9
    """)
    for var in range(2):
        a(f"""
        v_add_u32 v62, {2*var}, v61
        v_lshlrev_b32 v62, 2, v62
        v_xor_b32 v62, v60, v62
        v_lshlrev_b32 v62, 4, v62
        v_lshl_add_u32 v62, v61, 10, v62
        v_add_u32 v{40+var}, s32, v62
        """)
    a("s_lshl_b32 s32, s6, 3")
    tr_addr32(a,44,'s32',512,lambda r,o: a(f"v_lshlrev_b32 v{o}, 2, v{r}"),0)
    a("v_xor_b32 v45, 64, v44\nv_add_u32 v46, 0x10000, v44\nv_add_u32 v47, 0x10000, v45")
    def wreg(T,ks,p):
        b=(T*32+ks)*4+2*p; return f"a[{b}:{b+1}]"
    for rnd in range(2):
        a(f"s_lshl_b32 s33, s6, 16\ns_add_u32 s33, s33, {rnd*256*1024}\ns_lshl_b32 s34, s6, 15")
        for n in range(32):
            a(f"s_add_u32 m0, s34, {2*n*512}\ns_add_u32 s35, s33, {2*n*1024}\nbuffer_load_dwordx4 v{40+(n&1)}, s[12:15], s35 offen lds")
        a("s_waitcnt vmcnt(0)\ns_barrier")
        for ksl in range(16):
            ks=16*rnd+ksl
            for T in range(2):
                for p in range(2):
                    off=(ksl&7)*16*512+p*8*512
                    a(f"ds_read_b64_tr_b16 {wreg(T,ks,p)}, v{44+T+(2 if ksl>=8 else 0)} offset:{off}")
            if ksl%2==1: a("s_waitcnt lgkmcnt(4)")
        a("s_waitcnt lgkmcnt(0)\ns_barrier")
    a(f"""
    v_lshlrev_b32 v1, 4, v0
    s_lshl_b32 s32, s6, 13
    v_add_u32 v2, s32, v1
    s_lshl_b32 s32, s5, 14
    s_lshl_b32 s33, s6, 12
    s_add_u32 s32, s32, s33
    v_add_u32 v3, s32, v1
    s_mul_i32 s32, s4, {6*64*32768}
    s_add_u32 s43, s32, {xs(T_OA1,0)}
    s_add_u32 s44, s32, {xs(T_YA1,0)}
    s_lshl_b32 s32, s4, 13
    s_add_u32 s45, s32, {WS_FLAG+FL_OA}
    s_lshl_b32 s33, s5, 2
    s_add_u32 s46, s32, {WS_FLAG+FL_YA}
    s_add_u32 s46, s46, s33
    s_mov_b32 s40, 0
{lab}_loop:
    """)
    wait_flags(a,lab+'w',32,'s45',fail,spin)
    for n in range(8):
        a(f"s_lshl_b32 s32, s6, 13\ns_add_u32 m0, s32, {(n>>2)*4096}\ns_add_u32 s33, s43, {(n>>2)*4096}\nbuffer_load_dwordx4 v2, s[8:11], s33 offen offset:{(n&3)*1024} sc1 lds")
    a("s_waitcnt vmcnt(0)\ns_barrier")
    XR=64; NR=8; AHEAD=6
    def rd(i): a(f"ds_read_b128 v[{XR+4*(i%NR)}:{XR+4*(i%NR)+3}], v1 offset:{i*1024}")
    for i in range(AHEAD): rd(i)
    for ks in range(32):
        r=XR+4*(ks%NR)
        a(f"s_waitcnt lgkmcnt({min(AHEAD-1,31-ks)})")
        for T in range(2):
            acc=32+16*T; c='0' if ks==0 else f"v[{acc}:{acc+15}]"
            b=(T*32+ks)*4
            a(f"v_mfma_f32_32x32x16_bf16 v[{acc}:{acc+15}], a[{b}:{b+3}], v[{r}:{r+3}], {c}")
        if ks+AHEAD<32: rd(ks+AHEAD)
    for T in range(2):
        pack_tile(a,32+16*T,96+8*T)
    for f in range(4):
        a(f"buffer_store_dwordx4 v[{96+4*f}:{99+4*f}], v3, s[8:11], s44 offen offset:{f*1024} sc1")
    a(f"""
    s_waitcnt vmcnt(0)
    s_barrier
    s_cmp_lg_u32 s6, 0
    s_cbranch_scc1 {lab}_nf
    """)
    set_flag(a,'s46')
    a(f"""
{lab}_nf:
    s_add_u32 s43, s43, 32768
    s_add_u32 s44, s44, 32768
    s_add_u32 s45, s45, 128
    s_add_u32 s46, s46, 128
    s_add_u32 s40, s40, 1
    s_cmp_lt_u32 s40, 64
    s_cbranch_scc1 {lab}_loop
    """)

def causal_masks(a, sbase, tmp=(60,61)):
    t0,t1=tmp
    a(f"""
    v_and_b32 v{t0}, 31, v0
    v_lshrrev_b32 v{t1}, 5, v0
    v_lshlrev_b32 v{t1}, 2, v{t1}
    v_sub_u32 v{t0}, v{t0}, v{t1}
    """)
    for r in range(16):
        k=8*(r>>2)+(r&3)
        a(f"v_cmp_le_i32 s[{sbase+2*r}:{sbase+2*r+1}], {k}, v{t0}")

def emit_AH(a, cfg, fail):
    spin=cfg.get('spin',SPIN_DEFAULT)
    lab=a.new('AH')
    RDY=98304+64
    a(f"""
    s_load_dwordx2 s[12:13], s[0:1], 8       ; A_wqkv [512][1536]
    s_waitcnt lgkmcnt(0)
    s_mov_b32 s14, {512*3072}
    s_mov_b32 s15, 0x20000
    v_lshrrev_b32 v61, 3, v0
    v_and_b32 v60, 7, v0
    v_bfe_u32 v62, v61, 1, 1
    v_lshlrev_b32 v62, 2, v62
    v_xor_b32 v62, v60, v62
    v_lshrrev_b32 v63, 1, v62
    v_min_u32 v63, 2, v63
    v_and_b32 v62, 1, v62
    v_lshlrev_b32 v62, 4, v62
    v_lshl_add_u32 v62, v63, 10, v62
    v_mul_u32_u24 v63, 3072, v61
    v_add_u32 v62, v62, v63
    s_lshl_b32 s32, s5, 5
    v_add_u32 v40, s32, v62
    """)
    a(f"s_mul_i32 s33, s6, {128*3072}\ns_lshl_b32 s34, s6, 14")
    for n in range(16):
        a(f"s_add_u32 m0, s34, {8*n*128}\ns_add_u32 s35, s33, {8*n*3072}\nbuffer_load_dwordx4 v40, s[12:15], s35 offen lds")
    a("s_waitcnt vmcnt(0)\ns_barrier\ns_mov_b32 s32, 0")
    def swz(r,o): a(f"v_lshrrev_b32 v{o}, 1, v{r}\nv_lshlrev_b32 v{o}, 2, v{o}")
    tr_addr32(a,44,'s32',128,swz,0)
    a("v_xor_b32 v45, 64, v44")
    for ks in range(32):
        for p in range(2):
            off=ks*16*128+p*8*128
            a(f"ds_read_b64_tr_b16 a[{4*ks+2*p}:{4*ks+2*p+1}], v44 offset:{off}")
            a(f"ds_read_b64_tr_b16 a[{128+4*ks+2*p}:{128+4*ks+2*p+1}], v45 offset:{off}")
        if ks%2==1: a("s_waitcnt lgkmcnt(4)")
    a("s_waitcnt lgkmcnt(0)\ns_barrier")
    a(f"""
    v_mov_b32 v1, {RDY}
    v_mov_b32 v2, 0
    s_lshl_b32 s32, s6, 2
    v_add_u32 v3, s32, v1
    s_xor_b32 s33, s32, 4
    v_add_u32 v4, s33, v1
    ds_write_b32 v3, v2
    s_waitcnt lgkmcnt(0)
    s_barrier
    v_lshlrev_b32 v1, 4, v0                  ; lane*16
    s_lshr_b32 s40, s6, 1                    ; layer
    s_and_b32 s41, s6, 1                     ; unit s
    s_mul_i32 s42, s40, 49152
    s_mul_i32 s32, s40, {6*64*32768}
    s_add_u32 s43, s32, {xs(T_XNA1,0)}
    s_add_u32 s44, s32, {xs(T_OA1,0)}
    s_lshl_b32 s33, s5, 10
    s_add_u32 s44, s44, s33                  ; + h*1024
    s_lshl_b32 s32, s40, 14
    s_add_u32 s45, s32, {WS_FLAG+FL_XN}      ; (2l)*64*128
    s_lshl_b32 s32, s40, 13
    s_add_u32 s46, s32, {WS_FLAG+FL_OA}
    s_lshl_b32 s33, s5, 2
    s_add_u32 s46, s46, s33
    s_lshl_b32 s32, s41, 15
    s_add_u32 s43, s43, s32
    s_add_u32 s44, s44, s32
    s_lshl_b32 s32, s41, 7
    s_add_u32 s45, s45, s32
    s_add_u32 s46, s46, s32
    v_and_b32 v5, 31, v0
    v_cmp_le_u32 s[62:63], 16, v5
    v_mov_b32 v6, 0x3f803f80
    v_mov_b32 v7, 0xff7fffff                 ; -FLT_MAX
    s_mov_b32 s47, 0x3eb8aa3b                ; 0.25*log2(e)
    """)
    causal_masks(a,64)
    a.label(lab+'_loop')
    wait_flags(a,lab+'w',8,'s45',fail,spin)
    XB=64
    for g in range(8):
        a(f"s_add_u32 s32, s43, {g*4096}")
        for j in range(4):
            ks=4*g+j
            a(f"buffer_load_dwordx4 v[{XB+4*ks}:{XB+4*ks+3}], v1, s[8:11], s32 offen offset:{j*1024} sc1")
    for ks in range(32):
        a(f"s_waitcnt vmcnt({31-ks})")
        c0='0' if ks==0 else 'v[32:47]'; c1='0' if ks==0 else 'v[48:63]'
        a(f"v_mfma_f32_32x32x16_bf16 v[32:47], a[{4*ks}:{4*ks+3}], v[{XB+4*ks}:{XB+4*ks+3}], {c0}")
        a(f"v_mfma_f32_32x32x16_bf16 v[48:63], v[{XB+4*ks}:{XB+4*ks+3}], a[{128+4*ks}:{128+4*ks+3}], {c1}")
    for i in range(4): a(f"v_cvt_pk_bf16_f32 v{8+i}, v{32+2*i}, v{33+2*i}")
    for i in range(4): a(f"v_cvt_pk_bf16_f32 v{12+i}, v{40+2*i}, v{41+2*i}")
    for i in range(8): a(f"v_cvt_pk_bf16_f32 v{16+i}, v{48+2*i}, v{49+2*i}")
    for i in range(8): a(f"v_cndmask_b32 v{16+i}, v{16+i}, v6, s[62:63]")
    a(f"""
    s_and_b32 s32, s41, 15
    s_mul_i32 s32, s32, 3072
    s_add_u32 s32, s32, s42
    v_add_u32 v24, s32, v1
    ds_write_b128 v24, v[12:15]
    ds_write_b128 v24, v[16:19] offset:1024
    ds_write_b128 v24, v[20:23] offset:2048
    s_add_u32 s33, s41, 1
    v_mov_b32 v25, s33
    s_waitcnt lgkmcnt(0)
    ds_write_b32 v3, v25
    s_mov_b32 s48, 0
{lab}_pw:
    ds_read_b32 v26, v4
    s_waitcnt lgkmcnt(0)
    v_readfirstlane_b32 s49, v26
    s_cmp_ge_u32 s49, s41
    s_cbranch_scc1 {lab}_pok
    s_add_u32 s48, s48, 1
    s_cmp_gt_u32 s48, {spin*8}
    s_cbranch_scc1 {fail}
    s_sleep 1
    s_branch {lab}_pw
{lab}_pok:
    """)
    SB=64
    for b in range(9):
        L=f"{lab}_b{b}"
        a(f"""
        s_add_u32 s32, s41, {b}
        s_cmp_lt_u32 s32, 8
        s_cbranch_scc1 {L}_inv
        s_sub_u32 s32, s32, 8
        s_and_b32 s32, s32, 15
        s_mul_i32 s32, s32, 3072
        s_add_u32 s{50+b}, s32, s42
        v_add_u32 v24, s{50+b}, v1
        ds_read_b128 v[28:31], v24
        s_waitcnt lgkmcnt(0)
        v_mfma_f32_32x32x16_bf16 v[{SB+16*b}:{SB+16*b+15}], v[28:31], v[8:11], 0
        s_branch {L}_e
{L}_inv:
        s_mov_b32 s{50+b}, s42
        """)
        for r in range(16): a(f"v_mov_b32 v{SB+16*b+r}, v7")
        a.label(L+'_e')
    for r in range(16): a(f"v_cndmask_b32 v{SB+128+r}, v7, v{SB+128+r}, s[{64+2*r}:{65+2*r}]")
    for r in range(16): a(f"v_cndmask_b32 v{SB+r}, v{SB+r}, v7, s[{64+2*r}:{65+2*r}]")
    a(f"v_max3_f32 v24, v{SB}, v{SB+1}, v{SB+2}\nv_max3_f32 v25, v{SB+3}, v{SB+4}, v{SB+5}")
    i=6
    while i<144:
        a(f"v_max3_f32 v24, v24, v{SB+i}, v{SB+i+1}"); i+=2
        if i<144: a(f"v_max3_f32 v25, v25, v{SB+i}, v{SB+i+1}"); i+=2
    a(f"""
    v_max_f32 v24, v24, v25
    v_mov_b32 v25, v24
    v_permlane32_swap_b32 v24, v25
    v_max_f32 v24, v24, v25
    v_mul_f32 v24, s47, v24
    """)
    for b in range(9):
        for r in range(16): a(f"v_fma_f32 v{SB+16*b+r}, v{SB+16*b+r}, s47, -v24")
        for r in range(16): a(f"v_exp_f32 v{SB+16*b+r}, v{SB+16*b+r}")
        a(f"v_add_u32 v26, s{50+b}, v1\nds_read_b128 v[28:31], v26 offset:1024\nds_read_b128 v[208:211], v26 offset:2048")
        for i in range(8): a(f"v_cvt_pk_bf16_f32 v{SB+16*b+i}, v{SB+16*b+2*i}, v{SB+16*b+2*i+1}")
        c='0' if b==0 else 'v[32:47]'
        a(f"""
        s_waitcnt lgkmcnt(0)
        v_mfma_f32_32x32x16_bf16 v[32:47], v[28:31], v[{SB+16*b}:{SB+16*b+3}], {c}
        v_mfma_f32_32x32x16_bf16 v[32:47], v[208:211], v[{SB+16*b+4}:{SB+16*b+7}], v[32:47]
        """)
    a("v_rcp_f32 v24, v40")
    for r in range(8): a(f"v_mul_f32 v{32+r}, v{32+r}, v24")
    for i in range(4): a(f"v_cvt_pk_bf16_f32 v{8+i}, v{32+2*i}, v{33+2*i}")
    a(f"""
    buffer_store_dwordx4 v[8:11], v1, s[8:11], s44 offen sc1
    s_waitcnt vmcnt(0)
    """)
    set_flag(a,'s46')
    a(f"""
    s_add_u32 s43, s43, 65536
    s_add_u32 s44, s44, 65536
    s_add_u32 s45, s45, 256
    s_add_u32 s46, s46, 256
    s_add_u32 s41, s41, 2
    s_cmp_lt_u32 s41, 64
    s_cbranch_scc1 {lab}_loop
    """)

def emit_ATT(a, cfg, fail):
    spin=cfg.get('spin',SPIN_DEFAULT)
    lab=a.new('ATT')
    a(f"""
    s_lshl_b32 s40, s5, 2
    s_add_u32 s40, s40, s6                   ; head
    s_lshl_b32 s32, s4, 11
    s_add_u32 s32, s32, s40                  ; (l*64)*32 + h
    s_mul_i32 s43, s32, {QKV_BLK}
    s_lshl_b32 s44, s32, 12
    s_add_u32 s44, s44, {WS_KM}
    s_lshl_b32 s45, s32, 4
    s_add_u32 s45, s45, {WS_FLAG+FL_CH}
    s_lshl_b32 s33, s4, 13
    s_lshl_b32 s34, s40, 2
    s_add_u32 s46, s33, s34
    s_add_u32 s46, s46, {WS_FLAG+FL_OB}
    s_lshl_b32 s33, s4, 24                   ; l*64*256K
    s_lshl_b32 s34, s40, 13
    s_add_u32 s47, s33, s34
    s_add_u32 s47, s47, {WS_OB}
    s_lshl_b32 s42, s6, 12
    v_lshlrev_b32 v1, 4, v0
    v_lshrrev_b32 v60, 5, v0
    v_and_b32 v61, 7, v0
    v_lshlrev_b32 v2, 4, v61
    v_lshl_add_u32 v2, v60, 7, v2
    v_add_u32 v2, s42, v2
    v_and_b32 v61, 31, v0
    v_lshlrev_b32 v3, 4, v61
    v_lshl_add_u32 v3, v60, 3, v3
    v_add_u32 v3, s42, v3
    v_mov_b32 v7, 0xff7fffff
    v_mov_b32 v12, 0x3f803f80
    v_mov_b32 v13, 0x3f803f80
    v_mov_b32 v14, 0x3f803f80
    v_mov_b32 v15, 0x3f803f80
    s_mov_b32 s48, 0x3e0293ee                ; 128^-0.5*log2e
    s_mov_b32 s41, 0
    """)
    causal_masks(a,64)
    a.label(lab+'_loop')
    wait_flags(a,lab+'w',4,'s45',fail,spin)
    a(f"s_mov_b32 m0, s42")
    for j in range(4): a(f"buffer_load_dwordx4 v1, s[8:11], s44 offen offset:{j*1024} sc1 lds")
    Q=64; K=96; V=128; KM=160
    for blk,reg in ((1,K),(0,Q),(2,V)):
        for g in range(2):
            a(f"s_add_u32 s32, s43, {blk*8192+g*4096}")
            for j in range(4):
                r=reg+4*(4*g+j)
                a(f"buffer_load_dwordx4 v[{r}:{r+3}], v1, s[8:11], s32 offen offset:{j*1024} sc1")
    a("s_waitcnt vmcnt(24)")
    for ks in range(8): a(f"ds_read_b128 v[{KM+4*ks}:{KM+4*ks+3}], v2 offset:{ks*256}")
    VM=192
    for W_ in range(4):
        a(f"ds_read_b64 v[{VM+4*W_}:{VM+4*W_+1}], v3 offset:{2048+W_*512}\nv_mov_b32 v{VM+4*W_+2}, 0\nv_mov_b32 v{VM+4*W_+3}, 0")
    a("s_waitcnt vmcnt(8) lgkmcnt(0)")
    for ks in range(8):
        c0='0' if ks==0 else 'v[32:47]'; c1='0' if ks==0 else 'v[48:63]'
        a(f"v_mfma_f32_32x32x16_bf16 v[32:47], v[{K+4*ks}:{K+4*ks+3}], v[{Q+4*ks}:{Q+4*ks+3}], {c0}")
        a(f"v_mfma_f32_32x32x16_bf16 v[48:63], v[{KM+4*ks}:{KM+4*ks+3}], v[{Q+4*ks}:{Q+4*ks+3}], {c1}")
    for r in range(16): a(f"v_cndmask_b32 v{32+r}, v7, v{32+r}, s[{64+2*r}:{65+2*r}]")
    a("v_max3_f32 v24, v32, v33, v34\nv_max3_f32 v25, v35, v36, v37")
    a("""
    v_max3_f32 v24, v24, v38, v39
    v_max3_f32 v25, v25, v40, v41
    v_max3_f32 v24, v24, v42, v43
    v_max3_f32 v25, v25, v44, v45
    v_max3_f32 v24, v24, v46, v47
    v_max3_f32 v25, v25, v48, v49
    v_max3_f32 v24, v24, v50, v51
    v_max_f32 v24, v24, v25
    v_mov_b32 v25, v24
    v_permlane32_swap_b32 v24, v25
    v_max_f32 v24, v24, v25
    v_mul_f32 v24, s48, v24
    """)
    for r in range(20): a(f"v_fma_f32 v{32+r}, v{32+r}, s48, -v24")
    for r in range(20): a(f"v_exp_f32 v{32+r}, v{32+r}")
    for i in range(8): a(f"v_cvt_pk_bf16_f32 v{16+i}, v{32+2*i}, v{33+2*i}")
    a("""
    v_cvt_pk_bf16_f32 v8, v48, v49
    v_cvt_pk_bf16_f32 v9, v50, v51
    v_mov_b32 v10, 0
    v_mov_b32 v11, 0
    s_waitcnt vmcnt(0)
    v_mfma_f32_32x32x16_bf16 v[32:47], v[12:15], v[16:19], 0
    v_mfma_f32_32x32x16_bf16 v[32:47], v[12:15], v[20:23], v[32:47]
    v_mfma_f32_32x32x16_bf16 v[32:47], v[12:15], v[8:11], v[32:47]
    """)
    O=160
    OT=[160,176,208,224]
    for W_ in range(4):
        o=OT[W_]
        a(f"v_mfma_f32_32x32x16_bf16 v[{o}:{o+15}], v[{V+8*W_}:{V+8*W_+3}], v[16:19], 0")
        a(f"v_mfma_f32_32x32x16_bf16 v[{o}:{o+15}], v[{V+8*W_+4}:{V+8*W_+7}], v[20:23], v[{o}:{o+15}]")
        a(f"v_mfma_f32_32x32x16_bf16 v[{o}:{o+15}], v[{VM+4*W_}:{VM+4*W_+3}], v[8:11], v[{o}:{o+15}]")
    a("v_rcp_f32 v24, v32")
    for W_ in range(4):
        o=OT[W_]
        for r in range(16): a(f"v_mul_f32 v{o+r}, v{o+r}, v24")
        for i in range(8): a(f"v_cvt_pk_bf16_f32 v{Q+8*W_+i}, v{o+2*i}, v{o+2*i+1}")
        if W_==2: a("s_add_u32 s32, s47, 4096")
        for f in range(2):
            fi=2*W_+f
            a(f"buffer_store_dwordx4 v[{Q+4*fi}:{Q+4*fi+3}], v1, s[8:11], {'s47' if fi<4 else 's32'} offen offset:{(fi&3)*1024} sc1")
    a("s_waitcnt vmcnt(0)")
    set_flag(a,'s46')
    a(f"""
    s_add_u32 s43, s43, {32*QKV_BLK}
    s_add_u32 s44, s44, {32*4096}
    s_add_u32 s45, s45, 512
    s_add_u32 s46, s46, 128
    s_add_u32 s47, s47, 262144
    s_add_u32 s41, s41, 1
    s_cmp_lt_u32 s41, 64
    s_cbranch_scc1 {lab}_loop
    """)

def emit_O(a, cfg, fail):
    spin=cfg.get('spin',SPIN_DEFAULT)
    lab=a.new('O')
    a(f"""
    s_load_dwordx2 s[12:13], s[0:1], 64      ; B_Wo [4096][512]
    s_waitcnt lgkmcnt(0)
    s_mov_b32 s14, 4194304
    s_mov_b32 s15, 0x20000
    s_lshr_b32 s40, s5, 3                    ; kh
    s_and_b32 s41, s5, 7                     ; nq
    v_lshrrev_b32 v61, 3, v0                 ; row_local
    v_and_b32 v60, 7, v0
    v_bfe_u32 v62, v61, 1, 1
    v_lshlrev_b32 v62, 2, v62
    v_xor_b32 v62, v60, v62
    v_lshlrev_b32 v62, 4, v62
    v_lshl_add_u32 v62, v61, 10, v62
    s_lshl_b32 s32, s41, 7
    v_add_u32 v40, s32, v62
    s_mov_b32 s32, 0
    """)
    def swz(r,o): a(f"v_lshrrev_b32 v{o}, 1, v{r}\nv_lshlrev_b32 v{o}, 2, v{o}")
    tr_addr32(a,44,'s32',128,swz,0)
    a("s_lshl_b32 s34, s6, 15\nv_add_u32 v44, s34, v44\nv_xor_b32 v45, 64, v44")
    for rnd in range(2):
        a(f"s_lshl_b32 s33, s40, 21\ns_lshl_b32 s35, s6, 19\ns_add_u32 s33, s33, s35\ns_add_u32 s33, s33, {rnd*256*1024}")
        for n in range(32):
            a(f"s_add_u32 m0, s34, {8*n*128}\ns_add_u32 s35, s33, {8*n*1024}\nbuffer_load_dwordx4 v40, s[12:15], s35 offen lds")
        a("s_waitcnt vmcnt(0)")
        for ksl in range(16):
            ks=16*rnd+ksl
            for T in range(2):
                for p in range(2):
                    b=(T*32+ks)*4+2*p
                    a(f"ds_read_b64_tr_b16 a[{b}:{b+1}], v{44+T} offset:{ksl*2048+p*1024}")
            if ksl%2==1: a("s_waitcnt lgkmcnt(4)")
        a("s_waitcnt lgkmcnt(0)")
    a(f"""
    s_barrier
    v_lshlrev_b32 v1, 4, v0
    s_lshl_b32 s32, s4, 24
    s_lshl_b32 s33, s40, 17
    s_lshl_b32 s34, s6, 15
    s_add_u32 s43, s32, s33
    s_add_u32 s43, s43, s34
    s_add_u32 s43, s43, {WS_OB}
    s_lshl_b32 s32, s4, 23                   ; l*64*128K
    s_lshl_b32 s33, s40, 15
    s_lshl_b32 s34, s41, 12
    s_add_u32 s44, s32, s33
    s_add_u32 s44, s44, s34
    s_lshl_b32 s34, s6, 10
    s_add_u32 s44, s44, s34
    s_add_u32 s44, s44, {WS_PO}
    s_lshl_b32 s32, s4, 13
    s_lshl_b32 s33, s40, 6
    s_lshl_b32 s34, s6, 4
    s_add_u32 s45, s32, s33
    s_add_u32 s45, s45, s34
    s_add_u32 s45, s45, {WS_FLAG+FL_OB}
    s_lshl_b32 s33, s5, 2
    s_add_u32 s46, s32, s33
    s_add_u32 s46, s46, {WS_FLAG+FL_PO}
    s_lshl_b32 s32, s6, 13
    v_add_u32 v2, s32, v1
    s_lshl_b32 s32, s6, 11
    v_add_u32 v3, s32, v1
    s_mov_b32 s47, 0
{lab}_loop:
    """)
    wait_flags(a,lab+'w',4,'s45',fail,spin)
    XB=64
    for g in range(8):
        a(f"s_add_u32 s32, s43, {g*4096}")
        for j in range(4):
            ks=4*g+j
            a(f"buffer_load_dwordx4 v[{XB+4*ks}:{XB+4*ks+3}], v1, s[8:11], s32 offen offset:{j*1024} sc1")
    for ks in range(32):
        a(f"s_waitcnt vmcnt({31-ks})")
        for T in range(2):
            acc=32+16*T; c='0' if ks==0 else f"v[{acc}:{acc+15}]"; b=(T*32+ks)*4
            a(f"v_mfma_f32_32x32x16_bf16 v[{acc}:{acc+15}], a[{b}:{b+3}], v[{XB+4*ks}:{XB+4*ks+3}], {c}")
    for q in range(8): a(f"ds_write_b128 v2, v[{32+4*q}:{35+4*q}] offset:{q*1024}")
    a("s_waitcnt lgkmcnt(0)\ns_barrier")
    for w in range(4):
        for q in range(2): a(f"ds_read_b128 v[{64+8*w+4*q}:{67+8*w+4*q}], v3 offset:{w*8192+q*1024}")
    a("s_waitcnt lgkmcnt(0)")
    for r in range(0,8,2):
        a(f"v_pk_add_f32 v[{64+r}:{65+r}], v[{64+r}:{65+r}], v[{72+r}:{73+r}]\nv_pk_add_f32 v[{80+r}:{81+r}], v[{80+r}:{81+r}], v[{88+r}:{89+r}]")
    for r in range(0,8,2):
        a(f"v_pk_add_f32 v[{64+r}:{65+r}], v[{64+r}:{65+r}], v[{80+r}:{81+r}]")
    for i in range(4): a(f"v_cvt_pk_bf16_f32 v{8+i}, v{64+2*i}, v{65+2*i}")
    a(f"""
    buffer_store_dwordx4 v[8:11], v1, s[8:11], s44 offen sc1
    s_waitcnt vmcnt(0)
    s_barrier
    s_cmp_lg_u32 s6, 0
    s_cbranch_scc1 {lab}_nf
    """)
    set_flag(a,'s46')
    a(f"""
{lab}_nf:
    s_add_u32 s43, s43, 262144
    s_add_u32 s44, s44, 131072
    s_add_u32 s45, s45, 128
    s_add_u32 s46, s46, 128
    s_add_u32 s47, s47, 1
    s_cmp_lt_u32 s47, 64
    s_cbranch_scc1 {lab}_loop
    """)

TSP=False
def tsp(a, role, k, unit_sreg, cond_sregs=()):
    if not TSP: return
    L=a.new('tsp')
    for c in cond_sregs: a(f"s_cmp_lg_u32 {c}, 0\ns_cbranch_scc1 {L}")
    a(f"""
    s_memrealtime s[98:99]
    s_lshl_b32 s97, {unit_sreg}, 6
    s_add_u32 s97, s97, {0xCC00000+role*0x10000+k*4}
    s_waitcnt lgkmcnt(0)
    v_mov_b32 v248, s98
    v_mov_b32 v249, 0
    s_mov_b64 exec, 1
    buffer_store_dword v248, v249, s[8:11], s97 offen
    s_mov_b64 exec, -1
{L}:
    """)
```

```python
from common import *
import roles
from roles import wait_flags, set_flag, flagval, tr_addr32, pack_tile, causal_masks, SPIN_DEFAULT
from roles2 import poll_issue
NXN=16
NYA=16

def dma_list(n, shift, bufreg):
    out=[]
    for i in range(n):
        pre=''
        if i==0: pre+=f"s_lshl_b32 s53, s6, {shift}\ns_add_u32 s53, s53, {bufreg}\n"
        if i%4==0: pre+=f"s_add_u32 m0, s53, {(i>>2)*4096}\ns_add_u32 s33, s43, {(i>>2)*4096}\n"
        out.append(pre+f"buffer_load_dwordx4 v2, s[8:11], s33 offen offset:{(i&3)*1024} sc1 lds")
    return out

def gemm_loop(a, lab, nks, mf, rd, AHEAD, chk_ks, emit_check, dl, extra=None):
    def step(ks):
        a(f"s_waitcnt lgkmcnt({min(AHEAD-1,nks-1-ks)})")
        mf(ks)
        if ks+AHEAD<nks: rd(ks+AHEAD)
        if extra: extra(ks)
    for ks in range(chk_ks+1): step(ks)
    emit_check()
    L=a.new(lab+'v')
    n=len(dl)
    a(f"s_cmp_eq_u32 s48, 0\ns_cbranch_scc1 {L}_n")
    for j in range(n):
        step(chk_ks+1+j); a(dl[j])
    a(f"s_branch {L}_e\n{L}_n:")
    for j in range(n): step(chk_ks+1+j)
    a.label(L+'_e')
    for ks in range(chk_ks+1+n,nks): step(ks)

def emit_F(a, cfg, typ, fail):
    spin=cfg.get('spin',SPIN_DEFAULT)
    lab=a.new('F'+typ)
    npart={'T0':0,'T1':1,'T2':4,'T3':4}[typ]
    nfl={'T0':0,'T1':NYA,'T2':64,'T3':64}[typ]
    flstep={'T0':0,'T1':128,'T2':256,'T3':256}[typ]
    a(f"""
    v_and_b32 v1, 7, v0
    v_bfe_u32 v2, v0, 3, 1
    v_lshrrev_b32 v3, 4, v0
    v_lshlrev_b32 v4, 4, v1
    v_lshl_add_u32 v4, v2, 9, v4
    v_lshl_add_u32 v4, v3, 10, v4
    s_lshl_b32 s12, s6, 13
    s_lshl_b32 s13, s5, 7
    s_add_u32 s12, s12, s13
    v_add_u32 v4, s12, v4
    s_lshl_b32 s13, s5, 3
    v_add_u32 v5, s13, v1
    v_lshlrev_b32 v5, 10, v5
    v_lshl_add_u32 v5, v3, 5, v5
    v_lshl_add_u32 v5, v2, 4, v5
    s_lshl_b32 s13, s6, 8
    v_add_u32 v5, s13, v5
    v_lshlrev_b32 v6, 3, v1
    s_lshl_b32 s13, s6, 6
    v_add_u32 v7, s13, v6
    """)
    if typ=='T0':
        a(f"""
        s_load_dwordx2 s[16:17], s[0:1], 0
        s_waitcnt lgkmcnt(0)
        s_mov_b32 s18, {2048*1024}
        s_mov_b32 s19, 0x20000
        s_mov_b32 s20, 0
        s_mov_b32 s22, {xs(T_X0,0)}
        s_mov_b32 s23, {xs(T_XNA1,0)}
        s_mov_b32 s24, {WS_FLAG+FL_XN+0*64*128}
        """)
    elif typ=='T1':
        a(f"""
        s_mul_i32 s13, s4, {6*64*32768}
        s_add_u32 s20, s13, {xs(T_X0,0)}
        s_add_u32 s21, s13, {xs(T_YA1,0)}
        s_add_u32 s22, s13, {xs(T_X1,0)}
        s_add_u32 s23, s13, {xs(T_XNB1,0)}
        s_lshl_b32 s13, s4, 14
        s_add_u32 s24, s13, {WS_FLAG+FL_XN+1*64*128}
        s_lshl_b32 s13, s4, 13
        s_add_u32 s25, s13, {WS_FLAG+FL_YA}
        """)
    elif typ=='T2':
        a(f"""
        s_mov_b32 s20, {xs(T_X1,0)}
        s_mov_b32 s21, {WS_PO}
        s_mov_b32 s22, {xs(T_X2,0)}
        s_mov_b32 s23, {xs(T_XNA2,0)}
        s_mov_b32 s24, {WS_FLAG+FL_XN+2*64*128}
        s_mov_b32 s25, {WS_FLAG+FL_PO}
        """)
    else:
        a(f"""
        s_load_dwordx2 s[16:17], s[0:1], 80
        s_waitcnt lgkmcnt(0)
        s_mov_b32 s18, {2048*1024}
        s_mov_b32 s19, 0x20000
        s_mov_b32 s20, {xs(T_X3,0)}
        s_mov_b32 s21, {WS_PO+64*131072}
        s_mov_b32 s22, 0
        s_mov_b32 s25, {WS_FLAG+FL_PO+64*256}
        """)
    a(f"""
    s_lshl_b32 s13, s5, 4
    s_lshl_b32 s14, s6, 2
    s_add_u32 s13, s13, s14
    {'s_add_u32 s24, s24, s13' if typ!='T3' else ''}
    s_mov_b32 s26, 0
    v_mov_b32 v8, 0x3f803f80
    s_mov_b32 s27, 0xffff0000
    s_mov_b32 s30, 0
    s_mov_b32 s31, 0
    """)
    SETS=[(16,24),(64,72)]
    W=112
    NS={'T0':4,'T1':4,'T2':4,'T3':2}[typ]
    def xchg(X):
        for j in range(2):
            b=X+4*j
            for d in range(2):
                a(f"""
                v_mov_b32 v12, v{b+d}
                s_nop 1
                v_mov_b32_dpp v{b+d}, v{b+2+d} row_shr:8 row_mask:0xf bank_mask:0xc
                v_mov_b32_dpp v{b+2+d}, v12 row_shl:8 row_mask:0xf bank_mask:0x3
                """)
    def loads(st):
        X,P0=SETS[st]
        if typ=='T0':
            for j in range(2): a(f"buffer_load_dwordx4 v[{X+4*j}:{X+4*j+3}], v5, s[16:19], s20 offen offset:{128*j}")
            a("s_add_u32 s20, s20, 32768")
        else:
            for p in range(npart):
                for j in range(2):
                    a(f"s_add_u32 s13, s21, {p*32768+j*4096}\nbuffer_load_dwordx4 v[{P0+8*p+4*j}:{P0+8*p+4*j+3}], v4, s[8:11], s13 offen sc1")
            for j in range(2):
                a(f"s_add_u32 s13, s20, {j*4096}\nbuffer_load_dwordx4 v[{X+4*j}:{X+4*j+3}], v4, s[8:11], s13 offen sc1")
            a(f"s_add_u32 s20, s20, 32768\ns_add_u32 s21, s21, {32768 if typ=='T1' else 131072}\ns_add_u32 s25, s25, {flstep}")
    def flag_prev():
        if typ=='T3': return
        set_flag(a,'s24')
        a("s_add_u32 s24, s24, 128")
    if nfl: wait_flags(a,lab+'w0',nfl,'s25',fail,spin)
    loads(0)
    def iteration(st):
        X,P0=SETS[st]; L=f"{lab}_i{st}"
        a.label(L)
        if nfl: poll_issue(a,nfl,'s25',10,9)
        np_=1 if nfl else 0
        a(f"""
        s_cmp_eq_u32 s31, 0
        s_cbranch_scc1 {L}_w1
        s_waitcnt vmcnt({NS+np_})
        s_branch {L}_w2
{L}_w1:
        s_waitcnt vmcnt({np_})
{L}_w2:
        """)
        if typ=='T0': xchg(X)
        else:
            for r in range(8):
                w0=W+2*r
                if npart==4:
                    a(f"""
                    v_lshlrev_b32 v{w0}, 16, v{P0+r}
                    v_and_b32 v{w0+1}, s27, v{P0+r}
                    v_lshlrev_b32 v12, 16, v{P0+8+r}
                    v_and_b32 v13, s27, v{P0+8+r}
                    v_lshlrev_b32 v14, 16, v{P0+16+r}
                    v_and_b32 v15, s27, v{P0+16+r}
                    v_pk_add_f32 v[{w0}:{w0+1}], v[{w0}:{w0+1}], v[12:13]
                    v_lshlrev_b32 v12, 16, v{P0+24+r}
                    v_and_b32 v13, s27, v{P0+24+r}
                    v_pk_add_f32 v[14:15], v[14:15], v[12:13]
                    v_pk_add_f32 v[{w0}:{w0+1}], v[{w0}:{w0+1}], v[14:15]
                    v_cvt_pk_bf16_f32 v{P0+r}, v{w0}, v{w0+1}
                    """)
                a(f"""
                v_lshlrev_b32 v{w0}, 16, v{P0+r}
                v_and_b32 v{w0+1}, s27, v{P0+r}
                v_lshlrev_b32 v12, 16, v{X+r}
                v_and_b32 v13, s27, v{X+r}
                v_pk_add_f32 v[{w0}:{w0+1}], v[{w0}:{w0+1}], v[12:13]
                v_cvt_pk_bf16_f32 v{X+r}, v{w0}, v{w0+1}
                """)
        def prefetch():
            a(f"""
            s_mov_b32 s31, 0
            s_cmp_ge_u32 s26, 63
            s_cbranch_scc1 {L}_np
            """)
            if nfl: a(f"v_cmp_eq_u32 vcc, 0, v9\ns_cbranch_vccnz {L}_np")
            a("s_mov_b32 s31, 1")
            loads(1-st)
            a.label(L+'_np')
        if typ=='T3':
            xchg(X)
            for j in range(2): a(f"buffer_store_dwordx4 v[{X+4*j}:{X+4*j+3}], v5, s[16:19], s22 offen offset:{128*j}")
            a("s_add_u32 s22, s22, 32768")
            a("s_waitcnt vmcnt(2)")
            prefetch()
            a(f"""
            s_add_u32 s26, s26, 1
            s_cmp_eq_u32 s31, 1
            s_cbranch_scc0 {L}_slow
            s_mov_b32 s31, 0
            s_branch {lab}_i{1-st}
{L}_slow:
            s_cmp_ge_u32 s26, 64
            s_cbranch_scc1 {lab}_done
            """)
            wait_flags(a,L+'ws',nfl,'s25',fail,spin)
            loads(1-st)
            if st==1: a(f"s_branch {lab}_i0")
            return
        if nfl: a("s_waitcnt vmcnt(0)")
        prefetch()
        a("s_add_u32 s13, s22, 4096")
        for j in range(2):
            a(f"buffer_store_dwordx4 v[{X+4*j}:{X+4*j+3}], v4, s[8:11], {'s22' if j==0 else 's13'} offen sc1")
        a("v_mov_b32 v12, 0\nv_mov_b32 v13, 0\nv_mov_b32 v14, 0\nv_mov_b32 v15, 0")
        for r in range(0,8,2):
            a(f"v_dot2_f32_bf16 v12, v{X+r}, v8, v12\nv_dot2_f32_bf16 v13, v{X+r}, v{X+r}, v13\nv_dot2_f32_bf16 v14, v{X+r+1}, v8, v14\nv_dot2_f32_bf16 v15, v{X+r+1}, v{X+r+1}, v15")
        a(f"""
        v_pk_add_f32 v[12:13], v[12:13], v[14:15]
        s_nop 1
        v_add_f32_dpp v12, v12, v12 row_ror:8 row_mask:0xf bank_mask:0xf
        v_add_f32_dpp v13, v13, v13 row_ror:8 row_mask:0xf bank_mask:0xf
        v_mov_b32 v10, v12
        v_mov_b32 v11, v13
        v_permlane16_swap_b32 v12, v10
        v_permlane16_swap_b32 v13, v11
        v_pk_add_f32 v[12:13], v[12:13], v[10:11]
        v_mov_b32 v10, v12
        v_mov_b32 v11, v13
        v_permlane32_swap_b32 v12, v10
        v_permlane32_swap_b32 v13, v11
        v_pk_add_f32 v[12:13], v[12:13], v[10:11]
        s_mov_b64 exec, 0xff
        ds_write_b64 v7, v[12:13] offset:{256*st}
        s_mov_b64 exec, -1
        s_waitcnt lgkmcnt(0)
        s_barrier
        ds_read_b64 v[10:11], v6 offset:{256*st}
        ds_read_b64 v[12:13], v6 offset:{256*st+64}
        ds_read_b64 v[14:15], v6 offset:{256*st+128}
        ds_read_b64 v[{W}:{W+1}], v6 offset:{256*st+192}
        s_waitcnt lgkmcnt(0)
        v_pk_add_f32 v[10:11], v[10:11], v[12:13]
        v_pk_add_f32 v[14:15], v[14:15], v[{W}:{W+1}]
        v_pk_add_f32 v[10:11], v[10:11], v[14:15]
        v_mul_f32 v10, 0x3b000000, v10
        v_mul_f32 v11, 0x3b000000, v11
        v_fma_f32 v11, -v10, v10, v11
        v_max_f32 v11, 0, v11
        v_cvt_pk_bf16_f32 v14, v10, v11
        v_lshlrev_b32 v12, 16, v14
        v_and_b32 v11, s27, v14
        v_add_f32 v11, 0x3727c5ac, v11
        v_cvt_pk_bf16_f32 v11, v11, v11
        v_and_b32 v11, s27, v11
        v_sqrt_f32 v11, v11
        v_mov_b32 v13, v12
        v_cvt_pk_bf16_f32 v11, v11, v11
        v_and_b32 v11, s27, v11
        v_rcp_f32 v14, v11
        s_nop 0
        v_mov_b32 v15, v14
        """)
        for r in range(8):
            w0=W+2*r
            a(f"""
            v_lshlrev_b32 v{w0}, 16, v{X+r}
            v_and_b32 v{w0+1}, s27, v{X+r}
            v_pk_add_f32 v[{w0}:{w0+1}], v[{w0}:{w0+1}], v[12:13] neg_lo:[0,1] neg_hi:[0,1]
            v_cvt_pk_bf16_f32 v{P0+r}, v{w0}, v{w0+1}
            v_lshlrev_b32 v{w0}, 16, v{P0+r}
            v_and_b32 v{w0+1}, s27, v{P0+r}
            v_pk_mul_f32 v[{w0}:{w0+1}], v[{w0}:{w0+1}], v[14:15]
            v_cvt_pk_bf16_f32 v{P0+r}, v{w0}, v{w0+1}
            """)
        a("s_add_u32 s13, s23, 4096")
        for j in range(2):
            a(f"buffer_store_dwordx4 v[{P0+4*j}:{P0+4*j+3}], v4, s[8:11], {'s23' if j==0 else 's13'} offen sc1")
        a("s_add_u32 s22, s22, 32768\ns_add_u32 s23, s23, 32768")
        a("s_waitcnt vmcnt(0)")
        flag_prev()
        a(f"""
        s_add_u32 s26, s26, 1
        s_cmp_eq_u32 s31, 1
        s_cbranch_scc0 {L}_slow
        s_mov_b32 s31, 0
        s_branch {lab}_i{1-st}
{L}_slow:
        s_cmp_ge_u32 s26, 64
        s_cbranch_scc1 {lab}_done
        """)
        if nfl: wait_flags(a,L+'ws',nfl,'s25',fail,spin)
        loads(1-st)
        if st==1: a(f"s_branch {lab}_i0")
    iteration(0); iteration(1)
    a.label(lab+'_done')

def emit_AWO(a, cfg, fail):
    spin=cfg.get('spin',SPIN_DEFAULT)
    lab=a.new('AWO')
    a("""
    s_load_dwordx2 s[12:13], s[0:1], 16      ; A_wo [512][512]
    s_waitcnt lgkmcnt(0)
    s_mov_b32 s14, 524288
    s_mov_b32 s15, 0x20000
    v_lshrrev_b32 v61, 4, v0
    v_and_b32 v60, 15, v0
    v_lshlrev_b32 v62, 2, v61
    v_xor_b32 v62, v60, v62
    v_lshlrev_b32 v62, 4, v62
    v_lshl_add_u32 v62, v61, 10, v62
    s_lshl_b32 s32, s5, 8
    v_add_u32 v40, s32, v62
    s_lshl_b32 s32, s6, 2
    """)
    tr_addr32(a,44,'s32',256,lambda r,o: a(f"v_lshlrev_b32 v{o}, 2, v{r}"),0)
    a("v_add_u32 v45, 0x10000, v44")
    a("s_lshl_b32 s33, s6, 17\ns_lshl_b32 s34, s6, 15")
    for n in range(32):
        a(f"s_add_u32 m0, s34, {4*n*256}\ns_add_u32 s35, s33, {4*n*1024}\nbuffer_load_dwordx4 v40, s[12:15], s35 offen lds")
    a("s_waitcnt vmcnt(0)\ns_barrier")
    for ks in range(32):
        for p in range(2):
            a(f"ds_read_b64_tr_b16 a[{4*ks+2*p}:{4*ks+2*p+1}], v{44+(ks>>4)} offset:{(ks&15)*4096+p*2048}")
        if ks%4==3: a("s_waitcnt lgkmcnt(4)")
    a("s_waitcnt lgkmcnt(0)\ns_barrier")
    a(f"""
    v_lshlrev_b32 v1, 4, v0
    s_lshl_b32 s32, s6, 13
    v_add_u32 v2, s32, v1
    s_lshl_b32 s32, s5, 13
    s_lshl_b32 s33, s6, 11
    s_add_u32 s32, s32, s33
    v_add_u32 v3, s32, v1
    s_mul_i32 s32, s4, {6*64*32768}
    s_add_u32 s43, s32, {xs(T_OA1,0)}
    s_add_u32 s44, s32, {xs(T_YA1,0)}
    s_lshl_b32 s32, s4, 13
    s_add_u32 s45, s32, {WS_FLAG+FL_OA}
    s_lshl_b32 s33, s5, 4
    s_lshl_b32 s34, s6, 2
    s_add_u32 s33, s33, s34
    s_add_u32 s46, s32, {WS_FLAG+FL_YA}
    s_add_u32 s46, s46, s33
    s_mov_b32 s40, 0
    s_mov_b32 s42, 0
    """)
    def dma(bufreg):
        out=[]
        for n in range(8):
            out.append(f"s_lshl_b32 s32, s6, 13\ns_add_u32 s32, s32, {bufreg}\ns_add_u32 m0, s32, {(n>>2)*4096}\ns_add_u32 s33, s43, {(n>>2)*4096}\nbuffer_load_dwordx4 v2, s[8:11], s33 offen offset:{(n&3)*1024} sc1 lds")
        return out
    wait_flags(a,lab+'w0',32,'s45',fail,spin)
    for d in dma_list(8,13,'s42'): a(d)
    a("s_add_u32 s43, s43, 32768\ns_add_u32 s45, s45, 128\ns_waitcnt vmcnt(0)\ns_barrier")
    a.label(lab+'_unit')
    a("v_add_u32 v5, s42, v1\ns_xor_b32 s50, s42, 32768")
    poll_issue(a,32,'s45',10,9)
    XR=64; NR=8; AHEAD=6
    def rd(i): a(f"ds_read_b128 v[{XR+4*(i%NR)}:{XR+4*(i%NR)+3}], v5 offset:{i*1024}")
    for i in range(AHEAD): rd(i)
    dl=dma_list(8,13,'s50')
    def mf(ks):
        r=XR+4*(ks%NR); c='0' if ks==0 else "v[32:47]"
        a(f"v_mfma_f32_32x32x16_bf16 v[32:47], a[{4*ks}:{4*ks+3}], v[{r}:{r+3}], {c}")
    def check():
        a(f"""
        s_waitcnt vmcnt(0)
        s_mov_b32 s48, 0
        s_cmp_ge_u32 s40, 63
        s_cselect_b32 s49, 1, 0
        v_cmp_eq_u32 vcc, 0, v9
        s_cmp_eq_u64 vcc, 0
        s_cselect_b32 s48, 1, 0
        s_cmp_eq_u32 s49, 1
        s_cselect_b32 s48, 0, s48
        """)
    gemm_loop(a,lab,32,mf,rd,AHEAD,20,check,dl)
    pack_tile(a,32,96)
    for f in range(2):
        a(f"buffer_store_dwordx4 v[{96+4*f}:{99+4*f}], v3, s[8:11], s44 offen offset:{f*1024} sc1")
    a("s_add_u32 s44, s44, 32768\ns_add_u32 s40, s40, 1\ns_waitcnt vmcnt(0)")
    set_flag(a,'s46',vtmp=(11,12))
    a(f"""
    s_add_u32 s46, s46, 128
    s_mov_b32 s42, s50
    s_cmp_eq_u32 s48, 0
    s_cbranch_scc1 {lab}_slow
    s_add_u32 s43, s43, 32768
    s_add_u32 s45, s45, 128
    s_barrier
    s_branch {lab}_unit
{lab}_slow:
    s_cmp_ge_u32 s40, 64
    s_cbranch_scc1 {lab}_done
    """)
    wait_flags(a,lab+'ws',32,'s45',fail,spin)
    for d in dma_list(8,13,'s42'): a(d)
    a(f"""
    s_add_u32 s43, s43, 32768
    s_add_u32 s45, s45, 128
    s_waitcnt vmcnt(0)
    s_barrier
    s_branch {lab}_unit
{lab}_done:
    """)

def emit_P(a, cfg, fail):
    spin=cfg.get('spin',SPIN_DEFAULT)
    lab=a.new('P')
    a("""
    s_load_dwordx2 s[12:13], s[0:1], 40      ; Wq
    s_load_dwordx2 s[16:17], s[0:1], 48      ; Wk
    s_load_dwordx2 s[20:21], s[0:1], 56      ; Wv
    s_waitcnt lgkmcnt(0)
    s_mov_b32 s14, 4194304
    s_mov_b32 s15, 0x20000
    s_mov_b32 s18, 4194304
    s_mov_b32 s19, 0x20000
    s_mov_b32 s22, 4194304
    s_mov_b32 s23, 0x20000
    v_lshrrev_b32 v61, 4, v0
    v_and_b32 v60, 15, v0
    v_lshlrev_b32 v62, 2, v61
    v_xor_b32 v62, v60, v62
    v_lshlrev_b32 v62, 4, v62
    v_lshl_add_u32 v62, v61, 13, v62
    s_lshl_b32 s32, s5, 8
    v_add_u32 v40, s32, v62
    s_lshl_b32 s32, s6, 2
    """)
    tr_addr32(a,44,'s32',256,lambda r,o: a(f"v_lshlrev_b32 v{o}, 2, v{r}"),0)
    a("v_add_u32 v45, 0x10000, v44")
    def wreg(M,ks,p):
        if M=='Q': b=128+4*ks+2*p; return f"v[{b}:{b+1}]"
        b={'K':0,'V':128}[M]+4*ks+2*p; return f"a[{b}:{b+1}]"
    rounds=[(M,h) for M in ('K','V','Q') for h in range(2)]
    srd={'K':'s[16:19]','V':'s[20:23]','Q':'s[12:15]'}
    def issue(i):
        M,h=rounds[i]
        a(f"s_lshl_b32 s33, s6, 19\ns_add_u32 s33, s33, {h*256*8192}\ns_lshl_b32 s34, s6, 14\ns_add_u32 s34, s34, {(i&1)*65536}")
        for n in range(16):
            a(f"s_add_u32 m0, s34, {4*n*256}\ns_add_u32 s35, s33, {4*n*8192}\nbuffer_load_dwordx4 v40, {srd[M]}, s35 offen lds")
    issue(0); issue(1)
    for i,(M,h) in enumerate(rounds):
        a(f"s_waitcnt vmcnt({16 if i+1<len(rounds) else 0})\ns_barrier")
        for ksl in range(16):
            ks=16*h+ksl
            for p in range(2):
                a(f"ds_read_b64_tr_b16 {wreg(M,ks,p)}, v{44+(i&1)} offset:{ksl*4096+p*2048}")
            if ksl%4==3: a("s_waitcnt lgkmcnt(4)")
        a("s_waitcnt lgkmcnt(0)\ns_barrier")
        if i+2<len(rounds): issue(i+2)
    def W(M,ks):
        if M=='Q': return f"v[{128+4*ks}:{131+4*ks}]"
        b={'K':0,'V':128}[M]+4*ks; return f"a[{b}:{b+3}]"
    a(f"""
    v_lshlrev_b32 v1, 4, v0
    s_lshl_b32 s32, s6, 13
    v_add_u32 v2, s32, v1
    s_lshl_b32 s32, s6, 11
    v_add_u32 v3, s32, v1
    s_mul_i32 s32, s4, {6*64*32768}
    s_add_u32 s43, s32, {xs(T_XNB1,0)}
    s_lshl_b32 s32, s4, 14
    s_add_u32 s45, s32, {WS_FLAG+FL_XN+64*128}
    s_lshl_b32 s32, s4, 11
    s_add_u32 s32, s32, s5
    s_mul_i32 s48, s32, {QKV_BLK}
    s_lshl_b32 s49, s32, 5
    s_lshl_b32 s33, s6, 2
    s_add_u32 s49, s49, s33
    s_add_u32 s49, s49, {WS_FLAG+FL_P}
    s_mov_b32 s40, 0
    s_mov_b32 s42, 0
    s_mov_b32 s47, 0
    """)
    def dma(bufreg):
        out=[]
        for n in range(8):
            out.append(f"s_lshl_b32 s32, s6, 13\ns_add_u32 s32, s32, {bufreg}\ns_add_u32 m0, s32, {(n>>2)*4096}\ns_add_u32 s33, s43, {(n>>2)*4096}\nbuffer_load_dwordx4 v2, s[8:11], s33 offen offset:{(n&3)*1024} sc1 lds")
        return out
    wait_flags(a,lab+'w0',NXN,'s45',fail,spin,vtmp=(8,9))
    for d in dma_list(8,13,'s42'): a(d)
    a("s_add_u32 s43, s43, 32768\ns_add_u32 s45, s45, 128\ns_waitcnt vmcnt(0)\ns_barrier")
    a.label(lab+'_unit')
    a("v_add_u32 v5, s42, v1\ns_xor_b32 s50, s42, 32768")
    poll_issue(a,NXN,'s45',10,9)
    XR=64; NR=8; ACC=[32,48]; PK=96
    def rd(ks): a(f"ds_read_b128 v[{XR+4*(ks%NR)}:{XR+4*(ks%NR)+3}], v5 offset:{ks*1024}")
    AHEAD=6
    for i in range(AHEAD): rd(i)
    def epi(t):
        acc=ACC[t]; out=[]; pk=PK+8*t
        for i in range(8): out.append(f"v_cvt_pk_bf16_f32 v{pk+i}, v{acc+2*i}, v{acc+2*i+1}")
        off=[8192,16384][t]
        out.append(f"s_add_u32 s33, s48, {off}\nbuffer_store_dwordx4 v[{pk}:{pk+3}], v3, s[8:11], s33 offen sc1")
        out.append(f"buffer_store_dwordx4 v[{pk+4}:{pk+7}], v3, s[8:11], s33 offen offset:1024 sc1")
        return out
    dl=dma_list(8,13,'s50')
    def step(ks):
        r=XR+4*(ks%NR)
        a(f"s_waitcnt lgkmcnt({min(AHEAD-1,31-ks)})")
        a(f"v_mfma_f32_32x32x16_bf16 v[32:47], {W('K',ks)}, v[{r}:{r+3}], {'0' if ks==0 else 'v[32:47]'}")
        a(f"v_mfma_f32_32x32x16_bf16 v[48:63], v[{r}:{r+3}], {W('V',ks)}, {'0' if ks==0 else 'v[48:63]'}")
        if ks+AHEAD<32: rd(ks+AHEAD)
    def check():
        a(f"s_cmp_eq_u32 s47, 0\ns_cbranch_scc1 {lab}_nq0\ns_waitcnt vmcnt(1)\ns_sub_u32 s33, s49, 1024\ns_add_u32 s34, s33, 16\ns_cmp_eq_u32 s47, 2\ns_cselect_b32 s33, s34, s33")
        set_flag(a,'s33',vtmp=(11,12))
        a(f"""
        s_mov_b32 s47, 0
        s_waitcnt vmcnt(1)
        s_branch {lab}_nq
{lab}_nq0:
        s_waitcnt vmcnt(0)
{lab}_nq:
        s_mov_b32 s51, 0
        s_cmp_ge_u32 s40, 63
        s_cselect_b32 s52, 1, 0
        v_cmp_eq_u32 vcc, 0, v9
        s_cmp_eq_u64 vcc, 0
        s_cselect_b32 s51, 1, 0
        s_cmp_eq_u32 s52, 1
        s_cselect_b32 s51, 0, s51
        """)
    for ks in range(13): step(ks)
    check()
    a(f"s_cmp_eq_u32 s51, 0\ns_cbranch_scc1 {lab}_vn")
    for j in range(8): step(13+j); a(dl[j])
    a(f"s_branch {lab}_ve\n{lab}_vn:")
    for j in range(8): step(13+j)
    a.label(lab+'_ve')
    for ks in range(21,32): step(ks)
    for x in epi(0): a(x)
    for x in epi(1): a(x)
    a(f"""
    s_mov_b32 s54, 1
    s_add_u32 s32, s40, 1
    s_and_b32 s32, s32, 2
    s_cmp_lg_u32 s32, 0
    s_cbranch_scc1 {lab}_noq
    """)
    for i in range(AHEAD): rd(i)
    for ks in range(32):
        r_=XR+4*(ks%NR)
        a(f"s_waitcnt lgkmcnt({min(AHEAD-1,31-ks)})")
        a(f"v_mfma_f32_32x32x16_bf16 v[32:47], {W('Q',ks)}, v[{r_}:{r_+3}], {'0' if ks==0 else 'v[32:47]'}")
        if ks+AHEAD<32: rd(ks+AHEAD)
    a("s_waitcnt vmcnt(0)")
    set_flag(a,'s49',vtmp=(11,12))
    for i in range(8): a(f"v_cvt_pk_bf16_f32 v{PK+i}, v32+{2*i}, v33+{2*i}".replace(f"v32+{2*i}",f"v{32+2*i}").replace(f"v33+{2*i}",f"v{33+2*i}"))
    a(f"""
    buffer_store_dwordx4 v[{PK}:{PK+3}], v3, s[8:11], s48 offen sc1
    buffer_store_dwordx4 v[{PK+4}:{PK+7}], v3, s[8:11], s48 offen offset:1024 sc1
    s_mov_b32 s54, 2
{lab}_noq:
    s_add_u32 s48, s48, {32*QKV_BLK}
    s_add_u32 s49, s49, 1024
    s_add_u32 s40, s40, 1
    s_mov_b32 s42, s50
    s_cmp_eq_u32 s51, 0
    s_cbranch_scc1 {lab}_slow
    s_mov_b32 s47, s54
    s_add_u32 s43, s43, 32768
    s_add_u32 s45, s45, 128
    s_cmp_eq_u32 s54, 2
    s_cbranch_scc1 {lab}_fq
    s_waitcnt vmcnt(4)
{lab}_fq:
    s_barrier
    s_branch {lab}_unit
{lab}_slow:
    s_waitcnt vmcnt(0)
    s_sub_u32 s33, s49, 1024
    s_add_u32 s34, s33, 16
    s_cmp_eq_u32 s54, 2
    s_cselect_b32 s33, s34, s33
    """)
    set_flag(a,'s33',vtmp=(11,12))
    a(f"""
    s_mov_b32 s47, 0
    s_cmp_ge_u32 s40, 64
    s_cbranch_scc1 {lab}_done
    """)
    wait_flags(a,lab+'ws',NXN,'s45',fail,spin,vtmp=(8,9))
    for d in dma_list(8,13,'s42'): a(d)
    a(f"""
    s_add_u32 s43, s43, 32768
    s_add_u32 s45, s45, 128
    s_waitcnt vmcnt(0)
    s_barrier
    s_branch {lab}_unit
{lab}_done:
    """)

def emit_ATT(a, cfg, fail):
    spin=cfg.get('spin',SPIN_DEFAULT)
    lab=a.new('ATT')
    STG=131072
    a(f"""
    s_load_dwordx2 s[12:13], s[0:1], 40      ; Wq
    s_waitcnt lgkmcnt(0)
    s_mov_b32 s14, 4194304
    s_mov_b32 s15, 0x20000
    v_lshrrev_b32 v61, 4, v0
    v_and_b32 v60, 15, v0
    v_lshlrev_b32 v62, 2, v61
    v_xor_b32 v62, v60, v62
    v_lshlrev_b32 v62, 4, v62
    v_lshl_add_u32 v62, v61, 13, v62
    s_lshl_b32 s32, s5, 8
    v_add_u32 v40, s32, v62
    s_lshl_b32 s32, s6, 2
    """)
    tr_addr32(a,44,'s32',256,lambda r_,o: a(f"v_lshlrev_b32 v{o}, 2, v{r_}"),STG)
    a("v_lshlrev_b32 v46, 4, v0\ns_lshl_b32 s32, s6, 15\nv_add_u32 v46, s32, v46")
    for rnd in range(4):
        a(f"s_lshl_b32 s33, s6, 18\ns_add_u32 s33, s33, {rnd*128*8192}\ns_lshl_b32 s34, s6, 13\ns_add_u32 s34, s34, {STG}")
        for n in range(8):
            a(f"s_add_u32 m0, s34, {4*n*256}\ns_add_u32 s35, s33, {4*n*8192}\nbuffer_load_dwordx4 v40, s[12:15], s35 offen lds")
        a("s_waitcnt vmcnt(0)\ns_barrier")
        for ksl in range(8):
            for p in range(2):
                a(f"ds_read_b64_tr_b16 v[{64+4*ksl+2*p}:{65+4*ksl+2*p}], v44 offset:{ksl*4096+p*2048}")
        a("s_waitcnt lgkmcnt(0)")
        for ksl in range(8):
            a(f"ds_write_b128 v46, v[{64+4*ksl}:{67+4*ksl}] offset:{(8*rnd+ksl)*1024}")
        a("s_waitcnt lgkmcnt(0)\ns_barrier")
    a(f"""
    s_lshr_b32 s40, s6, 1                    ; layer
    s_and_b32 s41, s6, 1                     ; unit
    s_lshl_b32 s32, s40, 6
    s_add_u32 s32, s32, s41
    s_lshl_b32 s32, s32, 5
    s_add_u32 s32, s32, s5                   ; (l*64+u)*32 + h
    s_mul_i32 s43, s32, {QKV_BLK}
    s_lshl_b32 s44, s32, 12
    s_add_u32 s44, s44, {WS_KM}
    s_lshl_b32 s45, s32, 4
    s_add_u32 s45, s45, {WS_FLAG+FL_CH}
    s_lshl_b32 s49, s32, 5
    s_add_u32 s49, s49, {WS_FLAG+FL_P}
    s_lshl_b32 s33, s40, 6
    s_add_u32 s33, s33, s41                  ; l*64+u
    s_mul_i32 s34, s40, {6*64*32768}
    s_lshl_b32 s35, s41, 15
    s_add_u32 s50, s34, s35
    s_add_u32 s50, s50, {xs(T_XNB1,0)}
    s_lshl_b32 s34, s40, 14
    s_lshl_b32 s35, s41, 7
    s_add_u32 s51, s34, s35
    s_add_u32 s51, s51, {WS_FLAG+FL_XN+64*128}
    s_lshl_b32 s46, s32, 2
    s_add_u32 s46, s46, {WS_FLAG+FL_OB}
    s_lshl_b32 s33, s40, 6
    s_add_u32 s33, s33, s41
    s_lshl_b32 s33, s33, 18
    s_lshl_b32 s34, s5, 13
    s_add_u32 s47, s33, s34
    s_add_u32 s47, s47, {WS_OB}
    s_lshl_b32 s42, s6, 12
    s_add_u32 s42, s42, {STG}
    v_lshlrev_b32 v1, 4, v0
    v_lshrrev_b32 v60, 5, v0
    v_and_b32 v61, 7, v0
    v_lshlrev_b32 v2, 4, v61
    v_lshl_add_u32 v2, v60, 7, v2
    v_add_u32 v2, s42, v2
    v_and_b32 v61, 31, v0
    v_lshlrev_b32 v3, 4, v61
    v_lshl_add_u32 v3, v60, 3, v3
    v_add_u32 v3, s42, v3
    v_mov_b32 v7, 0xff7fffff
    v_mov_b32 v12, 0x3f803f80
    v_mov_b32 v13, 0x3f803f80
    v_mov_b32 v14, 0x3f803f80
    v_mov_b32 v15, 0x3f803f80
    s_mov_b32 s48, 0x3e0293ee
    """)
    a("v_mov_b32 v4, v1\nv_add_u32 v5, 0x10000, v1")
    causal_masks(a,64)
    K=32; V=64; KM=160; VM=192
    XA=96
    QV=128
    def xloads():
        out=[]
        for ks in range(32):
            pre=f"s_add_u32 s32, s50, {(ks>>2)*4096}\n" if ks%4==0 else ""
            out.append(pre+f"buffer_load_dwordx4 a[{XA+4*ks}:{XA+4*ks+3}], v1, s[8:11], s32 offen offset:{(ks&3)*1024} sc1")
        return out
    def xadv(): a("s_add_u32 s50, s50, 131072\ns_add_u32 s51, s51, 512")
    def kvloads():
        out=[]
        for blk,reg in ((1,K),(2,V)):
            for g in range(2):
                for j in range(4):
                    rr=reg+4*(4*g+j)
                    pre=f"s_add_u32 s32, s43, {blk*8192+g*4096}\n" if j==0 else ""
                    out.append(pre+f"buffer_load_dwordx4 a[{rr}:{rr+3}], v1, s[8:11], s32 offen offset:{j*1024} sc1")
        return out
    def core(tag, light):
        L=f"{lab}_{tag}"
        a(f"""
        s_waitcnt vmcnt(0)
        v_cmp_eq_u32 vcc, 0, v30
        s_cbranch_vccnz {L}_chw
        """)
        def kmdma():
            a("s_mov_b32 m0, s42")
            for j in range(4): a(f"buffer_load_dwordx4 v1, s[8:11], s44 offen offset:{j*1024} sc1 lds")
        def stok():
            for ks in range(8):
                c0='0' if ks==0 else 'v[32:47]'
                a(f"v_mfma_f32_32x32x16_bf16 v[32:47], a[{K+4*ks}:{K+4*ks+3}], v[{QV+4*ks}:{QV+4*ks+3}], {c0}")
            for r_ in range(16): a(f"v_cndmask_b32 v{32+r_}, v7, v{32+r_}, s[{64+2*r_}:{65+2*r_}]")
            a("""
            v_max3_f32 v24, v32, v33, v34
            v_max3_f32 v25, v35, v36, v37
            v_max3_f32 v24, v24, v38, v39
            v_max3_f32 v25, v25, v40, v41
            v_max3_f32 v24, v24, v42, v43
            v_max3_f32 v25, v25, v44, v45
            v_max3_f32 v24, v24, v46, v47
            """)
            for W_ in range(4): a(f"v_mov_b32 v{VM+4*W_+2}, 0\nv_mov_b32 v{VM+4*W_+3}, 0")
        xl=xloads()
        kmdma(); stok()
        a(f"s_branch {L}_kmw")
        a.label(L+'_chw')
        stok()
        if light:
            a(f"s_cmp_eq_u32 s53, 0\ns_cbranch_scc1 {L}_b1")
            for x in xl: a(x)
            xadv()
            a(f"s_mov_b32 s53, 2\n{L}_b1:")
        wait_flags(a,L+'wc',4,'s45',fail,spin,sleep=0)
        kmdma()
        a.label(L+'_kmw')
        a("s_waitcnt vmcnt(0)")
        for ks in range(8): a(f"ds_read_b128 v[{KM+4*ks}:{KM+4*ks+3}], v2 offset:{ks*256}")
        for W_ in range(4): a(f"ds_read_b64 v[{VM+4*W_}:{VM+4*W_+1}], v3 offset:{2048+W_*512}")
        for ks in range(8):
            a(f"s_waitcnt lgkmcnt({11-ks})")
            c1='0' if ks==0 else 'v[48:63]'
            a(f"v_mfma_f32_32x32x16_bf16 v[48:63], v[{KM+4*ks}:{KM+4*ks+3}], v[{QV+4*ks}:{QV+4*ks+3}], {c1}")
        a("""
        v_max3_f32 v25, v25, v48, v49
        v_max3_f32 v24, v24, v50, v51
        v_max_f32 v24, v24, v25
        v_mov_b32 v25, v24
        v_permlane32_swap_b32 v24, v25
        v_max_f32 v24, v24, v25
        v_mul_f32 v24, s48, v24
        """)
        for r_ in range(20): a(f"v_fma_f32 v{32+r_}, v{32+r_}, s48, -v24")
        for r_ in range(20): a(f"v_exp_f32 v{32+r_}, v{32+r_}")
        a("v_add_f32 v24, v32, v33\nv_add_f32 v25, v34, v35")
        for r_ in range(4,20,2): a(f"v_add_f32 v24, v24, v{32+r_}\nv_add_f32 v25, v25, v{33+r_}")
        a("""
        v_add_f32 v24, v24, v25
        v_mov_b32 v25, v24
        v_permlane32_swap_b32 v24, v25
        v_add_f32 v24, v24, v25
        v_rcp_f32 v24, v24
        """)
        for r_ in range(20): a(f"v_mul_f32 v{32+r_}, v{32+r_}, v24")
        for i in range(8): a(f"v_cvt_pk_bf16_f32 v{16+i}, v{32+2*i}, v{33+2*i}")
        a("""
        v_cvt_pk_bf16_f32 v8, v48, v49
        v_cvt_pk_bf16_f32 v9, v50, v51
        v_mov_b32 v10, 0
        v_mov_b32 v11, 0
        s_waitcnt lgkmcnt(0)
        """)
        OT=[64,80,96,112]; PK=208
        xq=list(xl) if light else []
        def mx(n=1):
            for _ in range(n):
                if xq:
                    LL=a.new(lab+'m'); a(f"s_cbranch_scc0 {LL}"); x=xq.pop(0)
                    a(x)
                    if x.startswith('s_add'): a("s_cmp_eq_u32 s53, 1")
                    a.label(LL)
        def pv(W_):
            o=OT[W_]
            a(f"v_mfma_f32_32x32x16_bf16 v[{o}:{o+15}], a[{V+8*W_}:{V+8*W_+3}], v[16:19], 0"); mx()
            a(f"v_mfma_f32_32x32x16_bf16 v[{o}:{o+15}], a[{V+8*W_+4}:{V+8*W_+7}], v[20:23], v[{o}:{o+15}]"); mx()
            a(f"v_mfma_f32_32x32x16_bf16 v[{o}:{o+15}], v[{VM+4*W_}:{VM+4*W_+3}], v[8:11], v[{o}:{o+15}]"); mx()
        def fin(W_):
            o=OT[W_]
            for i in range(8):
                a(f"v_cvt_pk_bf16_f32 v{PK+8*W_+i}, v{o+2*i}, v{o+2*i+1}")
                if i%2==1: mx()
        def sto(W_):
            if W_==2: a("s_add_u32 s32, s47, 4096")
            for f in range(2):
                fi=2*W_+f
                a(f"buffer_store_dwordx4 v[{PK+4*fi}:{PK+4*fi+3}], v1, s[8:11], {'s47' if fi<4 else 's32'} offen offset:{(fi&3)*1024} sc1")
        if light: a("s_cmp_eq_u32 s53, 1")
        pv(0); pv(1); pv(2); fin(0); pv(3); fin(1); fin(2); fin(3)
        if light:
            mx(32)
            a(f"s_cbranch_scc0 {L}_k2")
            xadv()
            a.label(L+'_k2')
        for W_ in range(4): sto(W_)
        a(f"""
        s_add_u32 s43, s43, {2*32*QKV_BLK}
        s_add_u32 s44, s44, {2*32*4096}
        s_add_u32 s45, s45, 1024
        s_add_u32 s49, s49, 2048
        s_add_u32 s47, s47, {2*262144}
        s_add_u32 s41, s41, 2
        """)
    def eager():
        a("s_waitcnt vmcnt(0)")
        set_flag(a,'s46',vtmp=(10,11))
        a("s_add_u32 s46, s46, 256\ns_mov_b32 s52, 0")
    a(f"""
    s_mov_b32 s52, 0
    s_cmp_eq_u32 s41, 0
    s_cbranch_scc0 {lab}_h0
    s_add_u32 s50, s50, 65536
    s_add_u32 s51, s51, 256
    s_branch {lab}_L
{lab}_h0:
    """)
    wait_flags(a,lab+'wx0',NXN,'s51',fail,spin)
    for x in xloads(): a(x)
    xadv()
    a.label(lab+'_H')
    roles.tsp(a,1,0,'s41',('s5','s40'))
    WR=64; NR=8; AHEAD=6
    seq=[(T,ks) for T in range(4) for ks in range(32)]
    def wrd(i):
        T,ks=seq[i]; r_=WR+4*(i%NR)
        a(f"ds_read_b128 v[{r_}:{r_+3}], v{4+(T>>1)} offset:{(T&1)*32768+ks*1024}")
    for i in range(AHEAD): wrd(i)
    QA=[96,112]
    pend=[]
    kvl=kvloads()
    for i,(T,ks) in enumerate(seq):
        acc=QA[T&1]; r_=WR+4*(i%NR)
        if T==0:
            if ks<8:
                LL=a.new(lab+'x')
                a(f"s_cmp_eq_u32 s52, 0\ns_cbranch_scc1 {LL}_0\ns_waitcnt vmcnt({39-ks})\ns_branch {LL}_1\n{LL}_0:\ns_waitcnt vmcnt({31-ks})\n{LL}_1:\ns_waitcnt lgkmcnt({AHEAD-1})")
            else: a(f"s_waitcnt vmcnt({31-ks}) lgkmcnt({AHEAD-1})")
        elif T==1 and ks==0:
            a(f"s_cmp_eq_u32 s52, 0\ns_cbranch_scc1 {lab}_nf")
            set_flag(a,'s46',vtmp=(10,11))
            a(f"s_add_u32 s46, s46, 256\ns_mov_b32 s52, 0\n{lab}_nf:")
            poll_issue(a,4,'s49',10,30)
            a(f"s_waitcnt lgkmcnt({AHEAD-1})")
        elif T==1 and ks==30:
            a(f"""
            s_waitcnt vmcnt(0)
            v_cmp_eq_u32 vcc, 0, v30
            s_cbranch_vccz {lab}_pok
            """)
            wait_flags(a,lab+'wp',4,'s49',fail,spin)
            a(f"{lab}_pok:\ns_waitcnt lgkmcnt({AHEAD-1})")
        else: a(f"s_waitcnt lgkmcnt({min(AHEAD-1,len(seq)-1-i)})")
        c='0' if ks==0 else f"v[{acc}:{acc+15}]"
        a(f"v_mfma_f32_32x32x16_bf16 v[{acc}:{acc+15}], v[{r_}:{r_+3}], a[{XA+4*ks}:{XA+4*ks+3}], {c}")
        if i+AHEAD<len(seq): wrd(i+AHEAD)
        if T>=1 and ks==0:
            pa=QA[(T-1)&1]
            pend=[f"v_cvt_pk_bf16_f32 v{QV+8*(T-1)+q}, v{pa+2*q}, v{pa+2*q+1}" for q in range(8)]
        if T>=1 and ks>=8 and pend: a(pend.pop(0))
        if T==2 and ks%2==1 and kvl: a(kvl.pop(0))
        if T==3 and ks==4: poll_issue(a,4,'s45',10,30)
    pa=QA[1]
    for q in range(8): a(f"v_cvt_pk_bf16_f32 v{QV+24+q}, v{pa+2*q}, v{pa+2*q+1}")
    roles.tsp(a,1,1,'s41',('s5','s40'))
    core('h',False)
    roles.tsp(a,1,5,'s41',('s5','s40'))
    eager()
    a(f"s_cmp_ge_u32 s41, 64\ns_cbranch_scc1 {lab}_done")
    a.label(lab+'_L')
    roles.tsp(a,1,0,'s41',('s5','s40'))
    wait_flags(a,lab+'wq',8,'s49',fail,spin)
    for g in range(2):
        a(f"s_add_u32 s32, s43, {g*4096}")
        for j in range(4):
            rr=QV+4*(4*g+j)
            a(f"buffer_load_dwordx4 v[{rr}:{rr+3}], v1, s[8:11], s32 offen offset:{j*1024} sc1")
    for x in kvloads(): a(x)
    poll_issue(a,NXN,'s51',11,31)
    poll_issue(a,4,'s45',10,30)
    a(f"""
    s_waitcnt vmcnt(0)
    s_mov_b32 s53, 0
    s_cmp_ge_u32 s41, 62
    s_cbranch_scc1 {lab}_np
    v_cmp_eq_u32 vcc, 0, v31
    s_cbranch_vccnz {lab}_np
    s_mov_b32 s53, 1
{lab}_np:
    """)
    core('l',True)
    roles.tsp(a,1,5,'s41',('s5','s40'))
    a(f"""
    s_cmp_eq_u32 s53, 1
    s_cbranch_scc0 {lab}_e1
    s_mov_b32 s52, 1
    s_branch {lab}_H
{lab}_e1:
    """)
    eager()
    a(f"""
    s_cmp_ge_u32 s41, 64
    s_cbranch_scc1 {lab}_done
    s_cmp_eq_u32 s53, 2
    s_cbranch_scc1 {lab}_H
    """)
    wait_flags(a,lab+'wxs',NXN,'s51',fail,spin)
    for x in xloads(): a(x)
    xadv()
    a(f"s_branch {lab}_H\n{lab}_done:")

def emit_O(a, cfg, fail):
    spin=cfg.get('spin',SPIN_DEFAULT)
    lab=a.new('O')
    a(f"""
    s_load_dwordx2 s[12:13], s[0:1], 64
    s_waitcnt lgkmcnt(0)
    s_mov_b32 s14, 4194304
    s_mov_b32 s15, 0x20000
    s_lshr_b32 s40, s5, 2                    ; kq
    s_and_b32 s41, s5, 3                     ; nq
    v_lshrrev_b32 v61, 4, v0
    v_and_b32 v60, 15, v0
    v_lshlrev_b32 v62, 2, v61
    v_xor_b32 v62, v60, v62
    v_lshlrev_b32 v62, 4, v62
    v_lshl_add_u32 v62, v61, 10, v62
    s_lshl_b32 s32, s41, 8
    v_add_u32 v40, s32, v62
    s_mov_b32 s32, 0
    """)
    tr_addr32(a,44,'s32',256,lambda r,o: a(f"v_lshlrev_b32 v{o}, 2, v{r}"),0)
    a("s_lshl_b32 s34, s6, 15\nv_add_u32 v44, s34, v44")
    for T in range(1,4): a(f"v_xor_b32 v{44+T}, {64*T}, v44")
    for rnd in range(2):
        a(f"s_lshl_b32 s33, s40, 20\ns_lshl_b32 s35, s6, 18\ns_add_u32 s33, s33, s35\ns_add_u32 s33, s33, {rnd*128*1024}")
        for n in range(32):
            a(f"s_add_u32 m0, s34, {4*n*256}\ns_add_u32 s35, s33, {4*n*1024}\nbuffer_load_dwordx4 v40, s[12:15], s35 offen lds")
        a("s_waitcnt vmcnt(0)")
        for ksl in range(8):
            ks=8*rnd+ksl
            for T in range(4):
                for p in range(2):
                    b=(T*16+ks)*4+2*p
                    a(f"ds_read_b64_tr_b16 a[{b}:{b+1}], v{44+T} offset:{ksl*4096+p*2048}")
            a("s_waitcnt lgkmcnt(4)")
        a("s_waitcnt lgkmcnt(0)")
    a(f"""
    s_barrier
    v_lshlrev_b32 v1, 4, v0
    s_lshl_b32 s32, s4, 24
    s_lshl_b32 s33, s40, 16
    s_lshl_b32 s34, s6, 14
    s_add_u32 s43, s32, s33
    s_add_u32 s43, s43, s34
    s_add_u32 s43, s43, {WS_OB}
    s_lshl_b32 s32, s4, 23
    s_lshl_b32 s33, s40, 15
    s_lshl_b32 s34, s41, 13
    s_add_u32 s44, s32, s33
    s_add_u32 s44, s44, s34
    s_lshl_b32 s34, s6, 11
    s_add_u32 s44, s44, s34
    s_add_u32 s44, s44, {WS_PO}
    s_lshl_b32 s32, s4, 13
    s_lshl_b32 s33, s40, 5
    s_lshl_b32 s34, s6, 3
    s_add_u32 s45, s32, s33
    s_add_u32 s45, s45, s34
    s_add_u32 s45, s45, {WS_FLAG+FL_OB}
    s_lshl_b32 s32, s4, 14
    s_lshl_b32 s33, s5, 4
    s_lshl_b32 s34, s6, 2
    s_add_u32 s46, s32, s33
    s_add_u32 s46, s46, s34
    s_add_u32 s46, s46, {WS_FLAG+FL_PO}
    s_lshl_b32 s32, s6, 14
    v_add_u32 v2, s32, v1
    s_lshl_b32 s32, s6, 12
    v_add_u32 v3, s32, v1
    s_mov_b32 s47, 0
    s_mov_b32 s51, 0
    """)
    XB=[64,128]
    def ld(st,ks):
        return f"s_add_u32 s32, s43, {(ks>>2)*4096}\nbuffer_load_dwordx4 v[{XB[st]+4*ks}:{XB[st]+4*ks+3}], v1, s[8:11], s32 offen offset:{(ks&3)*1024} sc1"
    def adv(): a("s_add_u32 s43, s43, 262144\ns_add_u32 s45, s45, 128")
    wait_flags(a,lab+'w0',2,'s45',fail,spin)
    for ks in range(16): a(ld(0,ks))
    adv()
    ACC=[0,16,32,48]
    AB=192
    def iteration(st):
        L=f"{lab}_i{st}"
        a.label(L)
        poll_issue(a,2,'s45',10,9)
        nl=[ld(1-st,ks) for ks in range(16)]
        for ks in range(16):
            a(f"s_waitcnt vmcnt({16-ks})") if ks<16 else None
            for T in range(4):
                acc=AB+16*T; c='0' if ks==0 else f"v[{acc}:{acc+15}]"; b=(T*16+ks)*4
                a(f"v_mfma_f32_32x32x16_bf16 v[{acc}:{acc+15}], a[{b}:{b+3}], v[{XB[st]+4*ks}:{XB[st]+4*ks+3}], {c}")
            if ks==15: break
        return nl
    def unit(st):
        L=f"{lab}_i{st}"
        a.label(L)
        poll_issue(a,2,'s45',10,9)
        for ks in range(8):
            a(f"s_waitcnt vmcnt({16-ks})")
            for T in range(4):
                acc=AB+16*T; c='0' if ks==0 else f"v[{acc}:{acc+15}]"; b=(T*16+ks)*4
                a(f"v_mfma_f32_32x32x16_bf16 v[{acc}:{acc+15}], a[{b}:{b+3}], v[{XB[st]+4*ks}:{XB[st]+4*ks+3}], {c}")
        a(f"""
        s_waitcnt vmcnt(0)
        s_mov_b32 s49, 0
        s_cmp_ge_u32 s47, 63
        s_cbranch_scc1 {L}_np
        v_cmp_eq_u32 vcc, 0, v9
        s_cbranch_vccnz {L}_np
        s_mov_b32 s49, 1
{L}_np:
        s_cmp_eq_u32 s49, 1
        """)
        nl=[ld(1-st,ks) for ks in range(16)]
        for ks in range(8,16):
            for T in range(4):
                acc=AB+16*T; b=(T*16+ks)*4
                a(f"v_mfma_f32_32x32x16_bf16 v[{acc}:{acc+15}], a[{b}:{b+3}], v[{XB[st]+4*ks}:{XB[st]+4*ks+3}], v[{acc}:{acc+15}]")
                if T%2==1:
                    LL=a.new(L+'m'); a(f"s_cbranch_scc0 {LL}"); a(nl.pop(0)); a(f"s_cmp_eq_u32 s49, 1\n{LL}:")
        a("v_add_u32 v4, s51, v2\nv_add_u32 v5, s51, v3")
        for q in range(16): a(f"ds_write_b128 v4, v[{AB+4*q}:{AB+3+4*q}] offset:{q*1024}")
        a("s_waitcnt lgkmcnt(0)\ns_barrier")
        R=16
        for w in range(4):
            for q in range(4): a(f"ds_read_b128 v[{AB+16*w+4*q}:{AB+3+16*w+4*q}], v5 offset:{w*16384+q*1024}")
        a("s_xor_b32 s51, s51, 65536\ns_waitcnt lgkmcnt(8)")
        for r in range(0,16,2): a(f"v_pk_add_f32 v[{AB+r}:{AB+1+r}], v[{AB+r}:{AB+1+r}], v[{AB+16+r}:{AB+17+r}]")
        a("s_waitcnt lgkmcnt(0)")
        for r in range(0,16,2): a(f"v_pk_add_f32 v[{AB+32+r}:{AB+33+r}], v[{AB+32+r}:{AB+33+r}], v[{AB+48+r}:{AB+49+r}]")
        for r in range(0,16,2): a(f"v_pk_add_f32 v[{AB+r}:{AB+1+r}], v[{AB+r}:{AB+1+r}], v[{AB+32+r}:{AB+33+r}]")
        for i in range(8): a(f"v_cvt_pk_bf16_f32 v{16+i}, v{AB+2*i}, v{AB+1+2*i}")
        a(f"""
        buffer_store_dwordx4 v[16:19], v1, s[8:11], s44 offen sc1
        buffer_store_dwordx4 v[20:23], v1, s[8:11], s44 offen offset:1024 sc1
        s_add_u32 s44, s44, 131072
        s_add_u32 s47, s47, 1
        s_waitcnt vmcnt(0)
        """)
        set_flag(a,'s46',vtmp=(10,11))
        a(f"""
        s_add_u32 s46, s46, 256
        s_cmp_eq_u32 s49, 1
        s_cbranch_scc0 {L}_slow
        """)
        adv()
        a(f"""
        s_branch {lab}_i{1-st}
{L}_slow:
        s_cmp_ge_u32 s47, 64
        s_cbranch_scc1 {lab}_done
        """)
        wait_flags(a,L+'ws',2,'s45',fail,spin)
        for ks in range(16): a(ld(1-st,ks))
        adv()
        if st==1: a(f"s_branch {lab}_i0")
    unit(0); unit(1)
    a.label(lab+'_done')

def emit_O5(a, cfg, fail):
    spin=cfg.get('spin',SPIN_DEFAULT)
    lab=a.new('O')
    a(f"""
    s_load_dwordx2 s[12:13], s[0:1], 64
    s_waitcnt lgkmcnt(0)
    s_mov_b32 s14, 4194304
    s_mov_b32 s15, 0x20000
    s_lshr_b32 s40, s5, 2                    ; kq
    s_and_b32 s41, s5, 3                     ; nq
    v_lshrrev_b32 v61, 4, v0
    v_and_b32 v60, 15, v0
    v_lshlrev_b32 v62, 2, v61
    v_xor_b32 v62, v60, v62
    v_lshlrev_b32 v62, 4, v62
    v_lshl_add_u32 v62, v61, 10, v62
    s_lshl_b32 s32, s41, 8
    v_add_u32 v40, s32, v62
    s_and_b32 s54, s6, 1                     ; nh
    s_lshr_b32 s55, s6, 1                    ; kh
    s_lshl_b32 s32, s54, 3
    """)
    tr_addr32(a,44,'s32',256,lambda r,o: a(f"v_lshlrev_b32 v{o}, 2, v{r}"),0)
    a("v_xor_b32 v45, 64, v44\nv_add_u32 v46, 0x10000, v44\nv_add_u32 v47, 0x10000, v45")
    def issue(i):
        a(f"s_lshl_b32 s33, s40, 20\ns_lshl_b32 s35, s6, 16\ns_add_u32 s33, s33, s35\ns_add_u32 s33, s33, {i*256*1024}\ns_lshl_b32 s34, s6, 14\ns_add_u32 s34, s34, {(i&1)*65536}")
        for n in range(16):
            a(f"s_add_u32 m0, s34, {4*n*256}\ns_add_u32 s35, s33, {4*n*1024}\nbuffer_load_dwordx4 v40, s[12:15], s35 offen lds")
    issue(0); issue(1)
    for i in range(4):
        L=a.new(lab+'w')
        a(f"s_waitcnt vmcnt({16 if i<3 else 0})\ns_barrier\ns_cmp_lg_u32 s55, {i>>1}\ns_cbranch_scc1 {L}")
        for ksl in range(16):
            ks=16*(i&1)+ksl
            for T in range(2):
                for p in range(2):
                    b=(T*32+ks)*4+2*p
                    a(f"ds_read_b64_tr_b16 a[{b}:{b+1}], v{44+T+2*(i&1)} offset:{ksl*4096+p*2048}")
            if ksl%2==1: a("s_waitcnt lgkmcnt(4)")
        a(f"{L}:\ns_waitcnt lgkmcnt(0)\ns_barrier")
        if i+2<4: issue(i+2)
    a(f"""
    v_lshlrev_b32 v1, 4, v0
    s_lshl_b32 s32, s6, 14
    v_add_u32 v2, s32, v1
    s_lshl_b32 s32, s4, 24
    s_lshl_b32 s33, s40, 16
    s_add_u32 s43, s32, s33
    s_add_u32 s43, s43, {WS_OB}
    s_lshl_b32 s32, s4, 23
    s_lshl_b32 s33, s40, 15
    s_lshl_b32 s34, s41, 13
    s_add_u32 s44, s32, s33
    s_add_u32 s44, s44, s34
    s_lshl_b32 s34, s54, 12
    s_add_u32 s44, s44, s34
    s_lshl_b32 s34, s55, 11
    s_add_u32 s44, s44, s34
    s_add_u32 s44, s44, {WS_PO}
    s_lshl_b32 s32, s4, 13
    s_lshl_b32 s33, s40, 5
    s_lshl_b32 s34, s6, 3
    s_add_u32 s45, s32, s33
    s_add_u32 s45, s45, s34
    s_add_u32 s45, s45, {WS_FLAG+FL_OB}
    s_lshl_b32 s32, s4, 14
    s_lshl_b32 s33, s5, 4
    s_lshl_b32 s34, s6, 2
    s_add_u32 s46, s32, s33
    s_add_u32 s46, s46, s34
    s_add_u32 s46, s46, {WS_FLAG+FL_PO}
    s_mov_b32 s47, 0
    s_mov_b32 s42, 0
    s_mov_b32 s52, 0
    """)
    def dma(bufreg):
        out=[]
        for n in range(16):
            out.append(f"s_lshl_b32 s32, s6, 14\ns_add_u32 s32, s32, {bufreg}\ns_add_u32 m0, s32, {(n>>2)*4096}\ns_add_u32 s33, s43, {(n>>2)*4096}\nbuffer_load_dwordx4 v2, s[8:11], s33 offen offset:{(n&3)*1024} sc1 lds")
        return out
    def adv(): a("s_add_u32 s43, s43, 262144\ns_add_u32 s45, s45, 128")
    wait_flags(a,lab+'w0',2,'s45',fail,spin)
    for d in dma_list(16,14,'s42'): a(d)
    adv()
    a("s_waitcnt vmcnt(0)\ns_barrier")
    a.label(lab+'_unit')
    roles.tsp(a,0,1,'s47',('s4','s5','s6'))
    a("s_lshl_b32 s32, s55, 15\ns_add_u32 s32, s32, s42\nv_add_u32 v5, s32, v1\ns_xor_b32 s50, s42, 65536")
    poll_issue(a,2,'s45',10,9)
    XR=64; NR=8; AHEAD=6
    def rd(i): a(f"ds_read_b128 v[{XR+4*(i%NR)}:{XR+4*(i%NR)+3}], v5 offset:{i*1024}")
    for i in range(AHEAD): rd(i)
    dl=dma_list(16,14,'s50')
    def mf(ks):
        r=XR+4*(ks%NR)
        for T in range(2):
            acc=32+16*T; c='0' if ks==0 else f"v[{acc}:{acc+15}]"; b=(T*32+ks)*4
            a(f"v_mfma_f32_32x32x16_bf16 v[{acc}:{acc+15}], a[{b}:{b+3}], v[{r}:{r+3}], {c}")
    def check():
        a(f"s_cmp_eq_u32 s52, 0\ns_cbranch_scc1 {lab}_nq0\ns_waitcnt vmcnt(1)")
        set_flag(a,'s46',vtmp=(11,12))
        a(f"""
        s_add_u32 s46, s46, 256
        s_mov_b32 s52, 0
        s_waitcnt vmcnt(1)
        s_branch {lab}_nq
{lab}_nq0:
        s_waitcnt vmcnt(0)
{lab}_nq:
        s_mov_b32 s48, 0
        s_cmp_ge_u32 s47, 63
        s_cselect_b32 s49, 1, 0
        v_cmp_eq_u32 vcc, 0, v9
        s_cmp_eq_u64 vcc, 0
        s_cselect_b32 s48, 1, 0
        s_cmp_eq_u32 s49, 1
        s_cselect_b32 s48, 0, s48
        """)
    gemm_loop(a,lab,32,mf,rd,AHEAD,12,check,dl)
    roles.tsp(a,0,2,'s47',('s4','s5','s6'))
    L=a.new(lab+'r')
    a(f"""
    s_lshl_b32 s32, s6, 12
    s_add_u32 s32, s32, 131072
    v_add_u32 v6, s32, v1
    s_xor_b32 s32, s6, 2
    s_lshl_b32 s32, s32, 12
    s_add_u32 s32, s32, 131072
    v_add_u32 v7, s32, v1
    s_cmp_eq_u32 s55, 0
    s_cbranch_scc1 {L}_0
    """)
    for q in range(4): a(f"ds_write_b128 v6, v[{32+4*q}:{35+4*q}] offset:{q*1024}")
    for r_ in range(16): a(f"v_mov_b32 v{32+r_}, v{48+r_}")
    a(f"s_branch {L}_1\n{L}_0:")
    for q in range(4): a(f"ds_write_b128 v6, v[{48+4*q}:{51+4*q}] offset:{q*1024}")
    a(f"{L}_1:\ns_waitcnt lgkmcnt(0)\ns_barrier")
    for q in range(4): a(f"ds_read_b128 v[{48+4*q}:{51+4*q}], v7 offset:{q*1024}")
    a("s_waitcnt lgkmcnt(0)")
    for r_ in range(0,16,2): a(f"v_pk_add_f32 v[{32+r_}:{33+r_}], v[{32+r_}:{33+r_}], v[{48+r_}:{49+r_}]")
    pack_tile(a,32,96)
    for f in range(2):
        a(f"buffer_store_dwordx4 v[{96+4*f}:{99+4*f}], v1, s[8:11], s44 offen offset:{f*1024} sc1")
    a(f"""
    s_add_u32 s44, s44, 131072
    s_add_u32 s47, s47, 1
    s_mov_b32 s42, s50
    s_cmp_eq_u32 s48, 0
    s_cbranch_scc1 {lab}_slow
    s_mov_b32 s52, 1
    """)
    adv()
    a(f"""
    s_waitcnt vmcnt(2)
    s_barrier
    s_branch {lab}_unit
{lab}_slow:
    s_waitcnt vmcnt(0)
    """)
    roles.tsp(a,0,3,'s47',('s4','s5','s6'))
    set_flag(a,'s46',vtmp=(11,12))
    a(f"""
    s_add_u32 s46, s46, 256
    s_cmp_ge_u32 s47, 64
    s_cbranch_scc1 {lab}_done
    """)
    wait_flags(a,lab+'ws',2,'s45',fail,spin)
    roles.tsp(a,0,0,'s47',('s4','s5','s6'))
    for d in dma_list(16,14,'s42'): a(d)
    adv()
    a(f"""
    s_waitcnt vmcnt(0)
    s_barrier
    s_branch {lab}_unit
{lab}_done:
    """)
```

```python
import sys
from asmlib import Asm
from common import *
import chain7 as chain, roles, roles2, roles3
KN='interleave_layers__sliding_block__memory_aug_recurrent_mem_tr__prompt_kernel'
INIT='init_ws_kernel'
ALL={'CH','P','O','AH','AWO','F','ATT'}
def desc(K,nv=512,ns=102):
    return f'''
.amdhsa_kernel {K}
  .amdhsa_next_free_vgpr {nv}
  .amdhsa_next_free_sgpr {ns}
  .amdhsa_accum_offset {min(256,(nv+3)//4*4)}
  .amdhsa_group_segment_fixed_size 0
  .amdhsa_kernarg_size 104
  .amdhsa_user_sgpr_count 2
  .amdhsa_user_sgpr_kernarg_segment_ptr 1
  .amdhsa_system_sgpr_workgroup_id_x 1
.end_amdhsa_kernel
'''
def gen_init():
    a=Asm()
    a.label(INIT)
    nflag=FL_END
    a(f"""
    s_cmp_ge_u32 s2, 256
    s_cbranch_scc1 LI_end
    s_load_dwordx2 s[8:9], s[0:1], 96
    s_waitcnt lgkmcnt(0)
    s_mov_b32 s10, 0x10000000
    s_mov_b32 s11, 0x20000
    s_lshl_b32 s3, s2, 8
    v_add_u32 v1, s3, v0
    v_lshlrev_b32 v1, 4, v1                  ; 0 .. 1MB
    v_mov_b32 v4, 0
    v_mov_b32 v5, 0
    v_mov_b32 v6, 0
    v_mov_b32 v7, 0
    v_mov_b32 v8, -1
    v_mov_b32 v9, -1
    v_mov_b32 v10, -1
    v_mov_b32 v11, -1
    s_mov_b32 s12, {WS_FLAG}
    v_cmp_gt_u32 vcc, {nflag}, v1
    s_and_saveexec_b64 s[14:15], vcc
    s_cbranch_execz LI_a
    buffer_store_dwordx4 v[4:7], v1, s[8:11], s12 offen
LI_a:
    s_mov_b64 exec, s[14:15]
    s_mov_b32 s12, {WS_INB}
    buffer_store_dwordx4 v[8:11], v1, s[8:11], s12 offen
    s_mov_b32 s12, {WS_INB+0x100000}
    buffer_store_dwordx4 v[8:11], v1, s[8:11], s12 offen
    s_mov_b32 s12, {WS_MEM}
    v_cmp_gt_u32 vcc, 0x10000, v1
    s_and_saveexec_b64 s[14:15], vcc
    s_cbranch_execz LI_b
    buffer_store_dwordx4 v[8:11], v1, s[8:11], s12 offen
LI_b:
    s_mov_b64 exec, s[14:15]
LI_end:
    s_endpgm
    """)
    out,_,errs=a.finish()
    for e in errs.values(): print('LINT',e,file=sys.stderr)
    return out
def gen(cfg):
    en=cfg.get('roles',ALL)
    roles.TS=cfg.get('ts',False)
    roles.TSP=cfg.get('tsp',False)
    a=Asm(); K=KN
    a.label(K)
    clk0=''
    if cfg.get('clk'):
        clk0='''s_memtime s[100:101]
    s_memrealtime s[98:99]
    s_waitcnt lgkmcnt(0)
    s_lshl_b32 s24, s2, 5
    s_add_u32 s24, s24, 0xCB00000
    v_mov_b32 v2, s100
    v_mov_b32 v3, s98
    v_mov_b32 v4, s3
    v_mov_b32 v5, s5
    v_mov_b32 v6, 0
    s_mov_b64 exec, 1
    buffer_store_dwordx4 v[2:5], v6, s[8:11], s24 offen
    s_mov_b64 exec, -1'''
    tss=''
    if cfg.get('ts'):
        tss='''s_memrealtime s[98:99]
    s_waitcnt lgkmcnt(0)
    v_mov_b32 v3, s98
    s_lshl_b32 s24, s3, 2
    s_add_u32 s24, s24, 64
    v_mov_b32 v4, s24
    s_mov_b64 exec, 1
    buffer_store_dword v3, v4, s[12:15], 0 offen
    s_mov_b64 exec, -1'''
    a(f"""
    s_cmp_ge_u32 s2, 256
    s_cbranch_scc1 L_end
    s_load_dwordx2 s[8:9], s[0:1], 96        ; ws
    s_load_dwordx2 s[12:13], s[0:1], 88      ; dbg
    s_getreg_b32 s3, hwreg(HW_REG_XCC_ID, 0, 4)
    v_lshrrev_b32 v1, 6, v0
    s_nop 0
    v_readfirstlane_b32 s6, v1
    v_and_b32 v0, 63, v0                     ; lane
    s_waitcnt lgkmcnt(0)
    s_mov_b32 s10, 0x10000000
    s_mov_b32 s11, 0x20000
    s_mov_b32 s14, 256
    s_mov_b32 s15, 0x20000
    s_cmp_lg_u32 s6, 0
    s_cbranch_scc1 L_claimed
    v_mov_b32 v3, 1
    s_lshl_b32 s24, s3, 2
    v_mov_b32 v4, s24
    s_mov_b64 exec, 1
    buffer_atomic_add v3, v4, s[12:15], 0 offen sc0
    s_waitcnt vmcnt(0)
    v_mov_b32 v5, 0
    ds_write_b32 v5, v3
    s_waitcnt lgkmcnt(0)
    s_mov_b64 exec, -1
L_claimed:
    s_barrier
    v_mov_b32 v5, 0
    ds_read_b32 v3, v5
    s_waitcnt lgkmcnt(0)
    v_readfirstlane_b32 s5, v3
    s_barrier
    s_cmp_ge_u32 s5, 32
    s_cbranch_scc1 L_end
    {tss}
    {clk0}
    s_cmp_lt_u32 s3, 2
    s_cbranch_scc1 L_CH
    s_cmp_lt_u32 s3, 4
    s_cbranch_scc1 L_P
    s_cmp_eq_u32 s3, 4
    s_cbranch_scc1 L_ATT
    s_cmp_eq_u32 s3, 5
    s_cbranch_scc1 L_O
    s_cmp_eq_u32 s3, 6
    s_cbranch_scc1 L_AH
    s_cmp_lt_u32 s5, 8
    s_cbranch_scc1 L_AWO
    s_cmp_lt_u32 s5, 28
    s_cbranch_scc1 L_F
    s_branch L_end
L_fail:
    s_load_dwordx2 s[12:13], s[0:1], 88
    s_waitcnt lgkmcnt(0)
    s_mov_b32 s14, 256
    s_mov_b32 s15, 0x20000
    s_lshl_b32 s24, s3, 2
    s_add_u32 s24, s24, 128
    v_mov_b32 v4, s24
    s_add_u32 s25, s5, 1
    v_mov_b32 v3, s25
    s_mov_b64 exec, 1
    buffer_store_dword v3, v4, s[12:15], 0 offen
L_end:
    s_endpgm
    """)
    fail='L_fail'
    END='s_branch L_fin' if cfg.get('clk') else 's_endpgm'
    a.label('L_F')
    if 'F' in en:
        a("""
        s_sub_u32 s5, s5, 8
        s_lshr_b32 s7, s5, 2
        s_and_b32 s5, s5, 3
        s_mov_b32 s4, 0
        s_cmp_eq_u32 s7, 0
        s_cbranch_scc1 L_F0
        s_cmp_eq_u32 s7, 2
        s_cbranch_scc1 L_F2
        s_cmp_eq_u32 s7, 4
        s_cbranch_scc1 L_F3
        s_lshr_b32 s4, s7, 1
        """)
        roles3.emit_F(a,cfg,'T1',fail); a("s_endpgm")
        a.label('L_F0'); roles3.emit_F(a,cfg,'T0',fail); a("s_endpgm")
        a.label('L_F2'); roles3.emit_F(a,cfg,'T2',fail); a("s_endpgm")
        a.label('L_F3'); roles3.emit_F(a,cfg,'T3',fail)
    a(END)
    a.label('L_AWO')
    if 'AWO' in en:
        a("s_lshr_b32 s4, s5, 2\ns_and_b32 s5, s5, 3")
        roles3.emit_AWO(a,cfg,fail)
    a(END)
    a.label('L_ATT')
    if 'ATT' in en:
        roles3.emit_ATT(a,cfg,fail)
    a(END)
    a.label('L_AH')
    if 'AH' in en: roles2.emit_AH(a,cfg,fail)
    a(END)
    def gate(name):
        if not cfg.get('gate',True): return
        a(f"s_cmp_eq_u32 s4, 0\ns_cbranch_scc1 {name}_ng\ns_mov_b32 s12, {WS_FLAG+FL_XN+cfg.get('gate_t',1)*64*128+cfg.get('gate_s',0)*128}")
        roles.wait_flags(a,name+'g',16,'s12',fail,cfg.get('spin',roles.SPIN_DEFAULT),vtmp=(8,9),sleep=8)
        a.label(name+'_ng')
    a.label('L_O')
    if 'O' in en:
        a("s_lshr_b32 s4, s5, 4\ns_and_b32 s5, s5, 15")
        gate('L_O')
        roles3.emit_O5(a,cfg,fail)
    a(END)
    a.label('L_P')
    if 'P' in en:
        a("s_sub_u32 s4, s3, 2")
        gate('L_P')
        roles3.emit_P(a,cfg,fail)
    a(END)
    a.label('L_CH')
    if 'CH' in en:
        a("s_mov_b32 s4, s3")
        gate('L_CH')
        c=dict(FL_P=FL_P,FL_CH=FL_CH); c.update(cfg)
        chain.emit_chain(a,c,fail)
        if cfg.get('stamps') or cfg.get('tot'):
            a("""
            s_load_dwordx2 s[12:13], s[0:1], 96
            s_waitcnt lgkmcnt(0)
            s_mov_b32 s14, 0x10000000
            s_mov_b32 s15, 0x20000
            s_memtime s[70:71]
            s_waitcnt lgkmcnt(0)
            s_sub_u32 s75, s70, s74
            s_lshl_b32 s32, s4, 5
            s_add_u32 s32, s32, s5
            s_lshl_b32 s32, s32, 2
            s_add_u32 s32, s32, s6
            s_lshl_b32 s32, s32, 6
            s_add_u32 s32, s32, 0xC800000
            v_mov_b32 v32, s32
            """)
            for k in range(10): a(f"v_mov_b32 v{36+k}, s{76+k}")
            a("""
            v_mov_b32 v45, s88
            v_mov_b32 v46, s75
            v_mov_b32 v47, s59
            s_mov_b64 exec, 1
            buffer_store_dwordx4 v[36:39], v32, s[12:15], 0 offen
            buffer_store_dwordx4 v[40:43], v32, s[12:15], 0 offen offset:16
            buffer_store_dwordx4 v[44:47], v32, s[12:15], 0 offen offset:32
            s_mov_b64 exec, -1
            """)
        a("""
        s_cmp_eq_u32 s59, 0
        s_cbranch_scc1 L_CHend
        s_branch L_fail
L_CHend:
        """)
    a(END)
    if cfg.get('clk'):
        a('''
L_fin:
    s_cmp_lg_u32 s6, 0
    s_cbranch_scc1 L_fin2
    s_memtime s[100:101]
    s_memrealtime s[98:99]
    s_waitcnt lgkmcnt(0)
    s_lshl_b32 s24, s2, 5
    s_add_u32 s24, s24, 0xCB00010
    v_mov_b32 v2, s100
    v_mov_b32 v3, s98
    v_mov_b32 v5, 0
    s_mov_b64 exec, 1
    buffer_store_dwordx2 v[2:3], v5, s[8:11], s24 offen
L_fin2:
    s_endpgm
''')
    out,total,errs=a.finish()
    for e in list(errs.values())[:10]: print('LINT',e,file=sys.stderr)
    print('nops inserted',total,'instrs',len(out),file=sys.stderr)
    withinit=cfg.get('init',True)
    if withinit:
        hdr=f"""; @launch kernel={INIT} grid=(256,1,1) block=(256,1,1) lds=0
; @launch kernel={K} grid=(256,1,1) block=(256,1,1) lds=163840
"""
    else:
        hdr=f"; @launch grid=(256,1,1) block=(256,1,1) lds=163840\n"
    txt=hdr+f""".amdgcn_target "amdgcn-amd-amdhsa--gfx950"
.text
.globl {K}
.p2align 8
.type {K},@function
"""+'\n'.join(out)+'\n'
    if withinit:
        txt+=f""".globl {INIT}
.p2align 8
.type {INIT},@function
"""+'\n'.join(gen_init())+'\n'
    txt+='.section .rodata,"a"\n.p2align 6\n'+desc(K)
    if withinit: txt+='.p2align 6\n'+desc(INIT,16,32)
    return txt
if __name__=='__main__':
    s=gen(dict())
    open('m.s','w').write(s)
    print(len(s),'bytes')
    import subprocess
    r=subprocess.run(['clang','-x','assembler','-target','amdgcn-amd-amdhsa','-mcpu=gfx950','-c','m.s','-o','m.o'],capture_output=True,text=True); print(r.stderr)
```

```python
from common import *
import roles
SCALE_LOG2E=0x3e0293ee

L_MEM=0; L_XI=8192; XI_ROW=48; L_OI=L_XI+128*XI_ROW
L_KX=L_OI+2048; L_VX=L_KX+8192; L_WO=32768
assert L_VX+8192==L_WO

def emit_weights(a):
    a("""
    s_load_dwordx2 s[12:13], s[0:1], 40      ; Wq
    s_load_dwordx2 s[16:17], s[0:1], 48      ; Wk
    s_load_dwordx2 s[20:21], s[0:1], 56      ; Wv
    s_load_dwordx2 s[24:25], s[0:1], 64      ; Wo
    s_load_dwordx2 s[28:29], s[0:1], 32      ; mem0
    s_waitcnt lgkmcnt(0)
    s_mov_b32 s14, 4194304
    s_mov_b32 s15, 0x20000
    s_mov_b32 s18, 4194304
    s_mov_b32 s19, 0x20000
    s_mov_b32 s22, 4194304
    s_mov_b32 s23, 0x20000
    s_mov_b32 s26, 4194304
    s_mov_b32 s27, 0x20000
    s_mov_b32 s30, 8192
    s_mov_b32 s31, 0x20000
    v_and_b32 v60, 15, v0
    v_lshrrev_b32 v61, 4, v0
    v_and_b32 v62, 1, v61
    v_lshlrev_b32 v63, 13, v61
    s_lshl_b32 s32, s5, 8
    v_add_u32 v63, s32, v63
    """)
    for var in range(4):
        a(f"""
        v_lshlrev_b32 v64, 1, v62
        v_or_b32 v64, {var*4}, v64
        v_xor_b32 v64, v60, v64
        v_lshl_add_u32 v{40+var}, v64, 4, v63
        """)
    a(f"""
    v_lshrrev_b32 v62, 2, v60
    v_and_b32 v63, 3, v60
    v_lshrrev_b32 v64, 1, v61
    v_and_b32 v65, 1, v61
    v_lshrrev_b32 v66, 1, v62
    v_and_b32 v67, 1, v62
    v_lshlrev_b32 v68, 4, v64
    v_lshl_add_u32 v68, v66, 3, v68
    v_lshl_add_u32 v68, v65, 2, v68
    v_add_u32 v68, v68, v67
    v_lshl_add_u32 v69, v65, 1, v67
    v_lshl_add_u32 v69, v66, 2, v69
    v_lshlrev_b32 v69, 1, v69
    s_lshl_b32 s32, s6, 2
    v_lshrrev_b32 v70, 1, v63
    v_add_u32 v70, s32, v70
    v_xor_b32 v70, v70, v69
    v_lshlrev_b32 v70, 4, v70
    v_and_b32 v71, 1, v63
    v_lshl_add_u32 v70, v71, 3, v70
    v_lshl_add_u32 v72, v68, 8, v70
    v_xor_b32 v73, 32, v72                   ; tile 1
    """)
    a("""
    v_and_b32 v62, 1, v61
    v_lshlrev_b32 v63, 10, v61
    s_lshl_b32 s32, s5, 17
    v_add_u32 v63, s32, v63
    """)
    for var in range(4):
        a(f"""
        v_lshlrev_b32 v64, 1, v62
        v_or_b32 v64, {var*4}, v64
        v_xor_b32 v64, v60, v64
        v_lshl_add_u32 v{50+var}, v64, 4, v63
        """)
    a(f"""
    v_lshrrev_b32 v62, 2, v60
    v_lshrrev_b32 v64, 1, v61
    v_and_b32 v65, 1, v61
    v_lshrrev_b32 v66, 1, v62
    v_and_b32 v67, 1, v62
    v_lshlrev_b32 v68, 5, v66
    v_lshl_add_u32 v68, v65, 4, v68
    v_lshl_add_u32 v68, v64, 2, v68
    v_add_u32 v68, v68, v67
    v_lshl_add_u32 v54, v68, 8, v70
    v_xor_b32 v55, 32, v54
    v_lshlrev_b32 v56, 4, v0
    s_and_b32 s36, s6, 1
    s_cmp_eq_u32 s36, 0
    s_cselect_b64 vcc, -1, 0
    v_cndmask_b32 v58, v52, v50, vcc
    v_cndmask_b32 v59, v53, v51, vcc
    """)
    def wreg(M,t,kk,m):
        base={'Q':0,'K':128}.get(M); idx=(t*8+kk)*8+2*m
        if M=='V': return f"v[{128+idx}:{128+idx+1}]"
        return f"a[{base+idx}:{base+idx+1}]"
    srd={'Q':'s[12:15]','K':'s[16:19]','V':'s[20:23]'}
    def qk_job(M,h,buf):
        base=L_WO+buf*65536
        def issue():
            a(f"s_lshl_b32 s33, s6, 19\ns_add_u32 s33, s33, {h*256*8192}\ns_lshl_b32 s34, s6, 14\ns_add_u32 s34, s34, {base}")
            for n in range(16):
                a(f"s_add_u32 m0, s34, {4*n*256}\ns_add_u32 s35, s33, {4*n*8192}\nbuffer_load_dwordx4 v{40+(n&3)}, {srd[M]}, s35 offen lds")
        def consume():
            a(f"v_add_u32 v44, {base}, v72\nv_add_u32 v45, {base}, v73")
            for t in range(2):
                for k4 in range(4):
                    kk=4*h+k4
                    for m in range(4):
                        off=(64*k4+32*(m>>1)+2*(m&1))*256
                        a(f"ds_read_b64_tr_b16 {wreg(M,t,kk,m)}, v{44+t} offset:{off}")
                    a("s_waitcnt lgkmcnt(8)")
        return (16,issue,consume)
    def v_job(r,buf):
        base=L_WO+65536+buf*32768
        def issue():
            a(f"s_lshl_b32 s33, s6, 18\ns_add_u32 s33, s33, {r*128*8192}\ns_lshl_b32 s34, s6, 13\ns_add_u32 s34, s34, {base}")
            for n in range(8):
                a(f"s_add_u32 m0, s34, {4*n*256}\ns_add_u32 s35, s33, {4*n*8192}\nbuffer_load_dwordx4 v{40+(n&3)}, s[20:23], s35 offen lds")
        def consume():
            a(f"v_add_u32 v44, {base}, v72\nv_add_u32 v45, {base}, v73")
            for t in range(2):
                for k2 in range(2):
                    kk=2*r+k2
                    for m in range(4):
                        off=(64*k2+32*(m>>1)+2*(m&1))*256
                        a(f"ds_read_b64_tr_b16 {wreg('V',t,kk,m)}, v{44+t} offset:{off}")
            a("s_waitcnt lgkmcnt(0)")
        return (8,issue,consume)
    def wo_job(j):
        def issue():
            a(f"s_lshl_b32 s33, s6, 15\ns_add_u32 s33, s33, {j*256}\ns_lshl_b32 s34, s6, 13")
            for n in range(8):
                a(f"s_add_u32 m0, s34, {4*n*256}\ns_add_u32 s35, s33, {4*n*1024}\nbuffer_load_dwordx4 v{58+(n>>2)}, s[24:27], s35 offen lds")
        def consume():
            for t in range(2):
                for kk in range(2):
                    for m in range(4):
                        off=(64*kk+8*(m>>1)+2*(m&1))*256; r=96+((t*2+kk)*8)+2*m
                        a(f"ds_read_b64_tr_b16 v[{r}:{r+1}], v{54+t} offset:{off}")
            a(f"s_lshl_b32 s36, s6, 13\ns_add_u32 s36, s36, {L_WO+j*32768}\nv_add_u32 v47, s36, v56\ns_waitcnt lgkmcnt(0)")
            for t in range(2):
                for kk in range(2):
                    for q in range(2):
                        r=96+((t*2+kk)*8)+4*q
                        a(f"ds_write_b128 v47, v[{r}:{r+3}] offset:{(t*2+kk)*2048+q*1024}")
        return (8,issue,consume)
    jobs=[qk_job('Q',0,0),qk_job('Q',1,1),qk_job('K',0,0),qk_job('K',1,1),
          v_job(0,0),v_job(1,1),wo_job(0),v_job(2,0),v_job(3,1),wo_job(1),wo_job(2),wo_job(3)]
    dep={0:-1,1:-1,2:0,3:1,4:3,5:3,6:-1,7:4,8:5,9:6,10:9,11:10}
    order_issue=[0,1,6,2,3,4,5,7,8,9,10,11]
    issued=[]; outstanding=[]
    def try_issue(consumed):
        for i in order_issue:
            if i not in issued and dep[i]<=consumed_max[0] and (dep[i]==-1 or dep[i] in done):
                jobs[i][1](); issued.append(i); outstanding.append(i)
            elif i not in issued: break
    done=set(); consumed_max=[-1]
    def pump():
        for i in order_issue:
            if i in issued: continue
            if dep[i]==-1 or dep[i] in done:
                jobs[i][1](); issued.append(i); outstanding.append(i)
            else: break
    consume_order=[0,1,2,3,4,5,6,7,8,9,10,11]
    pump()
    for i in consume_order:
        if i in outstanding:
            k=outstanding.index(i)
            younger=sum(jobs[x][0] for x in outstanding[k+1:])
            a(f"s_waitcnt vmcnt({min(younger,63)})\ns_barrier")
            outstanding[:]=outstanding[k+1:]
        jobs[i][2]()
        a("s_waitcnt lgkmcnt(0)\ns_barrier")
        done.add(i)
        pump()

def emit_chain(a, cfg, fail):
    st=cfg.get('st','')
    nsteps=cfg.get('nsteps',64)
    stamps=cfg.get('stamps',False)
    SPIN=cfg.get('spin',400000)
    lab=a.new('ch')
    def stamp(k):
        if not stamps: return
        a(f"""
        s_memtime s[70:71]
        s_waitcnt lgkmcnt(0)
        s_sub_u32 s73, s70, s72
        s_add_u32 s{76+k}, s{76+k}, s73
        s_mov_b32 s72, s70
        """)
    trace=cfg.get('trace',0)
    def tr(k):
        pass
    def tp(k):
        if trace: a(f"s_memtime s[{70+2*k}:{71+2*k}]")
    if stamps or cfg.get('tot'): a("s_memtime s[68:69]")
    emit_weights(a)
    IDX=1; AMEM=2; XQW=3; XKW=4; XQR=5; XKR=6; KXR=7; VXR=8; L16=9; GPART=10; AOFF=11; OIW=12; OIR=13; WOR=14; GVM=15; GPUB=102
    ONES=16; PM=20; VM0=22; VM1=24; T=26
    a(f"""
    v_and_b32 v60, 15, v0                    ; c / rho
    v_lshrrev_b32 v61, 4, v0                 ; g
    v_lshrrev_b32 v62, 2, v60
    v_and_b32 v63, 1, v60
    v_lshl_add_u32 v62, v62, 1, v63
    v_bfe_u32 v63, v60, 1, 1                 ; hi
    v_mov_b32 v{IDX}, 0x4444
    v_mov_b32 v64, 0xeeee
    v_cmp_eq_u32 vcc, 1, v63
    v_lshlrev_b32 v{AOFF}, 8, v61
    v_lshl_add_u32 v{AOFF}, v62, 5, v{AOFF}
    v_cndmask_b32 v{IDX}, v{IDX}, v64, vcc
    v_lshl_add_u32 v{AOFF}, v63, 4, v{AOFF}
    v_lshlrev_b32 v{AMEM}, 4, v0
    v_lshl_add_u32 v66, v63, 2, v61
    v_lshlrev_b32 v{OIR}, 7, v66
    v_lshl_add_u32 v{OIR}, v62, 4, v{OIR}
    v_add_u32 v{OIR}, {L_OI}, v{OIR}
    s_lshl_b32 s32, s6, 5
    v_add_u32 v66, s32, v60
    v_mul_u32_u24 v66, {XI_ROW}, v66
    v_add_u32 v66, {L_XI}, v66
    v_lshl_add_u32 v{XQW}, v61, 2, v66
    v_lshl_add_u32 v{XKW}, v61, 3, v66
    v_add_u32 v{XKW}, 16, v{XKW}
    v_lshrrev_b32 v66, 2, v60
    v_lshrrev_b32 v67, 1, v61
    v_and_b32 v65, 1, v61
    v_lshl_add_u32 v66, v67, 4, v66
    v_lshl_add_u32 v66, v65, 2, v66
    s_lshl_b32 s32, s6, 5
    v_add_u32 v66, s32, v66
    v_mul_u32_u24 v66, {XI_ROW}, v66
    v_add_u32 v66, {L_XI}, v66
    v_and_b32 v68, 1, v0
    v_lshl_add_u32 v{XQR}, v68, 3, v66
    v_and_b32 v68, 3, v0
    v_lshl_add_u32 v{XKR}, v68, 3, v66
    v_add_u32 v{XKR}, 16, v{XKR}
    v_and_b32 v68, 7, v60
    v_lshrrev_b32 v69, 3, v60
    v_lshl_add_u32 v66, v69, 4, v68
    v_lshl_add_u32 v66, v65, 5, v66
    v_lshlrev_b32 v{KXR}, 4, v66
    v_lshl_add_u32 v{KXR}, v67, 10, v{KXR}
    s_lshl_b32 s32, s6, 11
    s_add_u32 s32, s32, {L_KX}
    v_add_u32 v{KXR}, s32, v{KXR}
    s_lshl_b32 s32, s6, 11
    s_add_u32 s33, s32, {L_VX}
    v_lshl_add_u32 v66, v65, 5, v60
    v_lshlrev_b32 v{VXR}, 4, v66
    v_lshl_add_u32 v{VXR}, v67, 10, v{VXR}
    v_add_u32 v{VXR}, s33, v{VXR}
    v_lshlrev_b32 v{L16}, 4, v0
    s_lshl_b32 s32, s6, 16
    s_lshl_b32 s33, s5, 8
    s_add_u32 s32, s32, s33
    v_lshlrev_b32 v{GPART}, 13, v61
    v_lshl_add_u32 v{GPART}, v60, 4, v{GPART}
    v_add_u32 v{GPART}, s32, v{GPART}
    s_lshl_b32 s32, s6, 9
    s_add_u32 s33, s32, {L_OI}
    v_lshlrev_b32 v{OIW}, 7, v61
    v_lshl_add_u32 v{OIW}, v68, 4, v{OIW}
    v_add_u32 v{OIW}, s33, v{OIW}
    s_lshl_b32 s32, s6, 9
    s_add_u32 s33, s32, 2048
    v_add_u32 v{GVM}, s33, v{L16}
    s_lshl_b32 s32, s6, 15
    s_add_u32 s32, s32, {L_WO}
    v_add_u32 v{WOR}, s32, v{L16}
    v_mov_b32 v{ONES}, 0x3f803f80
    v_mov_b32 v{ONES+1}, 0x3f803f80
    v_mov_b32 v{ONES+2}, 0x3f803f80
    v_mov_b32 v{ONES+3}, 0x3f803f80
    v_mov_b32 v{PM+1}, 0
    v_mov_b32 v{VM0+1}, 0
    v_mov_b32 v{VM1+1}, 0
    s_mov_b32 s40, 0x00ff00ff
    s_mov_b32 s41, 0x00ff00ff
    s_mov_b32 s60, 0x33333333
    s_mov_b32 s61, 0x33333333
    s_lshl_b32 s32, s4, 11
    s_add_u32 s32, s32, s5
    s_mul_i32 s42, s32, {QKV_BLK}
    s_lshl_b32 s43, s32, 12
    s_add_u32 s43, s43, {WS_KM}
    s_lshl_b32 s44, s4, 15
    s_add_u32 s45, s44, {WS_MEM}
    s_add_u32 s46, s45, 8192
    s_add_u32 s47, s45, 16384
    s_lshl_b32 s48, s4, 20
    s_add_u32 s48, s48, {WS_INB}
    s_mov_b32 s49, 0
    s_mov_b32 s58, 0
    s_lshl_b32 s50, s5, 13
    s_mov_b32 s51, 0
    s_mov_b32 s52, {SCALE_LOG2E}
    s_mov_b32 s59, 0
    s_lshl_b32 s53, s32, 5
    s_add_u32 s53, s53, {WS_FLAG+FL_P}       ; (l,s,h) 32B, step 1024
    s_lshl_b32 s54, s32, 4
    s_lshl_b32 s33, s6, 2
    s_add_u32 s54, s54, s33
    s_add_u32 s54, s54, {WS_FLAG+FL_CH}      ; (l,s,h,w) step 512
    """)
    a(f"s_mov_b32 s38, {SCALE_LOG2E}\ns_mov_b32 s39, {SCALE_LOG2E}")
    MEMA=28; AQ=60; AK=68; AV=76; S=84; XB=[60,96,60,96]; OACC=[96,112]
    VMW=GVM
    def wait_p(name):
        a(f"""
        s_mov_b32 s55, 0
{name}_spin:
        v_and_b32 v{T}, 3, v0
        v_lshlrev_b32 v{T}, 2, v{T}
        buffer_load_dword v{T}, v{T}, s[8:11], s53 offen sc1
        s_waitcnt vmcnt(0)
        v_cmp_eq_u32 vcc, 0, v{T}
        s_cbranch_vccz {name}_ok
        s_add_u32 s55, s55, 1
        s_cmp_gt_u32 s55, {SPIN}
        s_cbranch_scc1 {lab}_fail
        s_sleep 2
        s_branch {name}_spin
{name}_ok:
        """)
    def kx_dma_list(w):
        return [f"s_add_u32 m0, s35, {w*2048}\ns_add_u32 s33, s67, {8192+w*2048}\nbuffer_load_dwordx4 v{L16}, s[8:11], s33 offen sc1 lds",
                f"buffer_load_dwordx4 v{L16}, s[8:11], s33 offen offset:1024 sc1 lds"]
    def vx_dma_list(w):
        return [f"s_mov_b32 m0, {L_VX+w*2048}\ns_add_u32 s33, s42, {16384+w*2048}\nbuffer_load_dwordx4 v{L16}, s[8:11], s33 offen sc1 lds",
                f"buffer_load_dwordx4 v{L16}, s[8:11], s33 offen offset:1024 sc1 lds"]
    def kmvm_prep(w):
        a(f"""
        ds_read_b64_tr_b16 v[88:89], v{XKR}
        ds_read_b64_tr_b16 v[90:91], v{XKR} offset:{8*XI_ROW}
        v_mov_b32 v92, v{VM0}
        v_mov_b32 v93, v{VM1}
        v_mov_b32 v94, 0
        v_mov_b32 v95, 0
        v_and_b32 v26, 15, v0
        v_lshrrev_b32 v27, 2, v26
        v_permlane32_swap_b32 v92, v94
        v_permlane32_swap_b32 v93, v95
        v_and_b32 v26, 1, v26
        v_lshl_add_u32 v26, v27, 1, v26          ; m(c)
        v_permlane16_swap_b32 v92, v93
        v_permlane16_swap_b32 v94, v95
        v_lshrrev_b32 v27, 4, v0
        v_lshlrev_b32 v27, 7, v27
        v_lshl_add_u32 v27, v26, 4, v27          ; g*128 + m*16
        v_add_u32 v27, {w*512}, v27
        s_mov_b32 s66, s43
        """)
    def kmvm_issue():
        return [f"s_mov_b32 exec_hi, 0\nbuffer_store_dwordx4 v[92:95], v{GVM}, s[8:11], s66 offen sc1\ns_mov_b32 exec_hi, -1",
                f"s_mov_b64 exec, s[60:61]\nbuffer_store_dwordx4 v[88:91], v27, s[8:11], s66 offen sc1\ns_mov_b64 exec, -1"]
    def zero_accs():
        for r in range(AQ,AQ+24,2): a(f"v_mov_b64 v[{r}:{r+1}], 0")
        for r in range(96,128,2): a(f"v_mov_b64 v[{r}:{r+1}], 0")
    wait_p(lab+'_p0')
    a(f"""
    s_lshl_b32 s34, s6, 11
    s_add_u32 m0, s34, {L_KX}
    s_add_u32 s33, s42, s34
    s_add_u32 s33, s33, 8192
    buffer_load_dwordx4 v{L16}, s[8:11], s33 offen sc1 lds
    buffer_load_dwordx4 v{L16}, s[8:11], s33 offen offset:1024 sc1 lds
    v_bfe_u32 v60, v{AOFF}, 5, 3              ; i
    v_lshrrev_b32 v61, 8, v{AOFF}             ; ga
    v_bfe_u32 v62, v{AOFF}, 4, 1              ; hi
    v_lshlrev_b32 v63, 10, v60
    v_lshl_add_u32 v63, v61, 5, v63
    v_lshl_add_u32 v63, v62, 4, v63
    s_lshl_b32 s32, s6, 8                     ; 2w*64*2
    v_add_u32 v63, s32, v63
    buffer_load_dwordx4 v[20:23], v63, s[28:31], 0 offen
    buffer_load_dwordx4 v[84:87], v63, s[28:31], 0 offen offset:128
    s_waitcnt vmcnt(0)
    """)
    zero_accs()
    a(f"v_mov_b32 v27, 0\ns_mov_b32 s66, {WS_SCR}")
    for r in range(88,96): a(f"v_mov_b32 v{r}, 0")
    if stamps or cfg.get('tot'):
        a("s_memtime s[70:71]\ns_waitcnt lgkmcnt(0)\ns_mov_b32 s72, s70\ns_mov_b32 s74, s70\ns_sub_u32 s88, s70, s68")
        for k in range(12): a(f"s_mov_b32 s{76+k}, 0")
    def W(M,t,kk):
        idx=(t*8+kk)*8
        if M=='V': return f"v[{128+idx}:{128+idx+7}]"
        base={'Q':0,'K':128}[M]; return f"a[{base+idx}:{base+idx+7}]"
    def smf(M,t,kk):
        acc={'Q':AQ,'K':AK,'V':AV}[M]+4*t
        a(f"v_smfmac_f32_16x16x64_bf16 v[{acc}:{acc+3}], v[{MEMA+4*kk}:{MEMA+4*kk+3}], {W(M,t,kk)}, v{IDX}")
    def wo_read(o,reg):
        a(f"ds_read_b128 v[{reg}:{reg+3}], v{WOR} offset:{o*2048}\nds_read_b128 v[{reg+4}:{reg+7}], v{WOR} offset:{o*2048+1024}")
    for w in range(4):
        a(f"s_cmp_eq_u32 s6, {w}\ns_cbranch_scc1 {lab}_ent{w}")
    def body(w):
        L=f"{lab}_w{w}"
        own=[2*w,2*w+1]; oth=[k for k in range(8) if k not in own]
        a.label(lab+f'_ent{w}')
        for j in range(4):
            a(f"v_mov_b32 v{MEMA+4*own[0]+j}, v{20+j}\nv_mov_b32 v{MEMA+4*own[1]+j}, v{84+j}")
        a(f"v_mov_b32 v{PM+1}, 0\nv_mov_b32 v{VM0+1}, 0\nv_add_u32 v26, {w*2048}, v{AMEM}")
        a(f"ds_write_b128 v26, v[{MEMA+4*own[0]}:{MEMA+4*own[0]+3}]\nds_write_b128 v26, v[{MEMA+4*own[1]}:{MEMA+4*own[1]+3}] offset:1024")
        a.label(L+'_go')
        if trace:
            a(f"""
            s_cmp_lg_u32 s51, {trace}
            s_cbranch_scc1 {L}_notr
            s_waitcnt lgkmcnt(0)
            s_lshl_b32 s32, s4, 5
            s_add_u32 s32, s32, s5
            s_lshl_b32 s32, s32, 2
            s_add_u32 s32, s32, s6
            s_lshl_b32 s32, s32, 6
            s_add_u32 s32, s32, 0xC900000
            """)
            for k in range(14): a(f"v_mov_b32 v{112+k}, s{70+2*k}")
            a(f"""
            v_mov_b32 v126, s55
            v_mov_b32 v127, 0
            s_mov_b64 exec, 1
            buffer_store_dwordx4 v[112:115], v127, s[8:11], s32 offen
            buffer_store_dwordx4 v[116:119], v127, s[8:11], s32 offen offset:16
            buffer_store_dwordx4 v[120:123], v127, s[8:11], s32 offen offset:32
            buffer_store_dwordx4 v[124:127], v127, s[8:11], s32 offen offset:48
            s_mov_b64 exec, -1
            s_waitcnt vmcnt(0)
            """)
            for r in range(112,128,2): a(f"v_mov_b64 v[{r}:{r+1}], 0")
            a.label(L+'_notr')
        tp(0)
        def run(carriers, sides):
            for n,x in enumerate(carriers):
                smf(*x)
                for ins in sides.get(n,[]): a(ins)
        run([('Q',0,own[0]),('Q',1,own[0]),('K',0,own[0]),('K',1,own[0]),('Q',0,own[1]),('Q',1,own[1])],
            {0:["s_and_b32 s57, s51, 1", f"s_add_u32 s32, s53, 1024"], 1:[f"v_and_b32 v{T}, 3, v0"]})
        a("s_waitcnt lgkmcnt(0)\ns_barrier")
        tp(1)
        stamp(7)
        rd=[f"ds_read_b128 v[{MEMA+4*kk}:{MEMA+4*kk+3}], v{AMEM} offset:{kk*1024}" for kk in oth]
        a(rd[0]); a(rd[1])
        F_ld=f"buffer_load_dword v{T}, v{T}, s[8:11], s32 offen sc1"
        X=vx_dma_list(w); Sx=kmvm_issue()
        X0=X[0].split('\n'); S0=Sx[0].split('\n'); S1=Sx[1].split('\n')
        if cfg.get('noS'): S0=S1=["s_nop 0"]*3
        if cfg.get('noX'): X0=["s_nop 0"]*3; X=[None,"s_nop 0"]
        if cfg.get('noK'): F_ld="s_nop 0"
        run([('K',0,own[1]),('K',1,own[1]),('V',0,own[0]),('V',1,own[0]),('V',0,own[1]),('V',1,own[1])],
            {0:[rd[2],rd[3]], 1:[rd[4],rd[5]], 2:[f"v_lshlrev_b32 v{T}, 2, v{T}"], 3+(w&1):[F_ld] })
        car=[('Q',t,kk) for kk in oth for t in range(2)]
        sides={}
        def put(n,ins): sides.setdefault(n,[]).append(ins)
        for j in range(6): put(2*j-1 if j else -1, f"s_waitcnt lgkmcnt({5-j})")
        a("s_waitcnt lgkmcnt(5)")
        sides.pop(-1,None)
        put(0+w, X0[0]); put(0+w, X0[1]); put(1+w, X0[2]); put(5+w, X[1])
        run(car,sides)
        car=[('K',t,kk) for kk in oth for t in range(2)]
        sides={}
        for x in S0: put(0+(w&1),x)
        for x in S1: put(2+(w&1),x)
        put(4,f"v_add_f32 v{AQ}, v{AQ}, v{AQ+2}"); put(5,f"v_add_f32 v{AQ+1}, v{AQ+1}, v{AQ+3}")
        put(6,f"v_add_f32 v{AQ+4}, v{AQ+4}, v{AQ+6}"); put(7,f"v_add_f32 v{AQ+5}, v{AQ+5}, v{AQ+7}")
        put(8,f"v_cvt_pk_bf16_f32 v{AQ}, v{AQ}, v{AQ+1}"); put(9,f"v_cvt_pk_bf16_f32 v{AQ+1}, v{AQ+4}, v{AQ+5}")
        put(10,f"ds_write2_b32 v{XQW}, v{AQ}, v{AQ+1} offset0:0 offset1:{16*XI_ROW//4}")
        put(10,f"ds_read_b64_tr_b16 v[84:85], v{XQR}"); put(11,f"ds_read_b64_tr_b16 v[86:87], v{XQR} offset:{8*XI_ROW}")
        put(11,f"ds_read_b128 v[60:63], v{KXR}")
        run(car,sides)
        tp(2)
        stamp(0)
        vseq=[('V',t,kk) for kk in oth for t in range(2)]
        run(vseq[0:3],{0:[f"ds_read_b128 v[64:67], v{KXR} offset:128"]})
        a(f"""
        s_nop 2
        v_add_f32 v{AK}, v{AK}, v{AK+2}
        v_add_f32 v{AK+1}, v{AK+1}, v{AK+3}
        v_add_f32 v{AK+4}, v{AK+4}, v{AK+6}
        v_add_f32 v{AK+5}, v{AK+5}, v{AK+7}
        v_cvt_pk_bf16_f32 v{AK}, v{AK}, v{AK+1}
        v_cvt_pk_bf16_f32 v{AK+1}, v{AK+4}, v{AK+5}
        ds_write2_b32 v{XKW}, v{AK}, v{AK+1} offset0:0 offset1:{16*XI_ROW//4}
        ds_read_b64_tr_b16 v[72:73], v{XKR}
        ds_read_b64_tr_b16 v[74:75], v{XKR} offset:{8*XI_ROW}
        s_waitcnt lgkmcnt(3)
        v_mfma_f32_16x16x32_bf16 v[88:91], v[60:63], v[84:87], 0
        v_mfma_f32_16x16x32_bf16 v[92:95], v[64:67], v[84:87], 0
        """)
        run(vseq[3:8],{0:[f"s_xor_b32 s34, s49, {L_KX}",f"s_add_u32 s34, s34, {w*2048}"],1:[f"v_add_u32 v54, s34, v{L16}"] ,
                       2:[f"v_lshrrev_b32 v55, 1, v{L16}"],3:[f"v_add_u32 v55, s34, v55"]} if False else {})
        a(f"""
        s_waitcnt lgkmcnt(0)
        v_mfma_f32_16x16x32_bf16 v[68:71], v[72:75], v[84:87], 0
        """)
        run(vseq[8:12],{0:[f"s_xor_b32 s34, s49, {L_KX}",f"s_add_u32 s34, s34, {w*2048}",f"v_cndmask_b32 v88, v92, v88, s[40:41]"],
                        1:[f"v_cndmask_b32 v89, v93, v89, s[40:41]"],2:[f"v_cndmask_b32 v90, v94, v90, s[40:41]"],3:[f"v_cndmask_b32 v91, v95, v91, s[40:41]"]})
        a(f"""
        v_add_u32 v92, s34, v{L16}
        v_lshrrev_b32 v93, 1, v{L16}
        v_add_u32 v93, s34, v93
        ds_write_b128 v92, v[88:91]
        ds_write_b64 v93, v[68:69] offset:1024
        s_waitcnt vmcnt(4)
        v_cmp_eq_u32 vcc, 0, v{T}
        s_cmp_eq_u64 vcc, 0
        s_cselect_b32 s56, 1, 0
        s_mov_b32 s58, 1
        s_mov_b32 s35, s49
        s_add_u32 s67, s42, {32*QKV_BLK}
        s_cmp_ge_u32 s51, {nsteps-1}
        s_cselect_b32 s56, 0, s56
        s_cselect_b32 s58, 0, s58
        {'s_mov_b32 s56, 1' if cfg.get('noK') else ''}
        s_cmp_eq_u32 s56, 0
        s_cselect_b32 s58, s58, 2
        s_waitcnt lgkmcnt(0)
        """)
        tp(3)
        a("s_barrier")
        tp(4)
        stamp(1)
        ow=[x for x in range(4) if x!=w]
        a(f"s_xor_b32 s34, s49, {L_KX}\nv_add_u32 v92, s34, v{L16}\nv_lshrrev_b32 v93, 1, v{L16}\nv_add_u32 v93, s34, v93")
        for j,x in enumerate(ow):
            a(f"ds_read_b128 v[{28+6*j}:{31+6*j}], v92 offset:{x*2048}\nds_read_b64 v[{32+6*j}:{33+6*j}], v93 offset:{x*2048+1024}")
        def wo(o,reg): wo_read(o,reg)
        kd=kx_dma_list(w)
        if cfg.get('noK'): kd=["s_nop 0","s_nop 0"]
        a(f"s_cmp_eq_u32 s58, 2\ns_cbranch_scc0 {L}_nk")
        a(kd[0]); a(kd[1])
        a(f"s_waitcnt vmcnt(4)\ns_branch {L}_nk2\n{L}_nk:\ns_waitcnt vmcnt(2)\n{L}_nk2:")
        a(f"ds_read_b128 v[52:55], v{VXR}\nds_read_b128 v[56:59], v{VXR} offset:256")
        wo(0,60)
        a(f"""
        s_waitcnt lgkmcnt(8)
        v_pk_add_f32 v[88:89], v[88:89], v[28:29]
        v_pk_add_f32 v[90:91], v[90:91], v[30:31]
        v_pk_add_f32 v[68:69], v[68:69], v[32:33]
        s_waitcnt lgkmcnt(6)
        v_pk_add_f32 v[34:35], v[34:35], v[40:41]
        """.replace("s_waitcnt lgkmcnt(6)","s_waitcnt lgkmcnt(4)"))
        a(f"""
        v_pk_add_f32 v[36:37], v[36:37], v[42:43]
        v_pk_add_f32 v[38:39], v[38:39], v[44:45]
        v_pk_add_f32 v[88:89], v[88:89], v[34:35]
        v_pk_add_f32 v[90:91], v[90:91], v[36:37]
        v_pk_add_f32 v[68:69], v[68:69], v[38:39]
        v_max3_f32 v{T}, v88, v89, v90
        v_max3_f32 v{T}, v{T}, v91, v68
        v_max_f32 v{T}, v{T}, v69
        """)
        wo(1,28)
        a(f"""
        v_max_f32_dpp v{T}, v{T}, v{T} row_ror:8 row_mask:0xf bank_mask:0xf
        v_mov_b32 v{T+1}, v{T}
        """)
        wo(2,36)
        a(f"""
        v_permlane32_swap_b32 v{T}, v{T+1}
        v_max_f32 v{T}, v{T}, v{T+1}
        v_mov_b32 v{T+1}, v{T}
        """)
        wo(3,44)
        a(f"""
        v_permlane16_swap_b32 v{T}, v{T+1}
        v_max_f32 v{T}, v{T}, v{T+1}
        v_mul_f32 v{T}, s52, v{T}
        v_pk_add_f32 v[{AV}:{AV+1}], v[{AV}:{AV+1}], v[{AV+2}:{AV+3}]
        v_mov_b32 v{T+1}, v{T}
        v_pk_add_f32 v[{AV+4}:{AV+5}], v[{AV+4}:{AV+5}], v[{AV+6}:{AV+7}]
        v_pk_fma_f32 v[88:89], v[88:89], s[38:39], v[{T}:{T+1}] neg_lo:[0,0,1] neg_hi:[0,0,1]
        v_pk_fma_f32 v[90:91], v[90:91], s[38:39], v[{T}:{T+1}] neg_lo:[0,0,1] neg_hi:[0,0,1]
        v_pk_fma_f32 v[68:69], v[68:69], s[38:39], v[{T}:{T+1}] neg_lo:[0,0,1] neg_hi:[0,0,1]
        v_exp_f32 v88, v88
        v_exp_f32 v89, v89
        v_exp_f32 v90, v90
        v_exp_f32 v91, v91
        v_exp_f32 v68, v68
        v_exp_f32 v69, v69
        v_cvt_pk_bf16_f32 v{VM0}, v{AV}, v{AV+1}
        v_cvt_pk_bf16_f32 v{VM1}, v{AV+4}, v{AV+5}
        v_cvt_pk_bf16_f32 v84, v88, v89
        v_cvt_pk_bf16_f32 v85, v90, v91
        v_cvt_pk_bf16_f32 v{PM}, v68, v69
        v_mov_b32_dpp v86, v84 row_ror:8 row_mask:0xf bank_mask:0xf
        v_mov_b32_dpp v87, v85 row_ror:8 row_mask:0xf bank_mask:0xf
        s_waitcnt lgkmcnt(8)
        v_mfma_f32_16x16x32_bf16 v[76:79], v[{ONES}:{ONES+3}], v[84:87], 0
        v_mfma_f32_16x16x32_bf16 v[88:91], v[52:55], v[84:87], 0
        v_mfma_f32_16x16x32_bf16 v[92:95], v[56:59], v[84:87], 0
        v_mfma_f32_16x16x16_bf16 v[76:79], v[{ONES}:{ONES+1}], v[{PM}:{PM+1}], v[76:79]
        v_mfma_f32_16x16x16_bf16 v[88:91], v[{VM0}:{VM0+1}], v[{PM}:{PM+1}], v[88:91]
        v_mfma_f32_16x16x16_bf16 v[92:95], v[{VM1}:{VM1+1}], v[{PM}:{PM+1}], v[92:95]
        """)
        tp(5)
        wo(4,68); wo(5,52)
        a(f"""
        v_rcp_f32 v{T}, v76
        s_nop 0
        v_mov_b32 v{T+1}, v{T}
        v_pk_mul_f32 v[88:89], v[88:89], v[{T}:{T+1}]
        v_pk_mul_f32 v[90:91], v[90:91], v[{T}:{T+1}]
        v_pk_mul_f32 v[92:93], v[92:93], v[{T}:{T+1}]
        v_pk_mul_f32 v[94:95], v[94:95], v[{T}:{T+1}]
        v_cvt_pk_bf16_f32 v80, v88, v89
        v_cvt_pk_bf16_f32 v81, v90, v91
        v_cvt_pk_bf16_f32 v82, v92, v93
        v_cvt_pk_bf16_f32 v83, v94, v95
        s_mov_b64 exec, s[40:41]
        ds_write_b128 v{OIW}, v[80:83]
        s_mov_b64 exec, -1
        """)
        wo(6,84)
        a("s_waitcnt lgkmcnt(2)\ns_barrier")
        tp(6)
        stamp(3)
        a(f"ds_read_b128 v[76:79], v{OIR}\nds_read_b128 v[80:83], v{OIR} offset:1024")
        opreg={0:60,1:28,2:36,3:44,4:68,5:52,6:84}
        a("s_waitcnt lgkmcnt(0)")
        nxt=7; inflight=[]
        def acc(tile): return OACC[tile>>2]+4*(tile&3)
        def epil(qd):
            A=OACC[qd]; e=[]
            for t in range(4):
                e+= [f"v_add_f32 v{A+4*t}, v{A+4*t}, v{A+4*t+2}", f"v_add_f32 v{A+4*t+1}, v{A+4*t+1}, v{A+4*t+3}"]
            e+=[f"v_cvt_pk_bf16_f32 v{A+t}, v{A+4*t}, v{A+4*t+1}" for t in range(4)]
            e+=[f"v_permlane32_swap_b32 v{A}, v{A+2}",f"v_permlane32_swap_b32 v{A+1}, v{A+3}",
                f"v_permlane16_swap_b32 v{A}, v{A+1}",f"v_permlane16_swap_b32 v{A+2}, v{A+3}",
                f"v_bfi_b32 v{A}, 1, s57, v{A}"]
            so='s48' if qd==0 else 's32'
            e.append(f"buffer_store_dwordx4 v[{A}:{A+3}], v{GPART}, s[8:11], {so} offen {st}")
            return e
        epi=[]
        a(f"s_add_u32 s32, s48, {4*8192}")
        for o in range(16):
            tile=o>>1; kk=o&1
            if o in inflight:
                k=inflight.index(o)
                a(f"s_waitcnt lgkmcnt({2*(len(inflight)-1-k)})")
                inflight=inflight[k+1:]
            r=opreg[o]
            a(f"v_smfmac_f32_16x16x64_bf16 v[{acc(tile)}:{acc(tile)+3}], v[{76+4*kk}:{79+4*kk}], v[{r}:{r+7}], v{IDX}")
            if nxt<16:
                wo_read(nxt,r); opreg[nxt]=r; inflight.append(nxt); nxt+=1
            if o==7: epi=epil(0)
            if o>=9 and epi:
                a(epi.pop(0))
                if o>=9 and nxt>=16 and epi and o>=12: a(epi.pop(0))
        while epi: a(epi.pop(0))
        for x in epil(1): a(x)
        tp(7)
        stamp(4)
        a("s_add_u32 s51, s51, 1")
        def slow_kx():
            a(f"""
            s_cmp_lg_u32 s58, 1
            s_cbranch_scc1 {L}_sk_n
            s_add_u32 s53, s53, 1024
            """)
            wait_p(L+'_sk')
            a(f"s_sub_u32 s53, s53, 1024\ns_mov_b32 s35, s49")
            for x in kx_dma_list(w): a(x)
            a.label(L+'_sk_n')
        def bookkeeping():
            a(f"""
            s_mov_b32 s37, s45
            s_mov_b32 s45, s46
            s_mov_b32 s46, s47
            s_mov_b32 s47, s37
            s_add_u32 s42, s42, {32*QKV_BLK}
            s_add_u32 s43, s43, {32*4096}
            s_add_u32 s53, s53, 1024
            s_add_u32 s54, s54, 512
            s_xor_b32 s49, s49, {L_KX}
            v_xor_b32 v{AMEM}, {L_KX}, v{AMEM}
            v_xor_b32 v{KXR}, {L_KX}, v{KXR}
            """)
        if w==0:
            a(f"""
            s_add_u32 s32, s48, s50
            s_add_u32 s33, s32, 4096
            s_mov_b32 s55, 0
            v_mov_b32 v100, s57
            v_and_b32 v96, 15, v0
            v_lshrrev_b32 v97, 1, v96
            v_and_b32 v103, 7, v96
            v_and_b32 v96, 1, v96
            v_lshlrev_b32 v96, 4, v96
            v_mov_b32 v98, 0x3f80
            v_lshlrev_b32 v98, v96, v98
            v_cmp_eq_u32 vcc, 0, v97
            v_cmp_eq_u32 s[56:57], 1, v97
            v_cmp_eq_u32 s[62:63], 2, v97
            v_cmp_eq_u32 s[64:65], 3, v97
            v_lshrrev_b32 v96, 4, v0
            v_lshlrev_b32 v{GPUB}, 5, v103
            v_lshl_add_u32 v{GPUB}, v96, 3, v{GPUB}
            s_lshl_b32 s34, s5, 8
            v_add_u32 v{GPUB}, s34, v{GPUB}
            v_cndmask_b32 v104, 0, v98, vcc
            v_cndmask_b32 v105, 0, v98, s[56:57]
            v_cndmask_b32 v106, 0, v98, s[62:63]
            v_cndmask_b32 v107, 0, v98, s[64:65]
            """)
            kmvm_prep(0)
            for r in range(AQ,AQ+24,2): a(f"v_mov_b64 v[{r}:{r+1}], 0")
            for r in range(108,128,2): a(f"v_mov_b64 v[{r}:{r+1}], 0")
            if cfg.get('sleepR',0): a(f"s_sleep {cfg['sleepR']}")
            tp(8)
            RA=28
            a.label(L+'_rloop')
            for j in range(8): a(f"buffer_load_dwordx4 v[{RA+4*j}:{RA+4*j+3}], v{L16}, s[8:11], {'s32' if j<4 else 's33'} offen offset:{(j&3)*1024} sc1")
            for j in range(8):
                a(f"s_waitcnt vmcnt({7-j})")
                c_='0' if j==0 else 'v[96:99]'
                a(f"v_mfma_f32_16x16x32_bf16 v[96:99], v[{RA+4*j}:{RA+4*j+3}], v[104:107], {c_}")
                if j==0: a(f"v_xor_b32 v101, v{RA}, v100")
                else: a(f"v_bitop3_b32 v101, v{RA+4*j}, v100, v101 bitop3:0xbe")
            a(f"""
            v_and_b32 v101, 1, v101
            v_cmp_ne_u32 vcc, 0, v101
            s_cbranch_vccz {L}_redok
            s_add_u32 s55, s55, 1
            s_cmp_gt_u32 s55, {SPIN}
            s_cbranch_scc1 {lab}_fail
            s_branch {L}_rloop
{L}_redok:
            """)
            tp(9)
            a(f"""
            s_nop 2
            v_cvt_pk_bf16_f32 v100, v96, v97
            v_cvt_pk_bf16_f32 v101, v98, v99
            s_mov_b64 exec, s[40:41]
            v_min_u32 v100, 0xfffffffe, v100
            v_min_u32 v101, 0xfffffffe, v101
            buffer_store_dwordx2 v[100:101], v{GPUB}, s[8:11], s46 offen {st}
            s_barrier
            v_mov_b32 v100, -1
            v_mov_b32 v101, -1
            buffer_store_dwordx2 v[100:101], v{GPUB}, s[8:11], s45 offen {st}
            s_mov_b64 exec, -1
            """)
            if stamps: a("s_add_u32 s84, s84, s55")
            stamp(5)
            a(f"s_cmp_ge_u32 s51, {nsteps}\ns_cbranch_scc1 {L}_done")
            slow_kx()
        else:
            kmvm_prep(w)
            a(f"s_cmp_ge_u32 s51, {nsteps}\ns_cbranch_scc1 {L}_last")
            slow_kx()
        bookkeeping()
        if w==0:
            for r in range(96,108,2): a(f"v_mov_b64 v[{r}:{r+1}], 0")
        else: zero_accs()
        a(f"""
        s_add_u32 s33, s45, {own[0]*1024}
        s_add_u32 s34, s49, {own[0]*1024}
        v_add_u32 v26, s34, v{L16}
        s_mov_b32 s55, 0
        s_waitcnt lgkmcnt(0)
        """)
        if w!=0:
            a("s_waitcnt vmcnt(2)\ns_barrier")
            sl=cfg.get('sleepA',3)
            if sl: a(f"s_sleep {sl}")
        else:
            sl=cfg.get('sleepA0',1)
            if sl: a(f"s_sleep {sl}")
        tp(10)
        R=MEMA+4*own[0]
        a.label(L+'_aloop')
        for j in range(2): a(f"buffer_load_dwordx4 v[{R+4*j}:{R+4*j+3}], v{AOFF}, s[8:11], s33 offen offset:{j*1024} sc1")
        a(f"""
        s_waitcnt vmcnt(1)
        v_max3_u32 v84, v{R}, v{R+1}, v{R+2}
        v_max_u32 v85, v{R+3}, v{R+3}
        s_waitcnt vmcnt(0)
        v_max3_u32 v84, v84, v{R+4}, v{R+5}
        v_max3_u32 v85, v85, v{R+6}, v{R+7}
        v_max_u32 v84, v84, v85
        v_cmp_eq_u32 vcc, -1, v84
        s_cbranch_vccz {L}_okA
        s_add_u32 s55, s55, 1
        s_cmp_gt_u32 s55, {SPIN}
        s_cbranch_scc1 {lab}_fail
        s_branch {L}_aloop
{L}_okA:
        ds_write_b128 v26, v[{R}:{R+3}]
        ds_write_b128 v26, v[{R+4}:{R+7}] offset:1024
        """)
        tp(11)
        if w==3:
            roles.flagval(a,85)
            a(f"""
            v_lshlrev_b32 v84, 2, v0
            s_sub_u32 s32, s54, 1024+12
            s_cmp_eq_u32 s51, 1
            s_cselect_b32 s32, {WS_FLAG+FL_DUMMY}, s32
            s_mov_b64 exec, 15
            buffer_store_dword v85, v84, s[8:11], s32 offen sc1
            s_mov_b64 exec, -1
            """)
        if stamps: a("s_add_u32 s85, s85, s55")
        stamp(6)
        a(f"s_branch {L}_go")
        if w!=0:
            a(f"{L}_last:\ns_waitcnt vmcnt(2)\ns_barrier")
            if w==3:
                roles.flagval(a,85)
                a(f"""
                v_lshlrev_b32 v84, 2, v0
                s_sub_u32 s32, s54, 512+12
                s_mov_b64 exec, 15
                buffer_store_dword v85, v84, s[8:11], s32 offen sc1
                s_mov_b64 exec, -1
                """)
        a.label(L+'_done')
        a("s_waitcnt lgkmcnt(0)")
        for x in kmvm_issue(): a(x)
        a("s_waitcnt vmcnt(0)")
        roles.flagval(a,85)
        a(f"""
        v_mov_b32 v84, 0
        s_mov_b64 exec, 1
        buffer_store_dword v85, v84, s[8:11], s54 offen sc1
        s_mov_b64 exec, -1
        s_branch {lab}_done
        """)
    for w in range(4): body(w)
    a(f"""
{lab}_fail:
    s_waitcnt vmcnt(0)
    s_mov_b32 s59, 1
{lab}_done:
    s_waitcnt vmcnt(0)
    """)
    return lab
```

```python
import sys
from asmlib import Asm
from common import *
import chain7 as chain, roles, roles2, roles3
KN='interleave_layers__sliding_block__memory_aug_recurrent_mem_tr__prompt_kernel'
INIT='init_ws_kernel'
ALL={'CH','P','O','AH','AWO','F','ATT'}
def desc(K,nv=512,ns=102):
    return f'''
.amdhsa_kernel {K}
  .amdhsa_next_free_vgpr {nv}
  .amdhsa_next_free_sgpr {ns}
  .amdhsa_accum_offset {min(256,(nv+3)//4*4)}
  .amdhsa_group_segment_fixed_size 0
  .amdhsa_kernarg_size 104
  .amdhsa_user_sgpr_count 2
  .amdhsa_user_sgpr_kernarg_segment_ptr 1
  .amdhsa_system_sgpr_workgroup_id_x 1
.end_amdhsa_kernel
'''
def gen_init():
    a=Asm()
    a.label(INIT)
    nflag=FL_END
    a(f"""
    s_cmp_ge_u32 s2, 256
    s_cbranch_scc1 LI_end
    s_load_dwordx2 s[8:9], s[0:1], 96
    s_waitcnt lgkmcnt(0)
    s_mov_b32 s10, 0x10000000
    s_mov_b32 s11, 0x20000
    s_lshl_b32 s3, s2, 8
    v_add_u32 v1, s3, v0
    v_lshlrev_b32 v1, 4, v1                  ; 0 .. 1MB
    v_mov_b32 v4, 0
    v_mov_b32 v5, 0
    v_mov_b32 v6, 0
    v_mov_b32 v7, 0
    v_mov_b32 v8, -1
    v_mov_b32 v9, -1
    v_mov_b32 v10, -1
    v_mov_b32 v11, -1
    s_mov_b32 s12, {WS_FLAG}
    v_cmp_gt_u32 vcc, {nflag}, v1
    s_and_saveexec_b64 s[14:15], vcc
    s_cbranch_execz LI_a
    buffer_store_dwordx4 v[4:7], v1, s[8:11], s12 offen
LI_a:
    s_mov_b64 exec, s[14:15]
    s_mov_b32 s12, {WS_INB}
    buffer_store_dwordx4 v[8:11], v1, s[8:11], s12 offen
    s_mov_b32 s12, {WS_INB+0x100000}
    buffer_store_dwordx4 v[8:11], v1, s[8:11], s12 offen
    s_mov_b32 s12, {WS_MEM}
    v_cmp_gt_u32 vcc, 0x10000, v1
    s_and_saveexec_b64 s[14:15], vcc
    s_cbranch_execz LI_b
    buffer_store_dwordx4 v[8:11], v1, s[8:11], s12 offen
LI_b:
    s_mov_b64 exec, s[14:15]
LI_end:
    s_endpgm
    """)
    out,_,errs=a.finish()
    for e in errs.values(): print('LINT',e,file=sys.stderr)
    return out
def gen(cfg):
    if cfg.get('pf',True) and 'sizes' not in cfg:
        c1=dict(cfg); c1['sizes']={}; c1['sizing']=True
        gen2(c1)
        cfg=dict(cfg); cfg['sizes']=c1['sizes']
    return gen2(cfg)
def gen2(cfg):
    en=cfg.get('roles',ALL)
    roles.TS=cfg.get('ts',False)
    roles.TSP=cfg.get('tsp',False)
    a=Asm(); K=KN
    a.label(K)
    clk0=''
    if cfg.get('clk'):
        clk0='''s_memtime s[100:101]
    s_memrealtime s[98:99]
    s_waitcnt lgkmcnt(0)
    s_lshl_b32 s24, s2, 5
    s_add_u32 s24, s24, 0xCB00000
    v_mov_b32 v2, s100
    v_mov_b32 v3, s98
    v_mov_b32 v4, s3
    v_mov_b32 v5, s5
    v_mov_b32 v6, 0
    s_mov_b64 exec, 1
    buffer_store_dwordx4 v[2:5], v6, s[8:11], s24 offen
    s_mov_b64 exec, -1'''
    tss=''
    if cfg.get('ts'):
        tss='''s_memrealtime s[98:99]
    s_waitcnt lgkmcnt(0)
    v_mov_b32 v3, s98
    s_lshl_b32 s24, s3, 2
    s_add_u32 s24, s24, 64
    v_mov_b32 v4, s24
    s_mov_b64 exec, 1
    buffer_store_dword v3, v4, s[12:15], 0 offen
    s_mov_b64 exec, -1'''
    a(f"""
    s_cmp_ge_u32 s2, 256
    s_cbranch_scc1 L_end
    s_load_dwordx2 s[8:9], s[0:1], 96        ; ws
    s_load_dwordx2 s[12:13], s[0:1], 88      ; dbg
    s_getreg_b32 s3, hwreg(HW_REG_XCC_ID, 0, 4)
    v_lshrrev_b32 v1, 6, v0
    s_nop 0
    v_readfirstlane_b32 s6, v1
    v_and_b32 v0, 63, v0                     ; lane
    s_waitcnt lgkmcnt(0)
    s_mov_b32 s10, 0x10000000
    s_mov_b32 s11, 0x20000
    s_mov_b32 s14, 256
    s_mov_b32 s15, 0x20000
    s_cmp_lg_u32 s6, 0
    s_cbranch_scc1 L_claimed
    v_mov_b32 v3, 1
    s_lshl_b32 s24, s3, 2
    v_mov_b32 v4, s24
    s_mov_b64 exec, 1
    buffer_atomic_add v3, v4, s[12:15], 0 offen sc0
    s_waitcnt vmcnt(0)
    v_mov_b32 v5, 0
    ds_write_b32 v5, v3
    s_waitcnt lgkmcnt(0)
    s_mov_b64 exec, -1
L_claimed:
    s_barrier
    v_mov_b32 v5, 0
    ds_read_b32 v3, v5
    s_waitcnt lgkmcnt(0)
    v_readfirstlane_b32 s5, v3
    s_barrier
    s_cmp_ge_u32 s5, 32
    s_cbranch_scc1 L_end
    {tss}
    {clk0}
    s_cmp_lt_u32 s3, 2
    s_cbranch_scc1 L_CH
    s_cmp_lt_u32 s3, 4
    s_cbranch_scc1 L_P
    s_cmp_eq_u32 s3, 4
    s_cbranch_scc1 L_ATT
    s_cmp_eq_u32 s3, 5
    s_cbranch_scc1 L_O
    s_cmp_eq_u32 s3, 6
    s_cbranch_scc1 L_AH
    s_cmp_lt_u32 s5, 8
    s_cbranch_scc1 L_AWO
    s_cmp_lt_u32 s5, 28
    s_cbranch_scc1 L_F
    s_branch L_end
L_fail:
    s_load_dwordx2 s[12:13], s[0:1], 88
    s_waitcnt lgkmcnt(0)
    s_mov_b32 s14, 256
    s_mov_b32 s15, 0x20000
    s_lshl_b32 s24, s3, 2
    s_add_u32 s24, s24, 128
    v_mov_b32 v4, s24
    s_add_u32 s25, s5, 1
    v_mov_b32 v3, s25
    s_mov_b64 exec, 1
    buffer_store_dword v3, v4, s[12:15], 0 offen
L_end:
    s_endpgm
    """)
    fail='L_fail'
    marks={}
    def begin(name):
        marks[name]=len(a.lines)
        if cfg.get('pf',True) and not cfg.get('sizing'):
            roles.prefetch_code(a,'LB_'+name,'LE_'+name,cfg['sizes'].get(name,4096)+4096)
        a.label('LB_'+name)
        marks[name]=len(a.lines)
    def end(name):
        a.label('LE_'+name)
        if cfg.get('sizing'): cfg['sizes'][name]=(len(a.lines)-marks[name])*7
    END='s_branch L_fin' if cfg.get('clk') else 's_endpgm'
    a.label('L_F')
    if 'F' in en:
        a("""
        s_sub_u32 s5, s5, 8
        s_lshr_b32 s7, s5, 2
        s_and_b32 s5, s5, 3
        s_mov_b32 s4, 0
        s_cmp_eq_u32 s7, 0
        s_cbranch_scc1 L_F0
        s_cmp_eq_u32 s7, 2
        s_cbranch_scc1 L_F2
        s_cmp_eq_u32 s7, 4
        s_cbranch_scc1 L_F3
        s_lshr_b32 s4, s7, 1
        """)
        begin('FT1'); roles3.emit_F(a,cfg,'T1',fail); end('FT1'); a("s_endpgm")
        a.label('L_F0'); begin('FT0'); roles3.emit_F(a,cfg,'T0',fail); end('FT0'); a("s_endpgm")
        a.label('L_F2'); begin('FT2'); roles3.emit_F(a,cfg,'T2',fail); end('FT2'); a("s_endpgm")
        a.label('L_F3'); begin('FT3'); roles3.emit_F(a,cfg,'T3',fail); end('FT3')
    a(END)
    a.label('L_AWO')
    if 'AWO' in en:
        a("s_lshr_b32 s4, s5, 2\ns_and_b32 s5, s5, 3")
        begin('AWO'); roles3.emit_AWO(a,cfg,fail); end('AWO')
    a(END)
    a.label('L_ATT')
    if 'ATT' in en:
        begin('ATT'); roles3.emit_ATT(a,cfg,fail); end('ATT')
    a(END)
    a.label('L_AH')
    if 'AH' in en: begin('AH'); roles2.emit_AH(a,cfg,fail); end('AH')
    a(END)
    def gate(name):
        if not cfg.get('gate',True): return
        a(f"s_cmp_eq_u32 s4, 0\ns_cbranch_scc1 {name}_ng\ns_mov_b32 s12, {WS_FLAG+FL_XN+cfg.get('gate_t',1)*64*128+cfg.get('gate_s',0)*128}")
        roles.wait_flags(a,name+'g',16,'s12',fail,cfg.get('spin',roles.SPIN_DEFAULT),vtmp=(8,9),sleep=8)
        a.label(name+'_ng')
    a.label('L_O')
    if 'O' in en:
        a("s_lshr_b32 s4, s5, 4\ns_and_b32 s5, s5, 15")
        gate('L_O')
        begin('O'); roles3.emit_O5(a,cfg,fail); end('O')
    a(END)
    a.label('L_P')
    if 'P' in en:
        a("s_sub_u32 s4, s3, 2")
        gate('L_P')
        begin('P'); roles3.emit_P(a,cfg,fail); end('P')
    a(END)
    a.label('L_CH')
    if 'CH' in en:
        a("s_mov_b32 s4, s3")
        gate('L_CH')
        c=dict(FL_P=FL_P,FL_CH=FL_CH); c.update(cfg)
        begin('CH'); chain.emit_chain(a,c,fail); end('CH')
        if cfg.get('stamps') or cfg.get('tot'):
            a("""
            s_load_dwordx2 s[12:13], s[0:1], 96
            s_waitcnt lgkmcnt(0)
            s_mov_b32 s14, 0x10000000
            s_mov_b32 s15, 0x20000
            s_memtime s[70:71]
            s_waitcnt lgkmcnt(0)
            s_sub_u32 s75, s70, s74
            s_lshl_b32 s32, s4, 5
            s_add_u32 s32, s32, s5
            s_lshl_b32 s32, s32, 2
            s_add_u32 s32, s32, s6
            s_lshl_b32 s32, s32, 6
            s_add_u32 s32, s32, 0xC800000
            v_mov_b32 v32, s32
            """)
            for k in range(10): a(f"v_mov_b32 v{36+k}, s{76+k}")
            a("""
            v_mov_b32 v45, s88
            v_mov_b32 v46, s75
            v_mov_b32 v47, s59
            s_mov_b64 exec, 1
            buffer_store_dwordx4 v[36:39], v32, s[12:15], 0 offen
            buffer_store_dwordx4 v[40:43], v32, s[12:15], 0 offen offset:16
            buffer_store_dwordx4 v[44:47], v32, s[12:15], 0 offen offset:32
            s_mov_b64 exec, -1
            """)
        a("""
        s_cmp_eq_u32 s59, 0
        s_cbranch_scc1 L_CHend
        s_branch L_fail
L_CHend:
        """)
    a(END)
    if cfg.get('clk'):
        a('''
L_fin:
    s_cmp_lg_u32 s6, 0
    s_cbranch_scc1 L_fin2
    s_memtime s[100:101]
    s_memrealtime s[98:99]
    s_waitcnt lgkmcnt(0)
    s_lshl_b32 s24, s2, 5
    s_add_u32 s24, s24, 0xCB00010
    v_mov_b32 v2, s100
    v_mov_b32 v3, s98
    v_mov_b32 v5, 0
    s_mov_b64 exec, 1
    buffer_store_dwordx2 v[2:3], v5, s[8:11], s24 offen
L_fin2:
    s_endpgm
''')
    out,total,errs=a.finish()
    for e in list(errs.values())[:10]: print('LINT',e,file=sys.stderr)
    print('nops inserted',total,'instrs',len(out),file=sys.stderr)
    withinit=cfg.get('init',True)
    if withinit:
        hdr=f"""; @launch kernel={INIT} grid=(256,1,1) block=(256,1,1) lds=0
; @launch kernel={K} grid=(256,1,1) block=(256,1,1) lds=163840
"""
    else:
        hdr=f"; @launch grid=(256,1,1) block=(256,1,1) lds=163840\n"
    txt=hdr+f""".amdgcn_target "amdgcn-amd-amdhsa--gfx950"
.text
.globl {K}
.p2align 8
.type {K},@function
"""+'\n'.join(out)+'\n'
    if withinit:
        txt+=f""".globl {INIT}
.p2align 8
.type {INIT},@function
"""+'\n'.join(gen_init())+'\n'
    txt+='.section .rodata,"a"\n.p2align 6\n'+desc(K)
    if withinit: txt+='.p2align 6\n'+desc(INIT,16,32)
    return txt
if __name__=='__main__':
    s=gen(dict())
    open('m.s','w').write(s)
    print(len(s),'bytes')
    import subprocess
    r=subprocess.run(['clang','-x','assembler','-target','amdgcn-amd-amdhsa','-mcpu=gfx950','-c','m.s','-o','m.o'],capture_output=True,text=True); print(r.stderr)
```

```python
from common import *
SPIN_DEFAULT=2000000

class Ctx:
    def __init__(self,a,cfg): self.a=a; self.cfg=cfg; self.spin=cfg.get('spin',200000)

def wait_flags(a, lab, n, soff, fail, spin, vtmp=(250,251), stmp=(96,97,98), sleep=1):
    va,vb=vtmp; sc=stmp[0]
    mask=(1<<n)-1
    L=a.new(lab)
    a(f"""
    s_mov_b32 s{sc}, 0
    v_mbcnt_lo_u32_b32 v{va}, -1, 0
    v_mbcnt_hi_u32_b32 v{va}, -1, v{va}
    v_min_u32 v{va}, {n-1}, v{va}
    v_lshlrev_b32 v{va}, 2, v{va}
{L}_spin:
    buffer_load_dword v{vb}, v{va}, s[8:11], {soff} offen sc1
    s_waitcnt vmcnt(0)
    v_cmp_eq_u32 vcc, 0, v{vb}
    s_cbranch_vccz {L}_ok
    s_add_u32 s{sc}, s{sc}, 1
    s_cmp_gt_u32 s{sc}, {spin}
    s_cbranch_scc1 {fail}
    {('s_sleep %d'%sleep) if sleep else ''}
    s_branch {L}_spin
{L}_ok:
    """)

TS=False
def flagval(a, vb):
    if TS:
        a(f"""
        s_memrealtime s[98:99]
        s_waitcnt lgkmcnt(0)
        s_or_b32 s98, s98, 1
        v_mov_b32 v{vb}, s98
        """)
    else: a(f"v_mov_b32 v{vb}, 1")
def set_flag(a, soff, vtmp=(250,251), scope='sc1'):
    va,vb=vtmp
    flagval(a,vb)
    a(f"""
    v_mov_b32 v{va}, 0
    s_mov_b64 exec, 1
    buffer_store_dword v{vb}, v{va}, s[8:11], {soff} offen {scope}
    s_mov_b64 exec, -1
    """)

def emit_F(a, cfg, typ, fail):
    spin=cfg.get('spin',SPIN_DEFAULT)
    lab=a.new('F'+typ)
    npart={'T0':0,'T1':1,'T2':2,'T3':2}[typ]
    a(f"""
    v_and_b32 v1, 15, v0
    v_bfe_u32 v2, v0, 4, 1
    v_lshrrev_b32 v3, 5, v0
    v_lshlrev_b32 v4, 4, v1
    v_lshl_add_u32 v4, v2, 9, v4
    v_lshl_add_u32 v4, v3, 10, v4
    s_lshl_b32 s12, s6, 13
    s_lshl_b32 s13, s5, 8
    s_add_u32 s12, s12, s13
    v_add_u32 v4, s12, v4
    s_lshl_b32 s13, s5, 4
    v_add_u32 v5, s13, v1
    v_lshlrev_b32 v5, 10, v5
    v_lshl_add_u32 v5, v3, 5, v5
    v_lshl_add_u32 v5, v2, 4, v5
    s_lshl_b32 s13, s6, 8                    ; 4w*64
    v_add_u32 v5, s13, v5
    v_lshlrev_b32 v6, 3, v1
    s_lshl_b32 s13, s6, 7
    v_add_u32 v7, s13, v6
    """)
    if typ=='T0':
        a(f"""
        s_load_dwordx2 s[16:17], s[0:1], 0
        s_waitcnt lgkmcnt(0)
        s_mov_b32 s18, {2048*1024}
        s_mov_b32 s19, 0x20000
        s_mov_b32 s20, 0
        s_mov_b32 s22, {xs(T_X0,0)}
        s_mov_b32 s23, {xs(T_XNA1,0)}
        s_mov_b32 s24, {WS_FLAG+FL_XN+0*64*128}
        """)
    elif typ=='T1':
        a(f"""
        s_mul_i32 s13, s4, {6*64*32768}
        s_add_u32 s20, s13, {xs(T_X0,0)}          ; residual  (X0 / X2)
        s_add_u32 s21, s13, {xs(T_YA1,0)}
        s_add_u32 s22, s13, {xs(T_X1,0)}          ; x out     (X1 / X3)
        s_add_u32 s23, s13, {xs(T_XNB1,0)}
        s_lshl_b32 s13, s4, 14                    ; l*2*64*128
        s_add_u32 s24, s13, {WS_FLAG+FL_XN+1*64*128}
        s_lshl_b32 s13, s4, 13
        s_add_u32 s25, s13, {WS_FLAG+FL_YA}
        """)
    elif typ=='T2':
        a(f"""
        s_mov_b32 s20, {xs(T_X1,0)}
        s_mov_b32 s21, {WS_PO}
        s_mov_b32 s22, {xs(T_X2,0)}
        s_mov_b32 s23, {xs(T_XNA2,0)}
        s_mov_b32 s24, {WS_FLAG+FL_XN+2*64*128}
        s_mov_b32 s25, {WS_FLAG+FL_PO}
        """)
    else:
        a(f"""
        s_load_dwordx2 s[16:17], s[0:1], 80
        s_waitcnt lgkmcnt(0)
        s_mov_b32 s18, {2048*1024}
        s_mov_b32 s19, 0x20000
        s_mov_b32 s20, {xs(T_X3,0)}
        s_mov_b32 s21, {WS_PO+64*131072}
        s_mov_b32 s22, 0
        s_mov_b32 s25, {WS_FLAG+FL_PO+64*128}
        """)
    a(f"""
    s_lshl_b32 s13, s5, 2
    {'s_add_u32 s24, s24, s13' if typ!='T3' else ''}
    s_mov_b32 s26, 0                          ; unit s
    v_mov_b32 v8, 0x3f803f80
    s_mov_b32 s27, 0xffff0000
{lab}_loop:
    """)
    if typ=='T1': wait_flags(a,lab+'w',2,'s25',fail,spin)
    if typ in('T2','T3'): wait_flags(a,lab+'w',16,'s25',fail,spin)
    X=16; P0=32; P1=48; W=64
    if typ=='T0':
        for j in range(4): a(f"buffer_load_dwordx4 v[{X+4*j}:{X+4*j+3}], v5, s[16:19], s20 offen offset:{64*j}")
        a("s_waitcnt vmcnt(0)")
        for j in range(4):
            a(f"v_permlane16_swap_b32 v{X+4*j}, v{X+4*j+2}\nv_permlane16_swap_b32 v{X+4*j+1}, v{X+4*j+3}")
    else:
        a("s_add_u32 s13, s20, 4096\ns_add_u32 s14, s21, 4096")
        if npart==2: a("s_add_u32 s28, s21, 32768\ns_add_u32 s29, s28, 4096")
        for j in range(4):
            so=lambda b,b2: (b if j<2 else b2)
            a(f"buffer_load_dwordx4 v[{P0+4*j}:{P0+4*j+3}], v4, s[8:11], {so('s21','s14')} offen offset:{2048*(j&1)} sc1")
            if npart==2: a(f"buffer_load_dwordx4 v[{P1+4*j}:{P1+4*j+3}], v4, s[8:11], {so('s28','s29')} offen offset:{2048*(j&1)} sc1")
            a(f"buffer_load_dwordx4 v[{X+4*j}:{X+4*j+3}], v4, s[8:11], {so('s20','s13')} offen offset:{2048*(j&1)} sc1")
        per=2+(npart==2)
        for j in range(4):
            a(f"s_waitcnt vmcnt({per*(3-j)})")
            for d in range(4):
                r=4*j+d; w0=W+2*r
                if npart==2:
                    a(f"""
                    v_lshlrev_b32 v{w0}, 16, v{P0+r}
                    v_and_b32 v{w0+1}, s27, v{P0+r}
                    v_lshlrev_b32 v10, 16, v{P1+r}
                    v_and_b32 v11, s27, v{P1+r}
                    v_pk_add_f32 v[{w0}:{w0+1}], v[{w0}:{w0+1}], v[10:11]
                    v_cvt_pk_bf16_f32 v{P0+r}, v{w0}, v{w0+1}
                    """)
                a(f"""
                v_lshlrev_b32 v{w0}, 16, v{P0+r}
                v_and_b32 v{w0+1}, s27, v{P0+r}
                v_lshlrev_b32 v10, 16, v{X+r}
                v_and_b32 v11, s27, v{X+r}
                v_pk_add_f32 v[{w0}:{w0+1}], v[{w0}:{w0+1}], v[10:11]
                v_cvt_pk_bf16_f32 v{X+r}, v{w0}, v{w0+1}
                """)
    if typ=='T3':
        for j in range(4):
            a(f"v_permlane16_swap_b32 v{X+4*j}, v{X+4*j+2}\nv_permlane16_swap_b32 v{X+4*j+1}, v{X+4*j+3}")
        for j in range(4): a(f"buffer_store_dwordx4 v[{X+4*j}:{X+4*j+3}], v5, s[16:19], s22 offen offset:{64*j}")
        a(f"""
        s_add_u32 s20, s20, 32768
        s_add_u32 s21, s21, 131072
        s_add_u32 s22, s22, 32768
        s_add_u32 s25, s25, 128
        """)
    else:
        a("s_add_u32 s13, s22, 4096")
        for j in range(4):
            a(f"buffer_store_dwordx4 v[{X+4*j}:{X+4*j+3}], v4, s[8:11], {'s22' if j<2 else 's13'} offen offset:{2048*(j&1)} sc1")
        a("v_mov_b32 v12, 0\nv_mov_b32 v13, 0")
        for r in range(16):
            a(f"v_dot2_f32_bf16 v12, v{X+r}, v8, v12\nv_dot2_f32_bf16 v13, v{X+r}, v{X+r}, v13")
        a(f"""
        v_mov_b32 v10, v12
        v_mov_b32 v11, v13
        v_permlane16_swap_b32 v12, v10
        v_permlane16_swap_b32 v13, v11
        v_add_f32 v12, v12, v10
        v_add_f32 v13, v13, v11
        v_mov_b32 v10, v12
        v_mov_b32 v11, v13
        v_permlane32_swap_b32 v12, v10
        v_permlane32_swap_b32 v13, v11
        v_add_f32 v12, v12, v10
        v_add_f32 v13, v13, v11
        s_mov_b64 exec, 0xffff
        ds_write_b64 v7, v[12:13]
        s_mov_b64 exec, -1
        s_waitcnt lgkmcnt(0)
        s_barrier
        ds_read_b64 v[10:11], v6
        ds_read_b64 v[12:13], v6 offset:128
        ds_read_b64 v[14:15], v6 offset:256
        ds_read_b64 v[W0:W1], v6 offset:384
        """.replace('W0',str(W)).replace('W1',str(W+1)))
        a(f"""
        s_waitcnt lgkmcnt(0)
        v_pk_add_f32 v[10:11], v[10:11], v[12:13]
        v_pk_add_f32 v[14:15], v[14:15], v[{W}:{W+1}]
        v_pk_add_f32 v[10:11], v[10:11], v[14:15]
        v_mul_f32 v10, 0x3b000000, v10            ; mean
        v_mul_f32 v11, 0x3b000000, v11            ; E[x^2]
        v_fma_f32 v11, -v10, v10, v11             ; var
        v_max_f32 v11, 0, v11
        v_cvt_pk_bf16_f32 v14, v10, v11
        v_lshlrev_b32 v12, 16, v14                ; m
        v_and_b32 v11, s27, v14                   ; var
        v_add_f32 v11, 0x3727c5ac, v11            ; + 1e-5
        v_cvt_pk_bf16_f32 v11, v11, v11
        v_and_b32 v11, s27, v11
        v_sqrt_f32 v11, v11
        s_barrier
        v_cvt_pk_bf16_f32 v11, v11, v11
        v_and_b32 v11, s27, v11
        v_rcp_f32 v14, v11
        v_mov_b32 v13, v12
        v_mov_b32 v15, v14
        """)
        for r in range(16):
            w0=W+2*r
            a(f"""
            v_lshlrev_b32 v{w0}, 16, v{X+r}
            v_and_b32 v{w0+1}, s27, v{X+r}
            v_pk_add_f32 v[{w0}:{w0+1}], v[{w0}:{w0+1}], v[12:13] neg_lo:[0,1] neg_hi:[0,1]
            v_cvt_pk_bf16_f32 v{P0+r}, v{w0}, v{w0+1}
            v_lshlrev_b32 v{w0}, 16, v{P0+r}
            v_and_b32 v{w0+1}, s27, v{P0+r}
            v_pk_mul_f32 v[{w0}:{w0+1}], v[{w0}:{w0+1}], v[14:15]
            v_cvt_pk_bf16_f32 v{P0+r}, v{w0}, v{w0+1}
            """)
        a("s_add_u32 s13, s23, 4096")
        for j in range(4):
            a(f"buffer_store_dwordx4 v[{P0+4*j}:{P0+4*j+3}], v4, s[8:11], {'s23' if j<2 else 's13'} offen offset:{2048*(j&1)} sc1")
        a(f"""
        s_waitcnt vmcnt(0)
        s_barrier
        s_cmp_lg_u32 s6, 0
        s_cbranch_scc1 {lab}_nf
        """)
        set_flag(a,'s24')
        a(f"""
{lab}_nf:
        s_add_u32 s20, s20, 32768
        s_add_u32 s22, s22, 32768
        s_add_u32 s23, s23, 32768
        s_add_u32 s24, s24, 128
        """)
        if typ=='T1': a("s_add_u32 s21, s21, 32768\ns_add_u32 s25, s25, 128")
        if typ=='T2': a("s_add_u32 s21, s21, 131072\ns_add_u32 s25, s25, 128")
    a(f"""
    s_add_u32 s26, s26, 1
    s_cmp_lt_u32 s26, 64
    s_cbranch_scc1 {lab}_loop
    """)

def tr_addr32(a, dst, wcolchunks_sgpr, rowbytes, swz, base, tmp=(60,61,62,63,64,65)):
    t0,t1,t2,t3,t4,t5=tmp
    a(f"""
    v_lshrrev_b32 v{t0}, 4, v0
    v_and_b32 v{t1}, 1, v{t0}                ; nhalf
    v_lshrrev_b32 v{t0}, 1, v{t0}            ; hf
    v_bfe_u32 v{t2}, v0, 2, 2                ; r
    v_and_b32 v{t3}, 3, v0                   ; c
    v_lshl_add_u32 v{t0}, v{t0}, 2, v{t2}
    v_lshrrev_b32 v{t4}, 1, v{t3}
    v_lshl_add_u32 v{t4}, v{t1}, 1, v{t4}
    v_add_u32 v{t4}, {wcolchunks_sgpr}, v{t4}  ; q
    """)
    swz(t2,t5)
    a(f"""
    v_xor_b32 v{t4}, v{t4}, v{t5}
    v_lshlrev_b32 v{t4}, 4, v{t4}
    v_and_b32 v{t3}, 1, v{t3}
    v_lshl_add_u32 v{t4}, v{t3}, 3, v{t4}
    v_mul_u32_u24 v{t0}, {rowbytes}, v{t0}
    v_add_u32 v{dst}, v{t0}, v{t4}
    v_add_u32 v{dst}, {base}, v{dst}
    """)

def pack_tile(a, acc, dst):
    for i in range(8):
        a(f"v_cvt_pk_bf16_f32 v{dst+i}, v{acc+2*i}, v{acc+2*i+1}")

def emit_P(a, cfg, fail):
    spin=cfg.get('spin',SPIN_DEFAULT)
    lab=a.new('P')
    a("""
    s_load_dwordx2 s[12:13], s[0:1], 40      ; Wq
    s_load_dwordx2 s[16:17], s[0:1], 48      ; Wk
    s_load_dwordx2 s[20:21], s[0:1], 56      ; Wv
    s_waitcnt lgkmcnt(0)
    s_mov_b32 s14, 4194304
    s_mov_b32 s15, 0x20000
    s_mov_b32 s18, 4194304
    s_mov_b32 s19, 0x20000
    s_mov_b32 s22, 4194304
    s_mov_b32 s23, 0x20000
    v_lshrrev_b32 v61, 4, v0
    v_and_b32 v60, 15, v0
    v_lshlrev_b32 v62, 2, v61
    v_xor_b32 v62, v60, v62
    v_lshlrev_b32 v62, 4, v62
    v_lshl_add_u32 v62, v61, 13, v62
    s_lshl_b32 s32, s5, 8
    v_add_u32 v40, s32, v62
    s_lshl_b32 s32, s6, 2
    """)
    tr_addr32(a,44,'s32',256,lambda r,o: a(f"v_lshlrev_b32 v{o}, 2, v{r}"),0)
    a("v_add_u32 v45, 0x10000, v44")
    def wreg(M,ks,p):
        if M=='Q': b=128+4*ks+2*p; return f"v[{b}:{b+1}]"
        b={'K':0,'V':128}[M]+4*ks+2*p; return f"a[{b}:{b+1}]"
    for M,srd in (('K','s[16:19]'),('V','s[20:23]'),('Q','s[12:15]')):
        a("s_lshl_b32 s33, s6, 20\ns_lshl_b32 s34, s6, 15")
        for n in range(32):
            a(f"s_add_u32 m0, s34, {4*n*256}\ns_add_u32 s35, s33, {4*n*8192}\nbuffer_load_dwordx4 v40, {srd}, s35 offen lds")
        a("s_waitcnt vmcnt(0)\ns_barrier")
        for ks in range(32):
            for p in range(2):
                a(f"ds_read_b64_tr_b16 {wreg(M,ks,p)}, v{44+(ks>>4)} offset:{(ks&15)*4096+p*2048}")
            if ks%4==3: a("s_waitcnt lgkmcnt(4)")
        a("s_waitcnt lgkmcnt(0)\ns_barrier")
    def W(M,ks):
        if M=='Q': return f"v[{128+4*ks}:{131+4*ks}]"
        b={'K':0,'V':128}[M]+4*ks; return f"a[{b}:{b+3}]"
    DEC=65536
    a(f"""
    v_lshlrev_b32 v1, 4, v0
    s_lshl_b32 s32, s6, 13
    v_add_u32 v2, s32, v1
    s_lshl_b32 s32, s6, 11
    v_add_u32 v3, s32, v1
    v_mov_b32 v4, {DEC}
    s_cmp_eq_u32 s4, 0
    s_cselect_b32 s40, 0, 64
    s_cmp_eq_u32 s4, 1
    s_cselect_b32 s41, 0, 64
    s_cmp_eq_u32 s4, 2
    s_cselect_b32 s40, 2, s40
    s_cselect_b32 s41, 2, s41
    s_mov_b32 s42, 0
    s_mov_b32 s47, 0
    """)
    def advance(c):
        a(f"""
        s_add_u32 s{c}, s{c}, 1
        s_cmp_eq_u32 s4, 2
        s_cselect_b32 s32, 2, 0
        s_add_u32 s{c}, s{c}, s32
        s_cselect_b32 s33, 1, 0
        """)
        L=a.new(lab+'adv')
        a(f"""
        s_cmp_eq_u32 s4, 2
        s_cbranch_scc1 {L}
        s_mul_hi_u32 s32, s{c}, 0x55555556
        s_mul_i32 s32, s32, 3
        s_sub_u32 s32, s{c}, s32
        s_cmp_eq_u32 s32, 2
        s_cselect_b32 s32, 1, 0
        s_add_u32 s{c}, s{c}, s32
{L}:
        """)
    def flag_addr(l,c,dst):
        a(f"s_lshl_b32 s{dst}, s{c}, 7\ns_add_u32 s{dst}, s{dst}, {WS_FLAG+FL_XN+(1+2*l)*64*128}")
    def issue_polls():
        flag_addr(0,40,36); flag_addr(1,41,37)
        a(f"""
        v_and_b32 v8, 7, v0
        v_lshlrev_b32 v8, 2, v8
        buffer_load_dword v9, v8, s[8:11], s36 offen sc1
        buffer_load_dword v10, v8, s[8:11], s37 offen sc1
        """)
    def eval_polls():
        a(f"""
        v_cmp_eq_u32 vcc, 0, v10
        s_cmp_eq_u64 vcc, 0
        s_cselect_b32 s38, 2, 0
        s_cmp_ge_u32 s41, 64
        s_cselect_b32 s38, 0, s38
        v_cmp_eq_u32 vcc, 0, v9
        s_cmp_eq_u64 vcc, 0
        s_cselect_b32 s39, 1, 0
        s_cmp_ge_u32 s40, 64
        s_cselect_b32 s39, 0, s39
        s_cmp_lg_u32 s38, 0
        s_cselect_b32 s38, s38, s39
        s_and_b32 s32, s40, s41
        s_min_u32 s33, s40, s41
        s_cmp_ge_u32 s33, 64
        s_cselect_b32 s38, 3, s38
        """)
    def take(dec):
        L=a.new(lab+'take')
        a(f"""
        s_cmp_eq_u32 s{dec}, 2
        s_cbranch_scc1 {L}_2
        s_lshl_b32 s43, s40, 15
        s_add_u32 s43, s43, {xs(T_XNB1,0)}
        s_lshl_b32 s44, s40, 5
        """)
        advance(40)
        a(f"""
        s_branch {L}_e
{L}_2:
        s_lshl_b32 s43, s41, 15
        s_add_u32 s43, s43, {xs(T_XNB2,0)}
        s_add_u32 s44, s41, 64
        s_lshl_b32 s44, s44, 5
        """)
        advance(41)
        a(f"""
{L}_e:
        s_add_u32 s44, s44, s5                    ; (l*64+s)*32+h
        s_lshl_b32 s45, s44, 5
        s_add_u32 s45, s45, {WS_FLAG+FL_P}
        s_mul_i32 s44, s44, {QKV_BLK}
        """)
    def dma(buf):
        out=[]
        for n in range(8):
            out.append(f"s_lshl_b32 s32, s6, 13\ns_add_u32 s32, s32, s{buf}\ns_add_u32 m0, s32, {n*1024 - (n&3)*1024}\ns_add_u32 s33, s43, {(n>>2)*4096}\nbuffer_load_dwordx4 v2, s[8:11], s33 offen offset:{(n&3)*1024} sc1 lds")
        return out
    a.label(lab+'_block')
    a(f"""
    s_cmp_lg_u32 s6, 0
    s_cbranch_scc1 {lab}_bw
    s_mov_b32 s46, 0
{lab}_bspin:
    """)
    issue_polls()
    a("s_waitcnt vmcnt(0)")
    eval_polls()
    a(f"""
    s_cmp_lg_u32 s38, 0
    s_cbranch_scc1 {lab}_bgot
    s_add_u32 s46, s46, 1
    s_cmp_gt_u32 s46, {spin}
    s_cselect_b32 s38, 4, 0
    s_cbranch_scc1 {lab}_bgot
    s_sleep 4
    s_branch {lab}_bspin
{lab}_bgot:
    v_mov_b32 v9, s38
    ds_write_b32 v4, v9
    s_waitcnt lgkmcnt(0)
{lab}_bw:
    s_barrier
    ds_read_b32 v9, v4
    s_waitcnt lgkmcnt(0)
    v_readfirstlane_b32 s38, v9
    s_barrier
    s_cmp_eq_u32 s38, 3
    s_cbranch_scc1 {lab}_done
    s_cmp_eq_u32 s38, 4
    s_cbranch_scc1 {fail}
    """)
    take(38)
    for d in dma(42): a(d)
    a(f"""
    s_mov_b32 s48, s44
    s_mov_b32 s49, s45
    s_waitcnt vmcnt(0)
    s_barrier
    """)
    a.label(lab+'_unit')
    a(f"""
    v_add_u32 v5, s42, v1
    s_xor_b32 s50, s42, 32768
    s_cmp_lg_u32 s6, 0
    s_cbranch_scc1 {lab}_np
    """)
    issue_polls()
    a.label(lab+'_np')
    XR=64; NR=8; ACC=[32,48]; PK=96
    reads=[(t,ks) for t in range(3) for ks in range(32)]
    def rd(i):
        t,ks=reads[i]; r=XR+4*(i%NR)
        a(f"ds_read_b128 v[{r}:{r+3}], v5 offset:{ks*1024}")
    AHEAD=6
    for i in range(AHEAD): rd(i)
    Ms=['K','V','Q']
    def epi(t):
        acc=ACC[t&1]; M=Ms[t]; out=[]
        for i in range(8): out.append(f"v_cvt_pk_bf16_f32 v{PK+i}, v{acc+2*i}, v{acc+2*i+1}")
        off={'Q':0,'K':8192,'V':16384}[M]
        out.append(f"s_add_u32 s33, s48, {off}\nbuffer_store_dwordx4 v[{PK}:{PK+3}], v3, s[8:11], s33 offen sc1")
        out.append(f"buffer_store_dwordx4 v[{PK+4}:{PK+7}], v3, s[8:11], s33 offen offset:1024 sc1")
        return out
    pend=[]
    for i,(t,ks) in enumerate(reads):
        M=Ms[t]; acc=ACC[t&1]; r=XR+4*(i%NR)
        remaining=min(AHEAD-1, len(reads)-1-i)
        a(f"s_waitcnt lgkmcnt({remaining})")
        c='0' if ks==0 else f"v[{acc}:{acc+15}]"
        if M=='V': a(f"v_mfma_f32_32x32x16_bf16 v[{acc}:{acc+15}], v[{r}:{r+3}], {W(M,ks)}, {c}")
        else: a(f"v_mfma_f32_32x32x16_bf16 v[{acc}:{acc+15}], {W(M,ks)}, v[{r}:{r+3}], {c}")
        if i+AHEAD<len(reads): rd(i+AHEAD)
        if t>=1 and ks==0: pend=epi(t-1)
        if t>=1 and ks>=6 and pend: a(pend.pop(0))
        if t==0 and ks==31:
            a(f"""
            s_cmp_lg_u32 s6, 0
            s_cbranch_scc1 {lab}_nd
            s_waitcnt vmcnt(0)
            """)
            eval_polls()
            a(f"""
            v_mov_b32 v9, s38
            ds_write_b32 v4, v9 offset:4
            s_waitcnt lgkmcnt(0)
{lab}_nd:
            s_barrier
            """)
        if t==1 and ks==20:
            a("ds_read_b32 v11, v4 offset:4")
        if t==2 and ks==0:
            a(f"""
            s_waitcnt lgkmcnt(0)
            v_readfirstlane_b32 s38, v11
            s_mov_b32 s47, 0
            s_cmp_eq_u32 s38, 0
            s_cbranch_scc1 {lab}_nopf
            s_cmp_eq_u32 s38, 3
            s_cbranch_scc1 {lab}_nopf
            s_mov_b32 s47, 1
            """)
            take(38)
            for d in dma(50): a(d)
            a.label(lab+'_nopf')
    for x in epi(2): a(x)
    a(f"""
    s_waitcnt vmcnt(0)
    s_barrier
    s_cmp_lg_u32 s6, 0
    s_cbranch_scc1 {lab}_nf
    """)
    flagval(a,9)
    a("""
    v_lshlrev_b32 v8, 2, v0
    s_mov_b64 exec, 0xff
    buffer_store_dword v9, v8, s[8:11], s49 offen sc1
    s_mov_b64 exec, -1
    """)
    a(f"""
{lab}_nf:
    s_mov_b32 s42, s50
    s_cmp_eq_u32 s47, 0
    s_cbranch_scc1 {lab}_block
    s_mov_b32 s48, s44
    s_mov_b32 s49, s45
    s_branch {lab}_unit
{lab}_done:
    """)

def emit_AWO(a, cfg, fail):
    spin=cfg.get('spin',SPIN_DEFAULT)
    lab=a.new('AWO')
    a("""
    s_load_dwordx2 s[12:13], s[0:1], 16      ; A_wo
    s_waitcnt lgkmcnt(0)
    s_mov_b32 s14, 524288
    s_mov_b32 s15, 0x20000
    v_lshrrev_b32 v61, 5, v0
    v_and_b32 v60, 31, v0
    s_lshl_b32 s32, s5, 9
    """)
    for var in range(2):
        a(f"""
        v_add_u32 v62, {2*var}, v61
        v_lshlrev_b32 v62, 2, v62
        v_xor_b32 v62, v60, v62
        v_lshlrev_b32 v62, 4, v62
        v_lshl_add_u32 v62, v61, 10, v62
        v_add_u32 v{40+var}, s32, v62
        """)
    a("s_lshl_b32 s32, s6, 3")
    tr_addr32(a,44,'s32',512,lambda r,o: a(f"v_lshlrev_b32 v{o}, 2, v{r}"),0)
    a("v_xor_b32 v45, 64, v44\nv_add_u32 v46, 0x10000, v44\nv_add_u32 v47, 0x10000, v45")
    def wreg(T,ks,p):
        b=(T*32+ks)*4+2*p; return f"a[{b}:{b+1}]"
    for rnd in range(2):
        a(f"s_lshl_b32 s33, s6, 16\ns_add_u32 s33, s33, {rnd*256*1024}\ns_lshl_b32 s34, s6, 15")
        for n in range(32):
            a(f"s_add_u32 m0, s34, {2*n*512}\ns_add_u32 s35, s33, {2*n*1024}\nbuffer_load_dwordx4 v{40+(n&1)}, s[12:15], s35 offen lds")
        a("s_waitcnt vmcnt(0)\ns_barrier")
        for ksl in range(16):
            ks=16*rnd+ksl
            for T in range(2):
                for p in range(2):
                    off=(ksl&7)*16*512+p*8*512
                    a(f"ds_read_b64_tr_b16 {wreg(T,ks,p)}, v{44+T+(2 if ksl>=8 else 0)} offset:{off}")
            if ksl%2==1: a("s_waitcnt lgkmcnt(4)")
        a("s_waitcnt lgkmcnt(0)\ns_barrier")
    a(f"""
    v_lshlrev_b32 v1, 4, v0
    s_lshl_b32 s32, s6, 13
    v_add_u32 v2, s32, v1
    s_lshl_b32 s32, s5, 14
    s_lshl_b32 s33, s6, 12
    s_add_u32 s32, s32, s33
    v_add_u32 v3, s32, v1
    s_mul_i32 s32, s4, {6*64*32768}
    s_add_u32 s43, s32, {xs(T_OA1,0)}
    s_add_u32 s44, s32, {xs(T_YA1,0)}
    s_lshl_b32 s32, s4, 13
    s_add_u32 s45, s32, {WS_FLAG+FL_OA}
    s_lshl_b32 s33, s5, 2
    s_add_u32 s46, s32, {WS_FLAG+FL_YA}
    s_add_u32 s46, s46, s33
    s_mov_b32 s40, 0
{lab}_loop:
    """)
    wait_flags(a,lab+'w',32,'s45',fail,spin)
    for n in range(8):
        a(f"s_lshl_b32 s32, s6, 13\ns_add_u32 m0, s32, {(n>>2)*4096}\ns_add_u32 s33, s43, {(n>>2)*4096}\nbuffer_load_dwordx4 v2, s[8:11], s33 offen offset:{(n&3)*1024} sc1 lds")
    a("s_waitcnt vmcnt(0)\ns_barrier")
    XR=64; NR=8; AHEAD=6
    def rd(i): a(f"ds_read_b128 v[{XR+4*(i%NR)}:{XR+4*(i%NR)+3}], v1 offset:{i*1024}")
    for i in range(AHEAD): rd(i)
    for ks in range(32):
        r=XR+4*(ks%NR)
        a(f"s_waitcnt lgkmcnt({min(AHEAD-1,31-ks)})")
        for T in range(2):
            acc=32+16*T; c='0' if ks==0 else f"v[{acc}:{acc+15}]"
            b=(T*32+ks)*4
            a(f"v_mfma_f32_32x32x16_bf16 v[{acc}:{acc+15}], a[{b}:{b+3}], v[{r}:{r+3}], {c}")
        if ks+AHEAD<32: rd(ks+AHEAD)
    for T in range(2):
        pack_tile(a,32+16*T,96+8*T)
    for f in range(4):
        a(f"buffer_store_dwordx4 v[{96+4*f}:{99+4*f}], v3, s[8:11], s44 offen offset:{f*1024} sc1")
    a(f"""
    s_waitcnt vmcnt(0)
    s_barrier
    s_cmp_lg_u32 s6, 0
    s_cbranch_scc1 {lab}_nf
    """)
    set_flag(a,'s46')
    a(f"""
{lab}_nf:
    s_add_u32 s43, s43, 32768
    s_add_u32 s44, s44, 32768
    s_add_u32 s45, s45, 128
    s_add_u32 s46, s46, 128
    s_add_u32 s40, s40, 1
    s_cmp_lt_u32 s40, 64
    s_cbranch_scc1 {lab}_loop
    """)

def causal_masks(a, sbase, tmp=(60,61)):
    t0,t1=tmp
    a(f"""
    v_and_b32 v{t0}, 31, v0
    v_lshrrev_b32 v{t1}, 5, v0
    v_lshlrev_b32 v{t1}, 2, v{t1}
    v_sub_u32 v{t0}, v{t0}, v{t1}
    """)
    for r in range(16):
        k=8*(r>>2)+(r&3)
        a(f"v_cmp_le_i32 s[{sbase+2*r}:{sbase+2*r+1}], {k}, v{t0}")

def emit_AH(a, cfg, fail):
    spin=cfg.get('spin',SPIN_DEFAULT)
    lab=a.new('AH')
    RDY=98304+64
    a(f"""
    s_load_dwordx2 s[12:13], s[0:1], 8       ; A_wqkv [512][1536]
    s_waitcnt lgkmcnt(0)
    s_mov_b32 s14, {512*3072}
    s_mov_b32 s15, 0x20000
    v_lshrrev_b32 v61, 3, v0
    v_and_b32 v60, 7, v0
    v_bfe_u32 v62, v61, 1, 1
    v_lshlrev_b32 v62, 2, v62
    v_xor_b32 v62, v60, v62
    v_lshrrev_b32 v63, 1, v62
    v_min_u32 v63, 2, v63
    v_and_b32 v62, 1, v62
    v_lshlrev_b32 v62, 4, v62
    v_lshl_add_u32 v62, v63, 10, v62
    v_mul_u32_u24 v63, 3072, v61
    v_add_u32 v62, v62, v63
    s_lshl_b32 s32, s5, 5
    v_add_u32 v40, s32, v62
    """)
    a(f"s_mul_i32 s33, s6, {128*3072}\ns_lshl_b32 s34, s6, 14")
    for n in range(16):
        a(f"s_add_u32 m0, s34, {8*n*128}\ns_add_u32 s35, s33, {8*n*3072}\nbuffer_load_dwordx4 v40, s[12:15], s35 offen lds")
    a("s_waitcnt vmcnt(0)\ns_barrier\ns_mov_b32 s32, 0")
    def swz(r,o): a(f"v_lshrrev_b32 v{o}, 1, v{r}\nv_lshlrev_b32 v{o}, 2, v{o}")
    tr_addr32(a,44,'s32',128,swz,0)
    a("v_xor_b32 v45, 64, v44")
    for ks in range(32):
        for p in range(2):
            off=ks*16*128+p*8*128
            a(f"ds_read_b64_tr_b16 a[{4*ks+2*p}:{4*ks+2*p+1}], v44 offset:{off}")
            a(f"ds_read_b64_tr_b16 a[{128+4*ks+2*p}:{128+4*ks+2*p+1}], v45 offset:{off}")
        if ks%2==1: a("s_waitcnt lgkmcnt(4)")
    a("s_waitcnt lgkmcnt(0)\ns_barrier")
    a(f"""
    v_mov_b32 v1, {RDY}
    v_mov_b32 v2, 0
    s_lshl_b32 s32, s6, 2
    v_add_u32 v3, s32, v1
    s_xor_b32 s33, s32, 4
    v_add_u32 v4, s33, v1
    ds_write_b32 v3, v2
    s_waitcnt lgkmcnt(0)
    s_barrier
    v_lshlrev_b32 v1, 4, v0                  ; lane*16
    s_lshr_b32 s40, s6, 1                    ; layer
    s_and_b32 s41, s6, 1                     ; unit s
    s_mul_i32 s42, s40, 49152
    s_mul_i32 s32, s40, {6*64*32768}
    s_add_u32 s43, s32, {xs(T_XNA1,0)}
    s_add_u32 s44, s32, {xs(T_OA1,0)}
    s_lshl_b32 s33, s5, 10
    s_add_u32 s44, s44, s33                  ; + h*1024
    s_lshl_b32 s32, s40, 14
    s_add_u32 s45, s32, {WS_FLAG+FL_XN}      ; (2l)*64*128
    s_lshl_b32 s32, s40, 13
    s_add_u32 s46, s32, {WS_FLAG+FL_OA}
    s_lshl_b32 s33, s5, 2
    s_add_u32 s46, s46, s33
    s_lshl_b32 s32, s41, 15
    s_add_u32 s43, s43, s32
    s_add_u32 s44, s44, s32
    s_lshl_b32 s32, s41, 7
    s_add_u32 s45, s45, s32
    s_add_u32 s46, s46, s32
    v_and_b32 v5, 31, v0
    v_cmp_le_u32 s[62:63], 16, v5
    v_mov_b32 v6, 0x3f803f80
    v_mov_b32 v7, 0xff7fffff                 ; -FLT_MAX
    s_mov_b32 s47, 0x3eb8aa3b                ; 0.25*log2(e)
    """)
    causal_masks(a,64)
    a.label(lab+'_loop')
    wait_flags(a,lab+'w',8,'s45',fail,spin)
    XB=64
    for g in range(8):
        a(f"s_add_u32 s32, s43, {g*4096}")
        for j in range(4):
            ks=4*g+j
            a(f"buffer_load_dwordx4 v[{XB+4*ks}:{XB+4*ks+3}], v1, s[8:11], s32 offen offset:{j*1024} sc1")
    for ks in range(32):
        a(f"s_waitcnt vmcnt({31-ks})")
        c0='0' if ks==0 else 'v[32:47]'; c1='0' if ks==0 else 'v[48:63]'
        a(f"v_mfma_f32_32x32x16_bf16 v[32:47], a[{4*ks}:{4*ks+3}], v[{XB+4*ks}:{XB+4*ks+3}], {c0}")
        a(f"v_mfma_f32_32x32x16_bf16 v[48:63], v[{XB+4*ks}:{XB+4*ks+3}], a[{128+4*ks}:{128+4*ks+3}], {c1}")
    for i in range(4): a(f"v_cvt_pk_bf16_f32 v{8+i}, v{32+2*i}, v{33+2*i}")
    for i in range(4): a(f"v_cvt_pk_bf16_f32 v{12+i}, v{40+2*i}, v{41+2*i}")
    for i in range(8): a(f"v_cvt_pk_bf16_f32 v{16+i}, v{48+2*i}, v{49+2*i}")
    for i in range(8): a(f"v_cndmask_b32 v{16+i}, v{16+i}, v6, s[62:63]")
    a(f"""
    s_and_b32 s32, s41, 15
    s_mul_i32 s32, s32, 3072
    s_add_u32 s32, s32, s42
    v_add_u32 v24, s32, v1
    ds_write_b128 v24, v[12:15]
    ds_write_b128 v24, v[16:19] offset:1024
    ds_write_b128 v24, v[20:23] offset:2048
    s_add_u32 s33, s41, 1
    v_mov_b32 v25, s33
    s_waitcnt lgkmcnt(0)
    ds_write_b32 v3, v25
    s_mov_b32 s48, 0
{lab}_pw:
    ds_read_b32 v26, v4
    s_waitcnt lgkmcnt(0)
    v_readfirstlane_b32 s49, v26
    s_cmp_ge_u32 s49, s41
    s_cbranch_scc1 {lab}_pok
    s_add_u32 s48, s48, 1
    s_cmp_gt_u32 s48, {spin*8}
    s_cbranch_scc1 {fail}
    s_sleep 1
    s_branch {lab}_pw
{lab}_pok:
    """)
    SB=64
    for b in range(9):
        L=f"{lab}_b{b}"
        a(f"""
        s_add_u32 s32, s41, {b}
        s_cmp_lt_u32 s32, 8
        s_cbranch_scc1 {L}_inv
        s_sub_u32 s32, s32, 8
        s_and_b32 s32, s32, 15
        s_mul_i32 s32, s32, 3072
        s_add_u32 s{50+b}, s32, s42
        v_add_u32 v24, s{50+b}, v1
        ds_read_b128 v[28:31], v24
        s_waitcnt lgkmcnt(0)
        v_mfma_f32_32x32x16_bf16 v[{SB+16*b}:{SB+16*b+15}], v[28:31], v[8:11], 0
        s_branch {L}_e
{L}_inv:
        s_mov_b32 s{50+b}, s42
        """)
        for r in range(16): a(f"v_mov_b32 v{SB+16*b+r}, v7")
        a.label(L+'_e')
    for r in range(16): a(f"v_cndmask_b32 v{SB+128+r}, v7, v{SB+128+r}, s[{64+2*r}:{65+2*r}]")
    for r in range(16): a(f"v_cndmask_b32 v{SB+r}, v{SB+r}, v7, s[{64+2*r}:{65+2*r}]")
    a(f"v_max3_f32 v24, v{SB}, v{SB+1}, v{SB+2}\nv_max3_f32 v25, v{SB+3}, v{SB+4}, v{SB+5}")
    i=6
    while i<144:
        a(f"v_max3_f32 v24, v24, v{SB+i}, v{SB+i+1}"); i+=2
        if i<144: a(f"v_max3_f32 v25, v25, v{SB+i}, v{SB+i+1}"); i+=2
    a(f"""
    v_max_f32 v24, v24, v25
    v_mov_b32 v25, v24
    v_permlane32_swap_b32 v24, v25
    v_max_f32 v24, v24, v25
    v_mul_f32 v24, s47, v24
    """)
    for b in range(9):
        for r in range(16): a(f"v_fma_f32 v{SB+16*b+r}, v{SB+16*b+r}, s47, -v24")
        for r in range(16): a(f"v_exp_f32 v{SB+16*b+r}, v{SB+16*b+r}")
        a(f"v_add_u32 v26, s{50+b}, v1\nds_read_b128 v[28:31], v26 offset:1024\nds_read_b128 v[208:211], v26 offset:2048")
        for i in range(8): a(f"v_cvt_pk_bf16_f32 v{SB+16*b+i}, v{SB+16*b+2*i}, v{SB+16*b+2*i+1}")
        c='0' if b==0 else 'v[32:47]'
        a(f"""
        s_waitcnt lgkmcnt(0)
        v_mfma_f32_32x32x16_bf16 v[32:47], v[28:31], v[{SB+16*b}:{SB+16*b+3}], {c}
        v_mfma_f32_32x32x16_bf16 v[32:47], v[208:211], v[{SB+16*b+4}:{SB+16*b+7}], v[32:47]
        """)
    a("v_rcp_f32 v24, v40")
    for r in range(8): a(f"v_mul_f32 v{32+r}, v{32+r}, v24")
    for i in range(4): a(f"v_cvt_pk_bf16_f32 v{8+i}, v{32+2*i}, v{33+2*i}")
    a(f"""
    buffer_store_dwordx4 v[8:11], v1, s[8:11], s44 offen sc1
    s_waitcnt vmcnt(0)
    """)
    set_flag(a,'s46')
    a(f"""
    s_add_u32 s43, s43, 65536
    s_add_u32 s44, s44, 65536
    s_add_u32 s45, s45, 256
    s_add_u32 s46, s46, 256
    s_add_u32 s41, s41, 2
    s_cmp_lt_u32 s41, 64
    s_cbranch_scc1 {lab}_loop
    """)

def emit_ATT(a, cfg, fail):
    spin=cfg.get('spin',SPIN_DEFAULT)
    lab=a.new('ATT')
    a(f"""
    s_lshl_b32 s40, s5, 2
    s_add_u32 s40, s40, s6                   ; head
    s_lshl_b32 s32, s4, 11
    s_add_u32 s32, s32, s40                  ; (l*64)*32 + h
    s_mul_i32 s43, s32, {QKV_BLK}
    s_lshl_b32 s44, s32, 12
    s_add_u32 s44, s44, {WS_KM}
    s_lshl_b32 s45, s32, 4
    s_add_u32 s45, s45, {WS_FLAG+FL_CH}
    s_lshl_b32 s33, s4, 13
    s_lshl_b32 s34, s40, 2
    s_add_u32 s46, s33, s34
    s_add_u32 s46, s46, {WS_FLAG+FL_OB}
    s_lshl_b32 s33, s4, 24                   ; l*64*256K
    s_lshl_b32 s34, s40, 13
    s_add_u32 s47, s33, s34
    s_add_u32 s47, s47, {WS_OB}
    s_lshl_b32 s42, s6, 12
    v_lshlrev_b32 v1, 4, v0
    v_lshrrev_b32 v60, 5, v0
    v_and_b32 v61, 7, v0
    v_lshlrev_b32 v2, 4, v61
    v_lshl_add_u32 v2, v60, 7, v2
    v_add_u32 v2, s42, v2
    v_and_b32 v61, 31, v0
    v_lshlrev_b32 v3, 4, v61
    v_lshl_add_u32 v3, v60, 3, v3
    v_add_u32 v3, s42, v3
    v_mov_b32 v7, 0xff7fffff
    v_mov_b32 v12, 0x3f803f80
    v_mov_b32 v13, 0x3f803f80
    v_mov_b32 v14, 0x3f803f80
    v_mov_b32 v15, 0x3f803f80
    s_mov_b32 s48, 0x3e0293ee                ; 128^-0.5*log2e
    s_mov_b32 s41, 0
    """)
    causal_masks(a,64)
    a.label(lab+'_loop')
    wait_flags(a,lab+'w',4,'s45',fail,spin)
    a(f"s_mov_b32 m0, s42")
    for j in range(4): a(f"buffer_load_dwordx4 v1, s[8:11], s44 offen offset:{j*1024} sc1 lds")
    Q=64; K=96; V=128; KM=160
    for blk,reg in ((1,K),(0,Q),(2,V)):
        for g in range(2):
            a(f"s_add_u32 s32, s43, {blk*8192+g*4096}")
            for j in range(4):
                r=reg+4*(4*g+j)
                a(f"buffer_load_dwordx4 v[{r}:{r+3}], v1, s[8:11], s32 offen offset:{j*1024} sc1")
    a("s_waitcnt vmcnt(24)")
    for ks in range(8): a(f"ds_read_b128 v[{KM+4*ks}:{KM+4*ks+3}], v2 offset:{ks*256}")
    VM=192
    for W_ in range(4):
        a(f"ds_read_b64 v[{VM+4*W_}:{VM+4*W_+1}], v3 offset:{2048+W_*512}\nv_mov_b32 v{VM+4*W_+2}, 0\nv_mov_b32 v{VM+4*W_+3}, 0")
    a("s_waitcnt vmcnt(8) lgkmcnt(0)")
    for ks in range(8):
        c0='0' if ks==0 else 'v[32:47]'; c1='0' if ks==0 else 'v[48:63]'
        a(f"v_mfma_f32_32x32x16_bf16 v[32:47], v[{K+4*ks}:{K+4*ks+3}], v[{Q+4*ks}:{Q+4*ks+3}], {c0}")
        a(f"v_mfma_f32_32x32x16_bf16 v[48:63], v[{KM+4*ks}:{KM+4*ks+3}], v[{Q+4*ks}:{Q+4*ks+3}], {c1}")
    for r in range(16): a(f"v_cndmask_b32 v{32+r}, v7, v{32+r}, s[{64+2*r}:{65+2*r}]")
    a("v_max3_f32 v24, v32, v33, v34\nv_max3_f32 v25, v35, v36, v37")
    a("""
    v_max3_f32 v24, v24, v38, v39
    v_max3_f32 v25, v25, v40, v41
    v_max3_f32 v24, v24, v42, v43
    v_max3_f32 v25, v25, v44, v45
    v_max3_f32 v24, v24, v46, v47
    v_max3_f32 v25, v25, v48, v49
    v_max3_f32 v24, v24, v50, v51
    v_max_f32 v24, v24, v25
    v_mov_b32 v25, v24
    v_permlane32_swap_b32 v24, v25
    v_max_f32 v24, v24, v25
    v_mul_f32 v24, s48, v24
    """)
    for r in range(20): a(f"v_fma_f32 v{32+r}, v{32+r}, s48, -v24")
    for r in range(20): a(f"v_exp_f32 v{32+r}, v{32+r}")
    for i in range(8): a(f"v_cvt_pk_bf16_f32 v{16+i}, v{32+2*i}, v{33+2*i}")
    a("""
    v_cvt_pk_bf16_f32 v8, v48, v49
    v_cvt_pk_bf16_f32 v9, v50, v51
    v_mov_b32 v10, 0
    v_mov_b32 v11, 0
    s_waitcnt vmcnt(0)
    v_mfma_f32_32x32x16_bf16 v[32:47], v[12:15], v[16:19], 0
    v_mfma_f32_32x32x16_bf16 v[32:47], v[12:15], v[20:23], v[32:47]
    v_mfma_f32_32x32x16_bf16 v[32:47], v[12:15], v[8:11], v[32:47]
    """)
    O=160
    OT=[160,176,208,224]
    for W_ in range(4):
        o=OT[W_]
        a(f"v_mfma_f32_32x32x16_bf16 v[{o}:{o+15}], v[{V+8*W_}:{V+8*W_+3}], v[16:19], 0")
        a(f"v_mfma_f32_32x32x16_bf16 v[{o}:{o+15}], v[{V+8*W_+4}:{V+8*W_+7}], v[20:23], v[{o}:{o+15}]")
        a(f"v_mfma_f32_32x32x16_bf16 v[{o}:{o+15}], v[{VM+4*W_}:{VM+4*W_+3}], v[8:11], v[{o}:{o+15}]")
    a("v_rcp_f32 v24, v32")
    for W_ in range(4):
        o=OT[W_]
        for r in range(16): a(f"v_mul_f32 v{o+r}, v{o+r}, v24")
        for i in range(8): a(f"v_cvt_pk_bf16_f32 v{Q+8*W_+i}, v{o+2*i}, v{o+2*i+1}")
        if W_==2: a("s_add_u32 s32, s47, 4096")
        for f in range(2):
            fi=2*W_+f
            a(f"buffer_store_dwordx4 v[{Q+4*fi}:{Q+4*fi+3}], v1, s[8:11], {'s47' if fi<4 else 's32'} offen offset:{(fi&3)*1024} sc1")
    a("s_waitcnt vmcnt(0)")
    set_flag(a,'s46')
    a(f"""
    s_add_u32 s43, s43, {32*QKV_BLK}
    s_add_u32 s44, s44, {32*4096}
    s_add_u32 s45, s45, 512
    s_add_u32 s46, s46, 128
    s_add_u32 s47, s47, 262144
    s_add_u32 s41, s41, 1
    s_cmp_lt_u32 s41, 64
    s_cbranch_scc1 {lab}_loop
    """)

def emit_O(a, cfg, fail):
    spin=cfg.get('spin',SPIN_DEFAULT)
    lab=a.new('O')
    a(f"""
    s_load_dwordx2 s[12:13], s[0:1], 64      ; B_Wo [4096][512]
    s_waitcnt lgkmcnt(0)
    s_mov_b32 s14, 4194304
    s_mov_b32 s15, 0x20000
    s_lshr_b32 s40, s5, 3                    ; kh
    s_and_b32 s41, s5, 7                     ; nq
    v_lshrrev_b32 v61, 3, v0                 ; row_local
    v_and_b32 v60, 7, v0
    v_bfe_u32 v62, v61, 1, 1
    v_lshlrev_b32 v62, 2, v62
    v_xor_b32 v62, v60, v62
    v_lshlrev_b32 v62, 4, v62
    v_lshl_add_u32 v62, v61, 10, v62
    s_lshl_b32 s32, s41, 7
    v_add_u32 v40, s32, v62
    s_mov_b32 s32, 0
    """)
    def swz(r,o): a(f"v_lshrrev_b32 v{o}, 1, v{r}\nv_lshlrev_b32 v{o}, 2, v{o}")
    tr_addr32(a,44,'s32',128,swz,0)
    a("s_lshl_b32 s34, s6, 15\nv_add_u32 v44, s34, v44\nv_xor_b32 v45, 64, v44")
    for rnd in range(2):
        a(f"s_lshl_b32 s33, s40, 21\ns_lshl_b32 s35, s6, 19\ns_add_u32 s33, s33, s35\ns_add_u32 s33, s33, {rnd*256*1024}")
        for n in range(32):
            a(f"s_add_u32 m0, s34, {8*n*128}\ns_add_u32 s35, s33, {8*n*1024}\nbuffer_load_dwordx4 v40, s[12:15], s35 offen lds")
        a("s_waitcnt vmcnt(0)")
        for ksl in range(16):
            ks=16*rnd+ksl
            for T in range(2):
                for p in range(2):
                    b=(T*32+ks)*4+2*p
                    a(f"ds_read_b64_tr_b16 a[{b}:{b+1}], v{44+T} offset:{ksl*2048+p*1024}")
            if ksl%2==1: a("s_waitcnt lgkmcnt(4)")
        a("s_waitcnt lgkmcnt(0)")
    a(f"""
    s_barrier
    v_lshlrev_b32 v1, 4, v0
    s_lshl_b32 s32, s4, 24
    s_lshl_b32 s33, s40, 17
    s_lshl_b32 s34, s6, 15
    s_add_u32 s43, s32, s33
    s_add_u32 s43, s43, s34
    s_add_u32 s43, s43, {WS_OB}
    s_lshl_b32 s32, s4, 23                   ; l*64*128K
    s_lshl_b32 s33, s40, 15
    s_lshl_b32 s34, s41, 12
    s_add_u32 s44, s32, s33
    s_add_u32 s44, s44, s34
    s_lshl_b32 s34, s6, 10
    s_add_u32 s44, s44, s34
    s_add_u32 s44, s44, {WS_PO}
    s_lshl_b32 s32, s4, 13
    s_lshl_b32 s33, s40, 6
    s_lshl_b32 s34, s6, 4
    s_add_u32 s45, s32, s33
    s_add_u32 s45, s45, s34
    s_add_u32 s45, s45, {WS_FLAG+FL_OB}
    s_lshl_b32 s33, s5, 2
    s_add_u32 s46, s32, s33
    s_add_u32 s46, s46, {WS_FLAG+FL_PO}
    s_lshl_b32 s32, s6, 13
    v_add_u32 v2, s32, v1
    s_lshl_b32 s32, s6, 11
    v_add_u32 v3, s32, v1
    s_mov_b32 s47, 0
{lab}_loop:
    """)
    wait_flags(a,lab+'w',4,'s45',fail,spin)
    XB=64
    for g in range(8):
        a(f"s_add_u32 s32, s43, {g*4096}")
        for j in range(4):
            ks=4*g+j
            a(f"buffer_load_dwordx4 v[{XB+4*ks}:{XB+4*ks+3}], v1, s[8:11], s32 offen offset:{j*1024} sc1")
    for ks in range(32):
        a(f"s_waitcnt vmcnt({31-ks})")
        for T in range(2):
            acc=32+16*T; c='0' if ks==0 else f"v[{acc}:{acc+15}]"; b=(T*32+ks)*4
            a(f"v_mfma_f32_32x32x16_bf16 v[{acc}:{acc+15}], a[{b}:{b+3}], v[{XB+4*ks}:{XB+4*ks+3}], {c}")
    for q in range(8): a(f"ds_write_b128 v2, v[{32+4*q}:{35+4*q}] offset:{q*1024}")
    a("s_waitcnt lgkmcnt(0)\ns_barrier")
    for w in range(4):
        for q in range(2): a(f"ds_read_b128 v[{64+8*w+4*q}:{67+8*w+4*q}], v3 offset:{w*8192+q*1024}")
    a("s_waitcnt lgkmcnt(0)")
    for r in range(0,8,2):
        a(f"v_pk_add_f32 v[{64+r}:{65+r}], v[{64+r}:{65+r}], v[{72+r}:{73+r}]\nv_pk_add_f32 v[{80+r}:{81+r}], v[{80+r}:{81+r}], v[{88+r}:{89+r}]")
    for r in range(0,8,2):
        a(f"v_pk_add_f32 v[{64+r}:{65+r}], v[{64+r}:{65+r}], v[{80+r}:{81+r}]")
    for i in range(4): a(f"v_cvt_pk_bf16_f32 v{8+i}, v{64+2*i}, v{65+2*i}")
    a(f"""
    buffer_store_dwordx4 v[8:11], v1, s[8:11], s44 offen sc1
    s_waitcnt vmcnt(0)
    s_barrier
    s_cmp_lg_u32 s6, 0
    s_cbranch_scc1 {lab}_nf
    """)
    set_flag(a,'s46')
    a(f"""
{lab}_nf:
    s_add_u32 s43, s43, 262144
    s_add_u32 s44, s44, 131072
    s_add_u32 s45, s45, 128
    s_add_u32 s46, s46, 128
    s_add_u32 s47, s47, 1
    s_cmp_lt_u32 s47, 64
    s_cbranch_scc1 {lab}_loop
    """)

TSP=False
def tsp(a, role, k, unit_sreg, cond_sregs=()):
    if not TSP: return
    L=a.new('tsp')
    for c in cond_sregs: a(f"s_cmp_lg_u32 {c}, 0\ns_cbranch_scc1 {L}")
    a(f"""
    s_memrealtime s[98:99]
    s_lshl_b32 s97, {unit_sreg}, 6
    s_add_u32 s97, s97, {0xCC00000+role*0x10000+k*4}
    s_waitcnt lgkmcnt(0)
    v_mov_b32 v248, s98
    v_mov_b32 v249, 0
    s_mov_b64 exec, 1
    buffer_store_dword v248, v249, s[8:11], s97 offen
    s_mov_b64 exec, -1
{L}:
    """)

def prefetch_code(a, start, end, end_hint_bytes, vt=(2,3,4,5), st=(20,21)):
    L=a.new('pc')
    s0,s1=st; v0_,v1_,v2_,v3_=vt
    a(f"""
    s_getpc_b64 s[{s0}:{s1}]
{L}:
    s_add_u32 s{s0}, s{s0}, {start}-{L}
    s_addc_u32 s{s1}, s{s1}, 0
    v_mbcnt_lo_u32_b32 v{v2_}, -1, 0
    v_mbcnt_hi_u32_b32 v{v2_}, -1, v{v2_}
    v_lshlrev_b32 v{v2_}, 6, v{v2_}
    """)
    n=(end_hint_bytes+4095)//4096
    for i in range(n):
        a(f"v_min_u32 v{v1_}, {end}-{start}-4, v{v2_}\nglobal_load_dword v254, v{v1_}, s[{s0}:{s1}]")
        if i+1<n: a(f"v_add_u32 v{v2_}, 4096, v{v2_}")
```

```python
from common import *
import roles
SCALE_LOG2E=0x3e0293ee

L_MEM=0; L_XI=8192; XI_ROW=48; L_OI=L_XI+128*XI_ROW
L_KX=L_OI+2048; L_VX=L_KX+8192; L_WO=32768
assert L_VX+8192==L_WO

def emit_weights(a):
    a("""
    s_load_dwordx2 s[12:13], s[0:1], 40      ; Wq
    s_load_dwordx2 s[16:17], s[0:1], 48      ; Wk
    s_load_dwordx2 s[20:21], s[0:1], 56      ; Wv
    s_load_dwordx2 s[24:25], s[0:1], 64      ; Wo
    s_load_dwordx2 s[28:29], s[0:1], 32      ; mem0
    s_waitcnt lgkmcnt(0)
    s_mov_b32 s14, 4194304
    s_mov_b32 s15, 0x20000
    s_mov_b32 s18, 4194304
    s_mov_b32 s19, 0x20000
    s_mov_b32 s22, 4194304
    s_mov_b32 s23, 0x20000
    s_mov_b32 s26, 4194304
    s_mov_b32 s27, 0x20000
    s_mov_b32 s30, 8192
    s_mov_b32 s31, 0x20000
    v_and_b32 v60, 15, v0
    v_lshrrev_b32 v61, 4, v0
    v_and_b32 v62, 1, v61
    v_lshlrev_b32 v63, 13, v61
    s_lshl_b32 s32, s5, 8
    v_add_u32 v63, s32, v63
    """)
    for var in range(4):
        a(f"""
        v_lshlrev_b32 v64, 1, v62
        v_or_b32 v64, {var*4}, v64
        v_xor_b32 v64, v60, v64
        v_lshl_add_u32 v{40+var}, v64, 4, v63
        """)
    a(f"""
    v_lshrrev_b32 v62, 2, v60
    v_and_b32 v63, 3, v60
    v_lshrrev_b32 v64, 1, v61
    v_and_b32 v65, 1, v61
    v_lshrrev_b32 v66, 1, v62
    v_and_b32 v67, 1, v62
    v_lshlrev_b32 v68, 4, v64
    v_lshl_add_u32 v68, v66, 3, v68
    v_lshl_add_u32 v68, v65, 2, v68
    v_add_u32 v68, v68, v67
    v_lshl_add_u32 v69, v65, 1, v67
    v_lshl_add_u32 v69, v66, 2, v69
    v_lshlrev_b32 v69, 1, v69
    s_lshl_b32 s32, s6, 2
    v_lshrrev_b32 v70, 1, v63
    v_add_u32 v70, s32, v70
    v_xor_b32 v70, v70, v69
    v_lshlrev_b32 v70, 4, v70
    v_and_b32 v71, 1, v63
    v_lshl_add_u32 v70, v71, 3, v70
    v_lshl_add_u32 v72, v68, 8, v70
    v_xor_b32 v73, 32, v72                   ; tile 1
    """)
    a("""
    v_and_b32 v62, 1, v61
    v_lshlrev_b32 v63, 10, v61
    s_lshl_b32 s32, s5, 17
    v_add_u32 v63, s32, v63
    """)
    for var in range(4):
        a(f"""
        v_lshlrev_b32 v64, 1, v62
        v_or_b32 v64, {var*4}, v64
        v_xor_b32 v64, v60, v64
        v_lshl_add_u32 v{50+var}, v64, 4, v63
        """)
    a(f"""
    v_lshrrev_b32 v62, 2, v60
    v_lshrrev_b32 v64, 1, v61
    v_and_b32 v65, 1, v61
    v_lshrrev_b32 v66, 1, v62
    v_and_b32 v67, 1, v62
    v_lshlrev_b32 v68, 5, v66
    v_lshl_add_u32 v68, v65, 4, v68
    v_lshl_add_u32 v68, v64, 2, v68
    v_add_u32 v68, v68, v67
    v_lshl_add_u32 v54, v68, 8, v70
    v_xor_b32 v55, 32, v54
    v_lshlrev_b32 v56, 4, v0
    s_and_b32 s36, s6, 1
    s_cmp_eq_u32 s36, 0
    s_cselect_b64 vcc, -1, 0
    v_cndmask_b32 v58, v52, v50, vcc
    v_cndmask_b32 v59, v53, v51, vcc
    """)
    def wreg(M,t,kk,m):
        base={'Q':0,'K':128}.get(M); idx=(t*8+kk)*8+2*m
        if M=='V': return f"v[{128+idx}:{128+idx+1}]"
        return f"a[{base+idx}:{base+idx+1}]"
    srd={'Q':'s[12:15]','K':'s[16:19]','V':'s[20:23]'}
    def qk_job(M,h,buf):
        base=L_WO+buf*65536
        def issue():
            a(f"s_lshl_b32 s33, s6, 19\ns_add_u32 s33, s33, {h*256*8192}\ns_lshl_b32 s34, s6, 14\ns_add_u32 s34, s34, {base}")
            for n in range(16):
                a(f"s_add_u32 m0, s34, {4*n*256}\ns_add_u32 s35, s33, {4*n*8192}\nbuffer_load_dwordx4 v{40+(n&3)}, {srd[M]}, s35 offen lds")
        def consume():
            a(f"v_add_u32 v44, {base}, v72\nv_add_u32 v45, {base}, v73")
            for t in range(2):
                for k4 in range(4):
                    kk=4*h+k4
                    for m in range(4):
                        off=(64*k4+32*(m>>1)+2*(m&1))*256
                        a(f"ds_read_b64_tr_b16 {wreg(M,t,kk,m)}, v{44+t} offset:{off}")
                    a("s_waitcnt lgkmcnt(8)")
        return (16,issue,consume)
    def v_job(r,buf):
        base=L_WO+65536+buf*32768
        def issue():
            a(f"s_lshl_b32 s33, s6, 18\ns_add_u32 s33, s33, {r*128*8192}\ns_lshl_b32 s34, s6, 13\ns_add_u32 s34, s34, {base}")
            for n in range(8):
                a(f"s_add_u32 m0, s34, {4*n*256}\ns_add_u32 s35, s33, {4*n*8192}\nbuffer_load_dwordx4 v{40+(n&3)}, s[20:23], s35 offen lds")
        def consume():
            a(f"v_add_u32 v44, {base}, v72\nv_add_u32 v45, {base}, v73")
            for t in range(2):
                for k2 in range(2):
                    kk=2*r+k2
                    for m in range(4):
                        off=(64*k2+32*(m>>1)+2*(m&1))*256
                        a(f"ds_read_b64_tr_b16 {wreg('V',t,kk,m)}, v{44+t} offset:{off}")
            a("s_waitcnt lgkmcnt(0)")
        return (8,issue,consume)
    def wo_job(j):
        def issue():
            a(f"s_lshl_b32 s33, s6, 15\ns_add_u32 s33, s33, {j*256}\ns_lshl_b32 s34, s6, 13")
            for n in range(8):
                a(f"s_add_u32 m0, s34, {4*n*256}\ns_add_u32 s35, s33, {4*n*1024}\nbuffer_load_dwordx4 v{58+(n>>2)}, s[24:27], s35 offen lds")
        def consume():
            for t in range(2):
                for kk in range(2):
                    for m in range(4):
                        off=(64*kk+8*(m>>1)+2*(m&1))*256; r=96+((t*2+kk)*8)+2*m
                        a(f"ds_read_b64_tr_b16 v[{r}:{r+1}], v{54+t} offset:{off}")
            a(f"s_lshl_b32 s36, s6, 13\ns_add_u32 s36, s36, {L_WO+j*32768}\nv_add_u32 v47, s36, v56\ns_waitcnt lgkmcnt(0)")
            for t in range(2):
                for kk in range(2):
                    for q in range(2):
                        r=96+((t*2+kk)*8)+4*q
                        a(f"ds_write_b128 v47, v[{r}:{r+3}] offset:{(t*2+kk)*2048+q*1024}")
        return (8,issue,consume)
    jobs=[qk_job('Q',0,0),qk_job('Q',1,1),qk_job('K',0,0),qk_job('K',1,1),
          v_job(0,0),v_job(1,1),wo_job(0),v_job(2,0),v_job(3,1),wo_job(1),wo_job(2),wo_job(3)]
    dep={0:-1,1:-1,2:0,3:1,4:3,5:3,6:-1,7:4,8:5,9:6,10:9,11:10}
    order_issue=[0,1,6,2,3,4,5,7,8,9,10,11]
    issued=[]; outstanding=[]
    def try_issue(consumed):
        for i in order_issue:
            if i not in issued and dep[i]<=consumed_max[0] and (dep[i]==-1 or dep[i] in done):
                jobs[i][1](); issued.append(i); outstanding.append(i)
            elif i not in issued: break
    done=set(); consumed_max=[-1]
    def pump():
        for i in order_issue:
            if i in issued: continue
            if dep[i]==-1 or dep[i] in done:
                jobs[i][1](); issued.append(i); outstanding.append(i)
            else: break
    consume_order=[0,1,2,3,4,5,6,7,8,9,10,11]
    pump()
    for i in consume_order:
        if i in outstanding:
            k=outstanding.index(i)
            younger=sum(jobs[x][0] for x in outstanding[k+1:])
            a(f"s_waitcnt vmcnt({min(younger,63)})\ns_barrier")
            outstanding[:]=outstanding[k+1:]
        jobs[i][2]()
        a("s_waitcnt lgkmcnt(0)\ns_barrier")
        done.add(i)
        pump()

def emit_chain(a, cfg, fail):
    st=cfg.get('st','')
    nsteps=cfg.get('nsteps',64)
    stamps=cfg.get('stamps',False)
    SPIN=cfg.get('spin',400000)
    lab=a.new('ch')
    def stamp(k):
        if not stamps: return
        a(f"""
        s_memtime s[70:71]
        s_waitcnt lgkmcnt(0)
        s_sub_u32 s73, s70, s72
        s_add_u32 s{76+k}, s{76+k}, s73
        s_mov_b32 s72, s70
        """)
    trace=cfg.get('trace',0)
    def tr(k):
        pass
    def tp(k):
        if trace: a(f"s_memtime s[{70+2*k}:{71+2*k}]")
    if stamps or cfg.get('tot'): a("s_memtime s[68:69]")
    if not cfg.get('init',False):
        a(f"""
        s_lshl_b32 s24, s4, 20
        s_lshl_b32 s25, s5, 13
        s_add_u32 s24, s24, s25
        s_lshl_b32 s25, s6, 11
        s_add_u32 s24, s24, s25
        s_add_u32 s24, s24, {WS_INB}
        v_lshlrev_b32 v2, 4, v0
        v_mov_b32 v4, -1
        v_mov_b32 v5, -1
        v_mov_b32 v6, -1
        v_mov_b32 v7, -1
        buffer_store_dwordx4 v[4:7], v2, s[8:11], s24 offen {st}
        buffer_store_dwordx4 v[4:7], v2, s[8:11], s24 offen offset:1024 {st}
        s_lshl_b32 s24, s4, 15
        s_lshl_b32 s25, s5, 8
        s_add_u32 s24, s24, s25
        s_add_u32 s24, s24, {WS_MEM}
        s_mul_i32 s25, s6, 8192
        s_add_u32 s24, s24, s25
        s_cmp_eq_u32 s6, 3
        s_cbranch_scc1 {lab}_ci0
        s_mov_b64 exec, 0xffff
        buffer_store_dwordx4 v[4:7], v2, s[8:11], s24 offen {st}
        s_mov_b64 exec, -1
{lab}_ci0:
        s_waitcnt vmcnt(0)
        s_barrier
        s_cmp_lg_u32 s6, 0
        s_cbranch_scc1 {lab}_ci1
        s_load_dwordx2 s[12:13], s[0:1], 88
        s_waitcnt lgkmcnt(0)
        s_mov_b32 s14, 256
        s_mov_b32 s15, 0x20000
        s_lshl_b32 s24, s4, 2
        s_add_u32 s24, s24, 64
        v_mov_b32 v3, 1
        v_mov_b32 v4, s24
        s_mov_b64 exec, 1
        buffer_atomic_add v3, v4, s[12:15], 0 offen
        s_mov_b64 exec, -1
{lab}_ci1:
        """)
    emit_weights(a)
    if not cfg.get('init',False):
        cfg['init_wait'](a,lab+'a')
        for l_ in range(2):
            a(f"s_cmp_lg_u32 s4, {l_}\ns_cbranch_scc1 {lab}_cw{l_}")
            cfg['init_wait'](a,lab+f'b{l_}',64+4*l_,32)
            a.label(lab+f'_cw{l_}')
    IDX=1; AMEM=2; XQW=3; XKW=4; XQR=5; XKR=6; KXR=7; VXR=8; L16=9; GPART=10; AOFF=11; OIW=12; OIR=13; WOR=14; GVM=15; GPUB=102
    ONES=16; PM=20; VM0=22; VM1=24; T=26
    a(f"""
    v_and_b32 v60, 15, v0                    ; c / rho
    v_lshrrev_b32 v61, 4, v0                 ; g
    v_lshrrev_b32 v62, 2, v60
    v_and_b32 v63, 1, v60
    v_lshl_add_u32 v62, v62, 1, v63
    v_bfe_u32 v63, v60, 1, 1                 ; hi
    v_mov_b32 v{IDX}, 0x4444
    v_mov_b32 v64, 0xeeee
    v_cmp_eq_u32 vcc, 1, v63
    v_lshlrev_b32 v{AOFF}, 8, v61
    v_lshl_add_u32 v{AOFF}, v62, 5, v{AOFF}
    v_cndmask_b32 v{IDX}, v{IDX}, v64, vcc
    v_lshl_add_u32 v{AOFF}, v63, 4, v{AOFF}
    v_lshlrev_b32 v{AMEM}, 4, v0
    v_lshl_add_u32 v66, v63, 2, v61
    v_lshlrev_b32 v{OIR}, 7, v66
    v_lshl_add_u32 v{OIR}, v62, 4, v{OIR}
    v_add_u32 v{OIR}, {L_OI}, v{OIR}
    s_lshl_b32 s32, s6, 5
    v_add_u32 v66, s32, v60
    v_mul_u32_u24 v66, {XI_ROW}, v66
    v_add_u32 v66, {L_XI}, v66
    v_lshl_add_u32 v{XQW}, v61, 2, v66
    v_lshl_add_u32 v{XKW}, v61, 3, v66
    v_add_u32 v{XKW}, 16, v{XKW}
    v_lshrrev_b32 v66, 2, v60
    v_lshrrev_b32 v67, 1, v61
    v_and_b32 v65, 1, v61
    v_lshl_add_u32 v66, v67, 4, v66
    v_lshl_add_u32 v66, v65, 2, v66
    s_lshl_b32 s32, s6, 5
    v_add_u32 v66, s32, v66
    v_mul_u32_u24 v66, {XI_ROW}, v66
    v_add_u32 v66, {L_XI}, v66
    v_and_b32 v68, 1, v0
    v_lshl_add_u32 v{XQR}, v68, 3, v66
    v_and_b32 v68, 3, v0
    v_lshl_add_u32 v{XKR}, v68, 3, v66
    v_add_u32 v{XKR}, 16, v{XKR}
    v_and_b32 v68, 7, v60
    v_lshrrev_b32 v69, 3, v60
    v_lshl_add_u32 v66, v69, 4, v68
    v_lshl_add_u32 v66, v65, 5, v66
    v_lshlrev_b32 v{KXR}, 4, v66
    v_lshl_add_u32 v{KXR}, v67, 10, v{KXR}
    s_lshl_b32 s32, s6, 11
    s_add_u32 s32, s32, {L_KX}
    v_add_u32 v{KXR}, s32, v{KXR}
    s_lshl_b32 s32, s6, 11
    s_add_u32 s33, s32, {L_VX}
    v_lshl_add_u32 v66, v65, 5, v60
    v_lshlrev_b32 v{VXR}, 4, v66
    v_lshl_add_u32 v{VXR}, v67, 10, v{VXR}
    v_add_u32 v{VXR}, s33, v{VXR}
    v_lshlrev_b32 v{L16}, 4, v0
    s_lshl_b32 s32, s6, 16
    s_lshl_b32 s33, s5, 8
    s_add_u32 s32, s32, s33
    v_lshlrev_b32 v{GPART}, 13, v61
    v_lshl_add_u32 v{GPART}, v60, 4, v{GPART}
    v_add_u32 v{GPART}, s32, v{GPART}
    s_lshl_b32 s32, s6, 9
    s_add_u32 s33, s32, {L_OI}
    v_lshlrev_b32 v{OIW}, 7, v61
    v_lshl_add_u32 v{OIW}, v68, 4, v{OIW}
    v_add_u32 v{OIW}, s33, v{OIW}
    s_lshl_b32 s32, s6, 9
    s_add_u32 s33, s32, 2048
    v_add_u32 v{GVM}, s33, v{L16}
    s_lshl_b32 s32, s6, 15
    s_add_u32 s32, s32, {L_WO}
    v_add_u32 v{WOR}, s32, v{L16}
    v_mov_b32 v{ONES}, 0x3f803f80
    v_mov_b32 v{ONES+1}, 0x3f803f80
    v_mov_b32 v{ONES+2}, 0x3f803f80
    v_mov_b32 v{ONES+3}, 0x3f803f80
    v_mov_b32 v{PM+1}, 0
    v_mov_b32 v{VM0+1}, 0
    v_mov_b32 v{VM1+1}, 0
    s_mov_b32 s40, 0x00ff00ff
    s_mov_b32 s41, 0x00ff00ff
    s_mov_b32 s60, 0x33333333
    s_mov_b32 s61, 0x33333333
    s_lshl_b32 s32, s4, 11
    s_add_u32 s32, s32, s5
    s_mul_i32 s42, s32, {QKV_BLK}
    s_lshl_b32 s43, s32, 12
    s_add_u32 s43, s43, {WS_KM}
    s_lshl_b32 s44, s4, 15
    s_add_u32 s45, s44, {WS_MEM}
    s_add_u32 s46, s45, 8192
    s_add_u32 s47, s45, 16384
    s_lshl_b32 s48, s4, 20
    s_add_u32 s48, s48, {WS_INB}
    s_mov_b32 s49, 0
    s_mov_b32 s58, 0
    s_lshl_b32 s50, s5, 13
    s_mov_b32 s51, 0
    s_mov_b32 s52, {SCALE_LOG2E}
    s_mov_b32 s59, 0
    s_lshl_b32 s53, s32, 5
    s_add_u32 s53, s53, {WS_FLAG+FL_P}       ; (l,s,h) 32B, step 1024
    s_lshl_b32 s54, s32, 4
    s_lshl_b32 s33, s6, 2
    s_add_u32 s54, s54, s33
    s_add_u32 s54, s54, {WS_FLAG+FL_CH}      ; (l,s,h,w) step 512
    """)
    a(f"s_mov_b32 s38, {SCALE_LOG2E}\ns_mov_b32 s39, {SCALE_LOG2E}")
    MEMA=28; AQ=60; AK=68; AV=76; S=84; XB=[60,96,60,96]; OACC=[96,112]
    VMW=GVM
    def wait_p(name):
        a(f"""
        s_mov_b32 s55, 0
{name}_spin:
        v_and_b32 v{T}, 3, v0
        v_lshlrev_b32 v{T}, 2, v{T}
        buffer_load_dword v{T}, v{T}, s[8:11], s53 offen sc1
        s_waitcnt vmcnt(0)
        v_cmp_eq_u32 vcc, 0, v{T}
        s_cbranch_vccz {name}_ok
        s_add_u32 s55, s55, 1
        s_cmp_gt_u32 s55, {SPIN}
        s_cbranch_scc1 {lab}_fail
        s_sleep 2
        s_branch {name}_spin
{name}_ok:
        """)
    def kx_dma_list(w):
        return [f"s_add_u32 m0, s35, {w*2048}\ns_add_u32 s33, s67, {8192+w*2048}\nbuffer_load_dwordx4 v{L16}, s[8:11], s33 offen sc1 lds",
                f"buffer_load_dwordx4 v{L16}, s[8:11], s33 offen offset:1024 sc1 lds"]
    def vx_dma_list(w):
        return [f"s_mov_b32 m0, {L_VX+w*2048}\ns_add_u32 s33, s42, {16384+w*2048}\nbuffer_load_dwordx4 v{L16}, s[8:11], s33 offen sc1 lds",
                f"buffer_load_dwordx4 v{L16}, s[8:11], s33 offen offset:1024 sc1 lds"]
    def kmvm_prep(w):
        a(f"""
        ds_read_b64_tr_b16 v[88:89], v{XKR}
        ds_read_b64_tr_b16 v[90:91], v{XKR} offset:{8*XI_ROW}
        v_mov_b32 v92, v{VM0}
        v_mov_b32 v93, v{VM1}
        v_mov_b32 v94, 0
        v_mov_b32 v95, 0
        v_and_b32 v26, 15, v0
        v_lshrrev_b32 v27, 2, v26
        v_permlane32_swap_b32 v92, v94
        v_permlane32_swap_b32 v93, v95
        v_and_b32 v26, 1, v26
        v_lshl_add_u32 v26, v27, 1, v26          ; m(c)
        v_permlane16_swap_b32 v92, v93
        v_permlane16_swap_b32 v94, v95
        v_lshrrev_b32 v27, 4, v0
        v_lshlrev_b32 v27, 7, v27
        v_lshl_add_u32 v27, v26, 4, v27          ; g*128 + m*16
        v_add_u32 v27, {w*512}, v27
        s_mov_b32 s66, s43
        """)
    def kmvm_issue():
        return [f"s_mov_b32 exec_hi, 0\nbuffer_store_dwordx4 v[92:95], v{GVM}, s[8:11], s66 offen sc1\ns_mov_b32 exec_hi, -1",
                f"s_mov_b64 exec, s[60:61]\nbuffer_store_dwordx4 v[88:91], v27, s[8:11], s66 offen sc1\ns_mov_b64 exec, -1"]
    def zero_accs():
        for r in range(AQ,AQ+24,2): a(f"v_mov_b64 v[{r}:{r+1}], 0")
        for r in range(96,128,2): a(f"v_mov_b64 v[{r}:{r+1}], 0")
    wait_p(lab+'_p0')
    a(f"""
    s_lshl_b32 s34, s6, 11
    s_add_u32 m0, s34, {L_KX}
    s_add_u32 s33, s42, s34
    s_add_u32 s33, s33, 8192
    buffer_load_dwordx4 v{L16}, s[8:11], s33 offen sc1 lds
    buffer_load_dwordx4 v{L16}, s[8:11], s33 offen offset:1024 sc1 lds
    v_bfe_u32 v60, v{AOFF}, 5, 3              ; i
    v_lshrrev_b32 v61, 8, v{AOFF}             ; ga
    v_bfe_u32 v62, v{AOFF}, 4, 1              ; hi
    v_lshlrev_b32 v63, 10, v60
    v_lshl_add_u32 v63, v61, 5, v63
    v_lshl_add_u32 v63, v62, 4, v63
    s_lshl_b32 s32, s6, 8                     ; 2w*64*2
    v_add_u32 v63, s32, v63
    buffer_load_dwordx4 v[20:23], v63, s[28:31], 0 offen
    buffer_load_dwordx4 v[84:87], v63, s[28:31], 0 offen offset:128
    s_waitcnt vmcnt(0)
    """)
    zero_accs()
    a(f"v_mov_b32 v27, 0\ns_mov_b32 s66, {WS_SCR}")
    for r in range(88,96): a(f"v_mov_b32 v{r}, 0")
    if stamps or cfg.get('tot'):
        a("s_memtime s[70:71]\ns_waitcnt lgkmcnt(0)\ns_mov_b32 s72, s70\ns_mov_b32 s74, s70\ns_sub_u32 s88, s70, s68")
        for k in range(12): a(f"s_mov_b32 s{76+k}, 0")
    def W(M,t,kk):
        idx=(t*8+kk)*8
        if M=='V': return f"v[{128+idx}:{128+idx+7}]"
        base={'Q':0,'K':128}[M]; return f"a[{base+idx}:{base+idx+7}]"
    def smf(M,t,kk):
        acc={'Q':AQ,'K':AK,'V':AV}[M]+4*t
        a(f"v_smfmac_f32_16x16x64_bf16 v[{acc}:{acc+3}], v[{MEMA+4*kk}:{MEMA+4*kk+3}], {W(M,t,kk)}, v{IDX}")
    def wo_read(o,reg):
        a(f"ds_read_b128 v[{reg}:{reg+3}], v{WOR} offset:{o*2048}\nds_read_b128 v[{reg+4}:{reg+7}], v{WOR} offset:{o*2048+1024}")
    for w in range(4):
        a(f"s_cmp_eq_u32 s6, {w}\ns_cbranch_scc1 {lab}_ent{w}")
    def body(w):
        L=f"{lab}_w{w}"
        own=[2*w,2*w+1]; oth=[k for k in range(8) if k not in own]
        a.label(lab+f'_ent{w}')
        for j in range(4):
            a(f"v_mov_b32 v{MEMA+4*own[0]+j}, v{20+j}\nv_mov_b32 v{MEMA+4*own[1]+j}, v{84+j}")
        a(f"v_mov_b32 v{PM+1}, 0\nv_mov_b32 v{VM0+1}, 0\nv_add_u32 v26, {w*2048}, v{AMEM}")
        a(f"ds_write_b128 v26, v[{MEMA+4*own[0]}:{MEMA+4*own[0]+3}]\nds_write_b128 v26, v[{MEMA+4*own[1]}:{MEMA+4*own[1]+3}] offset:1024")
        a.label(L+'_go')
        if trace:
            a(f"""
            s_cmp_lg_u32 s51, {trace}
            s_cbranch_scc1 {L}_notr
            s_waitcnt lgkmcnt(0)
            s_lshl_b32 s32, s4, 5
            s_add_u32 s32, s32, s5
            s_lshl_b32 s32, s32, 2
            s_add_u32 s32, s32, s6
            s_lshl_b32 s32, s32, 6
            s_add_u32 s32, s32, 0xC900000
            """)
            for k in range(14): a(f"v_mov_b32 v{112+k}, s{70+2*k}")
            a(f"""
            v_mov_b32 v126, s55
            v_mov_b32 v127, 0
            s_mov_b64 exec, 1
            buffer_store_dwordx4 v[112:115], v127, s[8:11], s32 offen
            buffer_store_dwordx4 v[116:119], v127, s[8:11], s32 offen offset:16
            buffer_store_dwordx4 v[120:123], v127, s[8:11], s32 offen offset:32
            buffer_store_dwordx4 v[124:127], v127, s[8:11], s32 offen offset:48
            s_mov_b64 exec, -1
            s_waitcnt vmcnt(0)
            """)
            for r in range(112,128,2): a(f"v_mov_b64 v[{r}:{r+1}], 0")
            a.label(L+'_notr')
        tp(0)
        if cfg.get('steplog') and w==0:
            a(f"""
            s_cmp_lg_u32 s5, 0
            s_cbranch_scc1 {L}_nsl
            s_memrealtime s[98:99]
            s_lshl_b32 s97, s4, 6
            s_add_u32 s97, s97, s51
            s_lshl_b32 s97, s97, 2
            s_add_u32 s97, s97, 0xCD00000
            s_waitcnt lgkmcnt(0)
            v_mov_b32 v84, s98
            v_mov_b32 v85, 0
            s_mov_b64 exec, 1
            buffer_store_dword v84, v85, s[8:11], s97 offen
            s_mov_b64 exec, -1
{L}_nsl:
            """)
        def run(carriers, sides):
            for n,x in enumerate(carriers):
                smf(*x)
                for ins in sides.get(n,[]): a(ins)
        run([('Q',0,own[0]),('Q',1,own[0]),('K',0,own[0]),('K',1,own[0]),('Q',0,own[1]),('Q',1,own[1])],
            {0:["s_and_b32 s57, s51, 1", f"s_add_u32 s32, s53, 1024"], 1:[f"v_and_b32 v{T}, 3, v0"]})
        a("s_waitcnt lgkmcnt(0)\ns_barrier")
        tp(1)
        stamp(7)
        rd=[f"ds_read_b128 v[{MEMA+4*kk}:{MEMA+4*kk+3}], v{AMEM} offset:{kk*1024}" for kk in oth]
        a(rd[0]); a(rd[1])
        F_ld=f"buffer_load_dword v{T}, v{T}, s[8:11], s32 offen sc1"
        X=vx_dma_list(w); Sx=kmvm_issue()
        X0=X[0].split('\n'); S0=Sx[0].split('\n'); S1=Sx[1].split('\n')
        if cfg.get('noS'): S0=S1=["s_nop 0"]*3
        if cfg.get('noX'): X0=["s_nop 0"]*3; X=[None,"s_nop 0"]
        if cfg.get('noK'): F_ld="s_nop 0"
        run([('K',0,own[1]),('K',1,own[1]),('V',0,own[0]),('V',1,own[0]),('V',0,own[1]),('V',1,own[1])],
            {0:[rd[2],rd[3]], 1:[rd[4],rd[5]], 2:[f"v_lshlrev_b32 v{T}, 2, v{T}"], 3+(w&1):[F_ld] })
        car=[('Q',t,kk) for kk in oth for t in range(2)]
        sides={}
        def put(n,ins): sides.setdefault(n,[]).append(ins)
        for j in range(6): put(2*j-1 if j else -1, f"s_waitcnt lgkmcnt({5-j})")
        a("s_waitcnt lgkmcnt(5)")
        sides.pop(-1,None)
        put(0+w, X0[0]); put(0+w, X0[1]); put(1+w, X0[2]); put(5+w, X[1])
        run(car,sides)
        car=[('K',t,kk) for kk in oth for t in range(2)]
        sides={}
        for x in S0: put(0+(w&1),x)
        for x in S1: put(2+(w&1),x)
        put(4,f"v_add_f32 v{AQ}, v{AQ}, v{AQ+2}"); put(5,f"v_add_f32 v{AQ+1}, v{AQ+1}, v{AQ+3}")
        put(6,f"v_add_f32 v{AQ+4}, v{AQ+4}, v{AQ+6}"); put(7,f"v_add_f32 v{AQ+5}, v{AQ+5}, v{AQ+7}")
        put(8,f"v_cvt_pk_bf16_f32 v{AQ}, v{AQ}, v{AQ+1}"); put(9,f"v_cvt_pk_bf16_f32 v{AQ+1}, v{AQ+4}, v{AQ+5}")
        put(10,f"ds_write2_b32 v{XQW}, v{AQ}, v{AQ+1} offset0:0 offset1:{16*XI_ROW//4}")
        put(10,f"ds_read_b64_tr_b16 v[84:85], v{XQR}"); put(11,f"ds_read_b64_tr_b16 v[86:87], v{XQR} offset:{8*XI_ROW}")
        put(11,f"ds_read_b128 v[60:63], v{KXR}")
        run(car,sides)
        tp(2)
        stamp(0)
        vseq=[('V',t,kk) for kk in oth for t in range(2)]
        run(vseq[0:3],{0:[f"ds_read_b128 v[64:67], v{KXR} offset:128"]})
        a(f"""
        s_nop 2
        v_add_f32 v{AK}, v{AK}, v{AK+2}
        v_add_f32 v{AK+1}, v{AK+1}, v{AK+3}
        v_add_f32 v{AK+4}, v{AK+4}, v{AK+6}
        v_add_f32 v{AK+5}, v{AK+5}, v{AK+7}
        v_cvt_pk_bf16_f32 v{AK}, v{AK}, v{AK+1}
        v_cvt_pk_bf16_f32 v{AK+1}, v{AK+4}, v{AK+5}
        ds_write2_b32 v{XKW}, v{AK}, v{AK+1} offset0:0 offset1:{16*XI_ROW//4}
        ds_read_b64_tr_b16 v[72:73], v{XKR}
        ds_read_b64_tr_b16 v[74:75], v{XKR} offset:{8*XI_ROW}
        s_waitcnt lgkmcnt(3)
        v_mfma_f32_16x16x32_bf16 v[88:91], v[60:63], v[84:87], 0
        v_mfma_f32_16x16x32_bf16 v[92:95], v[64:67], v[84:87], 0
        """)
        run(vseq[3:8],{0:[f"s_xor_b32 s34, s49, {L_KX}",f"s_add_u32 s34, s34, {w*2048}"],1:[f"v_add_u32 v54, s34, v{L16}"] ,
                       2:[f"v_lshrrev_b32 v55, 1, v{L16}"],3:[f"v_add_u32 v55, s34, v55"]} if False else {})
        a(f"""
        s_waitcnt lgkmcnt(0)
        v_mfma_f32_16x16x32_bf16 v[68:71], v[72:75], v[84:87], 0
        """)
        run(vseq[8:12],{0:[f"s_xor_b32 s34, s49, {L_KX}",f"s_add_u32 s34, s34, {w*2048}",f"v_cndmask_b32 v88, v92, v88, s[40:41]"],
                        1:[f"v_cndmask_b32 v89, v93, v89, s[40:41]"],2:[f"v_cndmask_b32 v90, v94, v90, s[40:41]"],3:[f"v_cndmask_b32 v91, v95, v91, s[40:41]"]})
        a(f"""
        v_add_u32 v92, s34, v{L16}
        v_lshrrev_b32 v93, 1, v{L16}
        v_add_u32 v93, s34, v93
        ds_write_b128 v92, v[88:91]
        ds_write_b64 v93, v[68:69] offset:1024
        s_waitcnt vmcnt(4)
        v_cmp_eq_u32 vcc, 0, v{T}
        s_cmp_eq_u64 vcc, 0
        s_cselect_b32 s56, 1, 0
        s_mov_b32 s58, 1
        s_mov_b32 s35, s49
        s_add_u32 s67, s42, {32*QKV_BLK}
        s_cmp_ge_u32 s51, {nsteps-1}
        s_cselect_b32 s56, 0, s56
        s_cselect_b32 s58, 0, s58
        {'s_mov_b32 s56, 1' if cfg.get('noK') else ''}
        s_cmp_eq_u32 s56, 0
        s_cselect_b32 s58, s58, 2
        s_waitcnt lgkmcnt(0)
        """)
        tp(3)
        a("s_barrier")
        tp(4)
        stamp(1)
        ow=[x for x in range(4) if x!=w]
        a(f"s_xor_b32 s34, s49, {L_KX}\nv_add_u32 v92, s34, v{L16}\nv_lshrrev_b32 v93, 1, v{L16}\nv_add_u32 v93, s34, v93")
        for j,x in enumerate(ow):
            a(f"ds_read_b128 v[{28+6*j}:{31+6*j}], v92 offset:{x*2048}\nds_read_b64 v[{32+6*j}:{33+6*j}], v93 offset:{x*2048+1024}")
        def wo(o,reg): wo_read(o,reg)
        kd=kx_dma_list(w)
        if cfg.get('noK'): kd=["s_nop 0","s_nop 0"]
        a(f"s_cmp_eq_u32 s58, 2\ns_cbranch_scc0 {L}_nk")
        a(kd[0]); a(kd[1])
        a(f"s_waitcnt vmcnt(4)\ns_branch {L}_nk2\n{L}_nk:\ns_waitcnt vmcnt(2)\n{L}_nk2:")
        a(f"ds_read_b128 v[52:55], v{VXR}\nds_read_b128 v[56:59], v{VXR} offset:256")
        wo(0,60)
        a(f"""
        s_waitcnt lgkmcnt(8)
        v_pk_add_f32 v[88:89], v[88:89], v[28:29]
        v_pk_add_f32 v[90:91], v[90:91], v[30:31]
        v_pk_add_f32 v[68:69], v[68:69], v[32:33]
        s_waitcnt lgkmcnt(6)
        v_pk_add_f32 v[34:35], v[34:35], v[40:41]
        """.replace("s_waitcnt lgkmcnt(6)","s_waitcnt lgkmcnt(4)"))
        a(f"""
        v_pk_add_f32 v[36:37], v[36:37], v[42:43]
        v_pk_add_f32 v[38:39], v[38:39], v[44:45]
        v_pk_add_f32 v[88:89], v[88:89], v[34:35]
        v_pk_add_f32 v[90:91], v[90:91], v[36:37]
        v_pk_add_f32 v[68:69], v[68:69], v[38:39]
        v_max3_f32 v{T}, v88, v89, v90
        v_max3_f32 v{T}, v{T}, v91, v68
        v_max_f32 v{T}, v{T}, v69
        """)
        wo(1,28)
        a(f"""
        v_max_f32_dpp v{T}, v{T}, v{T} row_ror:8 row_mask:0xf bank_mask:0xf
        v_mov_b32 v{T+1}, v{T}
        """)
        wo(2,36)
        a(f"""
        v_permlane32_swap_b32 v{T}, v{T+1}
        v_max_f32 v{T}, v{T}, v{T+1}
        v_mov_b32 v{T+1}, v{T}
        """)
        wo(3,44)
        a(f"""
        v_permlane16_swap_b32 v{T}, v{T+1}
        v_max_f32 v{T}, v{T}, v{T+1}
        v_mul_f32 v{T}, s52, v{T}
        v_pk_add_f32 v[{AV}:{AV+1}], v[{AV}:{AV+1}], v[{AV+2}:{AV+3}]
        v_mov_b32 v{T+1}, v{T}
        v_pk_add_f32 v[{AV+4}:{AV+5}], v[{AV+4}:{AV+5}], v[{AV+6}:{AV+7}]
        v_pk_fma_f32 v[88:89], v[88:89], s[38:39], v[{T}:{T+1}] neg_lo:[0,0,1] neg_hi:[0,0,1]
        v_pk_fma_f32 v[90:91], v[90:91], s[38:39], v[{T}:{T+1}] neg_lo:[0,0,1] neg_hi:[0,0,1]
        v_pk_fma_f32 v[68:69], v[68:69], s[38:39], v[{T}:{T+1}] neg_lo:[0,0,1] neg_hi:[0,0,1]
        v_exp_f32 v88, v88
        v_exp_f32 v89, v89
        v_exp_f32 v90, v90
        v_exp_f32 v91, v91
        v_exp_f32 v68, v68
        v_exp_f32 v69, v69
        v_cvt_pk_bf16_f32 v{VM0}, v{AV}, v{AV+1}
        v_cvt_pk_bf16_f32 v{VM1}, v{AV+4}, v{AV+5}
        v_cvt_pk_bf16_f32 v84, v88, v89
        v_cvt_pk_bf16_f32 v85, v90, v91
        v_cvt_pk_bf16_f32 v{PM}, v68, v69
        v_mov_b32_dpp v86, v84 row_ror:8 row_mask:0xf bank_mask:0xf
        v_mov_b32_dpp v87, v85 row_ror:8 row_mask:0xf bank_mask:0xf
        s_waitcnt lgkmcnt(8)
        v_mfma_f32_16x16x32_bf16 v[76:79], v[{ONES}:{ONES+3}], v[84:87], 0
        v_mfma_f32_16x16x32_bf16 v[88:91], v[52:55], v[84:87], 0
        v_mfma_f32_16x16x32_bf16 v[92:95], v[56:59], v[84:87], 0
        v_mfma_f32_16x16x16_bf16 v[76:79], v[{ONES}:{ONES+1}], v[{PM}:{PM+1}], v[76:79]
        v_mfma_f32_16x16x16_bf16 v[88:91], v[{VM0}:{VM0+1}], v[{PM}:{PM+1}], v[88:91]
        v_mfma_f32_16x16x16_bf16 v[92:95], v[{VM1}:{VM1+1}], v[{PM}:{PM+1}], v[92:95]
        """)
        tp(5)
        wo(4,68); wo(5,52)
        a(f"""
        v_rcp_f32 v{T}, v76
        s_nop 0
        v_mov_b32 v{T+1}, v{T}
        v_pk_mul_f32 v[88:89], v[88:89], v[{T}:{T+1}]
        v_pk_mul_f32 v[90:91], v[90:91], v[{T}:{T+1}]
        v_pk_mul_f32 v[92:93], v[92:93], v[{T}:{T+1}]
        v_pk_mul_f32 v[94:95], v[94:95], v[{T}:{T+1}]
        v_cvt_pk_bf16_f32 v80, v88, v89
        v_cvt_pk_bf16_f32 v81, v90, v91
        v_cvt_pk_bf16_f32 v82, v92, v93
        v_cvt_pk_bf16_f32 v83, v94, v95
        s_mov_b64 exec, s[40:41]
        ds_write_b128 v{OIW}, v[80:83]
        s_mov_b64 exec, -1
        """)
        wo(6,84)
        a("s_waitcnt lgkmcnt(2)\ns_barrier")
        tp(6)
        stamp(3)
        a(f"ds_read_b128 v[76:79], v{OIR}\nds_read_b128 v[80:83], v{OIR} offset:1024")
        opreg={0:60,1:28,2:36,3:44,4:68,5:52,6:84}
        a("s_waitcnt lgkmcnt(0)")
        nxt=7; inflight=[]
        def acc(tile): return OACC[tile>>2]+4*(tile&3)
        def epil(qd):
            A=OACC[qd]; e=[]
            for t in range(4):
                e+= [f"v_add_f32 v{A+4*t}, v{A+4*t}, v{A+4*t+2}", f"v_add_f32 v{A+4*t+1}, v{A+4*t+1}, v{A+4*t+3}"]
            e+=[f"v_cvt_pk_bf16_f32 v{A+t}, v{A+4*t}, v{A+4*t+1}" for t in range(4)]
            e+=[f"v_permlane32_swap_b32 v{A}, v{A+2}",f"v_permlane32_swap_b32 v{A+1}, v{A+3}",
                f"v_permlane16_swap_b32 v{A}, v{A+1}",f"v_permlane16_swap_b32 v{A+2}, v{A+3}",
                f"v_bfi_b32 v{A}, 1, s57, v{A}"]
            so='s48' if qd==0 else 's32'
            e.append(f"buffer_store_dwordx4 v[{A}:{A+3}], v{GPART}, s[8:11], {so} offen {st}")
            return e
        epi=[]
        a(f"s_add_u32 s32, s48, {4*8192}")
        for o in range(16):
            tile=o>>1; kk=o&1
            if o in inflight:
                k=inflight.index(o)
                a(f"s_waitcnt lgkmcnt({2*(len(inflight)-1-k)})")
                inflight=inflight[k+1:]
            r=opreg[o]
            a(f"v_smfmac_f32_16x16x64_bf16 v[{acc(tile)}:{acc(tile)+3}], v[{76+4*kk}:{79+4*kk}], v[{r}:{r+7}], v{IDX}")
            if nxt<16:
                wo_read(nxt,r); opreg[nxt]=r; inflight.append(nxt); nxt+=1
            if o==7: epi=epil(0)
            if o>=9 and epi:
                a(epi.pop(0))
                if o>=9 and nxt>=16 and epi and o>=12: a(epi.pop(0))
        while epi: a(epi.pop(0))
        for x in epil(1): a(x)
        tp(7)
        stamp(4)
        a("s_add_u32 s51, s51, 1")
        def slow_kx():
            a(f"""
            s_cmp_lg_u32 s58, 1
            s_cbranch_scc1 {L}_sk_n
            s_add_u32 s53, s53, 1024
            """)
            wait_p(L+'_sk')
            a(f"s_sub_u32 s53, s53, 1024\ns_mov_b32 s35, s49")
            for x in kx_dma_list(w): a(x)
            a.label(L+'_sk_n')
        def bookkeeping():
            a(f"""
            s_mov_b32 s37, s45
            s_mov_b32 s45, s46
            s_mov_b32 s46, s47
            s_mov_b32 s47, s37
            s_add_u32 s42, s42, {32*QKV_BLK}
            s_add_u32 s43, s43, {32*4096}
            s_add_u32 s53, s53, 1024
            s_add_u32 s54, s54, 512
            s_xor_b32 s49, s49, {L_KX}
            v_xor_b32 v{AMEM}, {L_KX}, v{AMEM}
            v_xor_b32 v{KXR}, {L_KX}, v{KXR}
            """)
        if w==0:
            a(f"""
            s_add_u32 s32, s48, s50
            s_add_u32 s33, s32, 4096
            s_mov_b32 s55, 0
            v_mov_b32 v100, s57
            v_and_b32 v96, 15, v0
            v_lshrrev_b32 v97, 1, v96
            v_and_b32 v103, 7, v96
            v_and_b32 v96, 1, v96
            v_lshlrev_b32 v96, 4, v96
            v_mov_b32 v98, 0x3f80
            v_lshlrev_b32 v98, v96, v98
            v_cmp_eq_u32 vcc, 0, v97
            v_cmp_eq_u32 s[56:57], 1, v97
            v_cmp_eq_u32 s[62:63], 2, v97
            v_cmp_eq_u32 s[64:65], 3, v97
            v_lshrrev_b32 v96, 4, v0
            v_lshlrev_b32 v{GPUB}, 5, v103
            v_lshl_add_u32 v{GPUB}, v96, 3, v{GPUB}
            s_lshl_b32 s34, s5, 8
            v_add_u32 v{GPUB}, s34, v{GPUB}
            v_cndmask_b32 v104, 0, v98, vcc
            v_cndmask_b32 v105, 0, v98, s[56:57]
            v_cndmask_b32 v106, 0, v98, s[62:63]
            v_cndmask_b32 v107, 0, v98, s[64:65]
            """)
            kmvm_prep(0)
            for r in range(AQ,AQ+24,2): a(f"v_mov_b64 v[{r}:{r+1}], 0")
            for r in range(108,128,2): a(f"v_mov_b64 v[{r}:{r+1}], 0")
            if cfg.get('sleepR',0): a(f"s_sleep {cfg['sleepR']}")
            tp(8)
            RA=28
            a.label(L+'_rloop')
            for j in range(8): a(f"buffer_load_dwordx4 v[{RA+4*j}:{RA+4*j+3}], v{L16}, s[8:11], {'s32' if j<4 else 's33'} offen offset:{(j&3)*1024} sc1")
            for j in range(8):
                a(f"s_waitcnt vmcnt({7-j})")
                c_='0' if j==0 else 'v[96:99]'
                a(f"v_mfma_f32_16x16x32_bf16 v[96:99], v[{RA+4*j}:{RA+4*j+3}], v[104:107], {c_}")
                if j==0: a(f"v_xor_b32 v101, v{RA}, v100")
                else: a(f"v_bitop3_b32 v101, v{RA+4*j}, v100, v101 bitop3:0xbe")
            a(f"""
            v_and_b32 v101, 1, v101
            v_cmp_ne_u32 vcc, 0, v101
            s_cbranch_vccz {L}_redok
            s_add_u32 s55, s55, 1
            s_cmp_gt_u32 s55, {SPIN}
            s_cbranch_scc1 {lab}_fail
            s_branch {L}_rloop
{L}_redok:
            """)
            tp(9)
            a(f"""
            s_nop 2
            v_cvt_pk_bf16_f32 v100, v96, v97
            v_cvt_pk_bf16_f32 v101, v98, v99
            s_mov_b64 exec, s[40:41]
            v_min_u32 v100, 0xfffffffe, v100
            v_min_u32 v101, 0xfffffffe, v101
            buffer_store_dwordx2 v[100:101], v{GPUB}, s[8:11], s46 offen {st}
            s_barrier
            v_mov_b32 v100, -1
            v_mov_b32 v101, -1
            buffer_store_dwordx2 v[100:101], v{GPUB}, s[8:11], s45 offen {st}
            s_mov_b64 exec, -1
            """)
            if stamps: a("s_add_u32 s84, s84, s55")
            stamp(5)
            a(f"s_cmp_ge_u32 s51, {nsteps}\ns_cbranch_scc1 {L}_done")
            slow_kx()
        else:
            kmvm_prep(w)
            a(f"s_cmp_ge_u32 s51, {nsteps}\ns_cbranch_scc1 {L}_last")
            slow_kx()
        bookkeeping()
        if w==0:
            for r in range(96,108,2): a(f"v_mov_b64 v[{r}:{r+1}], 0")
        else: zero_accs()
        a(f"""
        s_add_u32 s33, s45, {own[0]*1024}
        s_add_u32 s34, s49, {own[0]*1024}
        v_add_u32 v26, s34, v{L16}
        s_mov_b32 s55, 0
        s_waitcnt lgkmcnt(0)
        """)
        if w!=0:
            a("s_waitcnt vmcnt(2)\ns_barrier")
            sl=cfg.get('sleepA',3)
            if sl: a(f"s_sleep {sl}")
        else:
            sl=cfg.get('sleepA0',1)
            if sl: a(f"s_sleep {sl}")
        tp(10)
        R=MEMA+4*own[0]
        a.label(L+'_aloop')
        for j in range(2): a(f"buffer_load_dwordx4 v[{R+4*j}:{R+4*j+3}], v{AOFF}, s[8:11], s33 offen offset:{j*1024} sc1")
        a(f"""
        s_waitcnt vmcnt(1)
        v_max3_u32 v84, v{R}, v{R+1}, v{R+2}
        v_max_u32 v85, v{R+3}, v{R+3}
        s_waitcnt vmcnt(0)
        v_max3_u32 v84, v84, v{R+4}, v{R+5}
        v_max3_u32 v85, v85, v{R+6}, v{R+7}
        v_max_u32 v84, v84, v85
        v_cmp_eq_u32 vcc, -1, v84
        s_cbranch_vccz {L}_okA
        s_add_u32 s55, s55, 1
        s_cmp_gt_u32 s55, {SPIN}
        s_cbranch_scc1 {lab}_fail
        s_branch {L}_aloop
{L}_okA:
        ds_write_b128 v26, v[{R}:{R+3}]
        ds_write_b128 v26, v[{R+4}:{R+7}] offset:1024
        """)
        tp(11)
        if w==3:
            roles.flagval(a,85)
            a(f"""
            v_lshlrev_b32 v84, 2, v0
            s_sub_u32 s32, s54, 1024+12
            s_cmp_eq_u32 s51, 1
            s_cselect_b32 s32, {WS_FLAG+FL_DUMMY}, s32
            s_mov_b64 exec, 15
            buffer_store_dword v85, v84, s[8:11], s32 offen sc1
            s_mov_b64 exec, -1
            """)
        if stamps: a("s_add_u32 s85, s85, s55")
        stamp(6)
        a(f"s_branch {L}_go")
        if w!=0:
            a(f"{L}_last:\ns_waitcnt vmcnt(2)\ns_barrier")
            if w==3:
                roles.flagval(a,85)
                a(f"""
                v_lshlrev_b32 v84, 2, v0
                s_sub_u32 s32, s54, 512+12
                s_mov_b64 exec, 15
                buffer_store_dword v85, v84, s[8:11], s32 offen sc1
                s_mov_b64 exec, -1
                """)
        a.label(L+'_done')
        a("s_waitcnt lgkmcnt(0)")
        for x in kmvm_issue(): a(x)
        a("s_waitcnt vmcnt(0)")
        roles.flagval(a,85)
        a(f"""
        v_mov_b32 v84, 0
        s_mov_b64 exec, 1
        buffer_store_dword v85, v84, s[8:11], s54 offen sc1
        s_mov_b64 exec, -1
        s_branch {lab}_done
        """)
    for w in range(4): body(w)
    a(f"""
{lab}_fail:
    s_waitcnt vmcnt(0)
    s_mov_b32 s59, 1
{lab}_done:
    s_waitcnt vmcnt(0)
    """)
    return lab
```

```python
import sys
from asmlib import Asm
from common import *
import chain7 as chain, roles, roles2, roles3
KN='interleave_layers__sliding_block__memory_aug_recurrent_mem_tr__prompt_kernel'
INIT='init_ws_kernel'
ALL={'CH','P','O','AH','AWO','F','ATT'}
def desc(K,nv=512,ns=102):
    return f'''
.amdhsa_kernel {K}
  .amdhsa_next_free_vgpr {nv}
  .amdhsa_next_free_sgpr {ns}
  .amdhsa_accum_offset {min(256,(nv+3)//4*4)}
  .amdhsa_group_segment_fixed_size 0
  .amdhsa_kernarg_size 104
  .amdhsa_user_sgpr_count 2
  .amdhsa_user_sgpr_kernarg_segment_ptr 1
  .amdhsa_system_sgpr_workgroup_id_x 1
.end_amdhsa_kernel
'''
def gen_init():
    a=Asm()
    a.label(INIT)
    nflag=FL_END
    a(f"""
    s_cmp_ge_u32 s2, 256
    s_cbranch_scc1 LI_end
    s_load_dwordx2 s[8:9], s[0:1], 96
    s_waitcnt lgkmcnt(0)
    s_mov_b32 s10, 0x10000000
    s_mov_b32 s11, 0x20000
    s_lshl_b32 s3, s2, 8
    v_add_u32 v1, s3, v0
    v_lshlrev_b32 v1, 4, v1                  ; 0 .. 1MB
    v_mov_b32 v4, 0
    v_mov_b32 v5, 0
    v_mov_b32 v6, 0
    v_mov_b32 v7, 0
    v_mov_b32 v8, -1
    v_mov_b32 v9, -1
    v_mov_b32 v10, -1
    v_mov_b32 v11, -1
    s_mov_b32 s12, {WS_FLAG}
    v_cmp_gt_u32 vcc, {nflag}, v1
    s_and_saveexec_b64 s[14:15], vcc
    s_cbranch_execz LI_a
    buffer_store_dwordx4 v[4:7], v1, s[8:11], s12 offen
LI_a:
    s_mov_b64 exec, s[14:15]
    s_mov_b32 s12, {WS_INB}
    buffer_store_dwordx4 v[8:11], v1, s[8:11], s12 offen
    s_mov_b32 s12, {WS_INB+0x100000}
    buffer_store_dwordx4 v[8:11], v1, s[8:11], s12 offen
    s_mov_b32 s12, {WS_MEM}
    v_cmp_gt_u32 vcc, 0x10000, v1
    s_and_saveexec_b64 s[14:15], vcc
    s_cbranch_execz LI_b
    buffer_store_dwordx4 v[8:11], v1, s[8:11], s12 offen
LI_b:
    s_mov_b64 exec, s[14:15]
LI_end:
    s_endpgm
    """)
    out,_,errs=a.finish()
    for e in errs.values(): print('LINT',e,file=sys.stderr)
    return out
def gen(cfg):
    if cfg.get('pf',False) and 'sizes' not in cfg:
        c1=dict(cfg); c1['sizes']={}; c1['sizing']=True
        gen2(c1)
        cfg=dict(cfg); cfg['sizes']=c1['sizes']
    return gen2(cfg)
def gen2(cfg):
    en=cfg.get('roles',ALL)
    roles.TS=cfg.get('ts',False)
    roles.TSP=cfg.get('tsp',False)
    a=Asm(); K=KN
    a.label(K)
    selfinit=''
    if not cfg.get('init',False):
        selfinit=f'''s_mul_i32 s24, s2, 1280
    s_add_u32 s24, s24, {WS_FLAG}
    v_lshlrev_b32 v2, 4, v0
    s_lshl_b32 s25, s6, 10
    v_add_u32 v2, s25, v2
    v_mov_b32 v4, 0
    v_mov_b32 v5, 0
    v_mov_b32 v6, 0
    v_mov_b32 v7, 0
    v_cmp_gt_u32 vcc, 1280, v2
    s_and_saveexec_b64 s[26:27], vcc
    s_cbranch_execz L_si0
    buffer_store_dwordx4 v[4:7], v2, s[8:11], s24 offen sc1
L_si0:
    s_mov_b64 exec, s[26:27]
    s_waitcnt vmcnt(0)
    s_barrier
    s_cmp_lg_u32 s6, 0
    s_cbranch_scc1 L_si1
    v_mov_b32 v3, 1
    v_mov_b32 v4, 32
    s_mov_b64 exec, 1
    buffer_atomic_add v3, v4, s[12:15], 0 offen
    s_mov_b64 exec, -1
L_si1:'''
    clk0=''
    if cfg.get('clk'):
        clk0='''s_memtime s[100:101]
    s_memrealtime s[98:99]
    s_waitcnt lgkmcnt(0)
    s_lshl_b32 s24, s2, 5
    s_add_u32 s24, s24, 0xCB00000
    v_mov_b32 v2, s100
    v_mov_b32 v3, s98
    v_mov_b32 v4, s3
    v_mov_b32 v5, s5
    v_mov_b32 v6, 0
    s_mov_b64 exec, 1
    buffer_store_dwordx4 v[2:5], v6, s[8:11], s24 offen
    s_mov_b64 exec, -1'''
    tss=''
    if cfg.get('ts'):
        tss='''s_memrealtime s[98:99]
    s_waitcnt lgkmcnt(0)
    v_mov_b32 v3, s98
    s_lshl_b32 s24, s3, 2
    s_add_u32 s24, s24, 160
    v_mov_b32 v4, s24
    s_mov_b64 exec, 1
    buffer_store_dword v3, v4, s[12:15], 0 offen
    s_mov_b64 exec, -1'''
    a(f"""
    s_cmp_ge_u32 s2, 256
    s_cbranch_scc1 L_end
    s_load_dwordx2 s[8:9], s[0:1], 96        ; ws
    s_load_dwordx2 s[12:13], s[0:1], 88      ; dbg
    s_getreg_b32 s3, hwreg(HW_REG_XCC_ID, 0, 4)
    v_lshrrev_b32 v1, 6, v0
    s_nop 0
    v_readfirstlane_b32 s6, v1
    v_and_b32 v0, 63, v0                     ; lane
    s_waitcnt lgkmcnt(0)
    s_mov_b32 s10, 0x10000000
    s_mov_b32 s11, 0x20000
    s_mov_b32 s14, 256
    s_mov_b32 s15, 0x20000
    s_cmp_lg_u32 s6, 0
    s_cbranch_scc1 L_claimed
    v_mov_b32 v3, 1
    s_lshl_b32 s24, s3, 2
    v_mov_b32 v4, s24
    s_mov_b64 exec, 1
    buffer_atomic_add v3, v4, s[12:15], 0 offen sc0
    s_waitcnt vmcnt(0)
    v_mov_b32 v5, 0
    ds_write_b32 v5, v3
    s_waitcnt lgkmcnt(0)
    s_mov_b64 exec, -1
L_claimed:
    s_barrier
    v_mov_b32 v5, 0
    ds_read_b32 v3, v5
    s_waitcnt lgkmcnt(0)
    v_readfirstlane_b32 s5, v3
    s_barrier
    s_cmp_ge_u32 s5, 32
    s_cbranch_scc1 L_end
    {selfinit}
    {tss}
    {clk0}
    s_cmp_lt_u32 s3, 2
    s_cbranch_scc1 L_CH
    s_cmp_lt_u32 s3, 4
    s_cbranch_scc1 L_P
    s_cmp_eq_u32 s3, 4
    s_cbranch_scc1 L_ATT
    s_cmp_eq_u32 s3, 5
    s_cbranch_scc1 L_O
    s_cmp_eq_u32 s3, 6
    s_cbranch_scc1 L_AH
    s_cmp_lt_u32 s5, 8
    s_cbranch_scc1 L_AWO
    s_cmp_lt_u32 s5, 28
    s_cbranch_scc1 L_F
    s_branch L_end
L_fail:
    s_load_dwordx2 s[12:13], s[0:1], 88
    s_waitcnt lgkmcnt(0)
    s_mov_b32 s14, 256
    s_mov_b32 s15, 0x20000
    s_lshl_b32 s24, s3, 2
    s_add_u32 s24, s24, 128
    v_mov_b32 v4, s24
    s_add_u32 s25, s5, 1
    v_mov_b32 v3, s25
    s_mov_b64 exec, 1
    buffer_store_dword v3, v4, s[12:15], 0 offen
L_end:
    s_endpgm
    """)
    fail='L_fail'
    def init_wait(a_,name,cnt_off=32,target=256,sb=92):
        if cfg.get('init',False): return
        a_(f'''
        s_load_dwordx2 s[{sb}:{sb+1}], s[0:1], 88
        s_waitcnt lgkmcnt(0)
        s_mov_b32 s{sb+2}, 256
        s_mov_b32 s{sb+3}, 0x20000
        s_mov_b32 s{sb+4}, 0
{name}_iw:
        v_mov_b32 v9, {cnt_off}
        buffer_load_dword v9, v9, s[{sb}:{sb+3}], 0 offen sc1
        s_waitcnt vmcnt(0)
        v_readfirstlane_b32 s{sb+5}, v9
        s_cmp_ge_u32 s{sb+5}, {target}
        s_cbranch_scc1 {name}_iwd
        s_add_u32 s{sb+4}, s{sb+4}, 1
        s_cmp_gt_u32 s{sb+4}, {cfg.get('spin',roles.SPIN_DEFAULT)}
        s_cbranch_scc1 L_fail
        s_sleep 2
        s_branch {name}_iw
{name}_iwd:
        ''')
    cfg=dict(cfg); cfg['init_wait']=init_wait
    marks={}
    def begin(name):
        marks[name]=len(a.lines)
        if cfg.get('pf',False) and not cfg.get('sizing'):
            roles.prefetch_code(a,'LB_'+name,'LE_'+name,cfg['sizes'].get(name,4096)+4096)
        a.label('LB_'+name)
        marks[name]=len(a.lines)
    def end(name):
        a.label('LE_'+name)
        if cfg.get('sizing'): cfg['sizes'][name]=(len(a.lines)-marks[name])*7
    END='s_branch L_fin' if cfg.get('clk') else 's_endpgm'
    a.label('L_F')
    if 'F' in en:
        a("""
        s_sub_u32 s5, s5, 8
        s_lshr_b32 s7, s5, 2
        s_and_b32 s5, s5, 3
        s_mov_b32 s4, 0
        s_cmp_eq_u32 s7, 0
        s_cbranch_scc1 L_F0
        s_cmp_eq_u32 s7, 2
        s_cbranch_scc1 L_F2
        s_cmp_eq_u32 s7, 4
        s_cbranch_scc1 L_F3
        s_lshr_b32 s4, s7, 1
        """)
        begin('FT1'); roles3.emit_F(a,cfg,'T1',fail); end('FT1'); a("s_endpgm")
        a.label('L_F0'); begin('FT0'); roles3.emit_F(a,cfg,'T0',fail); end('FT0'); a("s_endpgm")
        a.label('L_F2'); begin('FT2'); roles3.emit_F(a,cfg,'T2',fail); end('FT2'); a("s_endpgm")
        a.label('L_F3'); begin('FT3'); roles3.emit_F(a,cfg,'T3',fail); end('FT3')
    a(END)
    a.label('L_AWO')
    if 'AWO' in en:
        a("s_lshr_b32 s4, s5, 2\ns_and_b32 s5, s5, 3")
        begin('AWO'); roles3.emit_AWO(a,cfg,fail); end('AWO')
    a(END)
    a.label('L_ATT')
    if 'ATT' in en:
        begin('ATT'); roles3.emit_ATT(a,cfg,fail); end('ATT')
    a(END)
    a.label('L_AH')
    if 'AH' in en: begin('AH'); roles2.emit_AH(a,cfg,fail); end('AH')
    a(END)
    def gate(name):
        if not cfg.get('gate',True): return
        a(f"s_cmp_eq_u32 s4, 0\ns_cbranch_scc1 {name}_ng0")
        init_wait(a,name+'gi')
        a.label(name+'_ng0')
        a(f"s_cmp_eq_u32 s4, 0\ns_cbranch_scc1 {name}_ng\ns_mov_b32 s12, {WS_FLAG+FL_XN+cfg.get('gate_t',1)*64*128+cfg.get('gate_s',0)*128}")
        roles.wait_flags(a,name+'g',16,'s12',fail,cfg.get('spin',roles.SPIN_DEFAULT),vtmp=(8,9),sleep=8)
        a.label(name+'_ng')
    a.label('L_O')
    if 'O' in en:
        a("s_lshr_b32 s4, s5, 4\ns_and_b32 s5, s5, 15")
        gate('L_O')
        begin('O'); roles3.emit_O5(a,cfg,fail); end('O')
    a(END)
    a.label('L_P')
    if 'P' in en:
        a("s_sub_u32 s4, s3, 2")
        gate('L_P')
        begin('P'); roles3.emit_P(a,cfg,fail); end('P')
    a(END)
    a.label('L_CH')
    if 'CH' in en:
        a("s_mov_b32 s4, s3")
        gate('L_CH')
        c=dict(FL_P=FL_P,FL_CH=FL_CH); c.update(cfg)
        begin('CH'); chain.emit_chain(a,c,fail); end('CH')
        if cfg.get('stamps') or cfg.get('tot'):
            a("""
            s_load_dwordx2 s[12:13], s[0:1], 96
            s_waitcnt lgkmcnt(0)
            s_mov_b32 s14, 0x10000000
            s_mov_b32 s15, 0x20000
            s_memtime s[70:71]
            s_waitcnt lgkmcnt(0)
            s_sub_u32 s75, s70, s74
            s_lshl_b32 s32, s4, 5
            s_add_u32 s32, s32, s5
            s_lshl_b32 s32, s32, 2
            s_add_u32 s32, s32, s6
            s_lshl_b32 s32, s32, 6
            s_add_u32 s32, s32, 0xC800000
            v_mov_b32 v32, s32
            """)
            for k in range(10): a(f"v_mov_b32 v{36+k}, s{76+k}")
            a("""
            v_mov_b32 v45, s88
            v_mov_b32 v46, s75
            v_mov_b32 v47, s59
            s_mov_b64 exec, 1
            buffer_store_dwordx4 v[36:39], v32, s[12:15], 0 offen
            buffer_store_dwordx4 v[40:43], v32, s[12:15], 0 offen offset:16
            buffer_store_dwordx4 v[44:47], v32, s[12:15], 0 offen offset:32
            s_mov_b64 exec, -1
            """)
        a("""
        s_cmp_eq_u32 s59, 0
        s_cbranch_scc1 L_CHend
        s_branch L_fail
L_CHend:
        """)
    a(END)
    if cfg.get('clk'):
        a('''
L_fin:
    s_cmp_lg_u32 s6, 0
    s_cbranch_scc1 L_fin2
    s_memtime s[100:101]
    s_memrealtime s[98:99]
    s_waitcnt lgkmcnt(0)
    s_lshl_b32 s24, s2, 5
    s_add_u32 s24, s24, 0xCB00010
    v_mov_b32 v2, s100
    v_mov_b32 v3, s98
    v_mov_b32 v5, 0
    s_mov_b64 exec, 1
    buffer_store_dwordx2 v[2:3], v5, s[8:11], s24 offen
L_fin2:
    s_endpgm
''')
    out,total,errs=a.finish()
    for e in list(errs.values())[:10]: print('LINT',e,file=sys.stderr)
    print('nops inserted',total,'instrs',len(out),file=sys.stderr)
    withinit=cfg.get('init',False)
    if withinit:
        hdr=f"""; @launch kernel={INIT} grid=(256,1,1) block=(256,1,1) lds=0
; @launch kernel={K} grid=(256,1,1) block=(256,1,1) lds=163840
"""
    else:
        hdr=f"; @launch grid=(256,1,1) block=(256,1,1) lds=163840\n"
    txt=hdr+f""".amdgcn_target "amdgcn-amd-amdhsa--gfx950"
.text
.globl {K}
.p2align 8
.type {K},@function
"""+'\n'.join(out)+'\n'
    if withinit:
        txt+=f""".globl {INIT}
.p2align 8
.type {INIT},@function
"""+'\n'.join(gen_init())+'\n'
    txt+='.section .rodata,"a"\n.p2align 6\n'+desc(K)
    if withinit: txt+='.p2align 6\n'+desc(INIT,16,32)
    return txt
if __name__=='__main__':
    s=gen(dict())
    open('m.s','w').write(s)
    print(len(s),'bytes')
    import subprocess
    r=subprocess.run(['clang','-x','assembler','-target','amdgcn-amd-amdhsa','-mcpu=gfx950','-c','m.s','-o','m.o'],capture_output=True,text=True); print(r.stderr)
```

```python
from common import *
import roles
from roles import wait_flags, set_flag, flagval, tr_addr32, pack_tile, causal_masks, SPIN_DEFAULT

def poll_issue(a, n, soff, va, vb):
    a(f"""
    v_mbcnt_lo_u32_b32 v{va}, -1, 0
    v_mbcnt_hi_u32_b32 v{va}, -1, v{va}
    v_min_u32 v{va}, {n-1}, v{va}
    v_lshlrev_b32 v{va}, 2, v{va}
    buffer_load_dword v{vb}, v{va}, s[8:11], {soff} offen sc1
    """)

def emit_F(a, cfg, typ, fail):
    spin=cfg.get('spin',SPIN_DEFAULT)
    lab=a.new('F'+typ)
    npart={'T0':0,'T1':1,'T2':2,'T3':2}[typ]
    nfl={'T0':0,'T1':8,'T2':64,'T3':64}[typ]
    flstep={'T0':0,'T1':128,'T2':256,'T3':256}[typ]
    a(f"""
    v_and_b32 v1, 15, v0
    v_bfe_u32 v2, v0, 4, 1
    v_lshrrev_b32 v3, 5, v0
    v_lshlrev_b32 v4, 4, v1
    v_lshl_add_u32 v4, v2, 9, v4
    v_lshl_add_u32 v4, v3, 10, v4
    s_lshl_b32 s12, s6, 13
    s_lshl_b32 s13, s5, 8
    s_add_u32 s12, s12, s13
    v_add_u32 v4, s12, v4
    s_lshl_b32 s13, s5, 4
    v_add_u32 v5, s13, v1
    v_lshlrev_b32 v5, 10, v5
    v_lshl_add_u32 v5, v3, 5, v5
    v_lshl_add_u32 v5, v2, 4, v5
    s_lshl_b32 s13, s6, 8
    v_add_u32 v5, s13, v5
    v_lshlrev_b32 v6, 3, v1
    s_lshl_b32 s13, s6, 7
    v_add_u32 v7, s13, v6
    """)
    if typ=='T0':
        a(f"""
        s_load_dwordx2 s[16:17], s[0:1], 0
        s_waitcnt lgkmcnt(0)
        s_mov_b32 s18, {2048*1024}
        s_mov_b32 s19, 0x20000
        s_mov_b32 s20, 0
        s_mov_b32 s22, {xs(T_X0,0)}
        s_mov_b32 s23, {xs(T_XNA1,0)}
        s_mov_b32 s24, {WS_FLAG+FL_XN+0*64*128}
        """)
    elif typ=='T1':
        a(f"""
        s_mul_i32 s13, s4, {6*64*32768}
        s_add_u32 s20, s13, {xs(T_X0,0)}
        s_add_u32 s21, s13, {xs(T_YA1,0)}
        s_add_u32 s22, s13, {xs(T_X1,0)}
        s_add_u32 s23, s13, {xs(T_XNB1,0)}
        s_lshl_b32 s13, s4, 14
        s_add_u32 s24, s13, {WS_FLAG+FL_XN+1*64*128}
        s_lshl_b32 s13, s4, 13
        s_add_u32 s25, s13, {WS_FLAG+FL_YA}
        """)
    elif typ=='T2':
        a(f"""
        s_mov_b32 s20, {xs(T_X1,0)}
        s_mov_b32 s21, {WS_PO}
        s_mov_b32 s22, {xs(T_X2,0)}
        s_mov_b32 s23, {xs(T_XNA2,0)}
        s_mov_b32 s24, {WS_FLAG+FL_XN+2*64*128}
        s_mov_b32 s25, {WS_FLAG+FL_PO}
        """)
    else:
        a(f"""
        s_load_dwordx2 s[16:17], s[0:1], 80
        s_waitcnt lgkmcnt(0)
        s_mov_b32 s18, {2048*1024}
        s_mov_b32 s19, 0x20000
        s_mov_b32 s20, {xs(T_X3,0)}
        s_mov_b32 s21, {WS_PO+64*131072}
        s_mov_b32 s22, 0
        s_mov_b32 s25, {WS_FLAG+FL_PO+64*256}
        """)
    a(f"""
    s_lshl_b32 s13, s5, 4
    s_lshl_b32 s14, s6, 2
    s_add_u32 s13, s13, s14
    {'s_add_u32 s24, s24, s13' if typ!='T3' else ''}
    s_mov_b32 s26, 0
    v_mov_b32 v8, 0x3f803f80
    s_mov_b32 s27, 0xffff0000
    s_mov_b32 s30, 0
    s_mov_b32 s31, 0
    """)
    SETS=[(16,32,48),(192,208,224)]
    W=64
    NL={'T0':4,'T1':8,'T2':12,'T3':12}[typ]
    NS={'T0':8,'T1':8,'T2':8,'T3':4}[typ]
    def loads(st):
        X,P0,P1=SETS[st]
        if typ=='T0':
            for j in range(4): a(f"buffer_load_dwordx4 v[{X+4*j}:{X+4*j+3}], v5, s[16:19], s20 offen offset:{64*j}")
            a("s_add_u32 s20, s20, 32768")
        else:
            a("s_add_u32 s13, s20, 4096\ns_add_u32 s14, s21, 4096")
            if npart==2: a("s_add_u32 s28, s21, 32768\ns_add_u32 s29, s28, 4096")
            for j in range(4):
                so=lambda b,b2: (b if j<2 else b2)
                a(f"buffer_load_dwordx4 v[{P0+4*j}:{P0+4*j+3}], v4, s[8:11], {so('s21','s14')} offen offset:{2048*(j&1)} sc1")
                if npart==2: a(f"buffer_load_dwordx4 v[{P1+4*j}:{P1+4*j+3}], v4, s[8:11], {so('s28','s29')} offen offset:{2048*(j&1)} sc1")
                a(f"buffer_load_dwordx4 v[{X+4*j}:{X+4*j+3}], v4, s[8:11], {so('s20','s13')} offen offset:{2048*(j&1)} sc1")
            a(f"s_add_u32 s20, s20, 32768\ns_add_u32 s21, s21, {32768 if typ=='T1' else 131072}\ns_add_u32 s25, s25, {flstep}")
    def flag_prev():
        if typ=='T3': return
        set_flag(a,'s24')
        a("s_add_u32 s24, s24, 128")
    if nfl: wait_flags(a,lab+'w0',nfl,'s25',fail,spin)
    loads(0)
    def iteration(st):
        X,P0,P1=SETS[st]; L=f"{lab}_i{st}"
        a.label(L)
        if nfl: poll_issue(a,nfl,'s25',10,9)
        np_=1 if nfl else 0
        a(f"""
        s_cmp_eq_u32 s31, 0
        s_cbranch_scc1 {L}_w1
        s_waitcnt vmcnt({NS+np_})
        s_branch {L}_w2
{L}_w1:
        s_waitcnt vmcnt({np_})
{L}_w2:
        """)
        if typ=='T0':
            for j in range(4):
                a(f"v_permlane16_swap_b32 v{X+4*j}, v{X+4*j+2}\nv_permlane16_swap_b32 v{X+4*j+1}, v{X+4*j+3}")
        else:
            for r in range(16):
                w0=W+2*r
                if npart==2:
                    a(f"""
                    v_lshlrev_b32 v{w0}, 16, v{P0+r}
                    v_and_b32 v{w0+1}, s27, v{P0+r}
                    v_lshlrev_b32 v12, 16, v{P1+r}
                    v_and_b32 v13, s27, v{P1+r}
                    v_pk_add_f32 v[{w0}:{w0+1}], v[{w0}:{w0+1}], v[12:13]
                    v_cvt_pk_bf16_f32 v{P0+r}, v{w0}, v{w0+1}
                    """)
                a(f"""
                v_lshlrev_b32 v{w0}, 16, v{P0+r}
                v_and_b32 v{w0+1}, s27, v{P0+r}
                v_lshlrev_b32 v12, 16, v{X+r}
                v_and_b32 v13, s27, v{X+r}
                v_pk_add_f32 v[{w0}:{w0+1}], v[{w0}:{w0+1}], v[12:13]
                v_cvt_pk_bf16_f32 v{X+r}, v{w0}, v{w0+1}
                """)
        a(f"""
        s_waitcnt vmcnt(0)
        s_cmp_eq_u32 s30, 0
        s_cbranch_scc1 {L}_nf
        """)
        flag_prev()
        a(f"""
        s_mov_b32 s30, 0
{L}_nf:
        s_mov_b32 s31, 0
        s_cmp_ge_u32 s26, 63
        s_cbranch_scc1 {L}_np
        """)
        if nfl:
            a(f"v_cmp_eq_u32 vcc, 0, v9\ns_cbranch_vccnz {L}_np")
        a("s_mov_b32 s31, 1")
        loads(1-st)
        a.label(L+'_np')
        if typ=='T3':
            for j in range(4):
                a(f"v_permlane16_swap_b32 v{X+4*j}, v{X+4*j+2}\nv_permlane16_swap_b32 v{X+4*j+1}, v{X+4*j+3}")
            for j in range(4): a(f"buffer_store_dwordx4 v[{X+4*j}:{X+4*j+3}], v5, s[16:19], s22 offen offset:{64*j}")
            a("s_add_u32 s22, s22, 32768")
        else:
            a("s_add_u32 s13, s22, 4096")
            for j in range(4):
                a(f"buffer_store_dwordx4 v[{X+4*j}:{X+4*j+3}], v4, s[8:11], {'s22' if j<2 else 's13'} offen offset:{2048*(j&1)} sc1")
            a("v_mov_b32 v12, 0\nv_mov_b32 v13, 0\nv_mov_b32 v14, 0\nv_mov_b32 v15, 0")
            for r in range(0,16,2):
                a(f"v_dot2_f32_bf16 v12, v{X+r}, v8, v12\nv_dot2_f32_bf16 v13, v{X+r}, v{X+r}, v13\nv_dot2_f32_bf16 v14, v{X+r+1}, v8, v14\nv_dot2_f32_bf16 v15, v{X+r+1}, v{X+r+1}, v15")
            a(f"""
            v_pk_add_f32 v[12:13], v[12:13], v[14:15]
            v_mov_b32 v10, v12
            v_mov_b32 v11, v13
            v_permlane16_swap_b32 v12, v10
            v_permlane16_swap_b32 v13, v11
            v_pk_add_f32 v[12:13], v[12:13], v[10:11]
            v_mov_b32 v10, v12
            v_mov_b32 v11, v13
            v_permlane32_swap_b32 v12, v10
            v_permlane32_swap_b32 v13, v11
            v_pk_add_f32 v[12:13], v[12:13], v[10:11]
            s_mov_b64 exec, 0xffff
            ds_write_b64 v7, v[12:13] offset:{512*st}
            s_mov_b64 exec, -1
            s_waitcnt lgkmcnt(0)
            s_barrier
            ds_read_b64 v[10:11], v6 offset:{512*st}
            ds_read_b64 v[12:13], v6 offset:{512*st+128}
            ds_read_b64 v[14:15], v6 offset:{512*st+256}
            ds_read_b64 v[{W}:{W+1}], v6 offset:{512*st+384}
            s_waitcnt lgkmcnt(0)
            v_pk_add_f32 v[10:11], v[10:11], v[12:13]
            v_pk_add_f32 v[14:15], v[14:15], v[{W}:{W+1}]
            v_pk_add_f32 v[10:11], v[10:11], v[14:15]
            v_mul_f32 v10, 0x3b000000, v10
            v_mul_f32 v11, 0x3b000000, v11
            v_fma_f32 v11, -v10, v10, v11
            v_max_f32 v11, 0, v11
            v_cvt_pk_bf16_f32 v14, v10, v11
            v_lshlrev_b32 v12, 16, v14
            v_and_b32 v11, s27, v14
            v_add_f32 v11, 0x3727c5ac, v11
            v_cvt_pk_bf16_f32 v11, v11, v11
            v_and_b32 v11, s27, v11
            v_sqrt_f32 v11, v11
            v_mov_b32 v13, v12
            v_cvt_pk_bf16_f32 v11, v11, v11
            v_and_b32 v11, s27, v11
            v_rcp_f32 v14, v11
            s_nop 0
            v_mov_b32 v15, v14
            """)
            for r in range(16):
                w0=W+2*r
                a(f"""
                v_lshlrev_b32 v{w0}, 16, v{X+r}
                v_and_b32 v{w0+1}, s27, v{X+r}
                v_pk_add_f32 v[{w0}:{w0+1}], v[{w0}:{w0+1}], v[12:13] neg_lo:[0,1] neg_hi:[0,1]
                v_cvt_pk_bf16_f32 v{P0+r}, v{w0}, v{w0+1}
                v_lshlrev_b32 v{w0}, 16, v{P0+r}
                v_and_b32 v{w0+1}, s27, v{P0+r}
                v_pk_mul_f32 v[{w0}:{w0+1}], v[{w0}:{w0+1}], v[14:15]
                v_cvt_pk_bf16_f32 v{P0+r}, v{w0}, v{w0+1}
                """)
            a("s_add_u32 s13, s23, 4096")
            for j in range(4):
                a(f"buffer_store_dwordx4 v[{P0+4*j}:{P0+4*j+3}], v4, s[8:11], {'s23' if j<2 else 's13'} offen offset:{2048*(j&1)} sc1")
            a("s_add_u32 s22, s22, 32768\ns_add_u32 s23, s23, 32768")
        a(f"""
        s_mov_b32 s30, 1
        s_add_u32 s26, s26, 1
        s_cmp_eq_u32 s31, 1
        s_cbranch_scc1 {lab}_i{1-st}
        s_waitcnt vmcnt(0)
        """)
        flag_prev()
        a(f"""
        s_mov_b32 s30, 0
        s_cmp_ge_u32 s26, 64
        s_cbranch_scc1 {lab}_done
        """)
        if nfl: wait_flags(a,L+'ws',nfl,'s25',fail,spin)
        loads(1-st)
        if st==1: a(f"s_branch {lab}_i0")
    iteration(0); iteration(1)
    a.label(lab+'_done')

def emit_AWO(a, cfg, fail):
    spin=cfg.get('spin',SPIN_DEFAULT)
    lab=a.new('AWO')
    a("""
    s_load_dwordx2 s[12:13], s[0:1], 16      ; A_wo
    s_waitcnt lgkmcnt(0)
    s_mov_b32 s14, 524288
    s_mov_b32 s15, 0x20000
    v_lshrrev_b32 v61, 5, v0
    v_and_b32 v60, 31, v0
    s_lshl_b32 s32, s5, 9
    """)
    for var in range(2):
        a(f"""
        v_add_u32 v62, {2*var}, v61
        v_lshlrev_b32 v62, 2, v62
        v_xor_b32 v62, v60, v62
        v_lshlrev_b32 v62, 4, v62
        v_lshl_add_u32 v62, v61, 10, v62
        v_add_u32 v{40+var}, s32, v62
        """)
    a("s_lshl_b32 s32, s6, 3")
    tr_addr32(a,44,'s32',512,lambda r,o: a(f"v_lshlrev_b32 v{o}, 2, v{r}"),0)
    a("v_xor_b32 v45, 64, v44\nv_add_u32 v46, 0x10000, v44\nv_add_u32 v47, 0x10000, v45")
    def wreg(T,ks,p):
        b=(T*32+ks)*4+2*p; return f"a[{b}:{b+1}]"
    for rnd in range(2):
        a(f"s_lshl_b32 s33, s6, 16\ns_add_u32 s33, s33, {rnd*256*1024}\ns_lshl_b32 s34, s6, 15")
        for n in range(32):
            a(f"s_add_u32 m0, s34, {2*n*512}\ns_add_u32 s35, s33, {2*n*1024}\nbuffer_load_dwordx4 v{40+(n&1)}, s[12:15], s35 offen lds")
        a("s_waitcnt vmcnt(0)\ns_barrier")
        for ksl in range(16):
            ks=16*rnd+ksl
            for T in range(2):
                for p in range(2):
                    off=(ksl&7)*16*512+p*8*512
                    a(f"ds_read_b64_tr_b16 {wreg(T,ks,p)}, v{44+T+(2 if ksl>=8 else 0)} offset:{off}")
            if ksl%2==1: a("s_waitcnt lgkmcnt(4)")
        a("s_waitcnt lgkmcnt(0)\ns_barrier")
    a(f"""
    v_lshlrev_b32 v1, 4, v0
    s_lshl_b32 s32, s6, 13
    v_add_u32 v2, s32, v1
    s_lshl_b32 s32, s5, 14
    s_lshl_b32 s33, s6, 12
    s_add_u32 s32, s32, s33
    v_add_u32 v3, s32, v1
    s_mul_i32 s32, s4, {6*64*32768}
    s_add_u32 s43, s32, {xs(T_OA1,0)}
    s_add_u32 s44, s32, {xs(T_YA1,0)}
    s_lshl_b32 s32, s4, 13
    s_add_u32 s45, s32, {WS_FLAG+FL_OA}
    s_lshl_b32 s33, s5, 4
    s_lshl_b32 s34, s6, 2
    s_add_u32 s33, s33, s34
    s_add_u32 s46, s32, {WS_FLAG+FL_YA}
    s_add_u32 s46, s46, s33
    s_mov_b32 s40, 0
    s_mov_b32 s42, 0
    s_mov_b32 s47, 0
    """)
    def dma(bufreg):
        out=[]
        for n in range(8):
            out.append(f"s_lshl_b32 s32, s6, 13\ns_add_u32 s32, s32, {bufreg}\ns_add_u32 m0, s32, {(n>>2)*4096}\ns_add_u32 s33, s43, {(n>>2)*4096}\nbuffer_load_dwordx4 v2, s[8:11], s33 offen offset:{(n&3)*1024} sc1 lds")
        return out
    wait_flags(a,lab+'w0',32,'s45',fail,spin)
    for d in dma('s42'): a(d)
    a("s_add_u32 s43, s43, 32768\ns_add_u32 s45, s45, 128\ns_waitcnt vmcnt(0)\ns_barrier")
    a.label(lab+'_unit')
    a("v_add_u32 v5, s42, v1\ns_xor_b32 s50, s42, 32768")
    poll_issue(a,32,'s45',10,9)
    XR=64; NR=8; AHEAD=6
    def rd(i): a(f"ds_read_b128 v[{XR+4*(i%NR)}:{XR+4*(i%NR)+3}], v5 offset:{i*1024}")
    for i in range(AHEAD): rd(i)
    dl=dma('s50')
    for ks in range(32):
        r=XR+4*(ks%NR)
        a(f"s_waitcnt lgkmcnt({min(AHEAD-1,31-ks)})")
        for T in range(2):
            acc=32+16*T; c='0' if ks==0 else f"v[{acc}:{acc+15}]"
            b=(T*32+ks)*4
            a(f"v_mfma_f32_32x32x16_bf16 v[{acc}:{acc+15}], a[{b}:{b+3}], v[{r}:{r+3}], {c}")
        if ks+AHEAD<32: rd(ks+AHEAD)
        if ks==12:
            a(f"""
            s_waitcnt vmcnt(0)
            s_cmp_eq_u32 s47, 0
            s_cbranch_scc1 {lab}_nf
            """)
            set_flag(a,'s46',vtmp=(11,12))
            a(f"""
            s_add_u32 s46, s46, 128
            s_mov_b32 s47, 0
{lab}_nf:
            s_mov_b32 s48, 0
            s_cmp_ge_u32 s40, 63
            s_cselect_b32 s49, 1, 0
            v_cmp_eq_u32 vcc, 0, v9
            s_cmp_eq_u64 vcc, 0
            s_cselect_b32 s48, 1, 0
            s_cmp_eq_u32 s49, 1
            s_cselect_b32 s48, 0, s48
            """)
        if 13<=ks<21:
            L=a.new(lab+'d')
            a(f"s_cmp_eq_u32 s48, 0\ns_cbranch_scc1 {L}")
            a(dl[ks-13])
            a.label(L)
    for T in range(2): pack_tile(a,32+16*T,96+8*T)
    for f in range(4):
        a(f"buffer_store_dwordx4 v[{96+4*f}:{99+4*f}], v3, s[8:11], s44 offen offset:{f*1024} sc1")
    a(f"""
    s_add_u32 s44, s44, 32768
    s_add_u32 s40, s40, 1
    s_mov_b32 s47, 1
    s_mov_b32 s42, s50
    s_cmp_eq_u32 s48, 0
    s_cbranch_scc1 {lab}_slow
    s_add_u32 s43, s43, 32768
    s_add_u32 s45, s45, 128
    s_waitcnt vmcnt(4)
    s_barrier
    s_branch {lab}_unit
{lab}_slow:
    s_waitcnt vmcnt(0)
    """)
    set_flag(a,'s46',vtmp=(11,12))
    a(f"""
    s_add_u32 s46, s46, 128
    s_mov_b32 s47, 0
    s_cmp_ge_u32 s40, 64
    s_cbranch_scc1 {lab}_done
    """)
    wait_flags(a,lab+'ws',32,'s45',fail,spin)
    for d in dma('s42'): a(d)
    a(f"""
    s_add_u32 s43, s43, 32768
    s_add_u32 s45, s45, 128
    s_waitcnt vmcnt(0)
    s_barrier
    s_branch {lab}_unit
{lab}_done:
    """)

def emit_O(a, cfg, fail):
    spin=cfg.get('spin',SPIN_DEFAULT)
    lab=a.new('O')
    a(f"""
    s_load_dwordx2 s[12:13], s[0:1], 64
    s_waitcnt lgkmcnt(0)
    s_mov_b32 s14, 4194304
    s_mov_b32 s15, 0x20000
    s_lshr_b32 s40, s5, 3                    ; kh
    s_and_b32 s41, s5, 7                     ; nq
    v_lshrrev_b32 v61, 3, v0
    v_and_b32 v60, 7, v0
    v_bfe_u32 v62, v61, 1, 1
    v_lshlrev_b32 v62, 2, v62
    v_xor_b32 v62, v60, v62
    v_lshlrev_b32 v62, 4, v62
    v_lshl_add_u32 v62, v61, 10, v62
    s_lshl_b32 s32, s41, 7
    v_add_u32 v40, s32, v62
    s_mov_b32 s32, 0
    """)
    def swz(r,o): a(f"v_lshrrev_b32 v{o}, 1, v{r}\nv_lshlrev_b32 v{o}, 2, v{o}")
    tr_addr32(a,44,'s32',128,swz,0)
    a("s_lshl_b32 s34, s6, 15\nv_add_u32 v44, s34, v44\nv_xor_b32 v45, 64, v44")
    for rnd in range(2):
        a(f"s_lshl_b32 s33, s40, 21\ns_lshl_b32 s35, s6, 19\ns_add_u32 s33, s33, s35\ns_add_u32 s33, s33, {rnd*256*1024}")
        for n in range(32):
            a(f"s_add_u32 m0, s34, {8*n*128}\ns_add_u32 s35, s33, {8*n*1024}\nbuffer_load_dwordx4 v40, s[12:15], s35 offen lds")
        a("s_waitcnt vmcnt(0)")
        for ksl in range(16):
            ks=16*rnd+ksl
            for T in range(2):
                for p in range(2):
                    b=(T*32+ks)*4+2*p
                    a(f"ds_read_b64_tr_b16 a[{b}:{b+1}], v{44+T} offset:{ksl*2048+p*1024}")
            if ksl%2==1: a("s_waitcnt lgkmcnt(4)")
        a("s_waitcnt lgkmcnt(0)")
    a(f"""
    s_barrier
    v_lshlrev_b32 v1, 4, v0
    s_lshl_b32 s32, s4, 24
    s_lshl_b32 s33, s40, 17
    s_lshl_b32 s34, s6, 15
    s_add_u32 s43, s32, s33
    s_add_u32 s43, s43, s34
    s_add_u32 s43, s43, {WS_OB}
    s_lshl_b32 s32, s4, 23
    s_lshl_b32 s33, s40, 15
    s_lshl_b32 s34, s41, 12
    s_add_u32 s44, s32, s33
    s_add_u32 s44, s44, s34
    s_lshl_b32 s34, s6, 10
    s_add_u32 s44, s44, s34
    s_add_u32 s44, s44, {WS_PO}
    s_lshl_b32 s32, s4, 13
    s_lshl_b32 s33, s40, 6
    s_lshl_b32 s34, s6, 4
    s_add_u32 s45, s32, s33
    s_add_u32 s45, s45, s34
    s_add_u32 s45, s45, {WS_FLAG+FL_OB}
    s_lshl_b32 s32, s4, 14
    s_lshl_b32 s33, s5, 4
    s_lshl_b32 s34, s6, 2
    s_add_u32 s46, s32, s33
    s_add_u32 s46, s46, s34
    s_add_u32 s46, s46, {WS_FLAG+FL_PO}
    s_lshl_b32 s32, s6, 13
    v_add_u32 v2, s32, v1
    s_lshl_b32 s32, s6, 11
    v_add_u32 v3, s32, v1
    s_mov_b32 s47, 0                          ; unit
    s_mov_b32 s48, 0
    s_mov_b32 s51, 0
    """)
    XB=64
    def ld(ks):
        return f"s_add_u32 s32, s43, {(ks>>2)*4096}\nbuffer_load_dwordx4 v[{XB+4*ks}:{XB+4*ks+3}], v1, s[8:11], s32 offen offset:{(ks&3)*1024} sc1"
    wait_flags(a,lab+'w0',4,'s45',fail,spin)
    for ks in range(32): a(ld(ks))
    a("s_add_u32 s43, s43, 262144\ns_add_u32 s45, s45, 128\ns_mov_b32 s49, 0")
    a.label(lab+'_unit')
    poll_issue(a,4,'s45',10,9)
    a(f"""
    s_cmp_eq_u32 s49, 0
    s_cbranch_scc1 {lab}_a0
    s_waitcnt vmcnt(33)
    s_branch {lab}_a1
{lab}_a0:
    s_waitcnt vmcnt(32)
{lab}_a1:
    """)
    def mf(ks):
        for T in range(2):
            acc=32+16*T; c='0' if ks==0 else f"v[{acc}:{acc+15}]"; b=(T*32+ks)*4
            a(f"v_mfma_f32_32x32x16_bf16 v[{acc}:{acc+15}], a[{b}:{b+3}], v[{XB+4*ks}:{XB+4*ks+3}], {c}")
    H=8
    for ks in range(H):
        L=a.new(lab+'h')
        a(f"s_cmp_eq_u32 s49, 0\ns_cbranch_scc1 {L}_0\ns_waitcnt vmcnt({33-ks})\ns_branch {L}_1\n{L}_0:\ns_waitcnt vmcnt({32-ks})\n{L}_1:")
        mf(ks)
    a(f"""
    s_waitcnt vmcnt(0)
    s_cmp_eq_u32 s48, 0
    s_cbranch_scc1 {lab}_nf
    """)
    set_flag(a,'s46',vtmp=(11,12))
    a(f"""
    s_add_u32 s46, s46, 256
    s_mov_b32 s48, 0
{lab}_nf:
    s_cmp_ge_u32 s47, 63
    s_cbranch_scc1 {lab}_nostream
    v_cmp_eq_u32 vcc, 0, v9
    s_cbranch_vccnz {lab}_nostream
    s_mov_b32 s49, 1
    """)
    for ks in range(H): a(ld(ks))
    for ks in range(H,32):
        mf(ks); a(ld(ks))
    a(f"""
    s_add_u32 s43, s43, 262144
    s_add_u32 s45, s45, 128
    s_branch {lab}_red
{lab}_nostream:
    s_mov_b32 s49, 0
    """)
    for ks in range(H,32): mf(ks)
    a.label(lab+'_red')
    a("v_add_u32 v4, s51, v2\nv_add_u32 v5, s51, v3")
    for q in range(8): a(f"ds_write_b128 v4, v[{32+4*q}:{35+4*q}] offset:{q*1024}")
    a("s_waitcnt lgkmcnt(0)\ns_barrier")
    R=192
    for w in range(4):
        for q in range(2): a(f"ds_read_b128 v[{R+8*w+4*q}:{R+3+8*w+4*q}], v5 offset:{w*8192+q*1024}")
    a("s_xor_b32 s51, s51, 32768\ns_waitcnt lgkmcnt(0)")
    for r in range(0,8,2):
        a(f"v_pk_add_f32 v[{R+r}:{R+1+r}], v[{R+r}:{R+1+r}], v[{R+8+r}:{R+9+r}]\nv_pk_add_f32 v[{R+16+r}:{R+17+r}], v[{R+16+r}:{R+17+r}], v[{R+24+r}:{R+25+r}]")
    for r in range(0,8,2):
        a(f"v_pk_add_f32 v[{R+r}:{R+1+r}], v[{R+r}:{R+1+r}], v[{R+16+r}:{R+17+r}]")
    for i in range(4): a(f"v_cvt_pk_bf16_f32 v{12+i}, v{R+2*i}, v{R+1+2*i}")
    a(f"""
    buffer_store_dwordx4 v[12:15], v1, s[8:11], s44 offen sc1
    s_add_u32 s44, s44, 131072
    s_add_u32 s47, s47, 1
    s_mov_b32 s48, 1
    s_cmp_eq_u32 s49, 1
    s_cbranch_scc1 {lab}_unit
    s_waitcnt vmcnt(0)
    """)
    set_flag(a,'s46',vtmp=(10,11))
    a(f"""
    s_add_u32 s46, s46, 256
    s_mov_b32 s48, 0
    s_cmp_ge_u32 s47, 64
    s_cbranch_scc1 {lab}_done
    """)
    wait_flags(a,lab+'ws',4,'s45',fail,spin)
    for ks in range(32): a(ld(ks))
    a(f"""
    s_add_u32 s43, s43, 262144
    s_add_u32 s45, s45, 128
    s_branch {lab}_unit
{lab}_done:
    """)

def emit_ATT(a, cfg, fail):
    spin=cfg.get('spin',SPIN_DEFAULT)
    lab=a.new('ATT')
    a(f"""
    s_lshl_b32 s40, s5, 2
    s_add_u32 s40, s40, s6                   ; head
    s_lshl_b32 s32, s4, 11
    s_add_u32 s32, s32, s40                  ; (l*64)*32 + h
    s_mul_i32 s43, s32, {QKV_BLK}
    s_lshl_b32 s44, s32, 12
    s_add_u32 s44, s44, {WS_KM}
    s_lshl_b32 s45, s32, 4
    s_add_u32 s45, s45, {WS_FLAG+FL_CH}
    s_lshl_b32 s49, s32, 5
    s_add_u32 s49, s49, {WS_FLAG+FL_P}
    s_lshl_b32 s33, s4, 13
    s_lshl_b32 s34, s40, 2
    s_add_u32 s46, s33, s34
    s_add_u32 s46, s46, {WS_FLAG+FL_OB}
    s_lshl_b32 s33, s4, 24
    s_lshl_b32 s34, s40, 13
    s_add_u32 s47, s33, s34
    s_add_u32 s47, s47, {WS_OB}
    s_lshl_b32 s42, s6, 12
    v_lshlrev_b32 v1, 4, v0
    v_lshrrev_b32 v60, 5, v0
    v_and_b32 v61, 7, v0
    v_lshlrev_b32 v2, 4, v61
    v_lshl_add_u32 v2, v60, 7, v2
    v_add_u32 v2, s42, v2
    v_and_b32 v61, 31, v0
    v_lshlrev_b32 v3, 4, v61
    v_lshl_add_u32 v3, v60, 3, v3
    v_add_u32 v3, s42, v3
    v_mov_b32 v7, 0xff7fffff
    v_mov_b32 v12, 0x3f803f80
    v_mov_b32 v13, 0x3f803f80
    v_mov_b32 v14, 0x3f803f80
    v_mov_b32 v15, 0x3f803f80
    s_mov_b32 s48, 0x3e0293ee
    s_mov_b32 s50, 0x3e0293ee
    s_mov_b32 s51, 0x3e0293ee
    s_mov_b32 s41, 0                          ; unit
    s_mov_b32 s52, 0
    """)
    causal_masks(a,64)
    def qkv_loads(st):
        B=96*st; out=[]
        for blk,reg in ((1,B+32),(0,B),(2,B+64)):
            for g in range(2):
                for j in range(4):
                    r=reg+4*(4*g+j)
                    pre=f"s_add_u32 s32, s43, {blk*8192+g*4096}\n" if j==0 else ""
                    out.append(pre+f"buffer_load_dwordx4 a[{r}:{r+3}], v1, s[8:11], s32 offen offset:{j*1024} sc1")
        return out
    def adv_fetch(): a(f"s_add_u32 s43, s43, {32*QKV_BLK}\ns_add_u32 s49, s49, 1024")
    wait_flags(a,lab+'w0',8,'s49',fail,spin)
    for x in qkv_loads(0): a(x)
    adv_fetch()
    def polls():
        poll_issue(a,4,'s45',10,30)
        poll_issue(a,8,'s49',11,31)
    polls()
    def iteration(st):
        L=f"{lab}_i{st}"; B=96*st; Q=B; K=B+32; V=B+64
        KM=160; VM=192
        a.label(L)
        a(f"""
        s_cmp_eq_u32 s52, 0
        s_cbranch_scc1 {L}_w0
        s_waitcnt vmcnt(8)
        s_branch {L}_w1
{L}_w0:
        s_waitcnt vmcnt(0)
{L}_w1:
        s_mov_b32 s53, 0
        s_cmp_ge_u32 s41, 63
        s_cbranch_scc1 {L}_p0
        v_cmp_eq_u32 vcc, 0, v31
        s_cbranch_vccnz {L}_p0
        s_mov_b32 s53, 1
{L}_p0:
        v_cmp_eq_u32 vcc, 0, v30
        s_cbranch_vccz {L}_chok
        s_waitcnt vmcnt(0)
        s_cmp_eq_u32 s52, 0
        s_cbranch_scc1 {L}_nf0
        """)
        set_flag(a,'s46',vtmp=(10,11))
        a(f"s_add_u32 s46, s46, 128\ns_mov_b32 s52, 0\n{L}_nf0:")
        wait_flags(a,L+'wc',4,'s45',fail,spin)
        a(f"s_cmp_eq_u32 s53, 1\ns_cbranch_scc1 {L}_chok\ns_cmp_ge_u32 s41, 63\ns_cbranch_scc1 {L}_chok")
        poll_issue(a,8,'s49',11,31)
        a(f"s_waitcnt vmcnt(0)\nv_cmp_eq_u32 vcc, 0, v31\ns_cbranch_vccnz {L}_chok\ns_mov_b32 s53, 1")
        a.label(L+'_chok')
        a("s_mov_b32 m0, s42")
        for j in range(4): a(f"buffer_load_dwordx4 v1, s[8:11], s44 offen offset:{j*1024} sc1 lds")
        nl=qkv_loads(1-st)
        for variant in (1,0):
            VL=f"{L}_v{variant}"
            if variant==1: a(f"s_cmp_eq_u32 s53, 0\ns_cbranch_scc1 {L}_v0")
            else: a.label(VL)
            q=list(nl) if variant else []
            issued=[0]
            def side(n=1):
                for _ in range(n):
                    if q: a(q.pop(0)); issued[0]+=1
            for ks in range(8):
                c0='0' if ks==0 else 'v[32:47]'
                a(f"v_mfma_f32_32x32x16_bf16 v[32:47], a[{K+4*ks}:{K+4*ks+3}], a[{Q+4*ks}:{Q+4*ks+3}], {c0}")
                if ks%2==1: side()
            for r in range(16): a(f"v_cndmask_b32 v{32+r}, v7, v{32+r}, s[{64+2*r}:{65+2*r}]")
            a("""
            v_max3_f32 v24, v32, v33, v34
            v_max3_f32 v25, v35, v36, v37
            v_max3_f32 v24, v24, v38, v39
            v_max3_f32 v25, v25, v40, v41
            v_max3_f32 v24, v24, v42, v43
            v_max3_f32 v25, v25, v44, v45
            v_max3_f32 v24, v24, v46, v47
            """)
            a(f"s_waitcnt vmcnt({issued[0]})")
            for ks in range(8): a(f"ds_read_b128 v[{KM+4*ks}:{KM+4*ks+3}], v2 offset:{ks*256}")
            for W_ in range(4):
                a(f"ds_read_b64 v[{VM+4*W_}:{VM+4*W_+1}], v3 offset:{2048+W_*512}\nv_mov_b32 v{VM+4*W_+2}, 0\nv_mov_b32 v{VM+4*W_+3}, 0")
            a(f"s_cmp_eq_u32 s52, 0\ns_cbranch_scc1 {VL}_nf")
            set_flag(a,'s46',vtmp=(10,11))
            a(f"s_add_u32 s46, s46, 128\ns_mov_b32 s52, 0\n{VL}_nf:")
            for ks in range(8):
                a(f"s_waitcnt lgkmcnt({11-ks})")
                c1='0' if ks==0 else 'v[48:63]'
                a(f"v_mfma_f32_32x32x16_bf16 v[48:63], v[{KM+4*ks}:{KM+4*ks+3}], a[{Q+4*ks}:{Q+4*ks+3}], {c1}")
                if ks%2==1: side()
            a("""
            v_max3_f32 v25, v25, v48, v49
            v_max3_f32 v24, v24, v50, v51
            v_max_f32 v24, v24, v25
            v_mov_b32 v25, v24
            v_permlane32_swap_b32 v24, v25
            v_max_f32 v24, v24, v25
            v_mul_f32 v24, s48, v24
            v_mov_b32 v25, v24
            """)
            for r in range(0,20,2):
                a(f"v_pk_fma_f32 v[{32+r}:{33+r}], v[{32+r}:{33+r}], s[50:51], v[24:25] neg_lo:[0,0,1] neg_hi:[0,0,1]")
            for r in range(20):
                a(f"v_exp_f32 v{32+r}, v{32+r}")
                if r%5==4: side()
            for i in range(8): a(f"v_cvt_pk_bf16_f32 v{16+i}, v{32+2*i}, v{33+2*i}")
            a("""
            v_cvt_pk_bf16_f32 v8, v48, v49
            v_cvt_pk_bf16_f32 v9, v50, v51
            v_mov_b32 v10, 0
            v_mov_b32 v11, 0
            s_waitcnt lgkmcnt(0)
            v_mfma_f32_32x32x16_bf16 v[32:47], v[12:15], v[16:19], 0
            v_mfma_f32_32x32x16_bf16 v[32:47], v[12:15], v[20:23], v[32:47]
            v_mfma_f32_32x32x16_bf16 v[32:47], v[12:15], v[8:11], v[32:47]
            """)
            OT=[64,80,96,112]
            for W_ in range(4):
                o=OT[W_]
                a(f"v_mfma_f32_32x32x16_bf16 v[{o}:{o+15}], a[{V+8*W_}:{V+8*W_+3}], v[16:19], 0")
                side()
                a(f"v_mfma_f32_32x32x16_bf16 v[{o}:{o+15}], a[{V+8*W_+4}:{V+8*W_+7}], v[20:23], v[{o}:{o+15}]")
                side()
                a(f"v_mfma_f32_32x32x16_bf16 v[{o}:{o+15}], v[{VM+4*W_}:{VM+4*W_+3}], v[8:11], v[{o}:{o+15}]")
                side()
            side(24)
            if variant==1:
                adv_fetch()
                a(f"s_branch {L}_fin")
        a.label(L+'_fin')
        a(f"""
        s_add_u32 s44, s44, {32*4096}
        s_add_u32 s45, s45, 512
        """)
        a("v_rcp_f32 v24, v32\ns_nop 0\nv_mov_b32 v25, v24")
        PK=128
        for W_ in range(4):
            o=OT[W_]
            for r in range(0,16,2): a(f"v_pk_mul_f32 v[{o+r}:{o+r+1}], v[{o+r}:{o+r+1}], v[24:25]")
            for i in range(8): a(f"v_cvt_pk_bf16_f32 v{PK+8*W_+i}, v{o+2*i}, v{o+2*i+1}")
            if W_==0: polls()
        for W_ in range(4):
            if W_==2: a("s_add_u32 s32, s47, 4096")
            for f in range(2):
                fi=2*W_+f
                a(f"buffer_store_dwordx4 v[{PK+4*fi}:{PK+4*fi+3}], v1, s[8:11], {'s47' if fi<4 else 's32'} offen offset:{(fi&3)*1024} sc1")
        a(f"""
        s_add_u32 s47, s47, 262144
        s_add_u32 s41, s41, 1
        s_mov_b32 s52, 1
        s_cmp_eq_u32 s53, 0
        s_cbranch_scc0 {lab}_i{1-st}
        s_waitcnt vmcnt(0)
        """)
        set_flag(a,'s46',vtmp=(10,11))
        a(f"""
        s_add_u32 s46, s46, 128
        s_mov_b32 s52, 0
        s_cmp_ge_u32 s41, 64
        s_cbranch_scc1 {lab}_done
        """)
        wait_flags(a,L+'ws',8,'s49',fail,spin)
        for x in qkv_loads(1-st): a(x)
        adv_fetch()
        polls()
        if st==1: a(f"s_branch {lab}_i0")
    iteration(0); iteration(1)
    a.label(lab+'_done')

def emit_AH(a, cfg, fail):
    spin=cfg.get('spin',SPIN_DEFAULT)
    lab=a.new('AH')
    RDY=98304+64
    a(f"""
    s_load_dwordx2 s[12:13], s[0:1], 8
    s_waitcnt lgkmcnt(0)
    s_mov_b32 s14, {512*3072}
    s_mov_b32 s15, 0x20000
    v_lshrrev_b32 v61, 3, v0
    v_and_b32 v60, 7, v0
    v_bfe_u32 v62, v61, 1, 1
    v_lshlrev_b32 v62, 2, v62
    v_xor_b32 v62, v60, v62
    v_lshrrev_b32 v63, 1, v62
    v_min_u32 v63, 2, v63
    v_and_b32 v62, 1, v62
    v_lshlrev_b32 v62, 4, v62
    v_lshl_add_u32 v62, v63, 10, v62
    v_mul_u32_u24 v63, 3072, v61
    v_add_u32 v62, v62, v63
    s_lshl_b32 s32, s5, 5
    v_add_u32 v40, s32, v62
    """)
    a(f"s_mul_i32 s33, s6, {128*3072}\ns_lshl_b32 s34, s6, 14")
    for n in range(16):
        a(f"s_add_u32 m0, s34, {8*n*128}\ns_add_u32 s35, s33, {8*n*3072}\nbuffer_load_dwordx4 v40, s[12:15], s35 offen lds")
    a("s_waitcnt vmcnt(0)\ns_barrier\ns_mov_b32 s32, 0")
    a('s_mov_b32 s95, 0'); roles.tsp(a,3,0,'s95',('s5','s6'))
    def swz(r,o): a(f"v_lshrrev_b32 v{o}, 1, v{r}\nv_lshlrev_b32 v{o}, 2, v{o}")
    tr_addr32(a,44,'s32',128,swz,0)
    a("v_xor_b32 v45, 64, v44")
    for ks in range(32):
        for p in range(2):
            off=ks*16*128+p*8*128
            a(f"ds_read_b64_tr_b16 a[{4*ks+2*p}:{4*ks+2*p+1}], v44 offset:{off}")
            a(f"ds_read_b64_tr_b16 a[{128+4*ks+2*p}:{128+4*ks+2*p+1}], v45 offset:{off}")
        if ks%2==1: a("s_waitcnt lgkmcnt(4)")
    a("s_waitcnt lgkmcnt(0)\ns_barrier")
    a(f"""
    v_mov_b32 v1, {RDY}
    v_mov_b32 v2, 0
    s_lshl_b32 s32, s6, 2
    v_add_u32 v3, s32, v1
    s_xor_b32 s33, s32, 4
    v_add_u32 v4, s33, v1
    ds_write_b32 v3, v2
    s_waitcnt lgkmcnt(0)
    s_barrier
    v_lshlrev_b32 v1, 4, v0
    s_lshr_b32 s40, s6, 1                    ; layer
    s_and_b32 s41, s6, 1                     ; unit s
    s_mul_i32 s42, s40, 49152
    s_mul_i32 s32, s40, {6*64*32768}
    s_add_u32 s43, s32, {xs(T_XNA1,0)}
    s_add_u32 s44, s32, {xs(T_OA1,0)}
    s_lshl_b32 s33, s5, 10
    s_add_u32 s44, s44, s33
    s_lshl_b32 s32, s40, 14
    s_add_u32 s45, s32, {WS_FLAG+FL_XN}
    s_lshl_b32 s32, s40, 13
    s_add_u32 s46, s32, {WS_FLAG+FL_OA}
    s_lshl_b32 s33, s5, 2
    s_add_u32 s46, s46, s33
    s_lshl_b32 s32, s41, 15
    s_add_u32 s43, s43, s32
    s_add_u32 s44, s44, s32
    s_lshl_b32 s32, s41, 7
    s_add_u32 s45, s45, s32
    s_add_u32 s46, s46, s32
    v_and_b32 v5, 31, v0
    v_cmp_le_u32 s[62:63], 16, v5
    v_mov_b32 v6, 0x3f803f80
    v_mov_b32 v7, 0xff7fffff
    s_mov_b32 s47, 0x3eb8aa3b
    s_mov_b32 s60, 0x3eb8aa3b
    s_mov_b32 s61, 0x3eb8aa3b
    s_mov_b32 s59, 0
    """)
    causal_masks(a,64)
    a('s_mov_b32 s48, 0'); roles.tsp(a,3,1,'s48',('s5','s6'))
    XB=64; SB=64
    def xld(ks):
        return f"s_add_u32 s32, s43, {(ks>>2)*4096}\nbuffer_load_dwordx4 v[{XB+4*ks}:{XB+4*ks+3}], v1, s[8:11], s32 offen offset:{(ks&3)*1024} sc1"
    cfg['init_wait'](a,lab,sb=16)
    wait_flags(a,lab+'w0',16,'s45',fail,spin)
    for ks in range(32): a(xld(ks))
    a("s_add_u32 s43, s43, 65536\ns_add_u32 s45, s45, 256")
    a.label(lab+'_loop')
    for ks in range(32):
        if ks<4:
            L=a.new(lab+'x')
            a(f"s_cmp_eq_u32 s59, 0\ns_cbranch_scc1 {L}_0\ns_waitcnt vmcnt({32-ks})\ns_branch {L}_1\n{L}_0:\ns_waitcnt vmcnt({31-ks})\n{L}_1:")
        else:
            a(f"s_waitcnt vmcnt({31-ks})")
        c0='0' if ks==0 else 'v[32:47]'; c1='0' if ks==0 else 'v[48:63]'
        a(f"v_mfma_f32_32x32x16_bf16 v[32:47], a[{4*ks}:{4*ks+3}], v[{XB+4*ks}:{XB+4*ks+3}], {c0}")
        a(f"v_mfma_f32_32x32x16_bf16 v[48:63], v[{XB+4*ks}:{XB+4*ks+3}], a[{128+4*ks}:{128+4*ks+3}], {c1}")
    roles.tsp(a,3,2,'s41',('s5','s6'))
    a(f"s_cmp_eq_u32 s59, 0\ns_cbranch_scc1 {lab}_nf")
    set_flag(a,'s46',vtmp=(24,25))
    a(f"s_add_u32 s46, s46, 256\ns_mov_b32 s59, 0\n{lab}_nf:")
    poll_issue(a,16,'s45',24,31)
    for i in range(4): a(f"v_cvt_pk_bf16_f32 v{8+i}, v{32+2*i}, v{33+2*i}")
    for i in range(4): a(f"v_cvt_pk_bf16_f32 v{12+i}, v{40+2*i}, v{41+2*i}")
    for i in range(8): a(f"v_cvt_pk_bf16_f32 v{16+i}, v{48+2*i}, v{49+2*i}")
    for i in range(8): a(f"v_cndmask_b32 v{16+i}, v{16+i}, v6, s[62:63]")
    a(f"""
    s_and_b32 s32, s41, 15
    s_mul_i32 s32, s32, 3072
    s_add_u32 s32, s32, s42
    v_add_u32 v24, s32, v1
    ds_write_b128 v24, v[12:15]
    ds_write_b128 v24, v[16:19] offset:1024
    ds_write_b128 v24, v[20:23] offset:2048
    s_add_u32 s33, s41, 1
    v_mov_b32 v25, s33
    s_waitcnt lgkmcnt(0)
    ds_write_b32 v3, v25
    s_mov_b32 s48, 0
{lab}_pw:
    ds_read_b32 v26, v4
    s_waitcnt lgkmcnt(0)
    v_readfirstlane_b32 s49, v26
    s_cmp_ge_u32 s49, s41
    s_cbranch_scc1 {lab}_pok
    s_add_u32 s48, s48, 1
    s_cmp_gt_u32 s48, {spin*8}
    s_cbranch_scc1 {fail}
    s_sleep 1
    s_branch {lab}_pw
{lab}_pok:
    """)
    for b in range(9):
        a(f"""
        s_add_u32 s32, s41, {b+8}
        s_and_b32 s32, s32, 15
        s_mul_i32 s32, s32, 3072
        s_add_u32 s{50+b}, s32, s42
        """)
    KF=208
    for b in range(8):
        a(f"s_add_u32 s32, s41, {b}\ns_cmp_lt_u32 s32, 8\ns_cselect_b32 s{50+b}, s58, s{50+b}")
    for b in range(9):
        a(f"v_add_u32 v24, s{50+b}, v1\nds_read_b128 v[{KF+4*b}:{KF+4*b+3}], v24")
    for b in range(9):
        a(f"s_waitcnt lgkmcnt({8-b})")
        a(f"v_mfma_f32_32x32x16_bf16 v[{SB+16*b}:{SB+16*b+15}], v[{KF+4*b}:{KF+4*b+3}], v[8:11], 0")
    VF=[208,216,224]
    def vrd(b):
        r=VF[b%3]
        a(f"v_add_u32 v26, s{50+b}, v1\nds_read_b128 v[{r}:{r+3}], v26 offset:1024\nds_read_b128 v[{r+4}:{r+7}], v26 offset:2048")
    a(f"s_cmp_ge_u32 s41, 8\ns_cbranch_scc1 {lab}_allv")
    for b in range(8):
        L=a.new(lab+'iv')
        a(f"s_add_u32 s32, s41, {b}\ns_cmp_ge_u32 s32, 8\ns_cbranch_scc1 {L}")
        for r in range(16): a(f"v_mov_b32 v{SB+16*b+r}, v7")
        a.label(L)
    a.label(lab+'_allv')
    vrd(0); vrd(1)
    for r in range(16): a(f"v_cndmask_b32 v{SB+128+r}, v7, v{SB+128+r}, s[{64+2*r}:{65+2*r}]")
    for r in range(16): a(f"v_cndmask_b32 v{SB+r}, v{SB+r}, v7, s[{64+2*r}:{65+2*r}]")
    a(f"v_max3_f32 v24, v{SB}, v{SB+1}, v{SB+2}\nv_max3_f32 v25, v{SB+3}, v{SB+4}, v{SB+5}")
    i=6
    while i<144:
        a(f"v_max3_f32 v24, v24, v{SB+i}, v{SB+i+1}"); i+=2
        if i<144: a(f"v_max3_f32 v25, v25, v{SB+i}, v{SB+i+1}"); i+=2
    a(f"""
    v_max_f32 v24, v24, v25
    v_mov_b32 v25, v24
    v_permlane32_swap_b32 v24, v25
    v_max_f32 v24, v24, v25
    v_mul_f32 v24, s47, v24
    v_mov_b32 v25, v24
    s_waitcnt vmcnt(0)
    s_mov_b32 s48, 0
    s_cmp_ge_u32 s41, 62
    s_cbranch_scc1 {lab}_np
    v_cmp_eq_u32 vcc, 0, v31
    s_cbranch_vccnz {lab}_np
    s_mov_b32 s48, 1
{lab}_np:
    """)
    for b in range(9):
        base=SB+16*b
        for r in range(16):
            a(f"v_fma_f32 v{base+r}, v{base+r}, s47, -v24")
        for r in range(16): a(f"v_exp_f32 v{base+r}, v{base+r}")
        P=28 if False else None
        pk=240 if b%2==0 else 248-0
        pk=[240,12][b%2]
        for i in range(8): a(f"v_cvt_pk_bf16_f32 v{pk+i}, v{base+2*i}, v{base+2*i+1}")
        r=VF[b%3]
        nread=2 if b+1<9 else 0
        a(f"s_waitcnt lgkmcnt({nread})")
        c='0' if b==0 else 'v[32:47]'
        a(f"v_mfma_f32_32x32x16_bf16 v[32:47], v[{r}:{r+3}], v[{pk}:{pk+3}], {c}")
        a(f"v_mfma_f32_32x32x16_bf16 v[32:47], v[{r+4}:{r+7}], v[{pk+4}:{pk+7}], v[32:47]")
        if b+2<9: vrd(b+2)
        if b<8:
            L=a.new(lab+'s')
            a(f"s_cmp_eq_u32 s48, 0\ns_cbranch_scc1 {L}")
            for ks in range(4*b,4*b+4): a(xld(ks))
            a.label(L)
    roles.tsp(a,3,3,'s41',('s5','s6'))
    a("v_rcp_f32 v24, v40")
    for r in range(8): a(f"v_mul_f32 v{32+r}, v{32+r}, v24")
    for i in range(4): a(f"v_cvt_pk_bf16_f32 v{8+i}, v{32+2*i}, v{33+2*i}")
    a(f"""
    buffer_store_dwordx4 v[8:11], v1, s[8:11], s44 offen sc1
    s_add_u32 s44, s44, 65536
    s_add_u32 s41, s41, 2
    s_mov_b32 s59, 1
    s_cmp_eq_u32 s48, 0
    s_cbranch_scc1 {lab}_slow
    s_add_u32 s43, s43, 65536
    s_add_u32 s45, s45, 256
    s_branch {lab}_loop
{lab}_slow:
    s_waitcnt vmcnt(0)
    """)
    set_flag(a,'s46',vtmp=(24,25))
    a(f"""
    s_add_u32 s46, s46, 256
    s_mov_b32 s59, 0
    s_cmp_ge_u32 s41, 64
    s_cbranch_scc1 {lab}_done
    """)
    wait_flags(a,lab+'ws',16,'s45',fail,spin)
    for ks in range(32): a(xld(ks))
    a(f"""
    s_add_u32 s43, s43, 65536
    s_add_u32 s45, s45, 256
    s_branch {lab}_loop
{lab}_done:
    """)
```

```python
from common import *
import roles
from roles import wait_flags, set_flag, flagval, tr_addr32, pack_tile, causal_masks, SPIN_DEFAULT
from roles2 import poll_issue
NXN=16
NYA=16

def dma_list(n, shift, bufreg):
    out=[]
    for i in range(n):
        pre=''
        if i==0: pre+=f"s_lshl_b32 s53, s6, {shift}\ns_add_u32 s53, s53, {bufreg}\n"
        if i%4==0: pre+=f"s_add_u32 m0, s53, {(i>>2)*4096}\ns_add_u32 s33, s43, {(i>>2)*4096}\n"
        out.append(pre+f"buffer_load_dwordx4 v2, s[8:11], s33 offen offset:{(i&3)*1024} sc1 lds")
    return out

def gemm_loop(a, lab, nks, mf, rd, AHEAD, chk_ks, emit_check, dl, extra=None):
    def step(ks):
        a(f"s_waitcnt lgkmcnt({min(AHEAD-1,nks-1-ks)})")
        mf(ks)
        if ks+AHEAD<nks: rd(ks+AHEAD)
        if extra: extra(ks)
    for ks in range(chk_ks+1): step(ks)
    emit_check()
    L=a.new(lab+'v')
    n=len(dl)
    a(f"s_cmp_eq_u32 s48, 0\ns_cbranch_scc1 {L}_n")
    for j in range(n):
        step(chk_ks+1+j); a(dl[j])
    a(f"s_branch {L}_e\n{L}_n:")
    for j in range(n): step(chk_ks+1+j)
    a.label(L+'_e')
    for ks in range(chk_ks+1+n,nks): step(ks)

def emit_F(a, cfg, typ, fail):
    spin=cfg.get('spin',SPIN_DEFAULT)
    lab=a.new('F'+typ)
    npart={'T0':0,'T1':1,'T2':4,'T3':4}[typ]
    nfl={'T0':0,'T1':NYA,'T2':64,'T3':64}[typ]
    flstep={'T0':0,'T1':128,'T2':256,'T3':256}[typ]
    a(f"""
    v_and_b32 v1, 7, v0
    v_bfe_u32 v2, v0, 3, 1
    v_lshrrev_b32 v3, 4, v0
    v_lshlrev_b32 v4, 4, v1
    v_lshl_add_u32 v4, v2, 9, v4
    v_lshl_add_u32 v4, v3, 10, v4
    s_lshl_b32 s12, s6, 13
    s_lshl_b32 s13, s5, 7
    s_add_u32 s12, s12, s13
    v_add_u32 v4, s12, v4
    s_lshl_b32 s13, s5, 3
    v_add_u32 v5, s13, v1
    v_lshlrev_b32 v5, 10, v5
    v_lshl_add_u32 v5, v3, 5, v5
    v_lshl_add_u32 v5, v2, 4, v5
    s_lshl_b32 s13, s6, 8
    v_add_u32 v5, s13, v5
    v_lshlrev_b32 v6, 3, v1
    s_lshl_b32 s13, s6, 6
    v_add_u32 v7, s13, v6
    """)
    if typ=='T0':
        a(f"""
        s_load_dwordx2 s[16:17], s[0:1], 0
        s_waitcnt lgkmcnt(0)
        s_mov_b32 s18, {2048*1024}
        s_mov_b32 s19, 0x20000
        s_mov_b32 s20, 0
        s_mov_b32 s22, {xs(T_X0,0)}
        s_mov_b32 s23, {xs(T_XNA1,0)}
        s_mov_b32 s24, {WS_FLAG+FL_XN+0*64*128}
        """)
    elif typ=='T1':
        a(f"""
        s_mul_i32 s13, s4, {6*64*32768}
        s_add_u32 s20, s13, {xs(T_X0,0)}
        s_add_u32 s21, s13, {xs(T_YA1,0)}
        s_add_u32 s22, s13, {xs(T_X1,0)}
        s_add_u32 s23, s13, {xs(T_XNB1,0)}
        s_lshl_b32 s13, s4, 14
        s_add_u32 s24, s13, {WS_FLAG+FL_XN+1*64*128}
        s_lshl_b32 s13, s4, 13
        s_add_u32 s25, s13, {WS_FLAG+FL_YA}
        """)
    elif typ=='T2':
        a(f"""
        s_mov_b32 s20, {xs(T_X1,0)}
        s_mov_b32 s21, {WS_PO}
        s_mov_b32 s22, {xs(T_X2,0)}
        s_mov_b32 s23, {xs(T_XNA2,0)}
        s_mov_b32 s24, {WS_FLAG+FL_XN+2*64*128}
        s_mov_b32 s25, {WS_FLAG+FL_PO}
        """)
    else:
        a(f"""
        s_load_dwordx2 s[16:17], s[0:1], 80
        s_waitcnt lgkmcnt(0)
        s_mov_b32 s18, {2048*1024}
        s_mov_b32 s19, 0x20000
        s_mov_b32 s20, {xs(T_X3,0)}
        s_mov_b32 s21, {WS_PO+64*131072}
        s_mov_b32 s22, 0
        s_mov_b32 s25, {WS_FLAG+FL_PO+64*256}
        """)
    a(f"""
    s_lshl_b32 s13, s5, 4
    s_lshl_b32 s14, s6, 2
    s_add_u32 s13, s13, s14
    {'s_add_u32 s24, s24, s13' if typ!='T3' else ''}
    s_mov_b32 s26, 0
    v_mov_b32 v8, 0x3f803f80
    s_mov_b32 s27, 0xffff0000
    s_mov_b32 s30, 0
    s_mov_b32 s31, 0
    """)
    SETS=[(16,24),(64,72)]
    W=112
    NS={'T0':4,'T1':4,'T2':4,'T3':2}[typ]
    def xchg(X):
        for j in range(2):
            b=X+4*j
            for d in range(2):
                a(f"""
                v_mov_b32 v12, v{b+d}
                s_nop 1
                v_mov_b32_dpp v{b+d}, v{b+2+d} row_shr:8 row_mask:0xf bank_mask:0xc
                v_mov_b32_dpp v{b+2+d}, v12 row_shl:8 row_mask:0xf bank_mask:0x3
                """)
    def loads(st):
        X,P0=SETS[st]
        if typ=='T0':
            for j in range(2): a(f"buffer_load_dwordx4 v[{X+4*j}:{X+4*j+3}], v5, s[16:19], s20 offen offset:{128*j}")
            a("s_add_u32 s20, s20, 32768")
        else:
            for p in range(npart):
                for j in range(2):
                    a(f"s_add_u32 s13, s21, {p*32768+j*4096}\nbuffer_load_dwordx4 v[{P0+8*p+4*j}:{P0+8*p+4*j+3}], v4, s[8:11], s13 offen sc1")
            for j in range(2):
                a(f"s_add_u32 s13, s20, {j*4096}\nbuffer_load_dwordx4 v[{X+4*j}:{X+4*j+3}], v4, s[8:11], s13 offen sc1")
            a(f"s_add_u32 s20, s20, 32768\ns_add_u32 s21, s21, {32768 if typ=='T1' else 131072}\ns_add_u32 s25, s25, {flstep}")
    def flag_prev():
        if typ=='T3': return
        set_flag(a,'s24')
        a("s_add_u32 s24, s24, 128")
    cfg['init_wait'](a,lab)
    if nfl: wait_flags(a,lab+'w0',nfl,'s25',fail,spin)
    loads(0)
    def iteration(st):
        X,P0=SETS[st]; L=f"{lab}_i{st}"
        a.label(L)
        if nfl: poll_issue(a,nfl,'s25',10,9)
        np_=1 if nfl else 0
        a(f"""
        s_cmp_eq_u32 s31, 0
        s_cbranch_scc1 {L}_w1
        s_waitcnt vmcnt({NS+np_})
        s_branch {L}_w2
{L}_w1:
        s_waitcnt vmcnt({np_})
{L}_w2:
        """)
        if typ=='T0': xchg(X)
        else:
            for r in range(8):
                w0=W+2*r
                if npart==4:
                    a(f"""
                    v_lshlrev_b32 v{w0}, 16, v{P0+r}
                    v_and_b32 v{w0+1}, s27, v{P0+r}
                    v_lshlrev_b32 v12, 16, v{P0+8+r}
                    v_and_b32 v13, s27, v{P0+8+r}
                    v_lshlrev_b32 v14, 16, v{P0+16+r}
                    v_and_b32 v15, s27, v{P0+16+r}
                    v_pk_add_f32 v[{w0}:{w0+1}], v[{w0}:{w0+1}], v[12:13]
                    v_lshlrev_b32 v12, 16, v{P0+24+r}
                    v_and_b32 v13, s27, v{P0+24+r}
                    v_pk_add_f32 v[14:15], v[14:15], v[12:13]
                    v_pk_add_f32 v[{w0}:{w0+1}], v[{w0}:{w0+1}], v[14:15]
                    v_cvt_pk_bf16_f32 v{P0+r}, v{w0}, v{w0+1}
                    """)
                a(f"""
                v_lshlrev_b32 v{w0}, 16, v{P0+r}
                v_and_b32 v{w0+1}, s27, v{P0+r}
                v_lshlrev_b32 v12, 16, v{X+r}
                v_and_b32 v13, s27, v{X+r}
                v_pk_add_f32 v[{w0}:{w0+1}], v[{w0}:{w0+1}], v[12:13]
                v_cvt_pk_bf16_f32 v{X+r}, v{w0}, v{w0+1}
                """)
        def prefetch():
            a(f"""
            s_mov_b32 s31, 0
            s_cmp_ge_u32 s26, 63
            s_cbranch_scc1 {L}_np
            """)
            if nfl: a(f"v_cmp_eq_u32 vcc, 0, v9\ns_cbranch_vccnz {L}_np")
            a("s_mov_b32 s31, 1")
            loads(1-st)
            a.label(L+'_np')
        if typ=='T3':
            xchg(X)
            for j in range(2): a(f"buffer_store_dwordx4 v[{X+4*j}:{X+4*j+3}], v5, s[16:19], s22 offen offset:{128*j}")
            a("s_add_u32 s22, s22, 32768")
            a("s_waitcnt vmcnt(2)")
            prefetch()
            a(f"""
            s_add_u32 s26, s26, 1
            s_cmp_eq_u32 s31, 1
            s_cbranch_scc0 {L}_slow
            s_mov_b32 s31, 0
            s_branch {lab}_i{1-st}
{L}_slow:
            s_cmp_ge_u32 s26, 64
            s_cbranch_scc1 {lab}_done
            """)
            wait_flags(a,L+'ws',nfl,'s25',fail,spin)
            loads(1-st)
            if st==1: a(f"s_branch {lab}_i0")
            return
        if nfl: a("s_waitcnt vmcnt(0)")
        prefetch()
        a("s_add_u32 s13, s22, 4096")
        for j in range(2):
            a(f"buffer_store_dwordx4 v[{X+4*j}:{X+4*j+3}], v4, s[8:11], {'s22' if j==0 else 's13'} offen sc1")
        a("v_mov_b32 v12, 0\nv_mov_b32 v13, 0\nv_mov_b32 v14, 0\nv_mov_b32 v15, 0")
        for r in range(0,8,2):
            a(f"v_dot2_f32_bf16 v12, v{X+r}, v8, v12\nv_dot2_f32_bf16 v13, v{X+r}, v{X+r}, v13\nv_dot2_f32_bf16 v14, v{X+r+1}, v8, v14\nv_dot2_f32_bf16 v15, v{X+r+1}, v{X+r+1}, v15")
        a(f"""
        v_pk_add_f32 v[12:13], v[12:13], v[14:15]
        s_nop 1
        v_add_f32_dpp v12, v12, v12 row_ror:8 row_mask:0xf bank_mask:0xf
        v_add_f32_dpp v13, v13, v13 row_ror:8 row_mask:0xf bank_mask:0xf
        v_mov_b32 v10, v12
        v_mov_b32 v11, v13
        v_permlane16_swap_b32 v12, v10
        v_permlane16_swap_b32 v13, v11
        v_pk_add_f32 v[12:13], v[12:13], v[10:11]
        v_mov_b32 v10, v12
        v_mov_b32 v11, v13
        v_permlane32_swap_b32 v12, v10
        v_permlane32_swap_b32 v13, v11
        v_pk_add_f32 v[12:13], v[12:13], v[10:11]
        s_mov_b64 exec, 0xff
        ds_write_b64 v7, v[12:13] offset:{256*st}
        s_mov_b64 exec, -1
        s_waitcnt lgkmcnt(0)
        s_barrier
        ds_read_b64 v[10:11], v6 offset:{256*st}
        ds_read_b64 v[12:13], v6 offset:{256*st+64}
        ds_read_b64 v[14:15], v6 offset:{256*st+128}
        ds_read_b64 v[{W}:{W+1}], v6 offset:{256*st+192}
        s_waitcnt lgkmcnt(0)
        v_pk_add_f32 v[10:11], v[10:11], v[12:13]
        v_pk_add_f32 v[14:15], v[14:15], v[{W}:{W+1}]
        v_pk_add_f32 v[10:11], v[10:11], v[14:15]
        v_mul_f32 v10, 0x3b000000, v10
        v_mul_f32 v11, 0x3b000000, v11
        v_fma_f32 v11, -v10, v10, v11
        v_max_f32 v11, 0, v11
        v_cvt_pk_bf16_f32 v14, v10, v11
        v_lshlrev_b32 v12, 16, v14
        v_and_b32 v11, s27, v14
        v_add_f32 v11, 0x3727c5ac, v11
        v_cvt_pk_bf16_f32 v11, v11, v11
        v_and_b32 v11, s27, v11
        v_sqrt_f32 v11, v11
        v_mov_b32 v13, v12
        v_cvt_pk_bf16_f32 v11, v11, v11
        v_and_b32 v11, s27, v11
        v_rcp_f32 v14, v11
        s_nop 0
        v_mov_b32 v15, v14
        """)
        for r in range(8):
            w0=W+2*r
            a(f"""
            v_lshlrev_b32 v{w0}, 16, v{X+r}
            v_and_b32 v{w0+1}, s27, v{X+r}
            v_pk_add_f32 v[{w0}:{w0+1}], v[{w0}:{w0+1}], v[12:13] neg_lo:[0,1] neg_hi:[0,1]
            v_cvt_pk_bf16_f32 v{P0+r}, v{w0}, v{w0+1}
            v_lshlrev_b32 v{w0}, 16, v{P0+r}
            v_and_b32 v{w0+1}, s27, v{P0+r}
            v_pk_mul_f32 v[{w0}:{w0+1}], v[{w0}:{w0+1}], v[14:15]
            v_cvt_pk_bf16_f32 v{P0+r}, v{w0}, v{w0+1}
            """)
        a("s_add_u32 s13, s23, 4096")
        for j in range(2):
            a(f"buffer_store_dwordx4 v[{P0+4*j}:{P0+4*j+3}], v4, s[8:11], {'s23' if j==0 else 's13'} offen sc1")
        a("s_add_u32 s22, s22, 32768\ns_add_u32 s23, s23, 32768")
        a("s_waitcnt vmcnt(0)")
        flag_prev()
        a(f"""
        s_add_u32 s26, s26, 1
        s_cmp_eq_u32 s31, 1
        s_cbranch_scc0 {L}_slow
        s_mov_b32 s31, 0
        s_branch {lab}_i{1-st}
{L}_slow:
        s_cmp_ge_u32 s26, 64
        s_cbranch_scc1 {lab}_done
        """)
        if nfl: wait_flags(a,L+'ws',nfl,'s25',fail,spin)
        loads(1-st)
        if st==1: a(f"s_branch {lab}_i0")
    iteration(0); iteration(1)
    a.label(lab+'_done')

def emit_AWO(a, cfg, fail):
    spin=cfg.get('spin',SPIN_DEFAULT)
    lab=a.new('AWO')
    a("""
    s_load_dwordx2 s[12:13], s[0:1], 16      ; A_wo [512][512]
    s_waitcnt lgkmcnt(0)
    s_mov_b32 s14, 524288
    s_mov_b32 s15, 0x20000
    v_lshrrev_b32 v61, 4, v0
    v_and_b32 v60, 15, v0
    v_lshlrev_b32 v62, 2, v61
    v_xor_b32 v62, v60, v62
    v_lshlrev_b32 v62, 4, v62
    v_lshl_add_u32 v62, v61, 10, v62
    s_lshl_b32 s32, s5, 8
    v_add_u32 v40, s32, v62
    s_lshl_b32 s32, s6, 2
    """)
    tr_addr32(a,44,'s32',256,lambda r,o: a(f"v_lshlrev_b32 v{o}, 2, v{r}"),0)
    a("v_add_u32 v45, 0x10000, v44")
    a("s_lshl_b32 s33, s6, 17\ns_lshl_b32 s34, s6, 15")
    for n in range(32):
        a(f"s_add_u32 m0, s34, {4*n*256}\ns_add_u32 s35, s33, {4*n*1024}\nbuffer_load_dwordx4 v40, s[12:15], s35 offen lds")
    a("s_waitcnt vmcnt(0)\ns_barrier")
    for ks in range(32):
        for p in range(2):
            a(f"ds_read_b64_tr_b16 a[{4*ks+2*p}:{4*ks+2*p+1}], v{44+(ks>>4)} offset:{(ks&15)*4096+p*2048}")
        if ks%4==3: a("s_waitcnt lgkmcnt(4)")
    a("s_waitcnt lgkmcnt(0)\ns_barrier")
    a(f"""
    v_lshlrev_b32 v1, 4, v0
    s_lshl_b32 s32, s6, 13
    v_add_u32 v2, s32, v1
    s_lshl_b32 s32, s5, 13
    s_lshl_b32 s33, s6, 11
    s_add_u32 s32, s32, s33
    v_add_u32 v3, s32, v1
    s_mul_i32 s32, s4, {6*64*32768}
    s_add_u32 s43, s32, {xs(T_OA1,0)}
    s_add_u32 s44, s32, {xs(T_YA1,0)}
    s_lshl_b32 s32, s4, 13
    s_add_u32 s45, s32, {WS_FLAG+FL_OA}
    s_lshl_b32 s33, s5, 4
    s_lshl_b32 s34, s6, 2
    s_add_u32 s33, s33, s34
    s_add_u32 s46, s32, {WS_FLAG+FL_YA}
    s_add_u32 s46, s46, s33
    s_mov_b32 s40, 0
    s_mov_b32 s42, 0
    """)
    def dma(bufreg):
        out=[]
        for n in range(8):
            out.append(f"s_lshl_b32 s32, s6, 13\ns_add_u32 s32, s32, {bufreg}\ns_add_u32 m0, s32, {(n>>2)*4096}\ns_add_u32 s33, s43, {(n>>2)*4096}\nbuffer_load_dwordx4 v2, s[8:11], s33 offen offset:{(n&3)*1024} sc1 lds")
        return out
    cfg['init_wait'](a,lab)
    wait_flags(a,lab+'w0',32,'s45',fail,spin)
    for d in dma_list(8,13,'s42'): a(d)
    a("s_add_u32 s43, s43, 32768\ns_add_u32 s45, s45, 128\ns_waitcnt vmcnt(0)\ns_barrier")
    a.label(lab+'_unit')
    a("v_add_u32 v5, s42, v1\ns_xor_b32 s50, s42, 32768")
    poll_issue(a,32,'s45',10,9)
    XR=64; NR=8; AHEAD=6
    def rd(i): a(f"ds_read_b128 v[{XR+4*(i%NR)}:{XR+4*(i%NR)+3}], v5 offset:{i*1024}")
    for i in range(AHEAD): rd(i)
    dl=dma_list(8,13,'s50')
    def mf(ks):
        r=XR+4*(ks%NR); c='0' if ks==0 else "v[32:47]"
        a(f"v_mfma_f32_32x32x16_bf16 v[32:47], a[{4*ks}:{4*ks+3}], v[{r}:{r+3}], {c}")
    def check():
        a(f"""
        s_waitcnt vmcnt(0)
        s_mov_b32 s48, 0
        s_cmp_ge_u32 s40, 63
        s_cselect_b32 s49, 1, 0
        v_cmp_eq_u32 vcc, 0, v9
        s_cmp_eq_u64 vcc, 0
        s_cselect_b32 s48, 1, 0
        s_cmp_eq_u32 s49, 1
        s_cselect_b32 s48, 0, s48
        """)
    gemm_loop(a,lab,32,mf,rd,AHEAD,20,check,dl)
    pack_tile(a,32,96)
    for f in range(2):
        a(f"buffer_store_dwordx4 v[{96+4*f}:{99+4*f}], v3, s[8:11], s44 offen offset:{f*1024} sc1")
    a("s_add_u32 s44, s44, 32768\ns_add_u32 s40, s40, 1\ns_waitcnt vmcnt(0)")
    set_flag(a,'s46',vtmp=(11,12))
    a(f"""
    s_add_u32 s46, s46, 128
    s_mov_b32 s42, s50
    s_cmp_eq_u32 s48, 0
    s_cbranch_scc1 {lab}_slow
    s_add_u32 s43, s43, 32768
    s_add_u32 s45, s45, 128
    s_barrier
    s_branch {lab}_unit
{lab}_slow:
    s_cmp_ge_u32 s40, 64
    s_cbranch_scc1 {lab}_done
    """)
    wait_flags(a,lab+'ws',32,'s45',fail,spin)
    for d in dma_list(8,13,'s42'): a(d)
    a(f"""
    s_add_u32 s43, s43, 32768
    s_add_u32 s45, s45, 128
    s_waitcnt vmcnt(0)
    s_barrier
    s_branch {lab}_unit
{lab}_done:
    """)

def emit_P(a, cfg, fail):
    spin=cfg.get('spin',SPIN_DEFAULT)
    lab=a.new('P')
    a("""
    s_load_dwordx2 s[12:13], s[0:1], 40      ; Wq
    s_load_dwordx2 s[16:17], s[0:1], 48      ; Wk
    s_load_dwordx2 s[20:21], s[0:1], 56      ; Wv
    s_waitcnt lgkmcnt(0)
    s_mov_b32 s14, 4194304
    s_mov_b32 s15, 0x20000
    s_mov_b32 s18, 4194304
    s_mov_b32 s19, 0x20000
    s_mov_b32 s22, 4194304
    s_mov_b32 s23, 0x20000
    v_lshrrev_b32 v61, 4, v0
    v_and_b32 v60, 15, v0
    v_lshlrev_b32 v62, 2, v61
    v_xor_b32 v62, v60, v62
    v_lshlrev_b32 v62, 4, v62
    v_lshl_add_u32 v62, v61, 13, v62
    s_lshl_b32 s32, s5, 8
    v_add_u32 v40, s32, v62
    s_lshl_b32 s32, s6, 2
    """)
    tr_addr32(a,44,'s32',256,lambda r,o: a(f"v_lshlrev_b32 v{o}, 2, v{r}"),0)
    a("v_add_u32 v45, 0x10000, v44")
    def wreg(M,ks,p):
        if M=='Q': b=128+4*ks+2*p; return f"v[{b}:{b+1}]"
        b={'K':0,'V':128}[M]+4*ks+2*p; return f"a[{b}:{b+1}]"
    rounds=[(M,h) for M in ('K','V','Q') for h in range(2)]
    srd={'K':'s[16:19]','V':'s[20:23]','Q':'s[12:15]'}
    def issue(i):
        M,h=rounds[i]
        a(f"s_lshl_b32 s33, s6, 19\ns_add_u32 s33, s33, {h*256*8192}\ns_lshl_b32 s34, s6, 14\ns_add_u32 s34, s34, {(i&1)*65536}")
        for n in range(16):
            a(f"s_add_u32 m0, s34, {4*n*256}\ns_add_u32 s35, s33, {4*n*8192}\nbuffer_load_dwordx4 v40, {srd[M]}, s35 offen lds")
    issue(0); issue(1)
    for i,(M,h) in enumerate(rounds):
        a(f"s_waitcnt vmcnt({16 if i+1<len(rounds) else 0})\ns_barrier")
        for ksl in range(16):
            ks=16*h+ksl
            for p in range(2):
                a(f"ds_read_b64_tr_b16 {wreg(M,ks,p)}, v{44+(i&1)} offset:{ksl*4096+p*2048}")
            if ksl%4==3: a("s_waitcnt lgkmcnt(4)")
        a("s_waitcnt lgkmcnt(0)\ns_barrier")
        if i+2<len(rounds): issue(i+2)
    def W(M,ks):
        if M=='Q': return f"v[{128+4*ks}:{131+4*ks}]"
        b={'K':0,'V':128}[M]+4*ks; return f"a[{b}:{b+3}]"
    a(f"""
    v_lshlrev_b32 v1, 4, v0
    s_lshl_b32 s32, s6, 13
    v_add_u32 v2, s32, v1
    s_lshl_b32 s32, s6, 11
    v_add_u32 v3, s32, v1
    s_mul_i32 s32, s4, {6*64*32768}
    s_add_u32 s43, s32, {xs(T_XNB1,0)}
    s_lshl_b32 s32, s4, 14
    s_add_u32 s45, s32, {WS_FLAG+FL_XN+64*128}
    s_lshl_b32 s32, s4, 11
    s_add_u32 s32, s32, s5
    s_mul_i32 s48, s32, {QKV_BLK}
    s_lshl_b32 s49, s32, 5
    s_lshl_b32 s33, s6, 2
    s_add_u32 s49, s49, s33
    s_add_u32 s49, s49, {WS_FLAG+FL_P}
    s_mov_b32 s40, 0
    s_mov_b32 s42, 0
    s_mov_b32 s47, 0
    """)
    def dma(bufreg):
        out=[]
        for n in range(8):
            out.append(f"s_lshl_b32 s32, s6, 13\ns_add_u32 s32, s32, {bufreg}\ns_add_u32 m0, s32, {(n>>2)*4096}\ns_add_u32 s33, s43, {(n>>2)*4096}\nbuffer_load_dwordx4 v2, s[8:11], s33 offen offset:{(n&3)*1024} sc1 lds")
        return out
    cfg['init_wait'](a,lab)
    wait_flags(a,lab+'w0',NXN,'s45',fail,spin,vtmp=(8,9))
    for d in dma_list(8,13,'s42'): a(d)
    a("s_add_u32 s43, s43, 32768\ns_add_u32 s45, s45, 128\ns_waitcnt vmcnt(0)\ns_barrier")
    a.label(lab+'_unit')
    a("v_add_u32 v5, s42, v1\ns_xor_b32 s50, s42, 32768")
    poll_issue(a,NXN,'s45',10,9)
    XR=64; NR=8; ACC=[32,48]; PK=96
    def rd(ks): a(f"ds_read_b128 v[{XR+4*(ks%NR)}:{XR+4*(ks%NR)+3}], v5 offset:{ks*1024}")
    AHEAD=6
    for i in range(AHEAD): rd(i)
    def epi(t):
        acc=ACC[t]; out=[]; pk=PK+8*t
        for i in range(8): out.append(f"v_cvt_pk_bf16_f32 v{pk+i}, v{acc+2*i}, v{acc+2*i+1}")
        off=[8192,16384][t]
        out.append(f"s_add_u32 s33, s48, {off}\nbuffer_store_dwordx4 v[{pk}:{pk+3}], v3, s[8:11], s33 offen sc1")
        out.append(f"buffer_store_dwordx4 v[{pk+4}:{pk+7}], v3, s[8:11], s33 offen offset:1024 sc1")
        return out
    dl=dma_list(8,13,'s50')
    def step(ks):
        r=XR+4*(ks%NR)
        a(f"s_waitcnt lgkmcnt({min(AHEAD-1,31-ks)})")
        a(f"v_mfma_f32_32x32x16_bf16 v[32:47], {W('K',ks)}, v[{r}:{r+3}], {'0' if ks==0 else 'v[32:47]'}")
        a(f"v_mfma_f32_32x32x16_bf16 v[48:63], v[{r}:{r+3}], {W('V',ks)}, {'0' if ks==0 else 'v[48:63]'}")
        if ks+AHEAD<32: rd(ks+AHEAD)
    def check():
        a(f"s_cmp_eq_u32 s47, 0\ns_cbranch_scc1 {lab}_nq0\ns_waitcnt vmcnt(1)\ns_sub_u32 s33, s49, 1024\ns_add_u32 s34, s33, 16\ns_cmp_eq_u32 s47, 2\ns_cselect_b32 s33, s34, s33")
        set_flag(a,'s33',vtmp=(11,12))
        a(f"""
        s_mov_b32 s47, 0
        s_waitcnt vmcnt(1)
        s_branch {lab}_nq
{lab}_nq0:
        s_waitcnt vmcnt(0)
{lab}_nq:
        s_mov_b32 s51, 0
        s_cmp_ge_u32 s40, 63
        s_cselect_b32 s52, 1, 0
        v_cmp_eq_u32 vcc, 0, v9
        s_cmp_eq_u64 vcc, 0
        s_cselect_b32 s51, 1, 0
        s_cmp_eq_u32 s52, 1
        s_cselect_b32 s51, 0, s51
        """)
    for ks in range(13): step(ks)
    check()
    a(f"s_cmp_eq_u32 s51, 0\ns_cbranch_scc1 {lab}_vn")
    for j in range(8): step(13+j); a(dl[j])
    a(f"s_branch {lab}_ve\n{lab}_vn:")
    for j in range(8): step(13+j)
    a.label(lab+'_ve')
    for ks in range(21,32): step(ks)
    for x in epi(0): a(x)
    for x in epi(1): a(x)
    a(f"""
    s_mov_b32 s54, 1
    s_add_u32 s32, s40, 1
    s_and_b32 s32, s32, 2
    s_cmp_lg_u32 s32, 0
    s_cbranch_scc1 {lab}_noq
    """)
    for i in range(AHEAD): rd(i)
    for ks in range(32):
        r_=XR+4*(ks%NR)
        a(f"s_waitcnt lgkmcnt({min(AHEAD-1,31-ks)})")
        a(f"v_mfma_f32_32x32x16_bf16 v[32:47], {W('Q',ks)}, v[{r_}:{r_+3}], {'0' if ks==0 else 'v[32:47]'}")
        if ks+AHEAD<32: rd(ks+AHEAD)
    a("s_waitcnt vmcnt(0)")
    set_flag(a,'s49',vtmp=(11,12))
    for i in range(8): a(f"v_cvt_pk_bf16_f32 v{PK+i}, v32+{2*i}, v33+{2*i}".replace(f"v32+{2*i}",f"v{32+2*i}").replace(f"v33+{2*i}",f"v{33+2*i}"))
    a(f"""
    buffer_store_dwordx4 v[{PK}:{PK+3}], v3, s[8:11], s48 offen sc1
    buffer_store_dwordx4 v[{PK+4}:{PK+7}], v3, s[8:11], s48 offen offset:1024 sc1
    s_mov_b32 s54, 2
{lab}_noq:
    s_add_u32 s48, s48, {32*QKV_BLK}
    s_add_u32 s49, s49, 1024
    s_add_u32 s40, s40, 1
    s_mov_b32 s42, s50
    s_cmp_eq_u32 s51, 0
    s_cbranch_scc1 {lab}_slow
    s_mov_b32 s47, s54
    s_add_u32 s43, s43, 32768
    s_add_u32 s45, s45, 128
    s_cmp_eq_u32 s54, 2
    s_cbranch_scc1 {lab}_fq
    s_waitcnt vmcnt(4)
{lab}_fq:
    s_barrier
    s_branch {lab}_unit
{lab}_slow:
    s_waitcnt vmcnt(0)
    s_sub_u32 s33, s49, 1024
    s_add_u32 s34, s33, 16
    s_cmp_eq_u32 s54, 2
    s_cselect_b32 s33, s34, s33
    """)
    set_flag(a,'s33',vtmp=(11,12))
    a(f"""
    s_mov_b32 s47, 0
    s_cmp_ge_u32 s40, 64
    s_cbranch_scc1 {lab}_done
    """)
    wait_flags(a,lab+'ws',NXN,'s45',fail,spin,vtmp=(8,9))
    for d in dma_list(8,13,'s42'): a(d)
    a(f"""
    s_add_u32 s43, s43, 32768
    s_add_u32 s45, s45, 128
    s_waitcnt vmcnt(0)
    s_barrier
    s_branch {lab}_unit
{lab}_done:
    """)

def emit_ATT(a, cfg, fail):
    spin=cfg.get('spin',SPIN_DEFAULT)
    lab=a.new('ATT')
    STG=131072
    a(f"""
    s_load_dwordx2 s[12:13], s[0:1], 40      ; Wq
    s_waitcnt lgkmcnt(0)
    s_mov_b32 s14, 4194304
    s_mov_b32 s15, 0x20000
    v_lshrrev_b32 v61, 4, v0
    v_and_b32 v60, 15, v0
    v_lshlrev_b32 v62, 2, v61
    v_xor_b32 v62, v60, v62
    v_lshlrev_b32 v62, 4, v62
    v_lshl_add_u32 v62, v61, 13, v62
    s_lshl_b32 s32, s5, 8
    v_add_u32 v40, s32, v62
    s_lshl_b32 s32, s6, 2
    """)
    tr_addr32(a,44,'s32',256,lambda r_,o: a(f"v_lshlrev_b32 v{o}, 2, v{r_}"),STG)
    a("v_lshlrev_b32 v46, 4, v0\ns_lshl_b32 s32, s6, 15\nv_add_u32 v46, s32, v46")
    for rnd in range(4):
        a(f"s_lshl_b32 s33, s6, 18\ns_add_u32 s33, s33, {rnd*128*8192}\ns_lshl_b32 s34, s6, 13\ns_add_u32 s34, s34, {STG}")
        for n in range(8):
            a(f"s_add_u32 m0, s34, {4*n*256}\ns_add_u32 s35, s33, {4*n*8192}\nbuffer_load_dwordx4 v40, s[12:15], s35 offen lds")
        a("s_waitcnt vmcnt(0)\ns_barrier")
        for ksl in range(8):
            for p in range(2):
                a(f"ds_read_b64_tr_b16 v[{64+4*ksl+2*p}:{65+4*ksl+2*p}], v44 offset:{ksl*4096+p*2048}")
        a("s_waitcnt lgkmcnt(0)")
        for ksl in range(8):
            a(f"ds_write_b128 v46, v[{64+4*ksl}:{67+4*ksl}] offset:{(8*rnd+ksl)*1024}")
        a("s_waitcnt lgkmcnt(0)\ns_barrier")
    a(f"""
    s_lshr_b32 s40, s6, 1                    ; layer
    s_and_b32 s41, s6, 1                     ; unit
    s_lshl_b32 s32, s40, 6
    s_add_u32 s32, s32, s41
    s_lshl_b32 s32, s32, 5
    s_add_u32 s32, s32, s5                   ; (l*64+u)*32 + h
    s_mul_i32 s43, s32, {QKV_BLK}
    s_lshl_b32 s44, s32, 12
    s_add_u32 s44, s44, {WS_KM}
    s_lshl_b32 s45, s32, 4
    s_add_u32 s45, s45, {WS_FLAG+FL_CH}
    s_lshl_b32 s49, s32, 5
    s_add_u32 s49, s49, {WS_FLAG+FL_P}
    s_lshl_b32 s33, s40, 6
    s_add_u32 s33, s33, s41                  ; l*64+u
    s_mul_i32 s34, s40, {6*64*32768}
    s_lshl_b32 s35, s41, 15
    s_add_u32 s50, s34, s35
    s_add_u32 s50, s50, {xs(T_XNB1,0)}
    s_lshl_b32 s34, s40, 14
    s_lshl_b32 s35, s41, 7
    s_add_u32 s51, s34, s35
    s_add_u32 s51, s51, {WS_FLAG+FL_XN+64*128}
    s_lshl_b32 s46, s32, 2
    s_add_u32 s46, s46, {WS_FLAG+FL_OB}
    s_lshl_b32 s33, s40, 6
    s_add_u32 s33, s33, s41
    s_lshl_b32 s33, s33, 18
    s_lshl_b32 s34, s5, 13
    s_add_u32 s47, s33, s34
    s_add_u32 s47, s47, {WS_OB}
    s_lshl_b32 s42, s6, 12
    s_add_u32 s42, s42, {STG}
    v_lshlrev_b32 v1, 4, v0
    v_lshrrev_b32 v60, 5, v0
    v_and_b32 v61, 7, v0
    v_lshlrev_b32 v2, 4, v61
    v_lshl_add_u32 v2, v60, 7, v2
    v_add_u32 v2, s42, v2
    v_and_b32 v61, 31, v0
    v_lshlrev_b32 v3, 4, v61
    v_lshl_add_u32 v3, v60, 3, v3
    v_add_u32 v3, s42, v3
    v_mov_b32 v7, 0xff7fffff
    v_mov_b32 v12, 0x3f803f80
    v_mov_b32 v13, 0x3f803f80
    v_mov_b32 v14, 0x3f803f80
    v_mov_b32 v15, 0x3f803f80
    s_mov_b32 s48, 0x3e0293ee
    """)
    a("v_mov_b32 v4, v1\nv_add_u32 v5, 0x10000, v1")
    causal_masks(a,64)
    K=32; V=64; KM=160; VM=192
    XA=96
    QV=128
    def xloads():
        out=[]
        for ks in range(32):
            pre=f"s_add_u32 s32, s50, {(ks>>2)*4096}\n" if ks%4==0 else ""
            out.append(pre+f"buffer_load_dwordx4 a[{XA+4*ks}:{XA+4*ks+3}], v1, s[8:11], s32 offen offset:{(ks&3)*1024} sc1")
        return out
    def xadv(): a("s_add_u32 s50, s50, 131072\ns_add_u32 s51, s51, 512")
    def kvloads():
        out=[]
        for blk,reg in ((1,K),(2,V)):
            for g in range(2):
                for j in range(4):
                    rr=reg+4*(4*g+j)
                    pre=f"s_add_u32 s32, s43, {blk*8192+g*4096}\n" if j==0 else ""
                    out.append(pre+f"buffer_load_dwordx4 a[{rr}:{rr+3}], v1, s[8:11], s32 offen offset:{j*1024} sc1")
        return out
    def core(tag, light):
        L=f"{lab}_{tag}"
        a(f"""
        s_waitcnt vmcnt(0)
        v_cmp_eq_u32 vcc, 0, v30
        s_cbranch_vccnz {L}_chw
        """)
        def kmdma():
            a("s_mov_b32 m0, s42")
            for j in range(4): a(f"buffer_load_dwordx4 v1, s[8:11], s44 offen offset:{j*1024} sc1 lds")
        def stok():
            for ks in range(8):
                c0='0' if ks==0 else 'v[32:47]'
                a(f"v_mfma_f32_32x32x16_bf16 v[32:47], a[{K+4*ks}:{K+4*ks+3}], v[{QV+4*ks}:{QV+4*ks+3}], {c0}")
            for r_ in range(16): a(f"v_cndmask_b32 v{32+r_}, v7, v{32+r_}, s[{64+2*r_}:{65+2*r_}]")
            a("""
            v_max3_f32 v24, v32, v33, v34
            v_max3_f32 v25, v35, v36, v37
            v_max3_f32 v24, v24, v38, v39
            v_max3_f32 v25, v25, v40, v41
            v_max3_f32 v24, v24, v42, v43
            v_max3_f32 v25, v25, v44, v45
            v_max3_f32 v24, v24, v46, v47
            """)
            for W_ in range(4): a(f"v_mov_b32 v{VM+4*W_+2}, 0\nv_mov_b32 v{VM+4*W_+3}, 0")
        xl=xloads()
        kmdma(); stok()
        a(f"s_branch {L}_kmw")
        a.label(L+'_chw')
        stok()
        if light:
            a(f"s_cmp_eq_u32 s53, 0\ns_cbranch_scc1 {L}_b1")
            for x in xl: a(x)
            xadv()
            a(f"s_mov_b32 s53, 2\n{L}_b1:")
        wait_flags(a,L+'wc',4,'s45',fail,spin,sleep=0)
        kmdma()
        a.label(L+'_kmw')
        a("s_waitcnt vmcnt(0)")
        for ks in range(8): a(f"ds_read_b128 v[{KM+4*ks}:{KM+4*ks+3}], v2 offset:{ks*256}")
        for W_ in range(4): a(f"ds_read_b64 v[{VM+4*W_}:{VM+4*W_+1}], v3 offset:{2048+W_*512}")
        for ks in range(8):
            a(f"s_waitcnt lgkmcnt({11-ks})")
            c1='0' if ks==0 else 'v[48:63]'
            a(f"v_mfma_f32_32x32x16_bf16 v[48:63], v[{KM+4*ks}:{KM+4*ks+3}], v[{QV+4*ks}:{QV+4*ks+3}], {c1}")
        a("""
        v_max3_f32 v25, v25, v48, v49
        v_max3_f32 v24, v24, v50, v51
        v_max_f32 v24, v24, v25
        v_mov_b32 v25, v24
        v_permlane32_swap_b32 v24, v25
        v_max_f32 v24, v24, v25
        v_mul_f32 v24, s48, v24
        """)
        for r_ in range(20): a(f"v_fma_f32 v{32+r_}, v{32+r_}, s48, -v24")
        for r_ in range(20): a(f"v_exp_f32 v{32+r_}, v{32+r_}")
        a("v_add_f32 v24, v32, v33\nv_add_f32 v25, v34, v35")
        for r_ in range(4,20,2): a(f"v_add_f32 v24, v24, v{32+r_}\nv_add_f32 v25, v25, v{33+r_}")
        a("""
        v_add_f32 v24, v24, v25
        v_mov_b32 v25, v24
        v_permlane32_swap_b32 v24, v25
        v_add_f32 v24, v24, v25
        v_rcp_f32 v24, v24
        """)
        for r_ in range(20): a(f"v_mul_f32 v{32+r_}, v{32+r_}, v24")
        for i in range(8): a(f"v_cvt_pk_bf16_f32 v{16+i}, v{32+2*i}, v{33+2*i}")
        a("""
        v_cvt_pk_bf16_f32 v8, v48, v49
        v_cvt_pk_bf16_f32 v9, v50, v51
        v_mov_b32 v10, 0
        v_mov_b32 v11, 0
        s_waitcnt lgkmcnt(0)
        """)
        OT=[64,80,96,112]; PK=208
        xq=list(xl) if light else []
        def mx(n=1):
            for _ in range(n):
                if xq:
                    LL=a.new(lab+'m'); a(f"s_cbranch_scc0 {LL}"); x=xq.pop(0)
                    a(x)
                    if x.startswith('s_add'): a("s_cmp_eq_u32 s53, 1")
                    a.label(LL)
        def pv(W_):
            o=OT[W_]
            a(f"v_mfma_f32_32x32x16_bf16 v[{o}:{o+15}], a[{V+8*W_}:{V+8*W_+3}], v[16:19], 0"); mx()
            a(f"v_mfma_f32_32x32x16_bf16 v[{o}:{o+15}], a[{V+8*W_+4}:{V+8*W_+7}], v[20:23], v[{o}:{o+15}]"); mx()
            a(f"v_mfma_f32_32x32x16_bf16 v[{o}:{o+15}], v[{VM+4*W_}:{VM+4*W_+3}], v[8:11], v[{o}:{o+15}]"); mx()
        def fin(W_):
            o=OT[W_]
            for i in range(8):
                a(f"v_cvt_pk_bf16_f32 v{PK+8*W_+i}, v{o+2*i}, v{o+2*i+1}")
                if i%2==1: mx()
        def sto(W_):
            if W_==2: a("s_add_u32 s32, s47, 4096")
            for f in range(2):
                fi=2*W_+f
                a(f"buffer_store_dwordx4 v[{PK+4*fi}:{PK+4*fi+3}], v1, s[8:11], {'s47' if fi<4 else 's32'} offen offset:{(fi&3)*1024} sc1")
        if light: a("s_cmp_eq_u32 s53, 1")
        pv(0); pv(1); pv(2); fin(0); pv(3); fin(1); fin(2); fin(3)
        if light:
            mx(32)
            a(f"s_cbranch_scc0 {L}_k2")
            xadv()
            a.label(L+'_k2')
        for W_ in range(4): sto(W_)
        a(f"""
        s_add_u32 s43, s43, {2*32*QKV_BLK}
        s_add_u32 s44, s44, {2*32*4096}
        s_add_u32 s45, s45, 1024
        s_add_u32 s49, s49, 2048
        s_add_u32 s47, s47, {2*262144}
        s_add_u32 s41, s41, 2
        """)
    def eager():
        a("s_waitcnt vmcnt(0)")
        set_flag(a,'s46',vtmp=(10,11))
        a("s_add_u32 s46, s46, 256\ns_mov_b32 s52, 0")
    cfg['init_wait'](a,lab,sb=16)
    a(f"""
    s_mov_b32 s52, 0
    s_cmp_eq_u32 s41, 0
    s_cbranch_scc0 {lab}_h0
    s_add_u32 s50, s50, 65536
    s_add_u32 s51, s51, 256
    s_branch {lab}_L
{lab}_h0:
    """)
    wait_flags(a,lab+'wx0',NXN,'s51',fail,spin)
    for x in xloads(): a(x)
    xadv()
    a.label(lab+'_H')
    roles.tsp(a,1,0,'s41',('s5','s40'))
    WR=64; NR=8; AHEAD=6
    seq=[(T,ks) for T in range(4) for ks in range(32)]
    def wrd(i):
        T,ks=seq[i]; r_=WR+4*(i%NR)
        a(f"ds_read_b128 v[{r_}:{r_+3}], v{4+(T>>1)} offset:{(T&1)*32768+ks*1024}")
    for i in range(AHEAD): wrd(i)
    QA=[96,112]
    pend=[]
    kvl=kvloads()
    for i,(T,ks) in enumerate(seq):
        acc=QA[T&1]; r_=WR+4*(i%NR)
        if T==0:
            if ks<8:
                LL=a.new(lab+'x')
                a(f"s_cmp_eq_u32 s52, 0\ns_cbranch_scc1 {LL}_0\ns_waitcnt vmcnt({39-ks})\ns_branch {LL}_1\n{LL}_0:\ns_waitcnt vmcnt({31-ks})\n{LL}_1:\ns_waitcnt lgkmcnt({AHEAD-1})")
            else: a(f"s_waitcnt vmcnt({31-ks}) lgkmcnt({AHEAD-1})")
        elif T==1 and ks==0:
            a(f"s_cmp_eq_u32 s52, 0\ns_cbranch_scc1 {lab}_nf")
            set_flag(a,'s46',vtmp=(10,11))
            a(f"s_add_u32 s46, s46, 256\ns_mov_b32 s52, 0\n{lab}_nf:")
            poll_issue(a,4,'s49',10,30)
            a(f"s_waitcnt lgkmcnt({AHEAD-1})")
        elif T==1 and ks==30:
            a(f"""
            s_waitcnt vmcnt(0)
            v_cmp_eq_u32 vcc, 0, v30
            s_cbranch_vccz {lab}_pok
            """)
            wait_flags(a,lab+'wp',4,'s49',fail,spin)
            a(f"{lab}_pok:\ns_waitcnt lgkmcnt({AHEAD-1})")
        else: a(f"s_waitcnt lgkmcnt({min(AHEAD-1,len(seq)-1-i)})")
        c='0' if ks==0 else f"v[{acc}:{acc+15}]"
        a(f"v_mfma_f32_32x32x16_bf16 v[{acc}:{acc+15}], v[{r_}:{r_+3}], a[{XA+4*ks}:{XA+4*ks+3}], {c}")
        if i+AHEAD<len(seq): wrd(i+AHEAD)
        if T>=1 and ks==0:
            pa=QA[(T-1)&1]
            pend=[f"v_cvt_pk_bf16_f32 v{QV+8*(T-1)+q}, v{pa+2*q}, v{pa+2*q+1}" for q in range(8)]
        if T>=1 and ks>=8 and pend: a(pend.pop(0))
        if T==2 and ks%2==1 and kvl: a(kvl.pop(0))
        if T==3 and ks==4: poll_issue(a,4,'s45',10,30)
    pa=QA[1]
    for q in range(8): a(f"v_cvt_pk_bf16_f32 v{QV+24+q}, v{pa+2*q}, v{pa+2*q+1}")
    roles.tsp(a,1,1,'s41',('s5','s40'))
    core('h',False)
    roles.tsp(a,1,5,'s41',('s5','s40'))
    eager()
    a(f"s_cmp_ge_u32 s41, 64\ns_cbranch_scc1 {lab}_done")
    a.label(lab+'_L')
    roles.tsp(a,1,0,'s41',('s5','s40'))
    wait_flags(a,lab+'wq',8,'s49',fail,spin)
    for g in range(2):
        a(f"s_add_u32 s32, s43, {g*4096}")
        for j in range(4):
            rr=QV+4*(4*g+j)
            a(f"buffer_load_dwordx4 v[{rr}:{rr+3}], v1, s[8:11], s32 offen offset:{j*1024} sc1")
    for x in kvloads(): a(x)
    poll_issue(a,NXN,'s51',11,31)
    poll_issue(a,4,'s45',10,30)
    a(f"""
    s_waitcnt vmcnt(0)
    s_mov_b32 s53, 0
    s_cmp_ge_u32 s41, 62
    s_cbranch_scc1 {lab}_np
    v_cmp_eq_u32 vcc, 0, v31
    s_cbranch_vccnz {lab}_np
    s_mov_b32 s53, 1
{lab}_np:
    """)
    core('l',True)
    roles.tsp(a,1,5,'s41',('s5','s40'))
    a(f"""
    s_cmp_eq_u32 s53, 1
    s_cbranch_scc0 {lab}_e1
    s_mov_b32 s52, 1
    s_branch {lab}_H
{lab}_e1:
    """)
    eager()
    a(f"""
    s_cmp_ge_u32 s41, 64
    s_cbranch_scc1 {lab}_done
    s_cmp_eq_u32 s53, 2
    s_cbranch_scc1 {lab}_H
    """)
    wait_flags(a,lab+'wxs',NXN,'s51',fail,spin)
    for x in xloads(): a(x)
    xadv()
    a(f"s_branch {lab}_H\n{lab}_done:")

def emit_O(a, cfg, fail):
    spin=cfg.get('spin',SPIN_DEFAULT)
    lab=a.new('O')
    a(f"""
    s_load_dwordx2 s[12:13], s[0:1], 64
    s_waitcnt lgkmcnt(0)
    s_mov_b32 s14, 4194304
    s_mov_b32 s15, 0x20000
    s_lshr_b32 s40, s5, 2                    ; kq
    s_and_b32 s41, s5, 3                     ; nq
    v_lshrrev_b32 v61, 4, v0
    v_and_b32 v60, 15, v0
    v_lshlrev_b32 v62, 2, v61
    v_xor_b32 v62, v60, v62
    v_lshlrev_b32 v62, 4, v62
    v_lshl_add_u32 v62, v61, 10, v62
    s_lshl_b32 s32, s41, 8
    v_add_u32 v40, s32, v62
    s_mov_b32 s32, 0
    """)
    tr_addr32(a,44,'s32',256,lambda r,o: a(f"v_lshlrev_b32 v{o}, 2, v{r}"),0)
    a("s_lshl_b32 s34, s6, 15\nv_add_u32 v44, s34, v44")
    for T in range(1,4): a(f"v_xor_b32 v{44+T}, {64*T}, v44")
    for rnd in range(2):
        a(f"s_lshl_b32 s33, s40, 20\ns_lshl_b32 s35, s6, 18\ns_add_u32 s33, s33, s35\ns_add_u32 s33, s33, {rnd*128*1024}")
        for n in range(32):
            a(f"s_add_u32 m0, s34, {4*n*256}\ns_add_u32 s35, s33, {4*n*1024}\nbuffer_load_dwordx4 v40, s[12:15], s35 offen lds")
        a("s_waitcnt vmcnt(0)")
        for ksl in range(8):
            ks=8*rnd+ksl
            for T in range(4):
                for p in range(2):
                    b=(T*16+ks)*4+2*p
                    a(f"ds_read_b64_tr_b16 a[{b}:{b+1}], v{44+T} offset:{ksl*4096+p*2048}")
            a("s_waitcnt lgkmcnt(4)")
        a("s_waitcnt lgkmcnt(0)")
    a(f"""
    s_barrier
    v_lshlrev_b32 v1, 4, v0
    s_lshl_b32 s32, s4, 24
    s_lshl_b32 s33, s40, 16
    s_lshl_b32 s34, s6, 14
    s_add_u32 s43, s32, s33
    s_add_u32 s43, s43, s34
    s_add_u32 s43, s43, {WS_OB}
    s_lshl_b32 s32, s4, 23
    s_lshl_b32 s33, s40, 15
    s_lshl_b32 s34, s41, 13
    s_add_u32 s44, s32, s33
    s_add_u32 s44, s44, s34
    s_lshl_b32 s34, s6, 11
    s_add_u32 s44, s44, s34
    s_add_u32 s44, s44, {WS_PO}
    s_lshl_b32 s32, s4, 13
    s_lshl_b32 s33, s40, 5
    s_lshl_b32 s34, s6, 3
    s_add_u32 s45, s32, s33
    s_add_u32 s45, s45, s34
    s_add_u32 s45, s45, {WS_FLAG+FL_OB}
    s_lshl_b32 s32, s4, 14
    s_lshl_b32 s33, s5, 4
    s_lshl_b32 s34, s6, 2
    s_add_u32 s46, s32, s33
    s_add_u32 s46, s46, s34
    s_add_u32 s46, s46, {WS_FLAG+FL_PO}
    s_lshl_b32 s32, s6, 14
    v_add_u32 v2, s32, v1
    s_lshl_b32 s32, s6, 12
    v_add_u32 v3, s32, v1
    s_mov_b32 s47, 0
    s_mov_b32 s51, 0
    """)
    XB=[64,128]
    def ld(st,ks):
        return f"s_add_u32 s32, s43, {(ks>>2)*4096}\nbuffer_load_dwordx4 v[{XB[st]+4*ks}:{XB[st]+4*ks+3}], v1, s[8:11], s32 offen offset:{(ks&3)*1024} sc1"
    def adv(): a("s_add_u32 s43, s43, 262144\ns_add_u32 s45, s45, 128")
    wait_flags(a,lab+'w0',2,'s45',fail,spin)
    for ks in range(16): a(ld(0,ks))
    adv()
    ACC=[0,16,32,48]
    AB=192
    def iteration(st):
        L=f"{lab}_i{st}"
        a.label(L)
        poll_issue(a,2,'s45',10,9)
        nl=[ld(1-st,ks) for ks in range(16)]
        for ks in range(16):
            a(f"s_waitcnt vmcnt({16-ks})") if ks<16 else None
            for T in range(4):
                acc=AB+16*T; c='0' if ks==0 else f"v[{acc}:{acc+15}]"; b=(T*16+ks)*4
                a(f"v_mfma_f32_32x32x16_bf16 v[{acc}:{acc+15}], a[{b}:{b+3}], v[{XB[st]+4*ks}:{XB[st]+4*ks+3}], {c}")
            if ks==15: break
        return nl
    def unit(st):
        L=f"{lab}_i{st}"
        a.label(L)
        poll_issue(a,2,'s45',10,9)
        for ks in range(8):
            a(f"s_waitcnt vmcnt({16-ks})")
            for T in range(4):
                acc=AB+16*T; c='0' if ks==0 else f"v[{acc}:{acc+15}]"; b=(T*16+ks)*4
                a(f"v_mfma_f32_32x32x16_bf16 v[{acc}:{acc+15}], a[{b}:{b+3}], v[{XB[st]+4*ks}:{XB[st]+4*ks+3}], {c}")
        a(f"""
        s_waitcnt vmcnt(0)
        s_mov_b32 s49, 0
        s_cmp_ge_u32 s47, 63
        s_cbranch_scc1 {L}_np
        v_cmp_eq_u32 vcc, 0, v9
        s_cbranch_vccnz {L}_np
        s_mov_b32 s49, 1
{L}_np:
        s_cmp_eq_u32 s49, 1
        """)
        nl=[ld(1-st,ks) for ks in range(16)]
        for ks in range(8,16):
            for T in range(4):
                acc=AB+16*T; b=(T*16+ks)*4
                a(f"v_mfma_f32_32x32x16_bf16 v[{acc}:{acc+15}], a[{b}:{b+3}], v[{XB[st]+4*ks}:{XB[st]+4*ks+3}], v[{acc}:{acc+15}]")
                if T%2==1:
                    LL=a.new(L+'m'); a(f"s_cbranch_scc0 {LL}"); a(nl.pop(0)); a(f"s_cmp_eq_u32 s49, 1\n{LL}:")
        a("v_add_u32 v4, s51, v2\nv_add_u32 v5, s51, v3")
        for q in range(16): a(f"ds_write_b128 v4, v[{AB+4*q}:{AB+3+4*q}] offset:{q*1024}")
        a("s_waitcnt lgkmcnt(0)\ns_barrier")
        R=16
        for w in range(4):
            for q in range(4): a(f"ds_read_b128 v[{AB+16*w+4*q}:{AB+3+16*w+4*q}], v5 offset:{w*16384+q*1024}")
        a("s_xor_b32 s51, s51, 65536\ns_waitcnt lgkmcnt(8)")
        for r in range(0,16,2): a(f"v_pk_add_f32 v[{AB+r}:{AB+1+r}], v[{AB+r}:{AB+1+r}], v[{AB+16+r}:{AB+17+r}]")
        a("s_waitcnt lgkmcnt(0)")
        for r in range(0,16,2): a(f"v_pk_add_f32 v[{AB+32+r}:{AB+33+r}], v[{AB+32+r}:{AB+33+r}], v[{AB+48+r}:{AB+49+r}]")
        for r in range(0,16,2): a(f"v_pk_add_f32 v[{AB+r}:{AB+1+r}], v[{AB+r}:{AB+1+r}], v[{AB+32+r}:{AB+33+r}]")
        for i in range(8): a(f"v_cvt_pk_bf16_f32 v{16+i}, v{AB+2*i}, v{AB+1+2*i}")
        a(f"""
        buffer_store_dwordx4 v[16:19], v1, s[8:11], s44 offen sc1
        buffer_store_dwordx4 v[20:23], v1, s[8:11], s44 offen offset:1024 sc1
        s_add_u32 s44, s44, 131072
        s_add_u32 s47, s47, 1
        s_waitcnt vmcnt(0)
        """)
        set_flag(a,'s46',vtmp=(10,11))
        a(f"""
        s_add_u32 s46, s46, 256
        s_cmp_eq_u32 s49, 1
        s_cbranch_scc0 {L}_slow
        """)
        adv()
        a(f"""
        s_branch {lab}_i{1-st}
{L}_slow:
        s_cmp_ge_u32 s47, 64
        s_cbranch_scc1 {lab}_done
        """)
        wait_flags(a,L+'ws',2,'s45',fail,spin)
        for ks in range(16): a(ld(1-st,ks))
        adv()
        if st==1: a(f"s_branch {lab}_i0")
    unit(0); unit(1)
    a.label(lab+'_done')

def emit_O5(a, cfg, fail):
    spin=cfg.get('spin',SPIN_DEFAULT)
    lab=a.new('O')
    a(f"""
    s_load_dwordx2 s[12:13], s[0:1], 64
    s_waitcnt lgkmcnt(0)
    s_mov_b32 s14, 4194304
    s_mov_b32 s15, 0x20000
    s_lshr_b32 s40, s5, 2                    ; kq
    s_and_b32 s41, s5, 3                     ; nq
    v_lshrrev_b32 v61, 4, v0
    v_and_b32 v60, 15, v0
    v_lshlrev_b32 v62, 2, v61
    v_xor_b32 v62, v60, v62
    v_lshlrev_b32 v62, 4, v62
    v_lshl_add_u32 v62, v61, 10, v62
    s_lshl_b32 s32, s41, 8
    v_add_u32 v40, s32, v62
    s_and_b32 s54, s6, 1                     ; nh
    s_lshr_b32 s55, s6, 1                    ; kh
    s_lshl_b32 s32, s54, 3
    """)
    tr_addr32(a,44,'s32',256,lambda r,o: a(f"v_lshlrev_b32 v{o}, 2, v{r}"),0)
    a("v_xor_b32 v45, 64, v44\nv_add_u32 v46, 0x10000, v44\nv_add_u32 v47, 0x10000, v45")
    def issue(i):
        a(f"s_lshl_b32 s33, s40, 20\ns_lshl_b32 s35, s6, 16\ns_add_u32 s33, s33, s35\ns_add_u32 s33, s33, {i*256*1024}\ns_lshl_b32 s34, s6, 14\ns_add_u32 s34, s34, {(i&1)*65536}")
        for n in range(16):
            a(f"s_add_u32 m0, s34, {4*n*256}\ns_add_u32 s35, s33, {4*n*1024}\nbuffer_load_dwordx4 v40, s[12:15], s35 offen lds")
    issue(0); issue(1)
    for i in range(4):
        L=a.new(lab+'w')
        a(f"s_waitcnt vmcnt({16 if i<3 else 0})\ns_barrier\ns_cmp_lg_u32 s55, {i>>1}\ns_cbranch_scc1 {L}")
        for ksl in range(16):
            ks=16*(i&1)+ksl
            for T in range(2):
                for p in range(2):
                    b=(T*32+ks)*4+2*p
                    a(f"ds_read_b64_tr_b16 a[{b}:{b+1}], v{44+T+2*(i&1)} offset:{ksl*4096+p*2048}")
            if ksl%2==1: a("s_waitcnt lgkmcnt(4)")
        a(f"{L}:\ns_waitcnt lgkmcnt(0)\ns_barrier")
        if i+2<4: issue(i+2)
    a(f"""
    v_lshlrev_b32 v1, 4, v0
    s_lshl_b32 s32, s6, 14
    v_add_u32 v2, s32, v1
    s_lshl_b32 s32, s4, 24
    s_lshl_b32 s33, s40, 16
    s_add_u32 s43, s32, s33
    s_add_u32 s43, s43, {WS_OB}
    s_lshl_b32 s32, s4, 23
    s_lshl_b32 s33, s40, 15
    s_lshl_b32 s34, s41, 13
    s_add_u32 s44, s32, s33
    s_add_u32 s44, s44, s34
    s_lshl_b32 s34, s54, 12
    s_add_u32 s44, s44, s34
    s_lshl_b32 s34, s55, 11
    s_add_u32 s44, s44, s34
    s_add_u32 s44, s44, {WS_PO}
    s_lshl_b32 s32, s4, 13
    s_lshl_b32 s33, s40, 5
    s_lshl_b32 s34, s6, 3
    s_add_u32 s45, s32, s33
    s_add_u32 s45, s45, s34
    s_add_u32 s45, s45, {WS_FLAG+FL_OB}
    s_lshl_b32 s32, s4, 14
    s_lshl_b32 s33, s5, 4
    s_lshl_b32 s34, s6, 2
    s_add_u32 s46, s32, s33
    s_add_u32 s46, s46, s34
    s_add_u32 s46, s46, {WS_FLAG+FL_PO}
    s_mov_b32 s47, 0
    s_mov_b32 s42, 0
    s_mov_b32 s52, 0
    """)
    def dma(bufreg):
        out=[]
        for n in range(16):
            out.append(f"s_lshl_b32 s32, s6, 14\ns_add_u32 s32, s32, {bufreg}\ns_add_u32 m0, s32, {(n>>2)*4096}\ns_add_u32 s33, s43, {(n>>2)*4096}\nbuffer_load_dwordx4 v2, s[8:11], s33 offen offset:{(n&3)*1024} sc1 lds")
        return out
    def adv(): a("s_add_u32 s43, s43, 262144\ns_add_u32 s45, s45, 128")
    cfg['init_wait'](a,lab)
    wait_flags(a,lab+'w0',2,'s45',fail,spin)
    for d in dma_list(16,14,'s42'): a(d)
    adv()
    a("s_waitcnt vmcnt(0)\ns_barrier")
    a.label(lab+'_unit')
    roles.tsp(a,0,1,'s47',('s4','s5','s6'))
    a("s_lshl_b32 s32, s55, 15\ns_add_u32 s32, s32, s42\nv_add_u32 v5, s32, v1\ns_xor_b32 s50, s42, 65536")
    poll_issue(a,2,'s45',10,9)
    XR=64; NR=8; AHEAD=6
    def rd(i): a(f"ds_read_b128 v[{XR+4*(i%NR)}:{XR+4*(i%NR)+3}], v5 offset:{i*1024}")
    for i in range(AHEAD): rd(i)
    dl=dma_list(16,14,'s50')
    def mf(ks):
        r=XR+4*(ks%NR)
        for T in range(2):
            acc=32+16*T; c='0' if ks==0 else f"v[{acc}:{acc+15}]"; b=(T*32+ks)*4
            a(f"v_mfma_f32_32x32x16_bf16 v[{acc}:{acc+15}], a[{b}:{b+3}], v[{r}:{r+3}], {c}")
    def check():
        a(f"s_cmp_eq_u32 s52, 0\ns_cbranch_scc1 {lab}_nq0\ns_waitcnt vmcnt(1)")
        set_flag(a,'s46',vtmp=(11,12))
        a(f"""
        s_add_u32 s46, s46, 256
        s_mov_b32 s52, 0
        s_waitcnt vmcnt(1)
        s_branch {lab}_nq
{lab}_nq0:
        s_waitcnt vmcnt(0)
{lab}_nq:
        s_mov_b32 s48, 0
        s_cmp_ge_u32 s47, 63
        s_cselect_b32 s49, 1, 0
        v_cmp_eq_u32 vcc, 0, v9
        s_cmp_eq_u64 vcc, 0
        s_cselect_b32 s48, 1, 0
        s_cmp_eq_u32 s49, 1
        s_cselect_b32 s48, 0, s48
        """)
    gemm_loop(a,lab,32,mf,rd,AHEAD,12,check,dl)
    roles.tsp(a,0,2,'s47',('s4','s5','s6'))
    L=a.new(lab+'r')
    a(f"""
    s_lshl_b32 s32, s6, 12
    s_add_u32 s32, s32, 131072
    v_add_u32 v6, s32, v1
    s_xor_b32 s32, s6, 2
    s_lshl_b32 s32, s32, 12
    s_add_u32 s32, s32, 131072
    v_add_u32 v7, s32, v1
    s_cmp_eq_u32 s55, 0
    s_cbranch_scc1 {L}_0
    """)
    for q in range(4): a(f"ds_write_b128 v6, v[{32+4*q}:{35+4*q}] offset:{q*1024}")
    for r_ in range(16): a(f"v_mov_b32 v{32+r_}, v{48+r_}")
    a(f"s_branch {L}_1\n{L}_0:")
    for q in range(4): a(f"ds_write_b128 v6, v[{48+4*q}:{51+4*q}] offset:{q*1024}")
    a(f"{L}_1:\ns_waitcnt lgkmcnt(0)\ns_barrier")
    for q in range(4): a(f"ds_read_b128 v[{48+4*q}:{51+4*q}], v7 offset:{q*1024}")
    a("s_waitcnt lgkmcnt(0)")
    for r_ in range(0,16,2): a(f"v_pk_add_f32 v[{32+r_}:{33+r_}], v[{32+r_}:{33+r_}], v[{48+r_}:{49+r_}]")
    pack_tile(a,32,96)
    for f in range(2):
        a(f"buffer_store_dwordx4 v[{96+4*f}:{99+4*f}], v1, s[8:11], s44 offen offset:{f*1024} sc1")
    a(f"""
    s_add_u32 s44, s44, 131072
    s_add_u32 s47, s47, 1
    s_mov_b32 s42, s50
    s_cmp_eq_u32 s48, 0
    s_cbranch_scc1 {lab}_slow
    s_mov_b32 s52, 1
    """)
    adv()
    a(f"""
    s_waitcnt vmcnt(2)
    s_barrier
    s_branch {lab}_unit
{lab}_slow:
    s_waitcnt vmcnt(0)
    """)
    roles.tsp(a,0,3,'s47',('s4','s5','s6'))
    set_flag(a,'s46',vtmp=(11,12))
    a(f"""
    s_add_u32 s46, s46, 256
    s_cmp_ge_u32 s47, 64
    s_cbranch_scc1 {lab}_done
    """)
    wait_flags(a,lab+'ws',2,'s45',fail,spin)
    roles.tsp(a,0,0,'s47',('s4','s5','s6'))
    for d in dma_list(16,14,'s42'): a(d)
    adv()
    a(f"""
    s_waitcnt vmcnt(0)
    s_barrier
    s_branch {lab}_unit
{lab}_done:
    """)
```

```python
import sys
from asmlib import Asm
from common import *
import chain7 as chain, roles, roles2, roles3
KN='interleave_layers__sliding_block__memory_aug_recurrent_mem_tr__prompt_kernel'
INIT='init_ws_kernel'
ALL={'CH','P','O','AH','AWO','F','ATT'}
def desc(K,nv=512,ns=102):
    return f'''
.amdhsa_kernel {K}
  .amdhsa_next_free_vgpr {nv}
  .amdhsa_next_free_sgpr {ns}
  .amdhsa_accum_offset {min(256,(nv+3)//4*4)}
  .amdhsa_group_segment_fixed_size 0
  .amdhsa_kernarg_size 104
  .amdhsa_user_sgpr_count 2
  .amdhsa_user_sgpr_kernarg_segment_ptr 1
  .amdhsa_system_sgpr_workgroup_id_x 1
.end_amdhsa_kernel
'''
def gen_init():
    a=Asm()
    a.label(INIT)
    nflag=FL_END
    a(f"""
    s_cmp_ge_u32 s2, 256
    s_cbranch_scc1 LI_end
    s_load_dwordx2 s[8:9], s[0:1], 96
    s_waitcnt lgkmcnt(0)
    s_mov_b32 s10, 0x10000000
    s_mov_b32 s11, 0x20000
    s_lshl_b32 s3, s2, 8
    v_add_u32 v1, s3, v0
    v_lshlrev_b32 v1, 4, v1                  ; 0 .. 1MB
    v_mov_b32 v4, 0
    v_mov_b32 v5, 0
    v_mov_b32 v6, 0
    v_mov_b32 v7, 0
    v_mov_b32 v8, -1
    v_mov_b32 v9, -1
    v_mov_b32 v10, -1
    v_mov_b32 v11, -1
    s_mov_b32 s12, {WS_FLAG}
    v_cmp_gt_u32 vcc, {nflag}, v1
    s_and_saveexec_b64 s[14:15], vcc
    s_cbranch_execz LI_a
    buffer_store_dwordx4 v[4:7], v1, s[8:11], s12 offen
LI_a:
    s_mov_b64 exec, s[14:15]
    s_mov_b32 s12, {WS_INB}
    buffer_store_dwordx4 v[8:11], v1, s[8:11], s12 offen
    s_mov_b32 s12, {WS_INB+0x100000}
    buffer_store_dwordx4 v[8:11], v1, s[8:11], s12 offen
    s_mov_b32 s12, {WS_MEM}
    v_cmp_gt_u32 vcc, 0x10000, v1
    s_and_saveexec_b64 s[14:15], vcc
    s_cbranch_execz LI_b
    buffer_store_dwordx4 v[8:11], v1, s[8:11], s12 offen
LI_b:
    s_mov_b64 exec, s[14:15]
LI_end:
    s_endpgm
    """)
    out,_,errs=a.finish()
    for e in errs.values(): print('LINT',e,file=sys.stderr)
    return out
def gen(cfg):
    if cfg.get('pf',False) and 'sizes' not in cfg:
        c1=dict(cfg); c1['sizes']={}; c1['sizing']=True
        gen2(c1)
        cfg=dict(cfg); cfg['sizes']=c1['sizes']
    return gen2(cfg)
def gen2(cfg):
    en=cfg.get('roles',ALL)
    roles.TS=cfg.get('ts',False)
    roles.TSP=cfg.get('tsp',False)
    a=Asm(); K=KN
    a.label(K)
    selfinit=''
    if not cfg.get('init',False):
        selfinit=f'''s_mul_i32 s24, s2, 1280
    s_add_u32 s24, s24, {WS_FLAG}
    v_lshlrev_b32 v2, 4, v0
    s_lshl_b32 s25, s6, 10
    v_add_u32 v2, s25, v2
    v_mov_b32 v4, 0
    v_mov_b32 v5, 0
    v_mov_b32 v6, 0
    v_mov_b32 v7, 0
    v_cmp_gt_u32 vcc, 1280, v2
    s_and_saveexec_b64 s[26:27], vcc
    s_cbranch_execz L_si0
    buffer_store_dwordx4 v[4:7], v2, s[8:11], s24 offen sc1
L_si0:
    s_mov_b64 exec, s[26:27]
    s_waitcnt vmcnt(0)
    s_barrier
    s_cmp_lg_u32 s6, 0
    s_cbranch_scc1 L_si1
    v_mov_b32 v3, 1
    v_mov_b32 v4, 32
    s_mov_b64 exec, 1
    buffer_atomic_add v3, v4, s[12:15], 0 offen
    s_mov_b64 exec, -1
L_si1:'''
    clk0=''
    if cfg.get('clk'):
        clk0='''s_memtime s[100:101]
    s_memrealtime s[98:99]
    s_waitcnt lgkmcnt(0)
    s_lshl_b32 s24, s2, 5
    s_add_u32 s24, s24, 0xCB00000
    v_mov_b32 v2, s100
    v_mov_b32 v3, s98
    v_mov_b32 v4, s3
    v_mov_b32 v5, s5
    v_mov_b32 v6, 0
    s_mov_b64 exec, 1
    buffer_store_dwordx4 v[2:5], v6, s[8:11], s24 offen
    s_mov_b64 exec, -1'''
    tss=''
    if cfg.get('ts'):
        tss='''s_memrealtime s[98:99]
    s_waitcnt lgkmcnt(0)
    v_mov_b32 v3, s98
    s_lshl_b32 s24, s3, 2
    s_add_u32 s24, s24, 160
    v_mov_b32 v4, s24
    s_mov_b64 exec, 1
    buffer_store_dword v3, v4, s[12:15], 0 offen
    s_mov_b64 exec, -1'''
    a(f"""
    s_cmp_ge_u32 s2, 256
    s_cbranch_scc1 L_end
    s_load_dwordx2 s[8:9], s[0:1], 96        ; ws
    s_load_dwordx2 s[12:13], s[0:1], 88      ; dbg
    s_getreg_b32 s3, hwreg(HW_REG_XCC_ID, 0, 4)
    v_lshrrev_b32 v1, 6, v0
    s_nop 0
    v_readfirstlane_b32 s6, v1
    v_and_b32 v0, 63, v0                     ; lane
    s_waitcnt lgkmcnt(0)
    s_mov_b32 s10, 0x10000000
    s_mov_b32 s11, 0x20000
    s_mov_b32 s14, 256
    s_mov_b32 s15, 0x20000
    s_cmp_lg_u32 s6, 0
    s_cbranch_scc1 L_claimed
    v_mov_b32 v3, 1
    s_lshl_b32 s24, s3, 2
    v_mov_b32 v4, s24
    s_mov_b64 exec, 1
    buffer_atomic_add v3, v4, s[12:15], 0 offen sc0
    s_waitcnt vmcnt(0)
    v_mov_b32 v5, 0
    ds_write_b32 v5, v3
    s_waitcnt lgkmcnt(0)
    s_mov_b64 exec, -1
L_claimed:
    s_barrier
    v_mov_b32 v5, 0
    ds_read_b32 v3, v5
    s_waitcnt lgkmcnt(0)
    v_readfirstlane_b32 s5, v3
    s_barrier
    s_cmp_ge_u32 s5, 32
    s_cbranch_scc1 L_end
    {selfinit}
    {tss}
    {clk0}
    s_cmp_lt_u32 s3, 2
    s_cbranch_scc1 L_CH
    s_cmp_lt_u32 s3, 4
    s_cbranch_scc1 L_P
    s_cmp_eq_u32 s3, 4
    s_cbranch_scc1 L_ATT
    s_cmp_eq_u32 s3, 5
    s_cbranch_scc1 L_O
    s_cmp_eq_u32 s3, 6
    s_cbranch_scc1 L_AH
    s_cmp_lt_u32 s5, 8
    s_cbranch_scc1 L_AWO
    s_branch L_F
L_fail:
    s_load_dwordx2 s[12:13], s[0:1], 88
    s_waitcnt lgkmcnt(0)
    s_mov_b32 s14, 256
    s_mov_b32 s15, 0x20000
    s_lshl_b32 s24, s3, 2
    s_add_u32 s24, s24, 128
    v_mov_b32 v4, s24
    s_add_u32 s25, s5, 1
    v_mov_b32 v3, s25
    s_mov_b64 exec, 1
    buffer_store_dword v3, v4, s[12:15], 0 offen
L_end:
    s_endpgm
    """)
    fail='L_fail'
    def init_wait(a_,name,cnt_off=32,target=256,sb=92):
        if cfg.get('init',False): return
        a_(f'''
        s_load_dwordx2 s[{sb}:{sb+1}], s[0:1], 88
        s_waitcnt lgkmcnt(0)
        s_mov_b32 s{sb+2}, 256
        s_mov_b32 s{sb+3}, 0x20000
        s_mov_b32 s{sb+4}, 0
{name}_iw:
        v_mov_b32 v9, {cnt_off}
        buffer_load_dword v9, v9, s[{sb}:{sb+3}], 0 offen sc1
        s_waitcnt vmcnt(0)
        v_readfirstlane_b32 s{sb+5}, v9
        s_cmp_ge_u32 s{sb+5}, {target}
        s_cbranch_scc1 {name}_iwd
        s_add_u32 s{sb+4}, s{sb+4}, 1
        s_cmp_gt_u32 s{sb+4}, {cfg.get('spin',roles.SPIN_DEFAULT)}
        s_cbranch_scc1 L_fail
        s_sleep 2
        s_branch {name}_iw
{name}_iwd:
        ''')
    cfg=dict(cfg); cfg['init_wait']=init_wait
    marks={}
    def begin(name):
        marks[name]=len(a.lines)
        if cfg.get('pf',False) and not cfg.get('sizing'):
            roles.prefetch_code(a,'LB_'+name,'LE_'+name,cfg['sizes'].get(name,4096)+4096)
        a.label('LB_'+name)
        marks[name]=len(a.lines)
    def end(name):
        a.label('LE_'+name)
        if cfg.get('sizing'): cfg['sizes'][name]=(len(a.lines)-marks[name])*7
    END='s_branch L_fin' if cfg.get('clk') else 's_endpgm'
    a.label('L_F')
    if 'F' in en:
        a("""
        s_sub_u32 s5, s5, 8
        s_lshr_b32 s7, s5, 2
        s_and_b32 s5, s5, 3
        s_mov_b32 s4, 0
        s_cmp_eq_u32 s7, 0
        s_cbranch_scc1 L_F0
        s_cmp_eq_u32 s7, 2
        s_cbranch_scc1 L_F2
        s_cmp_eq_u32 s7, 4
        s_cbranch_scc1 L_F3
        s_mov_b32 s4, 1
        s_cmp_eq_u32 s7, 5
        s_cbranch_scc1 L_F2
        s_lshr_b32 s4, s7, 1
        """)
        begin('FT1'); roles3.emit_F(a,cfg,'T1',fail); end('FT1'); a("s_endpgm")
        a.label('L_F0'); begin('FT0'); roles3.emit_F(a,cfg,'T0',fail); end('FT0'); a("s_endpgm")
        a.label('L_F2'); begin('FT2'); roles3.emit_F(a,cfg,'T2',fail); end('FT2'); a("s_endpgm")
        a.label('L_F3'); begin('FT3'); roles3.emit_F(a,cfg,'T3',fail); end('FT3')
    a(END)
    a.label('L_AWO')
    if 'AWO' in en:
        a("s_lshr_b32 s4, s5, 2\ns_and_b32 s5, s5, 3")
        begin('AWO'); roles3.emit_AWO(a,cfg,fail); end('AWO')
    a(END)
    a.label('L_ATT')
    if 'ATT' in en:
        begin('ATT'); roles3.emit_ATT(a,cfg,fail); end('ATT')
    a(END)
    a.label('L_AH')
    if 'AH' in en: begin('AH'); roles2.emit_AH(a,cfg,fail); end('AH')
    a(END)
    def gate(name):
        if not cfg.get('gate',True): return
        a(f"s_cmp_eq_u32 s4, 0\ns_cbranch_scc1 {name}_ng0")
        init_wait(a,name+'gi')
        a.label(name+'_ng0')
        a(f"s_cmp_eq_u32 s4, 0\ns_cbranch_scc1 {name}_ng\ns_mov_b32 s12, {WS_FLAG+FL_XN+cfg.get('gate_t',1)*64*128+cfg.get('gate_s',0)*128}")
        roles.wait_flags(a,name+'g',16,'s12',fail,cfg.get('spin',roles.SPIN_DEFAULT),vtmp=(8,9),sleep=8)
        a.label(name+'_ng')
    a.label('L_O')
    if 'O' in en:
        a("s_lshr_b32 s4, s5, 4\ns_and_b32 s5, s5, 15")
        gate('L_O')
        begin('O'); roles3.emit_O5(a,cfg,fail); end('O')
    a(END)
    a.label('L_P')
    if 'P' in en:
        a("s_sub_u32 s4, s3, 2")
        gate('L_P')
        begin('P'); roles3.emit_P(a,cfg,fail); end('P')
    a(END)
    a.label('L_CH')
    if 'CH' in en:
        a("s_mov_b32 s4, s3")
        gate('L_CH')
        c=dict(FL_P=FL_P,FL_CH=FL_CH); c.update(cfg)
        begin('CH'); chain.emit_chain(a,c,fail); end('CH')
        if cfg.get('stamps') or cfg.get('tot'):
            a("""
            s_load_dwordx2 s[12:13], s[0:1], 96
            s_waitcnt lgkmcnt(0)
            s_mov_b32 s14, 0x10000000
            s_mov_b32 s15, 0x20000
            s_memtime s[70:71]
            s_waitcnt lgkmcnt(0)
            s_sub_u32 s75, s70, s74
            s_lshl_b32 s32, s4, 5
            s_add_u32 s32, s32, s5
            s_lshl_b32 s32, s32, 2
            s_add_u32 s32, s32, s6
            s_lshl_b32 s32, s32, 6
            s_add_u32 s32, s32, 0xC800000
            v_mov_b32 v32, s32
            """)
            for k in range(10): a(f"v_mov_b32 v{36+k}, s{76+k}")
            a("""
            v_mov_b32 v45, s88
            v_mov_b32 v46, s75
            v_mov_b32 v47, s59
            s_mov_b64 exec, 1
            buffer_store_dwordx4 v[36:39], v32, s[12:15], 0 offen
            buffer_store_dwordx4 v[40:43], v32, s[12:15], 0 offen offset:16
            buffer_store_dwordx4 v[44:47], v32, s[12:15], 0 offen offset:32
            s_mov_b64 exec, -1
            """)
        a("""
        s_cmp_eq_u32 s59, 0
        s_cbranch_scc1 L_CHend
        s_branch L_fail
L_CHend:
        """)
    a(END)
    if cfg.get('clk'):
        a('''
L_fin:
    s_cmp_lg_u32 s6, 0
    s_cbranch_scc1 L_fin2
    s_memtime s[100:101]
    s_memrealtime s[98:99]
    s_waitcnt lgkmcnt(0)
    s_lshl_b32 s24, s2, 5
    s_add_u32 s24, s24, 0xCB00010
    v_mov_b32 v2, s100
    v_mov_b32 v3, s98
    v_mov_b32 v5, 0
    s_mov_b64 exec, 1
    buffer_store_dwordx2 v[2:3], v5, s[8:11], s24 offen
L_fin2:
    s_endpgm
''')
    out,total,errs=a.finish()
    for e in list(errs.values())[:10]: print('LINT',e,file=sys.stderr)
    print('nops inserted',total,'instrs',len(out),file=sys.stderr)
    withinit=cfg.get('init',False)
    if withinit:
        hdr=f"""; @launch kernel={INIT} grid=(256,1,1) block=(256,1,1) lds=0
; @launch kernel={K} grid=(256,1,1) block=(256,1,1) lds=163840
"""
    else:
        hdr=f"; @launch grid=(256,1,1) block=(256,1,1) lds=163840\n"
    txt=hdr+f""".amdgcn_target "amdgcn-amd-amdhsa--gfx950"
.text
.globl {K}
.p2align 8
.type {K},@function
"""+'\n'.join(out)+'\n'
    if withinit:
        txt+=f""".globl {INIT}
.p2align 8
.type {INIT},@function
"""+'\n'.join(gen_init())+'\n'
    txt+='.section .rodata,"a"\n.p2align 6\n'+desc(K)
    if withinit: txt+='.p2align 6\n'+desc(INIT,16,32)
    return txt
if __name__=='__main__':
    s=gen(dict())
    open('m.s','w').write(s)
    print(len(s),'bytes')
    import subprocess
    r=subprocess.run(['clang','-x','assembler','-target','amdgcn-amd-amdhsa','-mcpu=gfx950','-c','m.s','-o','m.o'],capture_output=True,text=True); print(r.stderr)
```

```python
from common import *
import roles
from roles import wait_flags, set_flag, flagval, tr_addr32, pack_tile, causal_masks, SPIN_DEFAULT

def poll_issue(a, n, soff, va, vb):
    a(f"""
    v_mbcnt_lo_u32_b32 v{va}, -1, 0
    v_mbcnt_hi_u32_b32 v{va}, -1, v{va}
    v_min_u32 v{va}, {n-1}, v{va}
    v_lshlrev_b32 v{va}, 2, v{va}
    buffer_load_dword v{vb}, v{va}, s[8:11], {soff} offen sc1
    """)

def emit_F(a, cfg, typ, fail):
    spin=cfg.get('spin',SPIN_DEFAULT)
    lab=a.new('F'+typ)
    npart={'T0':0,'T1':1,'T2':2,'T3':2}[typ]
    nfl={'T0':0,'T1':8,'T2':64,'T3':64}[typ]
    flstep={'T0':0,'T1':128,'T2':256,'T3':256}[typ]
    a(f"""
    v_and_b32 v1, 15, v0
    v_bfe_u32 v2, v0, 4, 1
    v_lshrrev_b32 v3, 5, v0
    v_lshlrev_b32 v4, 4, v1
    v_lshl_add_u32 v4, v2, 9, v4
    v_lshl_add_u32 v4, v3, 10, v4
    s_lshl_b32 s12, s6, 13
    s_lshl_b32 s13, s5, 8
    s_add_u32 s12, s12, s13
    v_add_u32 v4, s12, v4
    s_lshl_b32 s13, s5, 4
    v_add_u32 v5, s13, v1
    v_lshlrev_b32 v5, 10, v5
    v_lshl_add_u32 v5, v3, 5, v5
    v_lshl_add_u32 v5, v2, 4, v5
    s_lshl_b32 s13, s6, 8
    v_add_u32 v5, s13, v5
    v_lshlrev_b32 v6, 3, v1
    s_lshl_b32 s13, s6, 7
    v_add_u32 v7, s13, v6
    """)
    if typ=='T0':
        a(f"""
        s_load_dwordx2 s[16:17], s[0:1], 0
        s_waitcnt lgkmcnt(0)
        s_mov_b32 s18, {2048*1024}
        s_mov_b32 s19, 0x20000
        s_mov_b32 s20, 0
        s_mov_b32 s22, {xs(T_X0,0)}
        s_mov_b32 s23, {xs(T_XNA1,0)}
        s_mov_b32 s24, {WS_FLAG+FL_XN+0*64*128}
        """)
    elif typ=='T1':
        a(f"""
        s_mul_i32 s13, s4, {6*64*32768}
        s_add_u32 s20, s13, {xs(T_X0,0)}
        s_add_u32 s21, s13, {xs(T_YA1,0)}
        s_add_u32 s22, s13, {xs(T_X1,0)}
        s_add_u32 s23, s13, {xs(T_XNB1,0)}
        s_lshl_b32 s13, s4, 14
        s_add_u32 s24, s13, {WS_FLAG+FL_XN+1*64*128}
        s_lshl_b32 s13, s4, 13
        s_add_u32 s25, s13, {WS_FLAG+FL_YA}
        """)
    elif typ=='T2':
        a(f"""
        s_mov_b32 s20, {xs(T_X1,0)}
        s_mov_b32 s21, {WS_PO}
        s_mov_b32 s22, {xs(T_X2,0)}
        s_mov_b32 s23, {xs(T_XNA2,0)}
        s_mov_b32 s24, {WS_FLAG+FL_XN+2*64*128}
        s_mov_b32 s25, {WS_FLAG+FL_PO}
        """)
    else:
        a(f"""
        s_load_dwordx2 s[16:17], s[0:1], 80
        s_waitcnt lgkmcnt(0)
        s_mov_b32 s18, {2048*1024}
        s_mov_b32 s19, 0x20000
        s_mov_b32 s20, {xs(T_X3,0)}
        s_mov_b32 s21, {WS_PO+64*131072}
        s_mov_b32 s22, 0
        s_mov_b32 s25, {WS_FLAG+FL_PO+64*256}
        """)
    a(f"""
    s_lshl_b32 s13, s5, 4
    s_lshl_b32 s14, s6, 2
    s_add_u32 s13, s13, s14
    {'s_add_u32 s24, s24, s13' if typ!='T3' else ''}
    s_mov_b32 s26, 0
    v_mov_b32 v8, 0x3f803f80
    s_mov_b32 s27, 0xffff0000
    s_mov_b32 s30, 0
    s_mov_b32 s31, 0
    """)
    SETS=[(16,32,48),(192,208,224)]
    W=64
    NL={'T0':4,'T1':8,'T2':12,'T3':12}[typ]
    NS={'T0':8,'T1':8,'T2':8,'T3':4}[typ]
    def loads(st):
        X,P0,P1=SETS[st]
        if typ=='T0':
            for j in range(4): a(f"buffer_load_dwordx4 v[{X+4*j}:{X+4*j+3}], v5, s[16:19], s20 offen offset:{64*j}")
            a("s_add_u32 s20, s20, 32768")
        else:
            a("s_add_u32 s13, s20, 4096\ns_add_u32 s14, s21, 4096")
            if npart==2: a("s_add_u32 s28, s21, 32768\ns_add_u32 s29, s28, 4096")
            for j in range(4):
                so=lambda b,b2: (b if j<2 else b2)
                a(f"buffer_load_dwordx4 v[{P0+4*j}:{P0+4*j+3}], v4, s[8:11], {so('s21','s14')} offen offset:{2048*(j&1)} sc1")
                if npart==2: a(f"buffer_load_dwordx4 v[{P1+4*j}:{P1+4*j+3}], v4, s[8:11], {so('s28','s29')} offen offset:{2048*(j&1)} sc1")
                a(f"buffer_load_dwordx4 v[{X+4*j}:{X+4*j+3}], v4, s[8:11], {so('s20','s13')} offen offset:{2048*(j&1)} sc1")
            a(f"s_add_u32 s20, s20, 32768\ns_add_u32 s21, s21, {32768 if typ=='T1' else 131072}\ns_add_u32 s25, s25, {flstep}")
    def flag_prev():
        if typ=='T3': return
        set_flag(a,'s24')
        a("s_add_u32 s24, s24, 128")
    if nfl: wait_flags(a,lab+'w0',nfl,'s25',fail,spin)
    loads(0)
    def iteration(st):
        X,P0,P1=SETS[st]; L=f"{lab}_i{st}"
        a.label(L)
        if nfl: poll_issue(a,nfl,'s25',10,9)
        np_=1 if nfl else 0
        a(f"""
        s_cmp_eq_u32 s31, 0
        s_cbranch_scc1 {L}_w1
        s_waitcnt vmcnt({NS+np_})
        s_branch {L}_w2
{L}_w1:
        s_waitcnt vmcnt({np_})
{L}_w2:
        """)
        if typ=='T0':
            for j in range(4):
                a(f"v_permlane16_swap_b32 v{X+4*j}, v{X+4*j+2}\nv_permlane16_swap_b32 v{X+4*j+1}, v{X+4*j+3}")
        else:
            for r in range(16):
                w0=W+2*r
                if npart==2:
                    a(f"""
                    v_lshlrev_b32 v{w0}, 16, v{P0+r}
                    v_and_b32 v{w0+1}, s27, v{P0+r}
                    v_lshlrev_b32 v12, 16, v{P1+r}
                    v_and_b32 v13, s27, v{P1+r}
                    v_pk_add_f32 v[{w0}:{w0+1}], v[{w0}:{w0+1}], v[12:13]
                    v_cvt_pk_bf16_f32 v{P0+r}, v{w0}, v{w0+1}
                    """)
                a(f"""
                v_lshlrev_b32 v{w0}, 16, v{P0+r}
                v_and_b32 v{w0+1}, s27, v{P0+r}
                v_lshlrev_b32 v12, 16, v{X+r}
                v_and_b32 v13, s27, v{X+r}
                v_pk_add_f32 v[{w0}:{w0+1}], v[{w0}:{w0+1}], v[12:13]
                v_cvt_pk_bf16_f32 v{X+r}, v{w0}, v{w0+1}
                """)
        a(f"""
        s_waitcnt vmcnt(0)
        s_cmp_eq_u32 s30, 0
        s_cbranch_scc1 {L}_nf
        """)
        flag_prev()
        a(f"""
        s_mov_b32 s30, 0
{L}_nf:
        s_mov_b32 s31, 0
        s_cmp_ge_u32 s26, 63
        s_cbranch_scc1 {L}_np
        """)
        if nfl:
            a(f"v_cmp_eq_u32 vcc, 0, v9\ns_cbranch_vccnz {L}_np")
        a("s_mov_b32 s31, 1")
        loads(1-st)
        a.label(L+'_np')
        if typ=='T3':
            for j in range(4):
                a(f"v_permlane16_swap_b32 v{X+4*j}, v{X+4*j+2}\nv_permlane16_swap_b32 v{X+4*j+1}, v{X+4*j+3}")
            for j in range(4): a(f"buffer_store_dwordx4 v[{X+4*j}:{X+4*j+3}], v5, s[16:19], s22 offen offset:{64*j}")
            a("s_add_u32 s22, s22, 32768")
        else:
            a("s_add_u32 s13, s22, 4096")
            for j in range(4):
                a(f"buffer_store_dwordx4 v[{X+4*j}:{X+4*j+3}], v4, s[8:11], {'s22' if j<2 else 's13'} offen offset:{2048*(j&1)} sc1")
            a("v_mov_b32 v12, 0\nv_mov_b32 v13, 0\nv_mov_b32 v14, 0\nv_mov_b32 v15, 0")
            for r in range(0,16,2):
                a(f"v_dot2_f32_bf16 v12, v{X+r}, v8, v12\nv_dot2_f32_bf16 v13, v{X+r}, v{X+r}, v13\nv_dot2_f32_bf16 v14, v{X+r+1}, v8, v14\nv_dot2_f32_bf16 v15, v{X+r+1}, v{X+r+1}, v15")
            a(f"""
            v_pk_add_f32 v[12:13], v[12:13], v[14:15]
            v_mov_b32 v10, v12
            v_mov_b32 v11, v13
            v_permlane16_swap_b32 v12, v10
            v_permlane16_swap_b32 v13, v11
            v_pk_add_f32 v[12:13], v[12:13], v[10:11]
            v_mov_b32 v10, v12
            v_mov_b32 v11, v13
            v_permlane32_swap_b32 v12, v10
            v_permlane32_swap_b32 v13, v11
            v_pk_add_f32 v[12:13], v[12:13], v[10:11]
            s_mov_b64 exec, 0xffff
            ds_write_b64 v7, v[12:13] offset:{512*st}
            s_mov_b64 exec, -1
            s_waitcnt lgkmcnt(0)
            s_barrier
            ds_read_b64 v[10:11], v6 offset:{512*st}
            ds_read_b64 v[12:13], v6 offset:{512*st+128}
            ds_read_b64 v[14:15], v6 offset:{512*st+256}
            ds_read_b64 v[{W}:{W+1}], v6 offset:{512*st+384}
            s_waitcnt lgkmcnt(0)
            v_pk_add_f32 v[10:11], v[10:11], v[12:13]
            v_pk_add_f32 v[14:15], v[14:15], v[{W}:{W+1}]
            v_pk_add_f32 v[10:11], v[10:11], v[14:15]
            v_mul_f32 v10, 0x3b000000, v10
            v_mul_f32 v11, 0x3b000000, v11
            v_fma_f32 v11, -v10, v10, v11
            v_max_f32 v11, 0, v11
            v_cvt_pk_bf16_f32 v14, v10, v11
            v_lshlrev_b32 v12, 16, v14
            v_and_b32 v11, s27, v14
            v_add_f32 v11, 0x3727c5ac, v11
            v_cvt_pk_bf16_f32 v11, v11, v11
            v_and_b32 v11, s27, v11
            v_sqrt_f32 v11, v11
            v_mov_b32 v13, v12
            v_cvt_pk_bf16_f32 v11, v11, v11
            v_and_b32 v11, s27, v11
            v_rcp_f32 v14, v11
            s_nop 0
            v_mov_b32 v15, v14
            """)
            for r in range(16):
                w0=W+2*r
                a(f"""
                v_lshlrev_b32 v{w0}, 16, v{X+r}
                v_and_b32 v{w0+1}, s27, v{X+r}
                v_pk_add_f32 v[{w0}:{w0+1}], v[{w0}:{w0+1}], v[12:13] neg_lo:[0,1] neg_hi:[0,1]
                v_cvt_pk_bf16_f32 v{P0+r}, v{w0}, v{w0+1}
                v_lshlrev_b32 v{w0}, 16, v{P0+r}
                v_and_b32 v{w0+1}, s27, v{P0+r}
                v_pk_mul_f32 v[{w0}:{w0+1}], v[{w0}:{w0+1}], v[14:15]
                v_cvt_pk_bf16_f32 v{P0+r}, v{w0}, v{w0+1}
                """)
            a("s_add_u32 s13, s23, 4096")
            for j in range(4):
                a(f"buffer_store_dwordx4 v[{P0+4*j}:{P0+4*j+3}], v4, s[8:11], {'s23' if j<2 else 's13'} offen offset:{2048*(j&1)} sc1")
            a("s_add_u32 s22, s22, 32768\ns_add_u32 s23, s23, 32768")
        a(f"""
        s_mov_b32 s30, 1
        s_add_u32 s26, s26, 1
        s_cmp_eq_u32 s31, 1
        s_cbranch_scc1 {lab}_i{1-st}
        s_waitcnt vmcnt(0)
        """)
        flag_prev()
        a(f"""
        s_mov_b32 s30, 0
        s_cmp_ge_u32 s26, 64
        s_cbranch_scc1 {lab}_done
        """)
        if nfl: wait_flags(a,L+'ws',nfl,'s25',fail,spin)
        loads(1-st)
        if st==1: a(f"s_branch {lab}_i0")
    iteration(0); iteration(1)
    a.label(lab+'_done')

def emit_AWO(a, cfg, fail):
    spin=cfg.get('spin',SPIN_DEFAULT)
    lab=a.new('AWO')
    a("""
    s_load_dwordx2 s[12:13], s[0:1], 16      ; A_wo
    s_waitcnt lgkmcnt(0)
    s_mov_b32 s14, 524288
    s_mov_b32 s15, 0x20000
    v_lshrrev_b32 v61, 5, v0
    v_and_b32 v60, 31, v0
    s_lshl_b32 s32, s5, 9
    """)
    for var in range(2):
        a(f"""
        v_add_u32 v62, {2*var}, v61
        v_lshlrev_b32 v62, 2, v62
        v_xor_b32 v62, v60, v62
        v_lshlrev_b32 v62, 4, v62
        v_lshl_add_u32 v62, v61, 10, v62
        v_add_u32 v{40+var}, s32, v62
        """)
    a("s_lshl_b32 s32, s6, 3")
    tr_addr32(a,44,'s32',512,lambda r,o: a(f"v_lshlrev_b32 v{o}, 2, v{r}"),0)
    a("v_xor_b32 v45, 64, v44\nv_add_u32 v46, 0x10000, v44\nv_add_u32 v47, 0x10000, v45")
    def wreg(T,ks,p):
        b=(T*32+ks)*4+2*p; return f"a[{b}:{b+1}]"
    for rnd in range(2):
        a(f"s_lshl_b32 s33, s6, 16\ns_add_u32 s33, s33, {rnd*256*1024}\ns_lshl_b32 s34, s6, 15")
        for n in range(32):
            a(f"s_add_u32 m0, s34, {2*n*512}\ns_add_u32 s35, s33, {2*n*1024}\nbuffer_load_dwordx4 v{40+(n&1)}, s[12:15], s35 offen lds")
        a("s_waitcnt vmcnt(0)\ns_barrier")
        for ksl in range(16):
            ks=16*rnd+ksl
            for T in range(2):
                for p in range(2):
                    off=(ksl&7)*16*512+p*8*512
                    a(f"ds_read_b64_tr_b16 {wreg(T,ks,p)}, v{44+T+(2 if ksl>=8 else 0)} offset:{off}")
            if ksl%2==1: a("s_waitcnt lgkmcnt(4)")
        a("s_waitcnt lgkmcnt(0)\ns_barrier")
    a(f"""
    v_lshlrev_b32 v1, 4, v0
    s_lshl_b32 s32, s6, 13
    v_add_u32 v2, s32, v1
    s_lshl_b32 s32, s5, 14
    s_lshl_b32 s33, s6, 12
    s_add_u32 s32, s32, s33
    v_add_u32 v3, s32, v1
    s_mul_i32 s32, s4, {6*64*32768}
    s_add_u32 s43, s32, {xs(T_OA1,0)}
    s_add_u32 s44, s32, {xs(T_YA1,0)}
    s_lshl_b32 s32, s4, 13
    s_add_u32 s45, s32, {WS_FLAG+FL_OA}
    s_lshl_b32 s33, s5, 4
    s_lshl_b32 s34, s6, 2
    s_add_u32 s33, s33, s34
    s_add_u32 s46, s32, {WS_FLAG+FL_YA}
    s_add_u32 s46, s46, s33
    s_mov_b32 s40, 0
    s_mov_b32 s42, 0
    s_mov_b32 s47, 0
    """)
    def dma(bufreg):
        out=[]
        for n in range(8):
            out.append(f"s_lshl_b32 s32, s6, 13\ns_add_u32 s32, s32, {bufreg}\ns_add_u32 m0, s32, {(n>>2)*4096}\ns_add_u32 s33, s43, {(n>>2)*4096}\nbuffer_load_dwordx4 v2, s[8:11], s33 offen offset:{(n&3)*1024} sc1 lds")
        return out
    wait_flags(a,lab+'w0',32,'s45',fail,spin)
    for d in dma('s42'): a(d)
    a("s_add_u32 s43, s43, 32768\ns_add_u32 s45, s45, 128\ns_waitcnt vmcnt(0)\ns_barrier")
    a.label(lab+'_unit')
    a("v_add_u32 v5, s42, v1\ns_xor_b32 s50, s42, 32768")
    poll_issue(a,32,'s45',10,9)
    XR=64; NR=8; AHEAD=6
    def rd(i): a(f"ds_read_b128 v[{XR+4*(i%NR)}:{XR+4*(i%NR)+3}], v5 offset:{i*1024}")
    for i in range(AHEAD): rd(i)
    dl=dma('s50')
    for ks in range(32):
        r=XR+4*(ks%NR)
        a(f"s_waitcnt lgkmcnt({min(AHEAD-1,31-ks)})")
        for T in range(2):
            acc=32+16*T; c='0' if ks==0 else f"v[{acc}:{acc+15}]"
            b=(T*32+ks)*4
            a(f"v_mfma_f32_32x32x16_bf16 v[{acc}:{acc+15}], a[{b}:{b+3}], v[{r}:{r+3}], {c}")
        if ks+AHEAD<32: rd(ks+AHEAD)
        if ks==12:
            a(f"""
            s_waitcnt vmcnt(0)
            s_cmp_eq_u32 s47, 0
            s_cbranch_scc1 {lab}_nf
            """)
            set_flag(a,'s46',vtmp=(11,12))
            a(f"""
            s_add_u32 s46, s46, 128
            s_mov_b32 s47, 0
{lab}_nf:
            s_mov_b32 s48, 0
            s_cmp_ge_u32 s40, 63
            s_cselect_b32 s49, 1, 0
            v_cmp_eq_u32 vcc, 0, v9
            s_cmp_eq_u64 vcc, 0
            s_cselect_b32 s48, 1, 0
            s_cmp_eq_u32 s49, 1
            s_cselect_b32 s48, 0, s48
            """)
        if 13<=ks<21:
            L=a.new(lab+'d')
            a(f"s_cmp_eq_u32 s48, 0\ns_cbranch_scc1 {L}")
            a(dl[ks-13])
            a.label(L)
    for T in range(2): pack_tile(a,32+16*T,96+8*T)
    for f in range(4):
        a(f"buffer_store_dwordx4 v[{96+4*f}:{99+4*f}], v3, s[8:11], s44 offen offset:{f*1024} sc1")
    a(f"""
    s_add_u32 s44, s44, 32768
    s_add_u32 s40, s40, 1
    s_mov_b32 s47, 1
    s_mov_b32 s42, s50
    s_cmp_eq_u32 s48, 0
    s_cbranch_scc1 {lab}_slow
    s_add_u32 s43, s43, 32768
    s_add_u32 s45, s45, 128
    s_waitcnt vmcnt(4)
    s_barrier
    s_branch {lab}_unit
{lab}_slow:
    s_waitcnt vmcnt(0)
    """)
    set_flag(a,'s46',vtmp=(11,12))
    a(f"""
    s_add_u32 s46, s46, 128
    s_mov_b32 s47, 0
    s_cmp_ge_u32 s40, 64
    s_cbranch_scc1 {lab}_done
    """)
    wait_flags(a,lab+'ws',32,'s45',fail,spin)
    for d in dma('s42'): a(d)
    a(f"""
    s_add_u32 s43, s43, 32768
    s_add_u32 s45, s45, 128
    s_waitcnt vmcnt(0)
    s_barrier
    s_branch {lab}_unit
{lab}_done:
    """)

def emit_O(a, cfg, fail):
    spin=cfg.get('spin',SPIN_DEFAULT)
    lab=a.new('O')
    a(f"""
    s_load_dwordx2 s[12:13], s[0:1], 64
    s_waitcnt lgkmcnt(0)
    s_mov_b32 s14, 4194304
    s_mov_b32 s15, 0x20000
    s_lshr_b32 s40, s5, 3                    ; kh
    s_and_b32 s41, s5, 7                     ; nq
    v_lshrrev_b32 v61, 3, v0
    v_and_b32 v60, 7, v0
    v_bfe_u32 v62, v61, 1, 1
    v_lshlrev_b32 v62, 2, v62
    v_xor_b32 v62, v60, v62
    v_lshlrev_b32 v62, 4, v62
    v_lshl_add_u32 v62, v61, 10, v62
    s_lshl_b32 s32, s41, 7
    v_add_u32 v40, s32, v62
    s_mov_b32 s32, 0
    """)
    def swz(r,o): a(f"v_lshrrev_b32 v{o}, 1, v{r}\nv_lshlrev_b32 v{o}, 2, v{o}")
    tr_addr32(a,44,'s32',128,swz,0)
    a("s_lshl_b32 s34, s6, 15\nv_add_u32 v44, s34, v44\nv_xor_b32 v45, 64, v44")
    for rnd in range(2):
        a(f"s_lshl_b32 s33, s40, 21\ns_lshl_b32 s35, s6, 19\ns_add_u32 s33, s33, s35\ns_add_u32 s33, s33, {rnd*256*1024}")
        for n in range(32):
            a(f"s_add_u32 m0, s34, {8*n*128}\ns_add_u32 s35, s33, {8*n*1024}\nbuffer_load_dwordx4 v40, s[12:15], s35 offen lds")
        a("s_waitcnt vmcnt(0)")
        for ksl in range(16):
            ks=16*rnd+ksl
            for T in range(2):
                for p in range(2):
                    b=(T*32+ks)*4+2*p
                    a(f"ds_read_b64_tr_b16 a[{b}:{b+1}], v{44+T} offset:{ksl*2048+p*1024}")
            if ksl%2==1: a("s_waitcnt lgkmcnt(4)")
        a("s_waitcnt lgkmcnt(0)")
    a(f"""
    s_barrier
    v_lshlrev_b32 v1, 4, v0
    s_lshl_b32 s32, s4, 24
    s_lshl_b32 s33, s40, 17
    s_lshl_b32 s34, s6, 15
    s_add_u32 s43, s32, s33
    s_add_u32 s43, s43, s34
    s_add_u32 s43, s43, {WS_OB}
    s_lshl_b32 s32, s4, 23
    s_lshl_b32 s33, s40, 15
    s_lshl_b32 s34, s41, 12
    s_add_u32 s44, s32, s33
    s_add_u32 s44, s44, s34
    s_lshl_b32 s34, s6, 10
    s_add_u32 s44, s44, s34
    s_add_u32 s44, s44, {WS_PO}
    s_lshl_b32 s32, s4, 13
    s_lshl_b32 s33, s40, 6
    s_lshl_b32 s34, s6, 4
    s_add_u32 s45, s32, s33
    s_add_u32 s45, s45, s34
    s_add_u32 s45, s45, {WS_FLAG+FL_OB}
    s_lshl_b32 s32, s4, 14
    s_lshl_b32 s33, s5, 4
    s_lshl_b32 s34, s6, 2
    s_add_u32 s46, s32, s33
    s_add_u32 s46, s46, s34
    s_add_u32 s46, s46, {WS_FLAG+FL_PO}
    s_lshl_b32 s32, s6, 13
    v_add_u32 v2, s32, v1
    s_lshl_b32 s32, s6, 11
    v_add_u32 v3, s32, v1
    s_mov_b32 s47, 0                          ; unit
    s_mov_b32 s48, 0
    s_mov_b32 s51, 0
    """)
    XB=64
    def ld(ks):
        return f"s_add_u32 s32, s43, {(ks>>2)*4096}\nbuffer_load_dwordx4 v[{XB+4*ks}:{XB+4*ks+3}], v1, s[8:11], s32 offen offset:{(ks&3)*1024} sc1"
    wait_flags(a,lab+'w0',4,'s45',fail,spin)
    for ks in range(32): a(ld(ks))
    a("s_add_u32 s43, s43, 262144\ns_add_u32 s45, s45, 128\ns_mov_b32 s49, 0")
    a.label(lab+'_unit')
    poll_issue(a,4,'s45',10,9)
    a(f"""
    s_cmp_eq_u32 s49, 0
    s_cbranch_scc1 {lab}_a0
    s_waitcnt vmcnt(33)
    s_branch {lab}_a1
{lab}_a0:
    s_waitcnt vmcnt(32)
{lab}_a1:
    """)
    def mf(ks):
        for T in range(2):
            acc=32+16*T; c='0' if ks==0 else f"v[{acc}:{acc+15}]"; b=(T*32+ks)*4
            a(f"v_mfma_f32_32x32x16_bf16 v[{acc}:{acc+15}], a[{b}:{b+3}], v[{XB+4*ks}:{XB+4*ks+3}], {c}")
    H=8
    for ks in range(H):
        L=a.new(lab+'h')
        a(f"s_cmp_eq_u32 s49, 0\ns_cbranch_scc1 {L}_0\ns_waitcnt vmcnt({33-ks})\ns_branch {L}_1\n{L}_0:\ns_waitcnt vmcnt({32-ks})\n{L}_1:")
        mf(ks)
    a(f"""
    s_waitcnt vmcnt(0)
    s_cmp_eq_u32 s48, 0
    s_cbranch_scc1 {lab}_nf
    """)
    set_flag(a,'s46',vtmp=(11,12))
    a(f"""
    s_add_u32 s46, s46, 256
    s_mov_b32 s48, 0
{lab}_nf:
    s_cmp_ge_u32 s47, 63
    s_cbranch_scc1 {lab}_nostream
    v_cmp_eq_u32 vcc, 0, v9
    s_cbranch_vccnz {lab}_nostream
    s_mov_b32 s49, 1
    """)
    for ks in range(H): a(ld(ks))
    for ks in range(H,32):
        mf(ks); a(ld(ks))
    a(f"""
    s_add_u32 s43, s43, 262144
    s_add_u32 s45, s45, 128
    s_branch {lab}_red
{lab}_nostream:
    s_mov_b32 s49, 0
    """)
    for ks in range(H,32): mf(ks)
    a.label(lab+'_red')
    a("v_add_u32 v4, s51, v2\nv_add_u32 v5, s51, v3")
    for q in range(8): a(f"ds_write_b128 v4, v[{32+4*q}:{35+4*q}] offset:{q*1024}")
    a("s_waitcnt lgkmcnt(0)\ns_barrier")
    R=192
    for w in range(4):
        for q in range(2): a(f"ds_read_b128 v[{R+8*w+4*q}:{R+3+8*w+4*q}], v5 offset:{w*8192+q*1024}")
    a("s_xor_b32 s51, s51, 32768\ns_waitcnt lgkmcnt(0)")
    for r in range(0,8,2):
        a(f"v_pk_add_f32 v[{R+r}:{R+1+r}], v[{R+r}:{R+1+r}], v[{R+8+r}:{R+9+r}]\nv_pk_add_f32 v[{R+16+r}:{R+17+r}], v[{R+16+r}:{R+17+r}], v[{R+24+r}:{R+25+r}]")
    for r in range(0,8,2):
        a(f"v_pk_add_f32 v[{R+r}:{R+1+r}], v[{R+r}:{R+1+r}], v[{R+16+r}:{R+17+r}]")
    for i in range(4): a(f"v_cvt_pk_bf16_f32 v{12+i}, v{R+2*i}, v{R+1+2*i}")
    a(f"""
    buffer_store_dwordx4 v[12:15], v1, s[8:11], s44 offen sc1
    s_add_u32 s44, s44, 131072
    s_add_u32 s47, s47, 1
    s_mov_b32 s48, 1
    s_cmp_eq_u32 s49, 1
    s_cbranch_scc1 {lab}_unit
    s_waitcnt vmcnt(0)
    """)
    set_flag(a,'s46',vtmp=(10,11))
    a(f"""
    s_add_u32 s46, s46, 256
    s_mov_b32 s48, 0
    s_cmp_ge_u32 s47, 64
    s_cbranch_scc1 {lab}_done
    """)
    wait_flags(a,lab+'ws',4,'s45',fail,spin)
    for ks in range(32): a(ld(ks))
    a(f"""
    s_add_u32 s43, s43, 262144
    s_add_u32 s45, s45, 128
    s_branch {lab}_unit
{lab}_done:
    """)

def emit_ATT(a, cfg, fail):
    spin=cfg.get('spin',SPIN_DEFAULT)
    lab=a.new('ATT')
    a(f"""
    s_lshl_b32 s40, s5, 2
    s_add_u32 s40, s40, s6                   ; head
    s_lshl_b32 s32, s4, 11
    s_add_u32 s32, s32, s40                  ; (l*64)*32 + h
    s_mul_i32 s43, s32, {QKV_BLK}
    s_lshl_b32 s44, s32, 12
    s_add_u32 s44, s44, {WS_KM}
    s_lshl_b32 s45, s32, 4
    s_add_u32 s45, s45, {WS_FLAG+FL_CH}
    s_lshl_b32 s49, s32, 5
    s_add_u32 s49, s49, {WS_FLAG+FL_P}
    s_lshl_b32 s33, s4, 13
    s_lshl_b32 s34, s40, 2
    s_add_u32 s46, s33, s34
    s_add_u32 s46, s46, {WS_FLAG+FL_OB}
    s_lshl_b32 s33, s4, 24
    s_lshl_b32 s34, s40, 13
    s_add_u32 s47, s33, s34
    s_add_u32 s47, s47, {WS_OB}
    s_lshl_b32 s42, s6, 12
    v_lshlrev_b32 v1, 4, v0
    v_lshrrev_b32 v60, 5, v0
    v_and_b32 v61, 7, v0
    v_lshlrev_b32 v2, 4, v61
    v_lshl_add_u32 v2, v60, 7, v2
    v_add_u32 v2, s42, v2
    v_and_b32 v61, 31, v0
    v_lshlrev_b32 v3, 4, v61
    v_lshl_add_u32 v3, v60, 3, v3
    v_add_u32 v3, s42, v3
    v_mov_b32 v7, 0xff7fffff
    v_mov_b32 v12, 0x3f803f80
    v_mov_b32 v13, 0x3f803f80
    v_mov_b32 v14, 0x3f803f80
    v_mov_b32 v15, 0x3f803f80
    s_mov_b32 s48, 0x3e0293ee
    s_mov_b32 s50, 0x3e0293ee
    s_mov_b32 s51, 0x3e0293ee
    s_mov_b32 s41, 0                          ; unit
    s_mov_b32 s52, 0
    """)
    causal_masks(a,64)
    def qkv_loads(st):
        B=96*st; out=[]
        for blk,reg in ((1,B+32),(0,B),(2,B+64)):
            for g in range(2):
                for j in range(4):
                    r=reg+4*(4*g+j)
                    pre=f"s_add_u32 s32, s43, {blk*8192+g*4096}\n" if j==0 else ""
                    out.append(pre+f"buffer_load_dwordx4 a[{r}:{r+3}], v1, s[8:11], s32 offen offset:{j*1024} sc1")
        return out
    def adv_fetch(): a(f"s_add_u32 s43, s43, {32*QKV_BLK}\ns_add_u32 s49, s49, 1024")
    wait_flags(a,lab+'w0',8,'s49',fail,spin)
    for x in qkv_loads(0): a(x)
    adv_fetch()
    def polls():
        poll_issue(a,4,'s45',10,30)
        poll_issue(a,8,'s49',11,31)
    polls()
    def iteration(st):
        L=f"{lab}_i{st}"; B=96*st; Q=B; K=B+32; V=B+64
        KM=160; VM=192
        a.label(L)
        a(f"""
        s_cmp_eq_u32 s52, 0
        s_cbranch_scc1 {L}_w0
        s_waitcnt vmcnt(8)
        s_branch {L}_w1
{L}_w0:
        s_waitcnt vmcnt(0)
{L}_w1:
        s_mov_b32 s53, 0
        s_cmp_ge_u32 s41, 63
        s_cbranch_scc1 {L}_p0
        v_cmp_eq_u32 vcc, 0, v31
        s_cbranch_vccnz {L}_p0
        s_mov_b32 s53, 1
{L}_p0:
        v_cmp_eq_u32 vcc, 0, v30
        s_cbranch_vccz {L}_chok
        s_waitcnt vmcnt(0)
        s_cmp_eq_u32 s52, 0
        s_cbranch_scc1 {L}_nf0
        """)
        set_flag(a,'s46',vtmp=(10,11))
        a(f"s_add_u32 s46, s46, 128\ns_mov_b32 s52, 0\n{L}_nf0:")
        wait_flags(a,L+'wc',4,'s45',fail,spin)
        a(f"s_cmp_eq_u32 s53, 1\ns_cbranch_scc1 {L}_chok\ns_cmp_ge_u32 s41, 63\ns_cbranch_scc1 {L}_chok")
        poll_issue(a,8,'s49',11,31)
        a(f"s_waitcnt vmcnt(0)\nv_cmp_eq_u32 vcc, 0, v31\ns_cbranch_vccnz {L}_chok\ns_mov_b32 s53, 1")
        a.label(L+'_chok')
        a("s_mov_b32 m0, s42")
        for j in range(4): a(f"buffer_load_dwordx4 v1, s[8:11], s44 offen offset:{j*1024} sc1 lds")
        nl=qkv_loads(1-st)
        for variant in (1,0):
            VL=f"{L}_v{variant}"
            if variant==1: a(f"s_cmp_eq_u32 s53, 0\ns_cbranch_scc1 {L}_v0")
            else: a.label(VL)
            q=list(nl) if variant else []
            issued=[0]
            def side(n=1):
                for _ in range(n):
                    if q: a(q.pop(0)); issued[0]+=1
            for ks in range(8):
                c0='0' if ks==0 else 'v[32:47]'
                a(f"v_mfma_f32_32x32x16_bf16 v[32:47], a[{K+4*ks}:{K+4*ks+3}], a[{Q+4*ks}:{Q+4*ks+3}], {c0}")
                if ks%2==1: side()
            for r in range(16): a(f"v_cndmask_b32 v{32+r}, v7, v{32+r}, s[{64+2*r}:{65+2*r}]")
            a("""
            v_max3_f32 v24, v32, v33, v34
            v_max3_f32 v25, v35, v36, v37
            v_max3_f32 v24, v24, v38, v39
            v_max3_f32 v25, v25, v40, v41
            v_max3_f32 v24, v24, v42, v43
            v_max3_f32 v25, v25, v44, v45
            v_max3_f32 v24, v24, v46, v47
            """)
            a(f"s_waitcnt vmcnt({issued[0]})")
            for ks in range(8): a(f"ds_read_b128 v[{KM+4*ks}:{KM+4*ks+3}], v2 offset:{ks*256}")
            for W_ in range(4):
                a(f"ds_read_b64 v[{VM+4*W_}:{VM+4*W_+1}], v3 offset:{2048+W_*512}\nv_mov_b32 v{VM+4*W_+2}, 0\nv_mov_b32 v{VM+4*W_+3}, 0")
            a(f"s_cmp_eq_u32 s52, 0\ns_cbranch_scc1 {VL}_nf")
            set_flag(a,'s46',vtmp=(10,11))
            a(f"s_add_u32 s46, s46, 128\ns_mov_b32 s52, 0\n{VL}_nf:")
            for ks in range(8):
                a(f"s_waitcnt lgkmcnt({11-ks})")
                c1='0' if ks==0 else 'v[48:63]'
                a(f"v_mfma_f32_32x32x16_bf16 v[48:63], v[{KM+4*ks}:{KM+4*ks+3}], a[{Q+4*ks}:{Q+4*ks+3}], {c1}")
                if ks%2==1: side()
            a("""
            v_max3_f32 v25, v25, v48, v49
            v_max3_f32 v24, v24, v50, v51
            v_max_f32 v24, v24, v25
            v_mov_b32 v25, v24
            v_permlane32_swap_b32 v24, v25
            v_max_f32 v24, v24, v25
            v_mul_f32 v24, s48, v24
            v_mov_b32 v25, v24
            """)
            for r in range(0,20,2):
                a(f"v_pk_fma_f32 v[{32+r}:{33+r}], v[{32+r}:{33+r}], s[50:51], v[24:25] neg_lo:[0,0,1] neg_hi:[0,0,1]")
            for r in range(20):
                a(f"v_exp_f32 v{32+r}, v{32+r}")
                if r%5==4: side()
            for i in range(8): a(f"v_cvt_pk_bf16_f32 v{16+i}, v{32+2*i}, v{33+2*i}")
            a("""
            v_cvt_pk_bf16_f32 v8, v48, v49
            v_cvt_pk_bf16_f32 v9, v50, v51
            v_mov_b32 v10, 0
            v_mov_b32 v11, 0
            s_waitcnt lgkmcnt(0)
            v_mfma_f32_32x32x16_bf16 v[32:47], v[12:15], v[16:19], 0
            v_mfma_f32_32x32x16_bf16 v[32:47], v[12:15], v[20:23], v[32:47]
            v_mfma_f32_32x32x16_bf16 v[32:47], v[12:15], v[8:11], v[32:47]
            """)
            OT=[64,80,96,112]
            for W_ in range(4):
                o=OT[W_]
                a(f"v_mfma_f32_32x32x16_bf16 v[{o}:{o+15}], a[{V+8*W_}:{V+8*W_+3}], v[16:19], 0")
                side()
                a(f"v_mfma_f32_32x32x16_bf16 v[{o}:{o+15}], a[{V+8*W_+4}:{V+8*W_+7}], v[20:23], v[{o}:{o+15}]")
                side()
                a(f"v_mfma_f32_32x32x16_bf16 v[{o}:{o+15}], v[{VM+4*W_}:{VM+4*W_+3}], v[8:11], v[{o}:{o+15}]")
                side()
            side(24)
            if variant==1:
                adv_fetch()
                a(f"s_branch {L}_fin")
        a.label(L+'_fin')
        a(f"""
        s_add_u32 s44, s44, {32*4096}
        s_add_u32 s45, s45, 512
        """)
        a("v_rcp_f32 v24, v32\ns_nop 0\nv_mov_b32 v25, v24")
        PK=128
        for W_ in range(4):
            o=OT[W_]
            for r in range(0,16,2): a(f"v_pk_mul_f32 v[{o+r}:{o+r+1}], v[{o+r}:{o+r+1}], v[24:25]")
            for i in range(8): a(f"v_cvt_pk_bf16_f32 v{PK+8*W_+i}, v{o+2*i}, v{o+2*i+1}")
            if W_==0: polls()
        for W_ in range(4):
            if W_==2: a("s_add_u32 s32, s47, 4096")
            for f in range(2):
                fi=2*W_+f
                a(f"buffer_store_dwordx4 v[{PK+4*fi}:{PK+4*fi+3}], v1, s[8:11], {'s47' if fi<4 else 's32'} offen offset:{(fi&3)*1024} sc1")
        a(f"""
        s_add_u32 s47, s47, 262144
        s_add_u32 s41, s41, 1
        s_mov_b32 s52, 1
        s_cmp_eq_u32 s53, 0
        s_cbranch_scc0 {lab}_i{1-st}
        s_waitcnt vmcnt(0)
        """)
        set_flag(a,'s46',vtmp=(10,11))
        a(f"""
        s_add_u32 s46, s46, 128
        s_mov_b32 s52, 0
        s_cmp_ge_u32 s41, 64
        s_cbranch_scc1 {lab}_done
        """)
        wait_flags(a,L+'ws',8,'s49',fail,spin)
        for x in qkv_loads(1-st): a(x)
        adv_fetch()
        polls()
        if st==1: a(f"s_branch {lab}_i0")
    iteration(0); iteration(1)
    a.label(lab+'_done')

def emit_AH(a, cfg, fail):
    spin=cfg.get('spin',SPIN_DEFAULT)
    lab=a.new('AH')
    RDY=98304+64
    a(f"""
    s_load_dwordx2 s[12:13], s[0:1], 8
    s_waitcnt lgkmcnt(0)
    s_mov_b32 s14, {512*3072}
    s_mov_b32 s15, 0x20000
    v_lshrrev_b32 v61, 3, v0
    v_and_b32 v60, 7, v0
    v_bfe_u32 v62, v61, 1, 1
    v_lshlrev_b32 v62, 2, v62
    v_xor_b32 v62, v60, v62
    v_lshrrev_b32 v63, 1, v62
    v_min_u32 v63, 2, v63
    v_and_b32 v62, 1, v62
    v_lshlrev_b32 v62, 4, v62
    v_lshl_add_u32 v62, v63, 10, v62
    v_mul_u32_u24 v63, 3072, v61
    v_add_u32 v62, v62, v63
    s_lshl_b32 s32, s5, 5
    v_add_u32 v40, s32, v62
    """)
    a(f"s_mul_i32 s33, s6, {128*3072}\ns_lshl_b32 s34, s6, 14")
    for n in range(16):
        a(f"s_add_u32 m0, s34, {8*n*128}\ns_add_u32 s35, s33, {8*n*3072}\nbuffer_load_dwordx4 v40, s[12:15], s35 offen lds")
    a("s_waitcnt vmcnt(0)\ns_barrier\ns_mov_b32 s32, 0")
    def swz(r,o): a(f"v_lshrrev_b32 v{o}, 1, v{r}\nv_lshlrev_b32 v{o}, 2, v{o}")
    tr_addr32(a,44,'s32',128,swz,0)
    a("v_xor_b32 v45, 64, v44")
    for ks in range(32):
        for p in range(2):
            off=ks*16*128+p*8*128
            a(f"ds_read_b64_tr_b16 a[{4*ks+2*p}:{4*ks+2*p+1}], v44 offset:{off}")
            a(f"ds_read_b64_tr_b16 a[{128+4*ks+2*p}:{128+4*ks+2*p+1}], v45 offset:{off}")
        if ks%2==1: a("s_waitcnt lgkmcnt(4)")
    a("s_waitcnt lgkmcnt(0)\ns_barrier")
    a(f"""
    v_mov_b32 v1, {RDY}
    v_mov_b32 v2, 0
    s_lshl_b32 s32, s6, 2
    v_add_u32 v3, s32, v1
    s_xor_b32 s33, s32, 4
    v_add_u32 v4, s33, v1
    ds_write_b32 v3, v2
    s_waitcnt lgkmcnt(0)
    s_barrier
    v_lshlrev_b32 v1, 4, v0
    s_lshr_b32 s40, s6, 1                    ; layer
    s_and_b32 s41, s6, 1                     ; unit s
    s_mul_i32 s42, s40, 49152
    s_mul_i32 s32, s40, {6*64*32768}
    s_add_u32 s43, s32, {xs(T_XNA1,0)}
    s_add_u32 s44, s32, {xs(T_OA1,0)}
    s_lshl_b32 s33, s5, 10
    s_add_u32 s44, s44, s33
    s_lshl_b32 s32, s40, 14
    s_add_u32 s45, s32, {WS_FLAG+FL_XN}
    s_lshl_b32 s32, s40, 13
    s_add_u32 s46, s32, {WS_FLAG+FL_OA}
    s_lshl_b32 s33, s5, 2
    s_add_u32 s46, s46, s33
    s_lshl_b32 s32, s41, 15
    s_add_u32 s43, s43, s32
    s_add_u32 s44, s44, s32
    s_lshl_b32 s32, s41, 7
    s_add_u32 s45, s45, s32
    s_add_u32 s46, s46, s32
    v_and_b32 v5, 31, v0
    v_cmp_le_u32 s[62:63], 16, v5
    v_mov_b32 v6, 0x3f803f80
    v_mov_b32 v7, 0xff7fffff
    s_mov_b32 s47, 0x3eb8aa3b
    s_mov_b32 s60, 0x3eb8aa3b
    s_mov_b32 s61, 0x3eb8aa3b
    s_mov_b32 s59, 0
    """)
    causal_masks(a,64)
    XB=64; SB=64
    def xld(ks):
        return f"s_add_u32 s32, s43, {(ks>>2)*4096}\nbuffer_load_dwordx4 v[{XB+4*ks}:{XB+4*ks+3}], v1, s[8:11], s32 offen offset:{(ks&3)*1024} sc1"
    cfg['init_wait'](a,lab,sb=16)
    wait_flags(a,lab+'w0',16,'s45',fail,spin)
    for ks in range(32): a(xld(ks))
    a("s_add_u32 s43, s43, 65536\ns_add_u32 s45, s45, 256")
    a.label(lab+'_loop')
    for ks in range(32):
        if ks<4:
            L=a.new(lab+'x')
            a(f"s_cmp_eq_u32 s59, 0\ns_cbranch_scc1 {L}_0\ns_waitcnt vmcnt({32-ks})\ns_branch {L}_1\n{L}_0:\ns_waitcnt vmcnt({31-ks})\n{L}_1:")
        else:
            a(f"s_waitcnt vmcnt({31-ks})")
        if ks==14:
            a(f"s_cmp_eq_u32 s59, 0\ns_cbranch_scc1 {lab}_nf\ns_waitcnt vmcnt(0)")
            set_flag(a,'s46',vtmp=(24,25))
            a(f"s_add_u32 s46, s46, 256\ns_mov_b32 s59, 0\n{lab}_nf:")
        c0='0' if ks==0 else 'v[32:47]'; c1='0' if ks==0 else 'v[48:63]'
        a(f"v_mfma_f32_32x32x16_bf16 v[32:47], a[{4*ks}:{4*ks+3}], v[{XB+4*ks}:{XB+4*ks+3}], {c0}")
        a(f"v_mfma_f32_32x32x16_bf16 v[48:63], v[{XB+4*ks}:{XB+4*ks+3}], a[{128+4*ks}:{128+4*ks+3}], {c1}")
    poll_issue(a,16,'s45',24,31)
    for i in range(4): a(f"v_cvt_pk_bf16_f32 v{8+i}, v{32+2*i}, v{33+2*i}")
    for i in range(4): a(f"v_cvt_pk_bf16_f32 v{12+i}, v{40+2*i}, v{41+2*i}")
    for i in range(8): a(f"v_cvt_pk_bf16_f32 v{16+i}, v{48+2*i}, v{49+2*i}")
    for i in range(8): a(f"v_cndmask_b32 v{16+i}, v{16+i}, v6, s[62:63]")
    a(f"""
    s_and_b32 s32, s41, 15
    s_mul_i32 s32, s32, 3072
    s_add_u32 s32, s32, s42
    v_add_u32 v24, s32, v1
    ds_write_b128 v24, v[12:15]
    ds_write_b128 v24, v[16:19] offset:1024
    ds_write_b128 v24, v[20:23] offset:2048
    s_add_u32 s33, s41, 1
    v_mov_b32 v25, s33
    s_waitcnt lgkmcnt(0)
    ds_write_b32 v3, v25
    """)
    a(f"s_cmp_ge_u32 s41, 8\ns_cbranch_scc1 {lab}_fast")
    a(f"""
    s_mov_b32 s48, 0
{lab}_pw:
    ds_read_b32 v26, v4
    s_waitcnt lgkmcnt(0)
    v_readfirstlane_b32 s49, v26
    s_cmp_ge_u32 s49, s41
    s_cbranch_scc1 {lab}_pok
    s_add_u32 s48, s48, 1
    s_cmp_gt_u32 s48, {spin*8}
    s_cbranch_scc1 {fail}
    s_sleep 1
    s_branch {lab}_pw
{lab}_pok:
    """)
    for b in range(9):
        a(f"""
        s_add_u32 s32, s41, {b+8}
        s_and_b32 s32, s32, 15
        s_mul_i32 s32, s32, 3072
        s_add_u32 s{50+b}, s32, s42
        """)
    KF=208
    for b in range(8):
        a(f"s_add_u32 s32, s41, {b}\ns_cmp_lt_u32 s32, 8\ns_cselect_b32 s{50+b}, s58, s{50+b}")
    for b in range(9):
        a(f"v_add_u32 v24, s{50+b}, v1\nds_read_b128 v[{KF+4*b}:{KF+4*b+3}], v24")
    for b in range(9):
        a(f"s_waitcnt lgkmcnt({8-b})")
        a(f"v_mfma_f32_32x32x16_bf16 v[{SB+16*b}:{SB+16*b+15}], v[{KF+4*b}:{KF+4*b+3}], v[8:11], 0")
    VF=[208,216,224]
    def vrd(b):
        r=VF[b%3]
        a(f"v_add_u32 v26, s{50+b}, v1\nds_read_b128 v[{r}:{r+3}], v26 offset:1024\nds_read_b128 v[{r+4}:{r+7}], v26 offset:2048")
    a(f"s_cmp_ge_u32 s41, 8\ns_cbranch_scc1 {lab}_allv")
    for b in range(8):
        L=a.new(lab+'iv')
        a(f"s_add_u32 s32, s41, {b}\ns_cmp_ge_u32 s32, 8\ns_cbranch_scc1 {L}")
        for r in range(16): a(f"v_mov_b32 v{SB+16*b+r}, v7")
        a.label(L)
    a.label(lab+'_allv')
    vrd(0); vrd(1)
    for r in range(16): a(f"v_cndmask_b32 v{SB+128+r}, v7, v{SB+128+r}, s[{64+2*r}:{65+2*r}]")
    for r in range(16): a(f"v_cndmask_b32 v{SB+r}, v{SB+r}, v7, s[{64+2*r}:{65+2*r}]")
    a(f"v_max3_f32 v24, v{SB}, v{SB+1}, v{SB+2}\nv_max3_f32 v25, v{SB+3}, v{SB+4}, v{SB+5}")
    i=6
    while i<144:
        a(f"v_max3_f32 v24, v24, v{SB+i}, v{SB+i+1}"); i+=2
        if i<144: a(f"v_max3_f32 v25, v25, v{SB+i}, v{SB+i+1}"); i+=2
    a(f"""
    v_max_f32 v24, v24, v25
    v_mov_b32 v25, v24
    v_permlane32_swap_b32 v24, v25
    v_max_f32 v24, v24, v25
    v_mul_f32 v24, s47, v24
    v_mov_b32 v25, v24
    s_waitcnt vmcnt(0)
    s_mov_b32 s48, 0
    s_cmp_ge_u32 s41, 62
    s_cbranch_scc1 {lab}_np
    v_cmp_eq_u32 vcc, 0, v31
    s_cbranch_vccnz {lab}_np
    s_mov_b32 s48, 1
{lab}_np:
    """)
    for b in range(9):
        base=SB+16*b
        for r in range(16):
            a(f"v_fma_f32 v{base+r}, v{base+r}, s47, -v24")
        for r in range(16): a(f"v_exp_f32 v{base+r}, v{base+r}")
        P=28 if False else None
        pk=240 if b%2==0 else 248-0
        pk=[240,12][b%2]
        for i in range(8): a(f"v_cvt_pk_bf16_f32 v{pk+i}, v{base+2*i}, v{base+2*i+1}")
        r=VF[b%3]
        nread=2 if b+1<9 else 0
        a(f"s_waitcnt lgkmcnt({nread})")
        c='0' if b==0 else 'v[32:47]'
        a(f"v_mfma_f32_32x32x16_bf16 v[32:47], v[{r}:{r+3}], v[{pk}:{pk+3}], {c}")
        a(f"v_mfma_f32_32x32x16_bf16 v[32:47], v[{r+4}:{r+7}], v[{pk+4}:{pk+7}], v[32:47]")
        if b+2<9: vrd(b+2)
        if b<8:
            L=a.new(lab+'s')
            a(f"s_cmp_eq_u32 s48, 0\ns_cbranch_scc1 {L}")
            for ks in range(4*b,4*b+4): a(xld(ks))
            a.label(L)
    a(f"s_branch {lab}_tail")
    a.label(lab+'_fast')
    VA=[241,242,243,244,245,246,247,248,249]
    a(f"s_cmp_ge_u32 s41, 10\ns_cbranch_scc1 {lab}_rot")
    for b in range(9):
        a(f"s_add_u32 s32, s41, {b+8}\ns_and_b32 s32, s32, 15\ns_mul_i32 s32, s32, 3072\ns_add_u32 s32, s32, s42\nv_add_u32 v{VA[b]}, s32, v1")
    a(f"s_branch {lab}_rote\n{lab}_rot:")
    for b in range(7): a(f"v_mov_b32 v{VA[b]}, v{VA[b+2]}")
    for b in (7,8):
        a(f"s_add_u32 s32, s41, {b+8}\ns_and_b32 s32, s32, 15\ns_mul_i32 s32, s32, 3072\ns_add_u32 s32, s32, s42\nv_add_u32 v{VA[b]}, s32, v1")
    a.label(lab+'_rote')
    KF=208
    order=[8,0,1,2,3,4,5,6,7]
    for n,b in enumerate(order):
        if n<8: a(f"ds_read_b128 v[{KF+4*n}:{KF+4*n+3}], v{VA[b]}")
    a(f"""
    s_mov_b32 s48, 0
{lab}_pw2:
    ds_read_b32 v26, v4
    s_waitcnt lgkmcnt(0)
    v_readfirstlane_b32 s49, v26
    s_cmp_ge_u32 s49, s41
    s_cbranch_scc1 {lab}_pok2
    s_add_u32 s48, s48, 1
    s_cmp_gt_u32 s48, {spin*8}
    s_cbranch_scc1 {fail}
    s_branch {lab}_pw2
{lab}_pok2:
    ds_read_b128 v[16:19], v{VA[7]}
    """)
    for n,b in enumerate(order[:8]):
        a(f"v_mfma_f32_32x32x16_bf16 v[{SB+16*b}:{SB+16*b+15}], v[{KF+4*n}:{KF+4*n+3}], v[8:11], 0")
    VF=[208,216,224]
    def vrd(b):
        r_=VF[b%3]
        a(f"ds_read_b128 v[{r_}:{r_+3}], v{VA[b]} offset:1024\nds_read_b128 v[{r_+4}:{r_+7}], v{VA[b]} offset:2048")
    a(f"s_waitcnt lgkmcnt(0)\nv_mfma_f32_32x32x16_bf16 v[{SB+112}:{SB+127}], v[16:19], v[8:11], 0")
    vrd(0); vrd(1)
    for r_ in range(16): a(f"v_cndmask_b32 v{SB+128+r_}, v7, v{SB+128+r_}, s[{64+2*r_}:{65+2*r_}]")
    for r_ in range(16): a(f"v_cndmask_b32 v{SB+r_}, v{SB+r_}, v7, s[{64+2*r_}:{65+2*r_}]")
    seqr=[SB+128+r_ for r_ in range(16)]+[SB+r_ for r_ in range(112)]+[SB+112+r_ for r_ in range(16)]
    a(f"v_max3_f32 v24, v{seqr[0]}, v{seqr[1]}, v{seqr[2]}\nv_max3_f32 v25, v{seqr[3]}, v{seqr[4]}, v{seqr[5]}")
    i=6
    while i<144:
        a(f"v_max3_f32 v24, v24, v{seqr[i]}, v{seqr[i+1]}"); i+=2
        if i<144: a(f"v_max3_f32 v25, v25, v{seqr[i]}, v{seqr[i+1]}"); i+=2
    a(f"""
    v_max_f32 v24, v24, v25
    v_mov_b32 v25, v24
    v_permlane32_swap_b32 v24, v25
    v_max_f32 v24, v24, v25
    v_mul_f32 v24, s47, v24
    s_waitcnt vmcnt(0)
    s_mov_b32 s48, 0
    s_cmp_ge_u32 s41, 62
    s_cbranch_scc1 {lab}_np2
    v_cmp_eq_u32 vcc, 0, v31
    s_cbranch_vccnz {lab}_np2
    s_mov_b32 s48, 1
{lab}_np2:
    s_cmp_eq_u32 s48, 1
    """)
    for b in range(9):
        base=SB+16*b
        for r_ in range(16): a(f"v_fma_f32 v{base+r_}, v{base+r_}, s47, -v24")
        for r_ in range(16): a(f"v_exp_f32 v{base+r_}, v{base+r_}")
        pk=[232,12][b%2]
        for i in range(8): a(f"v_cvt_pk_bf16_f32 v{pk+i}, v{base+2*i}, v{base+2*i+1}")
        r_=VF[b%3]
        a(f"s_waitcnt lgkmcnt({2 if b+1<9 else 0})")
        c='0' if b==0 else 'v[32:47]'
        a(f"v_mfma_f32_32x32x16_bf16 v[32:47], v[{r_}:{r_+3}], v[{pk}:{pk+3}], {c}")
        a(f"v_mfma_f32_32x32x16_bf16 v[32:47], v[{r_+4}:{r_+7}], v[{pk+4}:{pk+7}], v[32:47]")
        if b+2<9: vrd(b+2)
        if b<8:
            L=a.new(lab+'s')
            a(f"s_cbranch_scc0 {L}")
            a(f"s_add_u32 s32, s43, {b*4096}")
            for j in range(4):
                ks=4*b+j
                a(f"buffer_load_dwordx4 v[{XB+4*ks}:{XB+4*ks+3}], v1, s[8:11], s32 offen offset:{j*1024} sc1")
            a(f"s_cmp_eq_u32 s48, 1\n{L}:")
    a.label(lab+'_tail')
    a("v_rcp_f32 v24, v40")
    for r in range(8): a(f"v_mul_f32 v{32+r}, v{32+r}, v24")
    for i in range(4): a(f"v_cvt_pk_bf16_f32 v{8+i}, v{32+2*i}, v{33+2*i}")
    a(f"""
    buffer_store_dwordx4 v[8:11], v1, s[8:11], s44 offen sc1
    s_add_u32 s44, s44, 65536
    s_add_u32 s41, s41, 2
    s_mov_b32 s59, 1
    s_cmp_eq_u32 s48, 0
    s_cbranch_scc1 {lab}_slow
    s_add_u32 s43, s43, 65536
    s_add_u32 s45, s45, 256
    s_branch {lab}_loop
{lab}_slow:
    s_waitcnt vmcnt(0)
    """)
    set_flag(a,'s46',vtmp=(24,25))
    a(f"""
    s_add_u32 s46, s46, 256
    s_mov_b32 s59, 0
    s_cmp_ge_u32 s41, 64
    s_cbranch_scc1 {lab}_done
    """)
    wait_flags(a,lab+'ws',16,'s45',fail,spin)
    for ks in range(32): a(xld(ks))
    a(f"""
    s_add_u32 s43, s43, 65536
    s_add_u32 s45, s45, 256
    s_branch {lab}_loop
{lab}_done:
    """)
```

```python
from common import *
import roles
from roles import wait_flags, set_flag, flagval, tr_addr32, pack_tile, causal_masks, SPIN_DEFAULT
from roles2 import poll_issue
NXN=16
NYA=16

def dma_list(n, shift, bufreg):
    out=[]
    for i in range(n):
        pre=''
        if i==0: pre+=f"s_lshl_b32 s53, s6, {shift}\ns_add_u32 s53, s53, {bufreg}\n"
        if i%4==0: pre+=f"s_add_u32 m0, s53, {(i>>2)*4096}\ns_add_u32 s33, s43, {(i>>2)*4096}\n"
        out.append(pre+f"buffer_load_dwordx4 v2, s[8:11], s33 offen offset:{(i&3)*1024} sc1 lds")
    return out

def gemm_loop(a, lab, nks, mf, rd, AHEAD, chk_ks, emit_check, dl, extra=None):
    def step(ks):
        a(f"s_waitcnt lgkmcnt({min(AHEAD-1,nks-1-ks)})")
        mf(ks)
        if ks+AHEAD<nks: rd(ks+AHEAD)
        if extra: extra(ks)
    for ks in range(chk_ks+1): step(ks)
    emit_check()
    L=a.new(lab+'v')
    n=len(dl)
    a(f"s_cmp_eq_u32 s48, 0\ns_cbranch_scc1 {L}_n")
    for j in range(n):
        step(chk_ks+1+j); a(dl[j])
    a(f"s_branch {L}_e\n{L}_n:")
    for j in range(n): step(chk_ks+1+j)
    a.label(L+'_e')
    for ks in range(chk_ks+1+n,nks): step(ks)

def emit_F(a, cfg, typ, fail):
    spin=cfg.get('spin',SPIN_DEFAULT)
    lab=a.new('F'+typ)
    npart={'T0':0,'T1':1,'T2':4,'T3':4}[typ]
    nfl={'T0':0,'T1':NYA,'T2':64,'T3':64}[typ]
    US=2 if typ=='T2' else 1
    flstep={'T0':0,'T1':128,'T2':256,'T3':256}[typ]*US
    a(f"""
    v_and_b32 v1, 7, v0
    v_bfe_u32 v2, v0, 3, 1
    v_lshrrev_b32 v3, 4, v0
    v_lshlrev_b32 v4, 4, v1
    v_lshl_add_u32 v4, v2, 9, v4
    v_lshl_add_u32 v4, v3, 10, v4
    s_lshl_b32 s12, s6, 13
    s_lshl_b32 s13, s5, 7
    s_add_u32 s12, s12, s13
    v_add_u32 v4, s12, v4
    s_lshl_b32 s13, s5, 3
    v_add_u32 v5, s13, v1
    v_lshlrev_b32 v5, 10, v5
    v_lshl_add_u32 v5, v3, 5, v5
    v_lshl_add_u32 v5, v2, 4, v5
    s_lshl_b32 s13, s6, 8
    v_add_u32 v5, s13, v5
    v_lshlrev_b32 v6, 3, v1
    s_lshl_b32 s13, s6, 6
    v_add_u32 v7, s13, v6
    """)
    if typ=='T0':
        a(f"""
        s_load_dwordx2 s[16:17], s[0:1], 0
        s_waitcnt lgkmcnt(0)
        s_mov_b32 s18, {2048*1024}
        s_mov_b32 s19, 0x20000
        s_mov_b32 s20, 0
        s_mov_b32 s22, {xs(T_X0,0)}
        s_mov_b32 s23, {xs(T_XNA1,0)}
        s_mov_b32 s24, {WS_FLAG+FL_XN+0*64*128}
        """)
    elif typ=='T1':
        a(f"""
        s_mul_i32 s13, s4, {6*64*32768}
        s_add_u32 s20, s13, {xs(T_X0,0)}
        s_add_u32 s21, s13, {xs(T_YA1,0)}
        s_add_u32 s22, s13, {xs(T_X1,0)}
        s_add_u32 s23, s13, {xs(T_XNB1,0)}
        s_lshl_b32 s13, s4, 14
        s_add_u32 s24, s13, {WS_FLAG+FL_XN+1*64*128}
        s_lshl_b32 s13, s4, 13
        s_add_u32 s25, s13, {WS_FLAG+FL_YA}
        """)
    elif typ=='T2':
        a(f"""
        s_lshl_b32 s13, s4, 15
        s_add_u32 s20, s13, {xs(T_X1,0)}
        s_add_u32 s22, s13, {xs(T_X2,0)}
        s_add_u32 s23, s13, {xs(T_XNA2,0)}
        s_lshl_b32 s13, s4, 17
        s_add_u32 s21, s13, {WS_PO}
        s_lshl_b32 s13, s4, 7
        s_add_u32 s24, s13, {WS_FLAG+FL_XN+2*64*128}
        s_lshl_b32 s13, s4, 8
        s_add_u32 s25, s13, {WS_FLAG+FL_PO}
        """)
    else:
        a(f"""
        s_load_dwordx2 s[16:17], s[0:1], 80
        s_waitcnt lgkmcnt(0)
        s_mov_b32 s18, {2048*1024}
        s_mov_b32 s19, 0x20000
        s_mov_b32 s20, {xs(T_X3,0)}
        s_mov_b32 s21, {WS_PO+64*131072}
        s_mov_b32 s22, 0
        s_mov_b32 s25, {WS_FLAG+FL_PO+64*256}
        """)
    a(f"""
    s_lshl_b32 s13, s5, 4
    s_lshl_b32 s14, s6, 2
    s_add_u32 s13, s13, s14
    {'s_add_u32 s24, s24, s13' if typ!='T3' else ''}
    s_mov_b32 s26, 0
    v_mov_b32 v8, 0x3f803f80
    s_mov_b32 s27, 0xffff0000
    s_mov_b32 s30, 0
    s_mov_b32 s31, 0
    """)
    SETS=[(16,24),(64,72)]
    W=112
    NS={'T0':4,'T1':4,'T2':4,'T3':2}[typ]
    def xchg(X):
        for j in range(2):
            b=X+4*j
            for d in range(2):
                a(f"""
                v_mov_b32 v12, v{b+d}
                s_nop 1
                v_mov_b32_dpp v{b+d}, v{b+2+d} row_shr:8 row_mask:0xf bank_mask:0xc
                v_mov_b32_dpp v{b+2+d}, v12 row_shl:8 row_mask:0xf bank_mask:0x3
                """)
    def loads(st):
        X,P0=SETS[st]
        if typ=='T0':
            for j in range(2): a(f"buffer_load_dwordx4 v[{X+4*j}:{X+4*j+3}], v5, s[16:19], s20 offen offset:{128*j}")
            a("s_add_u32 s20, s20, 32768")
        else:
            for p in range(npart):
                for j in range(2):
                    a(f"s_add_u32 s13, s21, {p*32768+j*4096}\nbuffer_load_dwordx4 v[{P0+8*p+4*j}:{P0+8*p+4*j+3}], v4, s[8:11], s13 offen sc1")
            for j in range(2):
                a(f"s_add_u32 s13, s20, {j*4096}\nbuffer_load_dwordx4 v[{X+4*j}:{X+4*j+3}], v4, s[8:11], s13 offen sc1")
            a(f"s_add_u32 s20, s20, {32768*US}\ns_add_u32 s21, s21, {(32768 if typ=='T1' else 131072)*US}\ns_add_u32 s25, s25, {flstep}")
    def flag_prev():
        if typ=='T3': return
        set_flag(a,'s24')
        a(f"s_add_u32 s24, s24, {128*US}")
    cfg['init_wait'](a,lab)
    if nfl: wait_flags(a,lab+'w0',nfl,'s25',fail,spin)
    loads(0)
    def iteration(st):
        X,P0=SETS[st]; L=f"{lab}_i{st}"
        a.label(L)
        if nfl: poll_issue(a,nfl,'s25',10,9)
        np_=1 if nfl else 0
        a(f"""
        s_cmp_eq_u32 s31, 0
        s_cbranch_scc1 {L}_w1
        s_waitcnt vmcnt({NS+np_})
        s_branch {L}_w2
{L}_w1:
        s_waitcnt vmcnt({np_})
{L}_w2:
        """)
        if typ=='T0': xchg(X)
        else:
            for r in range(8):
                w0=W+2*r
                if npart==4:
                    a(f"""
                    v_lshlrev_b32 v{w0}, 16, v{P0+r}
                    v_and_b32 v{w0+1}, s27, v{P0+r}
                    v_lshlrev_b32 v12, 16, v{P0+8+r}
                    v_and_b32 v13, s27, v{P0+8+r}
                    v_lshlrev_b32 v14, 16, v{P0+16+r}
                    v_and_b32 v15, s27, v{P0+16+r}
                    v_pk_add_f32 v[{w0}:{w0+1}], v[{w0}:{w0+1}], v[12:13]
                    v_lshlrev_b32 v12, 16, v{P0+24+r}
                    v_and_b32 v13, s27, v{P0+24+r}
                    v_pk_add_f32 v[14:15], v[14:15], v[12:13]
                    v_pk_add_f32 v[{w0}:{w0+1}], v[{w0}:{w0+1}], v[14:15]
                    v_cvt_pk_bf16_f32 v{P0+r}, v{w0}, v{w0+1}
                    """)
                a(f"""
                v_lshlrev_b32 v{w0}, 16, v{P0+r}
                v_and_b32 v{w0+1}, s27, v{P0+r}
                v_lshlrev_b32 v12, 16, v{X+r}
                v_and_b32 v13, s27, v{X+r}
                v_pk_add_f32 v[{w0}:{w0+1}], v[{w0}:{w0+1}], v[12:13]
                v_cvt_pk_bf16_f32 v{X+r}, v{w0}, v{w0+1}
                """)
        def prefetch():
            a(f"""
            s_mov_b32 s31, 0
            s_cmp_ge_u32 s26, {64//US-1}
            s_cbranch_scc1 {L}_np
            """)
            if nfl: a(f"v_cmp_eq_u32 vcc, 0, v9\ns_cbranch_vccnz {L}_np")
            a("s_mov_b32 s31, 1")
            loads(1-st)
            a.label(L+'_np')
        if typ=='T3':
            xchg(X)
            for j in range(2): a(f"buffer_store_dwordx4 v[{X+4*j}:{X+4*j+3}], v5, s[16:19], s22 offen offset:{128*j}")
            a("s_add_u32 s22, s22, 32768")
            a("s_waitcnt vmcnt(2)")
            prefetch()
            a(f"""
            s_add_u32 s26, s26, 1
            s_cmp_eq_u32 s31, 1
            s_cbranch_scc0 {L}_slow
            s_mov_b32 s31, 0
            s_branch {lab}_i{1-st}
{L}_slow:
            s_cmp_ge_u32 s26, {64//US}
            s_cbranch_scc1 {lab}_done
            """)
            wait_flags(a,L+'ws',nfl,'s25',fail,spin)
            loads(1-st)
            if st==1: a(f"s_branch {lab}_i0")
            return
        if nfl: a("s_waitcnt vmcnt(0)")
        prefetch()
        a("s_add_u32 s13, s22, 4096")
        for j in range(2):
            a(f"buffer_store_dwordx4 v[{X+4*j}:{X+4*j+3}], v4, s[8:11], {'s22' if j==0 else 's13'} offen sc1")
        a("v_mov_b32 v12, 0\nv_mov_b32 v13, 0\nv_mov_b32 v14, 0\nv_mov_b32 v15, 0")
        for r in range(0,8,2):
            a(f"v_dot2_f32_bf16 v12, v{X+r}, v8, v12\nv_dot2_f32_bf16 v13, v{X+r}, v{X+r}, v13\nv_dot2_f32_bf16 v14, v{X+r+1}, v8, v14\nv_dot2_f32_bf16 v15, v{X+r+1}, v{X+r+1}, v15")
        a(f"""
        v_pk_add_f32 v[12:13], v[12:13], v[14:15]
        s_nop 1
        v_add_f32_dpp v12, v12, v12 row_ror:8 row_mask:0xf bank_mask:0xf
        v_add_f32_dpp v13, v13, v13 row_ror:8 row_mask:0xf bank_mask:0xf
        v_mov_b32 v10, v12
        v_mov_b32 v11, v13
        v_permlane16_swap_b32 v12, v10
        v_permlane16_swap_b32 v13, v11
        v_pk_add_f32 v[12:13], v[12:13], v[10:11]
        v_mov_b32 v10, v12
        v_mov_b32 v11, v13
        v_permlane32_swap_b32 v12, v10
        v_permlane32_swap_b32 v13, v11
        v_pk_add_f32 v[12:13], v[12:13], v[10:11]
        s_mov_b64 exec, 0xff
        ds_write_b64 v7, v[12:13] offset:{256*st}
        s_mov_b64 exec, -1
        s_waitcnt lgkmcnt(0)
        s_barrier
        ds_read_b64 v[10:11], v6 offset:{256*st}
        ds_read_b64 v[12:13], v6 offset:{256*st+64}
        ds_read_b64 v[14:15], v6 offset:{256*st+128}
        ds_read_b64 v[{W}:{W+1}], v6 offset:{256*st+192}
        s_waitcnt lgkmcnt(0)
        v_pk_add_f32 v[10:11], v[10:11], v[12:13]
        v_pk_add_f32 v[14:15], v[14:15], v[{W}:{W+1}]
        v_pk_add_f32 v[10:11], v[10:11], v[14:15]
        v_mul_f32 v10, 0x3b000000, v10
        v_mul_f32 v11, 0x3b000000, v11
        v_fma_f32 v11, -v10, v10, v11
        v_max_f32 v11, 0, v11
        v_cvt_pk_bf16_f32 v14, v10, v11
        v_lshlrev_b32 v12, 16, v14
        v_and_b32 v11, s27, v14
        v_add_f32 v11, 0x3727c5ac, v11
        v_cvt_pk_bf16_f32 v11, v11, v11
        v_and_b32 v11, s27, v11
        v_sqrt_f32 v11, v11
        v_mov_b32 v13, v12
        v_cvt_pk_bf16_f32 v11, v11, v11
        v_and_b32 v11, s27, v11
        v_rcp_f32 v14, v11
        s_nop 0
        v_mov_b32 v15, v14
        """)
        for r in range(8):
            w0=W+2*r
            a(f"""
            v_lshlrev_b32 v{w0}, 16, v{X+r}
            v_and_b32 v{w0+1}, s27, v{X+r}
            v_pk_add_f32 v[{w0}:{w0+1}], v[{w0}:{w0+1}], v[12:13] neg_lo:[0,1] neg_hi:[0,1]
            v_cvt_pk_bf16_f32 v{P0+r}, v{w0}, v{w0+1}
            v_lshlrev_b32 v{w0}, 16, v{P0+r}
            v_and_b32 v{w0+1}, s27, v{P0+r}
            v_pk_mul_f32 v[{w0}:{w0+1}], v[{w0}:{w0+1}], v[14:15]
            v_cvt_pk_bf16_f32 v{P0+r}, v{w0}, v{w0+1}
            """)
        a("s_add_u32 s13, s23, 4096")
        for j in range(2):
            a(f"buffer_store_dwordx4 v[{P0+4*j}:{P0+4*j+3}], v4, s[8:11], {'s23' if j==0 else 's13'} offen sc1")
        a(f"s_add_u32 s22, s22, {32768*US}\ns_add_u32 s23, s23, {32768*US}")
        a("s_waitcnt vmcnt(0)")
        flag_prev()
        a(f"""
        s_add_u32 s26, s26, 1
        s_cmp_eq_u32 s31, 1
        s_cbranch_scc0 {L}_slow
        s_mov_b32 s31, 0
        s_branch {lab}_i{1-st}
{L}_slow:
        s_cmp_ge_u32 s26, {64//US}
        s_cbranch_scc1 {lab}_done
        """)
        if nfl: wait_flags(a,L+'ws',nfl,'s25',fail,spin)
        loads(1-st)
        if st==1: a(f"s_branch {lab}_i0")
    iteration(0); iteration(1)
    a.label(lab+'_done')

def emit_AWO(a, cfg, fail):
    spin=cfg.get('spin',SPIN_DEFAULT)
    lab=a.new('AWO')
    a("""
    s_load_dwordx2 s[12:13], s[0:1], 16      ; A_wo [512][512]
    s_waitcnt lgkmcnt(0)
    s_mov_b32 s14, 524288
    s_mov_b32 s15, 0x20000
    v_lshrrev_b32 v61, 4, v0
    v_and_b32 v60, 15, v0
    v_lshlrev_b32 v62, 2, v61
    v_xor_b32 v62, v60, v62
    v_lshlrev_b32 v62, 4, v62
    v_lshl_add_u32 v62, v61, 10, v62
    s_lshl_b32 s32, s5, 8
    v_add_u32 v40, s32, v62
    s_lshl_b32 s32, s6, 2
    """)
    tr_addr32(a,44,'s32',256,lambda r,o: a(f"v_lshlrev_b32 v{o}, 2, v{r}"),0)
    a("v_add_u32 v45, 0x10000, v44")
    a("s_lshl_b32 s33, s6, 17\ns_lshl_b32 s34, s6, 15")
    for n in range(32):
        a(f"s_add_u32 m0, s34, {4*n*256}\ns_add_u32 s35, s33, {4*n*1024}\nbuffer_load_dwordx4 v40, s[12:15], s35 offen lds")
    a("s_waitcnt vmcnt(0)\ns_barrier")
    for ks in range(32):
        for p in range(2):
            a(f"ds_read_b64_tr_b16 a[{4*ks+2*p}:{4*ks+2*p+1}], v{44+(ks>>4)} offset:{(ks&15)*4096+p*2048}")
        if ks%4==3: a("s_waitcnt lgkmcnt(4)")
    a("s_waitcnt lgkmcnt(0)\ns_barrier")
    a(f"""
    v_lshlrev_b32 v1, 4, v0
    s_lshl_b32 s32, s6, 13
    v_add_u32 v2, s32, v1
    s_lshl_b32 s32, s5, 13
    s_lshl_b32 s33, s6, 11
    s_add_u32 s32, s32, s33
    v_add_u32 v3, s32, v1
    s_mul_i32 s32, s4, {6*64*32768}
    s_add_u32 s43, s32, {xs(T_OA1,0)}
    s_add_u32 s44, s32, {xs(T_YA1,0)}
    s_lshl_b32 s32, s4, 13
    s_add_u32 s45, s32, {WS_FLAG+FL_OA}
    s_lshl_b32 s33, s5, 4
    s_lshl_b32 s34, s6, 2
    s_add_u32 s33, s33, s34
    s_add_u32 s46, s32, {WS_FLAG+FL_YA}
    s_add_u32 s46, s46, s33
    s_mov_b32 s40, 0
    s_mov_b32 s42, 0
    """)
    def dma(bufreg):
        out=[]
        for n in range(8):
            out.append(f"s_lshl_b32 s32, s6, 13\ns_add_u32 s32, s32, {bufreg}\ns_add_u32 m0, s32, {(n>>2)*4096}\ns_add_u32 s33, s43, {(n>>2)*4096}\nbuffer_load_dwordx4 v2, s[8:11], s33 offen offset:{(n&3)*1024} sc1 lds")
        return out
    cfg['init_wait'](a,lab)
    wait_flags(a,lab+'w0',32,'s45',fail,spin)
    for d in dma_list(8,13,'s42'): a(d)
    a("s_add_u32 s43, s43, 32768\ns_add_u32 s45, s45, 128\ns_waitcnt vmcnt(0)\ns_barrier")
    a.label(lab+'_unit')
    a("v_add_u32 v5, s42, v1\ns_xor_b32 s50, s42, 32768")
    poll_issue(a,32,'s45',10,9)
    XR=64; NR=8; AHEAD=6
    def rd(i): a(f"ds_read_b128 v[{XR+4*(i%NR)}:{XR+4*(i%NR)+3}], v5 offset:{i*1024}")
    for i in range(AHEAD): rd(i)
    dl=dma_list(8,13,'s50')
    def mf(ks):
        r=XR+4*(ks%NR); c='0' if ks==0 else "v[32:47]"
        a(f"v_mfma_f32_32x32x16_bf16 v[32:47], a[{4*ks}:{4*ks+3}], v[{r}:{r+3}], {c}")
    def check():
        a(f"""
        s_waitcnt vmcnt(0)
        s_mov_b32 s48, 0
        s_cmp_ge_u32 s40, 63
        s_cselect_b32 s49, 1, 0
        v_cmp_eq_u32 vcc, 0, v9
        s_cmp_eq_u64 vcc, 0
        s_cselect_b32 s48, 1, 0
        s_cmp_eq_u32 s49, 1
        s_cselect_b32 s48, 0, s48
        """)
    gemm_loop(a,lab,32,mf,rd,AHEAD,20,check,dl)
    pack_tile(a,32,96)
    for f in range(2):
        a(f"buffer_store_dwordx4 v[{96+4*f}:{99+4*f}], v3, s[8:11], s44 offen offset:{f*1024} sc1")
    a("s_add_u32 s44, s44, 32768\ns_add_u32 s40, s40, 1\ns_waitcnt vmcnt(0)")
    set_flag(a,'s46',vtmp=(11,12))
    a(f"""
    s_add_u32 s46, s46, 128
    s_mov_b32 s42, s50
    s_cmp_eq_u32 s48, 0
    s_cbranch_scc1 {lab}_slow
    s_add_u32 s43, s43, 32768
    s_add_u32 s45, s45, 128
    s_barrier
    s_branch {lab}_unit
{lab}_slow:
    s_cmp_ge_u32 s40, 64
    s_cbranch_scc1 {lab}_done
    """)
    wait_flags(a,lab+'ws',32,'s45',fail,spin)
    for d in dma_list(8,13,'s42'): a(d)
    a(f"""
    s_add_u32 s43, s43, 32768
    s_add_u32 s45, s45, 128
    s_waitcnt vmcnt(0)
    s_barrier
    s_branch {lab}_unit
{lab}_done:
    """)

def emit_P(a, cfg, fail):
    spin=cfg.get('spin',SPIN_DEFAULT)
    lab=a.new('P')
    a("""
    s_load_dwordx2 s[12:13], s[0:1], 40      ; Wq
    s_load_dwordx2 s[16:17], s[0:1], 48      ; Wk
    s_load_dwordx2 s[20:21], s[0:1], 56      ; Wv
    s_waitcnt lgkmcnt(0)
    s_mov_b32 s14, 4194304
    s_mov_b32 s15, 0x20000
    s_mov_b32 s18, 4194304
    s_mov_b32 s19, 0x20000
    s_mov_b32 s22, 4194304
    s_mov_b32 s23, 0x20000
    v_lshrrev_b32 v61, 4, v0
    v_and_b32 v60, 15, v0
    v_lshlrev_b32 v62, 2, v61
    v_xor_b32 v62, v60, v62
    v_lshlrev_b32 v62, 4, v62
    v_lshl_add_u32 v62, v61, 13, v62
    s_lshl_b32 s32, s5, 8
    v_add_u32 v40, s32, v62
    s_lshl_b32 s32, s6, 2
    """)
    tr_addr32(a,44,'s32',256,lambda r,o: a(f"v_lshlrev_b32 v{o}, 2, v{r}"),0)
    a("v_add_u32 v45, 0x10000, v44")
    def wreg(M,ks,p):
        if M=='Q': b=128+4*ks+2*p; return f"v[{b}:{b+1}]"
        b={'K':0,'V':128}[M]+4*ks+2*p; return f"a[{b}:{b+1}]"
    rounds=[(M,h) for M in ('K','V','Q') for h in range(2)]
    srd={'K':'s[16:19]','V':'s[20:23]','Q':'s[12:15]'}
    def issue(i):
        M,h=rounds[i]
        a(f"s_lshl_b32 s33, s6, 19\ns_add_u32 s33, s33, {h*256*8192}\ns_lshl_b32 s34, s6, 14\ns_add_u32 s34, s34, {(i&1)*65536}")
        for n in range(16):
            a(f"s_add_u32 m0, s34, {4*n*256}\ns_add_u32 s35, s33, {4*n*8192}\nbuffer_load_dwordx4 v40, {srd[M]}, s35 offen lds")
    issue(0); issue(1)
    for i,(M,h) in enumerate(rounds):
        a(f"s_waitcnt vmcnt({16 if i+1<len(rounds) else 0})\ns_barrier")
        for ksl in range(16):
            ks=16*h+ksl
            for p in range(2):
                a(f"ds_read_b64_tr_b16 {wreg(M,ks,p)}, v{44+(i&1)} offset:{ksl*4096+p*2048}")
            if ksl%4==3: a("s_waitcnt lgkmcnt(4)")
        a("s_waitcnt lgkmcnt(0)\ns_barrier")
        if i+2<len(rounds): issue(i+2)
    def W(M,ks):
        if M=='Q': return f"v[{128+4*ks}:{131+4*ks}]"
        b={'K':0,'V':128}[M]+4*ks; return f"a[{b}:{b+3}]"
    a(f"""
    v_lshlrev_b32 v1, 4, v0
    s_lshl_b32 s32, s6, 13
    v_add_u32 v2, s32, v1
    s_lshl_b32 s32, s6, 11
    v_add_u32 v3, s32, v1
    s_mul_i32 s32, s4, {6*64*32768}
    s_add_u32 s43, s32, {xs(T_XNB1,0)}
    s_lshl_b32 s32, s4, 14
    s_add_u32 s45, s32, {WS_FLAG+FL_XN+64*128}
    s_lshl_b32 s32, s4, 11
    s_add_u32 s32, s32, s5
    s_mul_i32 s48, s32, {QKV_BLK}
    s_lshl_b32 s49, s32, 5
    s_lshl_b32 s33, s6, 2
    s_add_u32 s49, s49, s33
    s_add_u32 s49, s49, {WS_FLAG+FL_P}
    s_mov_b32 s40, 0
    s_mov_b32 s42, 0
    s_mov_b32 s47, 0
    """)
    def dma(bufreg):
        out=[]
        for n in range(8):
            out.append(f"s_lshl_b32 s32, s6, 13\ns_add_u32 s32, s32, {bufreg}\ns_add_u32 m0, s32, {(n>>2)*4096}\ns_add_u32 s33, s43, {(n>>2)*4096}\nbuffer_load_dwordx4 v2, s[8:11], s33 offen offset:{(n&3)*1024} sc1 lds")
        return out
    cfg['init_wait'](a,lab)
    wait_flags(a,lab+'w0',NXN,'s45',fail,spin,vtmp=(8,9))
    for d in dma_list(8,13,'s42'): a(d)
    a("s_add_u32 s43, s43, 32768\ns_add_u32 s45, s45, 128\ns_waitcnt vmcnt(0)\ns_barrier")
    a.label(lab+'_unit')
    a("v_add_u32 v5, s42, v1\ns_xor_b32 s50, s42, 32768")
    poll_issue(a,NXN,'s45',10,9)
    XR=64; NR=8; ACC=[32,48]; PK=96
    def rd(ks): a(f"ds_read_b128 v[{XR+4*(ks%NR)}:{XR+4*(ks%NR)+3}], v5 offset:{ks*1024}")
    AHEAD=6
    for i in range(AHEAD): rd(i)
    def epi(t):
        acc=ACC[t]; out=[]; pk=PK+8*t
        for i in range(8): out.append(f"v_cvt_pk_bf16_f32 v{pk+i}, v{acc+2*i}, v{acc+2*i+1}")
        off=[8192,16384][t]
        out.append(f"s_add_u32 s33, s48, {off}\nbuffer_store_dwordx4 v[{pk}:{pk+3}], v3, s[8:11], s33 offen sc1")
        out.append(f"buffer_store_dwordx4 v[{pk+4}:{pk+7}], v3, s[8:11], s33 offen offset:1024 sc1")
        return out
    dl=dma_list(8,13,'s50')
    def step(ks):
        r=XR+4*(ks%NR)
        a(f"s_waitcnt lgkmcnt({min(AHEAD-1,31-ks)})")
        a(f"v_mfma_f32_32x32x16_bf16 v[32:47], {W('K',ks)}, v[{r}:{r+3}], {'0' if ks==0 else 'v[32:47]'}")
        a(f"v_mfma_f32_32x32x16_bf16 v[48:63], v[{r}:{r+3}], {W('V',ks)}, {'0' if ks==0 else 'v[48:63]'}")
        if ks+AHEAD<32: rd(ks+AHEAD)
    def check():
        a(f"s_cmp_eq_u32 s47, 0\ns_cbranch_scc1 {lab}_nq0\ns_waitcnt vmcnt(1)\ns_sub_u32 s33, s49, 1024\ns_add_u32 s34, s33, 16\ns_cmp_eq_u32 s47, 2\ns_cselect_b32 s33, s34, s33")
        set_flag(a,'s33',vtmp=(11,12))
        a(f"""
        s_mov_b32 s47, 0
        s_waitcnt vmcnt(1)
        s_branch {lab}_nq
{lab}_nq0:
        s_waitcnt vmcnt(0)
{lab}_nq:
        s_mov_b32 s51, 0
        s_cmp_ge_u32 s40, 63
        s_cselect_b32 s52, 1, 0
        v_cmp_eq_u32 vcc, 0, v9
        s_cmp_eq_u64 vcc, 0
        s_cselect_b32 s51, 1, 0
        s_cmp_eq_u32 s52, 1
        s_cselect_b32 s51, 0, s51
        """)
    for ks in range(13): step(ks)
    check()
    a(f"s_cmp_eq_u32 s51, 0\ns_cbranch_scc1 {lab}_vn")
    for j in range(8): step(13+j); a(dl[j])
    a(f"s_branch {lab}_ve\n{lab}_vn:")
    for j in range(8): step(13+j)
    a.label(lab+'_ve')
    for ks in range(21,32): step(ks)
    for x in epi(0): a(x)
    for x in epi(1): a(x)
    a(f"""
    s_mov_b32 s54, 1
    s_add_u32 s32, s40, 1
    s_and_b32 s32, s32, 2
    s_cmp_lg_u32 s32, 0
    s_cbranch_scc1 {lab}_noq
    """)
    for i in range(AHEAD): rd(i)
    for ks in range(32):
        r_=XR+4*(ks%NR)
        a(f"s_waitcnt lgkmcnt({min(AHEAD-1,31-ks)})")
        a(f"v_mfma_f32_32x32x16_bf16 v[32:47], {W('Q',ks)}, v[{r_}:{r_+3}], {'0' if ks==0 else 'v[32:47]'}")
        if ks+AHEAD<32: rd(ks+AHEAD)
    a("s_waitcnt vmcnt(0)")
    set_flag(a,'s49',vtmp=(11,12))
    for i in range(8): a(f"v_cvt_pk_bf16_f32 v{PK+i}, v32+{2*i}, v33+{2*i}".replace(f"v32+{2*i}",f"v{32+2*i}").replace(f"v33+{2*i}",f"v{33+2*i}"))
    a(f"""
    buffer_store_dwordx4 v[{PK}:{PK+3}], v3, s[8:11], s48 offen sc1
    buffer_store_dwordx4 v[{PK+4}:{PK+7}], v3, s[8:11], s48 offen offset:1024 sc1
    s_mov_b32 s54, 2
{lab}_noq:
    s_add_u32 s48, s48, {32*QKV_BLK}
    s_add_u32 s49, s49, 1024
    s_add_u32 s40, s40, 1
    s_mov_b32 s42, s50
    s_cmp_eq_u32 s51, 0
    s_cbranch_scc1 {lab}_slow
    s_mov_b32 s47, s54
    s_add_u32 s43, s43, 32768
    s_add_u32 s45, s45, 128
    s_cmp_eq_u32 s54, 2
    s_cbranch_scc1 {lab}_fq
    s_waitcnt vmcnt(4)
{lab}_fq:
    s_barrier
    s_branch {lab}_unit
{lab}_slow:
    s_waitcnt vmcnt(0)
    s_sub_u32 s33, s49, 1024
    s_add_u32 s34, s33, 16
    s_cmp_eq_u32 s54, 2
    s_cselect_b32 s33, s34, s33
    """)
    set_flag(a,'s33',vtmp=(11,12))
    a(f"""
    s_mov_b32 s47, 0
    s_cmp_ge_u32 s40, 64
    s_cbranch_scc1 {lab}_done
    """)
    wait_flags(a,lab+'ws',NXN,'s45',fail,spin,vtmp=(8,9))
    for d in dma_list(8,13,'s42'): a(d)
    a(f"""
    s_add_u32 s43, s43, 32768
    s_add_u32 s45, s45, 128
    s_waitcnt vmcnt(0)
    s_barrier
    s_branch {lab}_unit
{lab}_done:
    """)

def emit_ATT(a, cfg, fail):
    spin=cfg.get('spin',SPIN_DEFAULT)
    lab=a.new('ATT')
    STG=131072
    a(f"""
    s_load_dwordx2 s[12:13], s[0:1], 40      ; Wq
    s_waitcnt lgkmcnt(0)
    s_mov_b32 s14, 4194304
    s_mov_b32 s15, 0x20000
    v_lshrrev_b32 v61, 4, v0
    v_and_b32 v60, 15, v0
    v_lshlrev_b32 v62, 2, v61
    v_xor_b32 v62, v60, v62
    v_lshlrev_b32 v62, 4, v62
    v_lshl_add_u32 v62, v61, 13, v62
    s_lshl_b32 s32, s5, 8
    v_add_u32 v40, s32, v62
    s_lshl_b32 s32, s6, 2
    """)
    tr_addr32(a,44,'s32',256,lambda r_,o: a(f"v_lshlrev_b32 v{o}, 2, v{r_}"),STG)
    a("v_lshlrev_b32 v46, 4, v0\ns_lshl_b32 s32, s6, 15\nv_add_u32 v46, s32, v46")
    for rnd in range(4):
        a(f"s_lshl_b32 s33, s6, 18\ns_add_u32 s33, s33, {rnd*128*8192}\ns_lshl_b32 s34, s6, 13\ns_add_u32 s34, s34, {STG}")
        for n in range(8):
            a(f"s_add_u32 m0, s34, {4*n*256}\ns_add_u32 s35, s33, {4*n*8192}\nbuffer_load_dwordx4 v40, s[12:15], s35 offen lds")
        a("s_waitcnt vmcnt(0)\ns_barrier")
        for ksl in range(8):
            for p in range(2):
                a(f"ds_read_b64_tr_b16 v[{64+4*ksl+2*p}:{65+4*ksl+2*p}], v44 offset:{ksl*4096+p*2048}")
        a("s_waitcnt lgkmcnt(0)")
        for ksl in range(8):
            a(f"ds_write_b128 v46, v[{64+4*ksl}:{67+4*ksl}] offset:{(8*rnd+ksl)*1024}")
        a("s_waitcnt lgkmcnt(0)\ns_barrier")
    a(f"""
    s_lshr_b32 s40, s6, 1                    ; layer
    s_and_b32 s41, s6, 1                     ; unit
    s_lshl_b32 s32, s40, 6
    s_add_u32 s32, s32, s41
    s_lshl_b32 s32, s32, 5
    s_add_u32 s32, s32, s5                   ; (l*64+u)*32 + h
    s_mul_i32 s43, s32, {QKV_BLK}
    s_lshl_b32 s44, s32, 12
    s_add_u32 s44, s44, {WS_KM}
    s_lshl_b32 s45, s32, 4
    s_add_u32 s45, s45, {WS_FLAG+FL_CH}
    s_lshl_b32 s49, s32, 5
    s_add_u32 s49, s49, {WS_FLAG+FL_P}
    s_lshl_b32 s33, s40, 6
    s_add_u32 s33, s33, s41                  ; l*64+u
    s_mul_i32 s34, s40, {6*64*32768}
    s_lshl_b32 s35, s41, 15
    s_add_u32 s50, s34, s35
    s_add_u32 s50, s50, {xs(T_XNB1,0)}
    s_lshl_b32 s34, s40, 14
    s_lshl_b32 s35, s41, 7
    s_add_u32 s51, s34, s35
    s_add_u32 s51, s51, {WS_FLAG+FL_XN+64*128}
    s_lshl_b32 s46, s32, 2
    s_add_u32 s46, s46, {WS_FLAG+FL_OB}
    s_lshl_b32 s33, s40, 6
    s_add_u32 s33, s33, s41
    s_lshl_b32 s33, s33, 18
    s_lshl_b32 s34, s5, 13
    s_add_u32 s47, s33, s34
    s_add_u32 s47, s47, {WS_OB}
    s_lshl_b32 s42, s6, 12
    s_add_u32 s42, s42, {STG}
    v_lshlrev_b32 v1, 4, v0
    v_lshrrev_b32 v60, 5, v0
    v_and_b32 v61, 7, v0
    v_lshlrev_b32 v2, 4, v61
    v_lshl_add_u32 v2, v60, 7, v2
    v_add_u32 v2, s42, v2
    v_and_b32 v61, 31, v0
    v_lshlrev_b32 v3, 4, v61
    v_lshl_add_u32 v3, v60, 3, v3
    v_add_u32 v3, s42, v3
    v_mov_b32 v7, 0xff7fffff
    v_mov_b32 v12, 0x3f803f80
    v_mov_b32 v13, 0x3f803f80
    v_mov_b32 v14, 0x3f803f80
    v_mov_b32 v15, 0x3f803f80
    s_mov_b32 s48, 0x3e0293ee
    """)
    a("v_mov_b32 v4, v1\nv_add_u32 v5, 0x10000, v1")
    causal_masks(a,64)
    K=32; V=64; KM=160; VM=192
    XA=96
    QV=128
    def xloads():
        out=[]
        for ks in range(32):
            pre=f"s_add_u32 s32, s50, {(ks>>2)*4096}\n" if ks%4==0 else ""
            out.append(pre+f"buffer_load_dwordx4 a[{XA+4*ks}:{XA+4*ks+3}], v1, s[8:11], s32 offen offset:{(ks&3)*1024} sc1")
        return out
    def xadv(): a("s_add_u32 s50, s50, 131072\ns_add_u32 s51, s51, 512")
    def kvloads():
        out=[]
        for blk,reg in ((1,K),(2,V)):
            for g in range(2):
                for j in range(4):
                    rr=reg+4*(4*g+j)
                    pre=f"s_add_u32 s32, s43, {blk*8192+g*4096}\n" if j==0 else ""
                    out.append(pre+f"buffer_load_dwordx4 a[{rr}:{rr+3}], v1, s[8:11], s32 offen offset:{j*1024} sc1")
        return out
    def core(tag, light):
        L=f"{lab}_{tag}"
        a(f"""
        s_waitcnt vmcnt(0)
        v_cmp_eq_u32 vcc, 0, v30
        s_cbranch_vccnz {L}_chw
        """)
        def kmdma():
            a("s_mov_b32 m0, s42")
            for j in range(4): a(f"buffer_load_dwordx4 v1, s[8:11], s44 offen offset:{j*1024} sc1 lds")
        def stok():
            for ks in range(8):
                c0='0' if ks==0 else 'v[32:47]'
                a(f"v_mfma_f32_32x32x16_bf16 v[32:47], a[{K+4*ks}:{K+4*ks+3}], v[{QV+4*ks}:{QV+4*ks+3}], {c0}")
            for r_ in range(16): a(f"v_cndmask_b32 v{32+r_}, v7, v{32+r_}, s[{64+2*r_}:{65+2*r_}]")
            a("""
            v_max3_f32 v24, v32, v33, v34
            v_max3_f32 v25, v35, v36, v37
            v_max3_f32 v24, v24, v38, v39
            v_max3_f32 v25, v25, v40, v41
            v_max3_f32 v24, v24, v42, v43
            v_max3_f32 v25, v25, v44, v45
            v_max3_f32 v24, v24, v46, v47
            """)
            for W_ in range(4): a(f"v_mov_b32 v{VM+4*W_+2}, 0\nv_mov_b32 v{VM+4*W_+3}, 0")
        xl=xloads()
        kmdma(); stok()
        a(f"s_branch {L}_kmw")
        a.label(L+'_chw')
        stok()
        if light:
            a(f"s_cmp_eq_u32 s53, 0\ns_cbranch_scc1 {L}_b1")
            for x in xl: a(x)
            xadv()
            a(f"s_mov_b32 s53, 2\n{L}_b1:")
        wait_flags(a,L+'wc',4,'s45',fail,spin,sleep=0)
        kmdma()
        a.label(L+'_kmw')
        a("s_waitcnt vmcnt(0)")
        for ks in range(8): a(f"ds_read_b128 v[{KM+4*ks}:{KM+4*ks+3}], v2 offset:{ks*256}")
        for W_ in range(4): a(f"ds_read_b64 v[{VM+4*W_}:{VM+4*W_+1}], v3 offset:{2048+W_*512}")
        for ks in range(8):
            a(f"s_waitcnt lgkmcnt({11-ks})")
            c1='0' if ks==0 else 'v[48:63]'
            a(f"v_mfma_f32_32x32x16_bf16 v[48:63], v[{KM+4*ks}:{KM+4*ks+3}], v[{QV+4*ks}:{QV+4*ks+3}], {c1}")
        a("""
        v_max3_f32 v25, v25, v48, v49
        v_max3_f32 v24, v24, v50, v51
        v_max_f32 v24, v24, v25
        v_mov_b32 v25, v24
        v_permlane32_swap_b32 v24, v25
        v_max_f32 v24, v24, v25
        v_mul_f32 v24, s48, v24
        """)
        for r_ in range(20): a(f"v_fma_f32 v{32+r_}, v{32+r_}, s48, -v24")
        for r_ in range(20): a(f"v_exp_f32 v{32+r_}, v{32+r_}")
        a("v_add_f32 v24, v32, v33\nv_add_f32 v25, v34, v35")
        for r_ in range(4,20,2): a(f"v_add_f32 v24, v24, v{32+r_}\nv_add_f32 v25, v25, v{33+r_}")
        a("""
        v_add_f32 v24, v24, v25
        v_mov_b32 v25, v24
        v_permlane32_swap_b32 v24, v25
        v_add_f32 v24, v24, v25
        v_rcp_f32 v24, v24
        """)
        for r_ in range(20): a(f"v_mul_f32 v{32+r_}, v{32+r_}, v24")
        for i in range(8): a(f"v_cvt_pk_bf16_f32 v{16+i}, v{32+2*i}, v{33+2*i}")
        a("""
        v_cvt_pk_bf16_f32 v8, v48, v49
        v_cvt_pk_bf16_f32 v9, v50, v51
        v_mov_b32 v10, 0
        v_mov_b32 v11, 0
        s_waitcnt lgkmcnt(0)
        """)
        OT=[64,80,96,112]; PK=208
        xq=list(xl) if light else []
        def mx(n=1):
            for _ in range(n):
                if xq:
                    LL=a.new(lab+'m'); a(f"s_cbranch_scc0 {LL}"); x=xq.pop(0)
                    a(x)
                    if x.startswith('s_add'): a("s_cmp_eq_u32 s53, 1")
                    a.label(LL)
        def pv(W_):
            o=OT[W_]
            a(f"v_mfma_f32_32x32x16_bf16 v[{o}:{o+15}], a[{V+8*W_}:{V+8*W_+3}], v[16:19], 0"); mx()
            a(f"v_mfma_f32_32x32x16_bf16 v[{o}:{o+15}], a[{V+8*W_+4}:{V+8*W_+7}], v[20:23], v[{o}:{o+15}]"); mx()
            a(f"v_mfma_f32_32x32x16_bf16 v[{o}:{o+15}], v[{VM+4*W_}:{VM+4*W_+3}], v[8:11], v[{o}:{o+15}]"); mx()
        def fin(W_):
            o=OT[W_]
            for i in range(8):
                a(f"v_cvt_pk_bf16_f32 v{PK+8*W_+i}, v{o+2*i}, v{o+2*i+1}")
                if i%2==1: mx()
        def sto(W_):
            if W_==2: a("s_add_u32 s32, s47, 4096")
            for f in range(2):
                fi=2*W_+f
                a(f"buffer_store_dwordx4 v[{PK+4*fi}:{PK+4*fi+3}], v1, s[8:11], {'s47' if fi<4 else 's32'} offen offset:{(fi&3)*1024} sc1")
        if light: a("s_cmp_eq_u32 s53, 1")
        pv(0); pv(1); pv(2); fin(0); pv(3); fin(1); fin(2); fin(3)
        if light:
            mx(32)
            a(f"s_cbranch_scc0 {L}_k2")
            xadv()
            a.label(L+'_k2')
        for W_ in range(4): sto(W_)
        a(f"""
        s_add_u32 s43, s43, {2*32*QKV_BLK}
        s_add_u32 s44, s44, {2*32*4096}
        s_add_u32 s45, s45, 1024
        s_add_u32 s49, s49, 2048
        s_add_u32 s47, s47, {2*262144}
        s_add_u32 s41, s41, 2
        """)
    def eager():
        a("s_waitcnt vmcnt(0)")
        set_flag(a,'s46',vtmp=(10,11))
        a("s_add_u32 s46, s46, 256\ns_mov_b32 s52, 0")
    cfg['init_wait'](a,lab,sb=16)
    a(f"""
    s_mov_b32 s52, 0
    s_cmp_eq_u32 s41, 0
    s_cbranch_scc0 {lab}_h0
    s_add_u32 s50, s50, 65536
    s_add_u32 s51, s51, 256
    s_branch {lab}_L
{lab}_h0:
    """)
    wait_flags(a,lab+'wx0',NXN,'s51',fail,spin)
    for x in xloads(): a(x)
    xadv()
    a.label(lab+'_H')
    roles.tsp(a,1,0,'s41',('s5','s40'))
    WR=64; NR=8; AHEAD=6
    seq=[(T,ks) for T in range(4) for ks in range(32)]
    def wrd(i):
        T,ks=seq[i]; r_=WR+4*(i%NR)
        a(f"ds_read_b128 v[{r_}:{r_+3}], v{4+(T>>1)} offset:{(T&1)*32768+ks*1024}")
    for i in range(AHEAD): wrd(i)
    QA=[96,112]
    pend=[]
    kvl=kvloads()
    for i,(T,ks) in enumerate(seq):
        acc=QA[T&1]; r_=WR+4*(i%NR)
        if T==0:
            if ks<8:
                LL=a.new(lab+'x')
                a(f"s_cmp_eq_u32 s52, 0\ns_cbranch_scc1 {LL}_0\ns_waitcnt vmcnt({39-ks})\ns_branch {LL}_1\n{LL}_0:\ns_waitcnt vmcnt({31-ks})\n{LL}_1:\ns_waitcnt lgkmcnt({AHEAD-1})")
            else: a(f"s_waitcnt vmcnt({31-ks}) lgkmcnt({AHEAD-1})")
        elif T==1 and ks==0:
            a(f"s_cmp_eq_u32 s52, 0\ns_cbranch_scc1 {lab}_nf")
            set_flag(a,'s46',vtmp=(10,11))
            a(f"s_add_u32 s46, s46, 256\ns_mov_b32 s52, 0\n{lab}_nf:")
            poll_issue(a,4,'s49',10,30)
            a(f"s_waitcnt lgkmcnt({AHEAD-1})")
        elif T==1 and ks==30:
            a(f"""
            s_waitcnt vmcnt(0)
            v_cmp_eq_u32 vcc, 0, v30
            s_cbranch_vccz {lab}_pok
            """)
            wait_flags(a,lab+'wp',4,'s49',fail,spin)
            a(f"{lab}_pok:\ns_waitcnt lgkmcnt({AHEAD-1})")
        else: a(f"s_waitcnt lgkmcnt({min(AHEAD-1,len(seq)-1-i)})")
        c='0' if ks==0 else f"v[{acc}:{acc+15}]"
        a(f"v_mfma_f32_32x32x16_bf16 v[{acc}:{acc+15}], v[{r_}:{r_+3}], a[{XA+4*ks}:{XA+4*ks+3}], {c}")
        if i+AHEAD<len(seq): wrd(i+AHEAD)
        if T>=1 and ks==0:
            pa=QA[(T-1)&1]
            pend=[f"v_cvt_pk_bf16_f32 v{QV+8*(T-1)+q}, v{pa+2*q}, v{pa+2*q+1}" for q in range(8)]
        if T>=1 and ks>=8 and pend: a(pend.pop(0))
        if T==2 and ks%2==1 and kvl: a(kvl.pop(0))
        if T==3 and ks==4: poll_issue(a,4,'s45',10,30)
    pa=QA[1]
    for q in range(8): a(f"v_cvt_pk_bf16_f32 v{QV+24+q}, v{pa+2*q}, v{pa+2*q+1}")
    roles.tsp(a,1,1,'s41',('s5','s40'))
    core('h',False)
    roles.tsp(a,1,5,'s41',('s5','s40'))
    eager()
    a(f"s_cmp_ge_u32 s41, 64\ns_cbranch_scc1 {lab}_done")
    a.label(lab+'_L')
    roles.tsp(a,1,0,'s41',('s5','s40'))
    wait_flags(a,lab+'wq',8,'s49',fail,spin)
    for g in range(2):
        a(f"s_add_u32 s32, s43, {g*4096}")
        for j in range(4):
            rr=QV+4*(4*g+j)
            a(f"buffer_load_dwordx4 v[{rr}:{rr+3}], v1, s[8:11], s32 offen offset:{j*1024} sc1")
    for x in kvloads(): a(x)
    poll_issue(a,NXN,'s51',11,31)
    poll_issue(a,4,'s45',10,30)
    a(f"""
    s_waitcnt vmcnt(0)
    s_mov_b32 s53, 0
    s_cmp_ge_u32 s41, 62
    s_cbranch_scc1 {lab}_np
    v_cmp_eq_u32 vcc, 0, v31
    s_cbranch_vccnz {lab}_np
    s_mov_b32 s53, 1
{lab}_np:
    """)
    core('l',True)
    roles.tsp(a,1,5,'s41',('s5','s40'))
    a(f"""
    s_cmp_eq_u32 s53, 1
    s_cbranch_scc0 {lab}_e1
    s_mov_b32 s52, 1
    s_branch {lab}_H
{lab}_e1:
    """)
    eager()
    a(f"""
    s_cmp_ge_u32 s41, 64
    s_cbranch_scc1 {lab}_done
    s_cmp_eq_u32 s53, 2
    s_cbranch_scc1 {lab}_H
    """)
    wait_flags(a,lab+'wxs',NXN,'s51',fail,spin)
    for x in xloads(): a(x)
    xadv()
    a(f"s_branch {lab}_H\n{lab}_done:")

def emit_O(a, cfg, fail):
    spin=cfg.get('spin',SPIN_DEFAULT)
    lab=a.new('O')
    a(f"""
    s_load_dwordx2 s[12:13], s[0:1], 64
    s_waitcnt lgkmcnt(0)
    s_mov_b32 s14, 4194304
    s_mov_b32 s15, 0x20000
    s_lshr_b32 s40, s5, 2                    ; kq
    s_and_b32 s41, s5, 3                     ; nq
    v_lshrrev_b32 v61, 4, v0
    v_and_b32 v60, 15, v0
    v_lshlrev_b32 v62, 2, v61
    v_xor_b32 v62, v60, v62
    v_lshlrev_b32 v62, 4, v62
    v_lshl_add_u32 v62, v61, 10, v62
    s_lshl_b32 s32, s41, 8
    v_add_u32 v40, s32, v62
    s_mov_b32 s32, 0
    """)
    tr_addr32(a,44,'s32',256,lambda r,o: a(f"v_lshlrev_b32 v{o}, 2, v{r}"),0)
    a("s_lshl_b32 s34, s6, 15\nv_add_u32 v44, s34, v44")
    for T in range(1,4): a(f"v_xor_b32 v{44+T}, {64*T}, v44")
    for rnd in range(2):
        a(f"s_lshl_b32 s33, s40, 20\ns_lshl_b32 s35, s6, 18\ns_add_u32 s33, s33, s35\ns_add_u32 s33, s33, {rnd*128*1024}")
        for n in range(32):
            a(f"s_add_u32 m0, s34, {4*n*256}\ns_add_u32 s35, s33, {4*n*1024}\nbuffer_load_dwordx4 v40, s[12:15], s35 offen lds")
        a("s_waitcnt vmcnt(0)")
        for ksl in range(8):
            ks=8*rnd+ksl
            for T in range(4):
                for p in range(2):
                    b=(T*16+ks)*4+2*p
                    a(f"ds_read_b64_tr_b16 a[{b}:{b+1}], v{44+T} offset:{ksl*4096+p*2048}")
            a("s_waitcnt lgkmcnt(4)")
        a("s_waitcnt lgkmcnt(0)")
    a(f"""
    s_barrier
    v_lshlrev_b32 v1, 4, v0
    s_lshl_b32 s32, s4, 24
    s_lshl_b32 s33, s40, 16
    s_lshl_b32 s34, s6, 14
    s_add_u32 s43, s32, s33
    s_add_u32 s43, s43, s34
    s_add_u32 s43, s43, {WS_OB}
    s_lshl_b32 s32, s4, 23
    s_lshl_b32 s33, s40, 15
    s_lshl_b32 s34, s41, 13
    s_add_u32 s44, s32, s33
    s_add_u32 s44, s44, s34
    s_lshl_b32 s34, s6, 11
    s_add_u32 s44, s44, s34
    s_add_u32 s44, s44, {WS_PO}
    s_lshl_b32 s32, s4, 13
    s_lshl_b32 s33, s40, 5
    s_lshl_b32 s34, s6, 3
    s_add_u32 s45, s32, s33
    s_add_u32 s45, s45, s34
    s_add_u32 s45, s45, {WS_FLAG+FL_OB}
    s_lshl_b32 s32, s4, 14
    s_lshl_b32 s33, s5, 4
    s_lshl_b32 s34, s6, 2
    s_add_u32 s46, s32, s33
    s_add_u32 s46, s46, s34
    s_add_u32 s46, s46, {WS_FLAG+FL_PO}
    s_lshl_b32 s32, s6, 14
    v_add_u32 v2, s32, v1
    s_lshl_b32 s32, s6, 12
    v_add_u32 v3, s32, v1
    s_mov_b32 s47, 0
    s_mov_b32 s51, 0
    """)
    XB=[64,128]
    def ld(st,ks):
        return f"s_add_u32 s32, s43, {(ks>>2)*4096}\nbuffer_load_dwordx4 v[{XB[st]+4*ks}:{XB[st]+4*ks+3}], v1, s[8:11], s32 offen offset:{(ks&3)*1024} sc1"
    def adv(): a("s_add_u32 s43, s43, 262144\ns_add_u32 s45, s45, 128")
    wait_flags(a,lab+'w0',2,'s45',fail,spin)
    for ks in range(16): a(ld(0,ks))
    adv()
    ACC=[0,16,32,48]
    AB=192
    def iteration(st):
        L=f"{lab}_i{st}"
        a.label(L)
        poll_issue(a,2,'s45',10,9)
        nl=[ld(1-st,ks) for ks in range(16)]
        for ks in range(16):
            a(f"s_waitcnt vmcnt({16-ks})") if ks<16 else None
            for T in range(4):
                acc=AB+16*T; c='0' if ks==0 else f"v[{acc}:{acc+15}]"; b=(T*16+ks)*4
                a(f"v_mfma_f32_32x32x16_bf16 v[{acc}:{acc+15}], a[{b}:{b+3}], v[{XB[st]+4*ks}:{XB[st]+4*ks+3}], {c}")
            if ks==15: break
        return nl
    def unit(st):
        L=f"{lab}_i{st}"
        a.label(L)
        poll_issue(a,2,'s45',10,9)
        for ks in range(8):
            a(f"s_waitcnt vmcnt({16-ks})")
            for T in range(4):
                acc=AB+16*T; c='0' if ks==0 else f"v[{acc}:{acc+15}]"; b=(T*16+ks)*4
                a(f"v_mfma_f32_32x32x16_bf16 v[{acc}:{acc+15}], a[{b}:{b+3}], v[{XB[st]+4*ks}:{XB[st]+4*ks+3}], {c}")
        a(f"""
        s_waitcnt vmcnt(0)
        s_mov_b32 s49, 0
        s_cmp_ge_u32 s47, 63
        s_cbranch_scc1 {L}_np
        v_cmp_eq_u32 vcc, 0, v9
        s_cbranch_vccnz {L}_np
        s_mov_b32 s49, 1
{L}_np:
        s_cmp_eq_u32 s49, 1
        """)
        nl=[ld(1-st,ks) for ks in range(16)]
        for ks in range(8,16):
            for T in range(4):
                acc=AB+16*T; b=(T*16+ks)*4
                a(f"v_mfma_f32_32x32x16_bf16 v[{acc}:{acc+15}], a[{b}:{b+3}], v[{XB[st]+4*ks}:{XB[st]+4*ks+3}], v[{acc}:{acc+15}]")
                if T%2==1:
                    LL=a.new(L+'m'); a(f"s_cbranch_scc0 {LL}"); a(nl.pop(0)); a(f"s_cmp_eq_u32 s49, 1\n{LL}:")
        a("v_add_u32 v4, s51, v2\nv_add_u32 v5, s51, v3")
        for q in range(16): a(f"ds_write_b128 v4, v[{AB+4*q}:{AB+3+4*q}] offset:{q*1024}")
        a("s_waitcnt lgkmcnt(0)\ns_barrier")
        R=16
        for w in range(4):
            for q in range(4): a(f"ds_read_b128 v[{AB+16*w+4*q}:{AB+3+16*w+4*q}], v5 offset:{w*16384+q*1024}")
        a("s_xor_b32 s51, s51, 65536\ns_waitcnt lgkmcnt(8)")
        for r in range(0,16,2): a(f"v_pk_add_f32 v[{AB+r}:{AB+1+r}], v[{AB+r}:{AB+1+r}], v[{AB+16+r}:{AB+17+r}]")
        a("s_waitcnt lgkmcnt(0)")
        for r in range(0,16,2): a(f"v_pk_add_f32 v[{AB+32+r}:{AB+33+r}], v[{AB+32+r}:{AB+33+r}], v[{AB+48+r}:{AB+49+r}]")
        for r in range(0,16,2): a(f"v_pk_add_f32 v[{AB+r}:{AB+1+r}], v[{AB+r}:{AB+1+r}], v[{AB+32+r}:{AB+33+r}]")
        for i in range(8): a(f"v_cvt_pk_bf16_f32 v{16+i}, v{AB+2*i}, v{AB+1+2*i}")
        a(f"""
        buffer_store_dwordx4 v[16:19], v1, s[8:11], s44 offen sc1
        buffer_store_dwordx4 v[20:23], v1, s[8:11], s44 offen offset:1024 sc1
        s_add_u32 s44, s44, 131072
        s_add_u32 s47, s47, 1
        s_waitcnt vmcnt(0)
        """)
        set_flag(a,'s46',vtmp=(10,11))
        a(f"""
        s_add_u32 s46, s46, 256
        s_cmp_eq_u32 s49, 1
        s_cbranch_scc0 {L}_slow
        """)
        adv()
        a(f"""
        s_branch {lab}_i{1-st}
{L}_slow:
        s_cmp_ge_u32 s47, 64
        s_cbranch_scc1 {lab}_done
        """)
        wait_flags(a,L+'ws',2,'s45',fail,spin)
        for ks in range(16): a(ld(1-st,ks))
        adv()
        if st==1: a(f"s_branch {lab}_i0")
    unit(0); unit(1)
    a.label(lab+'_done')

def emit_O5(a, cfg, fail):
    spin=cfg.get('spin',SPIN_DEFAULT)
    lab=a.new('O')
    a(f"""
    s_load_dwordx2 s[12:13], s[0:1], 64
    s_waitcnt lgkmcnt(0)
    s_mov_b32 s14, 4194304
    s_mov_b32 s15, 0x20000
    s_lshr_b32 s40, s5, 2                    ; kq
    s_and_b32 s41, s5, 3                     ; nq
    v_lshrrev_b32 v61, 4, v0
    v_and_b32 v60, 15, v0
    v_lshlrev_b32 v62, 2, v61
    v_xor_b32 v62, v60, v62
    v_lshlrev_b32 v62, 4, v62
    v_lshl_add_u32 v62, v61, 10, v62
    s_lshl_b32 s32, s41, 8
    v_add_u32 v40, s32, v62
    s_and_b32 s54, s6, 1                     ; nh
    s_lshr_b32 s55, s6, 1                    ; kh
    s_lshl_b32 s32, s54, 3
    """)
    tr_addr32(a,44,'s32',256,lambda r,o: a(f"v_lshlrev_b32 v{o}, 2, v{r}"),0)
    a("v_xor_b32 v45, 64, v44\nv_add_u32 v46, 0x10000, v44\nv_add_u32 v47, 0x10000, v45")
    def issue(i):
        a(f"s_lshl_b32 s33, s40, 20\ns_lshl_b32 s35, s6, 16\ns_add_u32 s33, s33, s35\ns_add_u32 s33, s33, {i*256*1024}\ns_lshl_b32 s34, s6, 14\ns_add_u32 s34, s34, {(i&1)*65536}")
        for n in range(16):
            a(f"s_add_u32 m0, s34, {4*n*256}\ns_add_u32 s35, s33, {4*n*1024}\nbuffer_load_dwordx4 v40, s[12:15], s35 offen lds")
    issue(0); issue(1)
    for i in range(4):
        L=a.new(lab+'w')
        a(f"s_waitcnt vmcnt({16 if i<3 else 0})\ns_barrier\ns_cmp_lg_u32 s55, {i>>1}\ns_cbranch_scc1 {L}")
        for ksl in range(16):
            ks=16*(i&1)+ksl
            for T in range(2):
                for p in range(2):
                    b=(T*32+ks)*4+2*p
                    a(f"ds_read_b64_tr_b16 a[{b}:{b+1}], v{44+T+2*(i&1)} offset:{ksl*4096+p*2048}")
            if ksl%2==1: a("s_waitcnt lgkmcnt(4)")
        a(f"{L}:\ns_waitcnt lgkmcnt(0)\ns_barrier")
        if i+2<4: issue(i+2)
    a(f"""
    v_lshlrev_b32 v1, 4, v0
    s_lshl_b32 s32, s6, 14
    v_add_u32 v2, s32, v1
    s_lshl_b32 s32, s4, 24
    s_lshl_b32 s33, s40, 16
    s_add_u32 s43, s32, s33
    s_add_u32 s43, s43, {WS_OB}
    s_lshl_b32 s32, s4, 23
    s_lshl_b32 s33, s40, 15
    s_lshl_b32 s34, s41, 13
    s_add_u32 s44, s32, s33
    s_add_u32 s44, s44, s34
    s_lshl_b32 s34, s54, 12
    s_add_u32 s44, s44, s34
    s_lshl_b32 s34, s55, 11
    s_add_u32 s44, s44, s34
    s_add_u32 s44, s44, {WS_PO}
    s_lshl_b32 s32, s4, 13
    s_lshl_b32 s33, s40, 5
    s_lshl_b32 s34, s6, 3
    s_add_u32 s45, s32, s33
    s_add_u32 s45, s45, s34
    s_add_u32 s45, s45, {WS_FLAG+FL_OB}
    s_lshl_b32 s32, s4, 14
    s_lshl_b32 s33, s5, 4
    s_lshl_b32 s34, s6, 2
    s_add_u32 s46, s32, s33
    s_add_u32 s46, s46, s34
    s_add_u32 s46, s46, {WS_FLAG+FL_PO}
    s_mov_b32 s47, 0
    s_mov_b32 s42, 0
    s_mov_b32 s52, 0
    """)
    def dma(bufreg):
        out=[]
        for n in range(16):
            out.append(f"s_lshl_b32 s32, s6, 14\ns_add_u32 s32, s32, {bufreg}\ns_add_u32 m0, s32, {(n>>2)*4096}\ns_add_u32 s33, s43, {(n>>2)*4096}\nbuffer_load_dwordx4 v2, s[8:11], s33 offen offset:{(n&3)*1024} sc1 lds")
        return out
    def adv(): a("s_add_u32 s43, s43, 262144\ns_add_u32 s45, s45, 128")
    cfg['init_wait'](a,lab)
    wait_flags(a,lab+'w0',2,'s45',fail,spin)
    for d in dma_list(16,14,'s42'): a(d)
    adv()
    a("s_waitcnt vmcnt(0)\ns_barrier")
    a.label(lab+'_unit')
    roles.tsp(a,0,1,'s47',('s4','s5','s6'))
    a("s_lshl_b32 s32, s55, 15\ns_add_u32 s32, s32, s42\nv_add_u32 v5, s32, v1\ns_xor_b32 s50, s42, 65536")
    poll_issue(a,2,'s45',10,9)
    XR=64; NR=8; AHEAD=6
    def rd(i): a(f"ds_read_b128 v[{XR+4*(i%NR)}:{XR+4*(i%NR)+3}], v5 offset:{i*1024}")
    for i in range(AHEAD): rd(i)
    dl=dma_list(16,14,'s50')
    def mf(ks):
        r=XR+4*(ks%NR)
        for T in range(2):
            acc=32+16*T; c='0' if ks==0 else f"v[{acc}:{acc+15}]"; b=(T*32+ks)*4
            a(f"v_mfma_f32_32x32x16_bf16 v[{acc}:{acc+15}], a[{b}:{b+3}], v[{r}:{r+3}], {c}")
    def check():
        a(f"s_cmp_eq_u32 s52, 0\ns_cbranch_scc1 {lab}_nq0\ns_waitcnt vmcnt(1)")
        set_flag(a,'s46',vtmp=(11,12))
        a(f"""
        s_add_u32 s46, s46, 256
        s_mov_b32 s52, 0
        s_waitcnt vmcnt(1)
        s_branch {lab}_nq
{lab}_nq0:
        s_waitcnt vmcnt(0)
{lab}_nq:
        s_mov_b32 s48, 0
        s_cmp_ge_u32 s47, 63
        s_cselect_b32 s49, 1, 0
        v_cmp_eq_u32 vcc, 0, v9
        s_cmp_eq_u64 vcc, 0
        s_cselect_b32 s48, 1, 0
        s_cmp_eq_u32 s49, 1
        s_cselect_b32 s48, 0, s48
        """)
    gemm_loop(a,lab,32,mf,rd,AHEAD,12,check,dl)
    roles.tsp(a,0,2,'s47',('s4','s5','s6'))
    L=a.new(lab+'r')
    a(f"""
    s_lshl_b32 s32, s6, 12
    s_add_u32 s32, s32, 131072
    v_add_u32 v6, s32, v1
    s_xor_b32 s32, s6, 2
    s_lshl_b32 s32, s32, 12
    s_add_u32 s32, s32, 131072
    v_add_u32 v7, s32, v1
    s_cmp_eq_u32 s55, 0
    s_cbranch_scc1 {L}_0
    """)
    for q in range(4): a(f"ds_write_b128 v6, v[{32+4*q}:{35+4*q}] offset:{q*1024}")
    for r_ in range(16): a(f"v_mov_b32 v{32+r_}, v{48+r_}")
    a(f"s_branch {L}_1\n{L}_0:")
    for q in range(4): a(f"ds_write_b128 v6, v[{48+4*q}:{51+4*q}] offset:{q*1024}")
    a(f"{L}_1:\ns_waitcnt lgkmcnt(0)\ns_barrier")
    for q in range(4): a(f"ds_read_b128 v[{48+4*q}:{51+4*q}], v7 offset:{q*1024}")
    a("s_waitcnt lgkmcnt(0)")
    for r_ in range(0,16,2): a(f"v_pk_add_f32 v[{32+r_}:{33+r_}], v[{32+r_}:{33+r_}], v[{48+r_}:{49+r_}]")
    pack_tile(a,32,96)
    for f in range(2):
        a(f"buffer_store_dwordx4 v[{96+4*f}:{99+4*f}], v1, s[8:11], s44 offen offset:{f*1024} sc1")
    a(f"""
    s_add_u32 s44, s44, 131072
    s_add_u32 s47, s47, 1
    s_mov_b32 s42, s50
    s_cmp_eq_u32 s48, 0
    s_cbranch_scc1 {lab}_slow
    s_mov_b32 s52, 1
    """)
    adv()
    a(f"""
    s_waitcnt vmcnt(2)
    s_barrier
    s_branch {lab}_unit
{lab}_slow:
    s_waitcnt vmcnt(0)
    """)
    roles.tsp(a,0,3,'s47',('s4','s5','s6'))
    set_flag(a,'s46',vtmp=(11,12))
    a(f"""
    s_add_u32 s46, s46, 256
    s_cmp_ge_u32 s47, 64
    s_cbranch_scc1 {lab}_done
    """)
    wait_flags(a,lab+'ws',2,'s45',fail,spin)
    roles.tsp(a,0,0,'s47',('s4','s5','s6'))
    for d in dma_list(16,14,'s42'): a(d)
    adv()
    a(f"""
    s_waitcnt vmcnt(0)
    s_barrier
    s_branch {lab}_unit
{lab}_done:
    """)
```

```python
from common import *
import roles
from roles import wait_flags, set_flag, flagval, tr_addr32, pack_tile, causal_masks, SPIN_DEFAULT
from roles2 import poll_issue
NXN=16
NYA=16

def dma_list(n, shift, bufreg):
    out=[]
    for i in range(n):
        pre=''
        if i==0: pre+=f"s_lshl_b32 s53, s6, {shift}\ns_add_u32 s53, s53, {bufreg}\n"
        if i%4==0: pre+=f"s_add_u32 m0, s53, {(i>>2)*4096}\ns_add_u32 s33, s43, {(i>>2)*4096}\n"
        out.append(pre+f"buffer_load_dwordx4 v2, s[8:11], s33 offen offset:{(i&3)*1024} sc1 lds")
    return out

def gemm_loop(a, lab, nks, mf, rd, AHEAD, chk_ks, emit_check, dl, extra=None):
    def step(ks):
        a(f"s_waitcnt lgkmcnt({min(AHEAD-1,nks-1-ks)})")
        mf(ks)
        if ks+AHEAD<nks: rd(ks+AHEAD)
        if extra: extra(ks)
    for ks in range(chk_ks+1): step(ks)
    emit_check()
    L=a.new(lab+'v')
    n=len(dl)
    a(f"s_cmp_eq_u32 s48, 0\ns_cbranch_scc1 {L}_n")
    for j in range(n):
        step(chk_ks+1+j); a(dl[j])
    a(f"s_branch {L}_e\n{L}_n:")
    for j in range(n): step(chk_ks+1+j)
    a.label(L+'_e')
    for ks in range(chk_ks+1+n,nks): step(ks)

def emit_F(a, cfg, typ, fail):
    spin=cfg.get('spin',SPIN_DEFAULT)
    lab=a.new('F'+typ)
    npart={'T0':0,'T1':1,'T2':4,'T3':4}[typ]
    nfl={'T0':0,'T1':NYA,'T2':64,'T3':64}[typ]
    US=2 if typ=='T2' else 1
    flstep={'T0':0,'T1':128,'T2':256,'T3':256}[typ]*US
    a(f"""
    v_and_b32 v1, 7, v0
    v_bfe_u32 v2, v0, 3, 1
    v_lshrrev_b32 v3, 4, v0
    v_lshlrev_b32 v4, 4, v1
    v_lshl_add_u32 v4, v2, 9, v4
    v_lshl_add_u32 v4, v3, 10, v4
    s_lshl_b32 s12, s6, 13
    s_lshl_b32 s13, s5, 7
    s_add_u32 s12, s12, s13
    v_add_u32 v4, s12, v4
    s_lshl_b32 s13, s5, 3
    v_add_u32 v5, s13, v1
    v_lshlrev_b32 v5, 10, v5
    v_lshl_add_u32 v5, v3, 5, v5
    v_lshl_add_u32 v5, v2, 4, v5
    s_lshl_b32 s13, s6, 8
    v_add_u32 v5, s13, v5
    v_lshlrev_b32 v6, 3, v1
    s_lshl_b32 s13, s6, 6
    v_add_u32 v7, s13, v6
    """)
    if typ=='T0':
        a(f"""
        s_load_dwordx2 s[16:17], s[0:1], 0
        s_waitcnt lgkmcnt(0)
        s_mov_b32 s18, {2048*1024}
        s_mov_b32 s19, 0x20000
        s_mov_b32 s20, 0
        s_mov_b32 s22, {xs(T_X0,0)}
        s_mov_b32 s23, {xs(T_XNA1,0)}
        s_mov_b32 s24, {WS_FLAG+FL_XN+0*64*128}
        """)
    elif typ=='T1':
        a(f"""
        s_mul_i32 s13, s4, {6*64*32768}
        s_add_u32 s20, s13, {xs(T_X0,0)}
        s_add_u32 s21, s13, {xs(T_YA1,0)}
        s_add_u32 s22, s13, {xs(T_X1,0)}
        s_add_u32 s23, s13, {xs(T_XNB1,0)}
        s_lshl_b32 s13, s4, 14
        s_add_u32 s24, s13, {WS_FLAG+FL_XN+1*64*128}
        s_lshl_b32 s13, s4, 13
        s_add_u32 s25, s13, {WS_FLAG+FL_YA}
        """)
    elif typ=='T2':
        a(f"""
        s_lshl_b32 s13, s4, 15
        s_add_u32 s20, s13, {xs(T_X1,0)}
        s_add_u32 s22, s13, {xs(T_X2,0)}
        s_add_u32 s23, s13, {xs(T_XNA2,0)}
        s_lshl_b32 s13, s4, 17
        s_add_u32 s21, s13, {WS_PO}
        s_lshl_b32 s13, s4, 7
        s_add_u32 s24, s13, {WS_FLAG+FL_XN+2*64*128}
        s_lshl_b32 s13, s4, 8
        s_add_u32 s25, s13, {WS_FLAG+FL_PO}
        """)
    else:
        a(f"""
        s_load_dwordx2 s[16:17], s[0:1], 80
        s_waitcnt lgkmcnt(0)
        s_mov_b32 s18, {2048*1024}
        s_mov_b32 s19, 0x20000
        s_mov_b32 s20, {xs(T_X3,0)}
        s_mov_b32 s21, {WS_PO+64*131072}
        s_mov_b32 s22, 0
        s_mov_b32 s25, {WS_FLAG+FL_PO+64*256}
        """)
    a(f"""
    s_lshl_b32 s13, s5, 4
    s_lshl_b32 s14, s6, 2
    s_add_u32 s13, s13, s14
    {'s_add_u32 s24, s24, s13' if typ!='T3' else ''}
    s_mov_b32 s26, 0
    v_mov_b32 v8, 0x3f803f80
    s_mov_b32 s27, 0xffff0000
    s_mov_b32 s30, 0
    s_mov_b32 s31, 0
    """)
    SETS=[(16,24),(64,72)]
    W=112
    NS={'T0':4,'T1':4,'T2':4,'T3':2}[typ]
    def xchg(X):
        for j in range(2):
            b=X+4*j
            for d in range(2):
                a(f"""
                v_mov_b32 v12, v{b+d}
                s_nop 1
                v_mov_b32_dpp v{b+d}, v{b+2+d} row_shr:8 row_mask:0xf bank_mask:0xc
                v_mov_b32_dpp v{b+2+d}, v12 row_shl:8 row_mask:0xf bank_mask:0x3
                """)
    def loads(st):
        X,P0=SETS[st]
        if typ=='T0':
            for j in range(2): a(f"buffer_load_dwordx4 v[{X+4*j}:{X+4*j+3}], v5, s[16:19], s20 offen offset:{128*j}")
            a("s_add_u32 s20, s20, 32768")
        else:
            for p in range(npart):
                for j in range(2):
                    a(f"s_add_u32 s13, s21, {p*32768+j*4096}\nbuffer_load_dwordx4 v[{P0+8*p+4*j}:{P0+8*p+4*j+3}], v4, s[8:11], s13 offen sc1")
            for j in range(2):
                a(f"s_add_u32 s13, s20, {j*4096}\nbuffer_load_dwordx4 v[{X+4*j}:{X+4*j+3}], v4, s[8:11], s13 offen sc1")
            a(f"s_add_u32 s20, s20, {32768*US}\ns_add_u32 s21, s21, {(32768 if typ=='T1' else 131072)*US}\ns_add_u32 s25, s25, {flstep}")
    def flag_prev():
        if typ=='T3': return
        set_flag(a,'s24')
        a(f"s_add_u32 s24, s24, {128*US}")
    cfg['init_wait'](a,lab)
    if nfl: wait_flags(a,lab+'w0',nfl,'s25',fail,spin)
    loads(0)
    def iteration(st):
        X,P0=SETS[st]; L=f"{lab}_i{st}"
        a.label(L)
        if nfl: poll_issue(a,nfl,'s25',10,9)
        np_=1 if nfl else 0
        a(f"""
        s_cmp_eq_u32 s31, 0
        s_cbranch_scc1 {L}_w1
        s_waitcnt vmcnt({NS+np_})
        s_branch {L}_w2
{L}_w1:
        s_waitcnt vmcnt({np_})
{L}_w2:
        """)
        if typ=='T0': xchg(X)
        else:
            for r in range(8):
                w0=W+2*r
                if npart==4:
                    a(f"""
                    v_lshlrev_b32 v{w0}, 16, v{P0+r}
                    v_and_b32 v{w0+1}, s27, v{P0+r}
                    v_lshlrev_b32 v12, 16, v{P0+8+r}
                    v_and_b32 v13, s27, v{P0+8+r}
                    v_lshlrev_b32 v14, 16, v{P0+16+r}
                    v_and_b32 v15, s27, v{P0+16+r}
                    v_pk_add_f32 v[{w0}:{w0+1}], v[{w0}:{w0+1}], v[12:13]
                    v_lshlrev_b32 v12, 16, v{P0+24+r}
                    v_and_b32 v13, s27, v{P0+24+r}
                    v_pk_add_f32 v[14:15], v[14:15], v[12:13]
                    v_pk_add_f32 v[{w0}:{w0+1}], v[{w0}:{w0+1}], v[14:15]
                    v_cvt_pk_bf16_f32 v{P0+r}, v{w0}, v{w0+1}
                    """)
                a(f"""
                v_lshlrev_b32 v{w0}, 16, v{P0+r}
                v_and_b32 v{w0+1}, s27, v{P0+r}
                v_lshlrev_b32 v12, 16, v{X+r}
                v_and_b32 v13, s27, v{X+r}
                v_pk_add_f32 v[{w0}:{w0+1}], v[{w0}:{w0+1}], v[12:13]
                v_cvt_pk_bf16_f32 v{X+r}, v{w0}, v{w0+1}
                """)
        def prefetch():
            a(f"""
            s_mov_b32 s31, 0
            s_cmp_ge_u32 s26, {64//US-1}
            s_cbranch_scc1 {L}_np
            """)
            if nfl: a(f"v_cmp_eq_u32 vcc, 0, v9\ns_cbranch_vccnz {L}_np")
            a("s_mov_b32 s31, 1")
            loads(1-st)
            a.label(L+'_np')
        if typ=='T3':
            xchg(X)
            for j in range(2): a(f"buffer_store_dwordx4 v[{X+4*j}:{X+4*j+3}], v5, s[16:19], s22 offen offset:{128*j}")
            a("s_add_u32 s22, s22, 32768")
            a("s_waitcnt vmcnt(2)")
            prefetch()
            a(f"""
            s_add_u32 s26, s26, 1
            s_cmp_eq_u32 s31, 1
            s_cbranch_scc0 {L}_slow
            s_mov_b32 s31, 0
            s_branch {lab}_i{1-st}
{L}_slow:
            s_cmp_ge_u32 s26, {64//US}
            s_cbranch_scc1 {lab}_done
            """)
            wait_flags(a,L+'ws',nfl,'s25',fail,spin)
            loads(1-st)
            if st==1: a(f"s_branch {lab}_i0")
            return
        if nfl: a("s_waitcnt vmcnt(0)")
        prefetch()
        a("s_add_u32 s13, s22, 4096")
        for j in range(2):
            a(f"buffer_store_dwordx4 v[{X+4*j}:{X+4*j+3}], v4, s[8:11], {'s22' if j==0 else 's13'} offen sc1")
        a("v_mov_b32 v12, 0\nv_mov_b32 v13, 0\nv_mov_b32 v14, 0\nv_mov_b32 v15, 0")
        for r in range(0,8,2):
            a(f"v_dot2_f32_bf16 v12, v{X+r}, v8, v12\nv_dot2_f32_bf16 v13, v{X+r}, v{X+r}, v13\nv_dot2_f32_bf16 v14, v{X+r+1}, v8, v14\nv_dot2_f32_bf16 v15, v{X+r+1}, v{X+r+1}, v15")
        a(f"""
        v_pk_add_f32 v[12:13], v[12:13], v[14:15]
        s_nop 1
        v_add_f32_dpp v12, v12, v12 row_ror:8 row_mask:0xf bank_mask:0xf
        v_add_f32_dpp v13, v13, v13 row_ror:8 row_mask:0xf bank_mask:0xf
        v_mov_b32 v10, v12
        v_mov_b32 v11, v13
        v_permlane16_swap_b32 v12, v10
        v_permlane16_swap_b32 v13, v11
        v_pk_add_f32 v[12:13], v[12:13], v[10:11]
        v_mov_b32 v10, v12
        v_mov_b32 v11, v13
        v_permlane32_swap_b32 v12, v10
        v_permlane32_swap_b32 v13, v11
        v_pk_add_f32 v[12:13], v[12:13], v[10:11]
        s_mov_b64 exec, 0xff
        ds_write_b64 v7, v[12:13] offset:{256*st}
        s_mov_b64 exec, -1
        s_waitcnt lgkmcnt(0)
        s_barrier
        ds_read_b64 v[10:11], v6 offset:{256*st}
        ds_read_b64 v[12:13], v6 offset:{256*st+64}
        ds_read_b64 v[14:15], v6 offset:{256*st+128}
        ds_read_b64 v[{W}:{W+1}], v6 offset:{256*st+192}
        s_waitcnt lgkmcnt(0)
        v_pk_add_f32 v[10:11], v[10:11], v[12:13]
        v_pk_add_f32 v[14:15], v[14:15], v[{W}:{W+1}]
        v_pk_add_f32 v[10:11], v[10:11], v[14:15]
        v_mul_f32 v10, 0x3b000000, v10
        v_mul_f32 v11, 0x3b000000, v11
        v_fma_f32 v11, -v10, v10, v11
        v_max_f32 v11, 0, v11
        v_cvt_pk_bf16_f32 v14, v10, v11
        v_lshlrev_b32 v12, 16, v14
        v_and_b32 v11, s27, v14
        v_add_f32 v11, 0x3727c5ac, v11
        v_cvt_pk_bf16_f32 v11, v11, v11
        v_and_b32 v11, s27, v11
        v_sqrt_f32 v11, v11
        v_mov_b32 v13, v12
        v_cvt_pk_bf16_f32 v11, v11, v11
        v_and_b32 v11, s27, v11
        v_rcp_f32 v14, v11
        s_nop 0
        v_mov_b32 v15, v14
        """)
        for r in range(8):
            w0=W+2*r
            a(f"""
            v_lshlrev_b32 v{w0}, 16, v{X+r}
            v_and_b32 v{w0+1}, s27, v{X+r}
            v_pk_add_f32 v[{w0}:{w0+1}], v[{w0}:{w0+1}], v[12:13] neg_lo:[0,1] neg_hi:[0,1]
            v_cvt_pk_bf16_f32 v{P0+r}, v{w0}, v{w0+1}
            v_lshlrev_b32 v{w0}, 16, v{P0+r}
            v_and_b32 v{w0+1}, s27, v{P0+r}
            v_pk_mul_f32 v[{w0}:{w0+1}], v[{w0}:{w0+1}], v[14:15]
            v_cvt_pk_bf16_f32 v{P0+r}, v{w0}, v{w0+1}
            """)
        a("s_add_u32 s13, s23, 4096")
        for j in range(2):
            a(f"buffer_store_dwordx4 v[{P0+4*j}:{P0+4*j+3}], v4, s[8:11], {'s23' if j==0 else 's13'} offen sc1")
        a(f"s_add_u32 s22, s22, {32768*US}\ns_add_u32 s23, s23, {32768*US}")
        a("s_waitcnt vmcnt(0)")
        flag_prev()
        a(f"""
        s_add_u32 s26, s26, 1
        s_cmp_eq_u32 s31, 1
        s_cbranch_scc0 {L}_slow
        s_mov_b32 s31, 0
        s_branch {lab}_i{1-st}
{L}_slow:
        s_cmp_ge_u32 s26, {64//US}
        s_cbranch_scc1 {lab}_done
        """)
        if nfl: wait_flags(a,L+'ws',nfl,'s25',fail,spin)
        loads(1-st)
        if st==1: a(f"s_branch {lab}_i0")
    iteration(0); iteration(1)
    a.label(lab+'_done')

def emit_AWO(a, cfg, fail):
    spin=cfg.get('spin',SPIN_DEFAULT)
    lab=a.new('AWO')
    a("""
    s_load_dwordx2 s[12:13], s[0:1], 16      ; A_wo [512][512]
    s_waitcnt lgkmcnt(0)
    s_mov_b32 s14, 524288
    s_mov_b32 s15, 0x20000
    v_lshrrev_b32 v61, 4, v0
    v_and_b32 v60, 15, v0
    v_lshlrev_b32 v62, 2, v61
    v_xor_b32 v62, v60, v62
    v_lshlrev_b32 v62, 4, v62
    v_lshl_add_u32 v62, v61, 10, v62
    s_lshl_b32 s32, s5, 8
    v_add_u32 v40, s32, v62
    s_lshl_b32 s32, s6, 2
    """)
    tr_addr32(a,44,'s32',256,lambda r,o: a(f"v_lshlrev_b32 v{o}, 2, v{r}"),0)
    a("v_add_u32 v45, 0x10000, v44")
    a("s_lshl_b32 s33, s6, 17\ns_lshl_b32 s34, s6, 15")
    for n in range(32):
        a(f"s_add_u32 m0, s34, {4*n*256}\ns_add_u32 s35, s33, {4*n*1024}\nbuffer_load_dwordx4 v40, s[12:15], s35 offen lds")
    a("s_waitcnt vmcnt(0)\ns_barrier")
    for ks in range(32):
        for p in range(2):
            a(f"ds_read_b64_tr_b16 a[{4*ks+2*p}:{4*ks+2*p+1}], v{44+(ks>>4)} offset:{(ks&15)*4096+p*2048}")
        if ks%4==3: a("s_waitcnt lgkmcnt(4)")
    a("s_waitcnt lgkmcnt(0)\ns_barrier")
    a(f"""
    v_lshlrev_b32 v1, 4, v0
    s_lshl_b32 s32, s6, 13
    v_add_u32 v2, s32, v1
    s_lshl_b32 s32, s5, 13
    s_lshl_b32 s33, s6, 11
    s_add_u32 s32, s32, s33
    v_add_u32 v3, s32, v1
    s_mul_i32 s32, s4, {6*64*32768}
    s_add_u32 s43, s32, {xs(T_OA1,0)}
    s_add_u32 s44, s32, {xs(T_YA1,0)}
    s_lshl_b32 s32, s4, 13
    s_add_u32 s45, s32, {WS_FLAG+FL_OA}
    s_lshl_b32 s33, s5, 4
    s_lshl_b32 s34, s6, 2
    s_add_u32 s33, s33, s34
    s_add_u32 s46, s32, {WS_FLAG+FL_YA}
    s_add_u32 s46, s46, s33
    s_mov_b32 s40, 0
    s_mov_b32 s42, 0
    """)
    def dma(bufreg):
        out=[]
        for n in range(8):
            out.append(f"s_lshl_b32 s32, s6, 13\ns_add_u32 s32, s32, {bufreg}\ns_add_u32 m0, s32, {(n>>2)*4096}\ns_add_u32 s33, s43, {(n>>2)*4096}\nbuffer_load_dwordx4 v2, s[8:11], s33 offen offset:{(n&3)*1024} sc1 lds")
        return out
    cfg['init_wait'](a,lab)
    wait_flags(a,lab+'w0',32,'s45',fail,spin)
    for d in dma_list(8,13,'s42'): a(d)
    a("s_add_u32 s43, s43, 32768\ns_add_u32 s45, s45, 128\ns_waitcnt vmcnt(0)\ns_barrier")
    a.label(lab+'_unit')
    a("v_add_u32 v5, s42, v1\ns_xor_b32 s50, s42, 32768")
    poll_issue(a,32,'s45',10,9)
    XR=64; NR=8; AHEAD=6
    def rd(i): a(f"ds_read_b128 v[{XR+4*(i%NR)}:{XR+4*(i%NR)+3}], v5 offset:{i*1024}")
    for i in range(AHEAD): rd(i)
    dl=dma_list(8,13,'s50')
    def mf(ks):
        r=XR+4*(ks%NR); c='0' if ks==0 else "v[32:47]"
        a(f"v_mfma_f32_32x32x16_bf16 v[32:47], a[{4*ks}:{4*ks+3}], v[{r}:{r+3}], {c}")
    def check():
        a(f"""
        s_waitcnt vmcnt(0)
        s_mov_b32 s48, 0
        s_cmp_ge_u32 s40, 63
        s_cselect_b32 s49, 1, 0
        v_cmp_eq_u32 vcc, 0, v9
        s_cmp_eq_u64 vcc, 0
        s_cselect_b32 s48, 1, 0
        s_cmp_eq_u32 s49, 1
        s_cselect_b32 s48, 0, s48
        """)
    gemm_loop(a,lab,32,mf,rd,AHEAD,20,check,dl)
    pack_tile(a,32,96)
    for f in range(2):
        a(f"buffer_store_dwordx4 v[{96+4*f}:{99+4*f}], v3, s[8:11], s44 offen offset:{f*1024} sc1")
    a("s_add_u32 s44, s44, 32768\ns_add_u32 s40, s40, 1\ns_waitcnt vmcnt(0)")
    set_flag(a,'s46',vtmp=(11,12))
    a(f"""
    s_add_u32 s46, s46, 128
    s_mov_b32 s42, s50
    s_cmp_eq_u32 s48, 0
    s_cbranch_scc1 {lab}_slow
    s_add_u32 s43, s43, 32768
    s_add_u32 s45, s45, 128
    s_barrier
    s_branch {lab}_unit
{lab}_slow:
    s_cmp_ge_u32 s40, 64
    s_cbranch_scc1 {lab}_done
    """)
    wait_flags(a,lab+'ws',32,'s45',fail,spin)
    for d in dma_list(8,13,'s42'): a(d)
    a(f"""
    s_add_u32 s43, s43, 32768
    s_add_u32 s45, s45, 128
    s_waitcnt vmcnt(0)
    s_barrier
    s_branch {lab}_unit
{lab}_done:
    """)

def emit_P(a, cfg, fail):
    spin=cfg.get('spin',SPIN_DEFAULT)
    lab=a.new('P')
    a("""
    s_load_dwordx2 s[12:13], s[0:1], 40      ; Wq
    s_load_dwordx2 s[16:17], s[0:1], 48      ; Wk
    s_load_dwordx2 s[20:21], s[0:1], 56      ; Wv
    s_waitcnt lgkmcnt(0)
    s_mov_b32 s14, 4194304
    s_mov_b32 s15, 0x20000
    s_mov_b32 s18, 4194304
    s_mov_b32 s19, 0x20000
    s_mov_b32 s22, 4194304
    s_mov_b32 s23, 0x20000
    v_lshrrev_b32 v61, 4, v0
    v_and_b32 v60, 15, v0
    v_lshlrev_b32 v62, 2, v61
    v_xor_b32 v62, v60, v62
    v_lshlrev_b32 v62, 4, v62
    v_lshl_add_u32 v62, v61, 13, v62
    s_lshl_b32 s32, s5, 8
    v_add_u32 v40, s32, v62
    s_lshl_b32 s32, s6, 2
    """)
    tr_addr32(a,44,'s32',256,lambda r,o: a(f"v_lshlrev_b32 v{o}, 2, v{r}"),0)
    a("v_add_u32 v45, 0x10000, v44")
    def wreg(M,ks,p):
        if M=='Q': b=128+4*ks+2*p; return f"v[{b}:{b+1}]"
        b={'K':0,'V':128}[M]+4*ks+2*p; return f"a[{b}:{b+1}]"
    rounds=[(M,h) for M in ('K','V','Q') for h in range(2)]
    srd={'K':'s[16:19]','V':'s[20:23]','Q':'s[12:15]'}
    def issue(i):
        M,h=rounds[i]
        a(f"s_lshl_b32 s33, s6, 19\ns_add_u32 s33, s33, {h*256*8192}\ns_lshl_b32 s34, s6, 14\ns_add_u32 s34, s34, {(i&1)*65536}")
        for n in range(16):
            a(f"s_add_u32 m0, s34, {4*n*256}\ns_add_u32 s35, s33, {4*n*8192}\nbuffer_load_dwordx4 v40, {srd[M]}, s35 offen lds")
    issue(0); issue(1)
    for i,(M,h) in enumerate(rounds):
        a(f"s_waitcnt vmcnt({16 if i+1<len(rounds) else 0})\ns_barrier")
        for ksl in range(16):
            ks=16*h+ksl
            for p in range(2):
                a(f"ds_read_b64_tr_b16 {wreg(M,ks,p)}, v{44+(i&1)} offset:{ksl*4096+p*2048}")
            if ksl%4==3: a("s_waitcnt lgkmcnt(4)")
        a("s_waitcnt lgkmcnt(0)\ns_barrier")
        if i+2<len(rounds): issue(i+2)
    def W(M,ks):
        if M=='Q': return f"v[{128+4*ks}:{131+4*ks}]"
        b={'K':0,'V':128}[M]+4*ks; return f"a[{b}:{b+3}]"
    a(f"""
    v_lshlrev_b32 v1, 4, v0
    s_lshl_b32 s32, s6, 13
    v_add_u32 v2, s32, v1
    s_lshl_b32 s32, s6, 11
    v_add_u32 v3, s32, v1
    s_mul_i32 s32, s4, {6*64*32768}
    s_add_u32 s43, s32, {xs(T_XNB1,0)}
    s_lshl_b32 s32, s4, 14
    s_add_u32 s45, s32, {WS_FLAG+FL_XN+64*128}
    s_lshl_b32 s32, s4, 11
    s_add_u32 s32, s32, s5
    s_mul_i32 s48, s32, {QKV_BLK}
    s_lshl_b32 s49, s32, 5
    s_lshl_b32 s33, s6, 2
    s_add_u32 s49, s49, s33
    s_add_u32 s49, s49, {WS_FLAG+FL_P}
    s_mov_b32 s40, 0
    s_mov_b32 s42, 0
    s_mov_b32 s47, 0
    """)
    def dma(bufreg):
        out=[]
        for n in range(8):
            out.append(f"s_lshl_b32 s32, s6, 13\ns_add_u32 s32, s32, {bufreg}\ns_add_u32 m0, s32, {(n>>2)*4096}\ns_add_u32 s33, s43, {(n>>2)*4096}\nbuffer_load_dwordx4 v2, s[8:11], s33 offen offset:{(n&3)*1024} sc1 lds")
        return out
    cfg['init_wait'](a,lab)
    wait_flags(a,lab+'w0',NXN,'s45',fail,spin,vtmp=(8,9))
    for d in dma_list(8,13,'s42'): a(d)
    a("s_add_u32 s43, s43, 32768\ns_add_u32 s45, s45, 128\ns_waitcnt vmcnt(0)\ns_barrier")
    a.label(lab+'_unit')
    a("v_add_u32 v5, s42, v1\ns_xor_b32 s50, s42, 32768")
    poll_issue(a,NXN,'s45',10,9)
    XR=64; NR=8; ACC=[32,48]; PK=96
    def rd(ks): a(f"ds_read_b128 v[{XR+4*(ks%NR)}:{XR+4*(ks%NR)+3}], v5 offset:{ks*1024}")
    AHEAD=6
    for i in range(AHEAD): rd(i)
    def epi(t):
        acc=ACC[t]; out=[]; pk=PK+8*t
        for i in range(8): out.append(f"v_cvt_pk_bf16_f32 v{pk+i}, v{acc+2*i}, v{acc+2*i+1}")
        off=[8192,16384][t]
        out.append(f"s_add_u32 s33, s48, {off}\nbuffer_store_dwordx4 v[{pk}:{pk+3}], v3, s[8:11], s33 offen sc1")
        out.append(f"buffer_store_dwordx4 v[{pk+4}:{pk+7}], v3, s[8:11], s33 offen offset:1024 sc1")
        return out
    dl=dma_list(8,13,'s50')
    def step(ks):
        r=XR+4*(ks%NR)
        a(f"s_waitcnt lgkmcnt({min(AHEAD-1,31-ks)})")
        a(f"v_mfma_f32_32x32x16_bf16 v[32:47], {W('K',ks)}, v[{r}:{r+3}], {'0' if ks==0 else 'v[32:47]'}")
        a(f"v_mfma_f32_32x32x16_bf16 v[48:63], v[{r}:{r+3}], {W('V',ks)}, {'0' if ks==0 else 'v[48:63]'}")
        if ks+AHEAD<32: rd(ks+AHEAD)
    def check():
        a(f"s_cmp_eq_u32 s47, 0\ns_cbranch_scc1 {lab}_nq0\ns_waitcnt vmcnt(1)\ns_sub_u32 s33, s49, 1024\ns_add_u32 s34, s33, 16\ns_cmp_eq_u32 s47, 2\ns_cselect_b32 s33, s34, s33")
        set_flag(a,'s33',vtmp=(11,12))
        a(f"""
        s_mov_b32 s47, 0
        s_waitcnt vmcnt(1)
        s_branch {lab}_nq
{lab}_nq0:
        s_waitcnt vmcnt(0)
{lab}_nq:
        s_mov_b32 s51, 0
        s_cmp_ge_u32 s40, 63
        s_cselect_b32 s52, 1, 0
        v_cmp_eq_u32 vcc, 0, v9
        s_cmp_eq_u64 vcc, 0
        s_cselect_b32 s51, 1, 0
        s_cmp_eq_u32 s52, 1
        s_cselect_b32 s51, 0, s51
        """)
    for ks in range(13): step(ks)
    check()
    a(f"s_cmp_eq_u32 s51, 0\ns_cbranch_scc1 {lab}_vn")
    for j in range(8): step(13+j); a(dl[j])
    a(f"s_branch {lab}_ve\n{lab}_vn:")
    for j in range(8): step(13+j)
    a.label(lab+'_ve')
    for ks in range(21,32): step(ks)
    for x in epi(0): a(x)
    for x in epi(1): a(x)
    a(f"""
    s_mov_b32 s54, 1
    s_and_b32 s32, s40, 2
    s_cmp_eq_u32 s32, 0
    s_cbranch_scc1 {lab}_noq
    """)
    for i in range(AHEAD): rd(i)
    for ks in range(32):
        r_=XR+4*(ks%NR)
        a(f"s_waitcnt lgkmcnt({min(AHEAD-1,31-ks)})")
        a(f"v_mfma_f32_32x32x16_bf16 v[32:47], {W('Q',ks)}, v[{r_}:{r_+3}], {'0' if ks==0 else 'v[32:47]'}")
        if ks+AHEAD<32: rd(ks+AHEAD)
    a("s_waitcnt vmcnt(0)")
    set_flag(a,'s49',vtmp=(11,12))
    for i in range(8): a(f"v_cvt_pk_bf16_f32 v{PK+i}, v32+{2*i}, v33+{2*i}".replace(f"v32+{2*i}",f"v{32+2*i}").replace(f"v33+{2*i}",f"v{33+2*i}"))
    a(f"""
    buffer_store_dwordx4 v[{PK}:{PK+3}], v3, s[8:11], s48 offen sc1
    buffer_store_dwordx4 v[{PK+4}:{PK+7}], v3, s[8:11], s48 offen offset:1024 sc1
    s_mov_b32 s54, 2
{lab}_noq:
    s_add_u32 s48, s48, {32*QKV_BLK}
    s_add_u32 s49, s49, 1024
    s_add_u32 s40, s40, 1
    s_mov_b32 s42, s50
    s_cmp_eq_u32 s51, 0
    s_cbranch_scc1 {lab}_slow
    s_mov_b32 s47, s54
    s_add_u32 s43, s43, 32768
    s_add_u32 s45, s45, 128
    s_cmp_eq_u32 s54, 2
    s_cbranch_scc1 {lab}_fq
    s_waitcnt vmcnt(4)
{lab}_fq:
    s_barrier
    s_branch {lab}_unit
{lab}_slow:
    s_waitcnt vmcnt(0)
    s_sub_u32 s33, s49, 1024
    s_add_u32 s34, s33, 16
    s_cmp_eq_u32 s54, 2
    s_cselect_b32 s33, s34, s33
    """)
    set_flag(a,'s33',vtmp=(11,12))
    a(f"""
    s_mov_b32 s47, 0
    s_cmp_ge_u32 s40, 64
    s_cbranch_scc1 {lab}_done
    """)
    wait_flags(a,lab+'ws',NXN,'s45',fail,spin,vtmp=(8,9))
    for d in dma_list(8,13,'s42'): a(d)
    a(f"""
    s_add_u32 s43, s43, 32768
    s_add_u32 s45, s45, 128
    s_waitcnt vmcnt(0)
    s_barrier
    s_branch {lab}_unit
{lab}_done:
    """)

def emit_ATT(a, cfg, fail):
    spin=cfg.get('spin',SPIN_DEFAULT)
    lab=a.new('ATT')
    STG=131072
    a(f"""
    s_load_dwordx2 s[12:13], s[0:1], 40      ; Wq
    s_waitcnt lgkmcnt(0)
    s_mov_b32 s14, 4194304
    s_mov_b32 s15, 0x20000
    v_lshrrev_b32 v61, 4, v0
    v_and_b32 v60, 15, v0
    v_lshlrev_b32 v62, 2, v61
    v_xor_b32 v62, v60, v62
    v_lshlrev_b32 v62, 4, v62
    v_lshl_add_u32 v62, v61, 13, v62
    s_lshl_b32 s32, s5, 8
    v_add_u32 v40, s32, v62
    s_lshl_b32 s32, s6, 2
    """)
    tr_addr32(a,44,'s32',256,lambda r_,o: a(f"v_lshlrev_b32 v{o}, 2, v{r_}"),STG)
    a("v_lshlrev_b32 v46, 4, v0\ns_lshl_b32 s32, s6, 15\nv_add_u32 v46, s32, v46")
    for rnd in range(4):
        a(f"s_lshl_b32 s33, s6, 18\ns_add_u32 s33, s33, {rnd*128*8192}\ns_lshl_b32 s34, s6, 13\ns_add_u32 s34, s34, {STG}")
        for n in range(8):
            a(f"s_add_u32 m0, s34, {4*n*256}\ns_add_u32 s35, s33, {4*n*8192}\nbuffer_load_dwordx4 v40, s[12:15], s35 offen lds")
        a("s_waitcnt vmcnt(0)\ns_barrier")
        for ksl in range(8):
            for p in range(2):
                a(f"ds_read_b64_tr_b16 v[{64+4*ksl+2*p}:{65+4*ksl+2*p}], v44 offset:{ksl*4096+p*2048}")
        a("s_waitcnt lgkmcnt(0)")
        for ksl in range(8):
            a(f"ds_write_b128 v46, v[{64+4*ksl}:{67+4*ksl}] offset:{(8*rnd+ksl)*1024}")
        a("s_waitcnt lgkmcnt(0)\ns_barrier")
    a(f"""
    s_lshr_b32 s40, s6, 1                    ; layer
    s_and_b32 s41, s6, 1                     ; unit
    s_lshl_b32 s32, s40, 6
    s_add_u32 s32, s32, s41
    s_lshl_b32 s32, s32, 5
    s_add_u32 s32, s32, s5                   ; (l*64+u)*32 + h
    s_mul_i32 s43, s32, {QKV_BLK}
    s_lshl_b32 s44, s32, 12
    s_add_u32 s44, s44, {WS_KM}
    s_lshl_b32 s45, s32, 4
    s_add_u32 s45, s45, {WS_FLAG+FL_CH}
    s_lshl_b32 s49, s32, 5
    s_add_u32 s49, s49, {WS_FLAG+FL_P}
    s_lshl_b32 s33, s40, 6
    s_add_u32 s33, s33, s41                  ; l*64+u
    s_mul_i32 s34, s40, {6*64*32768}
    s_lshl_b32 s35, s41, 15
    s_add_u32 s50, s34, s35
    s_add_u32 s50, s50, {xs(T_XNB1,0)}
    s_lshl_b32 s34, s40, 14
    s_lshl_b32 s35, s41, 7
    s_add_u32 s51, s34, s35
    s_add_u32 s51, s51, {WS_FLAG+FL_XN+64*128}
    s_lshl_b32 s46, s32, 2
    s_add_u32 s46, s46, {WS_FLAG+FL_OB}
    s_lshl_b32 s33, s40, 6
    s_add_u32 s33, s33, s41
    s_lshl_b32 s33, s33, 18
    s_lshl_b32 s34, s5, 13
    s_add_u32 s47, s33, s34
    s_add_u32 s47, s47, {WS_OB}
    s_lshl_b32 s42, s6, 12
    s_add_u32 s42, s42, {STG}
    v_lshlrev_b32 v1, 4, v0
    v_lshrrev_b32 v60, 5, v0
    v_and_b32 v61, 7, v0
    v_lshlrev_b32 v2, 4, v61
    v_lshl_add_u32 v2, v60, 7, v2
    v_add_u32 v2, s42, v2
    v_and_b32 v61, 31, v0
    v_lshlrev_b32 v3, 4, v61
    v_lshl_add_u32 v3, v60, 3, v3
    v_add_u32 v3, s42, v3
    v_mov_b32 v7, 0xff7fffff
    v_mov_b32 v12, 0x3f803f80
    v_mov_b32 v13, 0x3f803f80
    v_mov_b32 v14, 0x3f803f80
    v_mov_b32 v15, 0x3f803f80
    s_mov_b32 s48, 0x3e0293ee
    """)
    a("v_mov_b32 v4, v1\nv_add_u32 v5, 0x10000, v1")
    causal_masks(a,64)
    K=32; V=64; KM=160; VM=192
    XA=96
    QV=128
    def xloads():
        out=[]
        for ks in range(32):
            pre=f"s_add_u32 s32, s50, {(ks>>2)*4096}\n" if ks%4==0 else ""
            out.append(pre+f"buffer_load_dwordx4 a[{XA+4*ks}:{XA+4*ks+3}], v1, s[8:11], s32 offen offset:{(ks&3)*1024} sc1")
        return out
    def xadv(): a("s_add_u32 s50, s50, 131072\ns_add_u32 s51, s51, 512")
    def kvloads():
        out=[]
        for blk,reg in ((1,K),(2,V)):
            for g in range(2):
                for j in range(4):
                    rr=reg+4*(4*g+j)
                    pre=f"s_add_u32 s32, s43, {blk*8192+g*4096}\n" if j==0 else ""
                    out.append(pre+f"buffer_load_dwordx4 a[{rr}:{rr+3}], v1, s[8:11], s32 offen offset:{j*1024} sc1")
        return out
    def core(tag, light):
        L=f"{lab}_{tag}"
        a(f"""
        s_waitcnt vmcnt(0)
        v_cmp_eq_u32 vcc, 0, v30
        s_cbranch_vccnz {L}_chw
        """)
        def kmdma():
            a("s_mov_b32 m0, s42")
            for j in range(4): a(f"buffer_load_dwordx4 v1, s[8:11], s44 offen offset:{j*1024} sc1 lds")
        def stok():
            for ks in range(8):
                c0='0' if ks==0 else 'v[32:47]'
                a(f"v_mfma_f32_32x32x16_bf16 v[32:47], a[{K+4*ks}:{K+4*ks+3}], v[{QV+4*ks}:{QV+4*ks+3}], {c0}")
            for r_ in range(16): a(f"v_cndmask_b32 v{32+r_}, v7, v{32+r_}, s[{64+2*r_}:{65+2*r_}]")
            a("""
            v_max3_f32 v24, v32, v33, v34
            v_max3_f32 v25, v35, v36, v37
            v_max3_f32 v24, v24, v38, v39
            v_max3_f32 v25, v25, v40, v41
            v_max3_f32 v24, v24, v42, v43
            v_max3_f32 v25, v25, v44, v45
            v_max3_f32 v24, v24, v46, v47
            """)
            for W_ in range(4): a(f"v_mov_b32 v{VM+4*W_+2}, 0\nv_mov_b32 v{VM+4*W_+3}, 0")
        xl=xloads()
        kmdma(); stok()
        a(f"s_branch {L}_kmw")
        a.label(L+'_chw')
        stok()
        if light:
            a(f"s_cmp_eq_u32 s53, 0\ns_cbranch_scc1 {L}_b1")
            for x in xl: a(x)
            xadv()
            a(f"s_mov_b32 s53, 2\n{L}_b1:")
        wait_flags(a,L+'wc',4,'s45',fail,spin,sleep=0)
        kmdma()
        a.label(L+'_kmw')
        a("s_waitcnt vmcnt(0)")
        for ks in range(8): a(f"ds_read_b128 v[{KM+4*ks}:{KM+4*ks+3}], v2 offset:{ks*256}")
        for W_ in range(4): a(f"ds_read_b64 v[{VM+4*W_}:{VM+4*W_+1}], v3 offset:{2048+W_*512}")
        for ks in range(8):
            a(f"s_waitcnt lgkmcnt({11-ks})")
            c1='0' if ks==0 else 'v[48:63]'
            a(f"v_mfma_f32_32x32x16_bf16 v[48:63], v[{KM+4*ks}:{KM+4*ks+3}], v[{QV+4*ks}:{QV+4*ks+3}], {c1}")
        a("""
        v_max3_f32 v25, v25, v48, v49
        v_max3_f32 v24, v24, v50, v51
        v_max_f32 v24, v24, v25
        v_mov_b32 v25, v24
        v_permlane32_swap_b32 v24, v25
        v_max_f32 v24, v24, v25
        v_mul_f32 v24, s48, v24
        """)
        for r_ in range(20): a(f"v_fma_f32 v{32+r_}, v{32+r_}, s48, -v24")
        for r_ in range(20): a(f"v_exp_f32 v{32+r_}, v{32+r_}")
        a("v_add_f32 v24, v32, v33\nv_add_f32 v25, v34, v35")
        for r_ in range(4,20,2): a(f"v_add_f32 v24, v24, v{32+r_}\nv_add_f32 v25, v25, v{33+r_}")
        a("""
        v_add_f32 v24, v24, v25
        v_mov_b32 v25, v24
        v_permlane32_swap_b32 v24, v25
        v_add_f32 v24, v24, v25
        v_rcp_f32 v24, v24
        """)
        for r_ in range(20): a(f"v_mul_f32 v{32+r_}, v{32+r_}, v24")
        for i in range(8): a(f"v_cvt_pk_bf16_f32 v{16+i}, v{32+2*i}, v{33+2*i}")
        a("""
        v_cvt_pk_bf16_f32 v8, v48, v49
        v_cvt_pk_bf16_f32 v9, v50, v51
        v_mov_b32 v10, 0
        v_mov_b32 v11, 0
        s_waitcnt lgkmcnt(0)
        """)
        OT=[64,80,96,112]; PK=208
        xq=list(xl) if light else []
        def mx(n=1):
            for _ in range(n):
                if xq:
                    LL=a.new(lab+'m'); a(f"s_cbranch_scc0 {LL}"); x=xq.pop(0)
                    a(x)
                    if x.startswith('s_add'): a("s_cmp_eq_u32 s53, 1")
                    a.label(LL)
        def pv(W_):
            o=OT[W_]
            a(f"v_mfma_f32_32x32x16_bf16 v[{o}:{o+15}], a[{V+8*W_}:{V+8*W_+3}], v[16:19], 0"); mx()
            a(f"v_mfma_f32_32x32x16_bf16 v[{o}:{o+15}], a[{V+8*W_+4}:{V+8*W_+7}], v[20:23], v[{o}:{o+15}]"); mx()
            a(f"v_mfma_f32_32x32x16_bf16 v[{o}:{o+15}], v[{VM+4*W_}:{VM+4*W_+3}], v[8:11], v[{o}:{o+15}]"); mx()
        def fin(W_):
            o=OT[W_]
            for i in range(8):
                a(f"v_cvt_pk_bf16_f32 v{PK+8*W_+i}, v{o+2*i}, v{o+2*i+1}")
                if i%2==1: mx()
        def sto(W_):
            if W_==2: a("s_add_u32 s32, s47, 4096")
            for f in range(2):
                fi=2*W_+f
                a(f"buffer_store_dwordx4 v[{PK+4*fi}:{PK+4*fi+3}], v1, s[8:11], {'s47' if fi<4 else 's32'} offen offset:{(fi&3)*1024} sc1")
        if light: a("s_cmp_eq_u32 s53, 1")
        pv(0); pv(1); pv(2); fin(0); pv(3); fin(1); fin(2); fin(3)
        if light:
            mx(32)
            a(f"s_cbranch_scc0 {L}_k2")
            xadv()
            a.label(L+'_k2')
        for W_ in range(4): sto(W_)
        a(f"""
        s_add_u32 s43, s43, {2*32*QKV_BLK}
        s_add_u32 s44, s44, {2*32*4096}
        s_add_u32 s45, s45, 1024
        s_add_u32 s49, s49, 2048
        s_add_u32 s47, s47, {2*262144}
        s_add_u32 s41, s41, 2
        """)
    def eager():
        a("s_waitcnt vmcnt(0)")
        set_flag(a,'s46',vtmp=(10,11))
        a("s_add_u32 s46, s46, 256\ns_mov_b32 s52, 0")
    cfg['init_wait'](a,lab,sb=16)
    a("s_mov_b32 s52, 0")
    wait_flags(a,lab+'wx0',NXN,'s51',fail,spin)
    for x in xloads(): a(x)
    xadv()
    a.label(lab+'_H')
    roles.tsp(a,1,0,'s41',('s5','s40'))
    WR=64; NR=8; AHEAD=6
    seq=[(T,ks) for T in range(4) for ks in range(32)]
    def wrd(i):
        T,ks=seq[i]; r_=WR+4*(i%NR)
        a(f"ds_read_b128 v[{r_}:{r_+3}], v{4+(T>>1)} offset:{(T&1)*32768+ks*1024}")
    for i in range(AHEAD): wrd(i)
    QA=[96,112]
    pend=[]
    kvl=kvloads()
    for i,(T,ks) in enumerate(seq):
        acc=QA[T&1]; r_=WR+4*(i%NR)
        if T==0:
            if ks<8:
                LL=a.new(lab+'x')
                a(f"s_cmp_eq_u32 s52, 0\ns_cbranch_scc1 {LL}_0\ns_waitcnt vmcnt({39-ks})\ns_branch {LL}_1\n{LL}_0:\ns_waitcnt vmcnt({31-ks})\n{LL}_1:\ns_waitcnt lgkmcnt({AHEAD-1})")
            else: a(f"s_waitcnt vmcnt({31-ks}) lgkmcnt({AHEAD-1})")
        elif T==1 and ks==0:
            a(f"s_cmp_eq_u32 s52, 0\ns_cbranch_scc1 {lab}_nf")
            set_flag(a,'s46',vtmp=(10,11))
            a(f"s_add_u32 s46, s46, 256\ns_mov_b32 s52, 0\n{lab}_nf:")
            poll_issue(a,4,'s49',10,30)
            a(f"s_waitcnt lgkmcnt({AHEAD-1})")
        elif T==1 and ks==30:
            a(f"""
            s_waitcnt vmcnt(0)
            v_cmp_eq_u32 vcc, 0, v30
            s_cbranch_vccz {lab}_pok
            """)
            wait_flags(a,lab+'wp',4,'s49',fail,spin)
            a(f"{lab}_pok:\ns_waitcnt lgkmcnt({AHEAD-1})")
        else: a(f"s_waitcnt lgkmcnt({min(AHEAD-1,len(seq)-1-i)})")
        c='0' if ks==0 else f"v[{acc}:{acc+15}]"
        a(f"v_mfma_f32_32x32x16_bf16 v[{acc}:{acc+15}], v[{r_}:{r_+3}], a[{XA+4*ks}:{XA+4*ks+3}], {c}")
        if i+AHEAD<len(seq): wrd(i+AHEAD)
        if T>=1 and ks==0:
            pa=QA[(T-1)&1]
            pend=[f"v_cvt_pk_bf16_f32 v{QV+8*(T-1)+q}, v{pa+2*q}, v{pa+2*q+1}" for q in range(8)]
        if T>=1 and ks>=8 and pend: a(pend.pop(0))
        if T==2 and ks%2==1 and kvl: a(kvl.pop(0))
        if T==3 and ks==4: poll_issue(a,4,'s45',10,30)
    pa=QA[1]
    for q in range(8): a(f"v_cvt_pk_bf16_f32 v{QV+24+q}, v{pa+2*q}, v{pa+2*q+1}")
    roles.tsp(a,1,1,'s41',('s5','s40'))
    core('h',False)
    roles.tsp(a,1,5,'s41',('s5','s40'))
    eager()
    a(f"s_cmp_ge_u32 s41, 64\ns_cbranch_scc1 {lab}_done")
    a.label(lab+'_L')
    roles.tsp(a,1,0,'s41',('s5','s40'))
    wait_flags(a,lab+'wq',8,'s49',fail,spin)
    for g in range(2):
        a(f"s_add_u32 s32, s43, {g*4096}")
        for j in range(4):
            rr=QV+4*(4*g+j)
            a(f"buffer_load_dwordx4 v[{rr}:{rr+3}], v1, s[8:11], s32 offen offset:{j*1024} sc1")
    for x in kvloads(): a(x)
    poll_issue(a,NXN,'s51',11,31)
    poll_issue(a,4,'s45',10,30)
    a(f"""
    s_waitcnt vmcnt(0)
    s_mov_b32 s53, 0
    s_cmp_ge_u32 s41, 62
    s_cbranch_scc1 {lab}_np
    v_cmp_eq_u32 vcc, 0, v31
    s_cbranch_vccnz {lab}_np
    s_mov_b32 s53, 1
{lab}_np:
    """)
    core('l',True)
    roles.tsp(a,1,5,'s41',('s5','s40'))
    a(f"""
    s_cmp_eq_u32 s53, 1
    s_cbranch_scc0 {lab}_e1
    s_mov_b32 s52, 1
    s_branch {lab}_H
{lab}_e1:
    """)
    eager()
    a(f"""
    s_cmp_ge_u32 s41, 64
    s_cbranch_scc1 {lab}_done
    s_cmp_eq_u32 s53, 2
    s_cbranch_scc1 {lab}_H
    """)
    wait_flags(a,lab+'wxs',NXN,'s51',fail,spin)
    for x in xloads(): a(x)
    xadv()
    a(f"s_branch {lab}_H\n{lab}_done:")

def emit_O(a, cfg, fail):
    spin=cfg.get('spin',SPIN_DEFAULT)
    lab=a.new('O')
    a(f"""
    s_load_dwordx2 s[12:13], s[0:1], 64
    s_waitcnt lgkmcnt(0)
    s_mov_b32 s14, 4194304
    s_mov_b32 s15, 0x20000
    s_lshr_b32 s40, s5, 2                    ; kq
    s_and_b32 s41, s5, 3                     ; nq
    v_lshrrev_b32 v61, 4, v0
    v_and_b32 v60, 15, v0
    v_lshlrev_b32 v62, 2, v61
    v_xor_b32 v62, v60, v62
    v_lshlrev_b32 v62, 4, v62
    v_lshl_add_u32 v62, v61, 10, v62
    s_lshl_b32 s32, s41, 8
    v_add_u32 v40, s32, v62
    s_mov_b32 s32, 0
    """)
    tr_addr32(a,44,'s32',256,lambda r,o: a(f"v_lshlrev_b32 v{o}, 2, v{r}"),0)
    a("s_lshl_b32 s34, s6, 15\nv_add_u32 v44, s34, v44")
    for T in range(1,4): a(f"v_xor_b32 v{44+T}, {64*T}, v44")
    for rnd in range(2):
        a(f"s_lshl_b32 s33, s40, 20\ns_lshl_b32 s35, s6, 18\ns_add_u32 s33, s33, s35\ns_add_u32 s33, s33, {rnd*128*1024}")
        for n in range(32):
            a(f"s_add_u32 m0, s34, {4*n*256}\ns_add_u32 s35, s33, {4*n*1024}\nbuffer_load_dwordx4 v40, s[12:15], s35 offen lds")
        a("s_waitcnt vmcnt(0)")
        for ksl in range(8):
            ks=8*rnd+ksl
            for T in range(4):
                for p in range(2):
                    b=(T*16+ks)*4+2*p
                    a(f"ds_read_b64_tr_b16 a[{b}:{b+1}], v{44+T} offset:{ksl*4096+p*2048}")
            a("s_waitcnt lgkmcnt(4)")
        a("s_waitcnt lgkmcnt(0)")
    a(f"""
    s_barrier
    v_lshlrev_b32 v1, 4, v0
    s_lshl_b32 s32, s4, 24
    s_lshl_b32 s33, s40, 16
    s_lshl_b32 s34, s6, 14
    s_add_u32 s43, s32, s33
    s_add_u32 s43, s43, s34
    s_add_u32 s43, s43, {WS_OB}
    s_lshl_b32 s32, s4, 23
    s_lshl_b32 s33, s40, 15
    s_lshl_b32 s34, s41, 13
    s_add_u32 s44, s32, s33
    s_add_u32 s44, s44, s34
    s_lshl_b32 s34, s6, 11
    s_add_u32 s44, s44, s34
    s_add_u32 s44, s44, {WS_PO}
    s_lshl_b32 s32, s4, 13
    s_lshl_b32 s33, s40, 5
    s_lshl_b32 s34, s6, 3
    s_add_u32 s45, s32, s33
    s_add_u32 s45, s45, s34
    s_add_u32 s45, s45, {WS_FLAG+FL_OB}
    s_lshl_b32 s32, s4, 14
    s_lshl_b32 s33, s5, 4
    s_lshl_b32 s34, s6, 2
    s_add_u32 s46, s32, s33
    s_add_u32 s46, s46, s34
    s_add_u32 s46, s46, {WS_FLAG+FL_PO}
    s_lshl_b32 s32, s6, 14
    v_add_u32 v2, s32, v1
    s_lshl_b32 s32, s6, 12
    v_add_u32 v3, s32, v1
    s_mov_b32 s47, 0
    s_mov_b32 s51, 0
    """)
    XB=[64,128]
    def ld(st,ks):
        return f"s_add_u32 s32, s43, {(ks>>2)*4096}\nbuffer_load_dwordx4 v[{XB[st]+4*ks}:{XB[st]+4*ks+3}], v1, s[8:11], s32 offen offset:{(ks&3)*1024} sc1"
    def adv(): a("s_add_u32 s43, s43, 262144\ns_add_u32 s45, s45, 128")
    wait_flags(a,lab+'w0',2,'s45',fail,spin)
    for ks in range(16): a(ld(0,ks))
    adv()
    ACC=[0,16,32,48]
    AB=192
    def iteration(st):
        L=f"{lab}_i{st}"
        a.label(L)
        poll_issue(a,2,'s45',10,9)
        nl=[ld(1-st,ks) for ks in range(16)]
        for ks in range(16):
            a(f"s_waitcnt vmcnt({16-ks})") if ks<16 else None
            for T in range(4):
                acc=AB+16*T; c='0' if ks==0 else f"v[{acc}:{acc+15}]"; b=(T*16+ks)*4
                a(f"v_mfma_f32_32x32x16_bf16 v[{acc}:{acc+15}], a[{b}:{b+3}], v[{XB[st]+4*ks}:{XB[st]+4*ks+3}], {c}")
            if ks==15: break
        return nl
    def unit(st):
        L=f"{lab}_i{st}"
        a.label(L)
        poll_issue(a,2,'s45',10,9)
        for ks in range(8):
            a(f"s_waitcnt vmcnt({16-ks})")
            for T in range(4):
                acc=AB+16*T; c='0' if ks==0 else f"v[{acc}:{acc+15}]"; b=(T*16+ks)*4
                a(f"v_mfma_f32_32x32x16_bf16 v[{acc}:{acc+15}], a[{b}:{b+3}], v[{XB[st]+4*ks}:{XB[st]+4*ks+3}], {c}")
        a(f"""
        s_waitcnt vmcnt(0)
        s_mov_b32 s49, 0
        s_cmp_ge_u32 s47, 63
        s_cbranch_scc1 {L}_np
        v_cmp_eq_u32 vcc, 0, v9
        s_cbranch_vccnz {L}_np
        s_mov_b32 s49, 1
{L}_np:
        s_cmp_eq_u32 s49, 1
        """)
        nl=[ld(1-st,ks) for ks in range(16)]
        for ks in range(8,16):
            for T in range(4):
                acc=AB+16*T; b=(T*16+ks)*4
                a(f"v_mfma_f32_32x32x16_bf16 v[{acc}:{acc+15}], a[{b}:{b+3}], v[{XB[st]+4*ks}:{XB[st]+4*ks+3}], v[{acc}:{acc+15}]")
                if T%2==1:
                    LL=a.new(L+'m'); a(f"s_cbranch_scc0 {LL}"); a(nl.pop(0)); a(f"s_cmp_eq_u32 s49, 1\n{LL}:")
        a("v_add_u32 v4, s51, v2\nv_add_u32 v5, s51, v3")
        for q in range(16): a(f"ds_write_b128 v4, v[{AB+4*q}:{AB+3+4*q}] offset:{q*1024}")
        a("s_waitcnt lgkmcnt(0)\ns_barrier")
        R=16
        for w in range(4):
            for q in range(4): a(f"ds_read_b128 v[{AB+16*w+4*q}:{AB+3+16*w+4*q}], v5 offset:{w*16384+q*1024}")
        a("s_xor_b32 s51, s51, 65536\ns_waitcnt lgkmcnt(8)")
        for r in range(0,16,2): a(f"v_pk_add_f32 v[{AB+r}:{AB+1+r}], v[{AB+r}:{AB+1+r}], v[{AB+16+r}:{AB+17+r}]")
        a("s_waitcnt lgkmcnt(0)")
        for r in range(0,16,2): a(f"v_pk_add_f32 v[{AB+32+r}:{AB+33+r}], v[{AB+32+r}:{AB+33+r}], v[{AB+48+r}:{AB+49+r}]")
        for r in range(0,16,2): a(f"v_pk_add_f32 v[{AB+r}:{AB+1+r}], v[{AB+r}:{AB+1+r}], v[{AB+32+r}:{AB+33+r}]")
        for i in range(8): a(f"v_cvt_pk_bf16_f32 v{16+i}, v{AB+2*i}, v{AB+1+2*i}")
        a(f"""
        buffer_store_dwordx4 v[16:19], v1, s[8:11], s44 offen sc1
        buffer_store_dwordx4 v[20:23], v1, s[8:11], s44 offen offset:1024 sc1
        s_add_u32 s44, s44, 131072
        s_add_u32 s47, s47, 1
        s_waitcnt vmcnt(0)
        """)
        set_flag(a,'s46',vtmp=(10,11))
        a(f"""
        s_add_u32 s46, s46, 256
        s_cmp_eq_u32 s49, 1
        s_cbranch_scc0 {L}_slow
        """)
        adv()
        a(f"""
        s_branch {lab}_i{1-st}
{L}_slow:
        s_cmp_ge_u32 s47, 64
        s_cbranch_scc1 {lab}_done
        """)
        wait_flags(a,L+'ws',2,'s45',fail,spin)
        for ks in range(16): a(ld(1-st,ks))
        adv()
        if st==1: a(f"s_branch {lab}_i0")
    unit(0); unit(1)
    a.label(lab+'_done')

def emit_O5(a, cfg, fail):
    spin=cfg.get('spin',SPIN_DEFAULT)
    lab=a.new('O')
    a(f"""
    s_load_dwordx2 s[12:13], s[0:1], 64
    s_waitcnt lgkmcnt(0)
    s_mov_b32 s14, 4194304
    s_mov_b32 s15, 0x20000
    s_lshr_b32 s40, s5, 2                    ; kq
    s_and_b32 s41, s5, 3                     ; nq
    v_lshrrev_b32 v61, 4, v0
    v_and_b32 v60, 15, v0
    v_lshlrev_b32 v62, 2, v61
    v_xor_b32 v62, v60, v62
    v_lshlrev_b32 v62, 4, v62
    v_lshl_add_u32 v62, v61, 10, v62
    s_lshl_b32 s32, s41, 8
    v_add_u32 v40, s32, v62
    s_and_b32 s54, s6, 1                     ; nh
    s_lshr_b32 s55, s6, 1                    ; kh
    s_lshl_b32 s32, s54, 3
    """)
    tr_addr32(a,44,'s32',256,lambda r,o: a(f"v_lshlrev_b32 v{o}, 2, v{r}"),0)
    a("v_xor_b32 v45, 64, v44\nv_add_u32 v46, 0x10000, v44\nv_add_u32 v47, 0x10000, v45")
    def issue(i):
        a(f"s_lshl_b32 s33, s40, 20\ns_lshl_b32 s35, s6, 16\ns_add_u32 s33, s33, s35\ns_add_u32 s33, s33, {i*256*1024}\ns_lshl_b32 s34, s6, 14\ns_add_u32 s34, s34, {(i&1)*65536}")
        for n in range(16):
            a(f"s_add_u32 m0, s34, {4*n*256}\ns_add_u32 s35, s33, {4*n*1024}\nbuffer_load_dwordx4 v40, s[12:15], s35 offen lds")
    issue(0); issue(1)
    for i in range(4):
        L=a.new(lab+'w')
        a(f"s_waitcnt vmcnt({16 if i<3 else 0})\ns_barrier\ns_cmp_lg_u32 s55, {i>>1}\ns_cbranch_scc1 {L}")
        for ksl in range(16):
            ks=16*(i&1)+ksl
            for T in range(2):
                for p in range(2):
                    b=(T*32+ks)*4+2*p
                    a(f"ds_read_b64_tr_b16 a[{b}:{b+1}], v{44+T+2*(i&1)} offset:{ksl*4096+p*2048}")
            if ksl%2==1: a("s_waitcnt lgkmcnt(4)")
        a(f"{L}:\ns_waitcnt lgkmcnt(0)\ns_barrier")
        if i+2<4: issue(i+2)
    a(f"""
    v_lshlrev_b32 v1, 4, v0
    s_lshl_b32 s32, s6, 14
    v_add_u32 v2, s32, v1
    s_lshl_b32 s32, s4, 24
    s_lshl_b32 s33, s40, 16
    s_add_u32 s43, s32, s33
    s_add_u32 s43, s43, {WS_OB}
    s_lshl_b32 s32, s4, 23
    s_lshl_b32 s33, s40, 15
    s_lshl_b32 s34, s41, 13
    s_add_u32 s44, s32, s33
    s_add_u32 s44, s44, s34
    s_lshl_b32 s34, s54, 12
    s_add_u32 s44, s44, s34
    s_lshl_b32 s34, s55, 11
    s_add_u32 s44, s44, s34
    s_add_u32 s44, s44, {WS_PO}
    s_lshl_b32 s32, s4, 13
    s_lshl_b32 s33, s40, 5
    s_lshl_b32 s34, s6, 3
    s_add_u32 s45, s32, s33
    s_add_u32 s45, s45, s34
    s_add_u32 s45, s45, {WS_FLAG+FL_OB}
    s_lshl_b32 s32, s4, 14
    s_lshl_b32 s33, s5, 4
    s_lshl_b32 s34, s6, 2
    s_add_u32 s46, s32, s33
    s_add_u32 s46, s46, s34
    s_add_u32 s46, s46, {WS_FLAG+FL_PO}
    s_mov_b32 s47, 0
    s_mov_b32 s42, 0
    s_mov_b32 s52, 0
    """)
    def dma(bufreg):
        out=[]
        for n in range(16):
            out.append(f"s_lshl_b32 s32, s6, 14\ns_add_u32 s32, s32, {bufreg}\ns_add_u32 m0, s32, {(n>>2)*4096}\ns_add_u32 s33, s43, {(n>>2)*4096}\nbuffer_load_dwordx4 v2, s[8:11], s33 offen offset:{(n&3)*1024} sc1 lds")
        return out
    def adv(): a("s_add_u32 s43, s43, 262144\ns_add_u32 s45, s45, 128")
    cfg['init_wait'](a,lab)
    wait_flags(a,lab+'w0',2,'s45',fail,spin)
    for d in dma_list(16,14,'s42'): a(d)
    adv()
    a("s_waitcnt vmcnt(0)\ns_barrier")
    a.label(lab+'_unit')
    roles.tsp(a,0,1,'s47',('s4','s5','s6'))
    a("s_lshl_b32 s32, s55, 15\ns_add_u32 s32, s32, s42\nv_add_u32 v5, s32, v1\ns_xor_b32 s50, s42, 65536")
    poll_issue(a,2,'s45',10,9)
    XR=64; NR=8; AHEAD=6
    def rd(i): a(f"ds_read_b128 v[{XR+4*(i%NR)}:{XR+4*(i%NR)+3}], v5 offset:{i*1024}")
    for i in range(AHEAD): rd(i)
    dl=dma_list(16,14,'s50')
    def mf(ks):
        r=XR+4*(ks%NR)
        for T in range(2):
            acc=32+16*T; c='0' if ks==0 else f"v[{acc}:{acc+15}]"; b=(T*32+ks)*4
            a(f"v_mfma_f32_32x32x16_bf16 v[{acc}:{acc+15}], a[{b}:{b+3}], v[{r}:{r+3}], {c}")
    def check():
        a(f"s_cmp_eq_u32 s52, 0\ns_cbranch_scc1 {lab}_nq0\ns_waitcnt vmcnt(1)")
        set_flag(a,'s46',vtmp=(11,12))
        a(f"""
        s_add_u32 s46, s46, 256
        s_mov_b32 s52, 0
        s_waitcnt vmcnt(1)
        s_branch {lab}_nq
{lab}_nq0:
        s_waitcnt vmcnt(0)
{lab}_nq:
        s_mov_b32 s48, 0
        s_cmp_ge_u32 s47, 63
        s_cselect_b32 s49, 1, 0
        v_cmp_eq_u32 vcc, 0, v9
        s_cmp_eq_u64 vcc, 0
        s_cselect_b32 s48, 1, 0
        s_cmp_eq_u32 s49, 1
        s_cselect_b32 s48, 0, s48
        """)
    gemm_loop(a,lab,32,mf,rd,AHEAD,12,check,dl)
    roles.tsp(a,0,2,'s47',('s4','s5','s6'))
    L=a.new(lab+'r')
    a(f"""
    s_lshl_b32 s32, s6, 12
    s_add_u32 s32, s32, 131072
    v_add_u32 v6, s32, v1
    s_xor_b32 s32, s6, 2
    s_lshl_b32 s32, s32, 12
    s_add_u32 s32, s32, 131072
    v_add_u32 v7, s32, v1
    s_cmp_eq_u32 s55, 0
    s_cbranch_scc1 {L}_0
    """)
    for q in range(4): a(f"ds_write_b128 v6, v[{32+4*q}:{35+4*q}] offset:{q*1024}")
    for r_ in range(16): a(f"v_mov_b32 v{32+r_}, v{48+r_}")
    a(f"s_branch {L}_1\n{L}_0:")
    for q in range(4): a(f"ds_write_b128 v6, v[{48+4*q}:{51+4*q}] offset:{q*1024}")
    a(f"{L}_1:\ns_waitcnt lgkmcnt(0)\ns_barrier")
    for q in range(4): a(f"ds_read_b128 v[{48+4*q}:{51+4*q}], v7 offset:{q*1024}")
    a("s_waitcnt lgkmcnt(0)")
    for r_ in range(0,16,2): a(f"v_pk_add_f32 v[{32+r_}:{33+r_}], v[{32+r_}:{33+r_}], v[{48+r_}:{49+r_}]")
    pack_tile(a,32,96)
    for f in range(2):
        a(f"buffer_store_dwordx4 v[{96+4*f}:{99+4*f}], v1, s[8:11], s44 offen offset:{f*1024} sc1")
    a(f"""
    s_add_u32 s44, s44, 131072
    s_add_u32 s47, s47, 1
    s_mov_b32 s42, s50
    s_cmp_eq_u32 s48, 0
    s_cbranch_scc1 {lab}_slow
    s_mov_b32 s52, 1
    """)
    adv()
    a(f"""
    s_waitcnt vmcnt(2)
    s_barrier
    s_branch {lab}_unit
{lab}_slow:
    s_waitcnt vmcnt(0)
    """)
    roles.tsp(a,0,3,'s47',('s4','s5','s6'))
    set_flag(a,'s46',vtmp=(11,12))
    a(f"""
    s_add_u32 s46, s46, 256
    s_cmp_ge_u32 s47, 64
    s_cbranch_scc1 {lab}_done
    """)
    wait_flags(a,lab+'ws',2,'s45',fail,spin)
    roles.tsp(a,0,0,'s47',('s4','s5','s6'))
    for d in dma_list(16,14,'s42'): a(d)
    adv()
    a(f"""
    s_waitcnt vmcnt(0)
    s_barrier
    s_branch {lab}_unit
{lab}_done:
    """)
```

```python
import sys
from asmlib import Asm
from common import *
import importlib, os
chain=importlib.import_module(os.environ.get('CHAIN','chain10'))
import roles, roles2, roles3
KN='interleave_layers__sliding_block__memory_aug_recurrent_mem_tr__prompt_kernel'
INIT='init_ws_kernel'
ALL={'CH','P','O','AH','AWO','F','ATT'}
def desc(K,nv=512,ns=102):
    return f'''
.amdhsa_kernel {K}
  .amdhsa_next_free_vgpr {nv}
  .amdhsa_next_free_sgpr {ns}
  .amdhsa_accum_offset {min(256,(nv+3)//4*4)}
  .amdhsa_group_segment_fixed_size 0
  .amdhsa_kernarg_size 104
  .amdhsa_user_sgpr_count 2
  .amdhsa_user_sgpr_kernarg_segment_ptr 1
  .amdhsa_system_sgpr_workgroup_id_x 1
.end_amdhsa_kernel
'''
def gen_init():
    a=Asm()
    a.label(INIT)
    nflag=FL_END
    a(f"""
    s_cmp_ge_u32 s2, 256
    s_cbranch_scc1 LI_end
    s_load_dwordx2 s[8:9], s[0:1], 96
    s_waitcnt lgkmcnt(0)
    s_mov_b32 s10, 0x10000000
    s_mov_b32 s11, 0x20000
    s_lshl_b32 s3, s2, 8
    v_add_u32 v1, s3, v0
    v_lshlrev_b32 v1, 4, v1                  ; 0 .. 1MB
    v_mov_b32 v4, 0
    v_mov_b32 v5, 0
    v_mov_b32 v6, 0
    v_mov_b32 v7, 0
    v_mov_b32 v8, -1
    v_mov_b32 v9, -1
    v_mov_b32 v10, -1
    v_mov_b32 v11, -1
    s_mov_b32 s12, {WS_FLAG}
    v_cmp_gt_u32 vcc, {nflag}, v1
    s_and_saveexec_b64 s[14:15], vcc
    s_cbranch_execz LI_a
    buffer_store_dwordx4 v[4:7], v1, s[8:11], s12 offen
LI_a:
    s_mov_b64 exec, s[14:15]
    s_mov_b32 s12, {WS_INB}
    buffer_store_dwordx4 v[8:11], v1, s[8:11], s12 offen
    s_mov_b32 s12, {WS_INB+0x100000}
    buffer_store_dwordx4 v[8:11], v1, s[8:11], s12 offen
    s_mov_b32 s12, {WS_MEM}
    v_cmp_gt_u32 vcc, 0x10000, v1
    s_and_saveexec_b64 s[14:15], vcc
    s_cbranch_execz LI_b
    buffer_store_dwordx4 v[8:11], v1, s[8:11], s12 offen
LI_b:
    s_mov_b64 exec, s[14:15]
LI_end:
    s_endpgm
    """)
    out,_,errs=a.finish()
    for e in errs.values(): print('LINT',e,file=sys.stderr)
    return out
def gen(cfg):
    if cfg.get('pf',True) and 'sizes' not in cfg:
        c1=dict(cfg); c1['sizes']={}; c1['sizing']=True
        gen2(c1)
        cfg=dict(cfg); cfg['sizes']=c1['sizes']
    return gen2(cfg)
def gen2(cfg):
    if cfg.get('hostinit'):
        cfg=dict(cfg); cfg['init']=True; cfg['gate']=False
    en=cfg.get('roles',ALL)
    roles.TS=cfg.get('ts',False)
    roles.TSP=cfg.get('tsp',False)
    a=Asm(); K=KN
    a.label(K)
    selfinit=''
    if not cfg.get('init',False):
        selfinit=f'''s_mul_i32 s24, s2, 1280
    s_add_u32 s24, s24, {WS_FLAG}
    v_lshlrev_b32 v2, 4, v0
    s_lshl_b32 s25, s6, 10
    v_add_u32 v2, s25, v2
    v_mov_b32 v4, 0
    v_mov_b32 v5, 0
    v_mov_b32 v6, 0
    v_mov_b32 v7, 0
    v_cmp_gt_u32 vcc, 1280, v2
    s_and_saveexec_b64 s[26:27], vcc
    s_cbranch_execz L_si0
    buffer_store_dwordx4 v[4:7], v2, s[8:11], s24 offen sc1
L_si0:
    s_mov_b64 exec, s[26:27]
    s_waitcnt vmcnt(0)
    s_barrier'''
    clk0=''
    if cfg.get('clk'):
        clk0='''s_memtime s[100:101]
    s_memrealtime s[98:99]
    s_waitcnt lgkmcnt(0)
    s_lshl_b32 s24, s2, 5
    s_add_u32 s24, s24, 0xCB00000
    v_mov_b32 v2, s100
    v_mov_b32 v3, s98
    v_mov_b32 v4, s3
    v_mov_b32 v5, s5
    v_mov_b32 v6, 0
    s_mov_b64 exec, 1
    buffer_store_dwordx4 v[2:5], v6, s[8:11], s24 offen
    s_mov_b64 exec, -1'''
    tss=''
    if cfg.get('ts'):
        tss='''s_memrealtime s[98:99]
    s_waitcnt lgkmcnt(0)
    v_mov_b32 v3, s98
    s_lshl_b32 s24, s3, 2
    s_add_u32 s24, s24, 160
    v_mov_b32 v4, s24
    s_mov_b64 exec, 1
    buffer_store_dword v3, v4, s[12:15], 0 offen
    s_mov_b64 exec, -1'''
    a(f"""
    s_cmp_ge_u32 s2, 256
    s_cbranch_scc1 L_end
    s_load_dwordx2 s[8:9], s[0:1], 96        ; ws
    s_load_dwordx2 s[12:13], s[0:1], 88      ; dbg
    s_getreg_b32 s3, hwreg(HW_REG_XCC_ID, 0, 4)
    v_lshrrev_b32 v1, 6, v0
    s_nop 0
    v_readfirstlane_b32 s6, v1
    v_and_b32 v0, 63, v0                     ; lane
    s_waitcnt lgkmcnt(0)
    s_mov_b32 s10, 0x10000000
    s_mov_b32 s11, 0x20000
    s_mov_b32 s14, 256
    s_mov_b32 s15, 0x20000
    {selfinit}
    s_cmp_lg_u32 s6, 0
    s_cbranch_scc1 L_claimed
    v_mov_b32 v3, 1
    s_and_b32 s24, s3, 1
    s_lshl_b32 s24, s24, 7
    s_lshr_b32 s25, s3, 1
    s_lshl_b32 s25, s25, 2
    s_add_u32 s24, s24, s25
    v_mov_b32 v4, s24
    s_mov_b64 exec, 1
    buffer_atomic_add v3, v4, s[12:15], 0 offen sc0
    s_waitcnt vmcnt(0)
    v_mov_b32 v5, 0
    ds_write_b32 v5, v3
    s_waitcnt lgkmcnt(0)
    s_mov_b64 exec, -1
L_claimed:
    s_barrier
    v_mov_b32 v5, 0
    ds_read_b32 v3, v5
    s_waitcnt lgkmcnt(0)
    v_readfirstlane_b32 s5, v3
    s_barrier
    s_cmp_ge_u32 s5, 32
    s_cbranch_scc1 L_end
    {tss}
    {clk0}
    s_cmp_lt_u32 s3, 2
    s_cbranch_scc1 L_CH
    s_cmp_lt_u32 s3, 4
    s_cbranch_scc1 L_P
    s_cmp_eq_u32 s3, 4
    s_cbranch_scc1 L_ATT
    s_cmp_eq_u32 s3, 5
    s_cbranch_scc1 L_O
    s_cmp_eq_u32 s3, 6
    s_cbranch_scc1 L_AH
    s_cmp_lt_u32 s5, 8
    s_cbranch_scc1 L_AWO
    s_branch L_F
L_fail:
    s_load_dwordx2 s[12:13], s[0:1], 88
    s_waitcnt lgkmcnt(0)
    s_mov_b32 s14, 256
    s_mov_b32 s15, 0x20000
    s_lshl_b32 s24, s3, 2
    s_add_u32 s24, s24, 32
    v_mov_b32 v4, s24
    s_add_u32 s25, s5, 1
    v_mov_b32 v3, s25
    s_mov_b64 exec, 1
    buffer_store_dword v3, v4, s[12:15], 0 offen
L_end:
    s_endpgm
    """)
    fail='L_fail'
    def init_wait(a_,name,cnt_off=32,target=256,sb=92):
        if cfg.get('init',False): return
        if target==256:
            gl=f'''v_mbcnt_lo_u32_b32 v9, -1, 0
        v_mbcnt_hi_u32_b32 v9, -1, v9
        v_min_u32 v9, 7, v9
        v_and_b32 v10, 1, v9
        v_lshlrev_b32 v10, 7, v10
        v_lshrrev_b32 v9, 1, v9
        v_lshl_add_u32 v9, v9, 2, v10
        buffer_load_dword v9, v9, s[{sb}:{sb+3}], 0 offen sc1
        s_waitcnt vmcnt(0)
        v_cmp_gt_u32 vcc, 32, v9
        s_cmp_eq_u64 vcc, 0
        s_cselect_b32 s{sb+5}, 256, 0'''
        else:
            gl=f'''v_mov_b32 v9, {cnt_off}
        buffer_load_dword v9, v9, s[{sb}:{sb+3}], 0 offen sc1
        s_waitcnt vmcnt(0)
        v_readfirstlane_b32 s{sb+5}, v9'''
        a_(f'''
        s_load_dwordx2 s[{sb}:{sb+1}], s[0:1], 88
        s_waitcnt lgkmcnt(0)
        s_mov_b32 s{sb+2}, 256
        s_mov_b32 s{sb+3}, 0x20000
        s_mov_b32 s{sb+4}, 0
{name}_iw:
        {gl}
        s_cmp_ge_u32 s{sb+5}, {target}
        s_cbranch_scc1 {name}_iwd
        s_add_u32 s{sb+4}, s{sb+4}, 1
        s_cmp_gt_u32 s{sb+4}, {cfg.get('spin',roles.SPIN_DEFAULT)}
        s_cbranch_scc1 L_fail
        s_sleep 2
        s_branch {name}_iw
{name}_iwd:
        ''')
    cfg=dict(cfg); cfg['init_wait']=init_wait
    marks={}
    def begin(name):
        marks[name]=len(a.lines)
        if cfg.get('pf',True) and not cfg.get('sizing'):
            roles.prefetch_code(a,'LB_'+name,'LE_'+name,cfg['sizes'].get(name,4096)+4096)
        a.label('LB_'+name)
        marks[name]=len(a.lines)
    def end(name):
        a.label('LE_'+name)
        if cfg.get('sizing'): cfg['sizes'][name]=(len(a.lines)-marks[name])*7
    END='s_branch L_fin' if cfg.get('clk') else 's_endpgm'
    a.label('L_F')
    if 'F' in en:
        a("""
        s_sub_u32 s5, s5, 8
        s_lshr_b32 s7, s5, 2
        s_and_b32 s5, s5, 3
        s_mov_b32 s4, 0
        s_cmp_eq_u32 s7, 0
        s_cbranch_scc1 L_F0
        s_cmp_eq_u32 s7, 2
        s_cbranch_scc1 L_F2
        s_cmp_eq_u32 s7, 4
        s_cbranch_scc1 L_F3
        s_mov_b32 s4, 1
        s_cmp_eq_u32 s7, 5
        s_cbranch_scc1 L_F2
        s_lshr_b32 s4, s7, 1
        """)
        begin('FT1'); roles3.emit_F(a,cfg,'T1',fail); end('FT1'); a("s_endpgm")
        a.label('L_F0'); begin('FT0'); roles3.emit_F(a,cfg,'T0',fail); end('FT0'); a("s_endpgm")
        a.label('L_F2'); begin('FT2'); roles3.emit_F(a,cfg,'T2',fail); end('FT2'); a("s_endpgm")
        a.label('L_F3'); begin('FT3'); roles3.emit_F(a,cfg,'T3',fail); end('FT3')
    a(END)
    a.label('L_AWO')
    if 'AWO' in en:
        a("s_lshr_b32 s4, s5, 2\ns_and_b32 s5, s5, 3")
        begin('AWO'); roles3.emit_AWO(a,cfg,fail); end('AWO')
    a(END)
    a.label('L_ATT')
    if 'ATT' in en:
        begin('ATT'); roles3.emit_ATT(a,cfg,fail); end('ATT')
    a(END)
    a.label('L_AH')
    if 'AH' in en: begin('AH'); roles2.emit_AH(a,cfg,fail); end('AH')
    a(END)
    def gate(name):
        if not cfg.get('gate',True): return
        a(f"s_cmp_eq_u32 s4, 0\ns_cbranch_scc1 {name}_ng0")
        init_wait(a,name+'gi')
        a.label(name+'_ng0')
        a(f"s_cmp_eq_u32 s4, 0\ns_cbranch_scc1 {name}_ng\ns_mov_b32 s12, {WS_FLAG+FL_XN+cfg.get('gate_t',1)*64*128+cfg.get('gate_s',0)*128}")
        roles.wait_flags(a,name+'g',16,'s12',fail,cfg.get('spin',roles.SPIN_DEFAULT),vtmp=(8,9),sleep=8)
        a.label(name+'_ng')
    a.label('L_O')
    if 'O' in en:
        a("s_lshr_b32 s4, s5, 4\ns_and_b32 s5, s5, 15")
        gate('L_O')
        begin('O'); roles3.emit_O5(a,cfg,fail); end('O')
    a(END)
    a.label('L_P')
    if 'P' in en:
        a("s_sub_u32 s4, s3, 2")
        gate('L_P')
        begin('P'); roles3.emit_P(a,cfg,fail); end('P')
    a(END)
    a.label('L_CH')
    if 'CH' in en:
        a("s_mov_b32 s4, s3")
        gate('L_CH')
        c=dict(FL_P=FL_P,FL_CH=FL_CH); c.update(cfg)
        begin('CH'); chain.emit_chain(a,c,fail); end('CH')
        if cfg.get('stamps') or cfg.get('tot'):
            a("""
            s_load_dwordx2 s[12:13], s[0:1], 96
            s_waitcnt lgkmcnt(0)
            s_mov_b32 s14, 0x10000000
            s_mov_b32 s15, 0x20000
            s_memtime s[70:71]
            s_waitcnt lgkmcnt(0)
            s_sub_u32 s75, s70, s74
            s_lshl_b32 s32, s4, 5
            s_add_u32 s32, s32, s5
            s_lshl_b32 s32, s32, 2
            s_add_u32 s32, s32, s6
            s_lshl_b32 s32, s32, 6
            s_add_u32 s32, s32, 0xC800000
            v_mov_b32 v32, s32
            """)
            for k in range(10): a(f"v_mov_b32 v{36+k}, s{76+k}")
            a("""
            v_mov_b32 v45, s88
            v_mov_b32 v46, s75
            v_mov_b32 v47, s59
            s_mov_b64 exec, 1
            buffer_store_dwordx4 v[36:39], v32, s[12:15], 0 offen
            buffer_store_dwordx4 v[40:43], v32, s[12:15], 0 offen offset:16
            buffer_store_dwordx4 v[44:47], v32, s[12:15], 0 offen offset:32
            s_mov_b64 exec, -1
            """)
        a("""
        s_cmp_eq_u32 s59, 0
        s_cbranch_scc1 L_CHend
        s_branch L_fail
L_CHend:
        """)
    a(END)
    if cfg.get('clk'):
        a('''
L_fin:
    s_cmp_lg_u32 s6, 0
    s_cbranch_scc1 L_fin2
    s_memtime s[100:101]
    s_memrealtime s[98:99]
    s_waitcnt lgkmcnt(0)
    s_lshl_b32 s24, s2, 5
    s_add_u32 s24, s24, 0xCB00010
    v_mov_b32 v2, s100
    v_mov_b32 v3, s98
    v_mov_b32 v5, 0
    s_mov_b64 exec, 1
    buffer_store_dwordx2 v[2:3], v5, s[8:11], s24 offen
L_fin2:
    s_endpgm
''')
    out,total,errs=a.finish()
    for e in list(errs.values())[:10]: print('LINT',e,file=sys.stderr)
    print('nops inserted',total,'instrs',len(out),file=sys.stderr)
    withinit=cfg.get('init',False) and not cfg.get('hostinit')
    if withinit:
        hdr=f"""; @launch kernel={INIT} grid=(256,1,1) block=(256,1,1) lds=0
; @launch kernel={K} grid=(256,1,1) block=(256,1,1) lds=163840
"""
    else:
        hdr=f"; @launch grid=(256,1,1) block=(256,1,1) lds=163840\n"
    txt=hdr+f""".amdgcn_target "amdgcn-amd-amdhsa--gfx950"
.text
.globl {K}
.p2align 8
.type {K},@function
"""+'\n'.join(out)+'\n'
    if withinit:
        txt+=f""".globl {INIT}
.p2align 8
.type {INIT},@function
"""+'\n'.join(gen_init())+'\n'
    txt+='.section .rodata,"a"\n.p2align 6\n'+desc(K)
    if withinit: txt+='.p2align 6\n'+desc(INIT,16,32)
    return txt
if __name__=='__main__':
    s=gen(dict())
    open('m.s','w').write(s)
    print(len(s),'bytes')
    import subprocess
    r=subprocess.run(['clang','-x','assembler','-target','amdgcn-amd-amdhsa','-mcpu=gfx950','-c','m.s','-o','m.o'],capture_output=True,text=True); print(r.stderr)
```

```python
from common import *
import roles
from roles import wait_flags, set_flag, flagval, tr_addr32, pack_tile, causal_masks, SPIN_DEFAULT

def poll_issue(a, n, soff, va, vb):
    a(f"""
    v_mbcnt_lo_u32_b32 v{va}, -1, 0
    v_mbcnt_hi_u32_b32 v{va}, -1, v{va}
    v_min_u32 v{va}, {n-1}, v{va}
    v_lshlrev_b32 v{va}, 2, v{va}
    buffer_load_dword v{vb}, v{va}, s[8:11], {soff} offen sc1
    """)

def emit_F(a, cfg, typ, fail):
    spin=cfg.get('spin',SPIN_DEFAULT)
    lab=a.new('F'+typ)
    npart={'T0':0,'T1':1,'T2':2,'T3':2}[typ]
    nfl={'T0':0,'T1':8,'T2':64,'T3':64}[typ]
    flstep={'T0':0,'T1':128,'T2':256,'T3':256}[typ]
    a(f"""
    v_and_b32 v1, 15, v0
    v_bfe_u32 v2, v0, 4, 1
    v_lshrrev_b32 v3, 5, v0
    v_lshlrev_b32 v4, 4, v1
    v_lshl_add_u32 v4, v2, 9, v4
    v_lshl_add_u32 v4, v3, 10, v4
    s_lshl_b32 s12, s6, 13
    s_lshl_b32 s13, s5, 8
    s_add_u32 s12, s12, s13
    v_add_u32 v4, s12, v4
    s_lshl_b32 s13, s5, 4
    v_add_u32 v5, s13, v1
    v_lshlrev_b32 v5, 10, v5
    v_lshl_add_u32 v5, v3, 5, v5
    v_lshl_add_u32 v5, v2, 4, v5
    s_lshl_b32 s13, s6, 8
    v_add_u32 v5, s13, v5
    v_lshlrev_b32 v6, 3, v1
    s_lshl_b32 s13, s6, 7
    v_add_u32 v7, s13, v6
    """)
    if typ=='T0':
        a(f"""
        s_load_dwordx2 s[16:17], s[0:1], 0
        s_waitcnt lgkmcnt(0)
        s_mov_b32 s18, {2048*1024}
        s_mov_b32 s19, 0x20000
        s_mov_b32 s20, 0
        s_mov_b32 s22, {xs(T_X0,0)}
        s_mov_b32 s23, {xs(T_XNA1,0)}
        s_mov_b32 s24, {WS_FLAG+FL_XN+0*64*128}
        """)
    elif typ=='T1':
        a(f"""
        s_mul_i32 s13, s4, {6*64*32768}
        s_add_u32 s20, s13, {xs(T_X0,0)}
        s_add_u32 s21, s13, {xs(T_YA1,0)}
        s_add_u32 s22, s13, {xs(T_X1,0)}
        s_add_u32 s23, s13, {xs(T_XNB1,0)}
        s_lshl_b32 s13, s4, 14
        s_add_u32 s24, s13, {WS_FLAG+FL_XN+1*64*128}
        s_lshl_b32 s13, s4, 13
        s_add_u32 s25, s13, {WS_FLAG+FL_YA}
        """)
    elif typ=='T2':
        a(f"""
        s_mov_b32 s20, {xs(T_X1,0)}
        s_mov_b32 s21, {WS_PO}
        s_mov_b32 s22, {xs(T_X2,0)}
        s_mov_b32 s23, {xs(T_XNA2,0)}
        s_mov_b32 s24, {WS_FLAG+FL_XN+2*64*128}
        s_mov_b32 s25, {WS_FLAG+FL_PO}
        """)
    else:
        a(f"""
        s_load_dwordx2 s[16:17], s[0:1], 80
        s_waitcnt lgkmcnt(0)
        s_mov_b32 s18, {2048*1024}
        s_mov_b32 s19, 0x20000
        s_mov_b32 s20, {xs(T_X3,0)}
        s_mov_b32 s21, {WS_PO+64*131072}
        s_mov_b32 s22, 0
        s_mov_b32 s25, {WS_FLAG+FL_PO+64*256}
        """)
    a(f"""
    s_lshl_b32 s13, s5, 4
    s_lshl_b32 s14, s6, 2
    s_add_u32 s13, s13, s14
    {'s_add_u32 s24, s24, s13' if typ!='T3' else ''}
    s_mov_b32 s26, 0
    v_mov_b32 v8, 0x3f803f80
    s_mov_b32 s27, 0xffff0000
    s_mov_b32 s30, 0
    s_mov_b32 s31, 0
    """)
    SETS=[(16,32,48),(192,208,224)]
    W=64
    NL={'T0':4,'T1':8,'T2':12,'T3':12}[typ]
    NS={'T0':8,'T1':8,'T2':8,'T3':4}[typ]
    def loads(st):
        X,P0,P1=SETS[st]
        if typ=='T0':
            for j in range(4): a(f"buffer_load_dwordx4 v[{X+4*j}:{X+4*j+3}], v5, s[16:19], s20 offen offset:{64*j}")
            a("s_add_u32 s20, s20, 32768")
        else:
            a("s_add_u32 s13, s20, 4096\ns_add_u32 s14, s21, 4096")
            if npart==2: a("s_add_u32 s28, s21, 32768\ns_add_u32 s29, s28, 4096")
            for j in range(4):
                so=lambda b,b2: (b if j<2 else b2)
                a(f"buffer_load_dwordx4 v[{P0+4*j}:{P0+4*j+3}], v4, s[8:11], {so('s21','s14')} offen offset:{2048*(j&1)} sc1")
                if npart==2: a(f"buffer_load_dwordx4 v[{P1+4*j}:{P1+4*j+3}], v4, s[8:11], {so('s28','s29')} offen offset:{2048*(j&1)} sc1")
                a(f"buffer_load_dwordx4 v[{X+4*j}:{X+4*j+3}], v4, s[8:11], {so('s20','s13')} offen offset:{2048*(j&1)} sc1")
            a(f"s_add_u32 s20, s20, 32768\ns_add_u32 s21, s21, {32768 if typ=='T1' else 131072}\ns_add_u32 s25, s25, {flstep}")
    def flag_prev():
        if typ=='T3': return
        set_flag(a,'s24')
        a("s_add_u32 s24, s24, 128")
    if nfl: wait_flags(a,lab+'w0',nfl,'s25',fail,spin)
    loads(0)
    def iteration(st):
        X,P0,P1=SETS[st]; L=f"{lab}_i{st}"
        a.label(L)
        if nfl: poll_issue(a,nfl,'s25',10,9)
        np_=1 if nfl else 0
        a(f"""
        s_cmp_eq_u32 s31, 0
        s_cbranch_scc1 {L}_w1
        s_waitcnt vmcnt({NS+np_})
        s_branch {L}_w2
{L}_w1:
        s_waitcnt vmcnt({np_})
{L}_w2:
        """)
        if typ=='T0':
            for j in range(4):
                a(f"v_permlane16_swap_b32 v{X+4*j}, v{X+4*j+2}\nv_permlane16_swap_b32 v{X+4*j+1}, v{X+4*j+3}")
        else:
            for r in range(16):
                w0=W+2*r
                if npart==2:
                    a(f"""
                    v_lshlrev_b32 v{w0}, 16, v{P0+r}
                    v_and_b32 v{w0+1}, s27, v{P0+r}
                    v_lshlrev_b32 v12, 16, v{P1+r}
                    v_and_b32 v13, s27, v{P1+r}
                    v_pk_add_f32 v[{w0}:{w0+1}], v[{w0}:{w0+1}], v[12:13]
                    v_cvt_pk_bf16_f32 v{P0+r}, v{w0}, v{w0+1}
                    """)
                a(f"""
                v_lshlrev_b32 v{w0}, 16, v{P0+r}
                v_and_b32 v{w0+1}, s27, v{P0+r}
                v_lshlrev_b32 v12, 16, v{X+r}
                v_and_b32 v13, s27, v{X+r}
                v_pk_add_f32 v[{w0}:{w0+1}], v[{w0}:{w0+1}], v[12:13]
                v_cvt_pk_bf16_f32 v{X+r}, v{w0}, v{w0+1}
                """)
        a(f"""
        s_waitcnt vmcnt(0)
        s_cmp_eq_u32 s30, 0
        s_cbranch_scc1 {L}_nf
        """)
        flag_prev()
        a(f"""
        s_mov_b32 s30, 0
{L}_nf:
        s_mov_b32 s31, 0
        s_cmp_ge_u32 s26, 63
        s_cbranch_scc1 {L}_np
        """)
        if nfl:
            a(f"v_cmp_eq_u32 vcc, 0, v9\ns_cbranch_vccnz {L}_np")
        a("s_mov_b32 s31, 1")
        loads(1-st)
        a.label(L+'_np')
        if typ=='T3':
            for j in range(4):
                a(f"v_permlane16_swap_b32 v{X+4*j}, v{X+4*j+2}\nv_permlane16_swap_b32 v{X+4*j+1}, v{X+4*j+3}")
            for j in range(4): a(f"buffer_store_dwordx4 v[{X+4*j}:{X+4*j+3}], v5, s[16:19], s22 offen offset:{64*j}")
            a("s_add_u32 s22, s22, 32768")
        else:
            a("s_add_u32 s13, s22, 4096")
            for j in range(4):
                a(f"buffer_store_dwordx4 v[{X+4*j}:{X+4*j+3}], v4, s[8:11], {'s22' if j<2 else 's13'} offen offset:{2048*(j&1)} sc1")
            a("v_mov_b32 v12, 0\nv_mov_b32 v13, 0\nv_mov_b32 v14, 0\nv_mov_b32 v15, 0")
            for r in range(0,16,2):
                a(f"v_dot2_f32_bf16 v12, v{X+r}, v8, v12\nv_dot2_f32_bf16 v13, v{X+r}, v{X+r}, v13\nv_dot2_f32_bf16 v14, v{X+r+1}, v8, v14\nv_dot2_f32_bf16 v15, v{X+r+1}, v{X+r+1}, v15")
            a(f"""
            v_pk_add_f32 v[12:13], v[12:13], v[14:15]
            v_mov_b32 v10, v12
            v_mov_b32 v11, v13
            v_permlane16_swap_b32 v12, v10
            v_permlane16_swap_b32 v13, v11
            v_pk_add_f32 v[12:13], v[12:13], v[10:11]
            v_mov_b32 v10, v12
            v_mov_b32 v11, v13
            v_permlane32_swap_b32 v12, v10
            v_permlane32_swap_b32 v13, v11
            v_pk_add_f32 v[12:13], v[12:13], v[10:11]
            s_mov_b64 exec, 0xffff
            ds_write_b64 v7, v[12:13] offset:{512*st}
            s_mov_b64 exec, -1
            s_waitcnt lgkmcnt(0)
            s_barrier
            ds_read_b64 v[10:11], v6 offset:{512*st}
            ds_read_b64 v[12:13], v6 offset:{512*st+128}
            ds_read_b64 v[14:15], v6 offset:{512*st+256}
            ds_read_b64 v[{W}:{W+1}], v6 offset:{512*st+384}
            s_waitcnt lgkmcnt(0)
            v_pk_add_f32 v[10:11], v[10:11], v[12:13]
            v_pk_add_f32 v[14:15], v[14:15], v[{W}:{W+1}]
            v_pk_add_f32 v[10:11], v[10:11], v[14:15]
            v_mul_f32 v10, 0x3b000000, v10
            v_mul_f32 v11, 0x3b000000, v11
            v_fma_f32 v11, -v10, v10, v11
            v_max_f32 v11, 0, v11
            v_cvt_pk_bf16_f32 v14, v10, v11
            v_lshlrev_b32 v12, 16, v14
            v_and_b32 v11, s27, v14
            v_add_f32 v11, 0x3727c5ac, v11
            v_cvt_pk_bf16_f32 v11, v11, v11
            v_and_b32 v11, s27, v11
            v_sqrt_f32 v11, v11
            v_mov_b32 v13, v12
            v_cvt_pk_bf16_f32 v11, v11, v11
            v_and_b32 v11, s27, v11
            v_rcp_f32 v14, v11
            s_nop 0
            v_mov_b32 v15, v14
            """)
            for r in range(16):
                w0=W+2*r
                a(f"""
                v_lshlrev_b32 v{w0}, 16, v{X+r}
                v_and_b32 v{w0+1}, s27, v{X+r}
                v_pk_add_f32 v[{w0}:{w0+1}], v[{w0}:{w0+1}], v[12:13] neg_lo:[0,1] neg_hi:[0,1]
                v_cvt_pk_bf16_f32 v{P0+r}, v{w0}, v{w0+1}
                v_lshlrev_b32 v{w0}, 16, v{P0+r}
                v_and_b32 v{w0+1}, s27, v{P0+r}
                v_pk_mul_f32 v[{w0}:{w0+1}], v[{w0}:{w0+1}], v[14:15]
                v_cvt_pk_bf16_f32 v{P0+r}, v{w0}, v{w0+1}
                """)
            a("s_add_u32 s13, s23, 4096")
            for j in range(4):
                a(f"buffer_store_dwordx4 v[{P0+4*j}:{P0+4*j+3}], v4, s[8:11], {'s23' if j<2 else 's13'} offen offset:{2048*(j&1)} sc1")
            a("s_add_u32 s22, s22, 32768\ns_add_u32 s23, s23, 32768")
        a(f"""
        s_mov_b32 s30, 1
        s_add_u32 s26, s26, 1
        s_cmp_eq_u32 s31, 1
        s_cbranch_scc1 {lab}_i{1-st}
        s_waitcnt vmcnt(0)
        """)
        flag_prev()
        a(f"""
        s_mov_b32 s30, 0
        s_cmp_ge_u32 s26, 64
        s_cbranch_scc1 {lab}_done
        """)
        if nfl: wait_flags(a,L+'ws',nfl,'s25',fail,spin)
        loads(1-st)
        if st==1: a(f"s_branch {lab}_i0")
    iteration(0); iteration(1)
    a.label(lab+'_done')

def emit_AWO(a, cfg, fail):
    spin=cfg.get('spin',SPIN_DEFAULT)
    lab=a.new('AWO')
    a("""
    s_load_dwordx2 s[12:13], s[0:1], 16      ; A_wo
    s_waitcnt lgkmcnt(0)
    s_mov_b32 s14, 524288
    s_mov_b32 s15, 0x20000
    v_lshrrev_b32 v61, 5, v0
    v_and_b32 v60, 31, v0
    s_lshl_b32 s32, s5, 9
    """)
    for var in range(2):
        a(f"""
        v_add_u32 v62, {2*var}, v61
        v_lshlrev_b32 v62, 2, v62
        v_xor_b32 v62, v60, v62
        v_lshlrev_b32 v62, 4, v62
        v_lshl_add_u32 v62, v61, 10, v62
        v_add_u32 v{40+var}, s32, v62
        """)
    a("s_lshl_b32 s32, s6, 3")
    tr_addr32(a,44,'s32',512,lambda r,o: a(f"v_lshlrev_b32 v{o}, 2, v{r}"),0)
    a("v_xor_b32 v45, 64, v44\nv_add_u32 v46, 0x10000, v44\nv_add_u32 v47, 0x10000, v45")
    def wreg(T,ks,p):
        b=(T*32+ks)*4+2*p; return f"a[{b}:{b+1}]"
    for rnd in range(2):
        a(f"s_lshl_b32 s33, s6, 16\ns_add_u32 s33, s33, {rnd*256*1024}\ns_lshl_b32 s34, s6, 15")
        for n in range(32):
            a(f"s_add_u32 m0, s34, {2*n*512}\ns_add_u32 s35, s33, {2*n*1024}\nbuffer_load_dwordx4 v{40+(n&1)}, s[12:15], s35 offen lds")
        a("s_waitcnt vmcnt(0)\ns_barrier")
        for ksl in range(16):
            ks=16*rnd+ksl
            for T in range(2):
                for p in range(2):
                    off=(ksl&7)*16*512+p*8*512
                    a(f"ds_read_b64_tr_b16 {wreg(T,ks,p)}, v{44+T+(2 if ksl>=8 else 0)} offset:{off}")
            if ksl%2==1: a("s_waitcnt lgkmcnt(4)")
        a("s_waitcnt lgkmcnt(0)\ns_barrier")
    a(f"""
    v_lshlrev_b32 v1, 4, v0
    s_lshl_b32 s32, s6, 13
    v_add_u32 v2, s32, v1
    s_lshl_b32 s32, s5, 14
    s_lshl_b32 s33, s6, 12
    s_add_u32 s32, s32, s33
    v_add_u32 v3, s32, v1
    s_mul_i32 s32, s4, {6*64*32768}
    s_add_u32 s43, s32, {xs(T_OA1,0)}
    s_add_u32 s44, s32, {xs(T_YA1,0)}
    s_lshl_b32 s32, s4, 13
    s_add_u32 s45, s32, {WS_FLAG+FL_OA}
    s_lshl_b32 s33, s5, 4
    s_lshl_b32 s34, s6, 2
    s_add_u32 s33, s33, s34
    s_add_u32 s46, s32, {WS_FLAG+FL_YA}
    s_add_u32 s46, s46, s33
    s_mov_b32 s40, 0
    s_mov_b32 s42, 0
    s_mov_b32 s47, 0
    """)
    def dma(bufreg):
        out=[]
        for n in range(8):
            out.append(f"s_lshl_b32 s32, s6, 13\ns_add_u32 s32, s32, {bufreg}\ns_add_u32 m0, s32, {(n>>2)*4096}\ns_add_u32 s33, s43, {(n>>2)*4096}\nbuffer_load_dwordx4 v2, s[8:11], s33 offen offset:{(n&3)*1024} sc1 lds")
        return out
    wait_flags(a,lab+'w0',32,'s45',fail,spin)
    for d in dma('s42'): a(d)
    a("s_add_u32 s43, s43, 32768\ns_add_u32 s45, s45, 128\ns_waitcnt vmcnt(0)\ns_barrier")
    a.label(lab+'_unit')
    a("v_add_u32 v5, s42, v1\ns_xor_b32 s50, s42, 32768")
    poll_issue(a,32,'s45',10,9)
    XR=64; NR=8; AHEAD=6
    def rd(i): a(f"ds_read_b128 v[{XR+4*(i%NR)}:{XR+4*(i%NR)+3}], v5 offset:{i*1024}")
    for i in range(AHEAD): rd(i)
    dl=dma('s50')
    for ks in range(32):
        r=XR+4*(ks%NR)
        a(f"s_waitcnt lgkmcnt({min(AHEAD-1,31-ks)})")
        for T in range(2):
            acc=32+16*T; c='0' if ks==0 else f"v[{acc}:{acc+15}]"
            b=(T*32+ks)*4
            a(f"v_mfma_f32_32x32x16_bf16 v[{acc}:{acc+15}], a[{b}:{b+3}], v[{r}:{r+3}], {c}")
        if ks+AHEAD<32: rd(ks+AHEAD)
        if ks==12:
            a(f"""
            s_waitcnt vmcnt(0)
            s_cmp_eq_u32 s47, 0
            s_cbranch_scc1 {lab}_nf
            """)
            set_flag(a,'s46',vtmp=(11,12))
            a(f"""
            s_add_u32 s46, s46, 128
            s_mov_b32 s47, 0
{lab}_nf:
            s_mov_b32 s48, 0
            s_cmp_ge_u32 s40, 63
            s_cselect_b32 s49, 1, 0
            v_cmp_eq_u32 vcc, 0, v9
            s_cmp_eq_u64 vcc, 0
            s_cselect_b32 s48, 1, 0
            s_cmp_eq_u32 s49, 1
            s_cselect_b32 s48, 0, s48
            """)
        if 13<=ks<21:
            L=a.new(lab+'d')
            a(f"s_cmp_eq_u32 s48, 0\ns_cbranch_scc1 {L}")
            a(dl[ks-13])
            a.label(L)
    for T in range(2): pack_tile(a,32+16*T,96+8*T)
    for f in range(4):
        a(f"buffer_store_dwordx4 v[{96+4*f}:{99+4*f}], v3, s[8:11], s44 offen offset:{f*1024} sc1")
    a(f"""
    s_add_u32 s44, s44, 32768
    s_add_u32 s40, s40, 1
    s_mov_b32 s47, 1
    s_mov_b32 s42, s50
    s_cmp_eq_u32 s48, 0
    s_cbranch_scc1 {lab}_slow
    s_add_u32 s43, s43, 32768
    s_add_u32 s45, s45, 128
    s_waitcnt vmcnt(4)
    s_barrier
    s_branch {lab}_unit
{lab}_slow:
    s_waitcnt vmcnt(0)
    """)
    set_flag(a,'s46',vtmp=(11,12))
    a(f"""
    s_add_u32 s46, s46, 128
    s_mov_b32 s47, 0
    s_cmp_ge_u32 s40, 64
    s_cbranch_scc1 {lab}_done
    """)
    wait_flags(a,lab+'ws',32,'s45',fail,spin)
    for d in dma('s42'): a(d)
    a(f"""
    s_add_u32 s43, s43, 32768
    s_add_u32 s45, s45, 128
    s_waitcnt vmcnt(0)
    s_barrier
    s_branch {lab}_unit
{lab}_done:
    """)

def emit_O(a, cfg, fail):
    spin=cfg.get('spin',SPIN_DEFAULT)
    lab=a.new('O')
    a(f"""
    s_load_dwordx2 s[12:13], s[0:1], 64
    s_waitcnt lgkmcnt(0)
    s_mov_b32 s14, 4194304
    s_mov_b32 s15, 0x20000
    s_lshr_b32 s40, s5, 3                    ; kh
    s_and_b32 s41, s5, 7                     ; nq
    v_lshrrev_b32 v61, 3, v0
    v_and_b32 v60, 7, v0
    v_bfe_u32 v62, v61, 1, 1
    v_lshlrev_b32 v62, 2, v62
    v_xor_b32 v62, v60, v62
    v_lshlrev_b32 v62, 4, v62
    v_lshl_add_u32 v62, v61, 10, v62
    s_lshl_b32 s32, s41, 7
    v_add_u32 v40, s32, v62
    s_mov_b32 s32, 0
    """)
    def swz(r,o): a(f"v_lshrrev_b32 v{o}, 1, v{r}\nv_lshlrev_b32 v{o}, 2, v{o}")
    tr_addr32(a,44,'s32',128,swz,0)
    a("s_lshl_b32 s34, s6, 15\nv_add_u32 v44, s34, v44\nv_xor_b32 v45, 64, v44")
    for rnd in range(2):
        a(f"s_lshl_b32 s33, s40, 21\ns_lshl_b32 s35, s6, 19\ns_add_u32 s33, s33, s35\ns_add_u32 s33, s33, {rnd*256*1024}")
        for n in range(32):
            a(f"s_add_u32 m0, s34, {8*n*128}\ns_add_u32 s35, s33, {8*n*1024}\nbuffer_load_dwordx4 v40, s[12:15], s35 offen lds")
        a("s_waitcnt vmcnt(0)")
        for ksl in range(16):
            ks=16*rnd+ksl
            for T in range(2):
                for p in range(2):
                    b=(T*32+ks)*4+2*p
                    a(f"ds_read_b64_tr_b16 a[{b}:{b+1}], v{44+T} offset:{ksl*2048+p*1024}")
            if ksl%2==1: a("s_waitcnt lgkmcnt(4)")
        a("s_waitcnt lgkmcnt(0)")
    a(f"""
    s_barrier
    v_lshlrev_b32 v1, 4, v0
    s_lshl_b32 s32, s4, 24
    s_lshl_b32 s33, s40, 17
    s_lshl_b32 s34, s6, 15
    s_add_u32 s43, s32, s33
    s_add_u32 s43, s43, s34
    s_add_u32 s43, s43, {WS_OB}
    s_lshl_b32 s32, s4, 23
    s_lshl_b32 s33, s40, 15
    s_lshl_b32 s34, s41, 12
    s_add_u32 s44, s32, s33
    s_add_u32 s44, s44, s34
    s_lshl_b32 s34, s6, 10
    s_add_u32 s44, s44, s34
    s_add_u32 s44, s44, {WS_PO}
    s_lshl_b32 s32, s4, 13
    s_lshl_b32 s33, s40, 6
    s_lshl_b32 s34, s6, 4
    s_add_u32 s45, s32, s33
    s_add_u32 s45, s45, s34
    s_add_u32 s45, s45, {WS_FLAG+FL_OB}
    s_lshl_b32 s32, s4, 14
    s_lshl_b32 s33, s5, 4
    s_lshl_b32 s34, s6, 2
    s_add_u32 s46, s32, s33
    s_add_u32 s46, s46, s34
    s_add_u32 s46, s46, {WS_FLAG+FL_PO}
    s_lshl_b32 s32, s6, 13
    v_add_u32 v2, s32, v1
    s_lshl_b32 s32, s6, 11
    v_add_u32 v3, s32, v1
    s_mov_b32 s47, 0                          ; unit
    s_mov_b32 s48, 0
    s_mov_b32 s51, 0
    """)
    XB=64
    def ld(ks):
        return f"s_add_u32 s32, s43, {(ks>>2)*4096}\nbuffer_load_dwordx4 v[{XB+4*ks}:{XB+4*ks+3}], v1, s[8:11], s32 offen offset:{(ks&3)*1024} sc1"
    wait_flags(a,lab+'w0',4,'s45',fail,spin)
    for ks in range(32): a(ld(ks))
    a("s_add_u32 s43, s43, 262144\ns_add_u32 s45, s45, 128\ns_mov_b32 s49, 0")
    a.label(lab+'_unit')
    poll_issue(a,4,'s45',10,9)
    a(f"""
    s_cmp_eq_u32 s49, 0
    s_cbranch_scc1 {lab}_a0
    s_waitcnt vmcnt(33)
    s_branch {lab}_a1
{lab}_a0:
    s_waitcnt vmcnt(32)
{lab}_a1:
    """)
    def mf(ks):
        for T in range(2):
            acc=32+16*T; c='0' if ks==0 else f"v[{acc}:{acc+15}]"; b=(T*32+ks)*4
            a(f"v_mfma_f32_32x32x16_bf16 v[{acc}:{acc+15}], a[{b}:{b+3}], v[{XB+4*ks}:{XB+4*ks+3}], {c}")
    H=8
    for ks in range(H):
        L=a.new(lab+'h')
        a(f"s_cmp_eq_u32 s49, 0\ns_cbranch_scc1 {L}_0\ns_waitcnt vmcnt({33-ks})\ns_branch {L}_1\n{L}_0:\ns_waitcnt vmcnt({32-ks})\n{L}_1:")
        mf(ks)
    a(f"""
    s_waitcnt vmcnt(0)
    s_cmp_eq_u32 s48, 0
    s_cbranch_scc1 {lab}_nf
    """)
    set_flag(a,'s46',vtmp=(11,12))
    a(f"""
    s_add_u32 s46, s46, 256
    s_mov_b32 s48, 0
{lab}_nf:
    s_cmp_ge_u32 s47, 63
    s_cbranch_scc1 {lab}_nostream
    v_cmp_eq_u32 vcc, 0, v9
    s_cbranch_vccnz {lab}_nostream
    s_mov_b32 s49, 1
    """)
    for ks in range(H): a(ld(ks))
    for ks in range(H,32):
        mf(ks); a(ld(ks))
    a(f"""
    s_add_u32 s43, s43, 262144
    s_add_u32 s45, s45, 128
    s_branch {lab}_red
{lab}_nostream:
    s_mov_b32 s49, 0
    """)
    for ks in range(H,32): mf(ks)
    a.label(lab+'_red')
    a("v_add_u32 v4, s51, v2\nv_add_u32 v5, s51, v3")
    for q in range(8): a(f"ds_write_b128 v4, v[{32+4*q}:{35+4*q}] offset:{q*1024}")
    a("s_waitcnt lgkmcnt(0)\ns_barrier")
    R=192
    for w in range(4):
        for q in range(2): a(f"ds_read_b128 v[{R+8*w+4*q}:{R+3+8*w+4*q}], v5 offset:{w*8192+q*1024}")
    a("s_xor_b32 s51, s51, 32768\ns_waitcnt lgkmcnt(0)")
    for r in range(0,8,2):
        a(f"v_pk_add_f32 v[{R+r}:{R+1+r}], v[{R+r}:{R+1+r}], v[{R+8+r}:{R+9+r}]\nv_pk_add_f32 v[{R+16+r}:{R+17+r}], v[{R+16+r}:{R+17+r}], v[{R+24+r}:{R+25+r}]")
    for r in range(0,8,2):
        a(f"v_pk_add_f32 v[{R+r}:{R+1+r}], v[{R+r}:{R+1+r}], v[{R+16+r}:{R+17+r}]")
    for i in range(4): a(f"v_cvt_pk_bf16_f32 v{12+i}, v{R+2*i}, v{R+1+2*i}")
    a(f"""
    buffer_store_dwordx4 v[12:15], v1, s[8:11], s44 offen sc1
    s_add_u32 s44, s44, 131072
    s_add_u32 s47, s47, 1
    s_mov_b32 s48, 1
    s_cmp_eq_u32 s49, 1
    s_cbranch_scc1 {lab}_unit
    s_waitcnt vmcnt(0)
    """)
    set_flag(a,'s46',vtmp=(10,11))
    a(f"""
    s_add_u32 s46, s46, 256
    s_mov_b32 s48, 0
    s_cmp_ge_u32 s47, 64
    s_cbranch_scc1 {lab}_done
    """)
    wait_flags(a,lab+'ws',4,'s45',fail,spin)
    for ks in range(32): a(ld(ks))
    a(f"""
    s_add_u32 s43, s43, 262144
    s_add_u32 s45, s45, 128
    s_branch {lab}_unit
{lab}_done:
    """)

def emit_ATT(a, cfg, fail):
    spin=cfg.get('spin',SPIN_DEFAULT)
    lab=a.new('ATT')
    a(f"""
    s_lshl_b32 s40, s5, 2
    s_add_u32 s40, s40, s6                   ; head
    s_lshl_b32 s32, s4, 11
    s_add_u32 s32, s32, s40                  ; (l*64)*32 + h
    s_mul_i32 s43, s32, {QKV_BLK}
    s_lshl_b32 s44, s32, 12
    s_add_u32 s44, s44, {WS_KM}
    s_lshl_b32 s45, s32, 4
    s_add_u32 s45, s45, {WS_FLAG+FL_CH}
    s_lshl_b32 s49, s32, 5
    s_add_u32 s49, s49, {WS_FLAG+FL_P}
    s_lshl_b32 s33, s4, 13
    s_lshl_b32 s34, s40, 2
    s_add_u32 s46, s33, s34
    s_add_u32 s46, s46, {WS_FLAG+FL_OB}
    s_lshl_b32 s33, s4, 24
    s_lshl_b32 s34, s40, 13
    s_add_u32 s47, s33, s34
    s_add_u32 s47, s47, {WS_OB}
    s_lshl_b32 s42, s6, 12
    v_lshlrev_b32 v1, 4, v0
    v_lshrrev_b32 v60, 5, v0
    v_and_b32 v61, 7, v0
    v_lshlrev_b32 v2, 4, v61
    v_lshl_add_u32 v2, v60, 7, v2
    v_add_u32 v2, s42, v2
    v_and_b32 v61, 31, v0
    v_lshlrev_b32 v3, 4, v61
    v_lshl_add_u32 v3, v60, 3, v3
    v_add_u32 v3, s42, v3
    v_mov_b32 v7, 0xff7fffff
    v_mov_b32 v12, 0x3f803f80
    v_mov_b32 v13, 0x3f803f80
    v_mov_b32 v14, 0x3f803f80
    v_mov_b32 v15, 0x3f803f80
    s_mov_b32 s48, 0x3e0293ee
    s_mov_b32 s50, 0x3e0293ee
    s_mov_b32 s51, 0x3e0293ee
    s_mov_b32 s41, 0                          ; unit
    s_mov_b32 s52, 0
    """)
    causal_masks(a,64)
    def qkv_loads(st):
        B=96*st; out=[]
        for blk,reg in ((1,B+32),(0,B),(2,B+64)):
            for g in range(2):
                for j in range(4):
                    r=reg+4*(4*g+j)
                    pre=f"s_add_u32 s32, s43, {blk*8192+g*4096}\n" if j==0 else ""
                    out.append(pre+f"buffer_load_dwordx4 a[{r}:{r+3}], v1, s[8:11], s32 offen offset:{j*1024} sc1")
        return out
    def adv_fetch(): a(f"s_add_u32 s43, s43, {32*QKV_BLK}\ns_add_u32 s49, s49, 1024")
    wait_flags(a,lab+'w0',8,'s49',fail,spin)
    for x in qkv_loads(0): a(x)
    adv_fetch()
    def polls():
        poll_issue(a,4,'s45',10,30)
        poll_issue(a,8,'s49',11,31)
    polls()
    def iteration(st):
        L=f"{lab}_i{st}"; B=96*st; Q=B; K=B+32; V=B+64
        KM=160; VM=192
        a.label(L)
        a(f"""
        s_cmp_eq_u32 s52, 0
        s_cbranch_scc1 {L}_w0
        s_waitcnt vmcnt(8)
        s_branch {L}_w1
{L}_w0:
        s_waitcnt vmcnt(0)
{L}_w1:
        s_mov_b32 s53, 0
        s_cmp_ge_u32 s41, 63
        s_cbranch_scc1 {L}_p0
        v_cmp_eq_u32 vcc, 0, v31
        s_cbranch_vccnz {L}_p0
        s_mov_b32 s53, 1
{L}_p0:
        v_cmp_eq_u32 vcc, 0, v30
        s_cbranch_vccz {L}_chok
        s_waitcnt vmcnt(0)
        s_cmp_eq_u32 s52, 0
        s_cbranch_scc1 {L}_nf0
        """)
        set_flag(a,'s46',vtmp=(10,11))
        a(f"s_add_u32 s46, s46, 128\ns_mov_b32 s52, 0\n{L}_nf0:")
        wait_flags(a,L+'wc',4,'s45',fail,spin)
        a(f"s_cmp_eq_u32 s53, 1\ns_cbranch_scc1 {L}_chok\ns_cmp_ge_u32 s41, 63\ns_cbranch_scc1 {L}_chok")
        poll_issue(a,8,'s49',11,31)
        a(f"s_waitcnt vmcnt(0)\nv_cmp_eq_u32 vcc, 0, v31\ns_cbranch_vccnz {L}_chok\ns_mov_b32 s53, 1")
        a.label(L+'_chok')
        a("s_mov_b32 m0, s42")
        for j in range(4): a(f"buffer_load_dwordx4 v1, s[8:11], s44 offen offset:{j*1024} sc1 lds")
        nl=qkv_loads(1-st)
        for variant in (1,0):
            VL=f"{L}_v{variant}"
            if variant==1: a(f"s_cmp_eq_u32 s53, 0\ns_cbranch_scc1 {L}_v0")
            else: a.label(VL)
            q=list(nl) if variant else []
            issued=[0]
            def side(n=1):
                for _ in range(n):
                    if q: a(q.pop(0)); issued[0]+=1
            for ks in range(8):
                c0='0' if ks==0 else 'v[32:47]'
                a(f"v_mfma_f32_32x32x16_bf16 v[32:47], a[{K+4*ks}:{K+4*ks+3}], a[{Q+4*ks}:{Q+4*ks+3}], {c0}")
                if ks%2==1: side()
            for r in range(16): a(f"v_cndmask_b32 v{32+r}, v7, v{32+r}, s[{64+2*r}:{65+2*r}]")
            a("""
            v_max3_f32 v24, v32, v33, v34
            v_max3_f32 v25, v35, v36, v37
            v_max3_f32 v24, v24, v38, v39
            v_max3_f32 v25, v25, v40, v41
            v_max3_f32 v24, v24, v42, v43
            v_max3_f32 v25, v25, v44, v45
            v_max3_f32 v24, v24, v46, v47
            """)
            a(f"s_waitcnt vmcnt({issued[0]})")
            for ks in range(8): a(f"ds_read_b128 v[{KM+4*ks}:{KM+4*ks+3}], v2 offset:{ks*256}")
            for W_ in range(4):
                a(f"ds_read_b64 v[{VM+4*W_}:{VM+4*W_+1}], v3 offset:{2048+W_*512}\nv_mov_b32 v{VM+4*W_+2}, 0\nv_mov_b32 v{VM+4*W_+3}, 0")
            a(f"s_cmp_eq_u32 s52, 0\ns_cbranch_scc1 {VL}_nf")
            set_flag(a,'s46',vtmp=(10,11))
            a(f"s_add_u32 s46, s46, 128\ns_mov_b32 s52, 0\n{VL}_nf:")
            for ks in range(8):
                a(f"s_waitcnt lgkmcnt({11-ks})")
                c1='0' if ks==0 else 'v[48:63]'
                a(f"v_mfma_f32_32x32x16_bf16 v[48:63], v[{KM+4*ks}:{KM+4*ks+3}], a[{Q+4*ks}:{Q+4*ks+3}], {c1}")
                if ks%2==1: side()
            a("""
            v_max3_f32 v25, v25, v48, v49
            v_max3_f32 v24, v24, v50, v51
            v_max_f32 v24, v24, v25
            v_mov_b32 v25, v24
            v_permlane32_swap_b32 v24, v25
            v_max_f32 v24, v24, v25
            v_mul_f32 v24, s48, v24
            v_mov_b32 v25, v24
            """)
            for r in range(0,20,2):
                a(f"v_pk_fma_f32 v[{32+r}:{33+r}], v[{32+r}:{33+r}], s[50:51], v[24:25] neg_lo:[0,0,1] neg_hi:[0,0,1]")
            for r in range(20):
                a(f"v_exp_f32 v{32+r}, v{32+r}")
                if r%5==4: side()
            for i in range(8): a(f"v_cvt_pk_bf16_f32 v{16+i}, v{32+2*i}, v{33+2*i}")
            a("""
            v_cvt_pk_bf16_f32 v8, v48, v49
            v_cvt_pk_bf16_f32 v9, v50, v51
            v_mov_b32 v10, 0
            v_mov_b32 v11, 0
            s_waitcnt lgkmcnt(0)
            v_mfma_f32_32x32x16_bf16 v[32:47], v[12:15], v[16:19], 0
            v_mfma_f32_32x32x16_bf16 v[32:47], v[12:15], v[20:23], v[32:47]
            v_mfma_f32_32x32x16_bf16 v[32:47], v[12:15], v[8:11], v[32:47]
            """)
            OT=[64,80,96,112]
            for W_ in range(4):
                o=OT[W_]
                a(f"v_mfma_f32_32x32x16_bf16 v[{o}:{o+15}], a[{V+8*W_}:{V+8*W_+3}], v[16:19], 0")
                side()
                a(f"v_mfma_f32_32x32x16_bf16 v[{o}:{o+15}], a[{V+8*W_+4}:{V+8*W_+7}], v[20:23], v[{o}:{o+15}]")
                side()
                a(f"v_mfma_f32_32x32x16_bf16 v[{o}:{o+15}], v[{VM+4*W_}:{VM+4*W_+3}], v[8:11], v[{o}:{o+15}]")
                side()
            side(24)
            if variant==1:
                adv_fetch()
                a(f"s_branch {L}_fin")
        a.label(L+'_fin')
        a(f"""
        s_add_u32 s44, s44, {32*4096}
        s_add_u32 s45, s45, 512
        """)
        a("v_rcp_f32 v24, v32\ns_nop 0\nv_mov_b32 v25, v24")
        PK=128
        for W_ in range(4):
            o=OT[W_]
            for r in range(0,16,2): a(f"v_pk_mul_f32 v[{o+r}:{o+r+1}], v[{o+r}:{o+r+1}], v[24:25]")
            for i in range(8): a(f"v_cvt_pk_bf16_f32 v{PK+8*W_+i}, v{o+2*i}, v{o+2*i+1}")
            if W_==0: polls()
        for W_ in range(4):
            if W_==2: a("s_add_u32 s32, s47, 4096")
            for f in range(2):
                fi=2*W_+f
                a(f"buffer_store_dwordx4 v[{PK+4*fi}:{PK+4*fi+3}], v1, s[8:11], {'s47' if fi<4 else 's32'} offen offset:{(fi&3)*1024} sc1")
        a(f"""
        s_add_u32 s47, s47, 262144
        s_add_u32 s41, s41, 1
        s_mov_b32 s52, 1
        s_cmp_eq_u32 s53, 0
        s_cbranch_scc0 {lab}_i{1-st}
        s_waitcnt vmcnt(0)
        """)
        set_flag(a,'s46',vtmp=(10,11))
        a(f"""
        s_add_u32 s46, s46, 128
        s_mov_b32 s52, 0
        s_cmp_ge_u32 s41, 64
        s_cbranch_scc1 {lab}_done
        """)
        wait_flags(a,L+'ws',8,'s49',fail,spin)
        for x in qkv_loads(1-st): a(x)
        adv_fetch()
        polls()
        if st==1: a(f"s_branch {lab}_i0")
    iteration(0); iteration(1)
    a.label(lab+'_done')

def emit_AH(a, cfg, fail):
    spin=cfg.get('spin',SPIN_DEFAULT)
    lab=a.new('AH')
    RDY=98304+64
    a(f"""
    s_load_dwordx2 s[12:13], s[0:1], 8
    s_waitcnt lgkmcnt(0)
    s_mov_b32 s14, {512*3072}
    s_mov_b32 s15, 0x20000
    v_lshrrev_b32 v61, 3, v0
    v_and_b32 v60, 7, v0
    v_bfe_u32 v62, v61, 1, 1
    v_lshlrev_b32 v62, 2, v62
    v_xor_b32 v62, v60, v62
    v_lshrrev_b32 v63, 1, v62
    v_min_u32 v63, 2, v63
    v_and_b32 v62, 1, v62
    v_lshlrev_b32 v62, 4, v62
    v_lshl_add_u32 v62, v63, 10, v62
    v_mul_u32_u24 v63, 3072, v61
    v_add_u32 v62, v62, v63
    s_lshl_b32 s32, s5, 5
    v_add_u32 v40, s32, v62
    """)
    a(f"s_cmp_lt_u32 s6, 2\ns_cbranch_scc1 {lab}_nw\ns_sub_u32 s36, s6, 2\ns_mul_i32 s33, s36, {256*3072}\ns_lshl_b32 s34, s36, 15")
    for n in range(32):
        a(f"s_add_u32 m0, s34, {8*n*128}\ns_add_u32 s35, s33, {8*n*3072}\nbuffer_load_dwordx4 v40, s[12:15], s35 offen lds")
    a.label(lab+'_nw')
    a(f"""
    v_lshlrev_b32 v1, 4, v0
    s_lshr_b32 s40, s6, 1
    s_and_b32 s41, s6, 1
    s_mul_i32 s32, s40, {6*64*32768}
    s_add_u32 s43, s32, {xs(T_XNA1,0)}
    s_lshl_b32 s32, s41, 15
    s_add_u32 s43, s43, s32
    s_lshl_b32 s32, s40, 14
    s_add_u32 s45, s32, {WS_FLAG+FL_XN}
    s_lshl_b32 s32, s41, 7
    s_add_u32 s45, s45, s32
    s_mov_b32 s58, 0
    s_cmp_eq_u32 s40, 0
    s_cbranch_scc0 {lab}_nx0
    """)
    cfg['init_wait'](a,lab+'e',sb=16)
    wait_flags(a,lab+'we',16,'s45',fail,spin)
    for ks in range(32):
        a(f"s_add_u32 s32, s43, {(ks>>2)*4096}\nbuffer_load_dwordx4 v[{64+4*ks}:{64+4*ks+3}], v1, s[8:11], s32 offen offset:{(ks&3)*1024} sc1")
    a(f"s_mov_b32 s58, 1\n{lab}_nx0:")
    a(f"s_cmp_eq_u32 s58, 1\ns_cbranch_scc1 {lab}_wx2\ns_waitcnt vmcnt(0)\n{lab}_wx2:")
    a("s_barrier\ns_mov_b32 s32, 0")
    if roles.TSP: a('s_mov_b32 s57, s5'); roles.tsp(a,3,0,'s57',('s6',))
    def swz(r,o): a(f"v_lshrrev_b32 v{o}, 1, v{r}\nv_lshlrev_b32 v{o}, 2, v{o}")
    tr_addr32(a,44,'s32',128,swz,0,tmp=(54,55,56,57,58,59))
    a("v_xor_b32 v45, 64, v44")
    for ks in range(32):
        for p in range(2):
            off=ks*16*128+p*8*128
            a(f"ds_read_b64_tr_b16 a[{4*ks+2*p}:{4*ks+2*p+1}], v44 offset:{off}")
            a(f"ds_read_b64_tr_b16 a[{128+4*ks+2*p}:{128+4*ks+2*p+1}], v45 offset:{off}")
        if ks%2==1: a("s_waitcnt lgkmcnt(4)")
    a("s_waitcnt lgkmcnt(0)\ns_barrier")
    a(f"""
    v_mov_b32 v1, {RDY}
    v_mov_b32 v2, 0
    s_lshl_b32 s32, s6, 2
    v_add_u32 v3, s32, v1
    s_xor_b32 s33, s32, 4
    v_add_u32 v4, s33, v1
    ds_write_b32 v3, v2
    s_waitcnt lgkmcnt(0)
    s_barrier
    v_lshlrev_b32 v1, 4, v0
    s_lshr_b32 s40, s6, 1                    ; layer
    s_and_b32 s41, s6, 1                     ; unit s
    s_mul_i32 s42, s40, 49152
    s_mul_i32 s32, s40, {6*64*32768}
    s_add_u32 s43, s32, {xs(T_XNA1,0)}
    s_add_u32 s44, s32, {xs(T_OA1,0)}
    s_lshl_b32 s33, s5, 10
    s_add_u32 s44, s44, s33
    s_lshl_b32 s32, s40, 14
    s_add_u32 s45, s32, {WS_FLAG+FL_XN}
    s_lshl_b32 s32, s40, 13
    s_add_u32 s46, s32, {WS_FLAG+FL_OA}
    s_lshl_b32 s33, s5, 2
    s_add_u32 s46, s46, s33
    s_lshl_b32 s32, s41, 15
    s_add_u32 s43, s43, s32
    s_add_u32 s44, s44, s32
    s_lshl_b32 s32, s41, 7
    s_add_u32 s45, s45, s32
    s_add_u32 s46, s46, s32
    v_and_b32 v5, 31, v0
    v_cmp_le_u32 s[62:63], 16, v5
    v_mov_b32 v6, 0x3f803f80
    v_mov_b32 v7, 0xff7fffff
    s_mov_b32 s47, 0x3eb8aa3b
    s_mov_b32 s60, 0x3eb8aa3b
    s_mov_b32 s61, 0x3eb8aa3b
    s_mov_b32 s59, 0
    """)
    causal_masks(a,64,tmp=(54,55))
    XB=64; SB=64
    def xld(ks):
        return f"s_add_u32 s32, s43, {(ks>>2)*4096}\nbuffer_load_dwordx4 v[{XB+4*ks}:{XB+4*ks+3}], v1, s[8:11], s32 offen offset:{(ks&3)*1024} sc1"
    a(f"s_cmp_eq_u32 s58, 1\ns_cbranch_scc1 {lab}_x0done")
    cfg['init_wait'](a,lab,sb=16)
    wait_flags(a,lab+'w0',16,'s45',fail,spin)
    for ks in range(32): a(xld(ks))
    a(f"{lab}_x0done:\ns_add_u32 s43, s43, 65536\ns_add_u32 s45, s45, 256")
    if roles.TSP: a('s_mov_b32 s57, s5'); roles.tsp(a,3,1,'s57',('s6',))
    a.label(lab+'_loop')
    for ks in range(32):
        if ks<4:
            L=a.new(lab+'x')
            a(f"s_cmp_eq_u32 s59, 0\ns_cbranch_scc1 {L}_0\ns_waitcnt vmcnt({32-ks})\ns_branch {L}_1\n{L}_0:\ns_waitcnt vmcnt({31-ks})\n{L}_1:")
        else:
            a(f"s_waitcnt vmcnt({31-ks})")
        if ks==14:
            a(f"s_cmp_eq_u32 s59, 0\ns_cbranch_scc1 {lab}_nf\ns_waitcnt vmcnt(0)")
            set_flag(a,'s46',vtmp=(24,25))
            a(f"s_add_u32 s46, s46, 256\ns_mov_b32 s59, 0\n{lab}_nf:")
        c0='0' if ks==0 else 'v[32:47]'; c1='0' if ks==0 else 'v[48:63]'
        a(f"v_mfma_f32_32x32x16_bf16 v[32:47], a[{4*ks}:{4*ks+3}], v[{XB+4*ks}:{XB+4*ks+3}], {c0}")
        a(f"v_mfma_f32_32x32x16_bf16 v[48:63], v[{XB+4*ks}:{XB+4*ks+3}], a[{128+4*ks}:{128+4*ks+3}], {c1}")
    if roles.TSP: a('s_mov_b32 s57, s5'); roles.tsp(a,3,2,'s57',('s6','s41'))
    poll_issue(a,16,'s45',24,31)
    for i in range(4): a(f"v_cvt_pk_bf16_f32 v{8+i}, v{32+2*i}, v{33+2*i}")
    for i in range(4): a(f"v_cvt_pk_bf16_f32 v{12+i}, v{40+2*i}, v{41+2*i}")
    for i in range(8): a(f"v_cvt_pk_bf16_f32 v{16+i}, v{48+2*i}, v{49+2*i}")
    for i in range(8): a(f"v_cndmask_b32 v{16+i}, v{16+i}, v6, s[62:63]")
    a(f"""
    s_and_b32 s32, s41, 15
    s_mul_i32 s32, s32, 3072
    s_add_u32 s32, s32, s42
    v_add_u32 v24, s32, v1
    ds_write_b128 v24, v[12:15]
    ds_write_b128 v24, v[16:19] offset:1024
    ds_write_b128 v24, v[20:23] offset:2048
    s_add_u32 s33, s41, 1
    v_mov_b32 v25, s33
    s_waitcnt lgkmcnt(0)
    ds_write_b32 v3, v25
    """)
    a(f"s_cmp_ge_u32 s41, 8\ns_cbranch_scc1 {lab}_fast")
    a(f"""
    s_mov_b32 s48, 0
{lab}_pw:
    ds_read_b32 v26, v4
    s_waitcnt lgkmcnt(0)
    v_readfirstlane_b32 s49, v26
    s_cmp_ge_u32 s49, s41
    s_cbranch_scc1 {lab}_pok
    s_add_u32 s48, s48, 1
    s_cmp_gt_u32 s48, {spin*8}
    s_cbranch_scc1 {fail}
    s_sleep 1
    s_branch {lab}_pw
{lab}_pok:
    """)
    for b in range(9):
        a(f"""
        s_add_u32 s32, s41, {b+8}
        s_and_b32 s32, s32, 15
        s_mul_i32 s32, s32, 3072
        s_add_u32 s{50+b}, s32, s42
        """)
    KF=208
    for b in range(8):
        a(f"s_add_u32 s32, s41, {b}\ns_cmp_lt_u32 s32, 8\ns_cselect_b32 s{50+b}, s58, s{50+b}")
    for b in range(9):
        a(f"v_add_u32 v24, s{50+b}, v1\nds_read_b128 v[{KF+4*b}:{KF+4*b+3}], v24")
    for b in range(9):
        a(f"s_waitcnt lgkmcnt({8-b})")
        a(f"v_mfma_f32_32x32x16_bf16 v[{SB+16*b}:{SB+16*b+15}], v[{KF+4*b}:{KF+4*b+3}], v[8:11], 0")
    VF=[208,216,224]
    def vrd(b):
        r=VF[b%3]
        a(f"v_add_u32 v26, s{50+b}, v1\nds_read_b128 v[{r}:{r+3}], v26 offset:1024\nds_read_b128 v[{r+4}:{r+7}], v26 offset:2048")
    a(f"s_cmp_ge_u32 s41, 8\ns_cbranch_scc1 {lab}_allv")
    for b in range(8):
        L=a.new(lab+'iv')
        a(f"s_add_u32 s32, s41, {b}\ns_cmp_ge_u32 s32, 8\ns_cbranch_scc1 {L}")
        for r in range(16): a(f"v_mov_b32 v{SB+16*b+r}, v7")
        a.label(L)
    a.label(lab+'_allv')
    vrd(0); vrd(1)
    for r in range(16): a(f"v_cndmask_b32 v{SB+128+r}, v7, v{SB+128+r}, s[{64+2*r}:{65+2*r}]")
    for r in range(16): a(f"v_cndmask_b32 v{SB+r}, v{SB+r}, v7, s[{64+2*r}:{65+2*r}]")
    a(f"v_max3_f32 v24, v{SB}, v{SB+1}, v{SB+2}\nv_max3_f32 v25, v{SB+3}, v{SB+4}, v{SB+5}")
    i=6
    while i<144:
        a(f"v_max3_f32 v24, v24, v{SB+i}, v{SB+i+1}"); i+=2
        if i<144: a(f"v_max3_f32 v25, v25, v{SB+i}, v{SB+i+1}"); i+=2
    a(f"""
    v_max_f32 v24, v24, v25
    v_mov_b32 v25, v24
    v_permlane32_swap_b32 v24, v25
    v_max_f32 v24, v24, v25
    v_mul_f32 v24, s47, v24
    v_mov_b32 v25, v24
    s_waitcnt vmcnt(0)
    s_mov_b32 s48, 0
    s_cmp_ge_u32 s41, 62
    s_cbranch_scc1 {lab}_np
    v_cmp_eq_u32 vcc, 0, v31
    s_cbranch_vccnz {lab}_np
    s_mov_b32 s48, 1
{lab}_np:
    """)
    for r in range(0,16,2): a(f"v_mov_b64 v[{32+r}:{33+r}], 0")
    for b in range(9):
        base=SB+16*b
        LS=a.new(lab+'k')
        r=VF[b%3]
        nread=2 if b+1<9 else 0
        if b<8: a(f"s_add_u32 s32, s41, {b}\ns_cmp_lt_u32 s32, 8\ns_cbranch_scc1 {LS}")
        for q in range(16):
            a(f"v_fma_f32 v{base+q}, v{base+q}, s47, -v24")
        for q in range(16): a(f"v_exp_f32 v{base+q}, v{base+q}")
        pk=[240,12][b%2]
        for i in range(8): a(f"v_cvt_pk_bf16_f32 v{pk+i}, v{base+2*i}, v{base+2*i+1}")
        a(f"s_waitcnt lgkmcnt({nread})")
        a(f"v_mfma_f32_32x32x16_bf16 v[32:47], v[{r}:{r+3}], v[{pk}:{pk+3}], v[32:47]")
        a(f"v_mfma_f32_32x32x16_bf16 v[32:47], v[{r+4}:{r+7}], v[{pk+4}:{pk+7}], v[32:47]")
        a.label(LS)
        a(f"s_waitcnt lgkmcnt({nread})")
        if b+2<9: vrd(b+2)
        if b<8:
            L=a.new(lab+'s')
            a(f"s_cmp_eq_u32 s48, 0\ns_cbranch_scc1 {L}")
            for ks in range(4*b,4*b+4): a(xld(ks))
            a.label(L)
    a(f"s_branch {lab}_tail")
    a.label(lab+'_fast')
    VA=[241,242,243,244,245,246,247,248,249]
    a(f"s_cmp_ge_u32 s41, 10\ns_cbranch_scc1 {lab}_rot")
    for b in range(9):
        a(f"s_add_u32 s32, s41, {b+8}\ns_and_b32 s32, s32, 15\ns_mul_i32 s32, s32, 3072\ns_add_u32 s32, s32, s42\nv_add_u32 v{VA[b]}, s32, v1")
    a(f"s_branch {lab}_rote\n{lab}_rot:")
    for b in range(7): a(f"v_mov_b32 v{VA[b]}, v{VA[b+2]}")
    for b in (7,8):
        a(f"s_add_u32 s32, s41, {b+8}\ns_and_b32 s32, s32, 15\ns_mul_i32 s32, s32, 3072\ns_add_u32 s32, s32, s42\nv_add_u32 v{VA[b]}, s32, v1")
    a.label(lab+'_rote')
    KF=208
    order=[8,0,1,2,3,4,5,6,7]
    for n,b in enumerate(order):
        if n<8: a(f"ds_read_b128 v[{KF+4*n}:{KF+4*n+3}], v{VA[b]}")
    a(f"""
    s_mov_b32 s48, 0
{lab}_pw2:
    ds_read_b32 v26, v4
    s_waitcnt lgkmcnt(0)
    v_readfirstlane_b32 s49, v26
    s_cmp_ge_u32 s49, s41
    s_cbranch_scc1 {lab}_pok2
    s_add_u32 s48, s48, 1
    s_cmp_gt_u32 s48, {spin*8}
    s_cbranch_scc1 {fail}
    s_branch {lab}_pw2
{lab}_pok2:
    ds_read_b128 v[16:19], v{VA[7]}
    """)
    for n,b in enumerate(order[:8]):
        a(f"v_mfma_f32_32x32x16_bf16 v[{SB+16*b}:{SB+16*b+15}], v[{KF+4*n}:{KF+4*n+3}], v[8:11], 0")
    VF=[208,216,224]
    def vrd(b):
        r_=VF[b%3]
        a(f"ds_read_b128 v[{r_}:{r_+3}], v{VA[b]} offset:1024\nds_read_b128 v[{r_+4}:{r_+7}], v{VA[b]} offset:2048")
    a(f"s_waitcnt lgkmcnt(0)\nv_mfma_f32_32x32x16_bf16 v[{SB+112}:{SB+127}], v[16:19], v[8:11], 0")
    vrd(0); vrd(1)
    for r_ in range(16): a(f"v_cndmask_b32 v{SB+128+r_}, v7, v{SB+128+r_}, s[{64+2*r_}:{65+2*r_}]")
    for r_ in range(16): a(f"v_cndmask_b32 v{SB+r_}, v{SB+r_}, v7, s[{64+2*r_}:{65+2*r_}]")
    seqr=[SB+128+r_ for r_ in range(16)]+[SB+r_ for r_ in range(112)]+[SB+112+r_ for r_ in range(16)]
    a(f"v_max3_f32 v24, v{seqr[0]}, v{seqr[1]}, v{seqr[2]}\nv_max3_f32 v25, v{seqr[3]}, v{seqr[4]}, v{seqr[5]}")
    i=6
    while i<144:
        a(f"v_max3_f32 v24, v24, v{seqr[i]}, v{seqr[i+1]}"); i+=2
        if i<144: a(f"v_max3_f32 v25, v25, v{seqr[i]}, v{seqr[i+1]}"); i+=2
    a(f"""
    v_max_f32 v24, v24, v25
    v_mov_b32 v25, v24
    v_permlane32_swap_b32 v24, v25
    v_max_f32 v24, v24, v25
    v_mul_f32 v24, s47, v24
    s_waitcnt vmcnt(0)
    s_mov_b32 s48, 0
    s_cmp_ge_u32 s41, 62
    s_cbranch_scc1 {lab}_np2
    v_cmp_eq_u32 vcc, 0, v31
    s_cbranch_vccnz {lab}_np2
    s_mov_b32 s48, 1
{lab}_np2:
    s_cmp_eq_u32 s48, 1
    """)
    for b in range(9):
        base=SB+16*b
        for r_ in range(16): a(f"v_fma_f32 v{base+r_}, v{base+r_}, s47, -v24")
        for r_ in range(16): a(f"v_exp_f32 v{base+r_}, v{base+r_}")
        pk=[232,12][b%2]
        for i in range(8): a(f"v_cvt_pk_bf16_f32 v{pk+i}, v{base+2*i}, v{base+2*i+1}")
        r_=VF[b%3]
        a(f"s_waitcnt lgkmcnt({2 if b+1<9 else 0})")
        c='0' if b==0 else 'v[32:47]'
        a(f"v_mfma_f32_32x32x16_bf16 v[32:47], v[{r_}:{r_+3}], v[{pk}:{pk+3}], {c}")
        a(f"v_mfma_f32_32x32x16_bf16 v[32:47], v[{r_+4}:{r_+7}], v[{pk+4}:{pk+7}], v[32:47]")
        if b+2<9: vrd(b+2)
        if b<8:
            L=a.new(lab+'s')
            a(f"s_cbranch_scc0 {L}")
            a(f"s_add_u32 s32, s43, {b*4096}")
            for j in range(4):
                ks=4*b+j
                a(f"buffer_load_dwordx4 v[{XB+4*ks}:{XB+4*ks+3}], v1, s[8:11], s32 offen offset:{j*1024} sc1")
            a(f"s_cmp_eq_u32 s48, 1\n{L}:")
    a.label(lab+'_tail')
    if roles.TSP: a('s_mov_b32 s57, s5'); roles.tsp(a,3,3,'s57',('s6','s41'))
    a("v_rcp_f32 v24, v40")
    for r in range(8): a(f"v_mul_f32 v{32+r}, v{32+r}, v24")
    for i in range(4): a(f"v_cvt_pk_bf16_f32 v{8+i}, v{32+2*i}, v{33+2*i}")
    a(f"""
    buffer_store_dwordx4 v[8:11], v1, s[8:11], s44 offen sc1
    s_add_u32 s44, s44, 65536
    s_add_u32 s41, s41, 2
    s_mov_b32 s59, 1
    s_cmp_eq_u32 s48, 0
    s_cbranch_scc1 {lab}_slow
    s_add_u32 s43, s43, 65536
    s_add_u32 s45, s45, 256
    s_cmp_ge_u32 s41, 12
    s_cbranch_scc1 {lab}_loop
    s_waitcnt vmcnt(0)
    """)
    set_flag(a,'s46',vtmp=(24,25))
    a(f"""
    s_add_u32 s46, s46, 256
    s_mov_b32 s59, 0
    s_branch {lab}_loop
{lab}_slow:
    s_waitcnt vmcnt(0)
    """)
    set_flag(a,'s46',vtmp=(24,25))
    a(f"""
    s_add_u32 s46, s46, 256
    s_mov_b32 s59, 0
    s_cmp_ge_u32 s41, 64
    s_cbranch_scc1 {lab}_done
    """)
    wait_flags(a,lab+'ws',16,'s45',fail,spin)
    for ks in range(32): a(xld(ks))
    a(f"""
    s_add_u32 s43, s43, 65536
    s_add_u32 s45, s45, 256
    s_branch {lab}_loop
{lab}_done:
    """)
```

```python
from common import *
import roles
from roles import wait_flags, set_flag, flagval, tr_addr32, pack_tile, causal_masks, SPIN_DEFAULT
from roles2 import poll_issue
NXN=16
NYA=16

def dma_list(n, shift, bufreg):
    out=[]
    for i in range(n):
        pre=''
        if i==0: pre+=f"s_lshl_b32 s53, s6, {shift}\ns_add_u32 s53, s53, {bufreg}\n"
        if i%4==0: pre+=f"s_add_u32 m0, s53, {(i>>2)*4096}\ns_add_u32 s33, s43, {(i>>2)*4096}\n"
        out.append(pre+f"buffer_load_dwordx4 v2, s[8:11], s33 offen offset:{(i&3)*1024} sc1 lds")
    return out

def gemm_loop(a, lab, nks, mf, rd, AHEAD, chk_ks, emit_check, dl, extra=None):
    def step(ks):
        a(f"s_waitcnt lgkmcnt({min(AHEAD-1,nks-1-ks)})")
        mf(ks)
        if ks+AHEAD<nks: rd(ks+AHEAD)
        if extra: extra(ks)
    for ks in range(chk_ks+1): step(ks)
    emit_check()
    L=a.new(lab+'v')
    n=len(dl)
    a(f"s_cmp_eq_u32 s48, 0\ns_cbranch_scc1 {L}_n")
    for j in range(n):
        step(chk_ks+1+j); a(dl[j])
    a(f"s_branch {L}_e\n{L}_n:")
    for j in range(n): step(chk_ks+1+j)
    a.label(L+'_e')
    for ks in range(chk_ks+1+n,nks): step(ks)

def emit_F(a, cfg, typ, fail):
    spin=cfg.get('spin',SPIN_DEFAULT)
    lab=a.new('F'+typ)
    npart={'T0':0,'T1':1,'T2':4,'T3':4}[typ]
    nfl={'T0':0,'T1':NYA,'T2':64,'T3':64}[typ]
    US=2 if typ=='T2' else 1
    flstep={'T0':0,'T1':128,'T2':256,'T3':256}[typ]*US
    a(f"""
    v_and_b32 v1, 7, v0
    v_bfe_u32 v2, v0, 3, 1
    v_lshrrev_b32 v3, 4, v0
    v_lshlrev_b32 v4, 4, v1
    v_lshl_add_u32 v4, v2, 9, v4
    v_lshl_add_u32 v4, v3, 10, v4
    s_lshl_b32 s12, s6, 13
    s_lshl_b32 s13, s5, 7
    s_add_u32 s12, s12, s13
    v_add_u32 v4, s12, v4
    s_lshl_b32 s13, s5, 3
    v_add_u32 v5, s13, v1
    v_lshlrev_b32 v5, 10, v5
    v_lshl_add_u32 v5, v3, 5, v5
    v_lshl_add_u32 v5, v2, 4, v5
    s_lshl_b32 s13, s6, 8
    v_add_u32 v5, s13, v5
    v_lshlrev_b32 v6, 3, v1
    s_lshl_b32 s13, s6, 6
    v_add_u32 v7, s13, v6
    """)
    if typ=='T0':
        a(f"""
        s_load_dwordx2 s[16:17], s[0:1], 0
        s_waitcnt lgkmcnt(0)
        s_mov_b32 s18, {2048*1024}
        s_mov_b32 s19, 0x20000
        s_mov_b32 s20, 0
        s_mov_b32 s22, {xs(T_X0,0)}
        s_mov_b32 s23, {xs(T_XNA1,0)}
        s_mov_b32 s24, {WS_FLAG+FL_XN+0*64*128}
        """)
    elif typ=='T1':
        a(f"""
        s_mul_i32 s13, s4, {6*64*32768}
        s_add_u32 s20, s13, {xs(T_X0,0)}
        s_add_u32 s21, s13, {xs(T_YA1,0)}
        s_add_u32 s22, s13, {xs(T_X1,0)}
        s_add_u32 s23, s13, {xs(T_XNB1,0)}
        s_lshl_b32 s13, s4, 14
        s_add_u32 s24, s13, {WS_FLAG+FL_XN+1*64*128}
        s_lshl_b32 s13, s4, 13
        s_add_u32 s25, s13, {WS_FLAG+FL_YA}
        """)
    elif typ=='T2':
        a(f"""
        s_lshl_b32 s13, s4, 15
        s_add_u32 s20, s13, {xs(T_X1,0)}
        s_add_u32 s22, s13, {xs(T_X2,0)}
        s_add_u32 s23, s13, {xs(T_XNA2,0)}
        s_lshl_b32 s13, s4, 17
        s_add_u32 s21, s13, {WS_PO}
        s_lshl_b32 s13, s4, 7
        s_add_u32 s24, s13, {WS_FLAG+FL_XN+2*64*128}
        s_lshl_b32 s13, s4, 8
        s_add_u32 s25, s13, {WS_FLAG+FL_PO}
        """)
    else:
        a(f"""
        s_load_dwordx2 s[16:17], s[0:1], 80
        s_waitcnt lgkmcnt(0)
        s_mov_b32 s18, {2048*1024}
        s_mov_b32 s19, 0x20000
        s_mov_b32 s20, {xs(T_X3,0)}
        s_mov_b32 s21, {WS_PO+64*131072}
        s_mov_b32 s22, 0
        s_mov_b32 s25, {WS_FLAG+FL_PO+64*256}
        """)
    a(f"""
    s_lshl_b32 s13, s5, 4
    s_lshl_b32 s14, s6, 2
    s_add_u32 s13, s13, s14
    {'s_add_u32 s24, s24, s13' if typ!='T3' else ''}
    s_mov_b32 s26, 0
    v_mov_b32 v8, 0x3f803f80
    s_mov_b32 s27, 0xffff0000
    s_mov_b32 s30, 0
    s_mov_b32 s31, 0
    """)
    SETS=[(16,24),(64,72)]
    W=112
    NS={'T0':4,'T1':4,'T2':4,'T3':2}[typ]
    def xchg(X):
        for j in range(2):
            b=X+4*j
            for d in range(2):
                a(f"""
                v_mov_b32 v12, v{b+d}
                s_nop 1
                v_mov_b32_dpp v{b+d}, v{b+2+d} row_shr:8 row_mask:0xf bank_mask:0xc
                v_mov_b32_dpp v{b+2+d}, v12 row_shl:8 row_mask:0xf bank_mask:0x3
                """)
    def loads(st):
        X,P0=SETS[st]
        if typ=='T0':
            for j in range(2): a(f"buffer_load_dwordx4 v[{X+4*j}:{X+4*j+3}], v5, s[16:19], s20 offen offset:{128*j}")
            a("s_add_u32 s20, s20, 32768")
        else:
            for p in range(npart):
                for j in range(2):
                    a(f"s_add_u32 s13, s21, {p*32768+j*4096}\nbuffer_load_dwordx4 v[{P0+8*p+4*j}:{P0+8*p+4*j+3}], v4, s[8:11], s13 offen sc1")
            for j in range(2):
                a(f"s_add_u32 s13, s20, {j*4096}\nbuffer_load_dwordx4 v[{X+4*j}:{X+4*j+3}], v4, s[8:11], s13 offen sc1")
            a(f"s_add_u32 s20, s20, {32768*US}\ns_add_u32 s21, s21, {(32768 if typ=='T1' else 131072)*US}\ns_add_u32 s25, s25, {flstep}")
    def flag_prev():
        if typ=='T3': return
        if typ=='T0' and not cfg.get('init',False):
            LL=a.new(lab+'iw')
            a(f"s_cmp_eq_u32 s34, 1\ns_cbranch_scc1 {LL}")
            cfg['init_wait'](a,LL+'x')
            a(f"s_mov_b32 s34, 1\n{LL}:")
        set_flag(a,'s24')
        a(f"s_add_u32 s24, s24, {128*US}")
    if typ!='T0': cfg['init_wait'](a,lab)
    else: a("s_mov_b32 s34, 0")
    if nfl: wait_flags(a,lab+'w0',nfl,'s25',fail,spin)
    loads(0)
    def iteration(st):
        X,P0=SETS[st]; L=f"{lab}_i{st}"
        a.label(L)
        if nfl: poll_issue(a,nfl,'s25',10,9)
        np_=1 if nfl else 0
        a(f"""
        s_cmp_eq_u32 s31, 0
        s_cbranch_scc1 {L}_w1
        s_waitcnt vmcnt({NS+np_})
        s_branch {L}_w2
{L}_w1:
        s_waitcnt vmcnt({np_})
{L}_w2:
        """)
        if typ=='T0': xchg(X)
        else:
            for r in range(8):
                w0=W+2*r
                if npart==4:
                    a(f"""
                    v_lshlrev_b32 v{w0}, 16, v{P0+r}
                    v_and_b32 v{w0+1}, s27, v{P0+r}
                    v_lshlrev_b32 v12, 16, v{P0+8+r}
                    v_and_b32 v13, s27, v{P0+8+r}
                    v_lshlrev_b32 v14, 16, v{P0+16+r}
                    v_and_b32 v15, s27, v{P0+16+r}
                    v_pk_add_f32 v[{w0}:{w0+1}], v[{w0}:{w0+1}], v[12:13]
                    v_lshlrev_b32 v12, 16, v{P0+24+r}
                    v_and_b32 v13, s27, v{P0+24+r}
                    v_pk_add_f32 v[14:15], v[14:15], v[12:13]
                    v_pk_add_f32 v[{w0}:{w0+1}], v[{w0}:{w0+1}], v[14:15]
                    v_cvt_pk_bf16_f32 v{P0+r}, v{w0}, v{w0+1}
                    """)
                a(f"""
                v_lshlrev_b32 v{w0}, 16, v{P0+r}
                v_and_b32 v{w0+1}, s27, v{P0+r}
                v_lshlrev_b32 v12, 16, v{X+r}
                v_and_b32 v13, s27, v{X+r}
                v_pk_add_f32 v[{w0}:{w0+1}], v[{w0}:{w0+1}], v[12:13]
                v_cvt_pk_bf16_f32 v{X+r}, v{w0}, v{w0+1}
                """)
        def prefetch():
            a(f"""
            s_mov_b32 s31, 0
            s_cmp_ge_u32 s26, {64//US-1}
            s_cbranch_scc1 {L}_np
            """)
            if nfl: a(f"v_cmp_eq_u32 vcc, 0, v9\ns_cbranch_vccnz {L}_np")
            a("s_mov_b32 s31, 1")
            loads(1-st)
            a.label(L+'_np')
        if typ=='T3':
            xchg(X)
            for j in range(2): a(f"buffer_store_dwordx4 v[{X+4*j}:{X+4*j+3}], v5, s[16:19], s22 offen offset:{128*j}")
            a("s_add_u32 s22, s22, 32768")
            a("s_waitcnt vmcnt(2)")
            prefetch()
            a(f"""
            s_add_u32 s26, s26, 1
            s_cmp_eq_u32 s31, 1
            s_cbranch_scc0 {L}_slow
            s_mov_b32 s31, 0
            s_branch {lab}_i{1-st}
{L}_slow:
            s_cmp_ge_u32 s26, {64//US}
            s_cbranch_scc1 {lab}_done
            """)
            wait_flags(a,L+'ws',nfl,'s25',fail,spin)
            loads(1-st)
            if st==1: a(f"s_branch {lab}_i0")
            return
        if nfl: a("s_waitcnt vmcnt(0)")
        prefetch()
        a("s_add_u32 s13, s22, 4096")
        for j in range(2):
            a(f"buffer_store_dwordx4 v[{X+4*j}:{X+4*j+3}], v4, s[8:11], {'s22' if j==0 else 's13'} offen sc1")
        a("v_mov_b32 v12, 0\nv_mov_b32 v13, 0\nv_mov_b32 v14, 0\nv_mov_b32 v15, 0")
        for r in range(0,8,2):
            a(f"v_dot2_f32_bf16 v12, v{X+r}, v8, v12\nv_dot2_f32_bf16 v13, v{X+r}, v{X+r}, v13\nv_dot2_f32_bf16 v14, v{X+r+1}, v8, v14\nv_dot2_f32_bf16 v15, v{X+r+1}, v{X+r+1}, v15")
        a(f"""
        v_pk_add_f32 v[12:13], v[12:13], v[14:15]
        s_nop 1
        v_add_f32_dpp v12, v12, v12 row_ror:8 row_mask:0xf bank_mask:0xf
        v_add_f32_dpp v13, v13, v13 row_ror:8 row_mask:0xf bank_mask:0xf
        v_mov_b32 v10, v12
        v_mov_b32 v11, v13
        v_permlane16_swap_b32 v12, v10
        v_permlane16_swap_b32 v13, v11
        v_pk_add_f32 v[12:13], v[12:13], v[10:11]
        v_mov_b32 v10, v12
        v_mov_b32 v11, v13
        v_permlane32_swap_b32 v12, v10
        v_permlane32_swap_b32 v13, v11
        v_pk_add_f32 v[12:13], v[12:13], v[10:11]
        s_mov_b64 exec, 0xff
        ds_write_b64 v7, v[12:13] offset:{256*st}
        s_mov_b64 exec, -1
        s_waitcnt lgkmcnt(0)
        s_barrier
        ds_read_b64 v[10:11], v6 offset:{256*st}
        ds_read_b64 v[12:13], v6 offset:{256*st+64}
        ds_read_b64 v[14:15], v6 offset:{256*st+128}
        ds_read_b64 v[{W}:{W+1}], v6 offset:{256*st+192}
        s_waitcnt lgkmcnt(0)
        v_pk_add_f32 v[10:11], v[10:11], v[12:13]
        v_pk_add_f32 v[14:15], v[14:15], v[{W}:{W+1}]
        v_pk_add_f32 v[10:11], v[10:11], v[14:15]
        v_mul_f32 v10, 0x3b000000, v10
        v_mul_f32 v11, 0x3b000000, v11
        v_fma_f32 v11, -v10, v10, v11
        v_max_f32 v11, 0, v11
        v_cvt_pk_bf16_f32 v14, v10, v11
        v_lshlrev_b32 v12, 16, v14
        v_and_b32 v11, s27, v14
        v_add_f32 v11, 0x3727c5ac, v11
        v_cvt_pk_bf16_f32 v11, v11, v11
        v_and_b32 v11, s27, v11
        v_sqrt_f32 v11, v11
        v_mov_b32 v13, v12
        v_cvt_pk_bf16_f32 v11, v11, v11
        v_and_b32 v11, s27, v11
        v_rcp_f32 v14, v11
        s_nop 0
        v_mov_b32 v15, v14
        """)
        for r in range(8):
            w0=W+2*r
            a(f"""
            v_lshlrev_b32 v{w0}, 16, v{X+r}
            v_and_b32 v{w0+1}, s27, v{X+r}
            v_pk_add_f32 v[{w0}:{w0+1}], v[{w0}:{w0+1}], v[12:13] neg_lo:[0,1] neg_hi:[0,1]
            v_cvt_pk_bf16_f32 v{P0+r}, v{w0}, v{w0+1}
            v_lshlrev_b32 v{w0}, 16, v{P0+r}
            v_and_b32 v{w0+1}, s27, v{P0+r}
            v_pk_mul_f32 v[{w0}:{w0+1}], v[{w0}:{w0+1}], v[14:15]
            v_cvt_pk_bf16_f32 v{P0+r}, v{w0}, v{w0+1}
            """)
        a("s_add_u32 s13, s23, 4096")
        for j in range(2):
            a(f"buffer_store_dwordx4 v[{P0+4*j}:{P0+4*j+3}], v4, s[8:11], {'s23' if j==0 else 's13'} offen sc1")
        a(f"s_add_u32 s22, s22, {32768*US}\ns_add_u32 s23, s23, {32768*US}")
        a("s_waitcnt vmcnt(0)")
        flag_prev()
        a(f"""
        s_add_u32 s26, s26, 1
        s_cmp_eq_u32 s31, 1
        s_cbranch_scc0 {L}_slow
        s_mov_b32 s31, 0
        s_branch {lab}_i{1-st}
{L}_slow:
        s_cmp_ge_u32 s26, {64//US}
        s_cbranch_scc1 {lab}_done
        """)
        if nfl: wait_flags(a,L+'ws',nfl,'s25',fail,spin)
        loads(1-st)
        if st==1: a(f"s_branch {lab}_i0")
    iteration(0); iteration(1)
    a.label(lab+'_done')

def emit_AWO(a, cfg, fail):
    spin=cfg.get('spin',SPIN_DEFAULT)
    lab=a.new('AWO')
    a("""
    s_load_dwordx2 s[12:13], s[0:1], 16      ; A_wo [512][512]
    s_waitcnt lgkmcnt(0)
    s_mov_b32 s14, 524288
    s_mov_b32 s15, 0x20000
    v_lshrrev_b32 v61, 4, v0
    v_and_b32 v60, 15, v0
    v_lshlrev_b32 v62, 2, v61
    v_xor_b32 v62, v60, v62
    v_lshlrev_b32 v62, 4, v62
    v_lshl_add_u32 v62, v61, 10, v62
    s_lshl_b32 s32, s5, 8
    v_add_u32 v40, s32, v62
    s_lshl_b32 s32, s6, 2
    """)
    tr_addr32(a,44,'s32',256,lambda r,o: a(f"v_lshlrev_b32 v{o}, 2, v{r}"),0)
    a("v_add_u32 v45, 0x10000, v44")
    a("s_lshl_b32 s33, s6, 17\ns_lshl_b32 s34, s6, 15")
    for n in range(32):
        a(f"s_add_u32 m0, s34, {4*n*256}\ns_add_u32 s35, s33, {4*n*1024}\nbuffer_load_dwordx4 v40, s[12:15], s35 offen lds")
    a("s_waitcnt vmcnt(0)\ns_barrier")
    for ks in range(32):
        for p in range(2):
            a(f"ds_read_b64_tr_b16 a[{4*ks+2*p}:{4*ks+2*p+1}], v{44+(ks>>4)} offset:{(ks&15)*4096+p*2048}")
        if ks%4==3: a("s_waitcnt lgkmcnt(4)")
    a("s_waitcnt lgkmcnt(0)\ns_barrier")
    a(f"""
    v_lshlrev_b32 v1, 4, v0
    s_lshl_b32 s32, s6, 13
    v_add_u32 v2, s32, v1
    s_lshl_b32 s32, s5, 13
    s_lshl_b32 s33, s6, 11
    s_add_u32 s32, s32, s33
    v_add_u32 v3, s32, v1
    s_mul_i32 s32, s4, {6*64*32768}
    s_add_u32 s43, s32, {xs(T_OA1,0)}
    s_add_u32 s44, s32, {xs(T_YA1,0)}
    s_lshl_b32 s32, s4, 13
    s_add_u32 s45, s32, {WS_FLAG+FL_OA}
    s_lshl_b32 s33, s5, 4
    s_lshl_b32 s34, s6, 2
    s_add_u32 s33, s33, s34
    s_add_u32 s46, s32, {WS_FLAG+FL_YA}
    s_add_u32 s46, s46, s33
    s_mov_b32 s40, 0
    s_mov_b32 s42, 0
    """)
    def dma(bufreg):
        out=[]
        for n in range(8):
            out.append(f"s_lshl_b32 s32, s6, 13\ns_add_u32 s32, s32, {bufreg}\ns_add_u32 m0, s32, {(n>>2)*4096}\ns_add_u32 s33, s43, {(n>>2)*4096}\nbuffer_load_dwordx4 v2, s[8:11], s33 offen offset:{(n&3)*1024} sc1 lds")
        return out
    cfg['init_wait'](a,lab)
    wait_flags(a,lab+'w0',32,'s45',fail,spin)
    for d in dma_list(8,13,'s42'): a(d)
    a("s_add_u32 s43, s43, 32768\ns_add_u32 s45, s45, 128\ns_waitcnt vmcnt(0)\ns_barrier")
    a.label(lab+'_unit')
    a("v_add_u32 v5, s42, v1\ns_xor_b32 s50, s42, 32768")
    poll_issue(a,32,'s45',10,9)
    XR=64; NR=8; AHEAD=6
    def rd(i): a(f"ds_read_b128 v[{XR+4*(i%NR)}:{XR+4*(i%NR)+3}], v5 offset:{i*1024}")
    for i in range(AHEAD): rd(i)
    dl=dma_list(8,13,'s50')
    def mf(ks):
        r=XR+4*(ks%NR); c='0' if ks==0 else "v[32:47]"
        a(f"v_mfma_f32_32x32x16_bf16 v[32:47], a[{4*ks}:{4*ks+3}], v[{r}:{r+3}], {c}")
    def check():
        a(f"""
        s_waitcnt vmcnt(0)
        s_mov_b32 s48, 0
        s_cmp_ge_u32 s40, 63
        s_cselect_b32 s49, 1, 0
        v_cmp_eq_u32 vcc, 0, v9
        s_cmp_eq_u64 vcc, 0
        s_cselect_b32 s48, 1, 0
        s_cmp_eq_u32 s49, 1
        s_cselect_b32 s48, 0, s48
        """)
    gemm_loop(a,lab,32,mf,rd,AHEAD,20,check,dl)
    pack_tile(a,32,96)
    for f in range(2):
        a(f"buffer_store_dwordx4 v[{96+4*f}:{99+4*f}], v3, s[8:11], s44 offen offset:{f*1024} sc1")
    a("s_add_u32 s44, s44, 32768\ns_add_u32 s40, s40, 1\ns_waitcnt vmcnt(0)")
    set_flag(a,'s46',vtmp=(11,12))
    a(f"""
    s_add_u32 s46, s46, 128
    s_mov_b32 s42, s50
    s_cmp_eq_u32 s48, 0
    s_cbranch_scc1 {lab}_slow
    s_add_u32 s43, s43, 32768
    s_add_u32 s45, s45, 128
    s_barrier
    s_branch {lab}_unit
{lab}_slow:
    s_cmp_ge_u32 s40, 64
    s_cbranch_scc1 {lab}_done
    """)
    wait_flags(a,lab+'ws',32,'s45',fail,spin)
    for d in dma_list(8,13,'s42'): a(d)
    a(f"""
    s_add_u32 s43, s43, 32768
    s_add_u32 s45, s45, 128
    s_waitcnt vmcnt(0)
    s_barrier
    s_branch {lab}_unit
{lab}_done:
    """)

def emit_P(a, cfg, fail):
    spin=cfg.get('spin',SPIN_DEFAULT)
    lab=a.new('P')
    a("""
    s_load_dwordx2 s[12:13], s[0:1], 40      ; Wq
    s_load_dwordx2 s[16:17], s[0:1], 48      ; Wk
    s_load_dwordx2 s[20:21], s[0:1], 56      ; Wv
    s_waitcnt lgkmcnt(0)
    s_mov_b32 s14, 4194304
    s_mov_b32 s15, 0x20000
    s_mov_b32 s18, 4194304
    s_mov_b32 s19, 0x20000
    s_mov_b32 s22, 4194304
    s_mov_b32 s23, 0x20000
    v_lshrrev_b32 v61, 4, v0
    v_and_b32 v60, 15, v0
    v_lshlrev_b32 v62, 2, v61
    v_xor_b32 v62, v60, v62
    v_lshlrev_b32 v62, 4, v62
    v_lshl_add_u32 v62, v61, 13, v62
    s_lshl_b32 s32, s5, 8
    v_add_u32 v40, s32, v62
    s_lshl_b32 s32, s6, 2
    """)
    tr_addr32(a,44,'s32',256,lambda r,o: a(f"v_lshlrev_b32 v{o}, 2, v{r}"),0)
    a("v_add_u32 v45, 0x10000, v44")
    def wreg(M,ks,p):
        if M=='Q': b=128+4*ks+2*p; return f"v[{b}:{b+1}]"
        b={'K':0,'V':128}[M]+4*ks+2*p; return f"a[{b}:{b+1}]"
    rounds=[(M,h) for M in ('K','V','Q') for h in range(2)]
    srd={'K':'s[16:19]','V':'s[20:23]','Q':'s[12:15]'}
    def issue(i):
        M,h=rounds[i]
        a(f"s_lshl_b32 s33, s6, 19\ns_add_u32 s33, s33, {h*256*8192}\ns_lshl_b32 s34, s6, 14\ns_add_u32 s34, s34, {(i&1)*65536}")
        for n in range(16):
            a(f"s_add_u32 m0, s34, {4*n*256}\ns_add_u32 s35, s33, {4*n*8192}\nbuffer_load_dwordx4 v40, {srd[M]}, s35 offen lds")
    issue(0); issue(1)
    for i,(M,h) in enumerate(rounds):
        a(f"s_waitcnt vmcnt({16 if i+1<len(rounds) else 0})\ns_barrier")
        for ksl in range(16):
            ks=16*h+ksl
            for p in range(2):
                a(f"ds_read_b64_tr_b16 {wreg(M,ks,p)}, v{44+(i&1)} offset:{ksl*4096+p*2048}")
            if ksl%4==3: a("s_waitcnt lgkmcnt(4)")
        a("s_waitcnt lgkmcnt(0)\ns_barrier")
        if i+2<len(rounds): issue(i+2)
    def W(M,ks):
        if M=='Q': return f"v[{128+4*ks}:{131+4*ks}]"
        b={'K':0,'V':128}[M]+4*ks; return f"a[{b}:{b+3}]"
    a(f"""
    v_lshlrev_b32 v1, 4, v0
    s_lshl_b32 s32, s6, 13
    v_add_u32 v2, s32, v1
    s_lshl_b32 s32, s6, 11
    v_add_u32 v3, s32, v1
    s_mul_i32 s32, s4, {6*64*32768}
    s_add_u32 s43, s32, {xs(T_XNB1,0)}
    s_lshl_b32 s32, s4, 14
    s_add_u32 s45, s32, {WS_FLAG+FL_XN+64*128}
    s_lshl_b32 s32, s4, 11
    s_add_u32 s32, s32, s5
    s_mul_i32 s48, s32, {QKV_BLK}
    s_lshl_b32 s49, s32, 5
    s_lshl_b32 s33, s6, 2
    s_add_u32 s49, s49, s33
    s_add_u32 s49, s49, {WS_FLAG+FL_P}
    s_mov_b32 s40, 0
    s_mov_b32 s42, 0
    s_mov_b32 s47, 0
    """)
    def dma(bufreg):
        out=[]
        for n in range(8):
            out.append(f"s_lshl_b32 s32, s6, 13\ns_add_u32 s32, s32, {bufreg}\ns_add_u32 m0, s32, {(n>>2)*4096}\ns_add_u32 s33, s43, {(n>>2)*4096}\nbuffer_load_dwordx4 v2, s[8:11], s33 offen offset:{(n&3)*1024} sc1 lds")
        return out
    cfg['init_wait'](a,lab)
    wait_flags(a,lab+'w0',NXN,'s45',fail,spin,vtmp=(8,9))
    for d in dma_list(8,13,'s42'): a(d)
    a("s_add_u32 s43, s43, 32768\ns_add_u32 s45, s45, 128\ns_waitcnt vmcnt(0)\ns_barrier")
    a.label(lab+'_unit')
    a("v_add_u32 v5, s42, v1\ns_xor_b32 s50, s42, 32768")
    poll_issue(a,NXN,'s45',10,9)
    XR=64; NR=8; ACC=[32,48]; PK=96
    def rd(ks): a(f"ds_read_b128 v[{XR+4*(ks%NR)}:{XR+4*(ks%NR)+3}], v5 offset:{ks*1024}")
    AHEAD=6
    for i in range(AHEAD): rd(i)
    def epi(t):
        acc=ACC[t]; out=[]; pk=PK+8*t
        for i in range(8): out.append(f"v_cvt_pk_bf16_f32 v{pk+i}, v{acc+2*i}, v{acc+2*i+1}")
        off=[8192,16384][t]
        out.append(f"s_add_u32 s33, s48, {off}\nbuffer_store_dwordx4 v[{pk}:{pk+3}], v3, s[8:11], s33 offen sc1")
        out.append(f"buffer_store_dwordx4 v[{pk+4}:{pk+7}], v3, s[8:11], s33 offen offset:1024 sc1")
        return out
    dl=dma_list(8,13,'s50')
    def step(ks):
        r=XR+4*(ks%NR)
        a(f"s_waitcnt lgkmcnt({min(AHEAD-1,31-ks)})")
        a(f"v_mfma_f32_32x32x16_bf16 v[32:47], {W('K',ks)}, v[{r}:{r+3}], {'0' if ks==0 else 'v[32:47]'}")
        a(f"v_mfma_f32_32x32x16_bf16 v[48:63], v[{r}:{r+3}], {W('V',ks)}, {'0' if ks==0 else 'v[48:63]'}")
        if ks+AHEAD<32: rd(ks+AHEAD)
    def check():
        a(f"s_cmp_eq_u32 s47, 0\ns_cbranch_scc1 {lab}_nq0\ns_waitcnt vmcnt(1)\ns_sub_u32 s33, s49, 1024\ns_add_u32 s34, s33, 16\ns_cmp_eq_u32 s47, 2\ns_cselect_b32 s33, s34, s33")
        set_flag(a,'s33',vtmp=(11,12))
        a(f"""
        s_mov_b32 s47, 0
        s_waitcnt vmcnt(1)
        s_branch {lab}_nq
{lab}_nq0:
        s_waitcnt vmcnt(0)
{lab}_nq:
        s_mov_b32 s51, 0
        s_cmp_ge_u32 s40, 63
        s_cselect_b32 s52, 1, 0
        v_cmp_eq_u32 vcc, 0, v9
        s_cmp_eq_u64 vcc, 0
        s_cselect_b32 s51, 1, 0
        s_cmp_eq_u32 s52, 1
        s_cselect_b32 s51, 0, s51
        """)
    for ks in range(13): step(ks)
    check()
    a(f"s_cmp_eq_u32 s51, 0\ns_cbranch_scc1 {lab}_vn")
    for j in range(8): step(13+j); a(dl[j])
    a(f"s_branch {lab}_ve\n{lab}_vn:")
    for j in range(8): step(13+j)
    a.label(lab+'_ve')
    for ks in range(21,32): step(ks)
    for x in epi(0): a(x)
    for x in epi(1): a(x)
    a(f"""
    s_mov_b32 s54, 1
    s_and_b32 s32, s40, 2
    s_cmp_eq_u32 s32, 0
    s_cbranch_scc1 {lab}_noq
    """)
    for i in range(AHEAD): rd(i)
    for ks in range(32):
        r_=XR+4*(ks%NR)
        a(f"s_waitcnt lgkmcnt({min(AHEAD-1,31-ks)})")
        a(f"v_mfma_f32_32x32x16_bf16 v[32:47], {W('Q',ks)}, v[{r_}:{r_+3}], {'0' if ks==0 else 'v[32:47]'}")
        if ks+AHEAD<32: rd(ks+AHEAD)
        if ks==22:
            a("s_waitcnt vmcnt(0)")
            set_flag(a,'s49',vtmp=(11,12))
    for i in range(8): a(f"v_cvt_pk_bf16_f32 v{PK+i}, v32+{2*i}, v33+{2*i}".replace(f"v32+{2*i}",f"v{32+2*i}").replace(f"v33+{2*i}",f"v{33+2*i}"))
    a(f"""
    buffer_store_dwordx4 v[{PK}:{PK+3}], v3, s[8:11], s48 offen sc1
    buffer_store_dwordx4 v[{PK+4}:{PK+7}], v3, s[8:11], s48 offen offset:1024 sc1
    s_mov_b32 s54, 2
{lab}_noq:
    s_add_u32 s48, s48, {32*QKV_BLK}
    s_add_u32 s49, s49, 1024
    s_add_u32 s40, s40, 1
    s_mov_b32 s42, s50
    s_cmp_eq_u32 s51, 0
    s_cbranch_scc1 {lab}_slow
    s_mov_b32 s47, s54
    s_add_u32 s43, s43, 32768
    s_add_u32 s45, s45, 128
    s_cmp_eq_u32 s54, 2
    s_cbranch_scc1 {lab}_fq
    s_waitcnt vmcnt(4)
{lab}_fq:
    s_barrier
    s_branch {lab}_unit
{lab}_slow:
    s_waitcnt vmcnt(0)
    s_sub_u32 s33, s49, 1024
    s_add_u32 s34, s33, 16
    s_cmp_eq_u32 s54, 2
    s_cselect_b32 s33, s34, s33
    """)
    set_flag(a,'s33',vtmp=(11,12))
    a(f"""
    s_mov_b32 s47, 0
    s_cmp_ge_u32 s40, 64
    s_cbranch_scc1 {lab}_done
    """)
    wait_flags(a,lab+'ws',NXN,'s45',fail,spin,vtmp=(8,9))
    for d in dma_list(8,13,'s42'): a(d)
    a(f"""
    s_add_u32 s43, s43, 32768
    s_add_u32 s45, s45, 128
    s_waitcnt vmcnt(0)
    s_barrier
    s_branch {lab}_unit
{lab}_done:
    """)

def emit_ATT(a, cfg, fail):
    spin=cfg.get('spin',SPIN_DEFAULT)
    lab=a.new('ATT')
    STG=131072
    a(f"""
    s_load_dwordx2 s[12:13], s[0:1], 40      ; Wq
    s_waitcnt lgkmcnt(0)
    s_mov_b32 s14, 4194304
    s_mov_b32 s15, 0x20000
    v_lshrrev_b32 v61, 4, v0
    v_and_b32 v60, 15, v0
    v_lshlrev_b32 v62, 2, v61
    v_xor_b32 v62, v60, v62
    v_lshlrev_b32 v62, 4, v62
    v_lshl_add_u32 v62, v61, 13, v62
    s_lshl_b32 s32, s5, 8
    v_add_u32 v40, s32, v62
    s_lshl_b32 s32, s6, 2
    """)
    tr_addr32(a,44,'s32',256,lambda r_,o: a(f"v_lshlrev_b32 v{o}, 2, v{r_}"),STG)
    a("v_lshlrev_b32 v46, 4, v0\ns_lshl_b32 s32, s6, 15\nv_add_u32 v46, s32, v46")
    for rnd in range(4):
        a(f"s_lshl_b32 s33, s6, 18\ns_add_u32 s33, s33, {rnd*128*8192}\ns_lshl_b32 s34, s6, 13\ns_add_u32 s34, s34, {STG}")
        for n in range(8):
            a(f"s_add_u32 m0, s34, {4*n*256}\ns_add_u32 s35, s33, {4*n*8192}\nbuffer_load_dwordx4 v40, s[12:15], s35 offen lds")
        a("s_waitcnt vmcnt(0)\ns_barrier")
        for ksl in range(8):
            for p in range(2):
                a(f"ds_read_b64_tr_b16 v[{64+4*ksl+2*p}:{65+4*ksl+2*p}], v44 offset:{ksl*4096+p*2048}")
        a("s_waitcnt lgkmcnt(0)")
        for ksl in range(8):
            a(f"ds_write_b128 v46, v[{64+4*ksl}:{67+4*ksl}] offset:{(8*rnd+ksl)*1024}")
        a("s_waitcnt lgkmcnt(0)\ns_barrier")
    a(f"""
    s_lshr_b32 s40, s6, 1                    ; layer
    s_and_b32 s41, s6, 1                     ; unit
    s_lshl_b32 s32, s40, 6
    s_add_u32 s32, s32, s41
    s_lshl_b32 s32, s32, 5
    s_add_u32 s32, s32, s5                   ; (l*64+u)*32 + h
    s_mul_i32 s43, s32, {QKV_BLK}
    s_lshl_b32 s44, s32, 12
    s_add_u32 s44, s44, {WS_KM}
    s_lshl_b32 s45, s32, 4
    s_add_u32 s45, s45, {WS_FLAG+FL_CH}
    s_lshl_b32 s49, s32, 5
    s_add_u32 s49, s49, {WS_FLAG+FL_P}
    s_lshl_b32 s33, s40, 6
    s_add_u32 s33, s33, s41                  ; l*64+u
    s_mul_i32 s34, s40, {6*64*32768}
    s_lshl_b32 s35, s41, 15
    s_add_u32 s50, s34, s35
    s_add_u32 s50, s50, {xs(T_XNB1,0)}
    s_lshl_b32 s34, s40, 14
    s_lshl_b32 s35, s41, 7
    s_add_u32 s51, s34, s35
    s_add_u32 s51, s51, {WS_FLAG+FL_XN+64*128}
    s_lshl_b32 s46, s32, 2
    s_add_u32 s46, s46, {WS_FLAG+FL_OB}
    s_lshl_b32 s33, s40, 6
    s_add_u32 s33, s33, s41
    s_lshl_b32 s33, s33, 18
    s_lshl_b32 s34, s5, 13
    s_add_u32 s47, s33, s34
    s_add_u32 s47, s47, {WS_OB}
    s_lshl_b32 s42, s6, 12
    s_add_u32 s42, s42, {STG}
    v_lshlrev_b32 v1, 4, v0
    v_lshrrev_b32 v60, 5, v0
    v_and_b32 v61, 7, v0
    v_lshlrev_b32 v2, 4, v61
    v_lshl_add_u32 v2, v60, 7, v2
    v_add_u32 v2, s42, v2
    v_and_b32 v61, 31, v0
    v_lshlrev_b32 v3, 4, v61
    v_lshl_add_u32 v3, v60, 3, v3
    v_add_u32 v3, s42, v3
    v_mov_b32 v7, 0xff7fffff
    v_mov_b32 v12, 0x3f803f80
    v_mov_b32 v13, 0x3f803f80
    v_mov_b32 v14, 0x3f803f80
    v_mov_b32 v15, 0x3f803f80
    s_mov_b32 s48, 0x3e0293ee
    """)
    a("v_mov_b32 v4, v1\nv_add_u32 v5, 0x10000, v1")
    causal_masks(a,64)
    K=32; V=64; KM=160; VM=192
    XA=96
    QV=128
    def xloads():
        out=[]
        for ks in range(32):
            pre=f"s_add_u32 s32, s50, {(ks>>2)*4096}\n" if ks%4==0 else ""
            out.append(pre+f"buffer_load_dwordx4 a[{XA+4*ks}:{XA+4*ks+3}], v1, s[8:11], s32 offen offset:{(ks&3)*1024} sc1")
        return out
    def xadv(): a("s_add_u32 s50, s50, 131072\ns_add_u32 s51, s51, 512")
    def kvloads():
        out=[]
        for blk,reg in ((1,K),(2,V)):
            for g in range(2):
                for j in range(4):
                    rr=reg+4*(4*g+j)
                    pre=f"s_add_u32 s32, s43, {blk*8192+g*4096}\n" if j==0 else ""
                    out.append(pre+f"buffer_load_dwordx4 a[{rr}:{rr+3}], v1, s[8:11], s32 offen offset:{j*1024} sc1")
        return out
    def core(tag, light):
        L=f"{lab}_{tag}"
        a(f"""
        s_waitcnt vmcnt(0)
        v_cmp_eq_u32 vcc, 0, v30
        s_cbranch_vccnz {L}_chw
        """)
        def kmdma():
            a("s_mov_b32 m0, s42")
            for j in range(4): a(f"buffer_load_dwordx4 v1, s[8:11], s44 offen offset:{j*1024} sc1 lds")
        def stok():
            for ks in range(8):
                c0='0' if ks==0 else 'v[32:47]'
                a(f"v_mfma_f32_32x32x16_bf16 v[32:47], a[{K+4*ks}:{K+4*ks+3}], v[{QV+4*ks}:{QV+4*ks+3}], {c0}")
            for r_ in range(16): a(f"v_cndmask_b32 v{32+r_}, v7, v{32+r_}, s[{64+2*r_}:{65+2*r_}]")
            a("""
            v_max3_f32 v24, v32, v33, v34
            v_max3_f32 v25, v35, v36, v37
            v_max3_f32 v24, v24, v38, v39
            v_max3_f32 v25, v25, v40, v41
            v_max3_f32 v24, v24, v42, v43
            v_max3_f32 v25, v25, v44, v45
            v_max3_f32 v24, v24, v46, v47
            """)
            for W_ in range(4): a(f"v_mov_b32 v{VM+4*W_+2}, 0\nv_mov_b32 v{VM+4*W_+3}, 0")
        xl=xloads()
        kmdma(); stok()
        a(f"s_branch {L}_kmw")
        a.label(L+'_chw')
        stok()
        if light:
            a(f"s_cmp_eq_u32 s53, 0\ns_cbranch_scc1 {L}_b1")
            for x in xl: a(x)
            xadv()
            a(f"s_mov_b32 s53, 2\n{L}_b1:")
        wait_flags(a,L+'wc',4,'s45',fail,spin,sleep=0)
        kmdma()
        a.label(L+'_kmw')
        a("s_waitcnt vmcnt(0)")
        for ks in range(8): a(f"ds_read_b128 v[{KM+4*ks}:{KM+4*ks+3}], v2 offset:{ks*256}")
        for W_ in range(4): a(f"ds_read_b64 v[{VM+4*W_}:{VM+4*W_+1}], v3 offset:{2048+W_*512}")
        for ks in range(8):
            a(f"s_waitcnt lgkmcnt({11-ks})")
            c1='0' if ks==0 else 'v[48:63]'
            a(f"v_mfma_f32_32x32x16_bf16 v[48:63], v[{KM+4*ks}:{KM+4*ks+3}], v[{QV+4*ks}:{QV+4*ks+3}], {c1}")
        a("""
        v_max3_f32 v25, v25, v48, v49
        v_max3_f32 v24, v24, v50, v51
        v_max_f32 v24, v24, v25
        v_mov_b32 v25, v24
        v_permlane32_swap_b32 v24, v25
        v_max_f32 v24, v24, v25
        v_mul_f32 v24, s48, v24
        """)
        for r_ in range(20): a(f"v_fma_f32 v{32+r_}, v{32+r_}, s48, -v24")
        for r_ in range(20): a(f"v_exp_f32 v{32+r_}, v{32+r_}")
        a("v_add_f32 v24, v32, v33\nv_add_f32 v25, v34, v35")
        for r_ in range(4,20,2): a(f"v_add_f32 v24, v24, v{32+r_}\nv_add_f32 v25, v25, v{33+r_}")
        a("""
        v_add_f32 v24, v24, v25
        v_mov_b32 v25, v24
        v_permlane32_swap_b32 v24, v25
        v_add_f32 v24, v24, v25
        v_rcp_f32 v24, v24
        """)
        for r_ in range(20): a(f"v_mul_f32 v{32+r_}, v{32+r_}, v24")
        for i in range(8): a(f"v_cvt_pk_bf16_f32 v{16+i}, v{32+2*i}, v{33+2*i}")
        a("""
        v_cvt_pk_bf16_f32 v8, v48, v49
        v_cvt_pk_bf16_f32 v9, v50, v51
        v_mov_b32 v10, 0
        v_mov_b32 v11, 0
        s_waitcnt lgkmcnt(0)
        """)
        OT=[64,80,96,112]; PK=208
        xq=list(xl) if light else []
        def mx(n=1):
            for _ in range(n):
                if xq:
                    LL=a.new(lab+'m'); a(f"s_cbranch_scc0 {LL}"); x=xq.pop(0)
                    a(x)
                    if x.startswith('s_add'): a("s_cmp_eq_u32 s53, 1")
                    a.label(LL)
        def pv(W_):
            o=OT[W_]
            a(f"v_mfma_f32_32x32x16_bf16 v[{o}:{o+15}], a[{V+8*W_}:{V+8*W_+3}], v[16:19], 0"); mx()
            a(f"v_mfma_f32_32x32x16_bf16 v[{o}:{o+15}], a[{V+8*W_+4}:{V+8*W_+7}], v[20:23], v[{o}:{o+15}]"); mx()
            a(f"v_mfma_f32_32x32x16_bf16 v[{o}:{o+15}], v[{VM+4*W_}:{VM+4*W_+3}], v[8:11], v[{o}:{o+15}]"); mx()
        def fin(W_):
            o=OT[W_]
            for i in range(8):
                a(f"v_cvt_pk_bf16_f32 v{PK+8*W_+i}, v{o+2*i}, v{o+2*i+1}")
                if i%2==1: mx()
        def sto(W_):
            if W_==2: a("s_add_u32 s32, s47, 4096")
            for f in range(2):
                fi=2*W_+f
                a(f"buffer_store_dwordx4 v[{PK+4*fi}:{PK+4*fi+3}], v1, s[8:11], {'s47' if fi<4 else 's32'} offen offset:{(fi&3)*1024} sc1")
        if light: a("s_cmp_eq_u32 s53, 1")
        pv(0); pv(1); pv(2); fin(0); pv(3); fin(1); fin(2); fin(3)
        if light:
            mx(32)
            a(f"s_cbranch_scc0 {L}_k2")
            xadv()
            a.label(L+'_k2')
        for W_ in range(4): sto(W_)
        a(f"""
        s_add_u32 s43, s43, {2*32*QKV_BLK}
        s_add_u32 s44, s44, {2*32*4096}
        s_add_u32 s45, s45, 1024
        s_add_u32 s49, s49, 2048
        s_add_u32 s47, s47, {2*262144}
        s_add_u32 s41, s41, 2
        """)
    def eager():
        a("s_waitcnt vmcnt(0)")
        set_flag(a,'s46',vtmp=(10,11))
        a("s_add_u32 s46, s46, 256\ns_mov_b32 s52, 0")
    cfg['init_wait'](a,lab,sb=16)
    a("s_mov_b32 s52, 0")
    wait_flags(a,lab+'wx0',NXN,'s51',fail,spin)
    for x in xloads(): a(x)
    xadv()
    a.label(lab+'_H')
    roles.tsp(a,1,0,'s41',('s5','s40'))
    WR=64; NR=8; AHEAD=6
    seq=[(T,ks) for T in range(4) for ks in range(32)]
    def wrd(i):
        T,ks=seq[i]; r_=WR+4*(i%NR)
        a(f"ds_read_b128 v[{r_}:{r_+3}], v{4+(T>>1)} offset:{(T&1)*32768+ks*1024}")
    for i in range(AHEAD): wrd(i)
    QA=[96,112]
    pend=[]
    kvl=kvloads()
    for i,(T,ks) in enumerate(seq):
        acc=QA[T&1]; r_=WR+4*(i%NR)
        if T==0:
            if ks<8:
                LL=a.new(lab+'x')
                a(f"s_cmp_eq_u32 s52, 0\ns_cbranch_scc1 {LL}_0\ns_waitcnt vmcnt({39-ks})\ns_branch {LL}_1\n{LL}_0:\ns_waitcnt vmcnt({31-ks})\n{LL}_1:\ns_waitcnt lgkmcnt({AHEAD-1})")
            else: a(f"s_waitcnt vmcnt({31-ks}) lgkmcnt({AHEAD-1})")
        elif T==1 and ks==0:
            a(f"s_cmp_eq_u32 s52, 0\ns_cbranch_scc1 {lab}_nf")
            set_flag(a,'s46',vtmp=(10,11))
            a(f"s_add_u32 s46, s46, 256\ns_mov_b32 s52, 0\n{lab}_nf:")
            poll_issue(a,4,'s49',10,30)
            a(f"s_waitcnt lgkmcnt({AHEAD-1})")
        elif T==1 and ks==30:
            a(f"""
            s_waitcnt vmcnt(0)
            v_cmp_eq_u32 vcc, 0, v30
            s_cbranch_vccz {lab}_pok
            """)
            wait_flags(a,lab+'wp',4,'s49',fail,spin)
            a(f"{lab}_pok:\ns_waitcnt lgkmcnt({AHEAD-1})")
        else: a(f"s_waitcnt lgkmcnt({min(AHEAD-1,len(seq)-1-i)})")
        c='0' if ks==0 else f"v[{acc}:{acc+15}]"
        a(f"v_mfma_f32_32x32x16_bf16 v[{acc}:{acc+15}], v[{r_}:{r_+3}], a[{XA+4*ks}:{XA+4*ks+3}], {c}")
        if i+AHEAD<len(seq): wrd(i+AHEAD)
        if T>=1 and ks==0:
            pa=QA[(T-1)&1]
            pend=[f"v_cvt_pk_bf16_f32 v{QV+8*(T-1)+q}, v{pa+2*q}, v{pa+2*q+1}" for q in range(8)]
        if T>=1 and ks>=8 and pend: a(pend.pop(0))
        if T==2 and ks%2==1 and kvl: a(kvl.pop(0))
        if T==3 and ks==4: poll_issue(a,4,'s45',10,30)
    pa=QA[1]
    for q in range(8): a(f"v_cvt_pk_bf16_f32 v{QV+24+q}, v{pa+2*q}, v{pa+2*q+1}")
    roles.tsp(a,1,1,'s41',('s5','s40'))
    core('h',False)
    roles.tsp(a,1,5,'s41',('s5','s40'))
    eager()
    a(f"s_cmp_ge_u32 s41, 64\ns_cbranch_scc1 {lab}_done")
    a.label(lab+'_L')
    roles.tsp(a,1,0,'s41',('s5','s40'))
    wait_flags(a,lab+'wq',8,'s49',fail,spin)
    for g in range(2):
        a(f"s_add_u32 s32, s43, {g*4096}")
        for j in range(4):
            rr=QV+4*(4*g+j)
            a(f"buffer_load_dwordx4 v[{rr}:{rr+3}], v1, s[8:11], s32 offen offset:{j*1024} sc1")
    for x in kvloads(): a(x)
    poll_issue(a,NXN,'s51',11,31)
    poll_issue(a,4,'s45',10,30)
    a(f"""
    s_waitcnt vmcnt(0)
    s_mov_b32 s53, 0
    s_cmp_ge_u32 s41, 62
    s_cbranch_scc1 {lab}_np
    v_cmp_eq_u32 vcc, 0, v31
    s_cbranch_vccnz {lab}_np
    s_mov_b32 s53, 1
{lab}_np:
    """)
    core('l',True)
    roles.tsp(a,1,5,'s41',('s5','s40'))
    a(f"""
    s_cmp_eq_u32 s53, 1
    s_cbranch_scc0 {lab}_e1
    s_mov_b32 s52, 1
    s_branch {lab}_H
{lab}_e1:
    """)
    eager()
    a(f"""
    s_cmp_ge_u32 s41, 64
    s_cbranch_scc1 {lab}_done
    s_cmp_eq_u32 s53, 2
    s_cbranch_scc1 {lab}_H
    """)
    wait_flags(a,lab+'wxs',NXN,'s51',fail,spin)
    for x in xloads(): a(x)
    xadv()
    a(f"s_branch {lab}_H\n{lab}_done:")

def emit_O(a, cfg, fail):
    spin=cfg.get('spin',SPIN_DEFAULT)
    lab=a.new('O')
    a(f"""
    s_load_dwordx2 s[12:13], s[0:1], 64
    s_waitcnt lgkmcnt(0)
    s_mov_b32 s14, 4194304
    s_mov_b32 s15, 0x20000
    s_lshr_b32 s40, s5, 2                    ; kq
    s_and_b32 s41, s5, 3                     ; nq
    v_lshrrev_b32 v61, 4, v0
    v_and_b32 v60, 15, v0
    v_lshlrev_b32 v62, 2, v61
    v_xor_b32 v62, v60, v62
    v_lshlrev_b32 v62, 4, v62
    v_lshl_add_u32 v62, v61, 10, v62
    s_lshl_b32 s32, s41, 8
    v_add_u32 v40, s32, v62
    s_mov_b32 s32, 0
    """)
    tr_addr32(a,44,'s32',256,lambda r,o: a(f"v_lshlrev_b32 v{o}, 2, v{r}"),0)
    a("s_lshl_b32 s34, s6, 15\nv_add_u32 v44, s34, v44")
    for T in range(1,4): a(f"v_xor_b32 v{44+T}, {64*T}, v44")
    for rnd in range(2):
        a(f"s_lshl_b32 s33, s40, 20\ns_lshl_b32 s35, s6, 18\ns_add_u32 s33, s33, s35\ns_add_u32 s33, s33, {rnd*128*1024}")
        for n in range(32):
            a(f"s_add_u32 m0, s34, {4*n*256}\ns_add_u32 s35, s33, {4*n*1024}\nbuffer_load_dwordx4 v40, s[12:15], s35 offen lds")
        a("s_waitcnt vmcnt(0)")
        for ksl in range(8):
            ks=8*rnd+ksl
            for T in range(4):
                for p in range(2):
                    b=(T*16+ks)*4+2*p
                    a(f"ds_read_b64_tr_b16 a[{b}:{b+1}], v{44+T} offset:{ksl*4096+p*2048}")
            a("s_waitcnt lgkmcnt(4)")
        a("s_waitcnt lgkmcnt(0)")
    a(f"""
    s_barrier
    v_lshlrev_b32 v1, 4, v0
    s_lshl_b32 s32, s4, 24
    s_lshl_b32 s33, s40, 16
    s_lshl_b32 s34, s6, 14
    s_add_u32 s43, s32, s33
    s_add_u32 s43, s43, s34
    s_add_u32 s43, s43, {WS_OB}
    s_lshl_b32 s32, s4, 23
    s_lshl_b32 s33, s40, 15
    s_lshl_b32 s34, s41, 13
    s_add_u32 s44, s32, s33
    s_add_u32 s44, s44, s34
    s_lshl_b32 s34, s6, 11
    s_add_u32 s44, s44, s34
    s_add_u32 s44, s44, {WS_PO}
    s_lshl_b32 s32, s4, 13
    s_lshl_b32 s33, s40, 5
    s_lshl_b32 s34, s6, 3
    s_add_u32 s45, s32, s33
    s_add_u32 s45, s45, s34
    s_add_u32 s45, s45, {WS_FLAG+FL_OB}
    s_lshl_b32 s32, s4, 14
    s_lshl_b32 s33, s5, 4
    s_lshl_b32 s34, s6, 2
    s_add_u32 s46, s32, s33
    s_add_u32 s46, s46, s34
    s_add_u32 s46, s46, {WS_FLAG+FL_PO}
    s_lshl_b32 s32, s6, 14
    v_add_u32 v2, s32, v1
    s_lshl_b32 s32, s6, 12
    v_add_u32 v3, s32, v1
    s_mov_b32 s47, 0
    s_mov_b32 s51, 0
    """)
    XB=[64,128]
    def ld(st,ks):
        return f"s_add_u32 s32, s43, {(ks>>2)*4096}\nbuffer_load_dwordx4 v[{XB[st]+4*ks}:{XB[st]+4*ks+3}], v1, s[8:11], s32 offen offset:{(ks&3)*1024} sc1"
    def adv(): a("s_add_u32 s43, s43, 262144\ns_add_u32 s45, s45, 128")
    wait_flags(a,lab+'w0',2,'s45',fail,spin)
    for ks in range(16): a(ld(0,ks))
    adv()
    ACC=[0,16,32,48]
    AB=192
    def iteration(st):
        L=f"{lab}_i{st}"
        a.label(L)
        poll_issue(a,2,'s45',10,9)
        nl=[ld(1-st,ks) for ks in range(16)]
        for ks in range(16):
            a(f"s_waitcnt vmcnt({16-ks})") if ks<16 else None
            for T in range(4):
                acc=AB+16*T; c='0' if ks==0 else f"v[{acc}:{acc+15}]"; b=(T*16+ks)*4
                a(f"v_mfma_f32_32x32x16_bf16 v[{acc}:{acc+15}], a[{b}:{b+3}], v[{XB[st]+4*ks}:{XB[st]+4*ks+3}], {c}")
            if ks==15: break
        return nl
    def unit(st):
        L=f"{lab}_i{st}"
        a.label(L)
        poll_issue(a,2,'s45',10,9)
        for ks in range(8):
            a(f"s_waitcnt vmcnt({16-ks})")
            for T in range(4):
                acc=AB+16*T; c='0' if ks==0 else f"v[{acc}:{acc+15}]"; b=(T*16+ks)*4
                a(f"v_mfma_f32_32x32x16_bf16 v[{acc}:{acc+15}], a[{b}:{b+3}], v[{XB[st]+4*ks}:{XB[st]+4*ks+3}], {c}")
        a(f"""
        s_waitcnt vmcnt(0)
        s_mov_b32 s49, 0
        s_cmp_ge_u32 s47, 63
        s_cbranch_scc1 {L}_np
        v_cmp_eq_u32 vcc, 0, v9
        s_cbranch_vccnz {L}_np
        s_mov_b32 s49, 1
{L}_np:
        s_cmp_eq_u32 s49, 1
        """)
        nl=[ld(1-st,ks) for ks in range(16)]
        for ks in range(8,16):
            for T in range(4):
                acc=AB+16*T; b=(T*16+ks)*4
                a(f"v_mfma_f32_32x32x16_bf16 v[{acc}:{acc+15}], a[{b}:{b+3}], v[{XB[st]+4*ks}:{XB[st]+4*ks+3}], v[{acc}:{acc+15}]")
                if T%2==1:
                    LL=a.new(L+'m'); a(f"s_cbranch_scc0 {LL}"); a(nl.pop(0)); a(f"s_cmp_eq_u32 s49, 1\n{LL}:")
        a("v_add_u32 v4, s51, v2\nv_add_u32 v5, s51, v3")
        for q in range(16): a(f"ds_write_b128 v4, v[{AB+4*q}:{AB+3+4*q}] offset:{q*1024}")
        a("s_waitcnt lgkmcnt(0)\ns_barrier")
        R=16
        for w in range(4):
            for q in range(4): a(f"ds_read_b128 v[{AB+16*w+4*q}:{AB+3+16*w+4*q}], v5 offset:{w*16384+q*1024}")
        a("s_xor_b32 s51, s51, 65536\ns_waitcnt lgkmcnt(8)")
        for r in range(0,16,2): a(f"v_pk_add_f32 v[{AB+r}:{AB+1+r}], v[{AB+r}:{AB+1+r}], v[{AB+16+r}:{AB+17+r}]")
        a("s_waitcnt lgkmcnt(0)")
        for r in range(0,16,2): a(f"v_pk_add_f32 v[{AB+32+r}:{AB+33+r}], v[{AB+32+r}:{AB+33+r}], v[{AB+48+r}:{AB+49+r}]")
        for r in range(0,16,2): a(f"v_pk_add_f32 v[{AB+r}:{AB+1+r}], v[{AB+r}:{AB+1+r}], v[{AB+32+r}:{AB+33+r}]")
        for i in range(8): a(f"v_cvt_pk_bf16_f32 v{16+i}, v{AB+2*i}, v{AB+1+2*i}")
        a(f"""
        buffer_store_dwordx4 v[16:19], v1, s[8:11], s44 offen sc1
        buffer_store_dwordx4 v[20:23], v1, s[8:11], s44 offen offset:1024 sc1
        s_add_u32 s44, s44, 131072
        s_add_u32 s47, s47, 1
        s_waitcnt vmcnt(0)
        """)
        set_flag(a,'s46',vtmp=(10,11))
        a(f"""
        s_add_u32 s46, s46, 256
        s_cmp_eq_u32 s49, 1
        s_cbranch_scc0 {L}_slow
        """)
        adv()
        a(f"""
        s_branch {lab}_i{1-st}
{L}_slow:
        s_cmp_ge_u32 s47, 64
        s_cbranch_scc1 {lab}_done
        """)
        wait_flags(a,L+'ws',2,'s45',fail,spin)
        for ks in range(16): a(ld(1-st,ks))
        adv()
        if st==1: a(f"s_branch {lab}_i0")
    unit(0); unit(1)
    a.label(lab+'_done')

def emit_O5(a, cfg, fail):
    spin=cfg.get('spin',SPIN_DEFAULT)
    lab=a.new('O')
    a(f"""
    s_load_dwordx2 s[12:13], s[0:1], 64
    s_waitcnt lgkmcnt(0)
    s_mov_b32 s14, 4194304
    s_mov_b32 s15, 0x20000
    s_lshr_b32 s40, s5, 2                    ; kq
    s_and_b32 s41, s5, 3                     ; nq
    v_lshrrev_b32 v61, 4, v0
    v_and_b32 v60, 15, v0
    v_lshlrev_b32 v62, 2, v61
    v_xor_b32 v62, v60, v62
    v_lshlrev_b32 v62, 4, v62
    v_lshl_add_u32 v62, v61, 10, v62
    s_lshl_b32 s32, s41, 8
    v_add_u32 v40, s32, v62
    s_and_b32 s54, s6, 1                     ; nh
    s_lshr_b32 s55, s6, 1                    ; kh
    s_lshl_b32 s32, s54, 3
    """)
    tr_addr32(a,44,'s32',256,lambda r,o: a(f"v_lshlrev_b32 v{o}, 2, v{r}"),0)
    a("v_xor_b32 v45, 64, v44\nv_add_u32 v46, 0x10000, v44\nv_add_u32 v47, 0x10000, v45")
    def issue(i):
        a(f"s_lshl_b32 s33, s40, 20\ns_lshl_b32 s35, s6, 16\ns_add_u32 s33, s33, s35\ns_add_u32 s33, s33, {i*256*1024}\ns_lshl_b32 s34, s6, 14\ns_add_u32 s34, s34, {(i&1)*65536}")
        for n in range(16):
            a(f"s_add_u32 m0, s34, {4*n*256}\ns_add_u32 s35, s33, {4*n*1024}\nbuffer_load_dwordx4 v40, s[12:15], s35 offen lds")
    issue(0); issue(1)
    for i in range(4):
        L=a.new(lab+'w')
        a(f"s_waitcnt vmcnt({16 if i<3 else 0})\ns_barrier\ns_cmp_lg_u32 s55, {i>>1}\ns_cbranch_scc1 {L}")
        for ksl in range(16):
            ks=16*(i&1)+ksl
            for T in range(2):
                for p in range(2):
                    b=(T*32+ks)*4+2*p
                    a(f"ds_read_b64_tr_b16 a[{b}:{b+1}], v{44+T+2*(i&1)} offset:{ksl*4096+p*2048}")
            if ksl%2==1: a("s_waitcnt lgkmcnt(4)")
        a(f"{L}:\ns_waitcnt lgkmcnt(0)\ns_barrier")
        if i+2<4: issue(i+2)
    a(f"""
    v_lshlrev_b32 v1, 4, v0
    s_lshl_b32 s32, s6, 14
    v_add_u32 v2, s32, v1
    s_lshl_b32 s32, s4, 24
    s_lshl_b32 s33, s40, 16
    s_add_u32 s43, s32, s33
    s_add_u32 s43, s43, {WS_OB}
    s_lshl_b32 s32, s4, 23
    s_lshl_b32 s33, s40, 15
    s_lshl_b32 s34, s41, 13
    s_add_u32 s44, s32, s33
    s_add_u32 s44, s44, s34
    s_lshl_b32 s34, s54, 12
    s_add_u32 s44, s44, s34
    s_lshl_b32 s34, s55, 11
    s_add_u32 s44, s44, s34
    s_add_u32 s44, s44, {WS_PO}
    s_lshl_b32 s32, s4, 13
    s_lshl_b32 s33, s40, 5
    s_lshl_b32 s34, s6, 3
    s_add_u32 s45, s32, s33
    s_add_u32 s45, s45, s34
    s_add_u32 s45, s45, {WS_FLAG+FL_OB}
    s_lshl_b32 s32, s4, 14
    s_lshl_b32 s33, s5, 4
    s_lshl_b32 s34, s6, 2
    s_add_u32 s46, s32, s33
    s_add_u32 s46, s46, s34
    s_add_u32 s46, s46, {WS_FLAG+FL_PO}
    s_mov_b32 s47, 0
    s_mov_b32 s42, 0
    s_mov_b32 s52, 0
    """)
    def dma(bufreg):
        out=[]
        for n in range(16):
            out.append(f"s_lshl_b32 s32, s6, 14\ns_add_u32 s32, s32, {bufreg}\ns_add_u32 m0, s32, {(n>>2)*4096}\ns_add_u32 s33, s43, {(n>>2)*4096}\nbuffer_load_dwordx4 v2, s[8:11], s33 offen offset:{(n&3)*1024} sc1 lds")
        return out
    def adv(): a("s_add_u32 s43, s43, 262144\ns_add_u32 s45, s45, 128")
    cfg['init_wait'](a,lab)
    wait_flags(a,lab+'w0',2,'s45',fail,spin)
    for d in dma_list(16,14,'s42'): a(d)
    adv()
    a("s_waitcnt vmcnt(0)\ns_barrier")
    a.label(lab+'_unit')
    roles.tsp(a,0,1,'s47',('s4','s5','s6'))
    a("s_lshl_b32 s32, s55, 15\ns_add_u32 s32, s32, s42\nv_add_u32 v5, s32, v1\ns_xor_b32 s50, s42, 65536")
    poll_issue(a,2,'s45',10,9)
    XR=64; NR=8; AHEAD=6
    def rd(i): a(f"ds_read_b128 v[{XR+4*(i%NR)}:{XR+4*(i%NR)+3}], v5 offset:{i*1024}")
    for i in range(AHEAD): rd(i)
    dl=dma_list(16,14,'s50')
    def mf(ks):
        r=XR+4*(ks%NR)
        for T in range(2):
            acc=32+16*T; c='0' if ks==0 else f"v[{acc}:{acc+15}]"; b=(T*32+ks)*4
            a(f"v_mfma_f32_32x32x16_bf16 v[{acc}:{acc+15}], a[{b}:{b+3}], v[{r}:{r+3}], {c}")
    def check():
        a(f"s_cmp_eq_u32 s52, 0\ns_cbranch_scc1 {lab}_nq0\ns_waitcnt vmcnt(1)")
        set_flag(a,'s46',vtmp=(11,12))
        a(f"""
        s_add_u32 s46, s46, 256
        s_mov_b32 s52, 0
        s_waitcnt vmcnt(1)
        s_branch {lab}_nq
{lab}_nq0:
        s_waitcnt vmcnt(0)
{lab}_nq:
        s_mov_b32 s48, 0
        s_cmp_ge_u32 s47, 63
        s_cselect_b32 s49, 1, 0
        v_cmp_eq_u32 vcc, 0, v9
        s_cmp_eq_u64 vcc, 0
        s_cselect_b32 s48, 1, 0
        s_cmp_eq_u32 s49, 1
        s_cselect_b32 s48, 0, s48
        """)
    gemm_loop(a,lab,32,mf,rd,AHEAD,12,check,dl)
    roles.tsp(a,0,2,'s47',('s4','s5','s6'))
    L=a.new(lab+'r')
    a(f"""
    s_lshl_b32 s32, s6, 12
    s_add_u32 s32, s32, 131072
    v_add_u32 v6, s32, v1
    s_xor_b32 s32, s6, 2
    s_lshl_b32 s32, s32, 12
    s_add_u32 s32, s32, 131072
    v_add_u32 v7, s32, v1
    s_cmp_eq_u32 s55, 0
    s_cbranch_scc1 {L}_0
    """)
    for q in range(4): a(f"ds_write_b128 v6, v[{32+4*q}:{35+4*q}] offset:{q*1024}")
    for r_ in range(16): a(f"v_mov_b32 v{32+r_}, v{48+r_}")
    a(f"s_branch {L}_1\n{L}_0:")
    for q in range(4): a(f"ds_write_b128 v6, v[{48+4*q}:{51+4*q}] offset:{q*1024}")
    a(f"{L}_1:\ns_waitcnt lgkmcnt(0)\ns_barrier")
    for q in range(4): a(f"ds_read_b128 v[{48+4*q}:{51+4*q}], v7 offset:{q*1024}")
    a("s_waitcnt lgkmcnt(0)")
    for r_ in range(0,16,2): a(f"v_pk_add_f32 v[{32+r_}:{33+r_}], v[{32+r_}:{33+r_}], v[{48+r_}:{49+r_}]")
    pack_tile(a,32,96)
    for f in range(2):
        a(f"buffer_store_dwordx4 v[{96+4*f}:{99+4*f}], v1, s[8:11], s44 offen offset:{f*1024} sc1")
    a(f"""
    s_add_u32 s44, s44, 131072
    s_add_u32 s47, s47, 1
    s_mov_b32 s42, s50
    s_cmp_eq_u32 s48, 0
    s_cbranch_scc1 {lab}_slow
    s_mov_b32 s52, 1
    """)
    adv()
    a(f"""
    s_waitcnt vmcnt(2)
    s_barrier
    s_branch {lab}_unit
{lab}_slow:
    s_waitcnt vmcnt(0)
    """)
    roles.tsp(a,0,3,'s47',('s4','s5','s6'))
    set_flag(a,'s46',vtmp=(11,12))
    a(f"""
    s_add_u32 s46, s46, 256
    s_cmp_ge_u32 s47, 64
    s_cbranch_scc1 {lab}_done
    """)
    wait_flags(a,lab+'ws',2,'s45',fail,spin)
    roles.tsp(a,0,0,'s47',('s4','s5','s6'))
    for d in dma_list(16,14,'s42'): a(d)
    adv()
    a(f"""
    s_waitcnt vmcnt(0)
    s_barrier
    s_branch {lab}_unit
{lab}_done:
    """)
```

```python
from common import *
import roles
from roles import wait_flags, set_flag, flagval, tr_addr32, pack_tile, causal_masks, SPIN_DEFAULT
from roles2 import poll_issue
NXN=16
NYA=16

def dma_list(n, shift, bufreg):
    out=[]
    for i in range(n):
        pre=''
        if i==0: pre+=f"s_lshl_b32 s53, s6, {shift}\ns_add_u32 s53, s53, {bufreg}\n"
        if i%4==0: pre+=f"s_add_u32 m0, s53, {(i>>2)*4096}\ns_add_u32 s33, s43, {(i>>2)*4096}\n"
        out.append(pre+f"buffer_load_dwordx4 v2, s[8:11], s33 offen offset:{(i&3)*1024} sc1 lds")
    return out

def gemm_loop(a, lab, nks, mf, rd, AHEAD, chk_ks, emit_check, dl, extra=None):
    def step(ks):
        a(f"s_waitcnt lgkmcnt({min(AHEAD-1,nks-1-ks)})")
        mf(ks)
        if ks+AHEAD<nks: rd(ks+AHEAD)
        if extra: extra(ks)
    for ks in range(chk_ks+1): step(ks)
    emit_check()
    L=a.new(lab+'v')
    n=len(dl)
    a(f"s_cmp_eq_u32 s48, 0\ns_cbranch_scc1 {L}_n")
    for j in range(n):
        step(chk_ks+1+j); a(dl[j])
    a(f"s_branch {L}_e\n{L}_n:")
    for j in range(n): step(chk_ks+1+j)
    a.label(L+'_e')
    for ks in range(chk_ks+1+n,nks): step(ks)

def emit_F(a, cfg, typ, fail):
    spin=cfg.get('spin',SPIN_DEFAULT)
    lab=a.new('F'+typ)
    npart={'T0':0,'T1':1,'T2':4,'T3':4}[typ]
    nfl={'T0':0,'T1':NYA,'T2':64,'T3':64}[typ]
    US=2 if typ=='T2' else 1
    flstep={'T0':0,'T1':128,'T2':256,'T3':256}[typ]*US
    a(f"""
    v_and_b32 v1, 7, v0
    v_bfe_u32 v2, v0, 3, 1
    v_lshrrev_b32 v3, 4, v0
    v_lshlrev_b32 v4, 4, v1
    v_lshl_add_u32 v4, v2, 9, v4
    v_lshl_add_u32 v4, v3, 10, v4
    s_lshl_b32 s12, s6, 13
    s_lshl_b32 s13, s5, 7
    s_add_u32 s12, s12, s13
    v_add_u32 v4, s12, v4
    s_lshl_b32 s13, s5, 3
    v_add_u32 v5, s13, v1
    v_lshlrev_b32 v5, 10, v5
    v_lshl_add_u32 v5, v3, 5, v5
    v_lshl_add_u32 v5, v2, 4, v5
    s_lshl_b32 s13, s6, 8
    v_add_u32 v5, s13, v5
    v_lshlrev_b32 v6, 3, v1
    s_lshl_b32 s13, s6, 6
    v_add_u32 v7, s13, v6
    """)
    if typ=='T0':
        a(f"""
        s_load_dwordx2 s[16:17], s[0:1], 0
        s_waitcnt lgkmcnt(0)
        s_mov_b32 s18, {2048*1024}
        s_mov_b32 s19, 0x20000
        s_mov_b32 s20, 0
        s_mov_b32 s22, {xs(T_X0,0)}
        s_mov_b32 s23, {xs(T_XNA1,0)}
        s_mov_b32 s24, {WS_FLAG+FL_XN+0*64*128}
        """)
    elif typ=='T1':
        a(f"""
        s_mul_i32 s13, s4, {6*64*32768}
        s_add_u32 s20, s13, {xs(T_X0,0)}
        s_add_u32 s21, s13, {xs(T_YA1,0)}
        s_add_u32 s22, s13, {xs(T_X1,0)}
        s_add_u32 s23, s13, {xs(T_XNB1,0)}
        s_lshl_b32 s13, s4, 14
        s_add_u32 s24, s13, {WS_FLAG+FL_XN+1*64*128}
        s_lshl_b32 s13, s4, 13
        s_add_u32 s25, s13, {WS_FLAG+FL_YA}
        """)
    elif typ=='T2':
        a(f"""
        s_lshl_b32 s13, s4, 15
        s_add_u32 s20, s13, {xs(T_X1,0)}
        s_add_u32 s22, s13, {xs(T_X2,0)}
        s_add_u32 s23, s13, {xs(T_XNA2,0)}
        s_lshl_b32 s13, s4, 17
        s_add_u32 s21, s13, {WS_PO}
        s_lshl_b32 s13, s4, 7
        s_add_u32 s24, s13, {WS_FLAG+FL_XN+2*64*128}
        s_lshl_b32 s13, s4, 8
        s_add_u32 s25, s13, {WS_FLAG+FL_PO}
        """)
    else:
        a(f"""
        s_load_dwordx2 s[16:17], s[0:1], 80
        s_waitcnt lgkmcnt(0)
        s_mov_b32 s18, {2048*1024}
        s_mov_b32 s19, 0x20000
        s_mov_b32 s20, {xs(T_X3,0)}
        s_mov_b32 s21, {WS_PO+64*131072}
        s_mov_b32 s22, 0
        s_mov_b32 s25, {WS_FLAG+FL_PO+64*256}
        """)
    a(f"""
    s_lshl_b32 s13, s5, 4
    s_lshl_b32 s14, s6, 2
    s_add_u32 s13, s13, s14
    {'s_add_u32 s24, s24, s13' if typ!='T3' else ''}
    s_mov_b32 s26, 0
    v_mov_b32 v8, 0x3f803f80
    s_mov_b32 s27, 0xffff0000
    s_mov_b32 s30, 0
    s_mov_b32 s31, 0
    """)
    SETS=[(16,24),(64,72)]
    W=112
    NS={'T0':4,'T1':4,'T2':4,'T3':2}[typ]
    def xchg(X):
        for j in range(2):
            b=X+4*j
            for d in range(2):
                a(f"""
                v_mov_b32 v12, v{b+d}
                s_nop 1
                v_mov_b32_dpp v{b+d}, v{b+2+d} row_shr:8 row_mask:0xf bank_mask:0xc
                v_mov_b32_dpp v{b+2+d}, v12 row_shl:8 row_mask:0xf bank_mask:0x3
                """)
    def loads(st):
        X,P0=SETS[st]
        if typ=='T0':
            for j in range(2): a(f"buffer_load_dwordx4 v[{X+4*j}:{X+4*j+3}], v5, s[16:19], s20 offen offset:{128*j}")
            a("s_add_u32 s20, s20, 32768")
        else:
            for p in range(npart):
                for j in range(2):
                    a(f"s_add_u32 s13, s21, {p*32768+j*4096}\nbuffer_load_dwordx4 v[{P0+8*p+4*j}:{P0+8*p+4*j+3}], v4, s[8:11], s13 offen sc1")
            for j in range(2):
                a(f"s_add_u32 s13, s20, {j*4096}\nbuffer_load_dwordx4 v[{X+4*j}:{X+4*j+3}], v4, s[8:11], s13 offen sc1")
            a(f"s_add_u32 s20, s20, {32768*US}\ns_add_u32 s21, s21, {(32768 if typ=='T1' else 131072)*US}\ns_add_u32 s25, s25, {flstep}")
    def flag_prev():
        if typ=='T3': return
        if typ=='T0' and not cfg.get('init',False):
            LL=a.new(lab+'iw')
            a(f"s_cmp_eq_u32 s34, 1\ns_cbranch_scc1 {LL}")
            cfg['init_wait'](a,LL+'x')
            a(f"s_mov_b32 s34, 1\n{LL}:")
        set_flag(a,'s24')
        a(f"s_add_u32 s24, s24, {128*US}")
    if typ!='T0': cfg['init_wait'](a,lab)
    else: a("s_mov_b32 s34, 0")
    if nfl: wait_flags(a,lab+'w0',nfl,'s25',fail,spin)
    loads(0)
    def iteration(st):
        X,P0=SETS[st]; L=f"{lab}_i{st}"
        a.label(L)
        if nfl: poll_issue(a,nfl,'s25',10,9)
        np_=1 if nfl else 0
        a(f"""
        s_cmp_eq_u32 s31, 0
        s_cbranch_scc1 {L}_w1
        s_waitcnt vmcnt({NS+np_})
        s_branch {L}_w2
{L}_w1:
        s_waitcnt vmcnt({np_})
{L}_w2:
        """)
        if typ=='T0': xchg(X)
        else:
            for r in range(8):
                w0=W+2*r
                if npart==4:
                    a(f"""
                    v_lshlrev_b32 v{w0}, 16, v{P0+r}
                    v_and_b32 v{w0+1}, s27, v{P0+r}
                    v_lshlrev_b32 v12, 16, v{P0+8+r}
                    v_and_b32 v13, s27, v{P0+8+r}
                    v_lshlrev_b32 v14, 16, v{P0+16+r}
                    v_and_b32 v15, s27, v{P0+16+r}
                    v_pk_add_f32 v[{w0}:{w0+1}], v[{w0}:{w0+1}], v[12:13]
                    v_lshlrev_b32 v12, 16, v{P0+24+r}
                    v_and_b32 v13, s27, v{P0+24+r}
                    v_pk_add_f32 v[14:15], v[14:15], v[12:13]
                    v_pk_add_f32 v[{w0}:{w0+1}], v[{w0}:{w0+1}], v[14:15]
                    v_cvt_pk_bf16_f32 v{P0+r}, v{w0}, v{w0+1}
                    """)
                a(f"""
                v_lshlrev_b32 v{w0}, 16, v{P0+r}
                v_and_b32 v{w0+1}, s27, v{P0+r}
                v_lshlrev_b32 v12, 16, v{X+r}
                v_and_b32 v13, s27, v{X+r}
                v_pk_add_f32 v[{w0}:{w0+1}], v[{w0}:{w0+1}], v[12:13]
                v_cvt_pk_bf16_f32 v{X+r}, v{w0}, v{w0+1}
                """)
        def prefetch():
            a(f"""
            s_mov_b32 s31, 0
            s_cmp_ge_u32 s26, {64//US-1}
            s_cbranch_scc1 {L}_np
            """)
            if nfl: a(f"v_cmp_eq_u32 vcc, 0, v9\ns_cbranch_vccnz {L}_np")
            a("s_mov_b32 s31, 1")
            loads(1-st)
            a.label(L+'_np')
        if typ=='T3':
            xchg(X)
            for j in range(2): a(f"buffer_store_dwordx4 v[{X+4*j}:{X+4*j+3}], v5, s[16:19], s22 offen offset:{128*j}")
            a("s_add_u32 s22, s22, 32768")
            a("s_waitcnt vmcnt(2)")
            prefetch()
            a(f"""
            s_add_u32 s26, s26, 1
            s_cmp_eq_u32 s31, 1
            s_cbranch_scc0 {L}_slow
            s_mov_b32 s31, 0
            s_branch {lab}_i{1-st}
{L}_slow:
            s_cmp_ge_u32 s26, {64//US}
            s_cbranch_scc1 {lab}_done
            """)
            wait_flags(a,L+'ws',nfl,'s25',fail,spin)
            loads(1-st)
            if st==1: a(f"s_branch {lab}_i0")
            return
        if nfl: a("s_waitcnt vmcnt(0)")
        prefetch()
        a("s_add_u32 s13, s22, 4096")
        for j in range(2):
            a(f"buffer_store_dwordx4 v[{X+4*j}:{X+4*j+3}], v4, s[8:11], {'s22' if j==0 else 's13'} offen sc1")
        a("v_mov_b32 v12, 0\nv_mov_b32 v13, 0\nv_mov_b32 v14, 0\nv_mov_b32 v15, 0")
        for r in range(0,8,2):
            a(f"v_dot2_f32_bf16 v12, v{X+r}, v8, v12\nv_dot2_f32_bf16 v13, v{X+r}, v{X+r}, v13\nv_dot2_f32_bf16 v14, v{X+r+1}, v8, v14\nv_dot2_f32_bf16 v15, v{X+r+1}, v{X+r+1}, v15")
        a(f"""
        v_pk_add_f32 v[12:13], v[12:13], v[14:15]
        s_nop 1
        v_add_f32_dpp v12, v12, v12 row_ror:8 row_mask:0xf bank_mask:0xf
        v_add_f32_dpp v13, v13, v13 row_ror:8 row_mask:0xf bank_mask:0xf
        v_mov_b32 v10, v12
        v_mov_b32 v11, v13
        v_permlane16_swap_b32 v12, v10
        v_permlane16_swap_b32 v13, v11
        v_pk_add_f32 v[12:13], v[12:13], v[10:11]
        v_mov_b32 v10, v12
        v_mov_b32 v11, v13
        v_permlane32_swap_b32 v12, v10
        v_permlane32_swap_b32 v13, v11
        v_pk_add_f32 v[12:13], v[12:13], v[10:11]
        s_mov_b64 exec, 0xff
        ds_write_b64 v7, v[12:13] offset:{256*st}
        s_mov_b64 exec, -1
        s_waitcnt lgkmcnt(0)
        s_barrier
        ds_read_b64 v[10:11], v6 offset:{256*st}
        ds_read_b64 v[12:13], v6 offset:{256*st+64}
        ds_read_b64 v[14:15], v6 offset:{256*st+128}
        ds_read_b64 v[{W}:{W+1}], v6 offset:{256*st+192}
        s_waitcnt lgkmcnt(0)
        v_pk_add_f32 v[10:11], v[10:11], v[12:13]
        v_pk_add_f32 v[14:15], v[14:15], v[{W}:{W+1}]
        v_pk_add_f32 v[10:11], v[10:11], v[14:15]
        v_mul_f32 v10, 0x3b000000, v10
        v_mul_f32 v11, 0x3b000000, v11
        v_fma_f32 v11, -v10, v10, v11
        v_max_f32 v11, 0, v11
        v_cvt_pk_bf16_f32 v14, v10, v11
        v_lshlrev_b32 v12, 16, v14
        v_and_b32 v11, s27, v14
        v_add_f32 v11, 0x3727c5ac, v11
        v_cvt_pk_bf16_f32 v11, v11, v11
        v_and_b32 v11, s27, v11
        v_sqrt_f32 v11, v11
        v_mov_b32 v13, v12
        v_cvt_pk_bf16_f32 v11, v11, v11
        v_and_b32 v11, s27, v11
        v_rcp_f32 v14, v11
        s_nop 0
        v_mov_b32 v15, v14
        """)
        for r in range(8):
            w0=W+2*r
            a(f"""
            v_lshlrev_b32 v{w0}, 16, v{X+r}
            v_and_b32 v{w0+1}, s27, v{X+r}
            v_pk_add_f32 v[{w0}:{w0+1}], v[{w0}:{w0+1}], v[12:13] neg_lo:[0,1] neg_hi:[0,1]
            v_cvt_pk_bf16_f32 v{P0+r}, v{w0}, v{w0+1}
            v_lshlrev_b32 v{w0}, 16, v{P0+r}
            v_and_b32 v{w0+1}, s27, v{P0+r}
            v_pk_mul_f32 v[{w0}:{w0+1}], v[{w0}:{w0+1}], v[14:15]
            v_cvt_pk_bf16_f32 v{P0+r}, v{w0}, v{w0+1}
            """)
        a("s_add_u32 s13, s23, 4096")
        for j in range(2):
            a(f"buffer_store_dwordx4 v[{P0+4*j}:{P0+4*j+3}], v4, s[8:11], {'s23' if j==0 else 's13'} offen sc1")
        a(f"s_add_u32 s22, s22, {32768*US}\ns_add_u32 s23, s23, {32768*US}")
        a("s_waitcnt vmcnt(0)")
        flag_prev()
        a(f"""
        s_add_u32 s26, s26, 1
        s_cmp_eq_u32 s31, 1
        s_cbranch_scc0 {L}_slow
        s_mov_b32 s31, 0
        s_branch {lab}_i{1-st}
{L}_slow:
        s_cmp_ge_u32 s26, {64//US}
        s_cbranch_scc1 {lab}_done
        """)
        if nfl: wait_flags(a,L+'ws',nfl,'s25',fail,spin)
        loads(1-st)
        if st==1: a(f"s_branch {lab}_i0")
    iteration(0); iteration(1)
    a.label(lab+'_done')
    if typ=='T3': a('s_waitcnt vmcnt(0)'); roles.dbgts(a,11,[('s5',0),('s6',0)])
    if typ=='T0': roles.dbgts(a,12,[('s5',0),('s6',0)])

def emit_AWO(a, cfg, fail):
    spin=cfg.get('spin',SPIN_DEFAULT)
    lab=a.new('AWO')
    loc=cfg.get('st','')
    a("""
    s_load_dwordx2 s[12:13], s[0:1], 16      ; A_wo [512][512]
    s_waitcnt lgkmcnt(0)
    s_mov_b32 s14, 524288
    s_mov_b32 s15, 0x20000
    v_lshrrev_b32 v61, 4, v0
    v_and_b32 v60, 15, v0
    v_lshlrev_b32 v62, 2, v61
    v_xor_b32 v62, v60, v62
    v_lshlrev_b32 v62, 4, v62
    v_lshl_add_u32 v62, v61, 10, v62
    s_lshl_b32 s32, s5, 8
    v_add_u32 v40, s32, v62
    s_lshl_b32 s32, s6, 2
    """)
    tr_addr32(a,44,'s32',256,lambda r,o: a(f"v_lshlrev_b32 v{o}, 2, v{r}"),0)
    a("v_add_u32 v45, 0x10000, v44")
    a("s_lshl_b32 s33, s6, 17\ns_lshl_b32 s34, s6, 15")
    for n in range(32):
        a(f"s_add_u32 m0, s34, {4*n*256}\ns_add_u32 s35, s33, {4*n*1024}\nbuffer_load_dwordx4 v40, s[12:15], s35 offen lds")
    a("s_waitcnt vmcnt(0)\ns_barrier")
    for ks in range(32):
        for p in range(2):
            a(f"ds_read_b64_tr_b16 a[{4*ks+2*p}:{4*ks+2*p+1}], v{44+(ks>>4)} offset:{(ks&15)*4096+p*2048}")
        if ks%4==3: a("s_waitcnt lgkmcnt(4)")
    a("s_waitcnt lgkmcnt(0)\ns_barrier")
    a(f"""
    v_lshlrev_b32 v1, 4, v0
    s_lshl_b32 s32, s6, 13
    v_add_u32 v2, s32, v1
    s_lshl_b32 s32, s5, 13
    s_lshl_b32 s33, s6, 11
    s_add_u32 s32, s32, s33
    v_add_u32 v3, s32, v1
    s_mul_i32 s32, s4, {6*64*32768}
    s_add_u32 s43, s32, {xs(T_OA1,0)}
    s_add_u32 s44, s32, {xs(T_YA1,0)}
    s_lshl_b32 s32, s4, 13
    s_add_u32 s45, s32, {WS_FLAG+FL_OA}
    s_lshl_b32 s33, s5, 4
    s_lshl_b32 s34, s6, 2
    s_add_u32 s33, s33, s34
    s_add_u32 s46, s32, {WS_FLAG+FL_YA}
    s_add_u32 s46, s46, s33
    s_mov_b32 s40, 0
    s_mov_b32 s42, 0
    """)
    def dma(bufreg):
        out=[]
        for n in range(8):
            out.append(f"s_lshl_b32 s32, s6, 13\ns_add_u32 s32, s32, {bufreg}\ns_add_u32 m0, s32, {(n>>2)*4096}\ns_add_u32 s33, s43, {(n>>2)*4096}\nbuffer_load_dwordx4 v2, s[8:11], s33 offen offset:{(n&3)*1024} sc1 lds")
        return out
    cfg['init_wait'](a,lab)
    wait_flags(a,lab+'w0',32,'s45',fail,spin)
    for d in dma_list(8,13,'s42'): a(d)
    a("s_add_u32 s43, s43, 32768\ns_add_u32 s45, s45, 128\ns_waitcnt vmcnt(0)\ns_barrier")
    a.label(lab+'_unit')
    a("v_add_u32 v5, s42, v1\ns_xor_b32 s50, s42, 32768")
    poll_issue(a,32,'s45',10,9)
    XR=64; NR=8; AHEAD=6
    def rd(i): a(f"ds_read_b128 v[{XR+4*(i%NR)}:{XR+4*(i%NR)+3}], v5 offset:{i*1024}")
    for i in range(AHEAD): rd(i)
    dl=dma_list(8,13,'s50')
    def mf(ks):
        r=XR+4*(ks%NR); c='0' if ks==0 else "v[32:47]"
        a(f"v_mfma_f32_32x32x16_bf16 v[32:47], a[{4*ks}:{4*ks+3}], v[{r}:{r+3}], {c}")
    def check():
        a(f"""
        s_waitcnt vmcnt(0)
        s_mov_b32 s48, 0
        s_cmp_ge_u32 s40, 63
        s_cselect_b32 s49, 1, 0
        v_cmp_eq_u32 vcc, 0, v9
        s_cmp_eq_u64 vcc, 0
        s_cselect_b32 s48, 1, 0
        s_cmp_eq_u32 s49, 1
        s_cselect_b32 s48, 0, s48
        """)
    gemm_loop(a,lab,32,mf,rd,AHEAD,20,check,dl)
    pack_tile(a,32,96)
    for f in range(2):
        a(f"buffer_store_dwordx4 v[{96+4*f}:{99+4*f}], v3, s[8:11], s44 offen offset:{f*1024} {loc}")
    a("s_add_u32 s44, s44, 32768\ns_add_u32 s40, s40, 1\ns_waitcnt vmcnt(0)")
    set_flag(a,'s46',vtmp=(11,12),scope=loc)
    a(f"""
    s_add_u32 s46, s46, 128
    s_mov_b32 s42, s50
    s_cmp_eq_u32 s48, 0
    s_cbranch_scc1 {lab}_slow
    s_add_u32 s43, s43, 32768
    s_add_u32 s45, s45, 128
    s_barrier
    s_branch {lab}_unit
{lab}_slow:
    s_cmp_ge_u32 s40, 64
    s_cbranch_scc1 {lab}_done
    """)
    wait_flags(a,lab+'ws',32,'s45',fail,spin)
    for d in dma_list(8,13,'s42'): a(d)
    a(f"""
    s_add_u32 s43, s43, 32768
    s_add_u32 s45, s45, 128
    s_waitcnt vmcnt(0)
    s_barrier
    s_branch {lab}_unit
{lab}_done:
    """)

def emit_P(a, cfg, fail):
    spin=cfg.get('spin',SPIN_DEFAULT)
    lab=a.new('P')
    a("""
    s_load_dwordx2 s[12:13], s[0:1], 40      ; Wq
    s_load_dwordx2 s[16:17], s[0:1], 48      ; Wk
    s_load_dwordx2 s[20:21], s[0:1], 56      ; Wv
    s_waitcnt lgkmcnt(0)
    s_mov_b32 s14, 4194304
    s_mov_b32 s15, 0x20000
    s_mov_b32 s18, 4194304
    s_mov_b32 s19, 0x20000
    s_mov_b32 s22, 4194304
    s_mov_b32 s23, 0x20000
    v_lshrrev_b32 v61, 4, v0
    v_and_b32 v60, 15, v0
    v_lshlrev_b32 v62, 2, v61
    v_xor_b32 v62, v60, v62
    v_lshlrev_b32 v62, 4, v62
    v_lshl_add_u32 v62, v61, 13, v62
    s_lshl_b32 s32, s5, 8
    v_add_u32 v40, s32, v62
    s_lshl_b32 s32, s6, 2
    """)
    tr_addr32(a,44,'s32',256,lambda r,o: a(f"v_lshlrev_b32 v{o}, 2, v{r}"),0)
    a("v_add_u32 v45, 0x10000, v44")
    def wreg(M,ks,p):
        if M=='Q': b=128+4*ks+2*p; return f"v[{b}:{b+1}]"
        b={'K':0,'V':128}[M]+4*ks+2*p; return f"a[{b}:{b+1}]"
    rounds=[(M,h) for M in ('K','V','Q') for h in range(2)]
    srd={'K':'s[16:19]','V':'s[20:23]','Q':'s[12:15]'}
    def issue(i):
        M,h=rounds[i]
        a(f"s_lshl_b32 s33, s6, 19\ns_add_u32 s33, s33, {h*256*8192}\ns_lshl_b32 s34, s6, 14\ns_add_u32 s34, s34, {(i&1)*65536}")
        for n in range(16):
            a(f"s_add_u32 m0, s34, {4*n*256}\ns_add_u32 s35, s33, {4*n*8192}\nbuffer_load_dwordx4 v40, {srd[M]}, s35 offen lds")
    issue(0); issue(1)
    for i,(M,h) in enumerate(rounds):
        a(f"s_waitcnt vmcnt({16 if i+1<len(rounds) else 0})\ns_barrier")
        for ksl in range(16):
            ks=16*h+ksl
            for p in range(2):
                a(f"ds_read_b64_tr_b16 {wreg(M,ks,p)}, v{44+(i&1)} offset:{ksl*4096+p*2048}")
            if ksl%4==3: a("s_waitcnt lgkmcnt(4)")
        a("s_waitcnt lgkmcnt(0)\ns_barrier")
        if i+2<len(rounds): issue(i+2)
    def W(M,ks):
        if M=='Q': return f"v[{128+4*ks}:{131+4*ks}]"
        b={'K':0,'V':128}[M]+4*ks; return f"a[{b}:{b+3}]"
    a(f"""
    v_lshlrev_b32 v1, 4, v0
    s_lshl_b32 s32, s6, 13
    v_add_u32 v2, s32, v1
    s_lshl_b32 s32, s6, 11
    v_add_u32 v3, s32, v1
    s_mul_i32 s32, s4, {6*64*32768}
    s_add_u32 s43, s32, {xs(T_XNB1,0)}
    s_lshl_b32 s32, s4, 14
    s_add_u32 s45, s32, {WS_FLAG+FL_XN+64*128}
    s_lshl_b32 s32, s4, 11
    s_add_u32 s32, s32, s5
    s_mul_i32 s48, s32, {QKV_BLK}
    s_lshl_b32 s49, s32, 5
    s_lshl_b32 s33, s6, 2
    s_add_u32 s49, s49, s33
    s_add_u32 s49, s49, {WS_FLAG+FL_P}
    s_mov_b32 s40, 0
    s_mov_b32 s42, 0
    s_mov_b32 s47, 0
    """)
    def dma(bufreg):
        out=[]
        for n in range(8):
            out.append(f"s_lshl_b32 s32, s6, 13\ns_add_u32 s32, s32, {bufreg}\ns_add_u32 m0, s32, {(n>>2)*4096}\ns_add_u32 s33, s43, {(n>>2)*4096}\nbuffer_load_dwordx4 v2, s[8:11], s33 offen offset:{(n&3)*1024} sc1 lds")
        return out
    cfg['init_wait'](a,lab)
    wait_flags(a,lab+'w0',NXN,'s45',fail,spin,vtmp=(8,9))
    for d in dma_list(8,13,'s42'): a(d)
    a("s_add_u32 s43, s43, 32768\ns_add_u32 s45, s45, 128\ns_waitcnt vmcnt(0)\ns_barrier")
    a.label(lab+'_unit')
    a("v_add_u32 v5, s42, v1\ns_xor_b32 s50, s42, 32768")
    poll_issue(a,NXN,'s45',10,9)
    XR=64; NR=8; ACC=[32,48]; PK=96
    def rd(ks): a(f"ds_read_b128 v[{XR+4*(ks%NR)}:{XR+4*(ks%NR)+3}], v5 offset:{ks*1024}")
    AHEAD=6
    for i in range(AHEAD): rd(i)
    def epi(t):
        acc=ACC[t]; out=[]; pk=PK+8*t
        for i in range(8): out.append(f"v_cvt_pk_bf16_f32 v{pk+i}, v{acc+2*i}, v{acc+2*i+1}")
        off=[8192,16384][t]
        out.append(f"s_add_u32 s33, s48, {off}\nbuffer_store_dwordx4 v[{pk}:{pk+3}], v3, s[8:11], s33 offen sc1")
        out.append(f"buffer_store_dwordx4 v[{pk+4}:{pk+7}], v3, s[8:11], s33 offen offset:1024 sc1")
        return out
    dl=dma_list(8,13,'s50')
    def step(ks):
        r=XR+4*(ks%NR)
        a(f"s_waitcnt lgkmcnt({min(AHEAD-1,31-ks)})")
        a(f"v_mfma_f32_32x32x16_bf16 v[32:47], {W('K',ks)}, v[{r}:{r+3}], {'0' if ks==0 else 'v[32:47]'}")
        a(f"v_mfma_f32_32x32x16_bf16 v[48:63], v[{r}:{r+3}], {W('V',ks)}, {'0' if ks==0 else 'v[48:63]'}")
        if ks+AHEAD<32: rd(ks+AHEAD)
    def check():
        a(f"s_cmp_eq_u32 s47, 0\ns_cbranch_scc1 {lab}_nq0\ns_waitcnt vmcnt(1)\ns_sub_u32 s33, s49, 1024\ns_add_u32 s34, s33, 16\ns_cmp_eq_u32 s47, 2\ns_cselect_b32 s33, s34, s33")
        set_flag(a,'s33',vtmp=(11,12))
        a(f"""
        s_mov_b32 s47, 0
        s_waitcnt vmcnt(1)
        s_branch {lab}_nq
{lab}_nq0:
        s_waitcnt vmcnt(0)
{lab}_nq:
        s_mov_b32 s51, 0
        s_cmp_ge_u32 s40, 63
        s_cselect_b32 s52, 1, 0
        v_cmp_eq_u32 vcc, 0, v9
        s_cmp_eq_u64 vcc, 0
        s_cselect_b32 s51, 1, 0
        s_cmp_eq_u32 s52, 1
        s_cselect_b32 s51, 0, s51
        """)
    for ks in range(13): step(ks)
    check()
    a(f"s_cmp_eq_u32 s51, 0\ns_cbranch_scc1 {lab}_vn")
    for j in range(8): step(13+j); a(dl[j])
    a(f"s_branch {lab}_ve\n{lab}_vn:")
    for j in range(8): step(13+j)
    a.label(lab+'_ve')
    for ks in range(21,32): step(ks)
    for x in epi(0): a(x)
    for x in epi(1): a(x)
    a(f"""
    s_mov_b32 s54, 1
    s_and_b32 s32, s40, 2
    s_cmp_eq_u32 s32, 0
    s_cbranch_scc1 {lab}_noq
    """)
    for i in range(AHEAD): rd(i)
    for ks in range(32):
        r_=XR+4*(ks%NR)
        a(f"s_waitcnt lgkmcnt({min(AHEAD-1,31-ks)})")
        a(f"v_mfma_f32_32x32x16_bf16 v[32:47], {W('Q',ks)}, v[{r_}:{r_+3}], {'0' if ks==0 else 'v[32:47]'}")
        if ks+AHEAD<32: rd(ks+AHEAD)
        if ks==22:
            a("s_waitcnt vmcnt(0)")
            set_flag(a,'s49',vtmp=(11,12))
    for i in range(8): a(f"v_cvt_pk_bf16_f32 v{PK+i}, v32+{2*i}, v33+{2*i}".replace(f"v32+{2*i}",f"v{32+2*i}").replace(f"v33+{2*i}",f"v{33+2*i}"))
    a(f"""
    buffer_store_dwordx4 v[{PK}:{PK+3}], v3, s[8:11], s48 offen sc1
    buffer_store_dwordx4 v[{PK+4}:{PK+7}], v3, s[8:11], s48 offen offset:1024 sc1
    s_mov_b32 s54, 2
{lab}_noq:
    s_add_u32 s48, s48, {32*QKV_BLK}
    s_add_u32 s49, s49, 1024
    s_add_u32 s40, s40, 1
    s_mov_b32 s42, s50
    s_cmp_eq_u32 s51, 0
    s_cbranch_scc1 {lab}_slow
    s_mov_b32 s47, s54
    s_add_u32 s43, s43, 32768
    s_add_u32 s45, s45, 128
    s_cmp_eq_u32 s54, 2
    s_cbranch_scc1 {lab}_fq
    s_waitcnt vmcnt(4)
{lab}_fq:
    s_barrier
    s_branch {lab}_unit
{lab}_slow:
    s_waitcnt vmcnt(0)
    s_sub_u32 s33, s49, 1024
    s_add_u32 s34, s33, 16
    s_cmp_eq_u32 s54, 2
    s_cselect_b32 s33, s34, s33
    """)
    set_flag(a,'s33',vtmp=(11,12))
    a(f"""
    s_mov_b32 s47, 0
    s_cmp_ge_u32 s40, 64
    s_cbranch_scc1 {lab}_done
    """)
    wait_flags(a,lab+'ws',NXN,'s45',fail,spin,vtmp=(8,9))
    for d in dma_list(8,13,'s42'): a(d)
    a(f"""
    s_add_u32 s43, s43, 32768
    s_add_u32 s45, s45, 128
    s_waitcnt vmcnt(0)
    s_barrier
    s_branch {lab}_unit
{lab}_done:
    """)

def emit_ATT(a, cfg, fail):
    spin=cfg.get('spin',SPIN_DEFAULT)
    lab=a.new('ATT')
    STG=131072
    a(f"""
    s_load_dwordx2 s[12:13], s[0:1], 40      ; Wq
    s_waitcnt lgkmcnt(0)
    s_mov_b32 s14, 4194304
    s_mov_b32 s15, 0x20000
    v_lshrrev_b32 v61, 4, v0
    v_and_b32 v60, 15, v0
    v_lshlrev_b32 v62, 2, v61
    v_xor_b32 v62, v60, v62
    v_lshlrev_b32 v62, 4, v62
    v_lshl_add_u32 v62, v61, 13, v62
    s_lshl_b32 s32, s5, 8
    v_add_u32 v40, s32, v62
    s_lshl_b32 s32, s6, 2
    """)
    tr_addr32(a,44,'s32',256,lambda r_,o: a(f"v_lshlrev_b32 v{o}, 2, v{r_}"),STG)
    a("v_lshlrev_b32 v46, 4, v0\ns_lshl_b32 s32, s6, 15\nv_add_u32 v46, s32, v46")
    for rnd in range(4):
        a(f"s_lshl_b32 s33, s6, 18\ns_add_u32 s33, s33, {rnd*128*8192}\ns_lshl_b32 s34, s6, 13\ns_add_u32 s34, s34, {STG}")
        for n in range(8):
            a(f"s_add_u32 m0, s34, {4*n*256}\ns_add_u32 s35, s33, {4*n*8192}\nbuffer_load_dwordx4 v40, s[12:15], s35 offen lds")
        a("s_waitcnt vmcnt(0)\ns_barrier")
        for ksl in range(8):
            for p in range(2):
                a(f"ds_read_b64_tr_b16 v[{64+4*ksl+2*p}:{65+4*ksl+2*p}], v44 offset:{ksl*4096+p*2048}")
        a("s_waitcnt lgkmcnt(0)")
        for ksl in range(8):
            a(f"ds_write_b128 v46, v[{64+4*ksl}:{67+4*ksl}] offset:{(8*rnd+ksl)*1024}")
        a("s_waitcnt lgkmcnt(0)\ns_barrier")
    a(f"""
    s_lshr_b32 s40, s6, 1                    ; layer
    s_and_b32 s41, s6, 1                     ; unit
    s_lshl_b32 s32, s40, 6
    s_add_u32 s32, s32, s41
    s_lshl_b32 s32, s32, 5
    s_add_u32 s32, s32, s5                   ; (l*64+u)*32 + h
    s_mul_i32 s43, s32, {QKV_BLK}
    s_lshl_b32 s44, s32, 12
    s_add_u32 s44, s44, {WS_KM}
    s_lshl_b32 s45, s32, 4
    s_add_u32 s45, s45, {WS_FLAG+FL_CH}
    s_lshl_b32 s49, s32, 5
    s_add_u32 s49, s49, {WS_FLAG+FL_P}
    s_lshl_b32 s33, s40, 6
    s_add_u32 s33, s33, s41                  ; l*64+u
    s_mul_i32 s34, s40, {6*64*32768}
    s_lshl_b32 s35, s41, 15
    s_add_u32 s50, s34, s35
    s_add_u32 s50, s50, {xs(T_XNB1,0)}
    s_lshl_b32 s34, s40, 14
    s_lshl_b32 s35, s41, 7
    s_add_u32 s51, s34, s35
    s_add_u32 s51, s51, {WS_FLAG+FL_XN+64*128}
    s_lshl_b32 s46, s32, 2
    s_add_u32 s46, s46, {WS_FLAG+FL_OB}
    s_lshl_b32 s33, s40, 6
    s_add_u32 s33, s33, s41
    s_lshl_b32 s33, s33, 18
    s_lshl_b32 s34, s5, 13
    s_add_u32 s47, s33, s34
    s_add_u32 s47, s47, {WS_OB}
    s_lshl_b32 s42, s6, 12
    s_add_u32 s42, s42, {STG}
    v_lshlrev_b32 v1, 4, v0
    v_lshrrev_b32 v60, 5, v0
    v_and_b32 v61, 7, v0
    v_lshlrev_b32 v2, 4, v61
    v_lshl_add_u32 v2, v60, 7, v2
    v_add_u32 v2, s42, v2
    v_and_b32 v61, 31, v0
    v_lshlrev_b32 v3, 4, v61
    v_lshl_add_u32 v3, v60, 3, v3
    v_add_u32 v3, s42, v3
    v_mov_b32 v7, 0xff7fffff
    v_mov_b32 v12, 0x3f803f80
    v_mov_b32 v13, 0x3f803f80
    v_mov_b32 v14, 0x3f803f80
    v_mov_b32 v15, 0x3f803f80
    s_mov_b32 s48, 0x3e0293ee
    """)
    a("v_mov_b32 v4, v1\nv_add_u32 v5, 0x10000, v1")
    causal_masks(a,64)
    K=32; V=64; KM=160; VM=192
    XA=96
    QV=128
    def xloads():
        out=[]
        for ks in range(32):
            pre=f"s_add_u32 s32, s50, {(ks>>2)*4096}\n" if ks%4==0 else ""
            out.append(pre+f"buffer_load_dwordx4 a[{XA+4*ks}:{XA+4*ks+3}], v1, s[8:11], s32 offen offset:{(ks&3)*1024} sc1")
        return out
    def xadv(): a("s_add_u32 s50, s50, 131072\ns_add_u32 s51, s51, 512")
    def kvloads():
        out=[]
        for blk,reg in ((1,K),(2,V)):
            for g in range(2):
                for j in range(4):
                    rr=reg+4*(4*g+j)
                    pre=f"s_add_u32 s32, s43, {blk*8192+g*4096}\n" if j==0 else ""
                    out.append(pre+f"buffer_load_dwordx4 a[{rr}:{rr+3}], v1, s[8:11], s32 offen offset:{j*1024} sc1")
        return out
    def core(tag, light):
        L=f"{lab}_{tag}"
        a(f"""
        s_waitcnt vmcnt(0)
        v_cmp_eq_u32 vcc, 0, v30
        s_cbranch_vccnz {L}_chw
        """)
        def kmdma():
            a("s_mov_b32 m0, s42")
            for j in range(4): a(f"buffer_load_dwordx4 v1, s[8:11], s44 offen offset:{j*1024} sc1 lds")
        def stok():
            for ks in range(8):
                c0='0' if ks==0 else 'v[32:47]'
                a(f"v_mfma_f32_32x32x16_bf16 v[32:47], a[{K+4*ks}:{K+4*ks+3}], v[{QV+4*ks}:{QV+4*ks+3}], {c0}")
            for r_ in range(16): a(f"v_cndmask_b32 v{32+r_}, v7, v{32+r_}, s[{64+2*r_}:{65+2*r_}]")
            a("""
            v_max3_f32 v24, v32, v33, v34
            v_max3_f32 v25, v35, v36, v37
            v_max3_f32 v24, v24, v38, v39
            v_max3_f32 v25, v25, v40, v41
            v_max3_f32 v24, v24, v42, v43
            v_max3_f32 v25, v25, v44, v45
            v_max3_f32 v24, v24, v46, v47
            """)
            for W_ in range(4): a(f"v_mov_b32 v{VM+4*W_+2}, 0\nv_mov_b32 v{VM+4*W_+3}, 0")
        xl=xloads()
        kmdma(); stok()
        a(f"s_branch {L}_kmw")
        a.label(L+'_chw')
        stok()
        if light:
            a(f"s_cmp_eq_u32 s53, 0\ns_cbranch_scc1 {L}_b1")
            for x in xl: a(x)
            xadv()
            a(f"s_mov_b32 s53, 2\n{L}_b1:")
        wait_flags(a,L+'wc',4,'s45',fail,spin,sleep=0)
        kmdma()
        a.label(L+'_kmw')
        a("s_waitcnt vmcnt(0)")
        for ks in range(8): a(f"ds_read_b128 v[{KM+4*ks}:{KM+4*ks+3}], v2 offset:{ks*256}")
        for W_ in range(4): a(f"ds_read_b64 v[{VM+4*W_}:{VM+4*W_+1}], v3 offset:{2048+W_*512}")
        for ks in range(8):
            a(f"s_waitcnt lgkmcnt({11-ks})")
            c1='0' if ks==0 else 'v[48:63]'
            a(f"v_mfma_f32_32x32x16_bf16 v[48:63], v[{KM+4*ks}:{KM+4*ks+3}], v[{QV+4*ks}:{QV+4*ks+3}], {c1}")
        a("""
        v_max3_f32 v25, v25, v48, v49
        v_max3_f32 v24, v24, v50, v51
        v_max_f32 v24, v24, v25
        v_mov_b32 v25, v24
        v_permlane32_swap_b32 v24, v25
        v_max_f32 v24, v24, v25
        v_mul_f32 v24, s48, v24
        """)
        for r_ in range(20): a(f"v_fma_f32 v{32+r_}, v{32+r_}, s48, -v24")
        for r_ in range(20): a(f"v_exp_f32 v{32+r_}, v{32+r_}")
        a("v_add_f32 v24, v32, v33\nv_add_f32 v25, v34, v35")
        for r_ in range(4,20,2): a(f"v_add_f32 v24, v24, v{32+r_}\nv_add_f32 v25, v25, v{33+r_}")
        a("""
        v_add_f32 v24, v24, v25
        v_mov_b32 v25, v24
        v_permlane32_swap_b32 v24, v25
        v_add_f32 v24, v24, v25
        v_rcp_f32 v24, v24
        """)
        for r_ in range(20): a(f"v_mul_f32 v{32+r_}, v{32+r_}, v24")
        for i in range(8): a(f"v_cvt_pk_bf16_f32 v{16+i}, v{32+2*i}, v{33+2*i}")
        a("""
        v_cvt_pk_bf16_f32 v8, v48, v49
        v_cvt_pk_bf16_f32 v9, v50, v51
        v_mov_b32 v10, 0
        v_mov_b32 v11, 0
        s_waitcnt lgkmcnt(0)
        """)
        OT=[64,80,96,112]; PK=208
        xq=list(xl) if light else []
        def mx(n=1):
            for _ in range(n):
                if xq:
                    LL=a.new(lab+'m'); a(f"s_cbranch_scc0 {LL}"); x=xq.pop(0)
                    a(x)
                    if x.startswith('s_add'): a("s_cmp_eq_u32 s53, 1")
                    a.label(LL)
        def pv(W_):
            o=OT[W_]
            a(f"v_mfma_f32_32x32x16_bf16 v[{o}:{o+15}], a[{V+8*W_}:{V+8*W_+3}], v[16:19], 0"); mx()
            a(f"v_mfma_f32_32x32x16_bf16 v[{o}:{o+15}], a[{V+8*W_+4}:{V+8*W_+7}], v[20:23], v[{o}:{o+15}]"); mx()
            a(f"v_mfma_f32_32x32x16_bf16 v[{o}:{o+15}], v[{VM+4*W_}:{VM+4*W_+3}], v[8:11], v[{o}:{o+15}]"); mx()
        def fin(W_):
            o=OT[W_]
            for i in range(8):
                a(f"v_cvt_pk_bf16_f32 v{PK+8*W_+i}, v{o+2*i}, v{o+2*i+1}")
                if i%2==1: mx()
        def sto(W_):
            if W_==2: a("s_add_u32 s32, s47, 4096")
            for f in range(2):
                fi=2*W_+f
                a(f"buffer_store_dwordx4 v[{PK+4*fi}:{PK+4*fi+3}], v1, s[8:11], {'s47' if fi<4 else 's32'} offen offset:{(fi&3)*1024} sc1")
        if light: a("s_cmp_eq_u32 s53, 1")
        pv(0); pv(1); pv(2); fin(0); pv(3); fin(1); fin(2); fin(3)
        if light:
            mx(32)
            a(f"s_cbranch_scc0 {L}_k2")
            xadv()
            a.label(L+'_k2')
        for W_ in range(4): sto(W_)
        a(f"""
        s_add_u32 s43, s43, {2*32*QKV_BLK}
        s_add_u32 s44, s44, {2*32*4096}
        s_add_u32 s45, s45, 1024
        s_add_u32 s49, s49, 2048
        s_add_u32 s47, s47, {2*262144}
        s_add_u32 s41, s41, 2
        """)
    def eager():
        a("s_waitcnt vmcnt(0)")
        set_flag(a,'s46',vtmp=(10,11))
        a("s_add_u32 s46, s46, 256\ns_mov_b32 s52, 0")
    cfg['init_wait'](a,lab,sb=16)
    a("s_mov_b32 s52, 0")
    wait_flags(a,lab+'wx0',NXN,'s51',fail,spin)
    for x in xloads(): a(x)
    xadv()
    a.label(lab+'_H')
    roles.tsp(a,1,0,'s41',('s5','s40'))
    WR=64; NR=8; AHEAD=6
    seq=[(T,ks) for T in range(4) for ks in range(32)]
    def wrd(i):
        T,ks=seq[i]; r_=WR+4*(i%NR)
        a(f"ds_read_b128 v[{r_}:{r_+3}], v{4+(T>>1)} offset:{(T&1)*32768+ks*1024}")
    for i in range(AHEAD): wrd(i)
    QA=[96,112]
    pend=[]
    kvl=kvloads()
    for i,(T,ks) in enumerate(seq):
        acc=QA[T&1]; r_=WR+4*(i%NR)
        if T==0:
            if ks<8:
                LL=a.new(lab+'x')
                a(f"s_cmp_eq_u32 s52, 0\ns_cbranch_scc1 {LL}_0\ns_waitcnt vmcnt({39-ks})\ns_branch {LL}_1\n{LL}_0:\ns_waitcnt vmcnt({31-ks})\n{LL}_1:\ns_waitcnt lgkmcnt({AHEAD-1})")
            else: a(f"s_waitcnt vmcnt({31-ks}) lgkmcnt({AHEAD-1})")
        elif T==1 and ks==0:
            a(f"s_cmp_eq_u32 s52, 0\ns_cbranch_scc1 {lab}_nf")
            set_flag(a,'s46',vtmp=(10,11))
            a(f"s_add_u32 s46, s46, 256\ns_mov_b32 s52, 0\n{lab}_nf:")
            poll_issue(a,4,'s49',10,30)
            a(f"s_waitcnt lgkmcnt({AHEAD-1})")
        elif T==1 and ks==30:
            a(f"""
            s_waitcnt vmcnt(0)
            v_cmp_eq_u32 vcc, 0, v30
            s_cbranch_vccz {lab}_pok
            """)
            wait_flags(a,lab+'wp',4,'s49',fail,spin)
            a(f"{lab}_pok:\ns_waitcnt lgkmcnt({AHEAD-1})")
        else: a(f"s_waitcnt lgkmcnt({min(AHEAD-1,len(seq)-1-i)})")
        c='0' if ks==0 else f"v[{acc}:{acc+15}]"
        a(f"v_mfma_f32_32x32x16_bf16 v[{acc}:{acc+15}], v[{r_}:{r_+3}], a[{XA+4*ks}:{XA+4*ks+3}], {c}")
        if i+AHEAD<len(seq): wrd(i+AHEAD)
        if T>=1 and ks==0:
            pa=QA[(T-1)&1]
            pend=[f"v_cvt_pk_bf16_f32 v{QV+8*(T-1)+q}, v{pa+2*q}, v{pa+2*q+1}" for q in range(8)]
        if T>=1 and ks>=8 and pend: a(pend.pop(0))
        if T==2 and ks%2==1 and kvl: a(kvl.pop(0))
        if T==3 and ks==4: poll_issue(a,4,'s45',10,30)
    pa=QA[1]
    for q in range(8): a(f"v_cvt_pk_bf16_f32 v{QV+24+q}, v{pa+2*q}, v{pa+2*q+1}")
    roles.tsp(a,1,1,'s41',('s5','s40'))
    core('h',False)
    roles.tsp(a,1,5,'s41',('s5','s40'))
    eager()
    a(f"s_cmp_ge_u32 s41, 64\ns_cbranch_scc1 {lab}_done")
    a.label(lab+'_L')
    roles.tsp(a,1,0,'s41',('s5','s40'))
    wait_flags(a,lab+'wq',8,'s49',fail,spin)
    for g in range(2):
        a(f"s_add_u32 s32, s43, {g*4096}")
        for j in range(4):
            rr=QV+4*(4*g+j)
            a(f"buffer_load_dwordx4 v[{rr}:{rr+3}], v1, s[8:11], s32 offen offset:{j*1024} sc1")
    for x in kvloads(): a(x)
    poll_issue(a,NXN,'s51',11,31)
    poll_issue(a,4,'s45',10,30)
    a(f"""
    s_waitcnt vmcnt(0)
    s_mov_b32 s53, 0
    s_cmp_ge_u32 s41, 62
    s_cbranch_scc1 {lab}_np
    v_cmp_eq_u32 vcc, 0, v31
    s_cbranch_vccnz {lab}_np
    s_mov_b32 s53, 1
{lab}_np:
    """)
    core('l',True)
    roles.tsp(a,1,5,'s41',('s5','s40'))
    a(f"""
    s_cmp_eq_u32 s53, 1
    s_cbranch_scc0 {lab}_e1
    s_mov_b32 s52, 1
    s_branch {lab}_H
{lab}_e1:
    """)
    eager()
    a(f"""
    s_cmp_ge_u32 s41, 64
    s_cbranch_scc1 {lab}_done
    s_cmp_eq_u32 s53, 2
    s_cbranch_scc1 {lab}_H
    """)
    wait_flags(a,lab+'wxs',NXN,'s51',fail,spin)
    for x in xloads(): a(x)
    xadv()
    a(f"s_branch {lab}_H\n{lab}_done:")

def emit_O(a, cfg, fail):
    spin=cfg.get('spin',SPIN_DEFAULT)
    lab=a.new('O')
    a(f"""
    s_load_dwordx2 s[12:13], s[0:1], 64
    s_waitcnt lgkmcnt(0)
    s_mov_b32 s14, 4194304
    s_mov_b32 s15, 0x20000
    s_lshr_b32 s40, s5, 2                    ; kq
    s_and_b32 s41, s5, 3                     ; nq
    v_lshrrev_b32 v61, 4, v0
    v_and_b32 v60, 15, v0
    v_lshlrev_b32 v62, 2, v61
    v_xor_b32 v62, v60, v62
    v_lshlrev_b32 v62, 4, v62
    v_lshl_add_u32 v62, v61, 10, v62
    s_lshl_b32 s32, s41, 8
    v_add_u32 v40, s32, v62
    s_mov_b32 s32, 0
    """)
    tr_addr32(a,44,'s32',256,lambda r,o: a(f"v_lshlrev_b32 v{o}, 2, v{r}"),0)
    a("s_lshl_b32 s34, s6, 15\nv_add_u32 v44, s34, v44")
    for T in range(1,4): a(f"v_xor_b32 v{44+T}, {64*T}, v44")
    for rnd in range(2):
        a(f"s_lshl_b32 s33, s40, 20\ns_lshl_b32 s35, s6, 18\ns_add_u32 s33, s33, s35\ns_add_u32 s33, s33, {rnd*128*1024}")
        for n in range(32):
            a(f"s_add_u32 m0, s34, {4*n*256}\ns_add_u32 s35, s33, {4*n*1024}\nbuffer_load_dwordx4 v40, s[12:15], s35 offen lds")
        a("s_waitcnt vmcnt(0)")
        for ksl in range(8):
            ks=8*rnd+ksl
            for T in range(4):
                for p in range(2):
                    b=(T*16+ks)*4+2*p
                    a(f"ds_read_b64_tr_b16 a[{b}:{b+1}], v{44+T} offset:{ksl*4096+p*2048}")
            a("s_waitcnt lgkmcnt(4)")
        a("s_waitcnt lgkmcnt(0)")
    a(f"""
    s_barrier
    v_lshlrev_b32 v1, 4, v0
    s_lshl_b32 s32, s4, 24
    s_lshl_b32 s33, s40, 16
    s_lshl_b32 s34, s6, 14
    s_add_u32 s43, s32, s33
    s_add_u32 s43, s43, s34
    s_add_u32 s43, s43, {WS_OB}
    s_lshl_b32 s32, s4, 23
    s_lshl_b32 s33, s40, 15
    s_lshl_b32 s34, s41, 13
    s_add_u32 s44, s32, s33
    s_add_u32 s44, s44, s34
    s_lshl_b32 s34, s6, 11
    s_add_u32 s44, s44, s34
    s_add_u32 s44, s44, {WS_PO}
    s_lshl_b32 s32, s4, 13
    s_lshl_b32 s33, s40, 5
    s_lshl_b32 s34, s6, 3
    s_add_u32 s45, s32, s33
    s_add_u32 s45, s45, s34
    s_add_u32 s45, s45, {WS_FLAG+FL_OB}
    s_lshl_b32 s32, s4, 14
    s_lshl_b32 s33, s5, 4
    s_lshl_b32 s34, s6, 2
    s_add_u32 s46, s32, s33
    s_add_u32 s46, s46, s34
    s_add_u32 s46, s46, {WS_FLAG+FL_PO}
    s_lshl_b32 s32, s6, 14
    v_add_u32 v2, s32, v1
    s_lshl_b32 s32, s6, 12
    v_add_u32 v3, s32, v1
    s_mov_b32 s47, 0
    s_mov_b32 s51, 0
    """)
    XB=[64,128]
    def ld(st,ks):
        return f"s_add_u32 s32, s43, {(ks>>2)*4096}\nbuffer_load_dwordx4 v[{XB[st]+4*ks}:{XB[st]+4*ks+3}], v1, s[8:11], s32 offen offset:{(ks&3)*1024} sc1"
    def adv(): a("s_add_u32 s43, s43, 262144\ns_add_u32 s45, s45, 128")
    wait_flags(a,lab+'w0',2,'s45',fail,spin)
    for ks in range(16): a(ld(0,ks))
    adv()
    ACC=[0,16,32,48]
    AB=192
    def iteration(st):
        L=f"{lab}_i{st}"
        a.label(L)
        poll_issue(a,2,'s45',10,9)
        nl=[ld(1-st,ks) for ks in range(16)]
        for ks in range(16):
            a(f"s_waitcnt vmcnt({16-ks})") if ks<16 else None
            for T in range(4):
                acc=AB+16*T; c='0' if ks==0 else f"v[{acc}:{acc+15}]"; b=(T*16+ks)*4
                a(f"v_mfma_f32_32x32x16_bf16 v[{acc}:{acc+15}], a[{b}:{b+3}], v[{XB[st]+4*ks}:{XB[st]+4*ks+3}], {c}")
            if ks==15: break
        return nl
    def unit(st):
        L=f"{lab}_i{st}"
        a.label(L)
        poll_issue(a,2,'s45',10,9)
        for ks in range(8):
            a(f"s_waitcnt vmcnt({16-ks})")
            for T in range(4):
                acc=AB+16*T; c='0' if ks==0 else f"v[{acc}:{acc+15}]"; b=(T*16+ks)*4
                a(f"v_mfma_f32_32x32x16_bf16 v[{acc}:{acc+15}], a[{b}:{b+3}], v[{XB[st]+4*ks}:{XB[st]+4*ks+3}], {c}")
        a(f"""
        s_waitcnt vmcnt(0)
        s_mov_b32 s49, 0
        s_cmp_ge_u32 s47, 63
        s_cbranch_scc1 {L}_np
        v_cmp_eq_u32 vcc, 0, v9
        s_cbranch_vccnz {L}_np
        s_mov_b32 s49, 1
{L}_np:
        s_cmp_eq_u32 s49, 1
        """)
        nl=[ld(1-st,ks) for ks in range(16)]
        for ks in range(8,16):
            for T in range(4):
                acc=AB+16*T; b=(T*16+ks)*4
                a(f"v_mfma_f32_32x32x16_bf16 v[{acc}:{acc+15}], a[{b}:{b+3}], v[{XB[st]+4*ks}:{XB[st]+4*ks+3}], v[{acc}:{acc+15}]")
                if T%2==1:
                    LL=a.new(L+'m'); a(f"s_cbranch_scc0 {LL}"); a(nl.pop(0)); a(f"s_cmp_eq_u32 s49, 1\n{LL}:")
        a("v_add_u32 v4, s51, v2\nv_add_u32 v5, s51, v3")
        for q in range(16): a(f"ds_write_b128 v4, v[{AB+4*q}:{AB+3+4*q}] offset:{q*1024}")
        a("s_waitcnt lgkmcnt(0)\ns_barrier")
        R=16
        for w in range(4):
            for q in range(4): a(f"ds_read_b128 v[{AB+16*w+4*q}:{AB+3+16*w+4*q}], v5 offset:{w*16384+q*1024}")
        a("s_xor_b32 s51, s51, 65536\ns_waitcnt lgkmcnt(8)")
        for r in range(0,16,2): a(f"v_pk_add_f32 v[{AB+r}:{AB+1+r}], v[{AB+r}:{AB+1+r}], v[{AB+16+r}:{AB+17+r}]")
        a("s_waitcnt lgkmcnt(0)")
        for r in range(0,16,2): a(f"v_pk_add_f32 v[{AB+32+r}:{AB+33+r}], v[{AB+32+r}:{AB+33+r}], v[{AB+48+r}:{AB+49+r}]")
        for r in range(0,16,2): a(f"v_pk_add_f32 v[{AB+r}:{AB+1+r}], v[{AB+r}:{AB+1+r}], v[{AB+32+r}:{AB+33+r}]")
        for i in range(8): a(f"v_cvt_pk_bf16_f32 v{16+i}, v{AB+2*i}, v{AB+1+2*i}")
        a(f"""
        buffer_store_dwordx4 v[16:19], v1, s[8:11], s44 offen sc1
        buffer_store_dwordx4 v[20:23], v1, s[8:11], s44 offen offset:1024 sc1
        s_add_u32 s44, s44, 131072
        s_add_u32 s47, s47, 1
        s_waitcnt vmcnt(0)
        """)
        set_flag(a,'s46',vtmp=(10,11))
        a(f"""
        s_add_u32 s46, s46, 256
        s_cmp_eq_u32 s49, 1
        s_cbranch_scc0 {L}_slow
        """)
        adv()
        a(f"""
        s_branch {lab}_i{1-st}
{L}_slow:
        s_cmp_ge_u32 s47, 64
        s_cbranch_scc1 {lab}_done
        """)
        wait_flags(a,L+'ws',2,'s45',fail,spin)
        for ks in range(16): a(ld(1-st,ks))
        adv()
        if st==1: a(f"s_branch {lab}_i0")
    unit(0); unit(1)
    a.label(lab+'_done')

def emit_O5(a, cfg, fail):
    spin=cfg.get('spin',SPIN_DEFAULT)
    lab=a.new('O')
    a(f"""
    s_load_dwordx2 s[12:13], s[0:1], 64
    s_waitcnt lgkmcnt(0)
    s_mov_b32 s14, 4194304
    s_mov_b32 s15, 0x20000
    s_lshr_b32 s40, s5, 2                    ; kq
    s_and_b32 s41, s5, 3                     ; nq
    v_lshrrev_b32 v61, 4, v0
    v_and_b32 v60, 15, v0
    v_lshlrev_b32 v62, 2, v61
    v_xor_b32 v62, v60, v62
    v_lshlrev_b32 v62, 4, v62
    v_lshl_add_u32 v62, v61, 10, v62
    s_lshl_b32 s32, s41, 8
    v_add_u32 v40, s32, v62
    s_and_b32 s54, s6, 1                     ; nh
    s_lshr_b32 s55, s6, 1                    ; kh
    s_lshl_b32 s32, s54, 3
    """)
    tr_addr32(a,44,'s32',256,lambda r,o: a(f"v_lshlrev_b32 v{o}, 2, v{r}"),0)
    a("v_xor_b32 v45, 64, v44\nv_add_u32 v46, 0x10000, v44\nv_add_u32 v47, 0x10000, v45")
    def issue(i):
        a(f"s_lshl_b32 s33, s40, 20\ns_lshl_b32 s35, s6, 16\ns_add_u32 s33, s33, s35\ns_add_u32 s33, s33, {i*256*1024}\ns_lshl_b32 s34, s6, 14\ns_add_u32 s34, s34, {(i&1)*65536}")
        for n in range(16):
            a(f"s_add_u32 m0, s34, {4*n*256}\ns_add_u32 s35, s33, {4*n*1024}\nbuffer_load_dwordx4 v40, s[12:15], s35 offen lds")
    issue(0); issue(1)
    for i in range(4):
        L=a.new(lab+'w')
        a(f"s_waitcnt vmcnt({16 if i<3 else 0})\ns_barrier\ns_cmp_lg_u32 s55, {i>>1}\ns_cbranch_scc1 {L}")
        for ksl in range(16):
            ks=16*(i&1)+ksl
            for T in range(2):
                for p in range(2):
                    b=(T*32+ks)*4+2*p
                    a(f"ds_read_b64_tr_b16 a[{b}:{b+1}], v{44+T+2*(i&1)} offset:{ksl*4096+p*2048}")
            if ksl%2==1: a("s_waitcnt lgkmcnt(4)")
        a(f"{L}:\ns_waitcnt lgkmcnt(0)\ns_barrier")
        if i+2<4: issue(i+2)
    a(f"""
    v_lshlrev_b32 v1, 4, v0
    s_lshl_b32 s32, s6, 14
    v_add_u32 v2, s32, v1
    s_lshl_b32 s32, s4, 24
    s_lshl_b32 s33, s40, 16
    s_add_u32 s43, s32, s33
    s_add_u32 s43, s43, {WS_OB}
    s_lshl_b32 s32, s4, 23
    s_lshl_b32 s33, s40, 15
    s_lshl_b32 s34, s41, 13
    s_add_u32 s44, s32, s33
    s_add_u32 s44, s44, s34
    s_lshl_b32 s34, s54, 12
    s_add_u32 s44, s44, s34
    s_lshl_b32 s34, s55, 11
    s_add_u32 s44, s44, s34
    s_add_u32 s44, s44, {WS_PO}
    s_lshl_b32 s32, s4, 13
    s_lshl_b32 s33, s40, 5
    s_lshl_b32 s34, s6, 3
    s_add_u32 s45, s32, s33
    s_add_u32 s45, s45, s34
    s_add_u32 s45, s45, {WS_FLAG+FL_OB}
    s_lshl_b32 s32, s4, 14
    s_lshl_b32 s33, s5, 4
    s_lshl_b32 s34, s6, 2
    s_add_u32 s46, s32, s33
    s_add_u32 s46, s46, s34
    s_add_u32 s46, s46, {WS_FLAG+FL_PO}
    s_mov_b32 s47, 0
    s_mov_b32 s42, 0
    s_mov_b32 s52, 0
    """)
    def dma(bufreg):
        out=[]
        for n in range(16):
            out.append(f"s_lshl_b32 s32, s6, 14\ns_add_u32 s32, s32, {bufreg}\ns_add_u32 m0, s32, {(n>>2)*4096}\ns_add_u32 s33, s43, {(n>>2)*4096}\nbuffer_load_dwordx4 v2, s[8:11], s33 offen offset:{(n&3)*1024} sc1 lds")
        return out
    def adv(): a("s_add_u32 s43, s43, 262144\ns_add_u32 s45, s45, 128")
    cfg['init_wait'](a,lab)
    wait_flags(a,lab+'w0',2,'s45',fail,spin)
    for d in dma_list(16,14,'s42'): a(d)
    adv()
    a("s_waitcnt vmcnt(0)\ns_barrier")
    a.label(lab+'_unit')
    roles.tsp(a,0,1,'s47',('s4','s5','s6'))
    a("s_lshl_b32 s32, s55, 15\ns_add_u32 s32, s32, s42\nv_add_u32 v5, s32, v1\ns_xor_b32 s50, s42, 65536")
    poll_issue(a,2,'s45',10,9)
    XR=64; NR=8; AHEAD=6
    def rd(i): a(f"ds_read_b128 v[{XR+4*(i%NR)}:{XR+4*(i%NR)+3}], v5 offset:{i*1024}")
    for i in range(AHEAD): rd(i)
    dl=dma_list(16,14,'s50')
    def mf(ks):
        r=XR+4*(ks%NR)
        for T in range(2):
            acc=32+16*T; c='0' if ks==0 else f"v[{acc}:{acc+15}]"; b=(T*32+ks)*4
            a(f"v_mfma_f32_32x32x16_bf16 v[{acc}:{acc+15}], a[{b}:{b+3}], v[{r}:{r+3}], {c}")
    def check():
        a(f"s_cmp_eq_u32 s52, 0\ns_cbranch_scc1 {lab}_nq0\ns_waitcnt vmcnt(1)")
        set_flag(a,'s46',vtmp=(11,12))
        a(f"""
        s_add_u32 s46, s46, 256
        s_mov_b32 s52, 0
        s_waitcnt vmcnt(1)
        s_branch {lab}_nq
{lab}_nq0:
        s_waitcnt vmcnt(0)
{lab}_nq:
        s_mov_b32 s48, 0
        s_cmp_ge_u32 s47, 63
        s_cselect_b32 s49, 1, 0
        v_cmp_eq_u32 vcc, 0, v9
        s_cmp_eq_u64 vcc, 0
        s_cselect_b32 s48, 1, 0
        s_cmp_eq_u32 s49, 1
        s_cselect_b32 s48, 0, s48
        """)
    gemm_loop(a,lab,32,mf,rd,AHEAD,12,check,dl)
    roles.tsp(a,0,2,'s47',('s4','s5','s6'))
    L=a.new(lab+'r')
    a(f"""
    s_lshl_b32 s32, s6, 12
    s_add_u32 s32, s32, 131072
    v_add_u32 v6, s32, v1
    s_xor_b32 s32, s6, 2
    s_lshl_b32 s32, s32, 12
    s_add_u32 s32, s32, 131072
    v_add_u32 v7, s32, v1
    s_cmp_eq_u32 s55, 0
    s_cbranch_scc1 {L}_0
    """)
    for q in range(4): a(f"ds_write_b128 v6, v[{32+4*q}:{35+4*q}] offset:{q*1024}")
    for r_ in range(16): a(f"v_mov_b32 v{32+r_}, v{48+r_}")
    a(f"s_branch {L}_1\n{L}_0:")
    for q in range(4): a(f"ds_write_b128 v6, v[{48+4*q}:{51+4*q}] offset:{q*1024}")
    a(f"{L}_1:\ns_waitcnt lgkmcnt(0)\ns_barrier")
    for q in range(4): a(f"ds_read_b128 v[{48+4*q}:{51+4*q}], v7 offset:{q*1024}")
    a("s_waitcnt lgkmcnt(0)")
    for r_ in range(0,16,2): a(f"v_pk_add_f32 v[{32+r_}:{33+r_}], v[{32+r_}:{33+r_}], v[{48+r_}:{49+r_}]")
    pack_tile(a,32,96)
    for f in range(2):
        a(f"buffer_store_dwordx4 v[{96+4*f}:{99+4*f}], v1, s[8:11], s44 offen offset:{f*1024} sc1")
    a(f"""
    s_add_u32 s44, s44, 131072
    s_add_u32 s47, s47, 1
    s_mov_b32 s42, s50
    s_cmp_eq_u32 s48, 0
    s_cbranch_scc1 {lab}_slow
    s_mov_b32 s52, 1
    """)
    adv()
    a(f"""
    s_waitcnt vmcnt(2)
    s_barrier
    s_branch {lab}_unit
{lab}_slow:
    s_waitcnt vmcnt(0)
    """)
    roles.tsp(a,0,3,'s47',('s4','s5','s6'))
    set_flag(a,'s46',vtmp=(11,12))
    a(f"""
    s_add_u32 s46, s46, 256
    s_cmp_ge_u32 s47, 64
    s_cbranch_scc1 {lab}_done
    """)
    wait_flags(a,lab+'ws',2,'s45',fail,spin)
    roles.tsp(a,0,0,'s47',('s4','s5','s6'))
    for d in dma_list(16,14,'s42'): a(d)
    adv()
    a(f"""
    s_waitcnt vmcnt(0)
    s_barrier
    s_branch {lab}_unit
{lab}_done:
    """)
```

```python
import sys
from asmlib import Asm
from common import *
import importlib, os
chain=importlib.import_module(os.environ.get('CHAIN','chain10'))
import roles, roles2, roles3
KN='interleave_layers__sliding_block__memory_aug_recurrent_mem_tr__prompt_kernel'
INIT='init_ws_kernel'
ALL={'CH','P','O','AH','AWO','F','ATT'}
def desc(K,nv=512,ns=102):
    return f'''
.amdhsa_kernel {K}
  .amdhsa_next_free_vgpr {nv}
  .amdhsa_next_free_sgpr {ns}
  .amdhsa_accum_offset {min(256,(nv+3)//4*4)}
  .amdhsa_group_segment_fixed_size 0
  .amdhsa_kernarg_size 104
  .amdhsa_user_sgpr_count 2
  .amdhsa_user_sgpr_kernarg_segment_ptr 1
  .amdhsa_system_sgpr_workgroup_id_x 1
.end_amdhsa_kernel
'''
def gen_init():
    a=Asm()
    a.label(INIT)
    nflag=FL_END
    a(f"""
    s_cmp_ge_u32 s2, 256
    s_cbranch_scc1 LI_end
    s_load_dwordx2 s[8:9], s[0:1], 96
    s_waitcnt lgkmcnt(0)
    s_mov_b32 s10, 0x10000000
    s_mov_b32 s11, 0x20000
    s_lshl_b32 s3, s2, 8
    v_add_u32 v1, s3, v0
    v_lshlrev_b32 v1, 4, v1                  ; 0 .. 1MB
    v_mov_b32 v4, 0
    v_mov_b32 v5, 0
    v_mov_b32 v6, 0
    v_mov_b32 v7, 0
    v_mov_b32 v8, -1
    v_mov_b32 v9, -1
    v_mov_b32 v10, -1
    v_mov_b32 v11, -1
    s_mov_b32 s12, {WS_FLAG}
    v_cmp_gt_u32 vcc, {nflag}, v1
    s_and_saveexec_b64 s[14:15], vcc
    s_cbranch_execz LI_a
    buffer_store_dwordx4 v[4:7], v1, s[8:11], s12 offen
LI_a:
    s_mov_b64 exec, s[14:15]
    s_mov_b32 s12, {WS_INB}
    buffer_store_dwordx4 v[8:11], v1, s[8:11], s12 offen
    s_mov_b32 s12, {WS_INB+0x100000}
    buffer_store_dwordx4 v[8:11], v1, s[8:11], s12 offen
    s_mov_b32 s12, {WS_MEM}
    v_cmp_gt_u32 vcc, 0x10000, v1
    s_and_saveexec_b64 s[14:15], vcc
    s_cbranch_execz LI_b
    buffer_store_dwordx4 v[8:11], v1, s[8:11], s12 offen
LI_b:
    s_mov_b64 exec, s[14:15]
LI_end:
    s_endpgm
    """)
    out,_,errs=a.finish()
    for e in errs.values(): print('LINT',e,file=sys.stderr)
    return out
def gen(cfg):
    if cfg.get('pf',True) and 'sizes' not in cfg:
        c1=dict(cfg); c1['sizes']={}; c1['sizing']=True
        gen2(c1)
        cfg=dict(cfg); cfg['sizes']=c1['sizes']
    return gen2(cfg)
def gen2(cfg):
    if cfg.get('hostinit'):
        cfg=dict(cfg); cfg['init']=True; cfg['gate']=False
    en=cfg.get('roles',ALL)
    roles.TS=cfg.get('ts',False)
    roles.TSP=cfg.get('tsp',False)
    roles.DEFSLEEP=cfg.get('defsleep',1)
    roles.DBGTS=cfg.get('dbgts',False)
    a=Asm(); K=KN
    a.label(K)
    selfinit=''
    if not cfg.get('init',False):
        selfinit=f'''s_mul_i32 s24, s2, 1280
    s_add_u32 s24, s24, {WS_FLAG}
    v_lshlrev_b32 v2, 4, v0
    s_lshl_b32 s25, s6, 10
    v_add_u32 v2, s25, v2
    v_mov_b32 v4, 0
    v_mov_b32 v5, 0
    v_mov_b32 v6, 0
    v_mov_b32 v7, 0
    v_cmp_gt_u32 vcc, 1280, v2
    s_and_saveexec_b64 s[26:27], vcc
    s_cbranch_execz L_si0
    buffer_store_dwordx4 v[4:7], v2, s[8:11], s24 offen sc1
L_si0:
    s_mov_b64 exec, s[26:27]
    s_waitcnt vmcnt(0)
    s_barrier'''
    dts0=''
    if cfg.get('dbgts'):
        dts0='''s_cmp_lg_u32 s2, 0
    s_cbranch_scc1 L_dts0
    s_memrealtime s[100:101]
    s_waitcnt lgkmcnt(0)
    v_mov_b32 v2, s100
    v_mov_b32 v3, 16
    s_mov_b64 exec, 1
    buffer_store_dword v2, v3, s[12:15], 0 offen
    s_mov_b64 exec, -1
L_dts0:'''
    clk0=''
    if cfg.get('clk'):
        clk0='''s_memtime s[100:101]
    s_memrealtime s[98:99]
    s_waitcnt lgkmcnt(0)
    s_lshl_b32 s24, s2, 5
    s_add_u32 s24, s24, 0xCB00000
    v_mov_b32 v2, s100
    v_mov_b32 v3, s98
    v_mov_b32 v4, s3
    v_mov_b32 v5, s5
    v_mov_b32 v6, 0
    s_mov_b64 exec, 1
    buffer_store_dwordx4 v[2:5], v6, s[8:11], s24 offen
    s_mov_b64 exec, -1'''
    tss=''
    if cfg.get('ts'):
        tss='''s_memrealtime s[98:99]
    s_waitcnt lgkmcnt(0)
    v_mov_b32 v3, s98
    s_lshl_b32 s24, s3, 2
    s_add_u32 s24, s24, 160
    v_mov_b32 v4, s24
    s_mov_b64 exec, 1
    buffer_store_dword v3, v4, s[12:15], 0 offen
    s_mov_b64 exec, -1'''
    a(f"""
    s_cmp_ge_u32 s2, 256
    s_cbranch_scc1 L_end
    s_load_dwordx2 s[8:9], s[0:1], 96        ; ws
    s_load_dwordx2 s[12:13], s[0:1], 88      ; dbg
    s_getreg_b32 s3, hwreg(HW_REG_XCC_ID, 0, 4)
    v_lshrrev_b32 v1, 6, v0
    s_nop 0
    v_readfirstlane_b32 s6, v1
    v_and_b32 v0, 63, v0                     ; lane
    s_waitcnt lgkmcnt(0)
    s_mov_b32 s10, 0x10000000
    s_mov_b32 s11, 0x20000
    s_mov_b32 s14, 256
    s_mov_b32 s15, 0x20000
    {dts0}
    {selfinit}
    s_cmp_lg_u32 s6, 0
    s_cbranch_scc1 L_claimed
    v_mov_b32 v3, 1
    s_and_b32 s24, s3, 1
    s_lshl_b32 s24, s24, 7
    s_lshr_b32 s25, s3, 1
    s_lshl_b32 s25, s25, 2
    s_add_u32 s24, s24, s25
    v_mov_b32 v4, s24
    s_mov_b64 exec, 1
    buffer_atomic_add v3, v4, s[12:15], 0 offen sc0
    s_waitcnt vmcnt(0)
    v_mov_b32 v5, 0
    ds_write_b32 v5, v3
    s_waitcnt lgkmcnt(0)
    s_mov_b64 exec, -1
L_claimed:
    s_barrier
    v_mov_b32 v5, 0
    ds_read_b32 v3, v5
    s_waitcnt lgkmcnt(0)
    v_readfirstlane_b32 s5, v3
    s_barrier
    s_cmp_ge_u32 s5, 32
    s_cbranch_scc1 L_end
    {tss}
    {clk0}
    s_cmp_lt_u32 s3, 2
    s_cbranch_scc1 L_CH
    s_cmp_lt_u32 s3, 4
    s_cbranch_scc1 L_P
    s_cmp_eq_u32 s3, 4
    s_cbranch_scc1 L_ATT
    s_cmp_eq_u32 s3, 5
    s_cbranch_scc1 L_O
    s_cmp_eq_u32 s3, 6
    s_cbranch_scc1 L_AH
    s_cmp_lt_u32 s5, 8
    s_cbranch_scc1 L_AWO
    s_branch L_F
L_fail:
    s_load_dwordx2 s[12:13], s[0:1], 88
    s_waitcnt lgkmcnt(0)
    s_mov_b32 s14, 256
    s_mov_b32 s15, 0x20000
    s_lshl_b32 s24, s3, 2
    s_add_u32 s24, s24, 32
    v_mov_b32 v4, s24
    s_add_u32 s25, s5, 1
    v_mov_b32 v3, s25
    s_mov_b64 exec, 1
    buffer_store_dword v3, v4, s[12:15], 0 offen
L_end:
    s_endpgm
    """)
    fail='L_fail'
    def init_wait(a_,name,cnt_off=32,target=256,sb=92):
        if cfg.get('init',False): return
        if target==256:
            gl=f'''v_mbcnt_lo_u32_b32 v9, -1, 0
        v_mbcnt_hi_u32_b32 v9, -1, v9
        v_min_u32 v9, 7, v9
        v_and_b32 v10, 1, v9
        v_lshlrev_b32 v10, 7, v10
        v_lshrrev_b32 v9, 1, v9
        v_lshl_add_u32 v9, v9, 2, v10
        buffer_load_dword v9, v9, s[{sb}:{sb+3}], 0 offen sc1
        s_waitcnt vmcnt(0)
        v_cmp_gt_u32 vcc, 32, v9
        s_cmp_eq_u64 vcc, 0
        s_cselect_b32 s{sb+5}, 256, 0'''
        else:
            gl=f'''v_mov_b32 v9, {cnt_off}
        buffer_load_dword v9, v9, s[{sb}:{sb+3}], 0 offen sc1
        s_waitcnt vmcnt(0)
        v_readfirstlane_b32 s{sb+5}, v9'''
        a_(f'''
        s_load_dwordx2 s[{sb}:{sb+1}], s[0:1], 88
        s_waitcnt lgkmcnt(0)
        s_mov_b32 s{sb+2}, 256
        s_mov_b32 s{sb+3}, 0x20000
        s_mov_b32 s{sb+4}, 0
{name}_iw:
        {gl}
        s_cmp_ge_u32 s{sb+5}, {target}
        s_cbranch_scc1 {name}_iwd
        s_add_u32 s{sb+4}, s{sb+4}, 1
        s_cmp_gt_u32 s{sb+4}, {cfg.get('spin',roles.SPIN_DEFAULT)}
        s_cbranch_scc1 L_fail
        s_sleep 2
        s_branch {name}_iw
{name}_iwd:
        ''')
    cfg=dict(cfg); cfg['init_wait']=init_wait
    marks={}
    def begin(name):
        marks[name]=len(a.lines)
        if cfg.get('pf',True) and not cfg.get('sizing'):
            roles.prefetch_code(a,'LB_'+name,'LE_'+name,cfg['sizes'].get(name,4096)+4096)
        a.label('LB_'+name)
        marks[name]=len(a.lines)
    def end(name):
        a.label('LE_'+name)
        if cfg.get('sizing'): cfg['sizes'][name]=(len(a.lines)-marks[name])*7
    END='s_branch L_fin' if cfg.get('clk') else 's_endpgm'
    a.label('L_F')
    if 'F' in en:
        a("""
        s_sub_u32 s5, s5, 8
        s_lshr_b32 s7, s5, 2
        s_and_b32 s5, s5, 3
        s_mov_b32 s4, 0
        s_cmp_eq_u32 s7, 0
        s_cbranch_scc1 L_F0
        s_cmp_eq_u32 s7, 2
        s_cbranch_scc1 L_F2
        s_cmp_eq_u32 s7, 4
        s_cbranch_scc1 L_F3
        s_mov_b32 s4, 1
        s_cmp_eq_u32 s7, 5
        s_cbranch_scc1 L_F2
        s_lshr_b32 s4, s7, 1
        """)
        begin('FT1'); roles3.emit_F(a,cfg,'T1',fail); end('FT1'); a("s_endpgm")
        a.label('L_F0'); begin('FT0'); roles3.emit_F(a,cfg,'T0',fail); end('FT0'); a("s_endpgm")
        a.label('L_F2'); begin('FT2'); roles3.emit_F(a,cfg,'T2',fail); end('FT2'); a("s_endpgm")
        a.label('L_F3'); begin('FT3'); roles3.emit_F(a,cfg,'T3',fail); end('FT3')
    a(END)
    a.label('L_AWO')
    if 'AWO' in en:
        a("s_lshr_b32 s4, s5, 2\ns_and_b32 s5, s5, 3")
        begin('AWO'); roles3.emit_AWO(a,cfg,fail); end('AWO')
    a(END)
    a.label('L_ATT')
    if 'ATT' in en:
        begin('ATT'); roles3.emit_ATT(a,cfg,fail); end('ATT')
    a(END)
    a.label('L_AH')
    if 'AH' in en: begin('AH'); roles2.emit_AH(a,cfg,fail); end('AH')
    a(END)
    def gate(name):
        if not cfg.get('gate',True): return
        a(f"s_cmp_eq_u32 s4, 0\ns_cbranch_scc1 {name}_ng0")
        init_wait(a,name+'gi')
        a.label(name+'_ng0')
        a(f"s_cmp_eq_u32 s4, 0\ns_cbranch_scc1 {name}_ng\ns_mov_b32 s12, {WS_FLAG+FL_XN+cfg.get('gate_t',1)*64*128+cfg.get('gate_s',0)*128}")
        roles.wait_flags(a,name+'g',16,'s12',fail,cfg.get('spin',roles.SPIN_DEFAULT),vtmp=(8,9),sleep=8)
        a.label(name+'_ng')
    a.label('L_O')
    if 'O' in en:
        a("s_lshr_b32 s4, s5, 4\ns_and_b32 s5, s5, 15")
        gate('L_O')
        begin('O'); roles3.emit_O5(a,cfg,fail); end('O')
    a(END)
    a.label('L_P')
    if 'P' in en:
        a("s_sub_u32 s4, s3, 2")
        gate('L_P')
        begin('P'); roles3.emit_P(a,cfg,fail); end('P')
    a(END)
    a.label('L_CH')
    if 'CH' in en:
        a("s_mov_b32 s4, s3")
        gate('L_CH')
        c=dict(FL_P=FL_P,FL_CH=FL_CH); c.update(cfg)
        begin('CH'); chain.emit_chain(a,c,fail); end('CH')
        if cfg.get('stamps') or cfg.get('tot'):
            a("""
            s_load_dwordx2 s[12:13], s[0:1], 96
            s_waitcnt lgkmcnt(0)
            s_mov_b32 s14, 0x10000000
            s_mov_b32 s15, 0x20000
            s_memtime s[70:71]
            s_waitcnt lgkmcnt(0)
            s_sub_u32 s75, s70, s74
            s_lshl_b32 s32, s4, 5
            s_add_u32 s32, s32, s5
            s_lshl_b32 s32, s32, 2
            s_add_u32 s32, s32, s6
            s_lshl_b32 s32, s32, 6
            s_add_u32 s32, s32, 0xC800000
            v_mov_b32 v32, s32
            """)
            for k in range(10): a(f"v_mov_b32 v{36+k}, s{76+k}")
            a("""
            v_mov_b32 v45, s88
            v_mov_b32 v46, s75
            v_mov_b32 v47, s59
            s_mov_b64 exec, 1
            buffer_store_dwordx4 v[36:39], v32, s[12:15], 0 offen
            buffer_store_dwordx4 v[40:43], v32, s[12:15], 0 offen offset:16
            buffer_store_dwordx4 v[44:47], v32, s[12:15], 0 offen offset:32
            s_mov_b64 exec, -1
            """)
        a("""
        s_cmp_eq_u32 s59, 0
        s_cbranch_scc1 L_CHend
        s_branch L_fail
L_CHend:
        """)
    a(END)
    if cfg.get('clk'):
        a('''
L_fin:
    s_cmp_lg_u32 s6, 0
    s_cbranch_scc1 L_fin2
    s_memtime s[100:101]
    s_memrealtime s[98:99]
    s_waitcnt lgkmcnt(0)
    s_lshl_b32 s24, s2, 5
    s_add_u32 s24, s24, 0xCB00010
    v_mov_b32 v2, s100
    v_mov_b32 v3, s98
    v_mov_b32 v5, 0
    s_mov_b64 exec, 1
    buffer_store_dwordx2 v[2:3], v5, s[8:11], s24 offen
L_fin2:
    s_endpgm
''')
    out,total,errs=a.finish()
    for e in list(errs.values())[:10]: print('LINT',e,file=sys.stderr)
    print('nops inserted',total,'instrs',len(out),file=sys.stderr)
    withinit=cfg.get('init',False) and not cfg.get('hostinit')
    if withinit:
        hdr=f"""; @launch kernel={INIT} grid=(256,1,1) block=(256,1,1) lds=0
; @launch kernel={K} grid=(256,1,1) block=(256,1,1) lds=163840
"""
    else:
        hdr=f"; @launch grid=(256,1,1) block=(256,1,1) lds=163840\n"
    txt=hdr+f""".amdgcn_target "amdgcn-amd-amdhsa--gfx950"
.text
.globl {K}
.p2align 8
.type {K},@function
"""+'\n'.join(out)+'\n'
    if withinit:
        txt+=f""".globl {INIT}
.p2align 8
.type {INIT},@function
"""+'\n'.join(gen_init())+'\n'
    txt+='.section .rodata,"a"\n.p2align 6\n'+desc(K)
    if withinit: txt+='.p2align 6\n'+desc(INIT,16,32)
    return txt
if __name__=='__main__':
    s=gen(dict())
    open('m.s','w').write(s)
    print(len(s),'bytes')
    import subprocess
    r=subprocess.run(['clang','-x','assembler','-target','amdgcn-amd-amdhsa','-mcpu=gfx950','-c','m.s','-o','m.o'],capture_output=True,text=True); print(r.stderr)
```

```python
from common import *
SPIN_DEFAULT=2000000
DEFSLEEP=1

class Ctx:
    def __init__(self,a,cfg): self.a=a; self.cfg=cfg; self.spin=cfg.get('spin',200000)

def wait_flags(a, lab, n, soff, fail, spin, vtmp=(250,251), stmp=(96,97,98), sleep=None):
    if sleep is None: sleep=DEFSLEEP
    va,vb=vtmp; sc=stmp[0]
    mask=(1<<n)-1
    L=a.new(lab)
    a(f"""
    s_mov_b32 s{sc}, 0
    v_mbcnt_lo_u32_b32 v{va}, -1, 0
    v_mbcnt_hi_u32_b32 v{va}, -1, v{va}
    v_min_u32 v{va}, {n-1}, v{va}
    v_lshlrev_b32 v{va}, 2, v{va}
{L}_spin:
    buffer_load_dword v{vb}, v{va}, s[8:11], {soff} offen sc1
    s_waitcnt vmcnt(0)
    v_cmp_eq_u32 vcc, 0, v{vb}
    s_cbranch_vccz {L}_ok
    s_add_u32 s{sc}, s{sc}, 1
    s_cmp_gt_u32 s{sc}, {spin}
    s_cbranch_scc1 {fail}
    {('s_sleep %d'%sleep) if sleep else ''}
    s_branch {L}_spin
{L}_ok:
    """)

TS=False
def flagval(a, vb):
    if TS:
        a(f"""
        s_memrealtime s[98:99]
        s_waitcnt lgkmcnt(0)
        s_or_b32 s98, s98, 1
        v_mov_b32 v{vb}, s98
        """)
    else: a(f"v_mov_b32 v{vb}, 1")
def set_flag(a, soff, vtmp=(250,251), scope='sc1'):
    va,vb=vtmp
    flagval(a,vb)
    a(f"""
    v_mov_b32 v{va}, 0
    s_mov_b64 exec, 1
    buffer_store_dword v{vb}, v{va}, s[8:11], {soff} offen {scope}
    s_mov_b64 exec, -1
    """)

def emit_F(a, cfg, typ, fail):
    spin=cfg.get('spin',SPIN_DEFAULT)
    lab=a.new('F'+typ)
    npart={'T0':0,'T1':1,'T2':2,'T3':2}[typ]
    a(f"""
    v_and_b32 v1, 15, v0
    v_bfe_u32 v2, v0, 4, 1
    v_lshrrev_b32 v3, 5, v0
    v_lshlrev_b32 v4, 4, v1
    v_lshl_add_u32 v4, v2, 9, v4
    v_lshl_add_u32 v4, v3, 10, v4
    s_lshl_b32 s12, s6, 13
    s_lshl_b32 s13, s5, 8
    s_add_u32 s12, s12, s13
    v_add_u32 v4, s12, v4
    s_lshl_b32 s13, s5, 4
    v_add_u32 v5, s13, v1
    v_lshlrev_b32 v5, 10, v5
    v_lshl_add_u32 v5, v3, 5, v5
    v_lshl_add_u32 v5, v2, 4, v5
    s_lshl_b32 s13, s6, 8                    ; 4w*64
    v_add_u32 v5, s13, v5
    v_lshlrev_b32 v6, 3, v1
    s_lshl_b32 s13, s6, 7
    v_add_u32 v7, s13, v6
    """)
    if typ=='T0':
        a(f"""
        s_load_dwordx2 s[16:17], s[0:1], 0
        s_waitcnt lgkmcnt(0)
        s_mov_b32 s18, {2048*1024}
        s_mov_b32 s19, 0x20000
        s_mov_b32 s20, 0
        s_mov_b32 s22, {xs(T_X0,0)}
        s_mov_b32 s23, {xs(T_XNA1,0)}
        s_mov_b32 s24, {WS_FLAG+FL_XN+0*64*128}
        """)
    elif typ=='T1':
        a(f"""
        s_mul_i32 s13, s4, {6*64*32768}
        s_add_u32 s20, s13, {xs(T_X0,0)}          ; residual  (X0 / X2)
        s_add_u32 s21, s13, {xs(T_YA1,0)}
        s_add_u32 s22, s13, {xs(T_X1,0)}          ; x out     (X1 / X3)
        s_add_u32 s23, s13, {xs(T_XNB1,0)}
        s_lshl_b32 s13, s4, 14                    ; l*2*64*128
        s_add_u32 s24, s13, {WS_FLAG+FL_XN+1*64*128}
        s_lshl_b32 s13, s4, 13
        s_add_u32 s25, s13, {WS_FLAG+FL_YA}
        """)
    elif typ=='T2':
        a(f"""
        s_mov_b32 s20, {xs(T_X1,0)}
        s_mov_b32 s21, {WS_PO}
        s_mov_b32 s22, {xs(T_X2,0)}
        s_mov_b32 s23, {xs(T_XNA2,0)}
        s_mov_b32 s24, {WS_FLAG+FL_XN+2*64*128}
        s_mov_b32 s25, {WS_FLAG+FL_PO}
        """)
    else:
        a(f"""
        s_load_dwordx2 s[16:17], s[0:1], 80
        s_waitcnt lgkmcnt(0)
        s_mov_b32 s18, {2048*1024}
        s_mov_b32 s19, 0x20000
        s_mov_b32 s20, {xs(T_X3,0)}
        s_mov_b32 s21, {WS_PO+64*131072}
        s_mov_b32 s22, 0
        s_mov_b32 s25, {WS_FLAG+FL_PO+64*128}
        """)
    a(f"""
    s_lshl_b32 s13, s5, 2
    {'s_add_u32 s24, s24, s13' if typ!='T3' else ''}
    s_mov_b32 s26, 0                          ; unit s
    v_mov_b32 v8, 0x3f803f80
    s_mov_b32 s27, 0xffff0000
{lab}_loop:
    """)
    if typ=='T1': wait_flags(a,lab+'w',2,'s25',fail,spin)
    if typ in('T2','T3'): wait_flags(a,lab+'w',16,'s25',fail,spin)
    X=16; P0=32; P1=48; W=64
    if typ=='T0':
        for j in range(4): a(f"buffer_load_dwordx4 v[{X+4*j}:{X+4*j+3}], v5, s[16:19], s20 offen offset:{64*j}")
        a("s_waitcnt vmcnt(0)")
        for j in range(4):
            a(f"v_permlane16_swap_b32 v{X+4*j}, v{X+4*j+2}\nv_permlane16_swap_b32 v{X+4*j+1}, v{X+4*j+3}")
    else:
        a("s_add_u32 s13, s20, 4096\ns_add_u32 s14, s21, 4096")
        if npart==2: a("s_add_u32 s28, s21, 32768\ns_add_u32 s29, s28, 4096")
        for j in range(4):
            so=lambda b,b2: (b if j<2 else b2)
            a(f"buffer_load_dwordx4 v[{P0+4*j}:{P0+4*j+3}], v4, s[8:11], {so('s21','s14')} offen offset:{2048*(j&1)} sc1")
            if npart==2: a(f"buffer_load_dwordx4 v[{P1+4*j}:{P1+4*j+3}], v4, s[8:11], {so('s28','s29')} offen offset:{2048*(j&1)} sc1")
            a(f"buffer_load_dwordx4 v[{X+4*j}:{X+4*j+3}], v4, s[8:11], {so('s20','s13')} offen offset:{2048*(j&1)} sc1")
        per=2+(npart==2)
        for j in range(4):
            a(f"s_waitcnt vmcnt({per*(3-j)})")
            for d in range(4):
                r=4*j+d; w0=W+2*r
                if npart==2:
                    a(f"""
                    v_lshlrev_b32 v{w0}, 16, v{P0+r}
                    v_and_b32 v{w0+1}, s27, v{P0+r}
                    v_lshlrev_b32 v10, 16, v{P1+r}
                    v_and_b32 v11, s27, v{P1+r}
                    v_pk_add_f32 v[{w0}:{w0+1}], v[{w0}:{w0+1}], v[10:11]
                    v_cvt_pk_bf16_f32 v{P0+r}, v{w0}, v{w0+1}
                    """)
                a(f"""
                v_lshlrev_b32 v{w0}, 16, v{P0+r}
                v_and_b32 v{w0+1}, s27, v{P0+r}
                v_lshlrev_b32 v10, 16, v{X+r}
                v_and_b32 v11, s27, v{X+r}
                v_pk_add_f32 v[{w0}:{w0+1}], v[{w0}:{w0+1}], v[10:11]
                v_cvt_pk_bf16_f32 v{X+r}, v{w0}, v{w0+1}
                """)
    if typ=='T3':
        for j in range(4):
            a(f"v_permlane16_swap_b32 v{X+4*j}, v{X+4*j+2}\nv_permlane16_swap_b32 v{X+4*j+1}, v{X+4*j+3}")
        for j in range(4): a(f"buffer_store_dwordx4 v[{X+4*j}:{X+4*j+3}], v5, s[16:19], s22 offen offset:{64*j}")
        a(f"""
        s_add_u32 s20, s20, 32768
        s_add_u32 s21, s21, 131072
        s_add_u32 s22, s22, 32768
        s_add_u32 s25, s25, 128
        """)
    else:
        a("s_add_u32 s13, s22, 4096")
        for j in range(4):
            a(f"buffer_store_dwordx4 v[{X+4*j}:{X+4*j+3}], v4, s[8:11], {'s22' if j<2 else 's13'} offen offset:{2048*(j&1)} sc1")
        a("v_mov_b32 v12, 0\nv_mov_b32 v13, 0")
        for r in range(16):
            a(f"v_dot2_f32_bf16 v12, v{X+r}, v8, v12\nv_dot2_f32_bf16 v13, v{X+r}, v{X+r}, v13")
        a(f"""
        v_mov_b32 v10, v12
        v_mov_b32 v11, v13
        v_permlane16_swap_b32 v12, v10
        v_permlane16_swap_b32 v13, v11
        v_add_f32 v12, v12, v10
        v_add_f32 v13, v13, v11
        v_mov_b32 v10, v12
        v_mov_b32 v11, v13
        v_permlane32_swap_b32 v12, v10
        v_permlane32_swap_b32 v13, v11
        v_add_f32 v12, v12, v10
        v_add_f32 v13, v13, v11
        s_mov_b64 exec, 0xffff
        ds_write_b64 v7, v[12:13]
        s_mov_b64 exec, -1
        s_waitcnt lgkmcnt(0)
        s_barrier
        ds_read_b64 v[10:11], v6
        ds_read_b64 v[12:13], v6 offset:128
        ds_read_b64 v[14:15], v6 offset:256
        ds_read_b64 v[W0:W1], v6 offset:384
        """.replace('W0',str(W)).replace('W1',str(W+1)))
        a(f"""
        s_waitcnt lgkmcnt(0)
        v_pk_add_f32 v[10:11], v[10:11], v[12:13]
        v_pk_add_f32 v[14:15], v[14:15], v[{W}:{W+1}]
        v_pk_add_f32 v[10:11], v[10:11], v[14:15]
        v_mul_f32 v10, 0x3b000000, v10            ; mean
        v_mul_f32 v11, 0x3b000000, v11            ; E[x^2]
        v_fma_f32 v11, -v10, v10, v11             ; var
        v_max_f32 v11, 0, v11
        v_cvt_pk_bf16_f32 v14, v10, v11
        v_lshlrev_b32 v12, 16, v14                ; m
        v_and_b32 v11, s27, v14                   ; var
        v_add_f32 v11, 0x3727c5ac, v11            ; + 1e-5
        v_cvt_pk_bf16_f32 v11, v11, v11
        v_and_b32 v11, s27, v11
        v_sqrt_f32 v11, v11
        s_barrier
        v_cvt_pk_bf16_f32 v11, v11, v11
        v_and_b32 v11, s27, v11
        v_rcp_f32 v14, v11
        v_mov_b32 v13, v12
        v_mov_b32 v15, v14
        """)
        for r in range(16):
            w0=W+2*r
            a(f"""
            v_lshlrev_b32 v{w0}, 16, v{X+r}
            v_and_b32 v{w0+1}, s27, v{X+r}
            v_pk_add_f32 v[{w0}:{w0+1}], v[{w0}:{w0+1}], v[12:13] neg_lo:[0,1] neg_hi:[0,1]
            v_cvt_pk_bf16_f32 v{P0+r}, v{w0}, v{w0+1}
            v_lshlrev_b32 v{w0}, 16, v{P0+r}
            v_and_b32 v{w0+1}, s27, v{P0+r}
            v_pk_mul_f32 v[{w0}:{w0+1}], v[{w0}:{w0+1}], v[14:15]
            v_cvt_pk_bf16_f32 v{P0+r}, v{w0}, v{w0+1}
            """)
        a("s_add_u32 s13, s23, 4096")
        for j in range(4):
            a(f"buffer_store_dwordx4 v[{P0+4*j}:{P0+4*j+3}], v4, s[8:11], {'s23' if j<2 else 's13'} offen offset:{2048*(j&1)} sc1")
        a(f"""
        s_waitcnt vmcnt(0)
        s_barrier
        s_cmp_lg_u32 s6, 0
        s_cbranch_scc1 {lab}_nf
        """)
        set_flag(a,'s24')
        a(f"""
{lab}_nf:
        s_add_u32 s20, s20, 32768
        s_add_u32 s22, s22, 32768
        s_add_u32 s23, s23, 32768
        s_add_u32 s24, s24, 128
        """)
        if typ=='T1': a("s_add_u32 s21, s21, 32768\ns_add_u32 s25, s25, 128")
        if typ=='T2': a("s_add_u32 s21, s21, 131072\ns_add_u32 s25, s25, 128")
    a(f"""
    s_add_u32 s26, s26, 1
    s_cmp_lt_u32 s26, 64
    s_cbranch_scc1 {lab}_loop
    """)

def tr_addr32(a, dst, wcolchunks_sgpr, rowbytes, swz, base, tmp=(60,61,62,63,64,65)):
    t0,t1,t2,t3,t4,t5=tmp
    a(f"""
    v_lshrrev_b32 v{t0}, 4, v0
    v_and_b32 v{t1}, 1, v{t0}                ; nhalf
    v_lshrrev_b32 v{t0}, 1, v{t0}            ; hf
    v_bfe_u32 v{t2}, v0, 2, 2                ; r
    v_and_b32 v{t3}, 3, v0                   ; c
    v_lshl_add_u32 v{t0}, v{t0}, 2, v{t2}
    v_lshrrev_b32 v{t4}, 1, v{t3}
    v_lshl_add_u32 v{t4}, v{t1}, 1, v{t4}
    v_add_u32 v{t4}, {wcolchunks_sgpr}, v{t4}  ; q
    """)
    swz(t2,t5)
    a(f"""
    v_xor_b32 v{t4}, v{t4}, v{t5}
    v_lshlrev_b32 v{t4}, 4, v{t4}
    v_and_b32 v{t3}, 1, v{t3}
    v_lshl_add_u32 v{t4}, v{t3}, 3, v{t4}
    v_mul_u32_u24 v{t0}, {rowbytes}, v{t0}
    v_add_u32 v{dst}, v{t0}, v{t4}
    v_add_u32 v{dst}, {base}, v{dst}
    """)

def pack_tile(a, acc, dst):
    for i in range(8):
        a(f"v_cvt_pk_bf16_f32 v{dst+i}, v{acc+2*i}, v{acc+2*i+1}")

def emit_P(a, cfg, fail):
    spin=cfg.get('spin',SPIN_DEFAULT)
    lab=a.new('P')
    a("""
    s_load_dwordx2 s[12:13], s[0:1], 40      ; Wq
    s_load_dwordx2 s[16:17], s[0:1], 48      ; Wk
    s_load_dwordx2 s[20:21], s[0:1], 56      ; Wv
    s_waitcnt lgkmcnt(0)
    s_mov_b32 s14, 4194304
    s_mov_b32 s15, 0x20000
    s_mov_b32 s18, 4194304
    s_mov_b32 s19, 0x20000
    s_mov_b32 s22, 4194304
    s_mov_b32 s23, 0x20000
    v_lshrrev_b32 v61, 4, v0
    v_and_b32 v60, 15, v0
    v_lshlrev_b32 v62, 2, v61
    v_xor_b32 v62, v60, v62
    v_lshlrev_b32 v62, 4, v62
    v_lshl_add_u32 v62, v61, 13, v62
    s_lshl_b32 s32, s5, 8
    v_add_u32 v40, s32, v62
    s_lshl_b32 s32, s6, 2
    """)
    tr_addr32(a,44,'s32',256,lambda r,o: a(f"v_lshlrev_b32 v{o}, 2, v{r}"),0)
    a("v_add_u32 v45, 0x10000, v44")
    def wreg(M,ks,p):
        if M=='Q': b=128+4*ks+2*p; return f"v[{b}:{b+1}]"
        b={'K':0,'V':128}[M]+4*ks+2*p; return f"a[{b}:{b+1}]"
    for M,srd in (('K','s[16:19]'),('V','s[20:23]'),('Q','s[12:15]')):
        a("s_lshl_b32 s33, s6, 20\ns_lshl_b32 s34, s6, 15")
        for n in range(32):
            a(f"s_add_u32 m0, s34, {4*n*256}\ns_add_u32 s35, s33, {4*n*8192}\nbuffer_load_dwordx4 v40, {srd}, s35 offen lds")
        a("s_waitcnt vmcnt(0)\ns_barrier")
        for ks in range(32):
            for p in range(2):
                a(f"ds_read_b64_tr_b16 {wreg(M,ks,p)}, v{44+(ks>>4)} offset:{(ks&15)*4096+p*2048}")
            if ks%4==3: a("s_waitcnt lgkmcnt(4)")
        a("s_waitcnt lgkmcnt(0)\ns_barrier")
    def W(M,ks):
        if M=='Q': return f"v[{128+4*ks}:{131+4*ks}]"
        b={'K':0,'V':128}[M]+4*ks; return f"a[{b}:{b+3}]"
    DEC=65536
    a(f"""
    v_lshlrev_b32 v1, 4, v0
    s_lshl_b32 s32, s6, 13
    v_add_u32 v2, s32, v1
    s_lshl_b32 s32, s6, 11
    v_add_u32 v3, s32, v1
    v_mov_b32 v4, {DEC}
    s_cmp_eq_u32 s4, 0
    s_cselect_b32 s40, 0, 64
    s_cmp_eq_u32 s4, 1
    s_cselect_b32 s41, 0, 64
    s_cmp_eq_u32 s4, 2
    s_cselect_b32 s40, 2, s40
    s_cselect_b32 s41, 2, s41
    s_mov_b32 s42, 0
    s_mov_b32 s47, 0
    """)
    def advance(c):
        a(f"""
        s_add_u32 s{c}, s{c}, 1
        s_cmp_eq_u32 s4, 2
        s_cselect_b32 s32, 2, 0
        s_add_u32 s{c}, s{c}, s32
        s_cselect_b32 s33, 1, 0
        """)
        L=a.new(lab+'adv')
        a(f"""
        s_cmp_eq_u32 s4, 2
        s_cbranch_scc1 {L}
        s_mul_hi_u32 s32, s{c}, 0x55555556
        s_mul_i32 s32, s32, 3
        s_sub_u32 s32, s{c}, s32
        s_cmp_eq_u32 s32, 2
        s_cselect_b32 s32, 1, 0
        s_add_u32 s{c}, s{c}, s32
{L}:
        """)
    def flag_addr(l,c,dst):
        a(f"s_lshl_b32 s{dst}, s{c}, 7\ns_add_u32 s{dst}, s{dst}, {WS_FLAG+FL_XN+(1+2*l)*64*128}")
    def issue_polls():
        flag_addr(0,40,36); flag_addr(1,41,37)
        a(f"""
        v_and_b32 v8, 7, v0
        v_lshlrev_b32 v8, 2, v8
        buffer_load_dword v9, v8, s[8:11], s36 offen sc1
        buffer_load_dword v10, v8, s[8:11], s37 offen sc1
        """)
    def eval_polls():
        a(f"""
        v_cmp_eq_u32 vcc, 0, v10
        s_cmp_eq_u64 vcc, 0
        s_cselect_b32 s38, 2, 0
        s_cmp_ge_u32 s41, 64
        s_cselect_b32 s38, 0, s38
        v_cmp_eq_u32 vcc, 0, v9
        s_cmp_eq_u64 vcc, 0
        s_cselect_b32 s39, 1, 0
        s_cmp_ge_u32 s40, 64
        s_cselect_b32 s39, 0, s39
        s_cmp_lg_u32 s38, 0
        s_cselect_b32 s38, s38, s39
        s_and_b32 s32, s40, s41
        s_min_u32 s33, s40, s41
        s_cmp_ge_u32 s33, 64
        s_cselect_b32 s38, 3, s38
        """)
    def take(dec):
        L=a.new(lab+'take')
        a(f"""
        s_cmp_eq_u32 s{dec}, 2
        s_cbranch_scc1 {L}_2
        s_lshl_b32 s43, s40, 15
        s_add_u32 s43, s43, {xs(T_XNB1,0)}
        s_lshl_b32 s44, s40, 5
        """)
        advance(40)
        a(f"""
        s_branch {L}_e
{L}_2:
        s_lshl_b32 s43, s41, 15
        s_add_u32 s43, s43, {xs(T_XNB2,0)}
        s_add_u32 s44, s41, 64
        s_lshl_b32 s44, s44, 5
        """)
        advance(41)
        a(f"""
{L}_e:
        s_add_u32 s44, s44, s5                    ; (l*64+s)*32+h
        s_lshl_b32 s45, s44, 5
        s_add_u32 s45, s45, {WS_FLAG+FL_P}
        s_mul_i32 s44, s44, {QKV_BLK}
        """)
    def dma(buf):
        out=[]
        for n in range(8):
            out.append(f"s_lshl_b32 s32, s6, 13\ns_add_u32 s32, s32, s{buf}\ns_add_u32 m0, s32, {n*1024 - (n&3)*1024}\ns_add_u32 s33, s43, {(n>>2)*4096}\nbuffer_load_dwordx4 v2, s[8:11], s33 offen offset:{(n&3)*1024} sc1 lds")
        return out
    a.label(lab+'_block')
    a(f"""
    s_cmp_lg_u32 s6, 0
    s_cbranch_scc1 {lab}_bw
    s_mov_b32 s46, 0
{lab}_bspin:
    """)
    issue_polls()
    a("s_waitcnt vmcnt(0)")
    eval_polls()
    a(f"""
    s_cmp_lg_u32 s38, 0
    s_cbranch_scc1 {lab}_bgot
    s_add_u32 s46, s46, 1
    s_cmp_gt_u32 s46, {spin}
    s_cselect_b32 s38, 4, 0
    s_cbranch_scc1 {lab}_bgot
    s_sleep 4
    s_branch {lab}_bspin
{lab}_bgot:
    v_mov_b32 v9, s38
    ds_write_b32 v4, v9
    s_waitcnt lgkmcnt(0)
{lab}_bw:
    s_barrier
    ds_read_b32 v9, v4
    s_waitcnt lgkmcnt(0)
    v_readfirstlane_b32 s38, v9
    s_barrier
    s_cmp_eq_u32 s38, 3
    s_cbranch_scc1 {lab}_done
    s_cmp_eq_u32 s38, 4
    s_cbranch_scc1 {fail}
    """)
    take(38)
    for d in dma(42): a(d)
    a(f"""
    s_mov_b32 s48, s44
    s_mov_b32 s49, s45
    s_waitcnt vmcnt(0)
    s_barrier
    """)
    a.label(lab+'_unit')
    a(f"""
    v_add_u32 v5, s42, v1
    s_xor_b32 s50, s42, 32768
    s_cmp_lg_u32 s6, 0
    s_cbranch_scc1 {lab}_np
    """)
    issue_polls()
    a.label(lab+'_np')
    XR=64; NR=8; ACC=[32,48]; PK=96
    reads=[(t,ks) for t in range(3) for ks in range(32)]
    def rd(i):
        t,ks=reads[i]; r=XR+4*(i%NR)
        a(f"ds_read_b128 v[{r}:{r+3}], v5 offset:{ks*1024}")
    AHEAD=6
    for i in range(AHEAD): rd(i)
    Ms=['K','V','Q']
    def epi(t):
        acc=ACC[t&1]; M=Ms[t]; out=[]
        for i in range(8): out.append(f"v_cvt_pk_bf16_f32 v{PK+i}, v{acc+2*i}, v{acc+2*i+1}")
        off={'Q':0,'K':8192,'V':16384}[M]
        out.append(f"s_add_u32 s33, s48, {off}\nbuffer_store_dwordx4 v[{PK}:{PK+3}], v3, s[8:11], s33 offen sc1")
        out.append(f"buffer_store_dwordx4 v[{PK+4}:{PK+7}], v3, s[8:11], s33 offen offset:1024 sc1")
        return out
    pend=[]
    for i,(t,ks) in enumerate(reads):
        M=Ms[t]; acc=ACC[t&1]; r=XR+4*(i%NR)
        remaining=min(AHEAD-1, len(reads)-1-i)
        a(f"s_waitcnt lgkmcnt({remaining})")
        c='0' if ks==0 else f"v[{acc}:{acc+15}]"
        if M=='V': a(f"v_mfma_f32_32x32x16_bf16 v[{acc}:{acc+15}], v[{r}:{r+3}], {W(M,ks)}, {c}")
        else: a(f"v_mfma_f32_32x32x16_bf16 v[{acc}:{acc+15}], {W(M,ks)}, v[{r}:{r+3}], {c}")
        if i+AHEAD<len(reads): rd(i+AHEAD)
        if t>=1 and ks==0: pend=epi(t-1)
        if t>=1 and ks>=6 and pend: a(pend.pop(0))
        if t==0 and ks==31:
            a(f"""
            s_cmp_lg_u32 s6, 0
            s_cbranch_scc1 {lab}_nd
            s_waitcnt vmcnt(0)
            """)
            eval_polls()
            a(f"""
            v_mov_b32 v9, s38
            ds_write_b32 v4, v9 offset:4
            s_waitcnt lgkmcnt(0)
{lab}_nd:
            s_barrier
            """)
        if t==1 and ks==20:
            a("ds_read_b32 v11, v4 offset:4")
        if t==2 and ks==0:
            a(f"""
            s_waitcnt lgkmcnt(0)
            v_readfirstlane_b32 s38, v11
            s_mov_b32 s47, 0
            s_cmp_eq_u32 s38, 0
            s_cbranch_scc1 {lab}_nopf
            s_cmp_eq_u32 s38, 3
            s_cbranch_scc1 {lab}_nopf
            s_mov_b32 s47, 1
            """)
            take(38)
            for d in dma(50): a(d)
            a.label(lab+'_nopf')
    for x in epi(2): a(x)
    a(f"""
    s_waitcnt vmcnt(0)
    s_barrier
    s_cmp_lg_u32 s6, 0
    s_cbranch_scc1 {lab}_nf
    """)
    flagval(a,9)
    a("""
    v_lshlrev_b32 v8, 2, v0
    s_mov_b64 exec, 0xff
    buffer_store_dword v9, v8, s[8:11], s49 offen sc1
    s_mov_b64 exec, -1
    """)
    a(f"""
{lab}_nf:
    s_mov_b32 s42, s50
    s_cmp_eq_u32 s47, 0
    s_cbranch_scc1 {lab}_block
    s_mov_b32 s48, s44
    s_mov_b32 s49, s45
    s_branch {lab}_unit
{lab}_done:
    """)

def emit_AWO(a, cfg, fail):
    spin=cfg.get('spin',SPIN_DEFAULT)
    lab=a.new('AWO')
    a("""
    s_load_dwordx2 s[12:13], s[0:1], 16      ; A_wo
    s_waitcnt lgkmcnt(0)
    s_mov_b32 s14, 524288
    s_mov_b32 s15, 0x20000
    v_lshrrev_b32 v61, 5, v0
    v_and_b32 v60, 31, v0
    s_lshl_b32 s32, s5, 9
    """)
    for var in range(2):
        a(f"""
        v_add_u32 v62, {2*var}, v61
        v_lshlrev_b32 v62, 2, v62
        v_xor_b32 v62, v60, v62
        v_lshlrev_b32 v62, 4, v62
        v_lshl_add_u32 v62, v61, 10, v62
        v_add_u32 v{40+var}, s32, v62
        """)
    a("s_lshl_b32 s32, s6, 3")
    tr_addr32(a,44,'s32',512,lambda r,o: a(f"v_lshlrev_b32 v{o}, 2, v{r}"),0)
    a("v_xor_b32 v45, 64, v44\nv_add_u32 v46, 0x10000, v44\nv_add_u32 v47, 0x10000, v45")
    def wreg(T,ks,p):
        b=(T*32+ks)*4+2*p; return f"a[{b}:{b+1}]"
    for rnd in range(2):
        a(f"s_lshl_b32 s33, s6, 16\ns_add_u32 s33, s33, {rnd*256*1024}\ns_lshl_b32 s34, s6, 15")
        for n in range(32):
            a(f"s_add_u32 m0, s34, {2*n*512}\ns_add_u32 s35, s33, {2*n*1024}\nbuffer_load_dwordx4 v{40+(n&1)}, s[12:15], s35 offen lds")
        a("s_waitcnt vmcnt(0)\ns_barrier")
        for ksl in range(16):
            ks=16*rnd+ksl
            for T in range(2):
                for p in range(2):
                    off=(ksl&7)*16*512+p*8*512
                    a(f"ds_read_b64_tr_b16 {wreg(T,ks,p)}, v{44+T+(2 if ksl>=8 else 0)} offset:{off}")
            if ksl%2==1: a("s_waitcnt lgkmcnt(4)")
        a("s_waitcnt lgkmcnt(0)\ns_barrier")
    a(f"""
    v_lshlrev_b32 v1, 4, v0
    s_lshl_b32 s32, s6, 13
    v_add_u32 v2, s32, v1
    s_lshl_b32 s32, s5, 14
    s_lshl_b32 s33, s6, 12
    s_add_u32 s32, s32, s33
    v_add_u32 v3, s32, v1
    s_mul_i32 s32, s4, {6*64*32768}
    s_add_u32 s43, s32, {xs(T_OA1,0)}
    s_add_u32 s44, s32, {xs(T_YA1,0)}
    s_lshl_b32 s32, s4, 13
    s_add_u32 s45, s32, {WS_FLAG+FL_OA}
    s_lshl_b32 s33, s5, 2
    s_add_u32 s46, s32, {WS_FLAG+FL_YA}
    s_add_u32 s46, s46, s33
    s_mov_b32 s40, 0
{lab}_loop:
    """)
    wait_flags(a,lab+'w',32,'s45',fail,spin)
    for n in range(8):
        a(f"s_lshl_b32 s32, s6, 13\ns_add_u32 m0, s32, {(n>>2)*4096}\ns_add_u32 s33, s43, {(n>>2)*4096}\nbuffer_load_dwordx4 v2, s[8:11], s33 offen offset:{(n&3)*1024} sc1 lds")
    a("s_waitcnt vmcnt(0)\ns_barrier")
    XR=64; NR=8; AHEAD=6
    def rd(i): a(f"ds_read_b128 v[{XR+4*(i%NR)}:{XR+4*(i%NR)+3}], v1 offset:{i*1024}")
    for i in range(AHEAD): rd(i)
    for ks in range(32):
        r=XR+4*(ks%NR)
        a(f"s_waitcnt lgkmcnt({min(AHEAD-1,31-ks)})")
        for T in range(2):
            acc=32+16*T; c='0' if ks==0 else f"v[{acc}:{acc+15}]"
            b=(T*32+ks)*4
            a(f"v_mfma_f32_32x32x16_bf16 v[{acc}:{acc+15}], a[{b}:{b+3}], v[{r}:{r+3}], {c}")
        if ks+AHEAD<32: rd(ks+AHEAD)
    for T in range(2):
        pack_tile(a,32+16*T,96+8*T)
    for f in range(4):
        a(f"buffer_store_dwordx4 v[{96+4*f}:{99+4*f}], v3, s[8:11], s44 offen offset:{f*1024} sc1")
    a(f"""
    s_waitcnt vmcnt(0)
    s_barrier
    s_cmp_lg_u32 s6, 0
    s_cbranch_scc1 {lab}_nf
    """)
    set_flag(a,'s46')
    a(f"""
{lab}_nf:
    s_add_u32 s43, s43, 32768
    s_add_u32 s44, s44, 32768
    s_add_u32 s45, s45, 128
    s_add_u32 s46, s46, 128
    s_add_u32 s40, s40, 1
    s_cmp_lt_u32 s40, 64
    s_cbranch_scc1 {lab}_loop
    """)

def causal_masks(a, sbase, tmp=(60,61)):
    t0,t1=tmp
    a(f"""
    v_and_b32 v{t0}, 31, v0
    v_lshrrev_b32 v{t1}, 5, v0
    v_lshlrev_b32 v{t1}, 2, v{t1}
    v_sub_u32 v{t0}, v{t0}, v{t1}
    """)
    for r in range(16):
        k=8*(r>>2)+(r&3)
        a(f"v_cmp_le_i32 s[{sbase+2*r}:{sbase+2*r+1}], {k}, v{t0}")

def emit_AH(a, cfg, fail):
    spin=cfg.get('spin',SPIN_DEFAULT)
    lab=a.new('AH')
    RDY=98304+64
    a(f"""
    s_load_dwordx2 s[12:13], s[0:1], 8       ; A_wqkv [512][1536]
    s_waitcnt lgkmcnt(0)
    s_mov_b32 s14, {512*3072}
    s_mov_b32 s15, 0x20000
    v_lshrrev_b32 v61, 3, v0
    v_and_b32 v60, 7, v0
    v_bfe_u32 v62, v61, 1, 1
    v_lshlrev_b32 v62, 2, v62
    v_xor_b32 v62, v60, v62
    v_lshrrev_b32 v63, 1, v62
    v_min_u32 v63, 2, v63
    v_and_b32 v62, 1, v62
    v_lshlrev_b32 v62, 4, v62
    v_lshl_add_u32 v62, v63, 10, v62
    v_mul_u32_u24 v63, 3072, v61
    v_add_u32 v62, v62, v63
    s_lshl_b32 s32, s5, 5
    v_add_u32 v40, s32, v62
    """)
    a(f"s_mul_i32 s33, s6, {128*3072}\ns_lshl_b32 s34, s6, 14")
    for n in range(16):
        a(f"s_add_u32 m0, s34, {8*n*128}\ns_add_u32 s35, s33, {8*n*3072}\nbuffer_load_dwordx4 v40, s[12:15], s35 offen lds")
    a("s_waitcnt vmcnt(0)\ns_barrier\ns_mov_b32 s32, 0")
    def swz(r,o): a(f"v_lshrrev_b32 v{o}, 1, v{r}\nv_lshlrev_b32 v{o}, 2, v{o}")
    tr_addr32(a,44,'s32',128,swz,0)
    a("v_xor_b32 v45, 64, v44")
    for ks in range(32):
        for p in range(2):
            off=ks*16*128+p*8*128
            a(f"ds_read_b64_tr_b16 a[{4*ks+2*p}:{4*ks+2*p+1}], v44 offset:{off}")
            a(f"ds_read_b64_tr_b16 a[{128+4*ks+2*p}:{128+4*ks+2*p+1}], v45 offset:{off}")
        if ks%2==1: a("s_waitcnt lgkmcnt(4)")
    a("s_waitcnt lgkmcnt(0)\ns_barrier")
    a(f"""
    v_mov_b32 v1, {RDY}
    v_mov_b32 v2, 0
    s_lshl_b32 s32, s6, 2
    v_add_u32 v3, s32, v1
    s_xor_b32 s33, s32, 4
    v_add_u32 v4, s33, v1
    ds_write_b32 v3, v2
    s_waitcnt lgkmcnt(0)
    s_barrier
    v_lshlrev_b32 v1, 4, v0                  ; lane*16
    s_lshr_b32 s40, s6, 1                    ; layer
    s_and_b32 s41, s6, 1                     ; unit s
    s_mul_i32 s42, s40, 49152
    s_mul_i32 s32, s40, {6*64*32768}
    s_add_u32 s43, s32, {xs(T_XNA1,0)}
    s_add_u32 s44, s32, {xs(T_OA1,0)}
    s_lshl_b32 s33, s5, 10
    s_add_u32 s44, s44, s33                  ; + h*1024
    s_lshl_b32 s32, s40, 14
    s_add_u32 s45, s32, {WS_FLAG+FL_XN}      ; (2l)*64*128
    s_lshl_b32 s32, s40, 13
    s_add_u32 s46, s32, {WS_FLAG+FL_OA}
    s_lshl_b32 s33, s5, 2
    s_add_u32 s46, s46, s33
    s_lshl_b32 s32, s41, 15
    s_add_u32 s43, s43, s32
    s_add_u32 s44, s44, s32
    s_lshl_b32 s32, s41, 7
    s_add_u32 s45, s45, s32
    s_add_u32 s46, s46, s32
    v_and_b32 v5, 31, v0
    v_cmp_le_u32 s[62:63], 16, v5
    v_mov_b32 v6, 0x3f803f80
    v_mov_b32 v7, 0xff7fffff                 ; -FLT_MAX
    s_mov_b32 s47, 0x3eb8aa3b                ; 0.25*log2(e)
    """)
    causal_masks(a,64)
    a.label(lab+'_loop')
    wait_flags(a,lab+'w',8,'s45',fail,spin)
    XB=64
    for g in range(8):
        a(f"s_add_u32 s32, s43, {g*4096}")
        for j in range(4):
            ks=4*g+j
            a(f"buffer_load_dwordx4 v[{XB+4*ks}:{XB+4*ks+3}], v1, s[8:11], s32 offen offset:{j*1024} sc1")
    for ks in range(32):
        a(f"s_waitcnt vmcnt({31-ks})")
        c0='0' if ks==0 else 'v[32:47]'; c1='0' if ks==0 else 'v[48:63]'
        a(f"v_mfma_f32_32x32x16_bf16 v[32:47], a[{4*ks}:{4*ks+3}], v[{XB+4*ks}:{XB+4*ks+3}], {c0}")
        a(f"v_mfma_f32_32x32x16_bf16 v[48:63], v[{XB+4*ks}:{XB+4*ks+3}], a[{128+4*ks}:{128+4*ks+3}], {c1}")
    for i in range(4): a(f"v_cvt_pk_bf16_f32 v{8+i}, v{32+2*i}, v{33+2*i}")
    for i in range(4): a(f"v_cvt_pk_bf16_f32 v{12+i}, v{40+2*i}, v{41+2*i}")
    for i in range(8): a(f"v_cvt_pk_bf16_f32 v{16+i}, v{48+2*i}, v{49+2*i}")
    for i in range(8): a(f"v_cndmask_b32 v{16+i}, v{16+i}, v6, s[62:63]")
    a(f"""
    s_and_b32 s32, s41, 15
    s_mul_i32 s32, s32, 3072
    s_add_u32 s32, s32, s42
    v_add_u32 v24, s32, v1
    ds_write_b128 v24, v[12:15]
    ds_write_b128 v24, v[16:19] offset:1024
    ds_write_b128 v24, v[20:23] offset:2048
    s_add_u32 s33, s41, 1
    v_mov_b32 v25, s33
    s_waitcnt lgkmcnt(0)
    ds_write_b32 v3, v25
    s_mov_b32 s48, 0
{lab}_pw:
    ds_read_b32 v26, v4
    s_waitcnt lgkmcnt(0)
    v_readfirstlane_b32 s49, v26
    s_cmp_ge_u32 s49, s41
    s_cbranch_scc1 {lab}_pok
    s_add_u32 s48, s48, 1
    s_cmp_gt_u32 s48, {spin*8}
    s_cbranch_scc1 {fail}
    s_sleep 1
    s_branch {lab}_pw
{lab}_pok:
    """)
    SB=64
    for b in range(9):
        L=f"{lab}_b{b}"
        a(f"""
        s_add_u32 s32, s41, {b}
        s_cmp_lt_u32 s32, 8
        s_cbranch_scc1 {L}_inv
        s_sub_u32 s32, s32, 8
        s_and_b32 s32, s32, 15
        s_mul_i32 s32, s32, 3072
        s_add_u32 s{50+b}, s32, s42
        v_add_u32 v24, s{50+b}, v1
        ds_read_b128 v[28:31], v24
        s_waitcnt lgkmcnt(0)
        v_mfma_f32_32x32x16_bf16 v[{SB+16*b}:{SB+16*b+15}], v[28:31], v[8:11], 0
        s_branch {L}_e
{L}_inv:
        s_mov_b32 s{50+b}, s42
        """)
        for r in range(16): a(f"v_mov_b32 v{SB+16*b+r}, v7")
        a.label(L+'_e')
    for r in range(16): a(f"v_cndmask_b32 v{SB+128+r}, v7, v{SB+128+r}, s[{64+2*r}:{65+2*r}]")
    for r in range(16): a(f"v_cndmask_b32 v{SB+r}, v{SB+r}, v7, s[{64+2*r}:{65+2*r}]")
    a(f"v_max3_f32 v24, v{SB}, v{SB+1}, v{SB+2}\nv_max3_f32 v25, v{SB+3}, v{SB+4}, v{SB+5}")
    i=6
    while i<144:
        a(f"v_max3_f32 v24, v24, v{SB+i}, v{SB+i+1}"); i+=2
        if i<144: a(f"v_max3_f32 v25, v25, v{SB+i}, v{SB+i+1}"); i+=2
    a(f"""
    v_max_f32 v24, v24, v25
    v_mov_b32 v25, v24
    v_permlane32_swap_b32 v24, v25
    v_max_f32 v24, v24, v25
    v_mul_f32 v24, s47, v24
    """)
    for b in range(9):
        for r in range(16): a(f"v_fma_f32 v{SB+16*b+r}, v{SB+16*b+r}, s47, -v24")
        for r in range(16): a(f"v_exp_f32 v{SB+16*b+r}, v{SB+16*b+r}")
        a(f"v_add_u32 v26, s{50+b}, v1\nds_read_b128 v[28:31], v26 offset:1024\nds_read_b128 v[208:211], v26 offset:2048")
        for i in range(8): a(f"v_cvt_pk_bf16_f32 v{SB+16*b+i}, v{SB+16*b+2*i}, v{SB+16*b+2*i+1}")
        c='0' if b==0 else 'v[32:47]'
        a(f"""
        s_waitcnt lgkmcnt(0)
        v_mfma_f32_32x32x16_bf16 v[32:47], v[28:31], v[{SB+16*b}:{SB+16*b+3}], {c}
        v_mfma_f32_32x32x16_bf16 v[32:47], v[208:211], v[{SB+16*b+4}:{SB+16*b+7}], v[32:47]
        """)
    a("v_rcp_f32 v24, v40")
    for r in range(8): a(f"v_mul_f32 v{32+r}, v{32+r}, v24")
    for i in range(4): a(f"v_cvt_pk_bf16_f32 v{8+i}, v{32+2*i}, v{33+2*i}")
    a(f"""
    buffer_store_dwordx4 v[8:11], v1, s[8:11], s44 offen sc1
    s_waitcnt vmcnt(0)
    """)
    set_flag(a,'s46')
    a(f"""
    s_add_u32 s43, s43, 65536
    s_add_u32 s44, s44, 65536
    s_add_u32 s45, s45, 256
    s_add_u32 s46, s46, 256
    s_add_u32 s41, s41, 2
    s_cmp_lt_u32 s41, 64
    s_cbranch_scc1 {lab}_loop
    """)

def emit_ATT(a, cfg, fail):
    spin=cfg.get('spin',SPIN_DEFAULT)
    lab=a.new('ATT')
    a(f"""
    s_lshl_b32 s40, s5, 2
    s_add_u32 s40, s40, s6                   ; head
    s_lshl_b32 s32, s4, 11
    s_add_u32 s32, s32, s40                  ; (l*64)*32 + h
    s_mul_i32 s43, s32, {QKV_BLK}
    s_lshl_b32 s44, s32, 12
    s_add_u32 s44, s44, {WS_KM}
    s_lshl_b32 s45, s32, 4
    s_add_u32 s45, s45, {WS_FLAG+FL_CH}
    s_lshl_b32 s33, s4, 13
    s_lshl_b32 s34, s40, 2
    s_add_u32 s46, s33, s34
    s_add_u32 s46, s46, {WS_FLAG+FL_OB}
    s_lshl_b32 s33, s4, 24                   ; l*64*256K
    s_lshl_b32 s34, s40, 13
    s_add_u32 s47, s33, s34
    s_add_u32 s47, s47, {WS_OB}
    s_lshl_b32 s42, s6, 12
    v_lshlrev_b32 v1, 4, v0
    v_lshrrev_b32 v60, 5, v0
    v_and_b32 v61, 7, v0
    v_lshlrev_b32 v2, 4, v61
    v_lshl_add_u32 v2, v60, 7, v2
    v_add_u32 v2, s42, v2
    v_and_b32 v61, 31, v0
    v_lshlrev_b32 v3, 4, v61
    v_lshl_add_u32 v3, v60, 3, v3
    v_add_u32 v3, s42, v3
    v_mov_b32 v7, 0xff7fffff
    v_mov_b32 v12, 0x3f803f80
    v_mov_b32 v13, 0x3f803f80
    v_mov_b32 v14, 0x3f803f80
    v_mov_b32 v15, 0x3f803f80
    s_mov_b32 s48, 0x3e0293ee                ; 128^-0.5*log2e
    s_mov_b32 s41, 0
    """)
    causal_masks(a,64)
    a.label(lab+'_loop')
    wait_flags(a,lab+'w',4,'s45',fail,spin)
    a(f"s_mov_b32 m0, s42")
    for j in range(4): a(f"buffer_load_dwordx4 v1, s[8:11], s44 offen offset:{j*1024} sc1 lds")
    Q=64; K=96; V=128; KM=160
    for blk,reg in ((1,K),(0,Q),(2,V)):
        for g in range(2):
            a(f"s_add_u32 s32, s43, {blk*8192+g*4096}")
            for j in range(4):
                r=reg+4*(4*g+j)
                a(f"buffer_load_dwordx4 v[{r}:{r+3}], v1, s[8:11], s32 offen offset:{j*1024} sc1")
    a("s_waitcnt vmcnt(24)")
    for ks in range(8): a(f"ds_read_b128 v[{KM+4*ks}:{KM+4*ks+3}], v2 offset:{ks*256}")
    VM=192
    for W_ in range(4):
        a(f"ds_read_b64 v[{VM+4*W_}:{VM+4*W_+1}], v3 offset:{2048+W_*512}\nv_mov_b32 v{VM+4*W_+2}, 0\nv_mov_b32 v{VM+4*W_+3}, 0")
    a("s_waitcnt vmcnt(8) lgkmcnt(0)")
    for ks in range(8):
        c0='0' if ks==0 else 'v[32:47]'; c1='0' if ks==0 else 'v[48:63]'
        a(f"v_mfma_f32_32x32x16_bf16 v[32:47], v[{K+4*ks}:{K+4*ks+3}], v[{Q+4*ks}:{Q+4*ks+3}], {c0}")
        a(f"v_mfma_f32_32x32x16_bf16 v[48:63], v[{KM+4*ks}:{KM+4*ks+3}], v[{Q+4*ks}:{Q+4*ks+3}], {c1}")
    for r in range(16): a(f"v_cndmask_b32 v{32+r}, v7, v{32+r}, s[{64+2*r}:{65+2*r}]")
    a("v_max3_f32 v24, v32, v33, v34\nv_max3_f32 v25, v35, v36, v37")
    a("""
    v_max3_f32 v24, v24, v38, v39
    v_max3_f32 v25, v25, v40, v41
    v_max3_f32 v24, v24, v42, v43
    v_max3_f32 v25, v25, v44, v45
    v_max3_f32 v24, v24, v46, v47
    v_max3_f32 v25, v25, v48, v49
    v_max3_f32 v24, v24, v50, v51
    v_max_f32 v24, v24, v25
    v_mov_b32 v25, v24
    v_permlane32_swap_b32 v24, v25
    v_max_f32 v24, v24, v25
    v_mul_f32 v24, s48, v24
    """)
    for r in range(20): a(f"v_fma_f32 v{32+r}, v{32+r}, s48, -v24")
    for r in range(20): a(f"v_exp_f32 v{32+r}, v{32+r}")
    for i in range(8): a(f"v_cvt_pk_bf16_f32 v{16+i}, v{32+2*i}, v{33+2*i}")
    a("""
    v_cvt_pk_bf16_f32 v8, v48, v49
    v_cvt_pk_bf16_f32 v9, v50, v51
    v_mov_b32 v10, 0
    v_mov_b32 v11, 0
    s_waitcnt vmcnt(0)
    v_mfma_f32_32x32x16_bf16 v[32:47], v[12:15], v[16:19], 0
    v_mfma_f32_32x32x16_bf16 v[32:47], v[12:15], v[20:23], v[32:47]
    v_mfma_f32_32x32x16_bf16 v[32:47], v[12:15], v[8:11], v[32:47]
    """)
    O=160
    OT=[160,176,208,224]
    for W_ in range(4):
        o=OT[W_]
        a(f"v_mfma_f32_32x32x16_bf16 v[{o}:{o+15}], v[{V+8*W_}:{V+8*W_+3}], v[16:19], 0")
        a(f"v_mfma_f32_32x32x16_bf16 v[{o}:{o+15}], v[{V+8*W_+4}:{V+8*W_+7}], v[20:23], v[{o}:{o+15}]")
        a(f"v_mfma_f32_32x32x16_bf16 v[{o}:{o+15}], v[{VM+4*W_}:{VM+4*W_+3}], v[8:11], v[{o}:{o+15}]")
    a("v_rcp_f32 v24, v32")
    for W_ in range(4):
        o=OT[W_]
        for r in range(16): a(f"v_mul_f32 v{o+r}, v{o+r}, v24")
        for i in range(8): a(f"v_cvt_pk_bf16_f32 v{Q+8*W_+i}, v{o+2*i}, v{o+2*i+1}")
        if W_==2: a("s_add_u32 s32, s47, 4096")
        for f in range(2):
            fi=2*W_+f
            a(f"buffer_store_dwordx4 v[{Q+4*fi}:{Q+4*fi+3}], v1, s[8:11], {'s47' if fi<4 else 's32'} offen offset:{(fi&3)*1024} sc1")
    a("s_waitcnt vmcnt(0)")
    set_flag(a,'s46')
    a(f"""
    s_add_u32 s43, s43, {32*QKV_BLK}
    s_add_u32 s44, s44, {32*4096}
    s_add_u32 s45, s45, 512
    s_add_u32 s46, s46, 128
    s_add_u32 s47, s47, 262144
    s_add_u32 s41, s41, 1
    s_cmp_lt_u32 s41, 64
    s_cbranch_scc1 {lab}_loop
    """)

def emit_O(a, cfg, fail):
    spin=cfg.get('spin',SPIN_DEFAULT)
    lab=a.new('O')
    a(f"""
    s_load_dwordx2 s[12:13], s[0:1], 64      ; B_Wo [4096][512]
    s_waitcnt lgkmcnt(0)
    s_mov_b32 s14, 4194304
    s_mov_b32 s15, 0x20000
    s_lshr_b32 s40, s5, 3                    ; kh
    s_and_b32 s41, s5, 7                     ; nq
    v_lshrrev_b32 v61, 3, v0                 ; row_local
    v_and_b32 v60, 7, v0
    v_bfe_u32 v62, v61, 1, 1
    v_lshlrev_b32 v62, 2, v62
    v_xor_b32 v62, v60, v62
    v_lshlrev_b32 v62, 4, v62
    v_lshl_add_u32 v62, v61, 10, v62
    s_lshl_b32 s32, s41, 7
    v_add_u32 v40, s32, v62
    s_mov_b32 s32, 0
    """)
    def swz(r,o): a(f"v_lshrrev_b32 v{o}, 1, v{r}\nv_lshlrev_b32 v{o}, 2, v{o}")
    tr_addr32(a,44,'s32',128,swz,0)
    a("s_lshl_b32 s34, s6, 15\nv_add_u32 v44, s34, v44\nv_xor_b32 v45, 64, v44")
    for rnd in range(2):
        a(f"s_lshl_b32 s33, s40, 21\ns_lshl_b32 s35, s6, 19\ns_add_u32 s33, s33, s35\ns_add_u32 s33, s33, {rnd*256*1024}")
        for n in range(32):
            a(f"s_add_u32 m0, s34, {8*n*128}\ns_add_u32 s35, s33, {8*n*1024}\nbuffer_load_dwordx4 v40, s[12:15], s35 offen lds")
        a("s_waitcnt vmcnt(0)")
        for ksl in range(16):
            ks=16*rnd+ksl
            for T in range(2):
                for p in range(2):
                    b=(T*32+ks)*4+2*p
                    a(f"ds_read_b64_tr_b16 a[{b}:{b+1}], v{44+T} offset:{ksl*2048+p*1024}")
            if ksl%2==1: a("s_waitcnt lgkmcnt(4)")
        a("s_waitcnt lgkmcnt(0)")
    a(f"""
    s_barrier
    v_lshlrev_b32 v1, 4, v0
    s_lshl_b32 s32, s4, 24
    s_lshl_b32 s33, s40, 17
    s_lshl_b32 s34, s6, 15
    s_add_u32 s43, s32, s33
    s_add_u32 s43, s43, s34
    s_add_u32 s43, s43, {WS_OB}
    s_lshl_b32 s32, s4, 23                   ; l*64*128K
    s_lshl_b32 s33, s40, 15
    s_lshl_b32 s34, s41, 12
    s_add_u32 s44, s32, s33
    s_add_u32 s44, s44, s34
    s_lshl_b32 s34, s6, 10
    s_add_u32 s44, s44, s34
    s_add_u32 s44, s44, {WS_PO}
    s_lshl_b32 s32, s4, 13
    s_lshl_b32 s33, s40, 6
    s_lshl_b32 s34, s6, 4
    s_add_u32 s45, s32, s33
    s_add_u32 s45, s45, s34
    s_add_u32 s45, s45, {WS_FLAG+FL_OB}
    s_lshl_b32 s33, s5, 2
    s_add_u32 s46, s32, s33
    s_add_u32 s46, s46, {WS_FLAG+FL_PO}
    s_lshl_b32 s32, s6, 13
    v_add_u32 v2, s32, v1
    s_lshl_b32 s32, s6, 11
    v_add_u32 v3, s32, v1
    s_mov_b32 s47, 0
{lab}_loop:
    """)
    wait_flags(a,lab+'w',4,'s45',fail,spin)
    XB=64
    for g in range(8):
        a(f"s_add_u32 s32, s43, {g*4096}")
        for j in range(4):
            ks=4*g+j
            a(f"buffer_load_dwordx4 v[{XB+4*ks}:{XB+4*ks+3}], v1, s[8:11], s32 offen offset:{j*1024} sc1")
    for ks in range(32):
        a(f"s_waitcnt vmcnt({31-ks})")
        for T in range(2):
            acc=32+16*T; c='0' if ks==0 else f"v[{acc}:{acc+15}]"; b=(T*32+ks)*4
            a(f"v_mfma_f32_32x32x16_bf16 v[{acc}:{acc+15}], a[{b}:{b+3}], v[{XB+4*ks}:{XB+4*ks+3}], {c}")
    for q in range(8): a(f"ds_write_b128 v2, v[{32+4*q}:{35+4*q}] offset:{q*1024}")
    a("s_waitcnt lgkmcnt(0)\ns_barrier")
    for w in range(4):
        for q in range(2): a(f"ds_read_b128 v[{64+8*w+4*q}:{67+8*w+4*q}], v3 offset:{w*8192+q*1024}")
    a("s_waitcnt lgkmcnt(0)")
    for r in range(0,8,2):
        a(f"v_pk_add_f32 v[{64+r}:{65+r}], v[{64+r}:{65+r}], v[{72+r}:{73+r}]\nv_pk_add_f32 v[{80+r}:{81+r}], v[{80+r}:{81+r}], v[{88+r}:{89+r}]")
    for r in range(0,8,2):
        a(f"v_pk_add_f32 v[{64+r}:{65+r}], v[{64+r}:{65+r}], v[{80+r}:{81+r}]")
    for i in range(4): a(f"v_cvt_pk_bf16_f32 v{8+i}, v{64+2*i}, v{65+2*i}")
    a(f"""
    buffer_store_dwordx4 v[8:11], v1, s[8:11], s44 offen sc1
    s_waitcnt vmcnt(0)
    s_barrier
    s_cmp_lg_u32 s6, 0
    s_cbranch_scc1 {lab}_nf
    """)
    set_flag(a,'s46')
    a(f"""
{lab}_nf:
    s_add_u32 s43, s43, 262144
    s_add_u32 s44, s44, 131072
    s_add_u32 s45, s45, 128
    s_add_u32 s46, s46, 128
    s_add_u32 s47, s47, 1
    s_cmp_lt_u32 s47, 64
    s_cbranch_scc1 {lab}_loop
    """)

TSP=False
def tsp(a, role, k, unit_sreg, cond_sregs=()):
    if not TSP: return
    L=a.new('tsp')
    for c in cond_sregs: a(f"s_cmp_lg_u32 {c}, 0\ns_cbranch_scc1 {L}")
    a(f"""
    s_memrealtime s[98:99]
    s_lshl_b32 s97, {unit_sreg}, 6
    s_add_u32 s97, s97, {0xCC00000+role*0x10000+k*4}
    s_waitcnt lgkmcnt(0)
    v_mov_b32 v248, s98
    v_mov_b32 v249, 0
    s_mov_b64 exec, 1
    buffer_store_dword v248, v249, s[8:11], s97 offen
    s_mov_b64 exec, -1
{L}:
    """)

def prefetch_code(a, start, end, end_hint_bytes, vt=(2,3,4,5), st=(20,21)):
    L=a.new('pc')
    s0,s1=st; v0_,v1_,v2_,v3_=vt
    a(f"""
    s_getpc_b64 s[{s0}:{s1}]
{L}:
    s_add_u32 s{s0}, s{s0}, {start}-{L}
    s_addc_u32 s{s1}, s{s1}, 0
    v_mbcnt_lo_u32_b32 v{v2_}, -1, 0
    v_mbcnt_hi_u32_b32 v{v2_}, -1, v{v2_}
    v_lshlrev_b32 v{v2_}, 6, v{v2_}
    """)
    n=(end_hint_bytes+4095)//4096
    for i in range(n):
        a(f"v_min_u32 v{v1_}, {end}-{start}-4, v{v2_}\nglobal_load_dword v254, v{v1_}, s[{s0}:{s1}]")
        if i+1<n: a(f"v_add_u32 v{v2_}, 4096, v{v2_}")

DBGTS=False
def dbgts(a, idx, conds=(), vt=(248,249)):
    if not DBGTS: return
    L=a.new('dts')
    for s,v in conds: a(f"s_cmp_lg_u32 {s}, {v}\ns_cbranch_scc1 {L}")
    a(f"""
    s_load_dwordx2 s[96:97], s[0:1], 88
    s_memrealtime s[100:101]
    s_waitcnt lgkmcnt(0)
    v_mov_b32 v{vt[0]}, s100
    v_mov_b32 v{vt[1]}, {idx*4}
    s_mov_b64 exec, 1
    global_store_dword v{vt[1]}, v{vt[0]}, s[96:97]
    s_mov_b64 exec, -1
{L}:
    """)
```

```python
from common import *
import roles
from roles import wait_flags, set_flag, flagval, tr_addr32, pack_tile, causal_masks, SPIN_DEFAULT
from roles2 import poll_issue
NXN=16
NYA=16

def dma_list(n, shift, bufreg):
    out=[]
    for i in range(n):
        pre=''
        if i==0: pre+=f"s_lshl_b32 s53, s6, {shift}\ns_add_u32 s53, s53, {bufreg}\n"
        if i%4==0: pre+=f"s_add_u32 m0, s53, {(i>>2)*4096}\ns_add_u32 s33, s43, {(i>>2)*4096}\n"
        out.append(pre+f"buffer_load_dwordx4 v2, s[8:11], s33 offen offset:{(i&3)*1024} sc1 lds")
    return out

def gemm_loop(a, lab, nks, mf, rd, AHEAD, chk_ks, emit_check, dl, extra=None):
    def step(ks):
        a(f"s_waitcnt lgkmcnt({min(AHEAD-1,nks-1-ks)})")
        mf(ks)
        if ks+AHEAD<nks: rd(ks+AHEAD)
        if extra: extra(ks)
    for ks in range(chk_ks+1): step(ks)
    emit_check()
    L=a.new(lab+'v')
    n=len(dl)
    a(f"s_cmp_eq_u32 s48, 0\ns_cbranch_scc1 {L}_n")
    for j in range(n):
        step(chk_ks+1+j); a(dl[j])
    a(f"s_branch {L}_e\n{L}_n:")
    for j in range(n): step(chk_ks+1+j)
    a.label(L+'_e')
    for ks in range(chk_ks+1+n,nks): step(ks)

def emit_F(a, cfg, typ, fail):
    spin=cfg.get('spin',SPIN_DEFAULT)
    lab=a.new('F'+typ)
    npart={'T0':0,'T1':1,'T2':4,'T3':4}[typ]
    nfl={'T0':0,'T1':NYA,'T2':64,'T3':64}[typ]
    US=2 if typ=='T2' else 1
    flstep={'T0':0,'T1':128,'T2':256,'T3':256}[typ]*US
    a(f"""
    v_and_b32 v1, 7, v0
    v_bfe_u32 v2, v0, 3, 1
    v_lshrrev_b32 v3, 4, v0
    v_lshlrev_b32 v4, 4, v1
    v_lshl_add_u32 v4, v2, 9, v4
    v_lshl_add_u32 v4, v3, 10, v4
    s_lshl_b32 s12, s6, 13
    s_lshl_b32 s13, s5, 7
    s_add_u32 s12, s12, s13
    v_add_u32 v4, s12, v4
    s_lshl_b32 s13, s5, 3
    v_add_u32 v5, s13, v1
    v_lshlrev_b32 v5, 10, v5
    v_lshl_add_u32 v5, v3, 5, v5
    v_lshl_add_u32 v5, v2, 4, v5
    s_lshl_b32 s13, s6, 8
    v_add_u32 v5, s13, v5
    v_lshlrev_b32 v6, 3, v1
    s_lshl_b32 s13, s6, 6
    v_add_u32 v7, s13, v6
    """)
    if typ=='T0':
        a(f"""
        s_load_dwordx2 s[16:17], s[0:1], 0
        s_waitcnt lgkmcnt(0)
        s_mov_b32 s18, {2048*1024}
        s_mov_b32 s19, 0x20000
        s_mov_b32 s20, 0
        s_mov_b32 s22, {xs(T_X0,0)}
        s_mov_b32 s23, {xs(T_XNA1,0)}
        s_mov_b32 s24, {WS_FLAG+FL_XN+0*64*128}
        """)
    elif typ=='T1':
        a(f"""
        s_mul_i32 s13, s4, {6*64*32768}
        s_add_u32 s20, s13, {xs(T_X0,0)}
        s_add_u32 s21, s13, {xs(T_YA1,0)}
        s_add_u32 s22, s13, {xs(T_X1,0)}
        s_add_u32 s23, s13, {xs(T_XNB1,0)}
        s_lshl_b32 s13, s4, 14
        s_add_u32 s24, s13, {WS_FLAG+FL_XN+1*64*128}
        s_lshl_b32 s13, s4, 13
        s_add_u32 s25, s13, {WS_FLAG+FL_YA}
        """)
    elif typ=='T2':
        a(f"""
        s_lshl_b32 s13, s4, 15
        s_add_u32 s20, s13, {xs(T_X1,0)}
        s_add_u32 s22, s13, {xs(T_X2,0)}
        s_add_u32 s23, s13, {xs(T_XNA2,0)}
        s_lshl_b32 s13, s4, 17
        s_add_u32 s21, s13, {WS_PO}
        s_lshl_b32 s13, s4, 7
        s_add_u32 s24, s13, {WS_FLAG+FL_XN+2*64*128}
        s_lshl_b32 s13, s4, 8
        s_add_u32 s25, s13, {WS_FLAG+FL_PO}
        """)
    else:
        a(f"""
        s_load_dwordx2 s[16:17], s[0:1], 80
        s_waitcnt lgkmcnt(0)
        s_mov_b32 s18, {2048*1024}
        s_mov_b32 s19, 0x20000
        s_mov_b32 s20, {xs(T_X3,0)}
        s_mov_b32 s21, {WS_PO+64*131072}
        s_mov_b32 s22, 0
        s_mov_b32 s25, {WS_FLAG+FL_PO+64*256}
        """)
    a(f"""
    s_lshl_b32 s13, s5, 4
    s_lshl_b32 s14, s6, 2
    s_add_u32 s13, s13, s14
    {'s_add_u32 s24, s24, s13' if typ!='T3' else ''}
    s_mov_b32 s26, 0
    v_mov_b32 v8, 0x3f803f80
    s_mov_b32 s27, 0xffff0000
    s_mov_b32 s30, 0
    s_mov_b32 s31, 0
    """)
    SETS=[(16,24),(64,72)]
    W=112
    NS={'T0':4,'T1':4,'T2':4,'T3':2}[typ]
    def xchg(X):
        for j in range(2):
            b=X+4*j
            for d in range(2):
                a(f"""
                v_mov_b32 v12, v{b+d}
                s_nop 1
                v_mov_b32_dpp v{b+d}, v{b+2+d} row_shr:8 row_mask:0xf bank_mask:0xc
                v_mov_b32_dpp v{b+2+d}, v12 row_shl:8 row_mask:0xf bank_mask:0x3
                """)
    def loads(st):
        X,P0=SETS[st]
        if typ=='T0':
            for j in range(2): a(f"buffer_load_dwordx4 v[{X+4*j}:{X+4*j+3}], v5, s[16:19], s20 offen offset:{128*j}")
            a("s_add_u32 s20, s20, 32768")
        else:
            for p in range(npart):
                for j in range(2):
                    a(f"s_add_u32 s13, s21, {p*32768+j*4096}\nbuffer_load_dwordx4 v[{P0+8*p+4*j}:{P0+8*p+4*j+3}], v4, s[8:11], s13 offen sc1")
            for j in range(2):
                a(f"s_add_u32 s13, s20, {j*4096}\nbuffer_load_dwordx4 v[{X+4*j}:{X+4*j+3}], v4, s[8:11], s13 offen sc1")
            a(f"s_add_u32 s20, s20, {32768*US}\ns_add_u32 s21, s21, {(32768 if typ=='T1' else 131072)*US}\ns_add_u32 s25, s25, {flstep}")
    def flag_prev():
        if typ=='T3': return
        if typ=='T0' and not cfg.get('init',False):
            LL=a.new(lab+'iw')
            a(f"s_cmp_eq_u32 s34, 1\ns_cbranch_scc1 {LL}")
            cfg['init_wait'](a,LL+'x')
            a(f"s_mov_b32 s34, 1\n{LL}:")
        set_flag(a,'s24')
        a(f"s_add_u32 s24, s24, {128*US}")
    if typ!='T0': cfg['init_wait'](a,lab)
    else: a("s_mov_b32 s34, 0")
    if nfl: wait_flags(a,lab+'w0',nfl,'s25',fail,spin)
    loads(0)
    def iteration(st):
        X,P0=SETS[st]; L=f"{lab}_i{st}"
        a.label(L)
        D=cfg.get('pace',0)
        if typ=='T0' and D:
            a(f"s_cmp_lt_u32 s26, {D}\ns_cbranch_scc1 {L}_npc\ns_sub_u32 s35, s26, {D}\ns_lshl_b32 s35, s35, 9\ns_add_u32 s35, s35, {WS_FLAG+FL_CH}")
            wait_flags(a,L+'pc',4,'s35',fail,spin,sleep=8)
            a.label(L+'_npc')
        if nfl: poll_issue(a,nfl,'s25',10,9)
        np_=1 if nfl else 0
        a(f"""
        s_cmp_eq_u32 s31, 0
        s_cbranch_scc1 {L}_w1
        s_waitcnt vmcnt({NS+np_})
        s_branch {L}_w2
{L}_w1:
        s_waitcnt vmcnt({np_})
{L}_w2:
        """)
        if typ=='T0': xchg(X)
        else:
            for r in range(8):
                w0=W+2*r
                if npart==4:
                    a(f"""
                    v_lshlrev_b32 v{w0}, 16, v{P0+r}
                    v_and_b32 v{w0+1}, s27, v{P0+r}
                    v_lshlrev_b32 v12, 16, v{P0+8+r}
                    v_and_b32 v13, s27, v{P0+8+r}
                    v_lshlrev_b32 v14, 16, v{P0+16+r}
                    v_and_b32 v15, s27, v{P0+16+r}
                    v_pk_add_f32 v[{w0}:{w0+1}], v[{w0}:{w0+1}], v[12:13]
                    v_lshlrev_b32 v12, 16, v{P0+24+r}
                    v_and_b32 v13, s27, v{P0+24+r}
                    v_pk_add_f32 v[14:15], v[14:15], v[12:13]
                    v_pk_add_f32 v[{w0}:{w0+1}], v[{w0}:{w0+1}], v[14:15]
                    v_cvt_pk_bf16_f32 v{P0+r}, v{w0}, v{w0+1}
                    """)
                a(f"""
                v_lshlrev_b32 v{w0}, 16, v{P0+r}
                v_and_b32 v{w0+1}, s27, v{P0+r}
                v_lshlrev_b32 v12, 16, v{X+r}
                v_and_b32 v13, s27, v{X+r}
                v_pk_add_f32 v[{w0}:{w0+1}], v[{w0}:{w0+1}], v[12:13]
                v_cvt_pk_bf16_f32 v{X+r}, v{w0}, v{w0+1}
                """)
        def prefetch():
            a(f"""
            s_mov_b32 s31, 0
            s_cmp_ge_u32 s26, {64//US-1}
            s_cbranch_scc1 {L}_np
            """)
            if nfl: a(f"v_cmp_eq_u32 vcc, 0, v9\ns_cbranch_vccnz {L}_np")
            a("s_mov_b32 s31, 1")
            loads(1-st)
            a.label(L+'_np')
        if typ=='T3':
            xchg(X)
            for j in range(2): a(f"buffer_store_dwordx4 v[{X+4*j}:{X+4*j+3}], v5, s[16:19], s22 offen offset:{128*j}")
            a("s_add_u32 s22, s22, 32768")
            a("s_waitcnt vmcnt(2)")
            prefetch()
            a(f"""
            s_add_u32 s26, s26, 1
            s_cmp_eq_u32 s31, 1
            s_cbranch_scc0 {L}_slow
            s_mov_b32 s31, 0
            s_branch {lab}_i{1-st}
{L}_slow:
            s_cmp_ge_u32 s26, {64//US}
            s_cbranch_scc1 {lab}_done
            """)
            wait_flags(a,L+'ws',nfl,'s25',fail,spin)
            loads(1-st)
            if st==1: a(f"s_branch {lab}_i0")
            return
        if nfl: a("s_waitcnt vmcnt(0)")
        prefetch()
        a("s_add_u32 s13, s22, 4096")
        for j in range(2):
            a(f"buffer_store_dwordx4 v[{X+4*j}:{X+4*j+3}], v4, s[8:11], {'s22' if j==0 else 's13'} offen sc1")
        a("v_mov_b32 v12, 0\nv_mov_b32 v13, 0\nv_mov_b32 v14, 0\nv_mov_b32 v15, 0")
        for r in range(0,8,2):
            a(f"v_dot2_f32_bf16 v12, v{X+r}, v8, v12\nv_dot2_f32_bf16 v13, v{X+r}, v{X+r}, v13\nv_dot2_f32_bf16 v14, v{X+r+1}, v8, v14\nv_dot2_f32_bf16 v15, v{X+r+1}, v{X+r+1}, v15")
        a(f"""
        v_pk_add_f32 v[12:13], v[12:13], v[14:15]
        s_nop 1
        v_add_f32_dpp v12, v12, v12 row_ror:8 row_mask:0xf bank_mask:0xf
        v_add_f32_dpp v13, v13, v13 row_ror:8 row_mask:0xf bank_mask:0xf
        v_mov_b32 v10, v12
        v_mov_b32 v11, v13
        v_permlane16_swap_b32 v12, v10
        v_permlane16_swap_b32 v13, v11
        v_pk_add_f32 v[12:13], v[12:13], v[10:11]
        v_mov_b32 v10, v12
        v_mov_b32 v11, v13
        v_permlane32_swap_b32 v12, v10
        v_permlane32_swap_b32 v13, v11
        v_pk_add_f32 v[12:13], v[12:13], v[10:11]
        s_mov_b64 exec, 0xff
        ds_write_b64 v7, v[12:13] offset:{256*st}
        s_mov_b64 exec, -1
        s_waitcnt lgkmcnt(0)
        s_barrier
        ds_read_b64 v[10:11], v6 offset:{256*st}
        ds_read_b64 v[12:13], v6 offset:{256*st+64}
        ds_read_b64 v[14:15], v6 offset:{256*st+128}
        ds_read_b64 v[{W}:{W+1}], v6 offset:{256*st+192}
        s_waitcnt lgkmcnt(0)
        v_pk_add_f32 v[10:11], v[10:11], v[12:13]
        v_pk_add_f32 v[14:15], v[14:15], v[{W}:{W+1}]
        v_pk_add_f32 v[10:11], v[10:11], v[14:15]
        v_mul_f32 v10, 0x3b000000, v10
        v_mul_f32 v11, 0x3b000000, v11
        v_fma_f32 v11, -v10, v10, v11
        v_max_f32 v11, 0, v11
        v_cvt_pk_bf16_f32 v14, v10, v11
        v_lshlrev_b32 v12, 16, v14
        v_and_b32 v11, s27, v14
        v_add_f32 v11, 0x3727c5ac, v11
        v_cvt_pk_bf16_f32 v11, v11, v11
        v_and_b32 v11, s27, v11
        v_sqrt_f32 v11, v11
        v_mov_b32 v13, v12
        v_cvt_pk_bf16_f32 v11, v11, v11
        v_and_b32 v11, s27, v11
        v_rcp_f32 v14, v11
        s_nop 0
        v_mov_b32 v15, v14
        """)
        for r in range(8):
            w0=W+2*r
            a(f"""
            v_lshlrev_b32 v{w0}, 16, v{X+r}
            v_and_b32 v{w0+1}, s27, v{X+r}
            v_pk_add_f32 v[{w0}:{w0+1}], v[{w0}:{w0+1}], v[12:13] neg_lo:[0,1] neg_hi:[0,1]
            v_cvt_pk_bf16_f32 v{P0+r}, v{w0}, v{w0+1}
            v_lshlrev_b32 v{w0}, 16, v{P0+r}
            v_and_b32 v{w0+1}, s27, v{P0+r}
            v_pk_mul_f32 v[{w0}:{w0+1}], v[{w0}:{w0+1}], v[14:15]
            v_cvt_pk_bf16_f32 v{P0+r}, v{w0}, v{w0+1}
            """)
        a("s_add_u32 s13, s23, 4096")
        for j in range(2):
            a(f"buffer_store_dwordx4 v[{P0+4*j}:{P0+4*j+3}], v4, s[8:11], {'s23' if j==0 else 's13'} offen sc1")
        a(f"s_add_u32 s22, s22, {32768*US}\ns_add_u32 s23, s23, {32768*US}")
        a("s_waitcnt vmcnt(0)")
        flag_prev()
        a(f"""
        s_add_u32 s26, s26, 1
        s_cmp_eq_u32 s31, 1
        s_cbranch_scc0 {L}_slow
        s_mov_b32 s31, 0
        s_branch {lab}_i{1-st}
{L}_slow:
        s_cmp_ge_u32 s26, {64//US}
        s_cbranch_scc1 {lab}_done
        """)
        if nfl: wait_flags(a,L+'ws',nfl,'s25',fail,spin)
        loads(1-st)
        if st==1: a(f"s_branch {lab}_i0")
    iteration(0); iteration(1)
    a.label(lab+'_done')
    if typ=='T3': a('s_waitcnt vmcnt(0)'); roles.dbgts(a,11,[('s5',0),('s6',0)])
    if typ=='T0': roles.dbgts(a,12,[('s5',0),('s6',0)])

def emit_AWO(a, cfg, fail):
    spin=cfg.get('spin',SPIN_DEFAULT)
    lab=a.new('AWO')
    loc=cfg.get('st','')
    a("""
    s_load_dwordx2 s[12:13], s[0:1], 16      ; A_wo [512][512]
    s_waitcnt lgkmcnt(0)
    s_mov_b32 s14, 524288
    s_mov_b32 s15, 0x20000
    v_lshrrev_b32 v61, 4, v0
    v_and_b32 v60, 15, v0
    v_lshlrev_b32 v62, 2, v61
    v_xor_b32 v62, v60, v62
    v_lshlrev_b32 v62, 4, v62
    v_lshl_add_u32 v62, v61, 10, v62
    s_lshl_b32 s32, s5, 8
    v_add_u32 v40, s32, v62
    s_lshl_b32 s32, s6, 2
    """)
    tr_addr32(a,44,'s32',256,lambda r,o: a(f"v_lshlrev_b32 v{o}, 2, v{r}"),0)
    a("v_add_u32 v45, 0x10000, v44")
    a("s_lshl_b32 s33, s6, 17\ns_lshl_b32 s34, s6, 15")
    for n in range(32):
        a(f"s_add_u32 m0, s34, {4*n*256}\ns_add_u32 s35, s33, {4*n*1024}\nbuffer_load_dwordx4 v40, s[12:15], s35 offen lds")
    a("s_waitcnt vmcnt(0)\ns_barrier")
    for ks in range(32):
        for p in range(2):
            a(f"ds_read_b64_tr_b16 a[{4*ks+2*p}:{4*ks+2*p+1}], v{44+(ks>>4)} offset:{(ks&15)*4096+p*2048}")
        if ks%4==3: a("s_waitcnt lgkmcnt(4)")
    a("s_waitcnt lgkmcnt(0)\ns_barrier")
    a(f"""
    v_lshlrev_b32 v1, 4, v0
    s_lshl_b32 s32, s6, 13
    v_add_u32 v2, s32, v1
    s_lshl_b32 s32, s5, 13
    s_lshl_b32 s33, s6, 11
    s_add_u32 s32, s32, s33
    v_add_u32 v3, s32, v1
    s_mul_i32 s32, s4, {6*64*32768}
    s_add_u32 s43, s32, {xs(T_OA1,0)}
    s_add_u32 s44, s32, {xs(T_YA1,0)}
    s_lshl_b32 s32, s4, 13
    s_add_u32 s45, s32, {WS_FLAG+FL_OA}
    s_lshl_b32 s33, s5, 4
    s_lshl_b32 s34, s6, 2
    s_add_u32 s33, s33, s34
    s_add_u32 s46, s32, {WS_FLAG+FL_YA}
    s_add_u32 s46, s46, s33
    s_mov_b32 s40, 0
    s_mov_b32 s42, 0
    """)
    def dma(bufreg):
        out=[]
        for n in range(8):
            out.append(f"s_lshl_b32 s32, s6, 13\ns_add_u32 s32, s32, {bufreg}\ns_add_u32 m0, s32, {(n>>2)*4096}\ns_add_u32 s33, s43, {(n>>2)*4096}\nbuffer_load_dwordx4 v2, s[8:11], s33 offen offset:{(n&3)*1024} sc1 lds")
        return out
    cfg['init_wait'](a,lab)
    wait_flags(a,lab+'w0',32,'s45',fail,spin)
    for d in dma_list(8,13,'s42'): a(d)
    a("s_add_u32 s43, s43, 32768\ns_add_u32 s45, s45, 128\ns_waitcnt vmcnt(0)\ns_barrier")
    a.label(lab+'_unit')
    a("v_add_u32 v5, s42, v1\ns_xor_b32 s50, s42, 32768")
    poll_issue(a,32,'s45',10,9)
    XR=64; NR=8; AHEAD=6
    def rd(i): a(f"ds_read_b128 v[{XR+4*(i%NR)}:{XR+4*(i%NR)+3}], v5 offset:{i*1024}")
    for i in range(AHEAD): rd(i)
    dl=dma_list(8,13,'s50')
    def mf(ks):
        r=XR+4*(ks%NR); c='0' if ks==0 else "v[32:47]"
        a(f"v_mfma_f32_32x32x16_bf16 v[32:47], a[{4*ks}:{4*ks+3}], v[{r}:{r+3}], {c}")
    def check():
        a(f"""
        s_waitcnt vmcnt(0)
        s_mov_b32 s48, 0
        s_cmp_ge_u32 s40, 63
        s_cselect_b32 s49, 1, 0
        v_cmp_eq_u32 vcc, 0, v9
        s_cmp_eq_u64 vcc, 0
        s_cselect_b32 s48, 1, 0
        s_cmp_eq_u32 s49, 1
        s_cselect_b32 s48, 0, s48
        """)
    gemm_loop(a,lab,32,mf,rd,AHEAD,20,check,dl)
    pack_tile(a,32,96)
    for f in range(2):
        a(f"buffer_store_dwordx4 v[{96+4*f}:{99+4*f}], v3, s[8:11], s44 offen offset:{f*1024} {loc}")
    a("s_add_u32 s44, s44, 32768\ns_add_u32 s40, s40, 1\ns_waitcnt vmcnt(0)")
    set_flag(a,'s46',vtmp=(11,12),scope=loc)
    a(f"""
    s_add_u32 s46, s46, 128
    s_mov_b32 s42, s50
    s_cmp_eq_u32 s48, 0
    s_cbranch_scc1 {lab}_slow
    s_add_u32 s43, s43, 32768
    s_add_u32 s45, s45, 128
    s_barrier
    s_branch {lab}_unit
{lab}_slow:
    s_cmp_ge_u32 s40, 64
    s_cbranch_scc1 {lab}_done
    """)
    wait_flags(a,lab+'ws',32,'s45',fail,spin)
    for d in dma_list(8,13,'s42'): a(d)
    a(f"""
    s_add_u32 s43, s43, 32768
    s_add_u32 s45, s45, 128
    s_waitcnt vmcnt(0)
    s_barrier
    s_branch {lab}_unit
{lab}_done:
    """)

def emit_P(a, cfg, fail):
    spin=cfg.get('spin',SPIN_DEFAULT)
    lab=a.new('P')
    a("""
    s_load_dwordx2 s[12:13], s[0:1], 40      ; Wq
    s_load_dwordx2 s[16:17], s[0:1], 48      ; Wk
    s_load_dwordx2 s[20:21], s[0:1], 56      ; Wv
    s_waitcnt lgkmcnt(0)
    s_mov_b32 s14, 4194304
    s_mov_b32 s15, 0x20000
    s_mov_b32 s18, 4194304
    s_mov_b32 s19, 0x20000
    s_mov_b32 s22, 4194304
    s_mov_b32 s23, 0x20000
    v_lshrrev_b32 v61, 4, v0
    v_and_b32 v60, 15, v0
    v_lshlrev_b32 v62, 2, v61
    v_xor_b32 v62, v60, v62
    v_lshlrev_b32 v62, 4, v62
    v_lshl_add_u32 v62, v61, 13, v62
    s_lshl_b32 s32, s5, 8
    v_add_u32 v40, s32, v62
    s_lshl_b32 s32, s6, 2
    """)
    tr_addr32(a,44,'s32',256,lambda r,o: a(f"v_lshlrev_b32 v{o}, 2, v{r}"),0)
    a("v_add_u32 v45, 0x10000, v44")
    def wreg(M,ks,p):
        if M=='Q': b=128+4*ks+2*p; return f"v[{b}:{b+1}]"
        b={'K':0,'V':128}[M]+4*ks+2*p; return f"a[{b}:{b+1}]"
    rounds=[(M,h) for M in ('K','V','Q') for h in range(2)]
    srd={'K':'s[16:19]','V':'s[20:23]','Q':'s[12:15]'}
    def issue(i):
        M,h=rounds[i]
        a(f"s_lshl_b32 s33, s6, 19\ns_add_u32 s33, s33, {h*256*8192}\ns_lshl_b32 s34, s6, 14\ns_add_u32 s34, s34, {(i&1)*65536}")
        for n in range(16):
            a(f"s_add_u32 m0, s34, {4*n*256}\ns_add_u32 s35, s33, {4*n*8192}\nbuffer_load_dwordx4 v40, {srd[M]}, s35 offen lds")
    issue(0); issue(1)
    for i,(M,h) in enumerate(rounds):
        a(f"s_waitcnt vmcnt({16 if i+1<len(rounds) else 0})\ns_barrier")
        for ksl in range(16):
            ks=16*h+ksl
            for p in range(2):
                a(f"ds_read_b64_tr_b16 {wreg(M,ks,p)}, v{44+(i&1)} offset:{ksl*4096+p*2048}")
            if ksl%4==3: a("s_waitcnt lgkmcnt(4)")
        a("s_waitcnt lgkmcnt(0)\ns_barrier")
        if i+2<len(rounds): issue(i+2)
    def W(M,ks):
        if M=='Q': return f"v[{128+4*ks}:{131+4*ks}]"
        b={'K':0,'V':128}[M]+4*ks; return f"a[{b}:{b+3}]"
    a(f"""
    v_lshlrev_b32 v1, 4, v0
    s_lshl_b32 s32, s6, 13
    v_add_u32 v2, s32, v1
    s_lshl_b32 s32, s6, 11
    v_add_u32 v3, s32, v1
    s_mul_i32 s32, s4, {6*64*32768}
    s_add_u32 s43, s32, {xs(T_XNB1,0)}
    s_lshl_b32 s32, s4, 14
    s_add_u32 s45, s32, {WS_FLAG+FL_XN+64*128}
    s_lshl_b32 s32, s4, 11
    s_add_u32 s32, s32, s5
    s_mul_i32 s48, s32, {QKV_BLK}
    s_lshl_b32 s49, s32, 5
    s_lshl_b32 s33, s6, 2
    s_add_u32 s49, s49, s33
    s_add_u32 s49, s49, {WS_FLAG+FL_P}
    s_mov_b32 s40, 0
    s_mov_b32 s42, 0
    s_mov_b32 s47, 0
    """)
    def dma(bufreg):
        out=[]
        for n in range(8):
            out.append(f"s_lshl_b32 s32, s6, 13\ns_add_u32 s32, s32, {bufreg}\ns_add_u32 m0, s32, {(n>>2)*4096}\ns_add_u32 s33, s43, {(n>>2)*4096}\nbuffer_load_dwordx4 v2, s[8:11], s33 offen offset:{(n&3)*1024} sc1 lds")
        return out
    cfg['init_wait'](a,lab)
    wait_flags(a,lab+'w0',NXN,'s45',fail,spin,vtmp=(8,9))
    for d in dma_list(8,13,'s42'): a(d)
    a("s_add_u32 s43, s43, 32768\ns_add_u32 s45, s45, 128\ns_waitcnt vmcnt(0)\ns_barrier")
    a.label(lab+'_unit')
    a("v_add_u32 v5, s42, v1\ns_xor_b32 s50, s42, 32768")
    poll_issue(a,NXN,'s45',10,9)
    XR=64; NR=8; ACC=[32,48]; PK=96
    def rd(ks): a(f"ds_read_b128 v[{XR+4*(ks%NR)}:{XR+4*(ks%NR)+3}], v5 offset:{ks*1024}")
    AHEAD=6
    for i in range(AHEAD): rd(i)
    def epi(t):
        acc=ACC[t]; out=[]; pk=PK+8*t
        for i in range(8): out.append(f"v_cvt_pk_bf16_f32 v{pk+i}, v{acc+2*i}, v{acc+2*i+1}")
        off=[8192,16384][t]
        out.append(f"s_add_u32 s33, s48, {off}\nbuffer_store_dwordx4 v[{pk}:{pk+3}], v3, s[8:11], s33 offen sc1")
        out.append(f"buffer_store_dwordx4 v[{pk+4}:{pk+7}], v3, s[8:11], s33 offen offset:1024 sc1")
        return out
    dl=dma_list(8,13,'s50')
    def step(ks):
        r=XR+4*(ks%NR)
        a(f"s_waitcnt lgkmcnt({min(AHEAD-1,31-ks)})")
        a(f"v_mfma_f32_32x32x16_bf16 v[32:47], {W('K',ks)}, v[{r}:{r+3}], {'0' if ks==0 else 'v[32:47]'}")
        a(f"v_mfma_f32_32x32x16_bf16 v[48:63], v[{r}:{r+3}], {W('V',ks)}, {'0' if ks==0 else 'v[48:63]'}")
        if ks+AHEAD<32: rd(ks+AHEAD)
    def check():
        a(f"s_cmp_eq_u32 s47, 0\ns_cbranch_scc1 {lab}_nq0\ns_waitcnt vmcnt(1)\ns_sub_u32 s33, s49, 1024\ns_add_u32 s34, s33, 16\ns_cmp_eq_u32 s47, 2\ns_cselect_b32 s33, s34, s33")
        set_flag(a,'s33',vtmp=(11,12))
        a(f"""
        s_mov_b32 s47, 0
        s_waitcnt vmcnt(1)
        s_branch {lab}_nq
{lab}_nq0:
        s_waitcnt vmcnt(0)
{lab}_nq:
        s_mov_b32 s51, 0
        s_cmp_ge_u32 s40, 63
        s_cselect_b32 s52, 1, 0
        v_cmp_eq_u32 vcc, 0, v9
        s_cmp_eq_u64 vcc, 0
        s_cselect_b32 s51, 1, 0
        s_cmp_eq_u32 s52, 1
        s_cselect_b32 s51, 0, s51
        """)
    for ks in range(13): step(ks)
    check()
    a(f"s_cmp_eq_u32 s51, 0\ns_cbranch_scc1 {lab}_vn")
    for j in range(8): step(13+j); a(dl[j])
    a(f"s_branch {lab}_ve\n{lab}_vn:")
    for j in range(8): step(13+j)
    a.label(lab+'_ve')
    for ks in range(21,32): step(ks)
    for x in epi(0): a(x)
    for x in epi(1): a(x)
    a(f"""
    s_mov_b32 s54, 1
    s_and_b32 s32, s40, 2
    s_cmp_eq_u32 s32, 0
    s_cbranch_scc1 {lab}_noq
    """)
    for i in range(AHEAD): rd(i)
    for ks in range(32):
        r_=XR+4*(ks%NR)
        a(f"s_waitcnt lgkmcnt({min(AHEAD-1,31-ks)})")
        a(f"v_mfma_f32_32x32x16_bf16 v[32:47], {W('Q',ks)}, v[{r_}:{r_+3}], {'0' if ks==0 else 'v[32:47]'}")
        if ks+AHEAD<32: rd(ks+AHEAD)
        if ks==22:
            a("s_waitcnt vmcnt(0)")
            set_flag(a,'s49',vtmp=(11,12))
    for i in range(8): a(f"v_cvt_pk_bf16_f32 v{PK+i}, v32+{2*i}, v33+{2*i}".replace(f"v32+{2*i}",f"v{32+2*i}").replace(f"v33+{2*i}",f"v{33+2*i}"))
    a(f"""
    buffer_store_dwordx4 v[{PK}:{PK+3}], v3, s[8:11], s48 offen sc1
    buffer_store_dwordx4 v[{PK+4}:{PK+7}], v3, s[8:11], s48 offen offset:1024 sc1
    s_mov_b32 s54, 2
{lab}_noq:
    s_add_u32 s48, s48, {32*QKV_BLK}
    s_add_u32 s49, s49, 1024
    s_add_u32 s40, s40, 1
    s_mov_b32 s42, s50
    s_cmp_eq_u32 s51, 0
    s_cbranch_scc1 {lab}_slow
    s_mov_b32 s47, s54
    s_add_u32 s43, s43, 32768
    s_add_u32 s45, s45, 128
    s_cmp_eq_u32 s54, 2
    s_cbranch_scc1 {lab}_fq
    s_waitcnt vmcnt(4)
{lab}_fq:
    s_barrier
    s_branch {lab}_unit
{lab}_slow:
    s_waitcnt vmcnt(0)
    s_sub_u32 s33, s49, 1024
    s_add_u32 s34, s33, 16
    s_cmp_eq_u32 s54, 2
    s_cselect_b32 s33, s34, s33
    """)
    set_flag(a,'s33',vtmp=(11,12))
    a(f"""
    s_mov_b32 s47, 0
    s_cmp_ge_u32 s40, 64
    s_cbranch_scc1 {lab}_done
    """)
    wait_flags(a,lab+'ws',NXN,'s45',fail,spin,vtmp=(8,9))
    for d in dma_list(8,13,'s42'): a(d)
    a(f"""
    s_add_u32 s43, s43, 32768
    s_add_u32 s45, s45, 128
    s_waitcnt vmcnt(0)
    s_barrier
    s_branch {lab}_unit
{lab}_done:
    """)

def emit_ATT(a, cfg, fail):
    spin=cfg.get('spin',SPIN_DEFAULT)
    lab=a.new('ATT')
    STG=131072
    a(f"""
    s_load_dwordx2 s[12:13], s[0:1], 40      ; Wq
    s_waitcnt lgkmcnt(0)
    s_mov_b32 s14, 4194304
    s_mov_b32 s15, 0x20000
    v_lshrrev_b32 v61, 4, v0
    v_and_b32 v60, 15, v0
    v_lshlrev_b32 v62, 2, v61
    v_xor_b32 v62, v60, v62
    v_lshlrev_b32 v62, 4, v62
    v_lshl_add_u32 v62, v61, 13, v62
    s_lshl_b32 s32, s5, 8
    v_add_u32 v40, s32, v62
    s_lshl_b32 s32, s6, 2
    """)
    tr_addr32(a,44,'s32',256,lambda r_,o: a(f"v_lshlrev_b32 v{o}, 2, v{r_}"),STG)
    a("v_lshlrev_b32 v46, 4, v0\ns_lshl_b32 s32, s6, 15\nv_add_u32 v46, s32, v46")
    for rnd in range(4):
        a(f"s_lshl_b32 s33, s6, 18\ns_add_u32 s33, s33, {rnd*128*8192}\ns_lshl_b32 s34, s6, 13\ns_add_u32 s34, s34, {STG}")
        for n in range(8):
            a(f"s_add_u32 m0, s34, {4*n*256}\ns_add_u32 s35, s33, {4*n*8192}\nbuffer_load_dwordx4 v40, s[12:15], s35 offen lds")
        a("s_waitcnt vmcnt(0)\ns_barrier")
        for ksl in range(8):
            for p in range(2):
                a(f"ds_read_b64_tr_b16 v[{64+4*ksl+2*p}:{65+4*ksl+2*p}], v44 offset:{ksl*4096+p*2048}")
        a("s_waitcnt lgkmcnt(0)")
        for ksl in range(8):
            a(f"ds_write_b128 v46, v[{64+4*ksl}:{67+4*ksl}] offset:{(8*rnd+ksl)*1024}")
        a("s_waitcnt lgkmcnt(0)\ns_barrier")
    a(f"""
    s_lshr_b32 s40, s6, 1                    ; layer
    s_and_b32 s41, s6, 1                     ; unit
    s_lshl_b32 s32, s40, 6
    s_add_u32 s32, s32, s41
    s_lshl_b32 s32, s32, 5
    s_add_u32 s32, s32, s5                   ; (l*64+u)*32 + h
    s_mul_i32 s43, s32, {QKV_BLK}
    s_lshl_b32 s44, s32, 12
    s_add_u32 s44, s44, {WS_KM}
    s_lshl_b32 s45, s32, 4
    s_add_u32 s45, s45, {WS_FLAG+FL_CH}
    s_lshl_b32 s49, s32, 5
    s_add_u32 s49, s49, {WS_FLAG+FL_P}
    s_lshl_b32 s33, s40, 6
    s_add_u32 s33, s33, s41                  ; l*64+u
    s_mul_i32 s34, s40, {6*64*32768}
    s_lshl_b32 s35, s41, 15
    s_add_u32 s50, s34, s35
    s_add_u32 s50, s50, {xs(T_XNB1,0)}
    s_lshl_b32 s34, s40, 14
    s_lshl_b32 s35, s41, 7
    s_add_u32 s51, s34, s35
    s_add_u32 s51, s51, {WS_FLAG+FL_XN+64*128}
    s_lshl_b32 s46, s32, 2
    s_add_u32 s46, s46, {WS_FLAG+FL_OB}
    s_lshl_b32 s33, s40, 6
    s_add_u32 s33, s33, s41
    s_lshl_b32 s33, s33, 18
    s_lshl_b32 s34, s5, 13
    s_add_u32 s47, s33, s34
    s_add_u32 s47, s47, {WS_OB}
    s_lshl_b32 s42, s6, 12
    s_add_u32 s42, s42, {STG}
    v_lshlrev_b32 v1, 4, v0
    v_lshrrev_b32 v60, 5, v0
    v_and_b32 v61, 7, v0
    v_lshlrev_b32 v2, 4, v61
    v_lshl_add_u32 v2, v60, 7, v2
    v_add_u32 v2, s42, v2
    v_and_b32 v61, 31, v0
    v_lshlrev_b32 v3, 4, v61
    v_lshl_add_u32 v3, v60, 3, v3
    v_add_u32 v3, s42, v3
    v_mov_b32 v7, 0xff7fffff
    v_mov_b32 v12, 0x3f803f80
    v_mov_b32 v13, 0x3f803f80
    v_mov_b32 v14, 0x3f803f80
    v_mov_b32 v15, 0x3f803f80
    s_mov_b32 s48, 0x3e0293ee
    """)
    a("v_mov_b32 v4, v1\nv_add_u32 v5, 0x10000, v1")
    causal_masks(a,64)
    K=32; V=64; KM=160; VM=192
    XA=96
    QV=128
    def xloads():
        out=[]
        for ks in range(32):
            pre=f"s_add_u32 s32, s50, {(ks>>2)*4096}\n" if ks%4==0 else ""
            out.append(pre+f"buffer_load_dwordx4 a[{XA+4*ks}:{XA+4*ks+3}], v1, s[8:11], s32 offen offset:{(ks&3)*1024} sc1")
        return out
    def xadv(): a("s_add_u32 s50, s50, 131072\ns_add_u32 s51, s51, 512")
    def kvloads():
        out=[]
        for blk,reg in ((1,K),(2,V)):
            for g in range(2):
                for j in range(4):
                    rr=reg+4*(4*g+j)
                    pre=f"s_add_u32 s32, s43, {blk*8192+g*4096}\n" if j==0 else ""
                    out.append(pre+f"buffer_load_dwordx4 a[{rr}:{rr+3}], v1, s[8:11], s32 offen offset:{j*1024} sc1")
        return out
    def core(tag, light):
        L=f"{lab}_{tag}"
        a(f"""
        s_waitcnt vmcnt(0)
        v_cmp_eq_u32 vcc, 0, v30
        s_cbranch_vccnz {L}_chw
        """)
        def kmdma():
            a("s_mov_b32 m0, s42")
            for j in range(4): a(f"buffer_load_dwordx4 v1, s[8:11], s44 offen offset:{j*1024} sc1 lds")
        def stok():
            for ks in range(8):
                c0='0' if ks==0 else 'v[32:47]'
                a(f"v_mfma_f32_32x32x16_bf16 v[32:47], a[{K+4*ks}:{K+4*ks+3}], v[{QV+4*ks}:{QV+4*ks+3}], {c0}")
            for r_ in range(16): a(f"v_cndmask_b32 v{32+r_}, v7, v{32+r_}, s[{64+2*r_}:{65+2*r_}]")
            a("""
            v_max3_f32 v24, v32, v33, v34
            v_max3_f32 v25, v35, v36, v37
            v_max3_f32 v24, v24, v38, v39
            v_max3_f32 v25, v25, v40, v41
            v_max3_f32 v24, v24, v42, v43
            v_max3_f32 v25, v25, v44, v45
            v_max3_f32 v24, v24, v46, v47
            """)
            for W_ in range(4): a(f"v_mov_b32 v{VM+4*W_+2}, 0\nv_mov_b32 v{VM+4*W_+3}, 0")
        xl=xloads()
        kmdma(); stok()
        a(f"s_branch {L}_kmw")
        a.label(L+'_chw')
        stok()
        if light:
            a(f"s_cmp_eq_u32 s53, 0\ns_cbranch_scc1 {L}_b1")
            for x in xl: a(x)
            xadv()
            a(f"s_mov_b32 s53, 2\n{L}_b1:")
        wait_flags(a,L+'wc',4,'s45',fail,spin,sleep=0)
        kmdma()
        a.label(L+'_kmw')
        a("s_waitcnt vmcnt(0)")
        for ks in range(8): a(f"ds_read_b128 v[{KM+4*ks}:{KM+4*ks+3}], v2 offset:{ks*256}")
        for W_ in range(4): a(f"ds_read_b64 v[{VM+4*W_}:{VM+4*W_+1}], v3 offset:{2048+W_*512}")
        for ks in range(8):
            a(f"s_waitcnt lgkmcnt({11-ks})")
            c1='0' if ks==0 else 'v[48:63]'
            a(f"v_mfma_f32_32x32x16_bf16 v[48:63], v[{KM+4*ks}:{KM+4*ks+3}], v[{QV+4*ks}:{QV+4*ks+3}], {c1}")
        a("""
        v_max3_f32 v25, v25, v48, v49
        v_max3_f32 v24, v24, v50, v51
        v_max_f32 v24, v24, v25
        v_mov_b32 v25, v24
        v_permlane32_swap_b32 v24, v25
        v_max_f32 v24, v24, v25
        v_mul_f32 v24, s48, v24
        """)
        for r_ in range(20): a(f"v_fma_f32 v{32+r_}, v{32+r_}, s48, -v24")
        for r_ in range(20): a(f"v_exp_f32 v{32+r_}, v{32+r_}")
        a("v_add_f32 v24, v32, v33\nv_add_f32 v25, v34, v35")
        for r_ in range(4,20,2): a(f"v_add_f32 v24, v24, v{32+r_}\nv_add_f32 v25, v25, v{33+r_}")
        a("""
        v_add_f32 v24, v24, v25
        v_mov_b32 v25, v24
        v_permlane32_swap_b32 v24, v25
        v_add_f32 v24, v24, v25
        v_rcp_f32 v24, v24
        """)
        for r_ in range(20): a(f"v_mul_f32 v{32+r_}, v{32+r_}, v24")
        for i in range(8): a(f"v_cvt_pk_bf16_f32 v{16+i}, v{32+2*i}, v{33+2*i}")
        a("""
        v_cvt_pk_bf16_f32 v8, v48, v49
        v_cvt_pk_bf16_f32 v9, v50, v51
        v_mov_b32 v10, 0
        v_mov_b32 v11, 0
        s_waitcnt lgkmcnt(0)
        """)
        OT=[64,80,96,112]; PK=208
        xq=list(xl) if light else []
        def mx(n=1):
            for _ in range(n):
                if xq:
                    LL=a.new(lab+'m'); a(f"s_cbranch_scc0 {LL}"); x=xq.pop(0)
                    a(x)
                    if x.startswith('s_add'): a("s_cmp_eq_u32 s53, 1")
                    a.label(LL)
        def pv(W_):
            o=OT[W_]
            a(f"v_mfma_f32_32x32x16_bf16 v[{o}:{o+15}], a[{V+8*W_}:{V+8*W_+3}], v[16:19], 0"); mx()
            a(f"v_mfma_f32_32x32x16_bf16 v[{o}:{o+15}], a[{V+8*W_+4}:{V+8*W_+7}], v[20:23], v[{o}:{o+15}]"); mx()
            a(f"v_mfma_f32_32x32x16_bf16 v[{o}:{o+15}], v[{VM+4*W_}:{VM+4*W_+3}], v[8:11], v[{o}:{o+15}]"); mx()
        def fin(W_):
            o=OT[W_]
            for i in range(8):
                a(f"v_cvt_pk_bf16_f32 v{PK+8*W_+i}, v{o+2*i}, v{o+2*i+1}")
                if i%2==1: mx()
        def sto(W_):
            if W_==2: a("s_add_u32 s32, s47, 4096")
            for f in range(2):
                fi=2*W_+f
                a(f"buffer_store_dwordx4 v[{PK+4*fi}:{PK+4*fi+3}], v1, s[8:11], {'s47' if fi<4 else 's32'} offen offset:{(fi&3)*1024} sc1")
        if light: a("s_cmp_eq_u32 s53, 1")
        pv(0); pv(1); pv(2); fin(0); pv(3); fin(1); fin(2); fin(3)
        if light:
            mx(32)
            a(f"s_cbranch_scc0 {L}_k2")
            xadv()
            a.label(L+'_k2')
        for W_ in range(4): sto(W_)
        a(f"""
        s_add_u32 s43, s43, {2*32*QKV_BLK}
        s_add_u32 s44, s44, {2*32*4096}
        s_add_u32 s45, s45, 1024
        s_add_u32 s49, s49, 2048
        s_add_u32 s47, s47, {2*262144}
        s_add_u32 s41, s41, 2
        """)
    def eager():
        a("s_waitcnt vmcnt(0)")
        set_flag(a,'s46',vtmp=(10,11))
        a("s_add_u32 s46, s46, 256\ns_mov_b32 s52, 0")
    cfg['init_wait'](a,lab,sb=16)
    a("s_mov_b32 s52, 0")
    wait_flags(a,lab+'wx0',NXN,'s51',fail,spin)
    for x in xloads(): a(x)
    xadv()
    a.label(lab+'_H')
    roles.tsp(a,1,0,'s41',('s5','s40'))
    WR=64; NR=8; AHEAD=6
    seq=[(T,ks) for T in range(4) for ks in range(32)]
    def wrd(i):
        T,ks=seq[i]; r_=WR+4*(i%NR)
        a(f"ds_read_b128 v[{r_}:{r_+3}], v{4+(T>>1)} offset:{(T&1)*32768+ks*1024}")
    for i in range(AHEAD): wrd(i)
    QA=[96,112]
    pend=[]
    kvl=kvloads()
    for i,(T,ks) in enumerate(seq):
        acc=QA[T&1]; r_=WR+4*(i%NR)
        if T==0:
            if ks<8:
                LL=a.new(lab+'x')
                a(f"s_cmp_eq_u32 s52, 0\ns_cbranch_scc1 {LL}_0\ns_waitcnt vmcnt({39-ks})\ns_branch {LL}_1\n{LL}_0:\ns_waitcnt vmcnt({31-ks})\n{LL}_1:\ns_waitcnt lgkmcnt({AHEAD-1})")
            else: a(f"s_waitcnt vmcnt({31-ks}) lgkmcnt({AHEAD-1})")
        elif T==1 and ks==0:
            a(f"s_cmp_eq_u32 s52, 0\ns_cbranch_scc1 {lab}_nf")
            set_flag(a,'s46',vtmp=(10,11))
            a(f"s_add_u32 s46, s46, 256\ns_mov_b32 s52, 0\n{lab}_nf:")
            poll_issue(a,4,'s49',10,30)
            a(f"s_waitcnt lgkmcnt({AHEAD-1})")
        elif T==1 and ks==30:
            a(f"""
            s_waitcnt vmcnt(0)
            v_cmp_eq_u32 vcc, 0, v30
            s_cbranch_vccz {lab}_pok
            """)
            wait_flags(a,lab+'wp',4,'s49',fail,spin)
            a(f"{lab}_pok:\ns_waitcnt lgkmcnt({AHEAD-1})")
        else: a(f"s_waitcnt lgkmcnt({min(AHEAD-1,len(seq)-1-i)})")
        c='0' if ks==0 else f"v[{acc}:{acc+15}]"
        a(f"v_mfma_f32_32x32x16_bf16 v[{acc}:{acc+15}], v[{r_}:{r_+3}], a[{XA+4*ks}:{XA+4*ks+3}], {c}")
        if i+AHEAD<len(seq): wrd(i+AHEAD)
        if T>=1 and ks==0:
            pa=QA[(T-1)&1]
            pend=[f"v_cvt_pk_bf16_f32 v{QV+8*(T-1)+q}, v{pa+2*q}, v{pa+2*q+1}" for q in range(8)]
        if T>=1 and ks>=8 and pend: a(pend.pop(0))
        if T==2 and ks%2==1 and kvl: a(kvl.pop(0))
        if T==3 and ks==4: poll_issue(a,4,'s45',10,30)
    pa=QA[1]
    for q in range(8): a(f"v_cvt_pk_bf16_f32 v{QV+24+q}, v{pa+2*q}, v{pa+2*q+1}")
    roles.tsp(a,1,1,'s41',('s5','s40'))
    core('h',False)
    roles.tsp(a,1,5,'s41',('s5','s40'))
    eager()
    a(f"s_cmp_ge_u32 s41, 64\ns_cbranch_scc1 {lab}_done")
    a.label(lab+'_L')
    roles.tsp(a,1,0,'s41',('s5','s40'))
    wait_flags(a,lab+'wq',8,'s49',fail,spin)
    for g in range(2):
        a(f"s_add_u32 s32, s43, {g*4096}")
        for j in range(4):
            rr=QV+4*(4*g+j)
            a(f"buffer_load_dwordx4 v[{rr}:{rr+3}], v1, s[8:11], s32 offen offset:{j*1024} sc1")
    for x in kvloads(): a(x)
    poll_issue(a,NXN,'s51',11,31)
    poll_issue(a,4,'s45',10,30)
    a(f"""
    s_waitcnt vmcnt(0)
    s_mov_b32 s53, 0
    s_cmp_ge_u32 s41, 62
    s_cbranch_scc1 {lab}_np
    v_cmp_eq_u32 vcc, 0, v31
    s_cbranch_vccnz {lab}_np
    s_mov_b32 s53, 1
{lab}_np:
    """)
    core('l',True)
    roles.tsp(a,1,5,'s41',('s5','s40'))
    a(f"""
    s_cmp_eq_u32 s53, 1
    s_cbranch_scc0 {lab}_e1
    s_mov_b32 s52, 1
    s_branch {lab}_H
{lab}_e1:
    """)
    eager()
    a(f"""
    s_cmp_ge_u32 s41, 64
    s_cbranch_scc1 {lab}_done
    s_cmp_eq_u32 s53, 2
    s_cbranch_scc1 {lab}_H
    """)
    wait_flags(a,lab+'wxs',NXN,'s51',fail,spin)
    for x in xloads(): a(x)
    xadv()
    a(f"s_branch {lab}_H\n{lab}_done:")

def emit_O(a, cfg, fail):
    spin=cfg.get('spin',SPIN_DEFAULT)
    lab=a.new('O')
    a(f"""
    s_load_dwordx2 s[12:13], s[0:1], 64
    s_waitcnt lgkmcnt(0)
    s_mov_b32 s14, 4194304
    s_mov_b32 s15, 0x20000
    s_lshr_b32 s40, s5, 2                    ; kq
    s_and_b32 s41, s5, 3                     ; nq
    v_lshrrev_b32 v61, 4, v0
    v_and_b32 v60, 15, v0
    v_lshlrev_b32 v62, 2, v61
    v_xor_b32 v62, v60, v62
    v_lshlrev_b32 v62, 4, v62
    v_lshl_add_u32 v62, v61, 10, v62
    s_lshl_b32 s32, s41, 8
    v_add_u32 v40, s32, v62
    s_mov_b32 s32, 0
    """)
    tr_addr32(a,44,'s32',256,lambda r,o: a(f"v_lshlrev_b32 v{o}, 2, v{r}"),0)
    a("s_lshl_b32 s34, s6, 15\nv_add_u32 v44, s34, v44")
    for T in range(1,4): a(f"v_xor_b32 v{44+T}, {64*T}, v44")
    for rnd in range(2):
        a(f"s_lshl_b32 s33, s40, 20\ns_lshl_b32 s35, s6, 18\ns_add_u32 s33, s33, s35\ns_add_u32 s33, s33, {rnd*128*1024}")
        for n in range(32):
            a(f"s_add_u32 m0, s34, {4*n*256}\ns_add_u32 s35, s33, {4*n*1024}\nbuffer_load_dwordx4 v40, s[12:15], s35 offen lds")
        a("s_waitcnt vmcnt(0)")
        for ksl in range(8):
            ks=8*rnd+ksl
            for T in range(4):
                for p in range(2):
                    b=(T*16+ks)*4+2*p
                    a(f"ds_read_b64_tr_b16 a[{b}:{b+1}], v{44+T} offset:{ksl*4096+p*2048}")
            a("s_waitcnt lgkmcnt(4)")
        a("s_waitcnt lgkmcnt(0)")
    a(f"""
    s_barrier
    v_lshlrev_b32 v1, 4, v0
    s_lshl_b32 s32, s4, 24
    s_lshl_b32 s33, s40, 16
    s_lshl_b32 s34, s6, 14
    s_add_u32 s43, s32, s33
    s_add_u32 s43, s43, s34
    s_add_u32 s43, s43, {WS_OB}
    s_lshl_b32 s32, s4, 23
    s_lshl_b32 s33, s40, 15
    s_lshl_b32 s34, s41, 13
    s_add_u32 s44, s32, s33
    s_add_u32 s44, s44, s34
    s_lshl_b32 s34, s6, 11
    s_add_u32 s44, s44, s34
    s_add_u32 s44, s44, {WS_PO}
    s_lshl_b32 s32, s4, 13
    s_lshl_b32 s33, s40, 5
    s_lshl_b32 s34, s6, 3
    s_add_u32 s45, s32, s33
    s_add_u32 s45, s45, s34
    s_add_u32 s45, s45, {WS_FLAG+FL_OB}
    s_lshl_b32 s32, s4, 14
    s_lshl_b32 s33, s5, 4
    s_lshl_b32 s34, s6, 2
    s_add_u32 s46, s32, s33
    s_add_u32 s46, s46, s34
    s_add_u32 s46, s46, {WS_FLAG+FL_PO}
    s_lshl_b32 s32, s6, 14
    v_add_u32 v2, s32, v1
    s_lshl_b32 s32, s6, 12
    v_add_u32 v3, s32, v1
    s_mov_b32 s47, 0
    s_mov_b32 s51, 0
    """)
    XB=[64,128]
    def ld(st,ks):
        return f"s_add_u32 s32, s43, {(ks>>2)*4096}\nbuffer_load_dwordx4 v[{XB[st]+4*ks}:{XB[st]+4*ks+3}], v1, s[8:11], s32 offen offset:{(ks&3)*1024} sc1"
    def adv(): a("s_add_u32 s43, s43, 262144\ns_add_u32 s45, s45, 128")
    wait_flags(a,lab+'w0',2,'s45',fail,spin)
    for ks in range(16): a(ld(0,ks))
    adv()
    ACC=[0,16,32,48]
    AB=192
    def iteration(st):
        L=f"{lab}_i{st}"
        a.label(L)
        poll_issue(a,2,'s45',10,9)
        nl=[ld(1-st,ks) for ks in range(16)]
        for ks in range(16):
            a(f"s_waitcnt vmcnt({16-ks})") if ks<16 else None
            for T in range(4):
                acc=AB+16*T; c='0' if ks==0 else f"v[{acc}:{acc+15}]"; b=(T*16+ks)*4
                a(f"v_mfma_f32_32x32x16_bf16 v[{acc}:{acc+15}], a[{b}:{b+3}], v[{XB[st]+4*ks}:{XB[st]+4*ks+3}], {c}")
            if ks==15: break
        return nl
    def unit(st):
        L=f"{lab}_i{st}"
        a.label(L)
        poll_issue(a,2,'s45',10,9)
        for ks in range(8):
            a(f"s_waitcnt vmcnt({16-ks})")
            for T in range(4):
                acc=AB+16*T; c='0' if ks==0 else f"v[{acc}:{acc+15}]"; b=(T*16+ks)*4
                a(f"v_mfma_f32_32x32x16_bf16 v[{acc}:{acc+15}], a[{b}:{b+3}], v[{XB[st]+4*ks}:{XB[st]+4*ks+3}], {c}")
        a(f"""
        s_waitcnt vmcnt(0)
        s_mov_b32 s49, 0
        s_cmp_ge_u32 s47, 63
        s_cbranch_scc1 {L}_np
        v_cmp_eq_u32 vcc, 0, v9
        s_cbranch_vccnz {L}_np
        s_mov_b32 s49, 1
{L}_np:
        s_cmp_eq_u32 s49, 1
        """)
        nl=[ld(1-st,ks) for ks in range(16)]
        for ks in range(8,16):
            for T in range(4):
                acc=AB+16*T; b=(T*16+ks)*4
                a(f"v_mfma_f32_32x32x16_bf16 v[{acc}:{acc+15}], a[{b}:{b+3}], v[{XB[st]+4*ks}:{XB[st]+4*ks+3}], v[{acc}:{acc+15}]")
                if T%2==1:
                    LL=a.new(L+'m'); a(f"s_cbranch_scc0 {LL}"); a(nl.pop(0)); a(f"s_cmp_eq_u32 s49, 1\n{LL}:")
        a("v_add_u32 v4, s51, v2\nv_add_u32 v5, s51, v3")
        for q in range(16): a(f"ds_write_b128 v4, v[{AB+4*q}:{AB+3+4*q}] offset:{q*1024}")
        a("s_waitcnt lgkmcnt(0)\ns_barrier")
        R=16
        for w in range(4):
            for q in range(4): a(f"ds_read_b128 v[{AB+16*w+4*q}:{AB+3+16*w+4*q}], v5 offset:{w*16384+q*1024}")
        a("s_xor_b32 s51, s51, 65536\ns_waitcnt lgkmcnt(8)")
        for r in range(0,16,2): a(f"v_pk_add_f32 v[{AB+r}:{AB+1+r}], v[{AB+r}:{AB+1+r}], v[{AB+16+r}:{AB+17+r}]")
        a("s_waitcnt lgkmcnt(0)")
        for r in range(0,16,2): a(f"v_pk_add_f32 v[{AB+32+r}:{AB+33+r}], v[{AB+32+r}:{AB+33+r}], v[{AB+48+r}:{AB+49+r}]")
        for r in range(0,16,2): a(f"v_pk_add_f32 v[{AB+r}:{AB+1+r}], v[{AB+r}:{AB+1+r}], v[{AB+32+r}:{AB+33+r}]")
        for i in range(8): a(f"v_cvt_pk_bf16_f32 v{16+i}, v{AB+2*i}, v{AB+1+2*i}")
        a(f"""
        buffer_store_dwordx4 v[16:19], v1, s[8:11], s44 offen sc1
        buffer_store_dwordx4 v[20:23], v1, s[8:11], s44 offen offset:1024 sc1
        s_add_u32 s44, s44, 131072
        s_add_u32 s47, s47, 1
        s_waitcnt vmcnt(0)
        """)
        set_flag(a,'s46',vtmp=(10,11))
        a(f"""
        s_add_u32 s46, s46, 256
        s_cmp_eq_u32 s49, 1
        s_cbranch_scc0 {L}_slow
        """)
        adv()
        a(f"""
        s_branch {lab}_i{1-st}
{L}_slow:
        s_cmp_ge_u32 s47, 64
        s_cbranch_scc1 {lab}_done
        """)
        wait_flags(a,L+'ws',2,'s45',fail,spin)
        for ks in range(16): a(ld(1-st,ks))
        adv()
        if st==1: a(f"s_branch {lab}_i0")
    unit(0); unit(1)
    a.label(lab+'_done')

def emit_O5(a, cfg, fail):
    spin=cfg.get('spin',SPIN_DEFAULT)
    lab=a.new('O')
    a(f"""
    s_load_dwordx2 s[12:13], s[0:1], 64
    s_waitcnt lgkmcnt(0)
    s_mov_b32 s14, 4194304
    s_mov_b32 s15, 0x20000
    s_lshr_b32 s40, s5, 2                    ; kq
    s_and_b32 s41, s5, 3                     ; nq
    v_lshrrev_b32 v61, 4, v0
    v_and_b32 v60, 15, v0
    v_lshlrev_b32 v62, 2, v61
    v_xor_b32 v62, v60, v62
    v_lshlrev_b32 v62, 4, v62
    v_lshl_add_u32 v62, v61, 10, v62
    s_lshl_b32 s32, s41, 8
    v_add_u32 v40, s32, v62
    s_and_b32 s54, s6, 1                     ; nh
    s_lshr_b32 s55, s6, 1                    ; kh
    s_lshl_b32 s32, s54, 3
    """)
    tr_addr32(a,44,'s32',256,lambda r,o: a(f"v_lshlrev_b32 v{o}, 2, v{r}"),0)
    a("v_xor_b32 v45, 64, v44\nv_add_u32 v46, 0x10000, v44\nv_add_u32 v47, 0x10000, v45")
    def issue(i):
        a(f"s_lshl_b32 s33, s40, 20\ns_lshl_b32 s35, s6, 16\ns_add_u32 s33, s33, s35\ns_add_u32 s33, s33, {i*256*1024}\ns_lshl_b32 s34, s6, 14\ns_add_u32 s34, s34, {(i&1)*65536}")
        for n in range(16):
            a(f"s_add_u32 m0, s34, {4*n*256}\ns_add_u32 s35, s33, {4*n*1024}\nbuffer_load_dwordx4 v40, s[12:15], s35 offen lds")
    issue(0); issue(1)
    for i in range(4):
        L=a.new(lab+'w')
        a(f"s_waitcnt vmcnt({16 if i<3 else 0})\ns_barrier\ns_cmp_lg_u32 s55, {i>>1}\ns_cbranch_scc1 {L}")
        for ksl in range(16):
            ks=16*(i&1)+ksl
            for T in range(2):
                for p in range(2):
                    b=(T*32+ks)*4+2*p
                    a(f"ds_read_b64_tr_b16 a[{b}:{b+1}], v{44+T+2*(i&1)} offset:{ksl*4096+p*2048}")
            if ksl%2==1: a("s_waitcnt lgkmcnt(4)")
        a(f"{L}:\ns_waitcnt lgkmcnt(0)\ns_barrier")
        if i+2<4: issue(i+2)
    a(f"""
    v_lshlrev_b32 v1, 4, v0
    s_lshl_b32 s32, s6, 14
    v_add_u32 v2, s32, v1
    s_lshl_b32 s32, s4, 24
    s_lshl_b32 s33, s40, 16
    s_add_u32 s43, s32, s33
    s_add_u32 s43, s43, {WS_OB}
    s_lshl_b32 s32, s4, 23
    s_lshl_b32 s33, s40, 15
    s_lshl_b32 s34, s41, 13
    s_add_u32 s44, s32, s33
    s_add_u32 s44, s44, s34
    s_lshl_b32 s34, s54, 12
    s_add_u32 s44, s44, s34
    s_lshl_b32 s34, s55, 11
    s_add_u32 s44, s44, s34
    s_add_u32 s44, s44, {WS_PO}
    s_lshl_b32 s32, s4, 13
    s_lshl_b32 s33, s40, 5
    s_lshl_b32 s34, s6, 3
    s_add_u32 s45, s32, s33
    s_add_u32 s45, s45, s34
    s_add_u32 s45, s45, {WS_FLAG+FL_OB}
    s_lshl_b32 s32, s4, 14
    s_lshl_b32 s33, s5, 4
    s_lshl_b32 s34, s6, 2
    s_add_u32 s46, s32, s33
    s_add_u32 s46, s46, s34
    s_add_u32 s46, s46, {WS_FLAG+FL_PO}
    s_mov_b32 s47, 0
    s_mov_b32 s42, 0
    s_mov_b32 s52, 0
    """)
    def dma(bufreg):
        out=[]
        for n in range(16):
            out.append(f"s_lshl_b32 s32, s6, 14\ns_add_u32 s32, s32, {bufreg}\ns_add_u32 m0, s32, {(n>>2)*4096}\ns_add_u32 s33, s43, {(n>>2)*4096}\nbuffer_load_dwordx4 v2, s[8:11], s33 offen offset:{(n&3)*1024} sc1 lds")
        return out
    def adv(): a("s_add_u32 s43, s43, 262144\ns_add_u32 s45, s45, 128")
    cfg['init_wait'](a,lab)
    wait_flags(a,lab+'w0',2,'s45',fail,spin)
    for d in dma_list(16,14,'s42'): a(d)
    adv()
    a("s_waitcnt vmcnt(0)\ns_barrier")
    a.label(lab+'_unit')
    roles.tsp(a,0,1,'s47',('s4','s5','s6'))
    a("s_lshl_b32 s32, s55, 15\ns_add_u32 s32, s32, s42\nv_add_u32 v5, s32, v1\ns_xor_b32 s50, s42, 65536")
    poll_issue(a,2,'s45',10,9)
    XR=64; NR=8; AHEAD=6
    def rd(i): a(f"ds_read_b128 v[{XR+4*(i%NR)}:{XR+4*(i%NR)+3}], v5 offset:{i*1024}")
    for i in range(AHEAD): rd(i)
    dl=dma_list(16,14,'s50')
    def mf(ks):
        r=XR+4*(ks%NR)
        for T in range(2):
            acc=32+16*T; c='0' if ks==0 else f"v[{acc}:{acc+15}]"; b=(T*32+ks)*4
            a(f"v_mfma_f32_32x32x16_bf16 v[{acc}:{acc+15}], a[{b}:{b+3}], v[{r}:{r+3}], {c}")
    def check():
        a(f"s_cmp_eq_u32 s52, 0\ns_cbranch_scc1 {lab}_nq0\ns_waitcnt vmcnt(1)")
        set_flag(a,'s46',vtmp=(11,12))
        a(f"""
        s_add_u32 s46, s46, 256
        s_mov_b32 s52, 0
        s_waitcnt vmcnt(1)
        s_branch {lab}_nq
{lab}_nq0:
        s_waitcnt vmcnt(0)
{lab}_nq:
        s_mov_b32 s48, 0
        s_cmp_ge_u32 s47, 63
        s_cselect_b32 s49, 1, 0
        v_cmp_eq_u32 vcc, 0, v9
        s_cmp_eq_u64 vcc, 0
        s_cselect_b32 s48, 1, 0
        s_cmp_eq_u32 s49, 1
        s_cselect_b32 s48, 0, s48
        """)
    gemm_loop(a,lab,32,mf,rd,AHEAD,12,check,dl)
    roles.tsp(a,0,2,'s47',('s4','s5','s6'))
    L=a.new(lab+'r')
    a(f"""
    s_lshl_b32 s32, s6, 12
    s_add_u32 s32, s32, 131072
    v_add_u32 v6, s32, v1
    s_xor_b32 s32, s6, 2
    s_lshl_b32 s32, s32, 12
    s_add_u32 s32, s32, 131072
    v_add_u32 v7, s32, v1
    s_cmp_eq_u32 s55, 0
    s_cbranch_scc1 {L}_0
    """)
    for q in range(4): a(f"ds_write_b128 v6, v[{32+4*q}:{35+4*q}] offset:{q*1024}")
    for r_ in range(16): a(f"v_mov_b32 v{32+r_}, v{48+r_}")
    a(f"s_branch {L}_1\n{L}_0:")
    for q in range(4): a(f"ds_write_b128 v6, v[{48+4*q}:{51+4*q}] offset:{q*1024}")
    a(f"{L}_1:\ns_waitcnt lgkmcnt(0)\ns_barrier")
    for q in range(4): a(f"ds_read_b128 v[{48+4*q}:{51+4*q}], v7 offset:{q*1024}")
    a("s_waitcnt lgkmcnt(0)")
    for r_ in range(0,16,2): a(f"v_pk_add_f32 v[{32+r_}:{33+r_}], v[{32+r_}:{33+r_}], v[{48+r_}:{49+r_}]")
    pack_tile(a,32,96)
    for f in range(2):
        a(f"buffer_store_dwordx4 v[{96+4*f}:{99+4*f}], v1, s[8:11], s44 offen offset:{f*1024} sc1")
    a(f"""
    s_add_u32 s44, s44, 131072
    s_add_u32 s47, s47, 1
    s_mov_b32 s42, s50
    s_cmp_eq_u32 s48, 0
    s_cbranch_scc1 {lab}_slow
    s_mov_b32 s52, 1
    """)
    adv()
    a(f"""
    s_waitcnt vmcnt(2)
    s_barrier
    s_branch {lab}_unit
{lab}_slow:
    s_waitcnt vmcnt(0)
    """)
    roles.tsp(a,0,3,'s47',('s4','s5','s6'))
    set_flag(a,'s46',vtmp=(11,12))
    a(f"""
    s_add_u32 s46, s46, 256
    s_cmp_ge_u32 s47, 64
    s_cbranch_scc1 {lab}_done
    """)
    wait_flags(a,lab+'ws',2,'s45',fail,spin)
    roles.tsp(a,0,0,'s47',('s4','s5','s6'))
    for d in dma_list(16,14,'s42'): a(d)
    adv()
    a(f"""
    s_waitcnt vmcnt(0)
    s_barrier
    s_branch {lab}_unit
{lab}_done:
    """)
```

```python
import sys
from asmlib import Asm
from common import *
import importlib, os
chain=importlib.import_module(os.environ.get('CHAIN','chain10'))
import roles, roles2, roles3
KN='interleave_layers__sliding_block__memory_aug_recurrent_mem_tr__prompt_kernel'
INIT='init_ws_kernel'
ALL={'CH','P','O','AH','AWO','F','ATT'}
def desc(K,nv=512,ns=102):
    return f'''
.amdhsa_kernel {K}
  .amdhsa_next_free_vgpr {nv}
  .amdhsa_next_free_sgpr {ns}
  .amdhsa_accum_offset {min(256,(nv+3)//4*4)}
  .amdhsa_group_segment_fixed_size 0
  .amdhsa_kernarg_size 104
  .amdhsa_user_sgpr_count 2
  .amdhsa_user_sgpr_kernarg_segment_ptr 1
  .amdhsa_system_sgpr_workgroup_id_x 1
.end_amdhsa_kernel
'''
def gen_init():
    a=Asm()
    a.label(INIT)
    nflag=FL_END
    a(f"""
    s_cmp_ge_u32 s2, 256
    s_cbranch_scc1 LI_end
    s_load_dwordx2 s[8:9], s[0:1], 96
    s_waitcnt lgkmcnt(0)
    s_mov_b32 s10, 0x10000000
    s_mov_b32 s11, 0x20000
    s_lshl_b32 s3, s2, 8
    v_add_u32 v1, s3, v0
    v_lshlrev_b32 v1, 4, v1                  ; 0 .. 1MB
    v_mov_b32 v4, 0
    v_mov_b32 v5, 0
    v_mov_b32 v6, 0
    v_mov_b32 v7, 0
    v_mov_b32 v8, -1
    v_mov_b32 v9, -1
    v_mov_b32 v10, -1
    v_mov_b32 v11, -1
    s_mov_b32 s12, {WS_FLAG}
    v_cmp_gt_u32 vcc, {nflag}, v1
    s_and_saveexec_b64 s[14:15], vcc
    s_cbranch_execz LI_a
    buffer_store_dwordx4 v[4:7], v1, s[8:11], s12 offen
LI_a:
    s_mov_b64 exec, s[14:15]
    s_mov_b32 s12, {WS_INB}
    buffer_store_dwordx4 v[8:11], v1, s[8:11], s12 offen
    s_mov_b32 s12, {WS_INB+0x100000}
    buffer_store_dwordx4 v[8:11], v1, s[8:11], s12 offen
    s_mov_b32 s12, {WS_MEM}
    v_cmp_gt_u32 vcc, 0x10000, v1
    s_and_saveexec_b64 s[14:15], vcc
    s_cbranch_execz LI_b
    buffer_store_dwordx4 v[8:11], v1, s[8:11], s12 offen
LI_b:
    s_mov_b64 exec, s[14:15]
LI_end:
    s_endpgm
    """)
    out,_,errs=a.finish()
    for e in errs.values(): print('LINT',e,file=sys.stderr)
    return out
def gen(cfg):
    if cfg.get('pf',True) and 'sizes' not in cfg:
        c1=dict(cfg); c1['sizes']={}; c1['sizing']=True
        gen2(c1)
        cfg=dict(cfg); cfg['sizes']=c1['sizes']
    return gen2(cfg)
def gen2(cfg):
    if cfg.get('hostinit'):
        cfg=dict(cfg); cfg['init']=True; cfg['gate']=False
    en=cfg.get('roles',ALL)
    roles.TS=cfg.get('ts',False)
    roles.TSP=cfg.get('tsp',False)
    roles.DEFSLEEP=cfg.get('defsleep',1)
    roles.DBGTS=cfg.get('dbgts',False)
    a=Asm(); K=KN
    a.label(K)
    selfinit=''
    if not cfg.get('init',False):
        selfinit=f'''s_mul_i32 s24, s2, 1280
    s_add_u32 s24, s24, {WS_FLAG}
    v_lshlrev_b32 v2, 4, v0
    s_lshl_b32 s25, s6, 10
    v_add_u32 v2, s25, v2
    v_mov_b32 v4, 0
    v_mov_b32 v5, 0
    v_mov_b32 v6, 0
    v_mov_b32 v7, 0
    v_cmp_gt_u32 vcc, 1280, v2
    s_and_saveexec_b64 s[26:27], vcc
    s_cbranch_execz L_si0
    buffer_store_dwordx4 v[4:7], v2, s[8:11], s24 offen sc1
L_si0:
    s_mov_b64 exec, s[26:27]
    s_waitcnt vmcnt(0)
    s_barrier'''
    dts0=''
    if cfg.get('dbgts'):
        dts0='''s_cmp_lg_u32 s2, 0
    s_cbranch_scc1 L_dts0
    s_memrealtime s[100:101]
    s_waitcnt lgkmcnt(0)
    v_mov_b32 v2, s100
    v_mov_b32 v3, 16
    s_mov_b64 exec, 1
    buffer_store_dword v2, v3, s[12:15], 0 offen
    s_mov_b64 exec, -1
L_dts0:'''
    clk0=''
    if cfg.get('clk'):
        clk0='''s_memtime s[100:101]
    s_memrealtime s[98:99]
    s_waitcnt lgkmcnt(0)
    s_lshl_b32 s24, s2, 5
    s_add_u32 s24, s24, 0xCB00000
    v_mov_b32 v2, s100
    v_mov_b32 v3, s98
    v_mov_b32 v4, s3
    v_mov_b32 v5, s5
    v_mov_b32 v6, 0
    s_mov_b64 exec, 1
    buffer_store_dwordx4 v[2:5], v6, s[8:11], s24 offen
    s_mov_b64 exec, -1'''
    tss=''
    if cfg.get('ts'):
        tss='''s_memrealtime s[98:99]
    s_waitcnt lgkmcnt(0)
    v_mov_b32 v3, s98
    s_lshl_b32 s24, s3, 2
    s_add_u32 s24, s24, 160
    v_mov_b32 v4, s24
    s_mov_b64 exec, 1
    buffer_store_dword v3, v4, s[12:15], 0 offen
    s_mov_b64 exec, -1'''
    a(f"""
    s_cmp_ge_u32 s2, 256
    s_cbranch_scc1 L_end
    s_load_dwordx2 s[8:9], s[0:1], 96        ; ws
    s_load_dwordx2 s[12:13], s[0:1], 88      ; dbg
    s_getreg_b32 s3, hwreg(HW_REG_XCC_ID, 0, 4)
    v_lshrrev_b32 v1, 6, v0
    s_nop 0
    v_readfirstlane_b32 s6, v1
    v_and_b32 v0, 63, v0                     ; lane
    s_waitcnt lgkmcnt(0)
    s_mov_b32 s10, 0x10000000
    s_mov_b32 s11, 0x20000
    s_mov_b32 s14, 256
    s_mov_b32 s15, 0x20000
    {dts0}
    {selfinit}
    s_cmp_lg_u32 s6, 0
    s_cbranch_scc1 L_claimed
    v_mov_b32 v3, 1
    s_and_b32 s24, s3, 1
    s_lshl_b32 s24, s24, 7
    s_lshr_b32 s25, s3, 1
    s_lshl_b32 s25, s25, 2
    s_add_u32 s24, s24, s25
    v_mov_b32 v4, s24
    s_mov_b64 exec, 1
    buffer_atomic_add v3, v4, s[12:15], 0 offen sc0
    s_waitcnt vmcnt(0)
    v_mov_b32 v5, 0
    ds_write_b32 v5, v3
    s_waitcnt lgkmcnt(0)
    s_mov_b64 exec, -1
L_claimed:
    s_barrier
    v_mov_b32 v5, 0
    ds_read_b32 v3, v5
    s_waitcnt lgkmcnt(0)
    v_readfirstlane_b32 s5, v3
    s_barrier
    s_cmp_ge_u32 s5, 32
    s_cbranch_scc1 L_end
    {tss}
    {clk0}
    s_cmp_lt_u32 s3, 2
    s_cbranch_scc1 L_CH
    s_cmp_lt_u32 s3, 4
    s_cbranch_scc1 L_P
    s_cmp_eq_u32 s3, 4
    s_cbranch_scc1 L_ATT
    s_cmp_eq_u32 s3, 5
    s_cbranch_scc1 L_O
    s_cmp_eq_u32 s3, 6
    s_cbranch_scc1 L_AH
    s_cmp_lt_u32 s5, 8
    s_cbranch_scc1 L_AWO
    s_branch L_F
L_fail:
    s_load_dwordx2 s[12:13], s[0:1], 88
    s_waitcnt lgkmcnt(0)
    s_mov_b32 s14, 256
    s_mov_b32 s15, 0x20000
    s_lshl_b32 s24, s3, 2
    s_add_u32 s24, s24, 32
    v_mov_b32 v4, s24
    s_add_u32 s25, s5, 1
    v_mov_b32 v3, s25
    s_mov_b64 exec, 1
    buffer_store_dword v3, v4, s[12:15], 0 offen
L_end:
    s_endpgm
    """)
    fail='L_fail'
    def init_wait(a_,name,cnt_off=32,target=256,sb=92):
        if cfg.get('init',False): return
        if target==256:
            gl=f'''v_mbcnt_lo_u32_b32 v9, -1, 0
        v_mbcnt_hi_u32_b32 v9, -1, v9
        v_min_u32 v9, 7, v9
        v_and_b32 v10, 1, v9
        v_lshlrev_b32 v10, 7, v10
        v_lshrrev_b32 v9, 1, v9
        v_lshl_add_u32 v9, v9, 2, v10
        buffer_load_dword v9, v9, s[{sb}:{sb+3}], 0 offen sc1
        s_waitcnt vmcnt(0)
        v_cmp_gt_u32 vcc, 32, v9
        s_cmp_eq_u64 vcc, 0
        s_cselect_b32 s{sb+5}, 256, 0'''
        else:
            gl=f'''v_mov_b32 v9, {cnt_off}
        buffer_load_dword v9, v9, s[{sb}:{sb+3}], 0 offen sc1
        s_waitcnt vmcnt(0)
        v_readfirstlane_b32 s{sb+5}, v9'''
        a_(f'''
        s_load_dwordx2 s[{sb}:{sb+1}], s[0:1], 88
        s_waitcnt lgkmcnt(0)
        s_mov_b32 s{sb+2}, 256
        s_mov_b32 s{sb+3}, 0x20000
        s_mov_b32 s{sb+4}, 0
{name}_iw:
        {gl}
        s_cmp_ge_u32 s{sb+5}, {target}
        s_cbranch_scc1 {name}_iwd
        s_add_u32 s{sb+4}, s{sb+4}, 1
        s_cmp_gt_u32 s{sb+4}, {cfg.get('spin',roles.SPIN_DEFAULT)}
        s_cbranch_scc1 L_fail
        s_sleep 2
        s_branch {name}_iw
{name}_iwd:
        ''')
    cfg=dict(cfg); cfg['init_wait']=init_wait
    marks={}
    def begin(name):
        marks[name]=len(a.lines)
        if cfg.get('pf',True) and not cfg.get('sizing'):
            roles.prefetch_code(a,'LB_'+name,'LE_'+name,cfg['sizes'].get(name,4096)+4096)
        a.label('LB_'+name)
        marks[name]=len(a.lines)
    def end(name):
        a.label('LE_'+name)
        if cfg.get('sizing'): cfg['sizes'][name]=(len(a.lines)-marks[name])*7
    END='s_branch L_fin' if cfg.get('clk') else 's_endpgm'
    a.label('L_F')
    if 'F' in en:
        a("""
        s_sub_u32 s5, s5, 8
        s_lshr_b32 s7, s5, 2
        s_and_b32 s5, s5, 3
        s_mov_b32 s4, 0
        s_cmp_eq_u32 s7, 0
        s_cbranch_scc1 L_F0
        s_cmp_eq_u32 s7, 2
        s_cbranch_scc1 L_F2
        s_cmp_eq_u32 s7, 4
        s_cbranch_scc1 L_F3
        s_mov_b32 s4, 1
        s_cmp_eq_u32 s7, 5
        s_cbranch_scc1 L_F2
        s_lshr_b32 s4, s7, 1
        """)
        begin('FT1'); roles3.emit_F(a,cfg,'T1',fail); end('FT1'); a("s_endpgm")
        a.label('L_F0'); begin('FT0'); roles3.emit_F(a,cfg,'T0',fail); end('FT0'); a("s_endpgm")
        a.label('L_F2'); begin('FT2'); roles3.emit_F(a,cfg,'T2',fail); end('FT2'); a("s_endpgm")
        a.label('L_F3'); begin('FT3'); roles3.emit_F(a,cfg,'T3',fail); end('FT3')
    a(END)
    a.label('L_AWO')
    if 'AWO' in en:
        a("s_lshr_b32 s4, s5, 2\ns_and_b32 s5, s5, 3")
        begin('AWO'); roles3.emit_AWO(a,cfg,fail); end('AWO')
    a(END)
    a.label('L_ATT')
    if 'ATT' in en:
        begin('ATT'); roles3.emit_ATT(a,cfg,fail); end('ATT')
    a(END)
    a.label('L_AH')
    if 'AH' in en: begin('AH'); roles2.emit_AH(a,cfg,fail); end('AH')
    a(END)
    def gate(name):
        if not cfg.get('gate',True): return
        a(f"s_cmp_eq_u32 s4, 0\ns_cbranch_scc1 {name}_ng0")
        init_wait(a,name+'gi')
        a.label(name+'_ng0')
        a(f"s_cmp_eq_u32 s4, 0\ns_cbranch_scc1 {name}_ng\ns_mov_b32 s12, {WS_FLAG+FL_XN+cfg.get('gate_t',1)*64*128+cfg.get('gate_s',0)*128}")
        roles.wait_flags(a,name+'g',16,'s12',fail,cfg.get('spin',roles.SPIN_DEFAULT),vtmp=(8,9),sleep=8)
        a.label(name+'_ng')
    a.label('L_O')
    if 'O' in en:
        a("s_lshr_b32 s4, s5, 4\ns_and_b32 s5, s5, 15")
        gate('L_O')
        begin('O'); roles3.emit_O5(a,cfg,fail); end('O')
    a(END)
    a.label('L_P')
    if 'P' in en:
        a("s_sub_u32 s4, s3, 2")
        gate('L_P')
        begin('P'); roles3.emit_P(a,cfg,fail); end('P')
    a(END)
    a.label('L_CH')
    if 'CH' in en:
        a("s_mov_b32 s4, s3")
        gate('L_CH')
        c=dict(FL_P=FL_P,FL_CH=FL_CH); c.update(cfg)
        begin('CH'); chain.emit_chain(a,c,fail); end('CH')
        if cfg.get('stamps') or cfg.get('tot'):
            a("""
            s_load_dwordx2 s[12:13], s[0:1], 96
            s_waitcnt lgkmcnt(0)
            s_mov_b32 s14, 0x10000000
            s_mov_b32 s15, 0x20000
            s_memtime s[70:71]
            s_waitcnt lgkmcnt(0)
            s_sub_u32 s75, s70, s74
            s_lshl_b32 s32, s4, 5
            s_add_u32 s32, s32, s5
            s_lshl_b32 s32, s32, 2
            s_add_u32 s32, s32, s6
            s_lshl_b32 s32, s32, 6
            s_add_u32 s32, s32, 0xC800000
            v_mov_b32 v32, s32
            """)
            for k in range(10): a(f"v_mov_b32 v{36+k}, s{76+k}")
            a("""
            v_mov_b32 v45, s88
            v_mov_b32 v46, s75
            v_mov_b32 v47, s59
            s_mov_b64 exec, 1
            buffer_store_dwordx4 v[36:39], v32, s[12:15], 0 offen
            buffer_store_dwordx4 v[40:43], v32, s[12:15], 0 offen offset:16
            buffer_store_dwordx4 v[44:47], v32, s[12:15], 0 offen offset:32
            s_mov_b64 exec, -1
            """)
        a("""
        s_cmp_eq_u32 s59, 0
        s_cbranch_scc1 L_CHend
        s_branch L_fail
L_CHend:
        """)
    a(END)
    if cfg.get('clk'):
        a('''
L_fin:
    s_cmp_lg_u32 s6, 0
    s_cbranch_scc1 L_fin2
    s_memtime s[100:101]
    s_memrealtime s[98:99]
    s_waitcnt lgkmcnt(0)
    s_lshl_b32 s24, s2, 5
    s_add_u32 s24, s24, 0xCB00010
    v_mov_b32 v2, s100
    v_mov_b32 v3, s98
    v_mov_b32 v5, 0
    s_mov_b64 exec, 1
    buffer_store_dwordx2 v[2:3], v5, s[8:11], s24 offen
L_fin2:
    s_endpgm
''')
    if cfg.get('fake16'):
        import re as _re
        new=[]; on=False
        for l in a.lines:
            if l.startswith('LB_'): on = l[3:-1] in cfg['fake16']
            if l.startswith('LE_'): on=False
            mm=_re.match(r'\s*v_mfma_f32_32x32x16_bf16 v\[(\d+):(\d+)\], (\S+), (\S+), (\S+)',l)
            if on and mm:
                d=int(mm.group(1)); A=mm.group(3).rstrip(','); B=mm.group(4).rstrip(',')
                new.append(f"    v_mfma_f32_16x16x32_bf16 v[{d}:{d+3}], {A}, {B}, v[{d}:{d+3}]")
                new.append(f"    v_mfma_f32_16x16x32_bf16 v[{d+4}:{d+7}], {A}, {B}, v[{d+4}:{d+7}]")
            else: new.append(l)
        a.lines=new
    out,total,errs=a.finish()
    for e in list(errs.values())[:10]: print('LINT',e,file=sys.stderr)
    print('nops inserted',total,'instrs',len(out),file=sys.stderr)
    withinit=cfg.get('init',False) and not cfg.get('hostinit')
    if withinit:
        hdr=f"""; @launch kernel={INIT} grid=(256,1,1) block=(256,1,1) lds=0
; @launch kernel={K} grid=(256,1,1) block=(256,1,1) lds=163840
"""
    else:
        hdr=f"; @launch grid=(256,1,1) block=(256,1,1) lds=163840\n"
    txt=hdr+f""".amdgcn_target "amdgcn-amd-amdhsa--gfx950"
.text
.globl {K}
.p2align 8
.type {K},@function
"""+'\n'.join(out)+'\n'
    if withinit:
        txt+=f""".globl {INIT}
.p2align 8
.type {INIT},@function
"""+'\n'.join(gen_init())+'\n'
    txt+='.section .rodata,"a"\n.p2align 6\n'+desc(K)
    if withinit: txt+='.p2align 6\n'+desc(INIT,16,32)
    return txt
if __name__=='__main__':
    s=gen(dict())
    open('m.s','w').write(s)
    print(len(s),'bytes')
    import subprocess
    r=subprocess.run(['clang','-x','assembler','-target','amdgcn-amd-amdhsa','-mcpu=gfx950','-c','m.s','-o','m.o'],capture_output=True,text=True); print(r.stderr)
```

```python
import sys
from asmlib import Asm
from common import *
import importlib, os
chain=importlib.import_module(os.environ.get('CHAIN','chain10'))
import roles, roles2, roles3
KN='interleave_layers__sliding_block__memory_aug_recurrent_mem_tr__prompt_kernel'
INIT='init_ws_kernel'
ALL={'CH','P','O','AH','AWO','F','ATT'}
def desc(K,nv=512,ns=102):
    return f'''
.amdhsa_kernel {K}
  .amdhsa_next_free_vgpr {nv}
  .amdhsa_next_free_sgpr {ns}
  .amdhsa_accum_offset {min(256,(nv+3)//4*4)}
  .amdhsa_group_segment_fixed_size 0
  .amdhsa_kernarg_size 104
  .amdhsa_user_sgpr_count 2
  .amdhsa_user_sgpr_kernarg_segment_ptr 1
  .amdhsa_system_sgpr_workgroup_id_x 1
.end_amdhsa_kernel
'''
def gen_init():
    a=Asm()
    a.label(INIT)
    nflag=FL_END
    a(f"""
    s_cmp_ge_u32 s2, 256
    s_cbranch_scc1 LI_end
    s_load_dwordx2 s[8:9], s[0:1], 96
    s_waitcnt lgkmcnt(0)
    s_mov_b32 s10, 0x10000000
    s_mov_b32 s11, 0x20000
    s_lshl_b32 s3, s2, 8
    v_add_u32 v1, s3, v0
    v_lshlrev_b32 v1, 4, v1                  ; 0 .. 1MB
    v_mov_b32 v4, 0
    v_mov_b32 v5, 0
    v_mov_b32 v6, 0
    v_mov_b32 v7, 0
    v_mov_b32 v8, -1
    v_mov_b32 v9, -1
    v_mov_b32 v10, -1
    v_mov_b32 v11, -1
    s_mov_b32 s12, {WS_FLAG}
    v_cmp_gt_u32 vcc, {nflag}, v1
    s_and_saveexec_b64 s[14:15], vcc
    s_cbranch_execz LI_a
    buffer_store_dwordx4 v[4:7], v1, s[8:11], s12 offen
LI_a:
    s_mov_b64 exec, s[14:15]
    s_mov_b32 s12, {WS_INB}
    buffer_store_dwordx4 v[8:11], v1, s[8:11], s12 offen
    s_mov_b32 s12, {WS_INB+0x100000}
    buffer_store_dwordx4 v[8:11], v1, s[8:11], s12 offen
    s_mov_b32 s12, {WS_MEM}
    v_cmp_gt_u32 vcc, 0x10000, v1
    s_and_saveexec_b64 s[14:15], vcc
    s_cbranch_execz LI_b
    buffer_store_dwordx4 v[8:11], v1, s[8:11], s12 offen
LI_b:
    s_mov_b64 exec, s[14:15]
LI_end:
    s_endpgm
    """)
    out,_,errs=a.finish()
    for e in errs.values(): print('LINT',e,file=sys.stderr)
    return out
def gen(cfg):
    if cfg.get('pf',True) and 'sizes' not in cfg:
        c1=dict(cfg); c1['sizes']={}; c1['sizing']=True
        gen2(c1)
        cfg=dict(cfg); cfg['sizes']=c1['sizes']
    return gen2(cfg)
def gen2(cfg):
    cfg.get('shift')
    if cfg.get('hostinit'):
        cfg=dict(cfg); cfg['init']=True; cfg['gate']=False
    en=cfg.get('roles',ALL)
    roles.TS=cfg.get('ts',False)
    roles.TSP=cfg.get('tsp',False)
    roles.DEFSLEEP=cfg.get('defsleep',1)
    roles.DBGTS=cfg.get('dbgts',False)
    a=Asm(); K=KN
    a.label(K)
    selfinit=''
    if not cfg.get('init',False):
        selfinit=f'''s_mul_i32 s24, s2, 1280
    s_add_u32 s24, s24, {WS_FLAG}
    v_lshlrev_b32 v2, 4, v0
    s_lshl_b32 s25, s6, 10
    v_add_u32 v2, s25, v2
    v_mov_b32 v4, 0
    v_mov_b32 v5, 0
    v_mov_b32 v6, 0
    v_mov_b32 v7, 0
    v_cmp_gt_u32 vcc, 1280, v2
    s_and_saveexec_b64 s[26:27], vcc
    s_cbranch_execz L_si0
    buffer_store_dwordx4 v[4:7], v2, s[8:11], s24 offen sc1
L_si0:
    s_mov_b64 exec, s[26:27]
    s_waitcnt vmcnt(0)
    s_barrier'''
    dts0=''
    if cfg.get('dbgts'):
        dts0='''s_cmp_lg_u32 s2, 0
    s_cbranch_scc1 L_dts0
    s_memrealtime s[100:101]
    s_waitcnt lgkmcnt(0)
    v_mov_b32 v2, s100
    v_mov_b32 v3, 16
    s_mov_b64 exec, 1
    buffer_store_dword v2, v3, s[12:15], 0 offen
    s_mov_b64 exec, -1
L_dts0:'''
    clk0=''
    if cfg.get('clk'):
        clk0='''s_memtime s[100:101]
    s_memrealtime s[98:99]
    s_waitcnt lgkmcnt(0)
    s_lshl_b32 s24, s2, 5
    s_add_u32 s24, s24, 0xCB00000
    v_mov_b32 v2, s100
    v_mov_b32 v3, s98
    v_mov_b32 v4, s3
    v_mov_b32 v5, s5
    v_mov_b32 v6, 0
    s_mov_b64 exec, 1
    buffer_store_dwordx4 v[2:5], v6, s[8:11], s24 offen
    s_mov_b64 exec, -1'''
    tss=''
    if cfg.get('ts'):
        tss='''s_memrealtime s[98:99]
    s_waitcnt lgkmcnt(0)
    v_mov_b32 v3, s98
    s_lshl_b32 s24, s3, 2
    s_add_u32 s24, s24, 160
    v_mov_b32 v4, s24
    s_mov_b64 exec, 1
    buffer_store_dword v3, v4, s[12:15], 0 offen
    s_mov_b64 exec, -1'''
    a(f"""
    s_cmp_ge_u32 s2, 256
    s_cbranch_scc1 L_end
    s_load_dwordx2 s[8:9], s[0:1], 96        ; ws
    s_load_dwordx2 s[12:13], s[0:1], 88      ; dbg
    s_getreg_b32 s3, hwreg(HW_REG_XCC_ID, 0, 4)
    v_lshrrev_b32 v1, 6, v0
    s_nop 0
    v_readfirstlane_b32 s6, v1
    v_and_b32 v0, 63, v0                     ; lane
    s_waitcnt lgkmcnt(0)
    s_mov_b32 s10, 0x10000000
    s_mov_b32 s11, 0x20000
    s_mov_b32 s14, 256
    s_mov_b32 s15, 0x20000
    {dts0}
    {selfinit}
    s_cmp_lg_u32 s6, 0
    s_cbranch_scc1 L_claimed
    v_mov_b32 v3, 1
    s_and_b32 s24, s3, 1
    s_lshl_b32 s24, s24, 7
    s_lshr_b32 s25, s3, 1
    s_lshl_b32 s25, s25, 2
    s_add_u32 s24, s24, s25
    v_mov_b32 v4, s24
    s_mov_b64 exec, 1
    buffer_atomic_add v3, v4, s[12:15], 0 offen sc0
    s_waitcnt vmcnt(0)
    v_mov_b32 v5, 0
    ds_write_b32 v5, v3
    s_waitcnt lgkmcnt(0)
    s_mov_b64 exec, -1
L_claimed:
    s_barrier
    v_mov_b32 v5, 0
    ds_read_b32 v3, v5
    s_waitcnt lgkmcnt(0)
    v_readfirstlane_b32 s5, v3
    s_barrier
    s_cmp_ge_u32 s5, 32
    s_cbranch_scc1 L_end
    {tss}
    {clk0}
    s_cmp_lt_u32 s3, 2
    s_cbranch_scc1 L_CH
    s_cmp_lt_u32 s3, 4
    s_cbranch_scc1 L_P
    s_cmp_eq_u32 s3, 4
    s_cbranch_scc1 L_ATT
    s_cmp_eq_u32 s3, 5
    s_cbranch_scc1 L_O
    s_cmp_eq_u32 s3, 6
    s_cbranch_scc1 L_AH
    s_cmp_lt_u32 s5, 8
    s_cbranch_scc1 L_AWO
    s_branch L_F
L_fail:
    s_load_dwordx2 s[12:13], s[0:1], 88
    s_waitcnt lgkmcnt(0)
    s_mov_b32 s14, 256
    s_mov_b32 s15, 0x20000
    s_lshl_b32 s24, s3, 2
    s_add_u32 s24, s24, 32
    v_mov_b32 v4, s24
    s_add_u32 s25, s5, 1
    v_mov_b32 v3, s25
    s_mov_b64 exec, 1
    buffer_store_dword v3, v4, s[12:15], 0 offen
L_end:
    s_endpgm
    """)
    fail='L_fail'
    def init_wait(a_,name,cnt_off=32,target=256,sb=92):
        if cfg.get('init',False): return
        if target==256:
            gl=f'''v_mbcnt_lo_u32_b32 v9, -1, 0
        v_mbcnt_hi_u32_b32 v9, -1, v9
        v_min_u32 v9, 7, v9
        v_and_b32 v10, 1, v9
        v_lshlrev_b32 v10, 7, v10
        v_lshrrev_b32 v9, 1, v9
        v_lshl_add_u32 v9, v9, 2, v10
        buffer_load_dword v9, v9, s[{sb}:{sb+3}], 0 offen sc1
        s_waitcnt vmcnt(0)
        v_cmp_gt_u32 vcc, 32, v9
        s_cmp_eq_u64 vcc, 0
        s_cselect_b32 s{sb+5}, 256, 0'''
        else:
            gl=f'''v_mov_b32 v9, {cnt_off}
        buffer_load_dword v9, v9, s[{sb}:{sb+3}], 0 offen sc1
        s_waitcnt vmcnt(0)
        v_readfirstlane_b32 s{sb+5}, v9'''
        a_(f'''
        s_load_dwordx2 s[{sb}:{sb+1}], s[0:1], 88
        s_waitcnt lgkmcnt(0)
        s_mov_b32 s{sb+2}, 256
        s_mov_b32 s{sb+3}, 0x20000
        s_mov_b32 s{sb+4}, 0
{name}_iw:
        {gl}
        s_cmp_ge_u32 s{sb+5}, {target}
        s_cbranch_scc1 {name}_iwd
        s_add_u32 s{sb+4}, s{sb+4}, 1
        s_cmp_gt_u32 s{sb+4}, {cfg.get('spin',roles.SPIN_DEFAULT)}
        s_cbranch_scc1 L_fail
        s_sleep 2
        s_branch {name}_iw
{name}_iwd:
        ''')
    cfg=dict(cfg); cfg['init_wait']=init_wait
    marks={}
    def begin(name):
        marks[name]=len(a.lines)
        if cfg.get('pf',True) and not cfg.get('sizing'):
            roles.prefetch_code(a,'LB_'+name,'LE_'+name,cfg['sizes'].get(name,4096)+4096)
        al=cfg.get('align',{}).get(name)
        if al is not None:
            a.lines.append('.p2align 8')
            for _ in range(al): a("s_nop 0")
        a.label('LB_'+name)
        marks[name]=len(a.lines)
    def end(name):
        a.label('LE_'+name)
        if cfg.get('sizing'): cfg['sizes'][name]=(len(a.lines)-marks[name])*7
    END='s_branch L_fin' if cfg.get('clk') else 's_endpgm'
    a.label('L_F')
    if 'F' in en:
        a("""
        s_sub_u32 s5, s5, 8
        s_lshr_b32 s7, s5, 2
        s_and_b32 s5, s5, 3
        s_mov_b32 s4, 0
        s_cmp_eq_u32 s7, 0
        s_cbranch_scc1 L_F0
        s_cmp_eq_u32 s7, 2
        s_cbranch_scc1 L_F2
        s_cmp_eq_u32 s7, 4
        s_cbranch_scc1 L_F3
        s_mov_b32 s4, 1
        s_cmp_eq_u32 s7, 5
        s_cbranch_scc1 L_F2
        s_lshr_b32 s4, s7, 1
        """)
        begin('FT1'); roles3.emit_F(a,cfg,'T1',fail); end('FT1'); a("s_endpgm")
        a.label('L_F0'); begin('FT0'); roles3.emit_F(a,cfg,'T0',fail); end('FT0'); a("s_endpgm")
        a.label('L_F2'); begin('FT2'); roles3.emit_F(a,cfg,'T2',fail); end('FT2'); a("s_endpgm")
        a.label('L_F3'); begin('FT3'); roles3.emit_F(a,cfg,'T3',fail); end('FT3')
    a(END)
    a.label('L_AWO')
    if 'AWO' in en:
        a("s_lshr_b32 s4, s5, 2\ns_and_b32 s5, s5, 3")
        begin('AWO'); roles3.emit_AWO(a,cfg,fail); end('AWO')
    a(END)
    a.label('L_ATT')
    if 'ATT' in en:
        begin('ATT'); roles3.emit_ATT(a,cfg,fail); end('ATT')
    a(END)
    a.label('L_AH')
    if 'AH' in en: begin('AH'); roles2.emit_AH(a,cfg,fail); end('AH')
    a(END)
    def gate(name):
        if not cfg.get('gate',True): return
        a(f"s_cmp_eq_u32 s4, 0\ns_cbranch_scc1 {name}_ng0")
        init_wait(a,name+'gi')
        a.label(name+'_ng0')
        a(f"s_cmp_eq_u32 s4, 0\ns_cbranch_scc1 {name}_ng\ns_mov_b32 s12, {WS_FLAG+FL_XN+cfg.get('gate_t',1)*64*128+cfg.get('gate_s',0)*128}")
        roles.wait_flags(a,name+'g',16,'s12',fail,cfg.get('spin',roles.SPIN_DEFAULT),vtmp=(8,9),sleep=8)
        a.label(name+'_ng')
    a.label('L_O')
    if 'O' in en:
        a("s_lshr_b32 s4, s5, 4\ns_and_b32 s5, s5, 15")
        gate('L_O')
        begin('O'); roles3.emit_O5(a,cfg,fail); end('O')
    a(END)
    a.label('L_P')
    if 'P' in en:
        a("s_sub_u32 s4, s3, 2")
        gate('L_P')
        begin('P'); roles3.emit_P(a,cfg,fail); end('P')
    a(END)
    a.label('L_CH')
    if 'CH' in en:
        a("s_mov_b32 s4, s3")
        gate('L_CH')
        c=dict(FL_P=FL_P,FL_CH=FL_CH); c.update(cfg)
        begin('CH'); chain.emit_chain(a,c,fail); end('CH')
        if cfg.get('stamps') or cfg.get('tot'):
            a("""
            s_load_dwordx2 s[12:13], s[0:1], 96
            s_waitcnt lgkmcnt(0)
            s_mov_b32 s14, 0x10000000
            s_mov_b32 s15, 0x20000
            s_memtime s[70:71]
            s_waitcnt lgkmcnt(0)
            s_sub_u32 s75, s70, s74
            s_lshl_b32 s32, s4, 5
            s_add_u32 s32, s32, s5
            s_lshl_b32 s32, s32, 2
            s_add_u32 s32, s32, s6
            s_lshl_b32 s32, s32, 6
            s_add_u32 s32, s32, 0xC800000
            v_mov_b32 v32, s32
            """)
            for k in range(10): a(f"v_mov_b32 v{36+k}, s{76+k}")
            a("""
            v_mov_b32 v45, s88
            v_mov_b32 v46, s75
            v_mov_b32 v47, s59
            s_mov_b64 exec, 1
            buffer_store_dwordx4 v[36:39], v32, s[12:15], 0 offen
            buffer_store_dwordx4 v[40:43], v32, s[12:15], 0 offen offset:16
            buffer_store_dwordx4 v[44:47], v32, s[12:15], 0 offen offset:32
            s_mov_b64 exec, -1
            """)
        a("""
        s_cmp_eq_u32 s59, 0
        s_cbranch_scc1 L_CHend
        s_branch L_fail
L_CHend:
        """)
    a(END)
    if cfg.get('clk'):
        a('''
L_fin:
    s_cmp_lg_u32 s6, 0
    s_cbranch_scc1 L_fin2
    s_memtime s[100:101]
    s_memrealtime s[98:99]
    s_waitcnt lgkmcnt(0)
    s_lshl_b32 s24, s2, 5
    s_add_u32 s24, s24, 0xCB00010
    v_mov_b32 v2, s100
    v_mov_b32 v3, s98
    v_mov_b32 v5, 0
    s_mov_b64 exec, 1
    buffer_store_dwordx2 v[2:3], v5, s[8:11], s24 offen
L_fin2:
    s_endpgm
''')
    if cfg.get('fake16'):
        import re as _re
        new=[]; on=False
        for l in a.lines:
            if l.startswith('LB_'): on = l[3:-1] in cfg['fake16']
            if l.startswith('LE_'): on=False
            mm=_re.match(r'\s*v_mfma_f32_32x32x16_bf16 v\[(\d+):(\d+)\], (\S+), (\S+), (\S+)',l)
            if on and mm:
                d=int(mm.group(1)); A=mm.group(3).rstrip(','); B=mm.group(4).rstrip(',')
                new.append(f"    v_mfma_f32_16x16x32_bf16 v[{d}:{d+3}], {A}, {B}, v[{d}:{d+3}]")
                new.append(f"    v_mfma_f32_16x16x32_bf16 v[{d+4}:{d+7}], {A}, {B}, v[{d+4}:{d+7}]")
            else: new.append(l)
        a.lines=new
    out,total,errs=a.finish()
    for e in list(errs.values())[:10]: print('LINT',e,file=sys.stderr)
    print('nops inserted',total,'instrs',len(out),file=sys.stderr)
    withinit=cfg.get('init',False) and not cfg.get('hostinit')
    if withinit:
        hdr=f"""; @launch kernel={INIT} grid=(256,1,1) block=(256,1,1) lds=0
; @launch kernel={K} grid=(256,1,1) block=(256,1,1) lds=163840
"""
    else:
        hdr=f"; @launch grid=(256,1,1) block=(256,1,1) lds=163840\n"
    txt=hdr+f""".amdgcn_target "amdgcn-amd-amdhsa--gfx950"
.text
.globl {K}
.p2align 8
.type {K},@function
"""+'\n'.join(out)+'\n'
    if withinit:
        txt+=f""".globl {INIT}
.p2align 8
.type {INIT},@function
"""+'\n'.join(gen_init())+'\n'
    txt+='.section .rodata,"a"\n.p2align 6\n'+desc(K)
    if withinit: txt+='.p2align 6\n'+desc(INIT,16,32)
    return txt
if __name__=='__main__':
    s=gen(dict())
    open('m.s','w').write(s)
    print(len(s),'bytes')
    import subprocess
    r=subprocess.run(['clang','-x','assembler','-target','amdgcn-amd-amdhsa','-mcpu=gfx950','-c','m.s','-o','m.o'],capture_output=True,text=True); print(r.stderr)
```
